```python
import torch

def _softmax(x, axis=-1):
    return torch.softmax(x, dim=axis)
def _gelu(x):
    return torch.nn.functional.gelu(x, approximate="tanh")
def _silu(x):
    return torch.nn.functional.silu(x)
def _sigmoid(x):
    return torch.sigmoid(x)
def _layernorm(x, axis=-1, eps=1e-5):
    m = x.mean(dim=axis, keepdim=True)
    v = x.var(dim=axis, keepdim=True, unbiased=False)
    return (x - m) / torch.sqrt(v + eps)
def _scatter_add(tgt, idx, src, axis=0):
    return tgt.clone().index_add_(axis, idx, src)
def _segment_sum(src, seg, n):
    out = torch.zeros((n,) + src.shape[1:], dtype=src.dtype)
    return out.index_add_(0, seg, src)
def _pad(x, pw):
    flat = tuple(v for pair in reversed(pw) for v in pair)
    return torch.nn.functional.pad(x, flat)

kernel_name = 'parallel_sum__grouped_kv_mqa__dense_activation_relu__prompt'

def setup_inputs():

    _w = (lambda a: (lambda t: t.to(torch.bfloat16) if t.is_floating_point() else t)(torch.as_tensor(a)))
    def _A_setup():
        B, S, D, H = 1, 2048, 640, 32
        Dh = D // H
        return {
            "x": _w((lambda *s: torch.randn(*s, dtype=torch.bfloat16) * 0.05)(B, S, D)),
            "wq": _w((lambda *s: torch.randn(*s, dtype=torch.bfloat16) * 0.1)(D, H * Dh)),
            "wk": _w((lambda *s: torch.randn(*s, dtype=torch.bfloat16) * 0.1)(D, Dh)),
            "wv": _w((lambda *s: torch.randn(*s, dtype=torch.bfloat16) * 0.05)(D, Dh)),
            "wo": _w((lambda *s: torch.randn(*s, dtype=torch.bfloat16) * 0.05)(H * Dh, D)),
        }
    _A_in = _A_setup()

    def _B_setup():
        B, S, D, Dff = 1, 2048, 640, 1728
        return {
            "x": _w((lambda *s: torch.randn(*s, dtype=torch.bfloat16) * 0.05)(B, S, D)),
            "w1": _w((lambda *s: torch.randn(*s, dtype=torch.bfloat16) * 0.05)(D, Dff)),
            "w2": _w((lambda *s: torch.randn(*s, dtype=torch.bfloat16) * 0.05)(Dff, D)),
        }
    _B_in = _B_setup()

    return {
        "A_x": _A_in["x"],
        "A_wq": _A_in["wq"],
        "A_wk": _A_in["wk"],
        "A_wv": _A_in["wv"],
        "A_wo": _A_in["wo"],
        "B_x": _B_in["x"],
        "B_w1": _B_in["w1"],
        "B_w2": _B_in["w2"],
    }

def reference(A_x, A_wq, A_wk, A_wv, A_wo, B_x, B_w1, B_w2):
    def _A_ref(x, wq, wk, wv, wo):
        B, S, D = x.shape
        H = 32
        Dh = D // H
        q = (lambda x, *d: x.permute(*d))((x @ wq).reshape(B, S, H, Dh), 0, 2, 1, 3)
        k = x @ wk
        v = x @ wv
        scores = torch.einsum("bhqd,bkd->bhqk", q, k) * (Dh ** -0.5)
        p = _softmax(scores, axis=-1)
        o = torch.einsum("bhqk,bkd->bhqd", p, v)
        return (lambda x, *d: x.permute(*d))(o, 0, 2, 1, 3).reshape(B, S, H * Dh) @ wo

    def _B_ref(x, w1, w2):
        h = torch.einsum("bsd,df->bsf", x, w1)
        zero = torch.zeros_like(h)
        h = torch.maximum(h, zero)
        return torch.einsum("bsf,fd->bsd", h, w2)

    x = A_x
    xn = _layernorm(x, axis=-1)
    return x + _A_ref(xn, A_wq, A_wk, A_wv, A_wo) + _B_ref(xn, B_w1, B_w2)
```

```python
import re

TRANS = ("v_exp_f32", "v_log_f32", "v_rcp_f32", "v_rsq_f32", "v_sqrt_f32", "v_sin_f32", "v_cos_f32")
REG = re.compile(r"^(-?)(?:abs\()?([vas])(?:(\d+)|\[(\d+):(\d+)\])\)?$")

def regs_of(tok):
    tok = tok.strip()
    if tok in ("vcc",): return {("s", 106), ("s", 107)}
    if tok == "vcc_lo": return {("s", 106)}
    if tok == "vcc_hi": return {("s", 107)}
    if tok == "exec": return {("s", 126), ("s", 127)}
    if tok == "exec_lo": return {("s", 126)}
    if tok == "exec_hi": return {("s", 127)}
    if tok == "m0": return {("s", 124)}
    m = REG.match(tok)
    if not m: return set()
    k = m.group(2)
    if m.group(3) is not None: return {(k, int(m.group(3)))}
    return {(k, i) for i in range(int(m.group(4)), int(m.group(5)) + 1)}

class Ins:
    def __init__(self, text):
        self.text = text
        t = text.split(";")[0].strip()
        self.label = t.endswith(":")
        self.directive = t.startswith(".")
        self.op = t.split()[0] if t else ""
        self.R = set(); self.W = set()
        self.srcs = []
        self.states = 1
        if self.label or self.directive or not t:
            self.states = 0; self.kind = "none"; return
        rest = t[len(self.op):].strip()
        ops = [o.strip() for o in re.split(r",(?![^\[]*\])", rest)] if rest else []
        mods = ""
        if ops:
            parts = ops[-1].split(None, 1)
            ops[-1] = parts[0]
            if len(parts) > 1: mods = parts[1]
        self.mods = mods
        op = self.op
        rs = [regs_of(o) for o in ops]
        self.ops = ops
        if op == "s_nop":
            self.kind = "nop"; self.states = int(ops[0], 0) + 1; return
        if op.startswith("v_mfma"):
            self.kind = "mfma"; self.W = rs[0]; self.A = rs[1]; self.B = rs[2]; self.C = rs[3]
            self.R = rs[1] | rs[2] | rs[3]
            self.passes = 8 if "32x32" in op else 4
            return
        if op.startswith("v_"):
            self.kind = "valu"
            if op.startswith("v_cmp"):
                self.W = rs[0]; self.R = set().union(*rs[1:])
            elif op.startswith("v_permlane32_swap") or op.startswith("v_permlane16_swap") or op.startswith("v_swap"):
                self.W = rs[0] | rs[1]; self.R = rs[0] | rs[1]
            elif op.startswith("v_add_co") or op.startswith("v_addc_co") or op.startswith("v_sub_co"):
                self.W = rs[0] | rs[1]; self.R = set().union(*rs[2:])
            else:
                self.W = rs[0]; self.R = set().union(*rs[1:]) if len(rs) > 1 else set()
                if op.startswith("v_fmac") or op.startswith("v_dot2c") or "sdwa" in op or op.startswith("v_writelane"): self.R |= rs[0]
            self.trans = any(op.startswith(x) for x in TRANS)
            self.dot = op.startswith("v_dot")
            self.dpp = "dpp" in op or "row_" in mods or "quad_perm" in mods
            return
        if op.startswith("ds_"):
            self.kind = "ds"
            if op.startswith("ds_read") or op.startswith("ds_bpermute") or op.startswith("ds_swizzle") or "_rtn" in op:
                self.W = rs[0]; self.R = set().union(*rs[1:])
            else:
                self.R = set().union(*rs)
            return
        if op.startswith("buffer_") or op.startswith("global_"):
            self.kind = "vmem"
            self.lds = " lds" in (" " + mods) or "load_lds" in op
            self.widestore = False
            if op in ("buffer_wbl2", "buffer_inv"): return
            if self.lds:
                self.R = set().union(*rs) | {("s", 124)}
            elif "load" in op:
                self.W = rs[0]; self.R = set().union(*rs[1:])
            elif "atomic" in op:
                self.R = set().union(*rs)
                if "sc0" in mods: self.W = rs[0]
            else:
                self.R = set().union(*rs)
                data = rs[0] if op.startswith("buffer_") else rs[1]
                if "x3" in op or "x4" in op:
                    self.widestore = True; self.data = data
            return
        if op.startswith("s_"):
            self.kind = "salu"
            if op.startswith("s_cmp") or op.startswith("s_bitcmp") or op.startswith("s_cbranch") or op in ("s_branch", "s_waitcnt", "s_barrier", "s_endpgm", "s_setprio", "s_sleep"):
                self.R = set().union(*rs) if rs else set()
            else:
                self.W = rs[0] if rs else set(); self.R = set().union(*rs[1:]) if len(rs) > 1 else set()
                if "saveexec" in op: self.W |= regs_of("exec"); self.R |= regs_of("exec")
            return
        raise ValueError("unknown op " + text)

def vg(s): return {r for r in s if r[0] in "va"}
def sg(s): return {r for r in s if r[0] == "s"}

def need(p, c):
    n = 0
    if p.kind == "valu":
        wv = vg(p.W); ws = sg(p.W)
        if c.kind == "mfma" and wv & c.R: n = max(n, 2)
        if c.kind == "valu":
            if p.trans and not c.trans and wv & c.R: n = max(n, 1)
            if p.trans and c.trans and wv & c.R: n = max(n, 1)
            if c.op.startswith("v_permlane") and wv & c.R: n = max(n, 2)
            if (c.op.startswith("v_readfirstlane") or c.op.startswith("v_readlane")) and wv & c.R: n = max(n, 1)
            if c.dpp and wv & c.R: n = max(n, 2)
            if ws & c.R: n = max(n, 4 if c.op.startswith(("v_readlane", "v_writelane")) else 2)
            if p.dot and (wv & (c.R | c.W)) and c.op != p.op: n = max(n, 3)
            if p.dot and c.op == p.op and (wv & (set().union(*[regs_of(o) for o in c.ops[1:3]]))): n = max(n, 3)
            if ("sdwa" in p.op or "op_sel:" in p.mods) and wv & (c.R | c.W): n = max(n, 1)
        if p.dot and c.kind in ("mfma", "ds", "vmem") and wv & c.R: n = max(n, 3)
        if c.kind == "vmem" and ws & c.R: n = max(n, 5)
        if c.kind == "salu" and ws & c.R: n = max(n, 1)
    if p.kind == "mfma":
        big = p.passes == 8
        if c.kind == "mfma":
            if p.W & (c.A | c.B): n = max(n, 12 if big else 8)
            if p.W & c.C and not (p.W == c.C and p.passes == c.passes): n = max(n, 10 if big else 6)
            if p.W & c.W and not (p.W & c.C): n = max(n, 12 if big else 8)
        elif c.kind in ("valu", "ds", "vmem"):
            if p.W & (c.R | c.W): n = max(n, 12 if big else 8)
            if c.kind == "valu" and p.C & c.W: n = max(n, 7 if big else 3)
    if p.kind == "vmem" and getattr(p, "widestore", False):
        if c.kind == "valu" and p.data & c.W: n = max(n, 2)
        elif c.kind in ("ds", "vmem", "mfma") and p.data & c.W: n = max(n, 1)
    if p.kind == "ds" and p.op in ("ds_write_b128", "ds_write_b96") and c.kind == "valu" and (p.R & c.W): n = max(n, 2)
    if p.kind == "salu" and ("s", 124) in p.W and c.kind == "vmem" and c.lds: n = max(n, 1)
    return n

class Asm:
    def __init__(self):
        self.ins = []
        self.pads = 0
    def raw(self, text):
        self.ins.append(Ins(text))
    def __call__(self, text):
        for line in text.strip().split("\n"):
            line = line.strip()
            if not line or line.startswith(";"): continue
            c = Ins(line)
            if c.kind not in ("none", "nop"):
                dist = 0; req = 0
                for p in reversed(self.ins):
                    if dist >= 20: break
                    if p.kind not in ("none", "nop"):
                        r = need(p, c) - dist
                        req = max(req, r)
                    dist += p.states
                if req > 0:
                    self.ins.append(Ins(f"s_nop {req-1}")); self.pads += 1
            self.ins.append(c)
    def label(self, name):
        self.ins.append(Ins(name + ":"))
    def mark(self): return len(self.ins)
    def check_backedge(self, start, end=None):
        body = self.ins[start:end]
        tail = [i for i in body]
        seq = tail + body
        n0 = len(tail)
        acc = 0
        for idx in range(n0, len(seq)):
            c = seq[idx]
            if acc > 20: break
            if c.kind not in ("none", "nop"):
                dist = 0
                for j in range(idx - 1, -1, -1):
                    p = seq[j]
                    if dist >= 20: break
                    if p.kind not in ("none", "nop") and j < n0:
                        if need(p, c) > dist:
                            raise ValueError(f"backedge hazard: {p.text} -> {c.text} dist {dist} need {need(p,c)}")
                    dist += p.states
            acc += c.states
    def text(self):
        out = []
        for i in self.ins:
            out.append(i.text if (i.label or i.directive) else "    " + i.text)
        return "\n".join(out)

def vr(a, n=1): return f"v{a}" if n == 1 else f"v[{a}:{a+n-1}]"
def sr(a, n=1): return f"s{a}" if n == 1 else f"s[{a}:{a+n-1}]"

def kernel_header(a, name):
    a.raw(".p2align 8")
    a.raw(f".globl {name}")
    a.raw(f".type {name},@function")
    a.label(name)

def kernel_desc(name, vgpr, sgpr=102, accum=None):
    acc = accum if accum is not None else (vgpr + 3) // 4 * 4
    return f""".p2align 6
.amdhsa_kernel {name}
  .amdhsa_next_free_vgpr {vgpr}
  .amdhsa_next_free_sgpr {sgpr}
  .amdhsa_accum_offset {acc}
  .amdhsa_group_segment_fixed_size 0
  .amdhsa_kernarg_size 88
  .amdhsa_user_sgpr_count 2
  .amdhsa_user_sgpr_kernarg_segment_ptr 1
  .amdhsa_system_sgpr_workgroup_id_x 1
.end_amdhsa_kernel"""
```

```python
import math, struct
from asmlib import *

WS_QH = 0
QH_TT = 148 * 1024
WS_KV = 0xA00000
KV_TILE = 3072
WS_O = 0xB00000
O_TT = 40 * 1024
WS_F = 0xE00000
WS_END = WS_F + 2048 * 640 * 4
WS_SIZE = 0x1400000

def f32bits(x): return struct.unpack("<I", struct.pack("<f", x))[0]
QSCALE = math.log2(math.e) / math.sqrt(20.0)

class Cnt:
    def __init__(self, a, name, maxv):
        self.a = a; self.name = name; self.q = []; self.maxv = maxv
    def issue(self, tag): self.q.append(tag)
    def wait(self, *tags):
        last = -1
        for i, t in enumerate(self.q):
            if t in tags: last = i
        if last < 0: return
        n = len(self.q) - 1 - last
        n = min(n, self.maxv)
        self.a(f"s_waitcnt {self.name}({n})")
        self.q = self.q[len(self.q) - n:] if n else []
    def drain(self):
        self.a(f"s_waitcnt {self.name}(0)"); self.q = []

def srd(a, d, base, nbytes):
    a(f"s_mov_b32 s{d}, s{base}")
    a(f"s_and_b32 s{d+1}, s{base+1}, 0xffff")
    a(f"s_mov_b32 s{d+2}, {nbytes}")
    a(f"s_mov_b32 s{d+3}, 0x20000")
```

```python
from common import *

PSTRIDE = 656
PART = 15360

class GW:
    def __init__(self, a, nks, depth, nact, lds_base, wstride_lds, SW, SWS, s_tmp, vbase=4):
        self.a = a; self.nks = nks; self.depth = depth; self.nact = nact
        self.SW = SW; self.SWS = SWS
        self.lds_base = lds_base; self.wstride = wstride_lds
        self.s_lds, self.s_woff, self.s_aoff, self.s_t = s_tmp, s_tmp + 1, s_tmp + 2, s_tmp + 3
        v = vbase
        self.v_wd = v; v += 5
        self.v_l16 = v; v += 1
        self.v_wa = v; v += 1
        v += v & 1
        self.v_act = v; v += 4 * nact
        self.v_wf = v; v += 20
        self.v_acc = v; v += 80
        self.v_end = v
        self.vm = Cnt(a, "vmcnt", 63); self.lg = Cnt(a, "lgkmcnt", 15)
    def setup(self, s_g, s_hg, s_actbase):
        a = self.a
        a(f"s_mul_i32 s{self.s_lds}, s{s_g}, {self.wstride}")
        a(f"s_add_u32 s{self.s_lds}, s{self.s_lds}, {self.lds_base}")
        a(f"s_mul_i32 s{self.s_woff}, s{s_g}, {self.nks*16*1280}")
        a(f"s_mul_i32 s{self.s_t}, s{s_hg}, 320")
        a(f"s_add_u32 s{self.s_woff}, s{self.s_woff}, s{self.s_t}")
        a(f"s_mul_i32 s{self.s_aoff}, s{s_g}, {self.nks*1024}")
        a(f"s_add_u32 s{self.s_aoff}, s{self.s_aoff}, s{s_actbase}")
        a(f"v_lshlrev_b32 v{self.v_l16}, 4, v0")
        for m in range(5):
            a(f"v_add_u32 v1, {64*m}, v0")
            a(f"v_mul_u32_u24 v2, 0xcccd, v1")
            a(f"v_lshrrev_b32 v2, 20, v2")
            a(f"v_mul_u32_u24 v3, 20, v2")
            a(f"v_sub_u32 v3, v1, v3")
            a(f"v_mul_u32_u24 v2, 1280, v2")
            a(f"v_lshl_add_u32 v{self.v_wd+m}, v3, 4, v2")
            if 0 < m < 4: a(f"v_subrev_u32 v{self.v_wd+m}, {m*1024}, v{self.v_wd+m}")
    def setup2(self):
        a = self.a
        a(f"v_lshrrev_b32 v2, 5, v0")
        a(f"v_bfe_u32 v1, v0, 2, 2")
        a(f"v_lshl_add_u32 v1, v2, 2, v1")
        a(f"v_mul_u32_u24 v1, 320, v1")
        a(f"v_bfe_u32 v3, v0, 4, 1")
        a(f"v_lshl_add_u32 v1, v3, 5, v1")
        a(f"v_and_b32 v3, 3, v0")
        a(f"v_lshl_add_u32 v1, v3, 3, v1")
        a(f"v_add_u32 v{self.v_wa}, s{self.s_lds}, v1")

    def load_w(self, i):
        a = self.a; S = f"s[{self.SW}:{self.SW+3}]"
        a(f"s_add_u32 m0, s{self.s_lds}, {(i % self.depth)*5120}")
        for m in range(4):
            a(f"buffer_load_dwordx4 v{self.v_wd+m}, {S}, s{self.s_woff} offen offset:{m*1024} lds"); self.vm.issue(("W", i))
        a(f"s_add_u32 m0, m0, 4096")
        a(f"buffer_load_dwordx4 v{self.v_wd+4}, {S}, s{self.s_woff} offen lds"); self.vm.issue(("W", i))
        a(f"s_add_u32 s{self.s_woff}, s{self.s_woff}, {16*1280}")
    def load_a(self, i):
        a = self.a
        a(f"buffer_load_dwordx4 {vr(self.v_act+4*(i % self.nact),4)}, v{self.v_l16}, s[{self.SWS}:{self.SWS+3}], s{self.s_aoff} offen"); self.vm.issue(("A", i))
        a(f"s_add_u32 s{self.s_aoff}, s{self.s_aoff}, 1024")
    def kstep(self, i, next_w=None, next_a=None):
        a = self.a
        self.vm.wait(("W", i))
        for T in range(5):
            for p in range(2):
                a(f"ds_read_b64_tr_b16 {vr(self.v_wf+4*T+2*p,2)}, v{self.v_wa} offset:{(i % self.depth)*5120 + T*64 + p*2560}")
                self.lg.issue(T)
        self.vm.wait(("A", i))
        for T in range(5):
            self.lg.wait(T)
            acc = vr(self.v_acc + 16 * T, 16)
            a(f"v_mfma_f32_32x32x16_bf16 {acc}, {vr(self.v_wf+4*T,4)}, {vr(self.v_act+4*(i % self.nact),4)}, {acc}")
        if next_w is not None and next_w < self.nks: self.load_w(next_w)
        if next_a is not None and next_a < self.nks: self.load_a(next_a)
    def write_partial(self, part_base, s_g):
        a = self.a
        a(f"v_and_b32 v1, 31, v0")
        a(f"v_mul_u32_u24 v1, {PSTRIDE}, v1")
        a(f"v_lshrrev_b32 v2, 5, v0")
        a(f"v_lshl_add_u32 v1, v2, 4, v1")
        a(f"s_mul_i32 s{self.s_t}, s{s_g}, {PART}")
        a(f"s_add_u32 s{self.s_t}, s{self.s_t}, {part_base}")
        a(f"v_add_u32 v1, s{self.s_t}, v1")
        for T in range(5):
            for q in range(4):
                a(f"ds_write_b128 v1, {vr(self.v_acc+16*T+4*q,4)} offset:{T*128+q*32}")
        a("s_waitcnt lgkmcnt(0)")
    def item_addr(self, s_g, vtok, vn4):
        a = self.a
        a(f"s_lshl_b32 s{self.s_t}, s{s_g}, 6")
        for e in range(5):
            a(f"v_add_u32 v1, s{self.s_t}, v0")
            if e: a(f"v_add_u32 v1, {256*e}, v1")
            a(f"v_mul_u32_u24 v{vtok+e}, 0xcccd, v1")
            a(f"v_lshrrev_b32 v{vtok+e}, 21, v{vtok+e}")
            a(f"v_mul_u32_u24 v2, 40, v{vtok+e}")
            a(f"v_sub_u32 v{vn4+e}, v1, v2")
    def reduce(self, part_base, vtok, vn4, vtmp):
        a = self.a
        for e in range(5):
            a(f"v_mul_u32_u24 v{vtmp}, {PSTRIDE}, v{vtok+e}")
            a(f"v_lshl_add_u32 v{vtmp}, v{vn4+e}, 4, v{vtmp}")
            a(f"v_add_u32 v{vtmp}, {part_base}, v{vtmp}")
            for p in range(4):
                a(f"ds_read_b128 {vr(self.v_acc+16*e+4*p,4)}, v{vtmp} offset:{p*PART}"); self.lg.issue(e)
            if e == 2: self._sum(0)
            if e == 3: self._sum(1)
        for e in range(2, 5): self._sum(e)
    def _sum(self, e):
        a = self.a; b = self.v_acc + 16 * e
        self.lg.wait(e)
        for h in range(2):
            a(f"v_pk_add_f32 {vr(b+2*h,2)}, {vr(b+2*h,2)}, {vr(b+4+2*h,2)}")
            a(f"v_pk_add_f32 {vr(b+8+2*h,2)}, {vr(b+8+2*h,2)}, {vr(b+12+2*h,2)}")
        for h in range(2):
            a(f"v_pk_add_f32 {vr(b+2*h,2)}, {vr(b+2*h,2)}, {vr(b+8+2*h,2)}")
```

```python
from common import *

SLOT = 36864
SCR = 4 * SLOT
LDS_A = SCR + 4096

SX, SW, SO, SW2 = 4, 8, 12, 16
s_w, s_rb, s_g = 32, 33, 34
s_it, s_slot, s_xoff, s_woff, s_wstep = 35, 36, 37, 38, 39
s_m0x, s_m0w, s_ones, s_delta, s_relu, s_scale, s_t0, s_t1, s_out, s_dslot, s_cslot = 40, 41, 42, 43, 44, 45, 46, 47, 48, 49, 50
v_lane = 0
v_xd, v_wd = 8, 12
v_xa, v_wa = 18, 22
v_sum, v_sq, v_cs = 26, 27, 28
XF = [36, 60]; WF = [40, 64]
ACC = 96

def dma_list(kv):
    L = []
    L.append([f"s_add_u32 m0, s{s_dslot}, s{s_m0x}", f"buffer_load_dwordx4 v{v_xd}, s[{SX}:{SX+3}], s{s_xoff} offen lds"])
    for m in range(1, 4):
        L.append([f"buffer_load_dwordx4 v{v_xd+m}, s[{SX}:{SX+3}], s{s_xoff} offen offset:{m*1024} lds"])
    if not kv:
        L.append([f"s_add_u32 m0, s{s_dslot}, s{s_m0w}", f"buffer_load_dwordx4 v{v_wd}, s[{SW}:{SW+3}], s{s_woff} offen lds"])
        for m in range(1, 4):
            L.append([f"buffer_load_dwordx4 v{v_wd+m}, s[{SW}:{SW+3}], s{s_woff} offen offset:{m*1024} lds"])
        L.append([f"s_add_u32 m0, m0, 4096", f"buffer_load_dwordx4 v{v_wd+4}, s[{SW}:{SW+3}], s{s_woff} offen lds"])
    else:
        L.append([f"s_add_u32 m0, s{s_dslot}, s{s_m0w}", f"buffer_load_dwordx4 v{v_wd}, s[{SW}:{SW+3}], s{s_woff} offen lds"])
        L.append([f"s_add_u32 m0, m0, 1024", f"buffer_load_dwordx4 v{v_wd}, s[{SW2}:{SW2+3}], s{s_woff} offen lds"])
    L[-1] += [f"s_add_u32 s{s_xoff}, s{s_xoff}, 128", f"s_add_u32 s{s_woff}, s{s_woff}, s{s_wstep}"]
    return L

def role_body(a, kv):
    NT = 2 if kv else 5
    tag = "kv" if kv else "qh"
    ND = 6 if kv else 9
    tstep, pstep = (1024, 256) if kv else (64, 1280)
    rowb = 64 if kv else 320
    lg = Cnt(a, "lgkmcnt", 15)
    if not kv:
        for m in range(5):
            a(f"v_add_u32 v1, {64*m}, v{v_lane}")
            a(f"v_mul_u32_u24 v2, 0xcccd, v1")
            a(f"v_lshrrev_b32 v2, 20, v2")
            a(f"v_mul_u32_u24 v3, 20, v2")
            a(f"v_sub_u32 v3, v1, v3")
            a(f"v_mul_lo_u32 v2, v2, s{s_t0}")
            a(f"v_lshl_add_u32 v2, v3, 4, v2")
            if 0 < m < 4: a(f"v_subrev_u32 v2, {m*1024}, v2")
            a(f"v_add_u32 v{v_wd+m}, s{s_t1}, v2")
    else:
        a(f"v_lshrrev_b32 v1, 2, v{v_lane}")
        a(f"v_mul_u32_u24 v1, 40, v1")
        a(f"v_and_b32 v2, 3, v{v_lane}")
        a(f"v_lshl_add_u32 v1, v2, 4, v1")
        a(f"v_add_u32 v{v_wd}, s{s_t1}, v1")
    for c in range(3):
        a(f"s_mov_b32 s{s_dslot}, {c*SLOT}")
        for p in dma_list(kv):
            for t in p: a(t)
    a(f"s_mov_b32 s{s_dslot}, {3*SLOT}")
    a(f"v_and_b32 v1, 31, v{v_lane}")
    a(f"v_lshrrev_b32 v2, 5, v{v_lane}")
    a(f"v_bfe_u32 v3, v{v_lane}, 1, 3")
    a(f"v_xor_b32 v3, v3, v2")
    a(f"s_lshl_b32 s{s_t0}, s{s_w}, 1")
    a(f"v_xor_b32 v3, s{s_t0}, v3")
    a(f"v_lshlrev_b32 v3, 4, v3")
    a(f"v_lshlrev_b32 v1, 7, v1")
    a(f"v_add_u32 v1, s{s_m0x}, v1")
    a(f"v_add_u32 v1, {3*SLOT}, v1")
    for j in range(4):
        a(f"v_xor_b32 v4, {j<<5}, v3")
        a(f"v_add_u32 v{v_xa+j}, v1, v4")
    a(f"v_bfe_u32 v1, v{v_lane}, 2, 2")
    a(f"v_lshl_add_u32 v1, v2, 3, v1")
    a(f"v_mul_u32_u24 v1, {rowb}, v1")
    a(f"v_bfe_u32 v3, v{v_lane}, 4, 1")
    a(f"v_lshl_add_u32 v1, v3, 5, v1")
    a(f"v_and_b32 v3, 3, v{v_lane}")
    a(f"v_lshl_add_u32 v1, v3, 3, v1")
    for j in range(4):
        a(f"s_xor_b32 s{s_t0}, s{s_w}, {j}")
        a(f"s_mul_i32 s{s_t0}, s{s_t0}, 5120")
        a(f"s_add_u32 s{s_t0}, s{s_t0}, {16384 + 3*SLOT}")
        a(f"v_add_u32 v{v_wa+j}, s{s_t0}, v1")
    for r in list(range(v_sum, v_cs + 5)) + list(range(XF[1], WF[1] + 4 * NT)) + list(range(ACC, ACC + 16 * NT)):
        a(f"v_mov_b32 v{r}, 0")
    a(f"s_mov_b32 s{s_it}, 0")
    a(f"s_mov_b32 s{s_slot}, {3*SLOT}")

    def mfma(T, u):
        acc = vr(ACC + 16 * T, 16); x = vr(XF[u], 4); w = vr(WF[u] + 4 * T, 4)
        if kv and T == 1: a(f"v_mfma_f32_32x32x16_bf16 {acc}, {x}, {w}, {acc}")
        else: a(f"v_mfma_f32_32x32x16_bf16 {acc}, {w}, {x}, {acc}")
    cs_step = {0: [0, 1], 1: [2], 2: [3], 3: [4]} if not kv else {0: [0], 1: [1], 2: [], 3: []}
    def step(j, jn, u, dmas, pre=None):
        n = u ^ 1
        reads = [(f"ds_read_b128 {vr(XF[n],4)}, v{v_xa+jn}", ("X", n))]
        for T in range(NT):
            for p in range(2):
                reads.append((f"ds_read_b64_tr_b16 {vr(WF[n]+4*T+2*p,2)}, v{v_wa+jn} offset:{T*tstep+p*pstep}", ("W", n, T)))
        fill = []
        for i in range(4):
            fill.append((0, f"v_dot2c_f32_bf16 v{v_sq}, v{XF[u]+i}, v{XF[u]+i}"))
            fill.append((0, f"v_dot2c_f32_bf16 v{v_sum}, s{s_ones}, v{XF[u]+i}"))
        for T in cs_step[j]:
            for i in range(4):
                fill.append((T, f"v_dot2c_f32_bf16 v{v_cs+T}, s{s_ones}, v{WF[u]+4*T+i}"))
        per = 4 if NT == 5 else 5
        fper = (len(fill) + NT - 1) // NT
        for T in range(NT):
            lg.wait(("X", u), ("W", u, T))
            mfma(T, u)
            if T == 0 and pre:
                for t in pre: a(t)
            for _ in range(per):
                if reads:
                    t, g = reads.pop(0); a(t); lg.issue(g)
            if dmas and (T % 2 == 1 or NT == 2):
                for t in dmas.pop(0): a(t)
            k = 0
            for f in list(fill):
                if (k < fper or T == NT - 1) and f[0] <= T:
                    a(f[1]); fill.remove(f); k += 1
        assert not reads and not fill

    a.raw(".p2align 6")
    a.label(f"A_loop_{tag}")
    start = a.mark()
    a(f"s_waitcnt vmcnt({2*ND})")
    a("s_barrier")
    dm = dma_list(kv)
    pre = [f"s_cmp_eq_u32 s{s_slot}, {3*SLOT}",
           f"s_cselect_b32 s{s_delta}, {(-3*SLOT) & 0xffffffff}, s{s_cslot}",
           f"s_add_u32 s{s_slot}, s{s_slot}, s{s_delta}"]
    pre += [f"v_add_u32 v{v_xa+j}, s{s_delta}, v{v_xa+j}" for j in range(4)]
    pre += [f"v_add_u32 v{v_wa+j}, s{s_delta}, v{v_wa+j}" for j in range(4)]
    pre += [f"s_cmp_ge_u32 s{s_it}, 7", f"s_cselect_b32 s{SX+2}, 0, s{SX+2}", f"s_cselect_b32 s{SW+2}, 0, s{SW+2}"]
    if kv: pre += [f"s_cselect_b32 s{SW2+2}, 0, s{SW2+2}"]
    step(3, 0, 1, dm, pre)
    a(f"s_cmp_eq_u32 s{s_it}, 10")
    a(f"s_cbranch_scc1 A_done_{tag}")
    step(0, 1, 0, dm)
    step(1, 2, 1, dm)
    step(2, 3, 0, dm)
    while dm:
        for t in dm.pop(0): a(t)
    a(f"s_mov_b32 s{s_dslot}, s{s_slot}")
    a(f"s_add_u32 s{s_it}, s{s_it}, 1")
    lg.drain()
    a(f"s_branch A_loop_{tag}")
    a.check_backedge(start)
    a.label(f"A_done_{tag}")
    a("s_waitcnt lgkmcnt(0)")
    a(f"v_and_b32 v1, 31, v{v_lane}")
    a(f"v_lshlrev_b32 v1, 4, v1")
    a(f"v_add_u32 v1, {SCR}, v1")
    a(f"s_lshl_b32 s{s_t0}, s{s_w}, 2")
    a(f"v_add_u32 v2, s{s_t0}, v1")
    for T in range(NT):
        a(f"v_mov_b32 v{3+T}, v{v_cs+T}")
    for T in range(NT):
        a(f"v_permlane32_swap_b32 v{v_cs+T}, v{3+T}")
    for T in range(NT):
        a(f"v_add_f32 v{3+T}, v{v_cs+T}, v{3+T}")
        a(f"ds_write_b32 v2, v{3+T} offset:{T*512}")
    a(f"v_mov_b32 v8, v{v_sum}")
    a(f"v_mov_b32 v9, v{v_sq}")
    a(f"v_permlane32_swap_b32 v{v_sum}, v8")
    a(f"v_permlane32_swap_b32 v{v_sq}, v9")
    a("s_waitcnt lgkmcnt(0)")
    a("s_barrier")
    for T in range(NT):
        a(f"ds_read_b128 {vr(WF[1]+4*T,4)}, v1 offset:{T*512}")
    inv = f32bits(1.0 / 640.0)
    a(f"v_add_f32 v8, v{v_sum}, v8")
    a(f"v_add_f32 v9, v{v_sq}, v9")
    a(f"v_mul_f32 v8, {hex(inv)}, v8")
    a(f"v_mul_f32 v9, {hex(inv)}, v9")
    a(f"v_fma_f32 v9, -v8, v8, v9")
    a(f"v_max_f32 v9, 0, v9")
    a(f"v_cvt_pk_bf16_f32 v9, v9, v9")
    a(f"v_lshlrev_b32 v9, 16, v9")
    a(f"v_add_f32 v9, {hex(f32bits(1e-5))}, v9")
    a(f"v_cvt_pk_bf16_f32 v9, v9, v9")
    a(f"v_lshlrev_b32 v9, 16, v9")
    a(f"v_sqrt_f32 v9, v9")
    a(f"v_cvt_pk_bf16_f32 v9, v9, v9")
    a(f"v_lshlrev_b32 v9, 16, v9")
    a(f"v_rcp_f32 v9, v9")
    X = XF[0]
    for i in range(4): a(f"v_mov_b32 v{X+i}, 0")
    a("s_mov_b32 exec_hi, 0")
    a(f"v_cvt_pk_bf16_f32 v{X}, -v8, -v8")
    a("s_mov_b32 exec_hi, -1")
    a(f"v_mul_f32 v10, s{s_scale}, v9")
    a(f"v_mov_b32 v11, v10")
    a("s_waitcnt lgkmcnt(0)")
    for T in range(NT):
        c = WF[1] + 4 * T; d = WF[0] + 4 * T
        a(f"v_add_f32 v{c}, v{c}, v{c+1}")
        a(f"v_add_f32 v{c+2}, v{c+2}, v{c+3}")
        a(f"v_add_f32 v{c}, v{c}, v{c+2}")
        a(f"v_cvt_pk_bf16_f32 v{c+1}, v{c}, v{c}")
        a(f"v_lshlrev_b32 v{c+1}, 16, v{c+1}")
        a(f"v_sub_f32 v{c+1}, v{c}, v{c+1}")
        a(f"v_cvt_pk_bf16_f32 v{d}, v{c}, v{c+1}")
        for i in range(1, 4): a(f"v_mov_b32 v{d+i}, 0")
    for T in range(NT): mfma(T, 0)
    a(f"v_lshlrev_b32 v1, 4, v{v_lane}")
    if not kv:
        for T in range(NT):
            if T == 4:
                a(f"s_cmp_eq_u32 s{s_g}, 14")
                a(f"s_cbranch_scc1 A_end")
            b = ACC + 16 * T
            for i in range(8): a(f"v_pk_mul_f32 {vr(b+2*i,2)}, {vr(b+2*i,2)}, v[10:11]")
            for i in range(8): a(f"v_cvt_pk_bf16_f32 v{b+i}, v{b+2*i}, v{b+2*i+1}")
            for i in range(8): a(f"v_pk_max_i16 v{b+i}, v{b+i}, s{s_relu}")
            if T == 2 or T == 4: a(f"s_add_u32 s{s_out}, s{s_out}, 4096")
            o = (2 * T % 4) * 1024
            a(f"buffer_store_dwordx4 {vr(b,4)}, v1, s[{SO}:{SO+3}], s{s_out} offen offset:{o}")
            a(f"buffer_store_dwordx4 {vr(b+4,4)}, v1, s[{SO}:{SO+3}], s{s_out} offen offset:{o+1024}")
        a("s_endpgm")
    else:
        a(f"v_and_b32 v2, 31, v{v_lane}")
        a(f"s_lshl_b32 s{s_t0}, s{s_w}, 7")
        a(f"s_add_u32 s{s_t0}, s{s_t0}, {SCR + 3072}")
        a(f"v_lshl_add_u32 v3, v2, 2, s{s_t0}")
        a(f"ds_write_b32 v3, v10")
        a(f"v_lshrrev_b32 v4, 5, v{v_lane}")
        a(f"v_lshl_add_u32 v3, v4, 4, s{s_t0}")
        a("s_waitcnt lgkmcnt(0)")
        for q in range(4): a(f"ds_read_b128 {vr(64+4*q,4)}, v3 offset:{32*q}")
        b = ACC
        for i in range(6): a(f"v_pk_mul_f32 {vr(b+2*i,2)}, {vr(b+2*i,2)}, v[10:11]")
        for i in range(6): a(f"v_cvt_pk_bf16_f32 v{b+i}, v{b+2*i}, v{b+2*i+1}")
        a("s_mov_b32 exec_lo, 0")
        a(f"v_mov_b32 v{b+4}, 0x3f80")
        a(f"v_mov_b32 v{b+5}, 0")
        a("s_mov_b32 exec_lo, -1")
        a(f"buffer_store_dwordx4 {vr(b,4)}, v1, s[{SO}:{SO+3}], s{s_out} offen")
        a(f"v_lshlrev_b32 v5, 3, v{v_lane}")
        a(f"buffer_store_dwordx2 {vr(b+4,2)}, v5, s[{SO}:{SO+3}], s{s_out} offen offset:1024")
        b = ACC + 16
        a("s_waitcnt lgkmcnt(0)")
        for i in range(8): a(f"v_pk_mul_f32 {vr(b+2*i,2)}, {vr(b+2*i,2)}, {vr(64+2*i,2)}")
        for i in range(8): a(f"v_cvt_pk_bf16_f32 v{b+i}, v{b+2*i}, v{b+2*i+1}")
        a("s_mov_b32 exec_lo, 0x00100000")
        a("s_mov_b32 exec_hi, 0x00100000")
        for i in range(8): a(f"v_mov_b32 v{b+i}, s{s_ones}")
        a("s_mov_b32 exec_lo, 0x00e00000")
        a("s_mov_b32 exec_hi, 0x00e00000")
        for i in range(8): a(f"v_mov_b32 v{b+i}, 0")
        a("s_mov_b32 exec_lo, 0x00ffffff")
        a("s_mov_b32 exec_hi, 0x00ffffff")
        a(f"v_mul_u32_u24 v4, 384, v4")
        a(f"v_lshl_add_u32 v4, v2, 4, v4")
        a(f"buffer_store_dwordx4 {vr(b,4)}, v4, s[{SO}:{SO+3}], s{s_out} offen offset:1536")
        a(f"buffer_store_dwordx4 {vr(b+4,4)}, v4, s[{SO}:{SO+3}], s{s_out} offen offset:2304")
        a("s_endpgm")

def gen_a(a, name="pa_kernel"):
    kernel_header(a, name)
    a("s_cmp_ge_u32 s2, 256")
    a("s_cbranch_scc1 A_end")
    a("s_load_dwordx4 s[20:23], s[0:1], 0")
    a("s_load_dwordx4 s[24:27], s[0:1], 16")
    a("s_load_dwordx2 s[28:29], s[0:1], 48")
    a("s_load_dwordx2 s[30:31], s[0:1], 80")
    a("v_lshrrev_b32 v1, 6, v0")
    a(f"v_and_b32 v{v_lane}, 63, v0")
    a(f"v_readfirstlane_b32 s{s_w}, v1")
    a(f"s_and_b32 s{s_t0}, s2, 1")
    a(f"s_lshl_b32 s{s_t0}, s{s_t0}, 3")
    a(f"s_bfe_u32 s{s_rb}, s2, 0x30003")
    a(f"s_add_u32 s{s_rb}, s{s_rb}, s{s_t0}")
    a(f"s_bfe_u32 s{s_t0}, s2, 0x20001")
    a(f"s_lshl_b32 s{s_t0}, s{s_t0}, 2")
    a(f"s_lshr_b32 s{s_g}, s2, 6")
    a(f"s_add_u32 s{s_g}, s{s_g}, s{s_t0}")
    a(f"s_mov_b32 s{s_ones}, 0x3f803f80")
    a(f"s_mov_b32 s{s_cslot}, {SLOT}")
    a(f"s_lshl_b32 s{s_m0x}, s{s_w}, 12")
    a(f"s_mul_i32 s{s_m0w}, s{s_w}, 5120")
    a(f"s_add_u32 s{s_m0w}, s{s_m0w}, 16384")
    a(f"s_mul_i32 s{s_xoff}, s{s_rb}, {128*1280}")
    a(f"s_mov_b32 s{s_woff}, 0")
    a(f"v_lshrrev_b32 v1, 3, v{v_lane}")
    a(f"s_lshl_b32 s{s_t0}, s{s_w}, 5")
    a(f"v_add_u32 v1, s{s_t0}, v1")
    a(f"v_mul_u32_u24 v1, 1280, v1")
    a(f"v_and_b32 v2, 7, v{v_lane}")
    a(f"v_lshrrev_b32 v3, 4, v{v_lane}")
    a(f"v_xor_b32 v2, v2, v3")
    a(f"v_lshlrev_b32 v2, 4, v2")
    a(f"v_xor_b32 v3, 64, v2")
    for m in range(4):
        a(f"v_add_u32 v{v_xd+m}, v1, v{2 + (m & 1)}")
        if m: a(f"v_add_u32 v{v_xd+m}, {m*10240 - m*1024}, v{v_xd+m}")
    a(f"s_lshl_b32 s{s_out}, s{s_rb}, 2")
    a(f"s_add_u32 s{s_out}, s{s_out}, s{s_w}")
    a("s_waitcnt lgkmcnt(0)")
    srd(a, SX, 20, 2048 * 1280)
    srd(a, SO, 30, WS_SIZE)
    a(f"s_cmp_eq_u32 s{s_g}, 15")
    a("s_cbranch_scc1 A_kv")
    a(f"s_movk_i32 s{s_t0}, 3456")
    a(f"s_cmp_lt_u32 s{s_g}, 4")
    a(f"s_cselect_b32 s{SW}, s22, s28")
    a(f"s_cselect_b32 s{SW+1}, s23, s29")
    a(f"s_cselect_b32 s{s_t0}, 1280, s{s_t0}")
    a(f"s_mul_i32 s{SW+2}, s{s_t0}, 640")
    a(f"s_cselect_b32 s{s_relu}, 0x80008000, 0")
    a(f"s_cselect_b32 s{s_scale}, {hex(f32bits(QSCALE))}, 1.0")
    a(f"s_cselect_b32 s{s_t1}, 0, 4")
    a(f"s_and_b32 s{SW+1}, s{SW+1}, 0xffff")
    a(f"s_mov_b32 s{SW+3}, 0x20000")
    a(f"s_sub_u32 s{s_t1}, s{s_g}, s{s_t1}")
    a(f"s_mul_i32 s{s_t1}, s{s_t1}, 320")
    a(f"s_lshl_b32 s{s_wstep}, s{s_t0}, 4")
    a(f"s_mul_i32 s{s_delta}, s{s_wstep}, s{s_w}")
    a(f"s_add_u32 s{s_t1}, s{s_t1}, s{s_delta}")
    a(f"s_lshl_b32 s{s_wstep}, s{s_t0}, 6")
    a(f"s_mul_i32 s{s_out}, s{s_out}, {QH_TT}")
    a(f"s_mul_i32 s{s_delta}, s{s_g}, 10240")
    a(f"s_add_u32 s{s_out}, s{s_out}, s{s_delta}")
    role_body(a, False)
    a.label("A_kv")
    srd(a, SW, 24, 640 * 40)
    srd(a, SW2, 26, 640 * 40)
    a(f"s_mov_b32 s{s_scale}, 1.0")
    a(f"s_mul_i32 s{s_t1}, s{s_w}, 640")
    a(f"s_mov_b32 s{s_wstep}, 2560")
    a(f"s_mul_i32 s{s_out}, s{s_out}, {KV_TILE}")
    a(f"s_add_u32 s{s_out}, s{s_out}, {WS_KV}")
    role_body(a, True)
    a.label("A_end")
    a("s_endpgm")
    return dict(name=name, grid=256, block=256, lds=LDS_A, vgpr=176, sgpr=64)
```

```python
from common import *
from gw import *

CH = 8 * KV_TILE
STG = 3 * CH
LDS_B = STG + 4 * PART

SWS, SW2, SX = 4, 8, 12
s_w, s_tt, s_hg, s_t0, s_t1, s_c, s_slot, s_delta, s_cch, s_base = 32, 33, 34, 35, 36, 37, 38, 39, 40, 41
s_gw = 44
Q1, Q2, K1, K2, V0, V1, P0, P1, O, S0, S1 = 4, 8, 12, 16, 20, 24, 28, 32, 36, 52, 68
v_ka, v_k2a, v_va, v_g0 = 84, 85, 86, 88
VT = 92

def mf(a, d, x, y, c): a(f"v_mfma_f32_32x32x16_bf16 {vr(d,16)}, {vr(x,4)}, {vr(y,4)}, {c if isinstance(c,str) else vr(c,16)}")

def attention(a):
    WS = f"s[{SWS}:{SWS+3}]"
    a(f"s_lshl_b32 s{s_t0}, s{s_hg}, 3")
    a(f"s_add_u32 s{s_t0}, s{s_t0}, s{s_w}")
    a(f"s_mul_i32 s{s_t0}, s{s_t0}, 5")
    a(f"v_lshrrev_b32 v2, 5, v0")
    a(f"v_and_b32 v3, 31, v0")
    a(f"v_lshlrev_b32 v3, 4, v3")
    for i in range(3):
        if i < 2: a(f"v_add_u32 v1, s{s_t0}, v2")
        else: a(f"v_mov_b32 v1, s{s_t0}")
        if i: a(f"v_add_u32 v1, {2*i}, v1")
        a(f"v_lshrrev_b32 v{VT}, 2, v1")
        a(f"v_lshl_add_u32 v{v_g0+i}, v{VT}, 10, v3")
        a(f"v_and_b32 v{VT}, 1, v1")
        a(f"v_lshl_add_u32 v{v_g0+i}, v{VT}, 9, v{v_g0+i}")
        a(f"v_bfe_u32 v{VT}, v1, 1, 1")
        a(f"v_lshl_add_u32 v{v_g0+i}, v{VT}, 3, v{v_g0+i}")
    a(f"s_mul_i32 s{s_base}, s{s_tt}, {QH_TT}")
    a(f"buffer_load_dwordx2 {vr(Q1,2)}, v{v_g0}, {WS}, s{s_base} offen")
    a(f"buffer_load_dwordx2 {vr(Q1+2,2)}, v{v_g0+1}, {WS}, s{s_base} offen")
    a(f"buffer_load_dwordx2 {vr(Q2,2)}, v{v_g0+2}, {WS}, s{s_base} offen")
    a(f"v_lshlrev_b32 v{v_ka}, 4, v0")
    a(f"v_lshlrev_b32 v{v_k2a}, 3, v0")
    a(f"v_add_u32 v{v_k2a}, 1024, v{v_k2a}")
    a(f"v_and_b32 v1, 31, v0")
    a(f"v_subrev_u32 v{VT}, 8, v1")
    a(f"v_cmp_lt_u32 vcc, 23, v1")
    a(f"v_cndmask_b32 v1, v1, v{VT}, vcc")
    a(f"v_mul_u32_u24 v{v_va}, 384, v2")
    a(f"v_lshl_add_u32 v{v_va}, v1, 4, v{v_va}")
    a(f"v_add_u32 v{v_va}, 1536, v{v_va}")
    for r in [Q2+2, Q2+3, K2+2, K2+3] + list(range(V1, V1+4)) + list(range(P1, P1+4)) + list(range(O, O+16)):
        a(f"v_mov_b32 v{r}, 0")
    a(f"s_mov_b32 s{s_c}, 0")
    a(f"s_mov_b32 s{s_slot}, 0")
    a(f"s_mov_b32 s{s_cch}, {CH}")
    a("s_waitcnt vmcnt(0)")
    a("s_mov_b32 exec_lo, 0")
    a(f"v_mov_b32 v{Q2}, 0")
    a(f"v_mov_b32 v{Q2+1}, 0")
    a("s_mov_b32 exec_lo, -1")
    a("s_barrier")
    a(f"ds_read_b128 {vr(K1,4)}, v{v_ka}")
    a(f"ds_read_b64 {vr(K2,2)}, v{v_k2a}")
    a("s_waitcnt lgkmcnt(0)")
    mf(a, S1, K1, Q1, "0"); mf(a, S1, K2, Q2, S1)
    a(f"v_max3_f32 v{VT}, v{S1}, v{S1+1}, v{S1+2}")
    for i in range(3, 15, 2): a(f"v_max3_f32 v{VT}, v{VT}, v{S1+i}, v{S1+i+1}")
    a(f"v_max_f32 v{VT}, v{VT}, v{S1+15}")
    a(f"v_mov_b32 v{VT+1}, v{VT}")
    a(f"v_permlane32_swap_b32 v{VT}, v{VT+1}")
    a(f"v_max_f32 v{VT}, v{VT}, v{VT+1}")
    a("s_mov_b32 exec_lo, 0")
    a(f"v_cvt_pk_bf16_f32 v{Q2}, -v{VT}, 0")
    a("s_mov_b32 exec_lo, -1")
    mf(a, S0, K1, Q1, "0")
    a(f"ds_read_b128 {vr(K1,4)}, v{v_ka} offset:{KV_TILE}")
    mf(a, S0, K2, Q2, S0)
    a(f"ds_read_b64 {vr(K2,2)}, v{v_k2a} offset:{KV_TILE}")
    a(f"ds_read_b128 {vr(V0,4)}, v{v_va}")
    a("s_nop 9")
    a.raw(".p2align 6")
    a.label("B_loop")
    start = a.mark()
    for u in range(8):
        Sc, Sn = (S0, S1) if u % 2 == 0 else (S1, S0)
        e = lambda i: a(f"v_exp_f32 v{Sc+i}, v{Sc+i}")
        c = lambda i: a(f"v_cvt_pk_bf16_f32 v{P0+i}, v{Sc+2*i}, v{Sc+2*i+1}")
        e(0); e(1)
        a("s_waitcnt lgkmcnt(3)")
        mf(a, O, V1, P1, O)
        a(f"ds_read_b128 {vr(V1,4)}, v{v_va} offset:{u*KV_TILE+768}")
        e(2); e(3); c(0)
        if u == 1: a("s_barrier")
        if u == 6:
            a(f"s_cmp_eq_u32 s{s_slot}, {2*CH}")
            a(f"s_cselect_b32 s{s_delta}, {(-2*CH) & 0xffffffff}, s{s_cch}")
            a(f"s_add_u32 s{s_slot}, s{s_slot}, s{s_delta}")
            a(f"v_add_u32 v{v_ka}, s{s_delta}, v{v_ka}")
            a(f"v_add_u32 v{v_k2a}, s{s_delta}, v{v_k2a}")
        if u == 7: a(f"v_add_u32 v{v_va}, s{s_delta}, v{v_va}")
        e(4); c(1)
        a("s_waitcnt lgkmcnt(3)")
        mf(a, Sn, K1, Q1, "0")
        a(f"ds_read_b128 {vr(K1,4)}, v{v_ka} offset:{((u+2)%8)*KV_TILE}")
        e(5); e(6); e(7); c(2)
        e(8); c(3)
        a("s_waitcnt lgkmcnt(3)")
        mf(a, Sn, K2, Q2, Sn)
        a(f"ds_read_b64 {vr(K2,2)}, v{v_k2a} offset:{((u+2)%8)*KV_TILE}")
        e(9); e(10); e(11); c(4)
        e(12); c(5)
        a("s_waitcnt lgkmcnt(3)")
        mf(a, O, V0, P0, O)
        a(f"ds_read_b128 {vr(V0,4)}, v{v_va} offset:{((u+1)%8)*KV_TILE}")
        e(13); e(14); e(15); c(6)
        if u == 7:
            a(f"s_add_u32 s{s_c}, s{s_c}, 1")
            a(f"s_cmp_lt_u32 s{s_c}, 8")
        c(7)
    a("s_cbranch_scc1 B_loop")
    a.check_backedge(start)
    a("s_waitcnt lgkmcnt(0)")
    mf(a, O, V1, P1, O)
    a(f"v_mov_b32 v{VT}, v{O+8}")
    a(f"v_mov_b32 v{VT+1}, v{O+8}")
    a(f"v_permlane32_swap_b32 v{VT}, v{VT+1}")
    a(f"v_cmp_nle_f32 vcc, {hex(f32bits(2.0**-60))}, v{VT+1}")
    a(f"v_mov_b32 v{VT+2}, {hex(f32bits(2.0**60))}")
    a(f"v_cmp_nle_f32 s[46:47], v{VT+1}, v{VT+2}")
    a(f"s_or_b64 s[46:47], s[46:47], vcc")
    a("s_cbranch_scc1 B_fallback")
    a.label("B_norm")
    a(f"v_rcp_f32 v{VT}, v{VT+1}")
    a(f"s_mul_i32 s{s_base}, s{s_tt}, {O_TT}")
    a(f"s_add_u32 s{s_base}, s{s_base}, {WS_O}")
    a(f"v_mov_b32 v{VT+1}, v{VT}")
    for i in range(6): a(f"v_pk_mul_f32 {vr(O+2*i,2)}, {vr(O+2*i,2)}, {vr(VT,2)}")
    for i in range(6): a(f"v_cvt_pk_bf16_f32 v{O+i}, v{O+2*i}, v{O+2*i+1}")
    a(f"buffer_store_dwordx2 {vr(O,2)}, v{v_g0}, {WS}, s{s_base} offen")
    a(f"buffer_store_dwordx2 {vr(O+2,2)}, v{v_g0+1}, {WS}, s{s_base} offen")
    a("s_mov_b32 exec_hi, 0")
    a(f"buffer_store_dwordx2 {vr(O+4,2)}, v{v_g0+2}, {WS}, s{s_base} offen")
    a("s_endpgm")
    a.label("B_fallback")
    a("s_mov_b32 exec_lo, 0")
    a(f"v_mov_b32 v{Q2}, 0")
    a("s_mov_b32 exec_lo, -1")
    a(f"v_subrev_u32 v{v_ka}, s{s_slot}, v{v_ka}")
    a(f"v_subrev_u32 v{v_k2a}, s{s_slot}, v{v_k2a}")
    a(f"v_subrev_u32 v{v_va}, s{s_slot}, v{v_va}")
    a(f"v_mov_b32 v{VT}, 0xff800000")
    for r in range(O, O + 16): a(f"v_mov_b32 v{r}, 0")
    a(f"s_mov_b32 s{s_base}, {WS_KV}")
    a.label("B_fb1")
    st = a.mark()
    a(f"buffer_load_dwordx4 {vr(K1,4)}, v{v_ka}, {WS}, s{s_base} offen")
    a(f"buffer_load_dwordx2 {vr(K2,2)}, v{v_k2a}, {WS}, s{s_base} offen")
    a("s_waitcnt vmcnt(0)")
    mf(a, S0, K1, Q1, "0"); mf(a, S0, K2, Q2, S0)
    for i in range(0, 16, 2): a(f"v_max3_f32 v{VT}, v{VT}, v{S0+i}, v{S0+i+1}")
    a(f"s_add_u32 s{s_base}, s{s_base}, {KV_TILE}")
    a(f"s_cmp_lt_u32 s{s_base}, {WS_KV + 64*KV_TILE}")
    a("s_cbranch_scc1 B_fb1")
    a.check_backedge(st)
    a(f"v_mov_b32 v{VT+1}, v{VT}")
    a(f"v_permlane32_swap_b32 v{VT}, v{VT+1}")
    a(f"v_max_f32 v{VT}, v{VT}, v{VT+1}")
    a(f"s_mov_b32 s{s_base}, {WS_KV}")
    a.label("B_fb2")
    st = a.mark()
    a(f"buffer_load_dwordx4 {vr(K1,4)}, v{v_ka}, {WS}, s{s_base} offen")
    a(f"buffer_load_dwordx2 {vr(K2,2)}, v{v_k2a}, {WS}, s{s_base} offen")
    a(f"buffer_load_dwordx4 {vr(V0,4)}, v{v_va}, {WS}, s{s_base} offen")
    a(f"buffer_load_dwordx4 {vr(V1,4)}, v{v_va}, {WS}, s{s_base} offen offset:768")
    a("s_waitcnt vmcnt(0)")
    mf(a, S0, K1, Q1, "0"); mf(a, S0, K2, Q2, S0)
    for i in range(16): a(f"v_sub_f32 v{S0+i}, v{S0+i}, v{VT}")
    for i in range(16): a(f"v_exp_f32 v{S0+i}, v{S0+i}")
    for i in range(8): a(f"v_cvt_pk_bf16_f32 v{P0+i}, v{S0+2*i}, v{S0+2*i+1}")
    mf(a, O, V0, P0, O); mf(a, O, V1, P1, O)
    a(f"s_add_u32 s{s_base}, s{s_base}, {KV_TILE}")
    a(f"s_cmp_lt_u32 s{s_base}, {WS_KV + 64*KV_TILE}")
    a("s_cbranch_scc1 B_fb2")
    a.check_backedge(st)
    a(f"v_mov_b32 v{VT}, v{O+8}")
    a(f"v_mov_b32 v{VT+1}, v{O+8}")
    a(f"v_permlane32_swap_b32 v{VT}, v{VT+1}")
    a("s_nop 1")
    a("s_branch B_norm")

def gemm(a):
    a("s_setprio 2")
    a(f"s_sub_u32 s{s_w}, s{s_w}, 8")
    g = GW(a, 27, 4, 5, STG, PART, SW2, SWS, s_gw)
    WS = f"s[{SWS}:{SWS+3}]"
    a(f"v_lshlrev_b32 v{g.v_l16}, 4, v0")
    a(f"s_mul_i32 s{s_t0}, s{s_w}, 6144")
    a(f"s_add_u32 s{s_t1}, s{s_t0}, {WS_KV}")
    def kv(c):
        a(f"s_add_u32 m0, s{s_t0}, {(c % 3)*CH}")
        for m in range(4):
            a(f"buffer_load_dwordx4 v{g.v_l16}, {WS}, s{s_t1} offen offset:{m*1024} lds"); g.vm.issue(("KV", c))
        a(f"s_add_u32 m0, m0, 4096")
        a(f"s_add_u32 s{s_t1}, s{s_t1}, 4096")
        for m in range(2):
            a(f"buffer_load_dwordx4 v{g.v_l16}, {WS}, s{s_t1} offen offset:{m*1024} lds"); g.vm.issue(("KV", c))
        a(f"s_add_u32 s{s_t1}, s{s_t1}, {CH-4096}")
    kv(0); kv(1)
    a(f"s_mul_i32 s{s_base}, s{s_tt}, {QH_TT}")
    a(f"s_add_u32 s{s_base}, s{s_base}, {WS_QH + 40*1024}")
    g.setup(s_w, s_hg, s_base)
    for i in range(4): g.load_w(i); g.load_a(i)
    kv(2)
    g.setup2()
    vtok, vn4, vx, vt = g.v_end, g.v_end + 5, g.v_end + 10, g.v_end + 20
    g.item_addr(s_w, vtok, vn4)
    g.vm.wait(("KV", 0)); a("s_barrier")
    g.vm.wait(("KV", 1)); a("s_barrier")
    for c in range(7):
        if 1 <= c <= 5: kv(c + 2)
        for i in range(4 * c, min(4 * c + 4, 27)): g.kstep(i, i + 4, i + 4)
        if c == 6:
            a(f"s_mul_i32 s{s_base}, s{s_tt}, {32*1280}")
            a(f"s_mul_i32 s{s_t0}, s{s_hg}, 320")
            a(f"s_add_u32 s{s_base}, s{s_base}, s{s_t0}")
            for e in range(5):
                a(f"v_mul_u32_u24 v{vt}, 1280, v{vtok+e}")
                a(f"v_lshl_add_u32 v{vt}, v{vn4+e}, 3, v{vt}")
                a(f"buffer_load_dwordx2 {vr(vx+2*e,2)}, v{vt}, s[{SX}:{SX+3}], s{s_base} offen"); g.vm.issue("X")
            g.write_partial(STG, s_w)
        else:
            g.vm.wait(("KV", c + 2))
        a("s_barrier")
    g.reduce(STG, vtok, vn4, vt)
    g.vm.wait("X")
    a(f"s_lshl_b32 s{s_base}, s{s_base}, 1")
    a(f"s_add_u32 s{s_base}, s{s_base}, {WS_F}")
    for e in range(5):
        b = g.v_acc + 16 * e
        a(f"v_lshlrev_b32 v{b+4}, 16, v{vx+2*e}")
        a(f"v_and_b32 v{b+5}, 0xffff0000, v{vx+2*e}")
        a(f"v_lshlrev_b32 v{b+6}, 16, v{vx+2*e+1}")
        a(f"v_and_b32 v{b+7}, 0xffff0000, v{vx+2*e+1}")
        a(f"v_pk_add_f32 {vr(b,2)}, {vr(b,2)}, {vr(b+4,2)}")
        a(f"v_pk_add_f32 {vr(b+2,2)}, {vr(b+2,2)}, {vr(b+6,2)}")
        a(f"v_mul_u32_u24 v{b+8}, 2560, v{vtok+e}")
        a(f"v_lshl_add_u32 v{b+8}, v{vn4+e}, 4, v{b+8}")
        a(f"buffer_store_dwordx4 {vr(b,4)}, v{b+8}, {WS}, s{s_base} offen")
    a("s_endpgm")
    return vt + 1

def decode_tile(a, s_tt, s_hg, s_t):
    a(f"s_and_b32 s{s_tt}, s2, 7")
    a(f"s_lshl_b32 s{s_tt}, s{s_tt}, 3")
    a(f"s_lshr_b32 s{s_t}, s2, 5")
    a(f"s_add_u32 s{s_tt}, s{s_tt}, s{s_t}")
    a(f"s_bfe_u32 s{s_hg}, s2, 0x20003")

def gen_b(a, name="pb_kernel"):
    kernel_header(a, name)
    a("s_cmp_ge_u32 s2, 256")
    a("s_cbranch_scc1 B_end")
    a("s_load_dwordx2 s[20:21], s[0:1], 0")
    a("s_load_dwordx2 s[22:23], s[0:1], 56")
    a("s_load_dwordx2 s[24:25], s[0:1], 80")
    a("v_lshrrev_b32 v1, 6, v0")
    a("v_and_b32 v0, 63, v0")
    a(f"v_readfirstlane_b32 s{s_w}, v1")
    decode_tile(a, s_tt, s_hg, s_t0)
    a("s_waitcnt lgkmcnt(0)")
    srd(a, SWS, 24, WS_SIZE)
    srd(a, SW2, 22, 1728 * 1280)
    srd(a, SX, 20, 2048 * 1280)
    a(f"s_cmp_ge_u32 s{s_w}, 8")
    a("s_cbranch_scc1 B_gemm")
    attention(a)
    a.label("B_gemm")
    nv = gemm(a)
    a.label("B_end")
    a("s_endpgm")
    assert nv <= 168, nv
    return dict(name=name, grid=256, block=768, lds=LDS_B, vgpr=168, sgpr=64)
```

```python
from common import *
from gw import *
from kb import decode_tile

DEPTH = 7
LDS_C = 4 * DEPTH * 5120
SWS, SWO, SOUT = 4, 8, 12
s_w, s_tt, s_hg, s_t0, s_base = 32, 33, 34, 35, 36

def gen_c(a, name="pc_kernel"):
    kernel_header(a, name)
    a("s_cmp_ge_u32 s2, 256")
    a("s_cbranch_scc1 C_end")
    a("s_load_dwordx2 s[20:21], s[0:1], 32")
    a("s_load_dwordx2 s[22:23], s[0:1], 64")
    a("s_load_dwordx2 s[24:25], s[0:1], 80")
    a("v_lshrrev_b32 v1, 6, v0")
    a("v_and_b32 v0, 63, v0")
    a(f"v_readfirstlane_b32 s{s_w}, v1")
    decode_tile(a, s_tt, s_hg, s_t0)
    g = GW(a, 10, DEPTH, 10, 0, DEPTH * 5120, SWO, SWS, 44)
    a(f"s_mul_i32 s{s_base}, s{s_tt}, {O_TT}")
    a(f"s_add_u32 s{s_base}, s{s_base}, {WS_O}")
    g.setup(s_w, s_hg, s_base)
    a("s_waitcnt lgkmcnt(0)")
    srd(a, SWS, 24, WS_SIZE)
    srd(a, SWO, 20, 640 * 1280)
    srd(a, SOUT, 22, 2048 * 1280)
    WS = f"s[{SWS}:{SWS+3}]"
    for i in range(10):
        if i < DEPTH: g.load_w(i)
        g.load_a(i)
    vtok, vn4, vf, vt = g.v_end, g.v_end + 5, g.v_end + 10, g.v_end + 30
    g.item_addr(s_w, vtok, vn4)
    a(f"s_mul_i32 s{s_base}, s{s_tt}, {32*1280}")
    a(f"s_mul_i32 s{s_t0}, s{s_hg}, 320")
    a(f"s_add_u32 s{s_base}, s{s_base}, s{s_t0}")
    a(f"s_lshl_b32 s{s_t0}, s{s_base}, 1")
    a(f"s_add_u32 s{s_t0}, s{s_t0}, {WS_F}")
    for e in range(5):
        a(f"v_mul_u32_u24 v{vt}, 2560, v{vtok+e}")
        a(f"v_lshl_add_u32 v{vt}, v{vn4+e}, 4, v{vt}")
        a(f"buffer_load_dwordx4 {vr(vf+4*e,4)}, v{vt}, {WS}, s{s_t0} offen"); g.vm.issue("F")
    g.setup2()
    for i in range(10): g.kstep(i, i + DEPTH, None)
    a("s_barrier")
    g.write_partial(0, s_w)
    a("s_barrier")
    g.reduce(0, vtok, vn4, vt)
    g.vm.wait("F")
    for e in range(5):
        b = g.v_acc + 16 * e
        a(f"v_pk_add_f32 {vr(b,2)}, {vr(b,2)}, {vr(vf+4*e,2)}")
        a(f"v_pk_add_f32 {vr(b+2,2)}, {vr(b+2,2)}, {vr(vf+4*e+2,2)}")
        a(f"v_cvt_pk_bf16_f32 v{b}, v{b}, v{b+1}")
        a(f"v_cvt_pk_bf16_f32 v{b+1}, v{b+2}, v{b+3}")
        a(f"v_mul_u32_u24 v{b+8}, 1280, v{vtok+e}")
        a(f"v_lshl_add_u32 v{b+8}, v{vn4+e}, 3, v{b+8}")
        a(f"buffer_store_dwordx2 {vr(b,2)}, v{b+8}, s[{SOUT}:{SOUT+3}], s{s_base} offen")
    a.label("C_end")
    a("s_endpgm")
    return dict(name=name, grid=256, block=256, lds=LDS_C, vgpr=vt + 1, sgpr=64)
```

```python
import sys, importlib
from common import *
from ka import gen_a

HEADER = open("parallel_sum__grouped_kv_mqa__dense_activation_relu__prompt.s.ref").read().split("; Override launch")[0]

def build(parts, path):
    a = Asm()
    infos = [p(a) for p in parts]
    out = HEADER
    for i in infos:
        out += f"; @launch kernel={i['name']} grid=({i['grid']},1,1) block=({i['block']},1,1) lds={i['lds']}\n"
    out += '.amdgcn_target "amdgcn-amd-amdhsa--gfx950"\n.text\n'
    out += a.text() + "\n"
    out += '.section .rodata,"a"\n'
    for i in infos:
        out += kernel_desc(i["name"], i["vgpr"], i["sgpr"]) + "\n"
    open(path, "w").write(out)
    print("wrote", path, "instrs", len(a.ins), "pads", a.pads)

if __name__ == "__main__":
    parts = [gen_a]
    try:
        from kb import gen_b
        parts.append(gen_b)
        from kc import gen_c
        parts.append(gen_c)
    except ImportError as e:
        print("note:", e)
    build(parts, sys.argv[1] if len(sys.argv) > 1 else "out.s")
```

```python
import math, struct
from asmlib import *

WS_QH = 0
QH_TT = 148 * 1024
WS_KV = 0xA00000
KV_TILE = 3072
WS_O = 0xB00000
O_TT = 40 * 1024
WS_F = 0xE00000
WS_END = WS_F + 2048 * 640 * 4
WS_FL = 0x1300000
import os
STAMP = int(os.environ.get("STAMP", "0"))
WS_SIZE = 0x2000000 if STAMP else 0x1400000
WS_ST = 0x1800000


def f32bits(x): return struct.unpack("<I", struct.pack("<f", x))[0]
QSCALE = math.log2(math.e) / math.sqrt(20.0)

class Cnt:
    def __init__(self, a, name, maxv):
        self.a = a; self.name = name; self.q = []; self.maxv = maxv
    def issue(self, tag): self.q.append(tag)
    def wait(self, *tags):
        last = -1
        for i, t in enumerate(self.q):
            if t in tags: last = i
        if last < 0: return
        n = len(self.q) - 1 - last
        n = min(n, self.maxv)
        self.a(f"s_waitcnt {self.name}({n})")
        self.q = self.q[len(self.q) - n:] if n else []
    def drain(self):
        self.a(f"s_waitcnt {self.name}(0)"); self.q = []

def srd(a, d, base, nbytes):
    a(f"s_mov_b32 s{d}, s{base}")
    a(f"s_and_b32 s{d+1}, s{base+1}, 0xffff")
    a(f"s_mov_b32 s{d+2}, {nbytes}")
    a(f"s_mov_b32 s{d+3}, 0x20000")

def stamp(a, k, real=False):
    if not STAMP: return
    if STAMP == 2: real = True
    a(f"s_mem{'real' if real else ''}time s[{64+2*k}:{65+2*k}]")
def stamp_flush(a, kern, SWS, s_wave, nw, n=16, vt=1):
    if not STAMP: return
    a("s_mov_b64 exec, -1")
    a("s_waitcnt lgkmcnt(0)")
    a(f"s_mul_i32 s100, s2, {nw}")
    a(f"s_add_u32 s100, s100, s{s_wave}")
    a(f"s_lshl_b32 s100, s100, 6")
    a(f"s_add_u32 s100, s100, {WS_ST + kern*0x40000}")
    a(f"v_mov_b32 v{vt}, 0")
    for k in range(n):
        a(f"v_mov_b32 v{vt+1}, s{64+2*k}")
        a(f"buffer_store_dword v{vt+1}, v{vt}, s[{SWS}:{SWS+3}], s100 offen offset:{4*k}")
```

```python
from common import *

SLOT = 36864
SCR = 4 * SLOT
LDS_A = SCR + 4096

SX, SW, SO, SW2 = 4, 8, 12, 16
s_w, s_rb, s_g = 32, 33, 34
s_it, s_slot, s_xoff, s_woff, s_wstep = 35, 36, 37, 38, 39
s_m0x, s_m0w, s_ones, s_delta, s_relu, s_scale, s_t0, s_t1, s_out, s_dslot, s_cslot = 40, 41, 42, 43, 44, 45, 46, 47, 48, 49, 50
v_lane = 0
v_xd, v_wd = 8, 12
v_xa, v_wa = 18, 22
v_sum, v_sq, v_cs = 26, 27, 28
XF = [36, 60]; WF = [40, 64]
ACC = 96

def dma_list(kv):
    L = []
    L.append([f"s_add_u32 m0, s{s_dslot}, s{s_m0x}", f"buffer_load_dwordx4 v{v_xd}, s[{SX}:{SX+3}], s{s_xoff} offen lds"])
    for m in range(1, 4):
        L.append([f"buffer_load_dwordx4 v{v_xd+m}, s[{SX}:{SX+3}], s{s_xoff} offen offset:{m*1024} lds"])
    if not kv:
        L.append([f"s_add_u32 m0, s{s_dslot}, s{s_m0w}", f"buffer_load_dwordx4 v{v_wd}, s[{SW}:{SW+3}], s{s_woff} offen lds"])
        for m in range(1, 4):
            L.append([f"buffer_load_dwordx4 v{v_wd+m}, s[{SW}:{SW+3}], s{s_woff} offen offset:{m*1024} lds"])
        L.append([f"s_add_u32 m0, m0, 4096", f"buffer_load_dwordx4 v{v_wd+4}, s[{SW}:{SW+3}], s{s_woff} offen lds"])
    else:
        L.append([f"s_add_u32 m0, s{s_dslot}, s{s_m0w}", f"buffer_load_dwordx4 v{v_wd}, s[{SW}:{SW+3}], s{s_woff} offen lds"])
        L.append([f"s_add_u32 m0, m0, 1024", f"buffer_load_dwordx4 v{v_wd}, s[{SW2}:{SW2+3}], s{s_woff} offen lds"])
    L[-1] += [f"s_add_u32 s{s_xoff}, s{s_xoff}, 128", f"s_add_u32 s{s_woff}, s{s_woff}, s{s_wstep}"]
    return L

def fin(a):
    if STAMP:
        stamp(a, 7); a("s_waitcnt vmcnt(0)"); stamp(a, 8); stamp(a, 9, True)
        stamp_flush(a, 0, SO, s_w, 4, 10)
    a("s_endpgm")

def role_body(a, kv):
    NT = 2 if kv else 5
    tag = "kv" if kv else "qh"
    ND = 6 if kv else 9
    tstep, pstep = (1024, 256) if kv else (64, 1280)
    rowb = 64 if kv else 320
    lg = Cnt(a, "lgkmcnt", 15)
    if not kv:
        for m in range(5):
            a(f"v_add_u32 v1, {64*m}, v{v_lane}")
            a(f"v_mul_u32_u24 v2, 0xcccd, v1")
            a(f"v_lshrrev_b32 v2, 20, v2")
            a(f"v_mul_u32_u24 v3, 20, v2")
            a(f"v_sub_u32 v3, v1, v3")
            a(f"v_mul_lo_u32 v2, v2, s{s_t0}")
            a(f"v_lshl_add_u32 v2, v3, 4, v2")
            if 0 < m < 4: a(f"v_subrev_u32 v2, {m*1024}, v2")
            a(f"v_add_u32 v{v_wd+m}, s{s_t1}, v2")
    else:
        a(f"v_lshrrev_b32 v1, 2, v{v_lane}")
        a(f"v_mul_u32_u24 v1, 40, v1")
        a(f"v_and_b32 v2, 3, v{v_lane}")
        a(f"v_lshl_add_u32 v1, v2, 4, v1")
        a(f"v_add_u32 v{v_wd}, s{s_t1}, v1")
    for c in range(3):
        a(f"s_mov_b32 s{s_dslot}, {c*SLOT}")
        for p in dma_list(kv):
            for t in p: a(t)
    a(f"s_mov_b32 s{s_dslot}, {3*SLOT}")
    stamp(a, 2)
    a(f"v_and_b32 v1, 31, v{v_lane}")
    a(f"v_lshrrev_b32 v2, 5, v{v_lane}")
    a(f"v_bfe_u32 v3, v{v_lane}, 1, 3")
    a(f"v_xor_b32 v3, v3, v2")
    a(f"s_lshl_b32 s{s_t0}, s{s_w}, 1")
    a(f"v_xor_b32 v3, s{s_t0}, v3")
    a(f"v_lshlrev_b32 v3, 4, v3")
    a(f"v_lshlrev_b32 v1, 7, v1")
    a(f"v_add_u32 v1, s{s_m0x}, v1")
    a(f"v_add_u32 v1, {3*SLOT}, v1")
    for j in range(4):
        a(f"v_xor_b32 v4, {j<<5}, v3")
        a(f"v_add_u32 v{v_xa+j}, v1, v4")
    a(f"v_bfe_u32 v1, v{v_lane}, 2, 2")
    a(f"v_lshl_add_u32 v1, v2, 3, v1")
    a(f"v_mul_u32_u24 v1, {rowb}, v1")
    a(f"v_bfe_u32 v3, v{v_lane}, 4, 1")
    a(f"v_lshl_add_u32 v1, v3, 5, v1")
    a(f"v_and_b32 v3, 3, v{v_lane}")
    a(f"v_lshl_add_u32 v1, v3, 3, v1")
    for j in range(4):
        a(f"s_xor_b32 s{s_t0}, s{s_w}, {j}")
        a(f"s_mul_i32 s{s_t0}, s{s_t0}, 5120")
        a(f"s_add_u32 s{s_t0}, s{s_t0}, {16384 + 3*SLOT}")
        a(f"v_add_u32 v{v_wa+j}, s{s_t0}, v1")
    for r in list(range(v_sum, v_cs + 5)) + list(range(XF[1], WF[1] + 4 * NT)) + list(range(ACC, ACC + 16 * NT)):
        a(f"v_mov_b32 v{r}, 0")
    a(f"s_mov_b32 s{s_it}, 0")
    a(f"s_mov_b32 s{s_slot}, {3*SLOT}")
    stamp(a, 3)
    if STAMP:
        a(f"s_waitcnt vmcnt({2*ND})"); stamp(a, 4); a("s_waitcnt lgkmcnt(0)")

    def mfma(T, u):
        acc = vr(ACC + 16 * T, 16); x = vr(XF[u], 4); w = vr(WF[u] + 4 * T, 4)
        if kv and T == 1: a(f"v_mfma_f32_32x32x16_bf16 {acc}, {x}, {w}, {acc}")
        else: a(f"v_mfma_f32_32x32x16_bf16 {acc}, {w}, {x}, {acc}")
    cs_step = {0: [0, 1], 1: [2], 2: [3], 3: [4]} if not kv else {0: [0], 1: [1], 2: [], 3: []}
    def step(j, jn, u, dmas, pre=None):
        n = u ^ 1
        reads = [(f"ds_read_b128 {vr(XF[n],4)}, v{v_xa+jn}", ("X", n))]
        for T in range(NT):
            for p in range(2):
                reads.append((f"ds_read_b64_tr_b16 {vr(WF[n]+4*T+2*p,2)}, v{v_wa+jn} offset:{T*tstep+p*pstep}", ("W", n, T)))
        fill = []
        for i in range(4):
            fill.append((0, f"v_dot2c_f32_bf16 v{v_sq}, v{XF[u]+i}, v{XF[u]+i}"))
            fill.append((0, f"v_dot2c_f32_bf16 v{v_sum}, s{s_ones}, v{XF[u]+i}"))
        for T in cs_step[j]:
            for i in range(4):
                fill.append((T, f"v_dot2c_f32_bf16 v{v_cs+T}, s{s_ones}, v{WF[u]+4*T+i}"))
        per = 4 if NT == 5 else 5
        fper = (len(fill) + NT - 1) // NT
        for T in range(NT):
            lg.wait(("X", u), ("W", u, T))
            mfma(T, u)
            if T == 0 and pre:
                for t in pre: a(t)
            for _ in range(per):
                if reads:
                    t, g = reads.pop(0); a(t); lg.issue(g)
            if dmas and (T % 2 == 1 or NT == 2):
                for t in dmas.pop(0): a(t)
            k = 0
            for f in list(fill):
                if (k < fper or T == NT - 1) and f[0] <= T:
                    a(f[1]); fill.remove(f); k += 1
        assert not reads and not fill

    a.raw(".p2align 6")
    a.label(f"A_loop_{tag}")
    start = a.mark()
    a(f"s_waitcnt vmcnt({2*ND})")
    a("s_barrier")
    dm = dma_list(kv)
    pre = [f"s_cmp_eq_u32 s{s_slot}, {3*SLOT}",
           f"s_cselect_b32 s{s_delta}, {(-3*SLOT) & 0xffffffff}, s{s_cslot}",
           f"s_add_u32 s{s_slot}, s{s_slot}, s{s_delta}"]
    pre += [f"v_add_u32 v{v_xa+j}, s{s_delta}, v{v_xa+j}" for j in range(4)]
    pre += [f"v_add_u32 v{v_wa+j}, s{s_delta}, v{v_wa+j}" for j in range(4)]
    pre += [f"s_cmp_ge_u32 s{s_it}, 7", f"s_cselect_b32 s{SX+2}, 0, s{SX+2}", f"s_cselect_b32 s{SW+2}, 0, s{SW+2}"]
    if kv: pre += [f"s_cselect_b32 s{SW2+2}, 0, s{SW2+2}"]
    step(3, 0, 1, dm, pre)
    a(f"s_cmp_eq_u32 s{s_it}, 10")
    a(f"s_cbranch_scc1 A_done_{tag}")
    step(0, 1, 0, dm)
    step(1, 2, 1, dm)
    step(2, 3, 0, dm)
    while dm:
        for t in dm.pop(0): a(t)
    a(f"s_mov_b32 s{s_dslot}, s{s_slot}")
    a(f"s_add_u32 s{s_it}, s{s_it}, 1")
    lg.drain()
    a(f"s_branch A_loop_{tag}")
    a.check_backedge(start)
    a.label(f"A_done_{tag}")
    stamp(a, 5)
    a("s_waitcnt lgkmcnt(0)")
    a(f"v_and_b32 v1, 31, v{v_lane}")
    a(f"v_lshlrev_b32 v1, 4, v1")
    a(f"v_add_u32 v1, {SCR}, v1")
    a(f"s_lshl_b32 s{s_t0}, s{s_w}, 2")
    a(f"v_add_u32 v2, s{s_t0}, v1")
    for T in range(NT):
        a(f"v_mov_b32 v{3+T}, v{v_cs+T}")
    for T in range(NT):
        a(f"v_permlane32_swap_b32 v{v_cs+T}, v{3+T}")
    for T in range(NT):
        a(f"v_add_f32 v{3+T}, v{v_cs+T}, v{3+T}")
        a(f"ds_write_b32 v2, v{3+T} offset:{T*512}")
    a(f"v_mov_b32 v8, v{v_sum}")
    a(f"v_mov_b32 v9, v{v_sq}")
    a(f"v_permlane32_swap_b32 v{v_sum}, v8")
    a(f"v_permlane32_swap_b32 v{v_sq}, v9")
    a("s_waitcnt lgkmcnt(0)")
    a("s_barrier")
    for T in range(NT):
        a(f"ds_read_b128 {vr(WF[1]+4*T,4)}, v1 offset:{T*512}")
    inv = f32bits(1.0 / 640.0)
    a(f"v_add_f32 v8, v{v_sum}, v8")
    a(f"v_add_f32 v9, v{v_sq}, v9")
    a(f"v_mul_f32 v8, {hex(inv)}, v8")
    a(f"v_mul_f32 v9, {hex(inv)}, v9")
    a(f"v_fma_f32 v9, -v8, v8, v9")
    a(f"v_max_f32 v9, 0, v9")
    a(f"v_cvt_pk_bf16_f32 v9, v9, v9")
    a(f"v_lshlrev_b32 v9, 16, v9")
    a(f"v_add_f32 v9, {hex(f32bits(1e-5))}, v9")
    a(f"v_cvt_pk_bf16_f32 v9, v9, v9")
    a(f"v_lshlrev_b32 v9, 16, v9")
    a(f"v_sqrt_f32 v9, v9")
    a(f"v_cvt_pk_bf16_f32 v9, v9, v9")
    a(f"v_lshlrev_b32 v9, 16, v9")
    a(f"v_rcp_f32 v9, v9")
    X = XF[0]
    for i in range(4): a(f"v_mov_b32 v{X+i}, 0")
    a("s_mov_b32 exec_hi, 0")
    a(f"v_cvt_pk_bf16_f32 v{X}, -v8, -v8")
    a("s_mov_b32 exec_hi, -1")
    a(f"v_mul_f32 v10, s{s_scale}, v9")
    a(f"v_mov_b32 v11, v10")
    a("s_waitcnt lgkmcnt(0)")
    for T in range(NT):
        c = WF[1] + 4 * T; d = WF[0] + 4 * T
        a(f"v_add_f32 v{c}, v{c}, v{c+1}")
        a(f"v_add_f32 v{c+2}, v{c+2}, v{c+3}")
        a(f"v_add_f32 v{c}, v{c}, v{c+2}")
        a(f"v_cvt_pk_bf16_f32 v{c+1}, v{c}, v{c}")
        a(f"v_lshlrev_b32 v{c+1}, 16, v{c+1}")
        a(f"v_sub_f32 v{c+1}, v{c}, v{c+1}")
        a(f"v_cvt_pk_bf16_f32 v{d}, v{c}, v{c+1}")
        for i in range(1, 4): a(f"v_mov_b32 v{d+i}, 0")
    for T in range(NT): mfma(T, 0)
    stamp(a, 6)
    a(f"v_lshlrev_b32 v1, 4, v{v_lane}")
    if not kv:
        for T in range(NT):
            if T == 4:
                a(f"s_cmp_eq_u32 s{s_g}, 14")
                a(f"s_cbranch_scc1 A_fin")
            b = ACC + 16 * T
            for i in range(8): a(f"v_pk_mul_f32 {vr(b+2*i,2)}, {vr(b+2*i,2)}, v[10:11]")
            for i in range(8): a(f"v_cvt_pk_bf16_f32 v{b+i}, v{b+2*i}, v{b+2*i+1}")
            for i in range(8): a(f"v_pk_max_i16 v{b+i}, v{b+i}, s{s_relu}")
            if T == 2 or T == 4: a(f"s_add_u32 s{s_out}, s{s_out}, 4096")
            o = (2 * T % 4) * 1024
            a(f"buffer_store_dwordx4 {vr(b,4)}, v1, s[{SO}:{SO+3}], s{s_out} offen offset:{o}")
            a(f"buffer_store_dwordx4 {vr(b+4,4)}, v1, s[{SO}:{SO+3}], s{s_out} offen offset:{o+1024}")
        a.label("A_fin")
        fin(a)
    else:
        a(f"v_and_b32 v2, 31, v{v_lane}")
        a(f"s_lshl_b32 s{s_t0}, s{s_w}, 7")
        a(f"s_add_u32 s{s_t0}, s{s_t0}, {SCR + 3072}")
        a(f"v_lshl_add_u32 v3, v2, 2, s{s_t0}")
        a(f"ds_write_b32 v3, v10")
        a(f"v_lshrrev_b32 v4, 5, v{v_lane}")
        a(f"v_lshl_add_u32 v3, v4, 4, s{s_t0}")
        a("s_waitcnt lgkmcnt(0)")
        for q in range(4): a(f"ds_read_b128 {vr(64+4*q,4)}, v3 offset:{32*q}")
        b = ACC
        for i in range(6): a(f"v_pk_mul_f32 {vr(b+2*i,2)}, {vr(b+2*i,2)}, v[10:11]")
        for i in range(6): a(f"v_cvt_pk_bf16_f32 v{b+i}, v{b+2*i}, v{b+2*i+1}")
        a("s_mov_b32 exec_lo, 0")
        a(f"v_mov_b32 v{b+4}, 0x3f80")
        a(f"v_mov_b32 v{b+5}, 0")
        a("s_mov_b32 exec_lo, -1")
        a(f"buffer_store_dwordx4 {vr(b,4)}, v1, s[{SO}:{SO+3}], s{s_out} offen")
        a(f"v_lshlrev_b32 v5, 3, v{v_lane}")
        a(f"buffer_store_dwordx2 {vr(b+4,2)}, v5, s[{SO}:{SO+3}], s{s_out} offen offset:1024")
        b = ACC + 16
        a("s_waitcnt lgkmcnt(0)")
        for i in range(8): a(f"v_pk_mul_f32 {vr(b+2*i,2)}, {vr(b+2*i,2)}, {vr(64+2*i,2)}")
        for i in range(8): a(f"v_cvt_pk_bf16_f32 v{b+i}, v{b+2*i}, v{b+2*i+1}")
        a("s_mov_b32 exec_lo, 0x00100000")
        a("s_mov_b32 exec_hi, 0x00100000")
        for i in range(8): a(f"v_mov_b32 v{b+i}, s{s_ones}")
        a("s_mov_b32 exec_lo, 0x00e00000")
        a("s_mov_b32 exec_hi, 0x00e00000")
        for i in range(8): a(f"v_mov_b32 v{b+i}, 0")
        a("s_mov_b32 exec_lo, 0x00ffffff")
        a("s_mov_b32 exec_hi, 0x00ffffff")
        a(f"v_mul_u32_u24 v4, 384, v4")
        a(f"v_lshl_add_u32 v4, v2, 4, v4")
        a(f"buffer_store_dwordx4 {vr(b,4)}, v4, s[{SO}:{SO+3}], s{s_out} offen offset:1536")
        a(f"buffer_store_dwordx4 {vr(b+4,4)}, v4, s[{SO}:{SO+3}], s{s_out} offen offset:2304")
        fin(a)

def gen_a(a, name="pa_kernel"):
    kernel_header(a, name)
    a("s_cmp_ge_u32 s2, 256")
    a("s_cbranch_scc1 A_end")
    stamp(a, 0, True); stamp(a, 1)
    a("s_load_dwordx4 s[20:23], s[0:1], 0")
    a("s_load_dwordx4 s[24:27], s[0:1], 16")
    a("s_load_dwordx2 s[28:29], s[0:1], 48")
    a("s_load_dwordx2 s[30:31], s[0:1], 80")
    a("v_lshrrev_b32 v1, 6, v0")
    a(f"v_and_b32 v{v_lane}, 63, v0")
    a(f"v_readfirstlane_b32 s{s_w}, v1")
    a(f"s_and_b32 s{s_t0}, s2, 1")
    a(f"s_lshl_b32 s{s_t0}, s{s_t0}, 3")
    a(f"s_bfe_u32 s{s_rb}, s2, 0x30003")
    a(f"s_add_u32 s{s_rb}, s{s_rb}, s{s_t0}")
    a(f"s_bfe_u32 s{s_t0}, s2, 0x20001")
    a(f"s_lshl_b32 s{s_t0}, s{s_t0}, 2")
    a(f"s_lshr_b32 s{s_g}, s2, 6")
    a(f"s_add_u32 s{s_g}, s{s_g}, s{s_t0}")
    a(f"s_mov_b32 s{s_ones}, 0x3f803f80")
    a(f"s_mov_b32 s{s_cslot}, {SLOT}")
    a(f"s_lshl_b32 s{s_m0x}, s{s_w}, 12")
    a(f"s_mul_i32 s{s_m0w}, s{s_w}, 5120")
    a(f"s_add_u32 s{s_m0w}, s{s_m0w}, 16384")
    a(f"s_mul_i32 s{s_xoff}, s{s_rb}, {128*1280}")
    a(f"s_mov_b32 s{s_woff}, 0")
    a(f"v_lshrrev_b32 v1, 3, v{v_lane}")
    a(f"s_lshl_b32 s{s_t0}, s{s_w}, 5")
    a(f"v_add_u32 v1, s{s_t0}, v1")
    a(f"v_mul_u32_u24 v1, 1280, v1")
    a(f"v_and_b32 v2, 7, v{v_lane}")
    a(f"v_lshrrev_b32 v3, 4, v{v_lane}")
    a(f"v_xor_b32 v2, v2, v3")
    a(f"v_lshlrev_b32 v2, 4, v2")
    a(f"v_xor_b32 v3, 64, v2")
    for m in range(4):
        a(f"v_add_u32 v{v_xd+m}, v1, v{2 + (m & 1)}")
        if m: a(f"v_add_u32 v{v_xd+m}, {m*10240 - m*1024}, v{v_xd+m}")
    a(f"s_lshl_b32 s{s_out}, s{s_rb}, 2")
    a(f"s_add_u32 s{s_out}, s{s_out}, s{s_w}")
    a("s_waitcnt lgkmcnt(0)")
    srd(a, SX, 20, 2048 * 1280)
    srd(a, SO, 30, WS_SIZE)
    a(f"s_cmp_eq_u32 s{s_g}, 15")
    a("s_cbranch_scc1 A_kv")
    a(f"s_movk_i32 s{s_t0}, 3456")
    a(f"s_cmp_lt_u32 s{s_g}, 4")
    a(f"s_cselect_b32 s{SW}, s22, s28")
    a(f"s_cselect_b32 s{SW+1}, s23, s29")
    a(f"s_cselect_b32 s{s_t0}, 1280, s{s_t0}")
    a(f"s_mul_i32 s{SW+2}, s{s_t0}, 640")
    a(f"s_cselect_b32 s{s_relu}, 0x80008000, 0")
    a(f"s_cselect_b32 s{s_scale}, {hex(f32bits(QSCALE))}, 1.0")
    a(f"s_cselect_b32 s{s_t1}, 0, 4")
    a(f"s_and_b32 s{SW+1}, s{SW+1}, 0xffff")
    a(f"s_mov_b32 s{SW+3}, 0x20000")
    a(f"s_sub_u32 s{s_t1}, s{s_g}, s{s_t1}")
    a(f"s_mul_i32 s{s_t1}, s{s_t1}, 320")
    a(f"s_lshl_b32 s{s_wstep}, s{s_t0}, 4")
    a(f"s_mul_i32 s{s_delta}, s{s_wstep}, s{s_w}")
    a(f"s_add_u32 s{s_t1}, s{s_t1}, s{s_delta}")
    a(f"s_lshl_b32 s{s_wstep}, s{s_t0}, 6")
    a(f"s_mul_i32 s{s_out}, s{s_out}, {QH_TT}")
    a(f"s_mul_i32 s{s_delta}, s{s_g}, 10240")
    a(f"s_add_u32 s{s_out}, s{s_out}, s{s_delta}")
    role_body(a, False)
    a.label("A_kv")
    srd(a, SW, 24, 640 * 40)
    srd(a, SW2, 26, 640 * 40)
    a(f"s_mov_b32 s{s_scale}, 1.0")
    a(f"s_mul_i32 s{s_t1}, s{s_w}, 640")
    a(f"s_mov_b32 s{s_wstep}, 2560")
    a(f"s_mul_i32 s{s_out}, s{s_out}, {KV_TILE}")
    a(f"s_add_u32 s{s_out}, s{s_out}, {WS_KV}")
    role_body(a, True)
    a.label("A_end")
    a("s_endpgm")
    return dict(name=name, grid=256, block=256, lds=LDS_A, vgpr=176, sgpr=102 if STAMP else 64)
```

```python
from common import *
from gw import *

GPRIO = int(os.environ.get("GPRIO", "2"))
NOGEMM = int(os.environ.get("NOGEMM", "0"))
VZERO = int(os.environ.get("VZERO", "1"))
XP = os.environ.get("XP", "")
CH = 8 * KV_TILE
STG = 3 * CH
LDS_B = STG + 4 * PART

SWS, SW2, SX = 4, 8, 12
s_w, s_tt, s_hg, s_t0, s_t1, s_c, s_slot, s_delta, s_cch, s_base = 32, 33, 34, 35, 36, 37, 38, 39, 40, 41
s_gw = 44
Q1, Q2, K1, K2, V0, V1, P0, P1, O, S0, S1 = 4, 8, 12, 16, 20, 24, 28, 32, 36, 52, 68
v_ka, v_k2a, v_va, v_g0 = 84, 85, 86, 88
VT = 92

def mf(a, d, x, y, c): a(f"v_mfma_f32_32x32x16_bf16 {vr(d,16)}, {vr(x,4)}, {vr(y,4)}, {c if isinstance(c,str) else vr(c,16)}")

def attention(a):
    WS = f"s[{SWS}:{SWS+3}]"
    a(f"s_lshl_b32 s{s_t0}, s{s_hg}, 3")
    a(f"s_add_u32 s{s_t0}, s{s_t0}, s{s_w}")
    a(f"s_mul_i32 s{s_t0}, s{s_t0}, 5")
    a(f"v_lshrrev_b32 v2, 5, v0")
    a(f"v_and_b32 v3, 31, v0")
    a(f"v_lshlrev_b32 v3, 4, v3")
    for i in range(3):
        if i < 2: a(f"v_add_u32 v1, s{s_t0}, v2")
        else: a(f"v_mov_b32 v1, s{s_t0}")
        if i: a(f"v_add_u32 v1, {2*i}, v1")
        a(f"v_lshrrev_b32 v{VT}, 2, v1")
        a(f"v_lshl_add_u32 v{v_g0+i}, v{VT}, 10, v3")
        a(f"v_and_b32 v{VT}, 1, v1")
        a(f"v_lshl_add_u32 v{v_g0+i}, v{VT}, 9, v{v_g0+i}")
        a(f"v_bfe_u32 v{VT}, v1, 1, 1")
        a(f"v_lshl_add_u32 v{v_g0+i}, v{VT}, 3, v{v_g0+i}")
    a(f"s_mul_i32 s{s_base}, s{s_tt}, {QH_TT}")
    a(f"buffer_load_dwordx2 {vr(Q1,2)}, v{v_g0}, {WS}, s{s_base} offen")
    a(f"buffer_load_dwordx2 {vr(Q1+2,2)}, v{v_g0+1}, {WS}, s{s_base} offen")
    a(f"buffer_load_dwordx2 {vr(Q2,2)}, v{v_g0+2}, {WS}, s{s_base} offen")
    a(f"v_lshlrev_b32 v{v_ka}, 4, v0")
    a(f"v_lshlrev_b32 v{v_k2a}, 3, v0")
    a(f"v_add_u32 v{v_k2a}, 1024, v{v_k2a}")
    a(f"v_and_b32 v1, 31, v0")
    a(f"v_subrev_u32 v{VT}, 8, v1")
    a(f"v_cmp_lt_u32 vcc, 23, v1")
    a(f"v_cndmask_b32 v1, v1, v{VT}, vcc")
    if VZERO:
        a(f"v_and_b32 v1, 31, v0")
        a(f"v_min_u32 v1, 23, v1")
    a(f"v_mul_u32_u24 v{v_va}, 384, v2")
    a(f"v_lshl_add_u32 v{v_va}, v1, 4, v{v_va}")
    a(f"v_add_u32 v{v_va}, 1536, v{v_va}")
    for r in [Q2+2, Q2+3, K2+2, K2+3] + list(range(V1, V1+4)) + list(range(P1, P1+4)) + list(range(O, O+16)):
        a(f"v_mov_b32 v{r}, 0")
    a(f"s_mov_b32 s{s_c}, 0")
    a(f"s_mov_b32 s{s_slot}, 0")
    a(f"s_mov_b32 s{s_cch}, {CH}")
    a("s_waitcnt vmcnt(0)")
    a("s_mov_b32 exec_lo, 0")
    a(f"v_mov_b32 v{Q2}, 0")
    a(f"v_mov_b32 v{Q2+1}, 0")
    a("s_mov_b32 exec_lo, -1")
    stamp(a, 2)
    a("s_barrier")
    stamp(a, 3)
    a(f"ds_read_b128 {vr(K1,4)}, v{v_ka}")
    a(f"ds_read_b64 {vr(K2,2)}, v{v_k2a}")
    a("s_waitcnt lgkmcnt(0)")
    mf(a, S1, K1, Q1, "0"); mf(a, S1, K2, Q2, S1)
    a(f"v_max3_f32 v{VT}, v{S1}, v{S1+1}, v{S1+2}")
    for i in range(3, 15, 2): a(f"v_max3_f32 v{VT}, v{VT}, v{S1+i}, v{S1+i+1}")
    a(f"v_max_f32 v{VT}, v{VT}, v{S1+15}")
    a(f"v_mov_b32 v{VT+1}, v{VT}")
    a(f"v_permlane32_swap_b32 v{VT}, v{VT+1}")
    a(f"v_max_f32 v{VT}, v{VT}, v{VT+1}")
    a("s_mov_b32 exec_lo, 0")
    a(f"v_cvt_pk_bf16_f32 v{Q2}, -v{VT}, 0")
    a("s_mov_b32 exec_lo, -1")
    mf(a, S0, K1, Q1, "0")
    a(f"ds_read_b128 {vr(K1,4)}, v{v_ka} offset:{KV_TILE}")
    mf(a, S0, K2, Q2, S0)
    a(f"ds_read_b64 {vr(K2,2)}, v{v_k2a} offset:{KV_TILE}")
    a(f"ds_read_b128 {vr(V0,4)}, v{v_va}")
    stamp(a, 4); stamp(a, 8, True)
    if STAMP: a("s_waitcnt lgkmcnt(0)")
    a("s_nop 9")
    a.raw(".p2align 6")
    a.label("B_loop")
    start = a.mark()
    a0 = a
    def a(t):
        if "nods" in XP and (t.startswith("ds_read") or t.startswith("s_waitcnt lgkm")): return
        if "halfds" in XP and (t.startswith("ds_read") or t.startswith("s_waitcnt lgkm")) and u % 2 == 1: return
        if "nopv" in XP and t.startswith(f"v_mfma_f32_32x32x16_bf16 {vr(O,16)}"): return
        if "noqk2" in XP and t.startswith("v_mfma") and vr(K2,4) in t: return
        if "noexp" in XP and t.startswith("v_exp"): return
        if "nocvt" in XP and t.startswith("v_cvt"): return
        a0(t)
    for u in range(8):
        Sc, Sn = (S0, S1) if u % 2 == 0 else (S1, S0)
        e = lambda i: a(f"v_exp_f32 v{Sc+i}, v{Sc+i}")
        c = lambda i: a(f"v_cvt_pk_bf16_f32 v{P0+i}, v{Sc+2*i}, v{Sc+2*i+1}")
        e(0); e(1)
        a("s_waitcnt lgkmcnt(3)")
        mf(a, O, V1, P1, O)
        a(f"ds_read_b128 {vr(V1,4)}, v{v_va} offset:{u*KV_TILE+768}")
        e(2); e(3); c(0)
        if u == 1: a("s_barrier")
        if u == 6:
            a(f"s_cmp_eq_u32 s{s_slot}, {2*CH}")
            a(f"s_cselect_b32 s{s_delta}, {(-2*CH) & 0xffffffff}, s{s_cch}")
            a(f"s_add_u32 s{s_slot}, s{s_slot}, s{s_delta}")
            a(f"v_add_u32 v{v_ka}, s{s_delta}, v{v_ka}")
            a(f"v_add_u32 v{v_k2a}, s{s_delta}, v{v_k2a}")
        if u == 7: a(f"v_add_u32 v{v_va}, s{s_delta}, v{v_va}")
        e(4); c(1)
        a("s_waitcnt lgkmcnt(3)")
        mf(a, Sn, K1, Q1, "0")
        a(f"ds_read_b128 {vr(K1,4)}, v{v_ka} offset:{((u+2)%8)*KV_TILE}")
        e(5); e(6); e(7); c(2)
        e(8); c(3)
        a("s_waitcnt lgkmcnt(3)")
        mf(a, Sn, K2, Q2, Sn)
        a(f"ds_read_b64 {vr(K2,2)}, v{v_k2a} offset:{((u+2)%8)*KV_TILE}")
        e(9); e(10); e(11); c(4)
        e(12); c(5)
        a("s_waitcnt lgkmcnt(3)")
        mf(a, O, V0, P0, O)
        a(f"ds_read_b128 {vr(V0,4)}, v{v_va} offset:{((u+1)%8)*KV_TILE}")
        e(13); e(14); e(15); c(6)
        if u == 7:
            a(f"s_add_u32 s{s_c}, s{s_c}, 1")
            a(f"s_cmp_lt_u32 s{s_c}, 8")
        c(7)
    a = a0
    a("s_cbranch_scc1 B_loop")
    a.check_backedge(start)
    stamp(a, 5); stamp(a, 9, True)
    a("s_waitcnt lgkmcnt(0)")
    mf(a, O, V1, P1, O)
    a(f"v_mov_b32 v{VT}, v{O+8}")
    a(f"v_mov_b32 v{VT+1}, v{O+8}")
    a(f"v_permlane32_swap_b32 v{VT}, v{VT+1}")
    a(f"v_cmp_nle_f32 vcc, {hex(f32bits(2.0**-60))}, v{VT+1}")
    a(f"v_mov_b32 v{VT+2}, {hex(f32bits(2.0**60))}")
    a(f"v_cmp_nle_f32 s[46:47], v{VT+1}, v{VT+2}")
    a(f"s_or_b64 s[46:47], s[46:47], vcc")
    a("s_cbranch_scc1 B_fallback")
    a.label("B_norm")
    a(f"v_rcp_f32 v{VT}, v{VT+1}")
    a(f"s_mul_i32 s{s_base}, s{s_tt}, {O_TT}")
    a(f"s_add_u32 s{s_base}, s{s_base}, {WS_O}")
    a(f"v_mov_b32 v{VT+1}, v{VT}")
    for i in range(6): a(f"v_pk_mul_f32 {vr(O+2*i,2)}, {vr(O+2*i,2)}, {vr(VT,2)}")
    for i in range(6): a(f"v_cvt_pk_bf16_f32 v{O+i}, v{O+2*i}, v{O+2*i+1}")
    a(f"buffer_store_dwordx2 {vr(O,2)}, v{v_g0}, {WS}, s{s_base} offen")
    a(f"buffer_store_dwordx2 {vr(O+2,2)}, v{v_g0+1}, {WS}, s{s_base} offen")
    a("s_mov_b32 exec_hi, 0")
    a(f"buffer_store_dwordx2 {vr(O+4,2)}, v{v_g0+2}, {WS}, s{s_base} offen")
    if STAMP:
        stamp(a, 6); a("s_waitcnt vmcnt(0)"); stamp(a, 7); stamp(a, 15, True)
        stamp_flush(a, 1, SWS, s_w, 12, 16)
    a("s_endpgm")
    a.label("B_fallback")
    a("s_mov_b32 exec_lo, 0")
    a(f"v_mov_b32 v{Q2}, 0")
    a("s_mov_b32 exec_lo, -1")
    a(f"v_subrev_u32 v{v_ka}, s{s_slot}, v{v_ka}")
    a(f"v_subrev_u32 v{v_k2a}, s{s_slot}, v{v_k2a}")
    a(f"v_subrev_u32 v{v_va}, s{s_slot}, v{v_va}")
    a(f"v_mov_b32 v{VT}, 0xff800000")
    for r in range(O, O + 16): a(f"v_mov_b32 v{r}, 0")
    a(f"s_mov_b32 s{s_base}, {WS_KV}")
    a.label("B_fb1")
    st = a.mark()
    a(f"buffer_load_dwordx4 {vr(K1,4)}, v{v_ka}, {WS}, s{s_base} offen")
    a(f"buffer_load_dwordx2 {vr(K2,2)}, v{v_k2a}, {WS}, s{s_base} offen")
    a("s_waitcnt vmcnt(0)")
    mf(a, S0, K1, Q1, "0"); mf(a, S0, K2, Q2, S0)
    for i in range(0, 16, 2): a(f"v_max3_f32 v{VT}, v{VT}, v{S0+i}, v{S0+i+1}")
    a(f"s_add_u32 s{s_base}, s{s_base}, {KV_TILE}")
    a(f"s_cmp_lt_u32 s{s_base}, {WS_KV + 64*KV_TILE}")
    a("s_cbranch_scc1 B_fb1")
    a.check_backedge(st)
    a(f"v_mov_b32 v{VT+1}, v{VT}")
    a(f"v_permlane32_swap_b32 v{VT}, v{VT+1}")
    a(f"v_max_f32 v{VT}, v{VT}, v{VT+1}")
    a(f"s_mov_b32 s{s_base}, {WS_KV}")
    a.label("B_fb2")
    st = a.mark()
    a(f"buffer_load_dwordx4 {vr(K1,4)}, v{v_ka}, {WS}, s{s_base} offen")
    a(f"buffer_load_dwordx2 {vr(K2,2)}, v{v_k2a}, {WS}, s{s_base} offen")
    a(f"buffer_load_dwordx4 {vr(V0,4)}, v{v_va}, {WS}, s{s_base} offen")
    a(f"buffer_load_dwordx4 {vr(V1,4)}, v{v_va}, {WS}, s{s_base} offen offset:768")
    a("s_waitcnt vmcnt(0)")
    mf(a, S0, K1, Q1, "0"); mf(a, S0, K2, Q2, S0)
    for i in range(16): a(f"v_sub_f32 v{S0+i}, v{S0+i}, v{VT}")
    for i in range(16): a(f"v_exp_f32 v{S0+i}, v{S0+i}")
    for i in range(8): a(f"v_cvt_pk_bf16_f32 v{P0+i}, v{S0+2*i}, v{S0+2*i+1}")
    mf(a, O, V0, P0, O); mf(a, O, V1, P1, O)
    a(f"s_add_u32 s{s_base}, s{s_base}, {KV_TILE}")
    a(f"s_cmp_lt_u32 s{s_base}, {WS_KV + 64*KV_TILE}")
    a("s_cbranch_scc1 B_fb2")
    a.check_backedge(st)
    a(f"v_mov_b32 v{VT}, v{O+8}")
    a(f"v_mov_b32 v{VT+1}, v{O+8}")
    a(f"v_permlane32_swap_b32 v{VT}, v{VT+1}")
    a("s_nop 1")
    a("s_branch B_norm")

def gemm(a):
    a(f"s_setprio {GPRIO}")
    a(f"s_sub_u32 s{s_w}, s{s_w}, 8")
    g = GW(a, 27, 4, 5, STG, PART, SW2, SWS, s_gw)
    WS = f"s[{SWS}:{SWS+3}]"
    a(f"v_lshlrev_b32 v{g.v_l16}, 4, v0")
    a(f"s_mul_i32 s{s_t0}, s{s_w}, 6144")
    a(f"s_add_u32 s{s_t1}, s{s_t0}, {WS_KV}")
    def kv(c):
        a(f"s_add_u32 m0, s{s_t0}, {(c % 3)*CH}")
        for m in range(4):
            a(f"buffer_load_dwordx4 v{g.v_l16}, {WS}, s{s_t1} offen offset:{m*1024} lds"); g.vm.issue(("KV", c))
        a(f"s_add_u32 m0, m0, 4096")
        a(f"s_add_u32 s{s_t1}, s{s_t1}, 4096")
        for m in range(2):
            a(f"buffer_load_dwordx4 v{g.v_l16}, {WS}, s{s_t1} offen offset:{m*1024} lds"); g.vm.issue(("KV", c))
        a(f"s_add_u32 s{s_t1}, s{s_t1}, {CH-4096}")
    kv(0); kv(1)
    a(f"s_mul_i32 s{s_base}, s{s_tt}, {QH_TT}")
    a(f"s_add_u32 s{s_base}, s{s_base}, {WS_QH + 40*1024}")
    g.setup(s_w, s_hg, s_base)
    if not NOGEMM:
        for i in range(4): g.load_w(i); g.load_a(i)
    kv(2)
    g.setup2()
    vtok, vn4, vx, vt = g.v_end, g.v_end + 5, g.v_end + 10, g.v_end + 20
    g.item_addr(s_w, vtok, vn4)
    stamp(a, 2)
    g.vm.wait(("KV", 0)); stamp(a, 3); a("s_barrier")
    g.vm.wait(("KV", 1)); a("s_barrier")
    stamp(a, 4)
    if STAMP: a("s_waitcnt lgkmcnt(0)")
    for c in range(7):
        if 1 <= c <= 5: kv(c + 2)
        if not NOGEMM:
            for i in range(4 * c, min(4 * c + 4, 27)): g.kstep(i, i + 4, i + 4)
        if c == 6:
            a(f"s_mul_i32 s{s_base}, s{s_tt}, {32*1280}")
            a(f"s_mul_i32 s{s_t0}, s{s_hg}, 320")
            a(f"s_add_u32 s{s_base}, s{s_base}, s{s_t0}")
            for e in range(5):
                a(f"v_mul_u32_u24 v{vt}, 1280, v{vtok+e}")
                a(f"v_lshl_add_u32 v{vt}, v{vn4+e}, 3, v{vt}")
                a(f"buffer_load_dwordx2 {vr(vx+2*e,2)}, v{vt}, s[{SX}:{SX+3}], s{s_base} offen"); g.vm.issue("X")
            g.write_partial(STG, s_w)
        else:
            g.vm.wait(("KV", c + 2))
        if c < 4: stamp(a, 5 + 2 * c)
        a("s_barrier")
        if c < 4: stamp(a, 6 + 2 * c)
        if c == 6: stamp(a, 13)
        if STAMP: a("s_waitcnt lgkmcnt(0)")
    g.reduce(STG, vtok, vn4, vt)
    g.vm.wait("X")
    a(f"s_lshl_b32 s{s_base}, s{s_base}, 1")
    a(f"s_add_u32 s{s_base}, s{s_base}, {WS_F}")
    for e in range(5):
        b = g.v_acc + 16 * e
        a(f"v_lshlrev_b32 v{b+4}, 16, v{vx+2*e}")
        a(f"v_and_b32 v{b+5}, 0xffff0000, v{vx+2*e}")
        a(f"v_lshlrev_b32 v{b+6}, 16, v{vx+2*e+1}")
        a(f"v_and_b32 v{b+7}, 0xffff0000, v{vx+2*e+1}")
        a(f"v_pk_add_f32 {vr(b,2)}, {vr(b,2)}, {vr(b+4,2)}")
        a(f"v_pk_add_f32 {vr(b+2,2)}, {vr(b+2,2)}, {vr(b+6,2)}")
        a(f"v_mul_u32_u24 v{b+8}, 2560, v{vtok+e}")
        a(f"v_lshl_add_u32 v{b+8}, v{vn4+e}, 4, v{b+8}")
        a(f"buffer_store_dwordx4 {vr(b,4)}, v{b+8}, {WS}, s{s_base} offen")
    if STAMP:
        a("s_waitcnt vmcnt(0)"); stamp(a, 14); stamp(a, 15, True)
        a(f"s_add_u32 s{s_w}, s{s_w}, 8")
        stamp_flush(a, 1, SWS, s_w, 12, 16)
    a("s_endpgm")
    return vt + 1

def decode_tile(a, s_tt, s_hg, s_t):
    a(f"s_and_b32 s{s_tt}, s2, 7")
    a(f"s_lshl_b32 s{s_tt}, s{s_tt}, 3")
    a(f"s_lshr_b32 s{s_t}, s2, 5")
    a(f"s_add_u32 s{s_tt}, s{s_tt}, s{s_t}")
    a(f"s_bfe_u32 s{s_hg}, s2, 0x20003")

def gen_b(a, name="pb_kernel"):
    kernel_header(a, name)
    a("s_cmp_ge_u32 s2, 256")
    a("s_cbranch_scc1 B_end")
    stamp(a, 0, True); stamp(a, 1)
    a("s_load_dwordx2 s[20:21], s[0:1], 0")
    a("s_load_dwordx2 s[22:23], s[0:1], 56")
    a("s_load_dwordx2 s[24:25], s[0:1], 80")
    a("v_lshrrev_b32 v1, 6, v0")
    a("v_and_b32 v0, 63, v0")
    a(f"v_readfirstlane_b32 s{s_w}, v1")
    decode_tile(a, s_tt, s_hg, s_t0)
    a("s_waitcnt lgkmcnt(0)")
    srd(a, SWS, 24, WS_SIZE)
    srd(a, SW2, 22, 1728 * 1280)
    srd(a, SX, 20, 2048 * 1280)
    a(f"s_cmp_ge_u32 s{s_w}, 8")
    a("s_cbranch_scc1 B_gemm")
    attention(a)
    a.label("B_gemm")
    nv = gemm(a)
    a.label("B_end")
    a("s_endpgm")
    assert nv <= 168, nv
    return dict(name=name, grid=256, block=768, lds=LDS_B, vgpr=168, sgpr=102 if STAMP else 64)
```

```python
from common import *
from gw import *
from kb import decode_tile

DEPTH = 7
LDS_C = 4 * DEPTH * 5120
SWS, SWO, SOUT = 4, 8, 12
s_w, s_tt, s_hg, s_t0, s_base = 32, 33, 34, 35, 36

def gen_c(a, name="pc_kernel"):
    kernel_header(a, name)
    a("s_cmp_ge_u32 s2, 256")
    a("s_cbranch_scc1 C_end")
    stamp(a, 0, True); stamp(a, 1)
    a("s_load_dwordx2 s[20:21], s[0:1], 32")
    a("s_load_dwordx2 s[22:23], s[0:1], 64")
    a("s_load_dwordx2 s[24:25], s[0:1], 80")
    a("v_lshrrev_b32 v1, 6, v0")
    a("v_and_b32 v0, 63, v0")
    a(f"v_readfirstlane_b32 s{s_w}, v1")
    decode_tile(a, s_tt, s_hg, s_t0)
    g = GW(a, 10, DEPTH, 10, 0, DEPTH * 5120, SWO, SWS, 44)
    a(f"s_mul_i32 s{s_base}, s{s_tt}, {O_TT}")
    a(f"s_add_u32 s{s_base}, s{s_base}, {WS_O}")
    g.setup(s_w, s_hg, s_base)
    a("s_waitcnt lgkmcnt(0)")
    srd(a, SWS, 24, WS_SIZE)
    srd(a, SWO, 20, 640 * 1280)
    srd(a, SOUT, 22, 2048 * 1280)
    WS = f"s[{SWS}:{SWS+3}]"
    for i in range(10):
        if i < DEPTH: g.load_w(i)
        g.load_a(i)
    vtok, vn4, vf, vt = g.v_end, g.v_end + 5, g.v_end + 10, g.v_end + 30
    g.item_addr(s_w, vtok, vn4)
    a(f"s_mul_i32 s{s_base}, s{s_tt}, {32*1280}")
    a(f"s_mul_i32 s{s_t0}, s{s_hg}, 320")
    a(f"s_add_u32 s{s_base}, s{s_base}, s{s_t0}")
    a(f"s_lshl_b32 s{s_t0}, s{s_base}, 1")
    a(f"s_add_u32 s{s_t0}, s{s_t0}, {WS_F}")
    for e in range(5):
        a(f"v_mul_u32_u24 v{vt}, 2560, v{vtok+e}")
        a(f"v_lshl_add_u32 v{vt}, v{vn4+e}, 4, v{vt}")
        a(f"buffer_load_dwordx4 {vr(vf+4*e,4)}, v{vt}, {WS}, s{s_t0} offen"); g.vm.issue("F")
    stamp(a, 2)
    g.setup2()
    for i in range(10):
        g.kstep(i, i + DEPTH, None)
        if i in (0, 6, 9):
            stamp(a, {0: 3, 6: 4, 9: 5}[i])
            if STAMP: a("s_waitcnt lgkmcnt(0)")
    a("s_barrier")
    g.write_partial(0, s_w)
    a("s_barrier")
    g.reduce(0, vtok, vn4, vt)
    g.vm.wait("F")
    for e in range(5):
        b = g.v_acc + 16 * e
        a(f"v_pk_add_f32 {vr(b,2)}, {vr(b,2)}, {vr(vf+4*e,2)}")
        a(f"v_pk_add_f32 {vr(b+2,2)}, {vr(b+2,2)}, {vr(vf+4*e+2,2)}")
        a(f"v_cvt_pk_bf16_f32 v{b}, v{b}, v{b+1}")
        a(f"v_cvt_pk_bf16_f32 v{b+1}, v{b+2}, v{b+3}")
        a(f"v_mul_u32_u24 v{b+8}, 1280, v{vtok+e}")
        a(f"v_lshl_add_u32 v{b+8}, v{vn4+e}, 3, v{b+8}")
        a(f"buffer_store_dwordx2 {vr(b,2)}, v{b+8}, s[{SOUT}:{SOUT+3}], s{s_base} offen")
    if STAMP:
        stamp(a, 6); a("s_waitcnt vmcnt(0)"); stamp(a, 7); stamp(a, 8, True)
        stamp_flush(a, 2, SWS, s_w, 4, 9)
    a.label("C_end")
    a("s_endpgm")
    return dict(name=name, grid=256, block=256, lds=LDS_C, vgpr=vt + 1, sgpr=102 if STAMP else 64)
```

```python
import sys, importlib
from common import *
from ka import gen_a

HEADER = open("parallel_sum__grouped_kv_mqa__dense_activation_relu__prompt.s.ref").read().split("; Override launch")[0]

def build(parts, path):
    a = Asm()
    infos = [p(a) for p in parts]
    out = HEADER
    for i in infos:
        out += f"; @launch kernel={i['name']} grid=({i['grid']},1,1) block=({i['block']},1,1) lds={i['lds']}\n"
    out += '.amdgcn_target "amdgcn-amd-amdhsa--gfx950"\n.text\n'
    out += a.text() + "\n"
    out += '.section .rodata,"a"\n'
    for i in infos:
        out += kernel_desc(i["name"], i["vgpr"], i["sgpr"]) + "\n"
    open(path, "w").write(out)
    print("wrote", path, "instrs", len(a.ins), "pads", a.pads)

if __name__ == "__main__":
    parts = [gen_a]
    try:
        from kb import gen_b
        parts.append(gen_b)
        from kc import gen_c
        parts.append(gen_c)
    except ImportError as e:
        print("note:", e)
    for i in range(int(os.environ.get("EMPTY", "0"))):
        def ge(a, i=i):
            kernel_header(a, f"e{i}_kernel"); a("s_endpgm")
            return dict(name=f"e{i}_kernel", grid=256, block=256, lds=0, vgpr=8, sgpr=16)
        parts.append(ge)
    build(parts, sys.argv[1] if len(sys.argv) > 1 else "out.s")
```

```python
from common import *

SLOT = 40960
LA = int(os.environ.get('LA', '2'))
SCR = 157696
SC_NM, SC_RS, SC_CS = SCR, SCR + 512, SCR + 1024
LDS_A = SCR + 4096
SC_CNT = SCR + 3072
ST = ' sc1'
ROT = int(os.environ.get('ROT', '0'))
NSB = 0
LATEBIT = os.environ.get('LATEBIT', '1')
AX = os.environ.get('AX', '')
PF = int(os.environ.get('PF', '0'))

SX, SW, SO, SW2 = 4, 8, 12, 16
s_w, s_rb, s_g = 32, 33, 34
s_it, s_slot, s_xoff, s_woff, s_wstep = 35, 36, 37, 38, 39
s_m0x, s_m0w, s_delta, s_relu, s_scale, s_t0, s_t1, s_out, s_dslot, s_cslot, s_ch, s_xbase, s_stride, s_col = range(40, 54)
s_tab = 54

ROLES = {
    "h": (3, 384, 3), "q": (2, 256, 2), "kv": (1, 64, 1)}

def w_read_addr(a, role, dst, s_half, tmp=1):
    NTW, RB, _ = ROLES[role]
    t = tmp
    a(f"v_lshrrev_b32 v{t}, 5, v0")
    a(f"v_bfe_u32 v{t+1}, v0, 2, 2")
    a(f"v_lshl_add_u32 v{t}, v{t}, 3, v{t+1}")
    a(f"v_mul_u32_u24 v{t}, {RB}, v{t}")
    a(f"v_bfe_u32 v{t+2}, v0, 4, 1")
    a(f"v_lshl_add_u32 v{t}, v{t+2}, 5, v{t}")
    a(f"v_and_b32 v{t+2}, 3, v0")
    a(f"v_lshl_add_u32 v{t}, v{t+2}, 3, v{t}")
    a(f"v_add_u32 v{t}, {16384 + LA*SLOT}, v{t}")
    if role == "kv":
        a(f"s_lshl_b32 s{s_t0}, s{s_half}, 12")
        a(f"v_add_u32 v{dst}, s{s_t0}, v{t}")
        return
    if role == "h": a(f"v_lshrrev_b32 v{t+1}, 1, v{t+1}")
    a(f"s_mul_i32 s{s_t0}, s{s_half}, {NTW}")
    for T in range(NTW):
        a(f"s_add_u32 s{s_t1}, s{s_t0}, {T}")
        a(f"v_xor_b32 v{t+2}, s{s_t1}, v{t+1}")
        a(f"v_lshl_add_u32 v{dst+T}, v{t+2}, 6, v{t}")

def slot_advance(regs):
    L = [f"s_cmp_eq_u32 s{s_slot}, {LA*SLOT}",
         f"s_cselect_b32 s{s_delta}, {(-LA*SLOT) & 0xffffffff}, s{s_cslot}",
         f"s_add_u32 s{s_slot}, s{s_slot}, s{s_delta}"]
    return L + [f"v_add_u32 v{r}, s{s_delta}, v{r}" for r in regs]

def loader(a, role, done, pre_ba=None):
    NTW, RB, NW = ROLES[role]
    NW *= 2
    ND = 4 + NW
    v_xd, v_wd = 4, 8
    a(f"v_lshrrev_b32 v1, 3, v0")
    a(f"s_lshl_b32 s{s_t0}, s{s_w}, 5")
    a(f"v_add_u32 v1, s{s_t0}, v1")
    a(f"v_mul_u32_u24 v1, 1280, v1")
    a(f"v_and_b32 v2, 7, v0")
    a(f"v_lshrrev_b32 v3, 4, v0")
    a(f"v_xor_b32 v2, v2, v3")
    a(f"v_lshl_add_u32 v{v_xd}, v2, 4, v1")
    a(f"v_xor_b32 v2, 4, v2")
    a(f"v_lshl_add_u32 v{v_xd+1}, v2, 4, v1")
    a(f"v_add_u32 v{v_xd+1}, {10240-1024}, v{v_xd+1}")
    a(f"v_add_u32 v{v_xd+2}, {2*(10240-1024)}, v{v_xd}")
    a(f"v_add_u32 v{v_xd+3}, {2*(10240-1024)}, v{v_xd+1}")
    a(f"s_lshl_b32 s{s_m0x}, s{s_w}, 12")
    def dma_x():
        a(f"s_and_b32 s{s_ch}, s{s_tab}, 15")
        a(f"s_lshr_b64 s[{s_tab}:{s_tab+1}], s[{s_tab}:{s_tab+1}], 4")
        a(f"s_lshl_b32 s{s_xoff}, s{s_ch}, 7")
        a(f"s_add_u32 s{s_xoff}, s{s_xoff}, s{s_xbase}")
        a(f"s_add_u32 m0, s{s_dslot}, s{s_m0x}")
        a(f"s_mul_i32 s{s_woff}, s{s_ch}, s{s_wstep}")
        for e in range(4):
            a(f"buffer_load_dwordx4 v{v_xd+e}, s[{SX}:{SX+3}], s{s_xoff} offen offset:{e*1024} lds")
    def dma_w():
        a(f"s_add_u32 m0, s{s_dslot}, s{s_m0w}")
        if role == "kv":
            a(f"buffer_load_dwordx4 v{v_wd}, s[{SW}:{SW+3}], s{s_woff} offen lds")
            a(f"s_add_u32 m0, m0, 4096")
            a(f"buffer_load_dwordx4 v{v_wd}, s[{SW2}:{SW2+3}], s{s_woff} offen lds")
        else:
            for m in range(NW):
                if m == 4: a(f"s_add_u32 m0, m0, 4096")
                a(f"buffer_load_dwordx4 v{v_wd+m}, s[{SW}:{SW+3}], s{s_woff} offen offset:{(m%4)*1024} lds")
    a(f"s_mov_b32 s{s_dslot}, 0")
    dma_x()
    if role == "kv":
        a(f"s_lshl_b32 s{s_m0w}, s{s_w}, 10")
        a(f"s_add_u32 s{s_m0w}, s{s_m0w}, 16384")
        a(f"v_lshrrev_b32 v1, 2, v0")
        a(f"s_lshl_b32 s{s_t0}, s{s_w}, 4")
        a(f"v_add_u32 v1, s{s_t0}, v1")
        a(f"v_mul_u32_u24 v1, 40, v1")
        a(f"v_and_b32 v2, 3, v0")
        a(f"v_lshl_add_u32 v{v_wd}, v2, 4, v1")
    else:
        PR = RB // 16
        a(f"s_mul_i32 s{s_m0w}, s{s_w}, {NW*1024}")
        a(f"s_add_u32 s{s_m0w}, s{s_m0w}, 16384")
        a(f"s_lshl_b32 s{s_t0}, s{s_w}, 4")
        a(f"s_mul_i32 s{s_t0}, s{s_t0}, s{s_stride}")
        a(f"s_add_u32 s{s_t0}, s{s_t0}, s{s_col}")
        for m in range(NW // 2):
            a(f"v_add_u32 v1, {64*m}, v0")
            if PR == 16:
                a(f"v_lshrrev_b32 v2, 4, v1")
                a(f"v_and_b32 v3, 15, v1")
                a(f"v_and_b32 v1, 3, v2")
            else:
                a(f"v_mul_u32_u24 v2, 0xaaab, v1")
                a(f"v_lshrrev_b32 v2, 20, v2")
                a(f"v_mul_u32_u24 v3, 24, v2")
                a(f"v_sub_u32 v3, v1, v3")
                a(f"v_bfe_u32 v1, v2, 1, 1")
            a(f"v_lshlrev_b32 v1, 2, v1")
            a(f"v_xor_b32 v3, v3, v1")
            a(f"v_mul_lo_u32 v2, v2, s{s_stride}")
            a(f"v_lshl_add_u32 v2, v3, 4, v2")
            a(f"v_add_u32 v{v_wd+m}, s{s_t0}, v2")
        stride = 3456 if role == "h" else 1280
        for m in range(NW // 2, NW):
            a(f"v_add_u32 v{v_wd+m}, {8*stride - (m%4)*1024}, v{v_wd+m-NW//2}")
        for m in range(1, NW // 2): a(f"v_subrev_u32 v{v_wd+m}, {m*1024}, v{v_wd+m}")
    dma_w()
    for c in range(1, LA):
        a(f"s_mov_b32 s{s_dslot}, {c*SLOT}")
        dma_x(); dma_w()
    stamp(a, 2)
    a(f"s_mov_b32 s{s_it}, 0")
    a(f"s_mov_b32 s{s_dslot}, {LA*SLOT}")
    a.label(f"AL_loop_{role}")
    a(f"s_waitcnt vmcnt({(LA-1)*ND})")
    a("s_barrier")
    if "nodma" not in AX: dma_x(); dma_w()
    a(f"s_add_u32 s{s_dslot}, s{s_dslot}, s{s_cslot}")
    a(f"s_cmp_eq_u32 s{s_dslot}, {(LA+1)*SLOT}")
    a(f"s_cselect_b32 s{s_dslot}, 0, s{s_dslot}")
    a(f"s_add_u32 s{s_it}, s{s_it}, 1")
    a(f"s_cmp_lt_u32 s{s_it}, {10-LA}")
    a(f"s_cbranch_scc1 AL_loop_{role}")
    for k in range(LA):
        a(f"s_waitcnt vmcnt({(LA-1-k)*ND})")
        a("s_barrier")
    stamp(a, 3)
    if pre_ba: pre_ba(a)
    a("s_barrier")
    done(a)

def stats(a, done):
    v_xa, XR, AS, AQ, T0 = 4, 8, 24, 32, 40
    a(f"s_sub_u32 s{s_m0x}, s{s_w}, 4")
    a(f"s_lshl_b32 s{s_t0}, s{s_m0x}, 12")
    a(f"s_add_u32 s{s_t0}, s{s_t0}, {LA*SLOT}")
    a(f"v_lshl_add_u32 v{v_xa}, v0, 4, s{s_t0}")
    for r in range(AS, AQ + 8): a(f"v_mov_b32 v{r}, 0")
    a(f"s_mov_b32 s{s_relu}, 0xffff0000")
    a(f"s_mov_b32 s{s_it}, 0")
    a(f"s_mov_b32 s{s_slot}, {LA*SLOT}")
    a.label("AS_loop")
    st = a.mark()
    for t in slot_advance([v_xa]): a(t)
    a("s_barrier")
    for e in range(4): a(f"ds_read_b128 {vr(XR+4*e,4)}, v{v_xa} offset:{e*1024}")
    for e in range(4):
        a(f"s_waitcnt lgkmcnt({3-e})")
        if "nostat" in AX: continue
        for i in range(4):
            x = XR + 4 * e + i
            a(f"v_lshlrev_b32 v{T0+i}, 16, v{x}")
            a(f"v_and_b32 v{x}, s{s_relu}, v{x}")
        for i in range(4):
            x = XR + 4 * e + i
            a(f"v_add_f32 v{AS+2*e}, v{AS+2*e}, v{T0+i}")
            a(f"v_add_f32 v{AS+2*e+1}, v{AS+2*e+1}, v{x}")
            a(f"v_fmac_f32 v{AQ+2*e}, v{T0+i}, v{T0+i}")
            a(f"v_fmac_f32 v{AQ+2*e+1}, v{x}, v{x}")
    a(f"s_add_u32 s{s_it}, s{s_it}, 1")
    if STAMP:
        for k, itv in ((4, 1), (5, 2), (6, 5)):
            a(f"s_cmp_eq_u32 s{s_it}, {itv}"); a(f"s_cbranch_scc0 AS_ns{k}"); stamp(a, k); a("s_waitcnt lgkmcnt(0)"); a.label(f"AS_ns{k}")
    a(f"s_cmp_lt_u32 s{s_it}, 10")
    a(f"s_cbranch_scc1 AS_loop")
    a.check_backedge(st)
    stamp(a, 3)
    vals = [AS + 2 * e for e in range(4)] + [AQ + 2 * e for e in range(4)]
    for r in vals: a(f"v_add_f32 v{r}, v{r}, v{r+1}")
    for ctl in ("quad_perm:[1,0,3,2]", "quad_perm:[2,3,0,1]", "row_half_mirror"):
        for r in vals: a(f"v_add_f32_dpp v{r}, v{r}, v{r} {ctl} row_mask:0xf bank_mask:0xf")
    a(f"v_and_b32 v2, 3, v0")
    a(f"v_and_b32 v3, 1, v0")
    a(f"v_cmp_eq_u32 vcc, 1, v3")
    a(f"v_cmp_lt_u32 s[52:53], 1, v2")
    for b in (AS, AQ):
        a(f"v_cndmask_b32 v{b}, v{b}, v{b+2}, vcc")
        a(f"v_cndmask_b32 v{b+4}, v{b+4}, v{b+6}, vcc")
    a(f"v_cndmask_b32 v8, v{AS}, v{AS+4}, s[52:53]")
    a(f"v_cndmask_b32 v9, v{AQ}, v{AQ+4}, s[52:53]")
    inv = f32bits(1.0 / 640.0)
    a(f"v_mul_f32 v8, {hex(inv)}, v8")
    a(f"v_mul_f32 v9, {hex(inv)}, v9")
    a(f"v_fma_f32 v9, -v8, v8, v9")
    a(f"v_max_f32 v9, 0, v9")
    a(f"v_cvt_pk_bf16_f32 v9, v9, v9")
    a(f"v_lshlrev_b32 v9, 16, v9")
    a(f"v_add_f32 v9, {hex(f32bits(1e-5))}, v9")
    a(f"v_cvt_pk_bf16_f32 v9, v9, v9")
    a(f"v_lshlrev_b32 v9, 16, v9")
    a(f"v_sqrt_f32 v9, v9")
    a(f"v_cvt_pk_bf16_f32 v9, v9, v9")
    a(f"v_lshlrev_b32 v9, 16, v9")
    a(f"v_rcp_f32 v9, v9")
    a(f"v_cvt_pk_bf16_f32 v8, -v8, -v8")
    a(f"v_lshrrev_b32 v1, 3, v0")
    a(f"v_lshl_add_u32 v1, v2, 3, v1")
    a(f"s_lshl_b32 s{s_t0}, s{s_m0x}, 7")
    a(f"s_add_u32 s{s_t0}, s{s_t0}, {SC_NM}")
    a(f"v_lshl_add_u32 v1, v1, 2, s{s_t0}")
    a(f"v_mul_f32 v9, s{s_scale}, v9")
    a(f"ds_write_b32 v1, v8")
    a(f"ds_write_b32 v1, v9 offset:512")
    a("s_waitcnt lgkmcnt(0)")
    a("s_barrier")
    done(a)

def prefetch(a, role):
    NTW, RB, _ = ROLES[role]
    c = s_t1
    a(f"s_sub_u32 s{c}, s{s_w}, 8")
    a(f"s_lshr_b32 s{s_t0}, s2, 6")
    a(f"s_lshl_b32 s{s_t0}, s{s_t0}, 2")
    a(f"s_add_u32 s{s_t0}, s{s_t0}, s{c}")
    a(f"s_mul_i32 s{s_t0}, s{s_t0}, {8*1280}")
    a(f"s_add_u32 s{s_t0}, s{s_t0}, s{s_xbase}")
    a(f"v_and_b32 v1, 7, v0")
    a(f"v_mul_u32_u24 v1, 1280, v1")
    a(f"v_lshrrev_b32 v2, 3, v0")
    a(f"v_lshl_add_u32 v3, v2, 7, v1")
    a(f"buffer_load_dword v5, v3, s[{SX}:{SX+3}], s{s_t0} offen offset:128")
    if role != "kv":
        NL = RB // 128
        a(f"v_mul_u32_u24 v2, {65536 // (2*NL) + 1}, v0")
        a(f"v_lshrrev_b32 v2, 16, v2")
        a(f"v_mul_u32_u24 v3, {2*NL}, v2")
        a(f"v_sub_u32 v3, v0, v3")
        a(f"v_and_b32 v4, 1, v3")
        a(f"v_lshrrev_b32 v3, 1, v3")
        a(f"v_lshl_add_u32 v2, v2, 6, v4")
        a(f"v_mul_lo_u32 v2, v2, s{s_stride}")
        a(f"v_lshl_add_u32 v2, v3, 7, v2")
        a(f"s_bfe_u32 s{s_t0}, s2, 0x30003")
        a(f"s_lshl_b32 s{s_t0}, s{s_t0}, 2")
        a(f"s_add_u32 s{s_t0}, s{s_t0}, s{c}")
        a(f"s_lshl_b32 s{s_t0}, s{s_t0}, 1")
        a(f"s_mul_i32 s{s_t0}, s{s_t0}, s{s_stride}")
        a(f"s_add_u32 s{s_delta}, s{s_t0}, s{s_col}")
        a(f"buffer_load_dword v7, v2, s[{SW}:{SW+3}], s{s_delta} offen")
    a(f"s_lshr_b32 s{s_t0}, s2, 6")
    a(f"s_lshl_b32 s{s_t0}, s{s_t0}, 2")
    a(f"s_add_u32 s{s_t0}, s{s_t0}, s{c}")
    a(f"s_mul_i32 s{s_t0}, s{s_t0}, {8*1280}")
    a(f"s_add_u32 s{s_t0}, s{s_t0}, s{s_xbase}")
    a(f"buffer_load_dword v15, v1, s[{SX}:{SX+3}], s{s_t0} offen offset:1152")

def compute(a, role, done, vmode=False):
    NTW, RB, _ = ROLES[role]
    tag = role + ("v" if vmode else "")
    v_xa, v_wa = 8, 12
    XF = [16, 36]; WF = [24, 44]
    SEL, CSA, ACC = 56, 60, 72
    lg = Cnt(a, "lgkmcnt", 15)
    s_rp, s_half = s_m0x, s_m0w
    if NSB: a("s_barrier")
    if PF: prefetch(a, role)
    for _ in range(NSB - 1): a("s_barrier")
    a(f"v_and_b32 v1, 31, v0")
    a(f"v_lshrrev_b32 v2, 5, v0")
    a(f"v_bfe_u32 v3, v0, 1, 3")
    a(f"v_xor_b32 v3, v3, v2")
    a(f"v_lshlrev_b32 v3, 4, v3")
    a(f"v_lshlrev_b32 v1, 7, v1")
    a(f"s_lshl_b32 s{s_t0}, s{s_rp}, 13")
    a(f"s_add_u32 s{s_t0}, s{s_t0}, {LA*SLOT}")
    a(f"v_add_u32 v1, s{s_t0}, v1")
    for j in range(4):
        a(f"v_xor_b32 v4, {j<<5}, v3")
        a(f"v_add_u32 v{v_xa+j}, v1, v4")
    w_read_addr(a, role, v_wa, s_half)
    a(f"v_lshrrev_b32 v1, 2, v0")
    a(f"v_lshrrev_b32 v2, 4, v0")
    a(f"v_xor_b32 v1, v1, v2")
    a(f"v_and_b32 v1, 1, v1")
    a(f"v_subrev_u32 v1, 1, v1")
    for i in range(4): a(f"v_and_b32 v{SEL+i}, 0x3f803f80, v1")
    for r in range(XF[1], WF[1] + 4 * NTW): a(f"v_mov_b32 v{r}, 0")
    z = vr(XF[1], 4)
    for t in range(2 * NTW): a(f"v_mfma_f32_32x32x16_bf16 {vr(ACC+16*t,16)}, {z}, {z}, 0")
    for T in range(NTW): a(f"v_mfma_f32_16x16x32_bf16 {vr(CSA+4*T,4)}, {z}, {z}, 0")
    a(f"s_mov_b32 s{s_it}, 0")
    a(f"s_mov_b32 s{s_slot}, {LA*SLOT}")
    def mfma(R, T, u):
        acc = vr(ACC + 16 * (R * NTW + T), 16); x = vr(XF[u] + 4 * R, 4); w = vr(WF[u] + 4 * T, 4)
        if vmode: a(f"v_mfma_f32_32x32x16_bf16 {acc}, {x}, {w}, {acc}")
        else: a(f"v_mfma_f32_32x32x16_bf16 {acc}, {w}, {x}, {acc}")
    def step(jn, u, cs, post=None, lo=0, hi=99):
        n = u ^ 1
        reads = []
        if jn is not None and "nord" not in AX:
            def rw(T):
                for p in range(2):
                    reads.append((f"ds_read_b64_tr_b16 {vr(WF[n]+4*T+2*p,2)}, v{v_wa+T} offset:{jn*16*RB+p*4*RB}", ("W", n, T)))
            reads.append((f"ds_read_b128 {vr(XF[n],4)}, v{v_xa+jn}", ("X", n, 0)))
            rw(0)
            reads.append((f"ds_read_b128 {vr(XF[n]+4,4)}, v{v_xa+jn} offset:4096", ("X", n, 1)))
            for T in range(1, NTW): rw(T)
        post = list(post or [])
        order = [(R, T) for T in range(NTW) for R in range(2)][lo:hi]
        per = 3 if post else 2
        for k, (R, T) in enumerate(order):
            last = k == len(order) - 1
            lg.wait(("X", u, R), ("W", u, T))
            mfma(R, T, u)
            room = 5
            for _ in range(99 if last else per):
                if reads:
                    t, g = reads.pop(0); a(t); lg.issue(g); room -= 1
            if not reads:
                while post and (room > 0 or last):
                    a(post.pop(0)); room -= 1
            if cs and R == 1 and 'nocs' not in AX:
                a(f"v_mfma_f32_16x16x32_bf16 {vr(CSA+4*T,4)}, {vr(SEL,4)}, {vr(WF[u]+4*T,4)}, {vr(CSA+4*T,4)}")
    stamp(a, 2)
    if STAMP: a("s_waitcnt lgkmcnt(0)")
    NM = 2 * NTW
    adv = slot_advance([v_xa, v_wa] + [v_wa + T for T in range(1, NTW)] + [v_xa + j for j in range(1, 4)])
    for t in adv: a(t)
    a(f"s_cmp_eq_u32 s{s_rp}, 1")
    a(f"s_cbranch_scc1 AC_ent_{tag}1")
    for rp in range(2):
        if rp == 0: a(f"s_branch AC_ent_{tag}0")
        a.raw(".p2align 6")
        a.label(f"AC_loop_{tag}{rp}")
        st = a.mark()
        a("s_waitcnt lgkmcnt(0)")
        if rp == 0 and 'nocs' not in AX:
            a(f"v_mfma_f32_16x16x32_bf16 {vr(CSA+4*(NTW-1),4)}, {vr(SEL,4)}, {vr(WF[0]+4*(NTW-1),4)}, {vr(CSA+4*(NTW-1),4)}")
        step(None, 0, False, None, NM - 1, NM)
        a.label(f"AC_ent_{tag}{rp}")
        a("s_barrier")
        step(0, 1, rp == 1)
        step(1, 0, rp == 0); step(2, 1, rp == 1)
        tail = adv + [f"s_add_u32 s{s_it}, s{s_it}, 1", f"s_cmp_lt_u32 s{s_it}, 10"]
        step(3, 0, rp == 0, tail, 0, NM - 1)
        lg.q = []
        a(f"s_cbranch_scc1 AC_loop_{tag}{rp}")
        a.check_backedge(st)
        a("s_waitcnt lgkmcnt(0)")
        if rp == 0 and 'nocs' not in AX:
            a(f"v_mfma_f32_16x16x32_bf16 {vr(CSA+4*(NTW-1),4)}, {vr(SEL,4)}, {vr(WF[0]+4*(NTW-1),4)}, {vr(CSA+4*(NTW-1),4)}")
        step(None, 0, False, None, NM - 1, NM)
        if rp == 1:
            for T in range(NTW):
                a(f"v_mfma_f32_16x16x32_bf16 {vr(CSA+4*T,4)}, {vr(SEL,4)}, {vr(WF[1]+4*T,4)}, {vr(CSA+4*T,4)}")
        if rp == 0: a(f"s_branch AC_fin_{tag}")
    a.label(f"AC_fin_{tag}")
    step(None, 1, False)
    stamp(a, 5)
    a(f"v_and_b32 v1, 31, v0")
    a(f"s_lshl_b32 s{s_t0}, s{s_rp}, 8")
    a(f"s_add_u32 s{s_t0}, s{s_t0}, {SC_NM}")
    a(f"v_lshl_add_u32 v2, v1, 2, s{s_t0}")
    a(f"s_mul_i32 s{s_t1}, s{s_half}, {NTW*256}")
    a(f"s_add_u32 s{s_t1}, s{s_t1}, {SC_CS}")
    a(f"v_lshl_add_u32 v3, v1, 3, s{s_t1}")
    a(f"s_lshl_b32 s{s_t1}, s{s_rp}, 2")
    a(f"v_add_u32 v6, s{s_t1}, v3")
    for r in range(XF[0], WF[0] + 4 * NTW): a(f"v_mov_b32 v{r}, 0")
    for T in range(NTW): a(f"ds_write_b32 v6, v{CSA+4*T} offset:{T*256}")
    a("s_waitcnt lgkmcnt(0)")
    a("s_barrier")
    CS = CSA
    for T in range(NTW): a(f"ds_read_b64 {vr(CS+4*T,2)}, v3 offset:{T*256}")
    a("s_mov_b32 exec_hi, 0")
    a(f"ds_read_b32 v{XF[0]}, v2")
    a(f"ds_read_b32 v{XF[0]+4}, v2 offset:128")
    a("s_mov_b32 exec_hi, -1")
    a(f"ds_read_b32 v4, v2 offset:512")
    a(f"ds_read_b32 v6, v2 offset:640")
    a(f"s_waitcnt lgkmcnt(4)")
    for T in range(NTW): a(f"v_add_f32 v{CS+4*T}, v{CS+4*T}, v{CS+4*T+1}")
    for T in range(NTW): a(f"v_cvt_pk_bf16_f32 v{CS+4*T+1}, v{CS+4*T}, v{CS+4*T}")
    for T in range(NTW): a(f"v_lshlrev_b32 v{CS+4*T+1}, 16, v{CS+4*T+1}")
    for T in range(NTW): a(f"v_sub_f32 v{CS+4*T+1}, v{CS+4*T}, v{CS+4*T+1}")
    for T in range(NTW): a(f"v_cvt_pk_bf16_f32 v{WF[0]+4*T}, v{CS+4*T}, v{CS+4*T+1}")
    a("s_waitcnt lgkmcnt(0)")
    for R in range(2):
        for T in range(NTW): mfma(R, T, 0)
    stamp(a, 6)
    O = f"s[{SO}:{SO+3}]"
    a(f"v_lshlrev_b32 v1, 4, v0")
    if role != "kv":
        for R in range(2):
            for T in range(NTW):
                b = ACC + 16 * (R * NTW + T)
                if R == 0 and T < 2:
                    for i in range(16): a(f"v_mul_f32 v{b+i}, v{4+2*R}, v{b+i}")
                else:
                    for i in range(8): a(f"v_pk_mul_f32 {vr(b+2*i,2)}, {vr(b+2*i,2)}, {vr(4+2*R,2)} op_sel_hi:[1,0]")
                for i in range(8): a(f"v_cvt_pk_bf16_f32 v{b+i}, v{b+2*i}, v{b+2*i+1}")
                if role == "h":
                    for i in range(8): a(f"v_pk_max_i16 v{b+i}, v{b+i}, 0")
                if T == 2: a(f"s_add_u32 s{s_out}, s{s_out}, 4096")
                o = (2 * T % 4) * 1024
                a(f"buffer_store_dwordx4 {vr(b,4)}, v1, {O}, s{s_out} offen offset:{o}{ST}")
                a(f"buffer_store_dwordx4 {vr(b+4,4)}, v1, {O}, s{s_out} offen offset:{o+1024}{ST}")
            if R == 0: a(f"s_add_u32 s{s_out}, s{s_out}, {QH_TT - (4096 if NTW == 3 else 0)}")
    elif not vmode:
        for R in range(2):
            b = ACC + 16 * R
            for i in range(12): a(f"v_mul_f32 v{b+i}, v{4+2*R}, v{b+i}")
            for i in range(4): a(f"v_cvt_pk_bf16_f32 v{b+i}, v{b+2*i}, v{b+2*i+1}")
            for i in range(2): a(f"v_cvt_pk_bf16_f32 v{16+2*R+i}, v{b+8+2*i}, v{b+9+2*i}")
            a(f"buffer_store_dwordx4 {vr(b,4)}, v1, {O}, s{s_out} offen offset:{1024*R}{ST}")
        a("s_mov_b32 exec_lo, 0")
        for i in range(4): a(f"v_mov_b32 v{16+i}, {'0x3f80' if i % 2 == 0 else 0}")
        a("s_mov_b32 exec_lo, -1")
        a(f"buffer_store_dwordx4 v[16:19], v1, {O}, s{s_out} offen offset:2048{ST}")
    else:
        a(f"v_lshrrev_b32 v6, 5, v0")
        a(f"v_lshl_add_u32 v3, v6, 4, s{s_t0}")
        for R in range(2):
            for q in range(4): a(f"ds_read_b128 {vr(16+16*R+4*q,4)}, v3 offset:{512+128*R+32*q}")
        a(f"v_and_b32 v2, 31, v0")
        a(f"v_mul_u32_u24 v6, 384, v6")
        a(f"v_lshl_add_u32 v6, v2, 4, v6")
        a(f"s_add_u32 s{s_out}, s{s_out}, 3072")
        a("s_waitcnt lgkmcnt(0)")
        for R in range(2):
            b = ACC + 16 * R
            for i in range(16): a(f"v_mul_f32 v{b+i}, v{16+16*R+i}, v{b+i}")
            for i in range(8): a(f"v_cvt_pk_bf16_f32 v{b+i}, v{b+2*i}, v{b+2*i+1}")
            a("s_mov_b32 exec_lo, 0x00100000")
            a("s_mov_b32 exec_hi, 0x00100000")
            for i in range(8): a(f"v_mov_b32 v{b+i}, 0x3f803f80")
            a("s_mov_b32 exec_lo, 0x00e00000")
            a("s_mov_b32 exec_hi, 0x00e00000")
            for i in range(8): a(f"v_mov_b32 v{b+i}, 0")
            a("s_mov_b32 exec_lo, 0x00ffffff")
            a("s_mov_b32 exec_hi, 0x00ffffff")
            a(f"buffer_store_dwordx4 {vr(b,4)}, v6, {O}, s{s_out} offen offset:{1536*R}{ST}")
            a(f"buffer_store_dwordx4 {vr(b+4,4)}, v6, {O}, s{s_out} offen offset:{1536*R+768}{ST}")
            a("s_mov_b64 exec, -1")
    done(a)

def phase_a(a, done_help, done_comp, spare, start_hook=None, pre_ba=None):
    a("s_load_dwordx8 s[20:27], s[0:1], 0")
    a("s_load_dwordx2 s[28:29], s[0:1], 48")
    a("s_load_dwordx2 s[30:31], s[0:1], 80")
    a("s_load_dwordx2 s[56:57], s[0:1], 56")
    a("s_load_dwordx2 s[58:59], s[0:1], 32")
    a("s_load_dwordx4 s[60:63], s[0:1], 64")
    a("v_lshrrev_b32 v1, 6, v0")
    a("v_and_b32 v0, 63, v0")
    a(f"v_readfirstlane_b32 s{s_w}, v1")
    ORD = os.environ.get("ORD", "0124356789,0215346789,0312645789,0132745689,0123845679,0213945678,0312456789,0123456789").split(",")
    a(f"s_and_b32 s{s_t0}, s2, 1")
    a(f"s_lshl_b32 s{s_t0}, s{s_t0}, 3")
    a(f"s_bfe_u32 s{s_rb}, s2, 0x30003")
    a(f"s_lshr_b32 s{s_g}, s2, 6")
    a(f"s_add_u32 s{s_t1}, s{s_g}, s{s_rb}")
    a(f"s_and_b32 s{s_t1}, s{s_t1}, {len(ORD)-1}")
    a(f"s_add_u32 s{s_rb}, s{s_rb}, s{s_t0}")
    a(f"s_bfe_u32 s{s_t0}, s2, 0x10001")
    a(f"s_lshl_b32 s{s_t0}, s{s_t0}, 2")
    a(f"s_add_u32 s{s_g}, s{s_g}, s{s_t0}")
    a(f"s_add_u32 s{s_t0}, s{s_g}, 9")
    a(f"s_cmp_eq_u32 s{s_g}, 7")
    a(f"s_cselect_b32 s{s_t0}, 8, s{s_t0}")
    a(f"s_bitcmp{LATEBIT}_b32 s2, 2")
    a(f"s_cselect_b32 s{s_g}, s{s_g}, s{s_t0}")
    a(f"s_lshl_b32 s3, s{s_rb}, 4")
    a(f"s_add_u32 s3, s3, s{s_g}")
    for k, o in enumerate(ORD):
        assert sorted(o) == list("0123456789")
        v = sum(int(d) << (4 * i) for i, d in enumerate(o))
        if k == 0:
            a(f"s_mov_b32 s{s_tab}, {hex(v & 0xffffffff)}")
            a(f"s_movk_i32 s{s_tab+1}, {hex(v >> 32)}")
        else:
            a(f"s_cmp_eq_u32 s{s_t1}, {k}")
            a(f"s_cselect_b32 s{s_tab}, {hex(v & 0xffffffff)}, s{s_tab}")
            a(f"s_cselect_b32 s{s_tab+1}, {hex(v >> 32)}, s{s_tab+1}")
    a(f"s_mov_b32 s{s_cslot}, {SLOT}")
    a(f"s_mul_i32 s{s_xbase}, s{s_rb}, {128*1280}")
    a(f"s_and_b32 s{s_m0x}, s{s_w}, 1")
    a(f"s_bfe_u32 s{s_m0w}, s{s_w}, 0x10001")
    a(f"s_lshl_b32 s{s_out}, s{s_rb}, 1")
    a(f"s_add_u32 s{s_out}, s{s_out}, s{s_m0x}")
    a(f"s_lshl_b32 s{s_out}, s{s_out}, 1")
    a("s_waitcnt lgkmcnt(0)")
    srd(a, SX, 20, 2048 * 1280)
    srd(a, SO, 30, WS_SIZE)
    a(f"s_sub_u32 s{s_t0}, s{s_g}, 9")
    a(f"s_cmp_lt_u32 s{s_t0}, 5")
    a(f"s_cselect_b32 s{s_scale}, {hex(f32bits(QSCALE))}, 1.0")
    a(f"s_sub_u32 s{s_t0}, s{s_w}, 4")
    a(f"s_cmp_lt_u32 s{s_t0}, 4")
    a("s_cbranch_scc1 A_stats")
    a(f"s_cmp_eq_u32 s{s_g}, 15")
    a("s_cbranch_scc1 A_spare")
    a(f"s_cmp_eq_u32 s{s_g}, 14")
    a("s_cbranch_scc1 A_kv")
    a(f"s_cmp_ge_u32 s{s_g}, 9")
    a("s_cbranch_scc1 A_q")
    for role in ("h", "q"):
        NTW = ROLES[role][0]
        if role == "q":
            a.label("A_q")
            a(f"s_sub_u32 s{s_g}, s{s_g}, 9")
        stride = 3456 if role == "h" else 1280
        a(f"s_cmp_ge_u32 s{s_w}, 8")
        a(f"s_cbranch_scc1 A_c{role}")
        srd(a, SW, 28 if role == "h" else 22, 640 * stride)
        a(f"s_movk_i32 s{s_stride}, {stride}")
        a(f"s_mov_b32 s{s_wstep}, {64*stride}")
        a(f"s_mul_i32 s{s_col}, s{s_g}, {NTW*128}")
        loader(a, role, done_help, pre_ba)
        a.label(f"A_c{role}")
        a("s_setprio 2")
        a(f"s_mul_i32 s{s_out}, s{s_out}, {QH_TT}")
        a(f"s_lshl_b32 s{s_t0}, s{s_g}, 1")
        a(f"s_add_u32 s{s_t0}, s{s_t0}, s{s_m0w}")
        a(f"s_mul_i32 s{s_t0}, s{s_t0}, {NTW*2048}")
        a(f"s_add_u32 s{s_out}, s{s_out}, s{s_t0}")
        if role == "h": a(f"s_add_u32 s{s_out}, s{s_out}, {40*1024}")
        compute(a, role, done_comp)
    a.label("A_kv")
    a(f"s_cmp_ge_u32 s{s_w}, 8")
    a(f"s_cbranch_scc1 A_ckv")
    srd(a, SW, 24, 640 * 40)
    srd(a, SW2, 26, 640 * 40)
    a(f"s_movk_i32 s{s_wstep}, 2560")
    loader(a, "kv", done_help, pre_ba)
    a.label("A_ckv")
    a("s_setprio 2")
    a(f"s_mul_i32 s{s_out}, s{s_out}, {KV_TILE}")
    a(f"s_add_u32 s{s_out}, s{s_out}, {WS_KV}")
    a(f"s_cmp_eq_u32 s{s_m0w}, 1")
    a(f"s_cbranch_scc1 A_cv")
    compute(a, "kv", done_comp, False)
    a.label("A_cv")
    compute(a, "kv", done_comp, True)
    a.label("A_stats")
    if start_hook: start_hook(a)
    a(f"s_cmp_eq_u32 s{s_g}, 15")
    a("s_cbranch_scc1 A_spare")
    stats(a, done_help)
    a.label("A_spare")
    spare(a)
```

```python
from common import *
from gw import *
import ka2
from ka2 import phase_a, SC_CNT, LDS_A

GPRIO = int(os.environ.get("GPRIO", "0"))
HOLD = 1
GROT = int(os.environ.get("GROT", "4"))
GX = os.environ.get("GX", "")
UBAR = int(os.environ.get("UBAR", "4"))
PAIR = 2 * KV_TILE
CH = 8 * KV_TILE
STG = 3 * CH
assert STG + 4 * PART <= ka2.SCR
SPIN = 20000
RESET_WG = (3 << 6) | (3 << 1)

SX, SW2, SWS, SWO, SOUT, SDBG = 4, 8, 12, 16, 20, 16
s_w, s_tt, s_hg, s_t0, s_t1, s_c, s_slot, s_delta, s_cch, s_base, s_spin, s_kvl, s_kvg, s_woff2 = range(32, 46)
s_gw = 46
WS = f"s[{SWS}:{SWS+3}]"
Q1, Q2, P0, P1, O, S0, S1 = 4, 8, 12, 16, 20, 36, 52
KS = [68, 96]
v_ka, v_va, v_g0, VT = 124, 125, 126, 130

def mf(a, d, x, y, c): a(f"v_mfma_f32_32x32x16_bf16 {vr(d,16)}, {vr(x,4)}, {vr(y,4)}, {c if isinstance(c,str) else vr(c,16)}")
def mf8(a, d, x, y): a(f"v_mfma_f32_32x32x8_bf16 {vr(d,16)}, {vr(x,2)}, {vr(y,2)}, {vr(d,16)}")

def poll(a, name, load, cmp, sleep=2):
    a(f"s_mov_b32 s{s_spin}, {SPIN}")
    a.label(name)
    a(load)
    a("s_waitcnt vmcnt(0)" if load.startswith("buffer") else "s_waitcnt lgkmcnt(0)")
    a(cmp)
    a("s_cmp_eq_u64 vcc, 0")
    a(f"s_cbranch_scc1 {name}_ok")
    a(f"s_sleep {sleep}")
    a(f"s_sub_u32 s{s_spin}, s{s_spin}, 1")
    a(f"s_cmp_lg_u32 s{s_spin}, 0")
    a(f"s_cbranch_scc1 {name}")
    a.label(name + "_ok")

def lds_wait(a, name, vaddr, target):
    a(f"s_mov_b32 s{s_spin}, {SPIN * 40}")
    a.label(name)
    a(f"ds_read_b32 v2, v{vaddr}")
    a("s_waitcnt lgkmcnt(0)")
    a(f"v_readfirstlane_b32 s{s_t0}, v2")
    a(f"s_cmp_ge_u32 s{s_t0}, {target}")
    a(f"s_cbranch_scc1 {name}_ok")
    a("s_sleep 1")
    a(f"s_sub_u32 s{s_spin}, s{s_spin}, 1")
    a(f"s_cmp_lg_u32 s{s_spin}, 0")
    a(f"s_cbranch_scc1 {name}")
    a.label(name + "_ok")

def flag_off(a, vd, vrb, vg, t):
    a(f"v_lshl_add_u32 v{vd}, v{vrb}, 4, v{vg}")
    a(f"v_lshlrev_b32 v{vd}, 7, v{vd}")
    a(f"v_add_u32 v{vd}, {WS_FL}, v{vd}")

def publish(a, name, cnt_off, nwaves, sid, base, t, value=1):
    a("s_waitcnt vmcnt(0)")
    a("s_mov_b64 exec, 1")
    a(f"v_mov_b32 v{t}, {SC_CNT + cnt_off}")
    a(f"v_mov_b32 v{t+1}, 1")
    a(f"ds_add_rtn_u32 v{t+1}, v{t}, v{t+1}")
    a(f"s_lshl_b32 s{s_t0}, s{sid}, 7")
    a(f"s_add_u32 s{s_t0}, s{s_t0}, {base}")
    a(f"v_mov_b32 v{t}, 0")
    a(f"v_mov_b32 v{t+2}, {value}")
    a("s_waitcnt lgkmcnt(0)")
    a(f"v_readfirstlane_b32 s{s_t1}, v{t+1}")
    a(f"s_cmp_lg_u32 s{s_t1}, {nwaves-1}")
    a(f"s_cbranch_scc1 {name}")
    a(f"buffer_store_dword v{t+2}, v{t}, {WS}, s{s_t0} offen sc1")
    a.label(name)
    a("s_mov_b64 exec, -1")

def decode_b(a):
    a(f"s_lshr_b32 s{s_tt}, s2, 2")
    a(f"s_and_b32 s{s_hg}, s2, 3")

def attention(a):
    decode_b(a)
    stamp(a, 8)
    a(f"v_mov_b32 v2, 14")
    a(f"v_mov_b32 v1, v0")
    a(f"s_lshr_b32 s{s_t0}, s{s_tt}, 2")
    a(f"s_sub_u32 s{s_t1}, s{s_hg}, 7")
    a("s_mov_b32 exec_lo, 0xffff0000")
    a(f"v_mov_b32 v1, s{s_t0}")
    a(f"v_add_u32 v2, s{s_t1}, v0")
    a("s_mov_b32 exec_lo, -1")
    flag_off(a, VT + 4, 1, 2, 3)
    a(f"s_lshl_b32 s{s_t0}, s{s_hg}, 3")
    a(f"s_add_u32 s{s_t0}, s{s_t0}, s{s_w}")
    a(f"s_mul_i32 s{s_t0}, s{s_t0}, 5")
    a(f"v_lshrrev_b32 v2, 5, v0")
    a(f"v_and_b32 v3, 31, v0")
    a(f"v_lshlrev_b32 v3, 4, v3")
    for i in range(3):
        if i < 2: a(f"v_add_u32 v1, s{s_t0}, v2")
        else: a(f"v_mov_b32 v1, s{s_t0}")
        if i: a(f"v_add_u32 v1, {2*i}, v1")
        a(f"v_lshrrev_b32 v{VT}, 2, v1")
        a(f"v_lshl_add_u32 v{v_g0+i}, v{VT}, 10, v3")
        a(f"v_and_b32 v{VT}, 1, v1")
        a(f"v_lshl_add_u32 v{v_g0+i}, v{VT}, 9, v{v_g0+i}")
        a(f"v_bfe_u32 v{VT}, v1, 1, 1")
        a(f"v_lshl_add_u32 v{v_g0+i}, v{VT}, 3, v{v_g0+i}")
    a(f"s_mul_i32 s{s_base}, s{s_tt}, {QH_TT}")
    a(f"v_lshlrev_b32 v{v_ka}, 4, v0")
    a(f"v_and_b32 v1, 31, v0")
    a(f"v_min_u32 v1, 23, v1")
    a(f"v_mul_u32_u24 v{v_va}, 384, v2")
    a(f"v_lshl_add_u32 v{v_va}, v1, 4, v{v_va}")
    a(f"v_add_u32 v{v_va}, 3072, v{v_va}")
    for r in list(range(KS[0] + 20, KS[0] + 24)) + list(range(P1, P1 + 4)) + list(range(O, O + 16)):
        a(f"v_mov_b32 v{r}, 0")
    a(f"s_mov_b32 s{s_c}, 0")
    a(f"s_mov_b32 s{s_slot}, 0")
    a(f"s_mov_b32 s{s_cch}, {CH}")
    a(f"s_mul_i32 s{s_kvl}, s{s_w}, 3072")
    a(f"s_add_u32 s{s_kvg}, s{s_kvl}, {WS_KV}")
    a(f"v_mov_b32 v1, {SC_CNT + 8}")
    a(f"v_mov_b32 v3, 1")
    a("s_mov_b32 exec_lo, 0xffff")
    a("s_mov_b32 exec_hi, 0")
    poll(a, "B_pollkv", f"buffer_load_dword v2, v{VT+4}, {WS}, 0 offen sc1", "v_cmp_gt_u32 vcc, 1, v2", 8)
    a("s_mov_b64 exec, -1")
    stamp(a, 5)
    for c in range(3):
        a(f"s_add_u32 m0, s{s_kvl}, {c*CH}")
        if c: a(f"s_add_u32 s{s_kvg}, s{s_kvg}, {CH}")
        for m in range(3): a(f"buffer_load_dwordx4 v{v_ka}, {WS}, s{s_kvg} offen offset:{m*1024} sc1 lds")
    a("s_waitcnt vmcnt(3)")
    stamp(a, 2)
    a(f"s_cmp_lg_u32 s{s_w}, 0")
    a("s_cbranch_scc1 B_arrive")
    a("s_mov_b32 exec_lo, 0x30000")
    a("s_mov_b32 exec_hi, 0")
    poll(a, "B_pollq", f"buffer_load_dword v2, v{VT+4}, {WS}, 0 offen sc1", "v_cmp_gt_u32 vcc, 1, v2")
    a.label("B_arrive")
    a("s_mov_b64 exec, 1")
    a("ds_add_u32 v1, v3")
    a("s_mov_b64 exec, -1")
    lds_wait(a, "B_wait", 1, 8)
    stamp(a, 9)
    a(f"buffer_load_dwordx2 {vr(Q1,2)}, v{v_g0}, {WS}, s{s_base} offen sc1")
    a(f"buffer_load_dwordx2 {vr(Q1+2,2)}, v{v_g0+1}, {WS}, s{s_base} offen sc1")
    a(f"buffer_load_dwordx2 {vr(Q2,2)}, v{v_g0+2}, {WS}, s{s_base} offen sc1")
    def kv_off(kind, t):
        p = (t % 8) // 2 * PAIR; b = t % 2
        return {"K1": p + 1024 * b, "K2": p + 2048, "V0": p + 1536 * b, "V1": p + 1536 * b + 768}[kind]
    def rd(dst, kind, t):
        a(f"ds_read_b128 {vr(dst,4)}, v{v_ka if kind[0] == 'K' else v_va} offset:{kv_off(kind, t)}")
    def group_reads(o):
        n = KS[((o + 1) // 2 + 1) % 2]
        return [(n + 12, "V1", o + 1), (n, "K1", o + 3), (n + 8, "K2", o + 3), (n + 16, "V0", o + 2),
                (n + 20, "V1", o + 2), (n + 4, "K1", o + 4), (n + 24, "V0", o + 3)]
    k0 = KS[0]
    rd(k0, "K1", 0); rd(k0 + 8, "K2", 0); rd(k0 + 4, "K1", 1); rd(k0 + 24, "V0", 0)
    for r in group_reads(-1)[:4]: rd(*r)
    a("s_waitcnt vmcnt(0)")
    if HOLD:
        a("s_mov_b64 exec, 1")
        a("ds_add_u32 v1, v3")
        a("s_mov_b32 exec_hi, -1")
    a("s_mov_b32 exec_lo, 0")
    a(f"v_mov_b32 v{Q2}, 0")
    a(f"v_mov_b32 v{Q2+1}, 0")
    a("s_mov_b32 exec_lo, -1")
    stamp(a, 10)
    a("s_waitcnt lgkmcnt(0)")
    mf(a, S1, k0, Q1, "0"); mf8(a, S1, k0 + 8, Q2)
    mf(a, S0, k0, Q1, "0")
    a(f"v_max3_f32 v{VT}, v{S1}, v{S1+1}, v{S1+2}")
    a(f"v_max3_f32 v{VT+1}, v{S1+3}, v{S1+4}, v{S1+5}")
    a(f"v_max3_f32 v{VT+2}, v{S1+6}, v{S1+7}, v{S1+8}")
    a(f"v_max3_f32 v{VT+3}, v{S1+9}, v{S1+10}, v{S1+11}")
    a(f"v_max3_f32 v{VT}, v{VT}, v{S1+12}, v{S1+13}")
    a(f"v_max3_f32 v{VT+1}, v{VT+1}, v{S1+14}, v{S1+15}")
    a(f"v_max3_f32 v{VT}, v{VT}, v{VT+2}, v{VT+3}")
    a(f"v_max_f32 v{VT}, v{VT}, v{VT+1}")
    a(f"v_mov_b32 v{VT+1}, v{VT}")
    a(f"v_permlane32_swap_b32 v{VT}, v{VT+1}")
    a(f"v_max_f32 v{VT}, v{VT}, v{VT+1}")
    a("s_mov_b32 exec_lo, 0")
    a(f"v_cvt_pk_bf16_f32 v{Q2}, -v{VT}, 0")
    a("s_mov_b32 exec_lo, -1")
    mf8(a, S0, k0 + 8, Q2)
    stamp(a, 11); stamp(a, 12, True)
    a("s_waitcnt lgkmcnt(0)")
    a("s_nop 10")
    a.raw(".p2align 6")
    a.label("B_loop")
    start = a.mark()
    for u in range(8):
        Sc, Sn = (S0, S1) if u % 2 == 0 else (S1, S0)
        odd = u % 2
        o = u if odd else u - 1
        ks = KS[((o + 1) // 2) % 2]
        reads = group_reads(o)
        slots = [[reads[0]], [reads[1]], [reads[2]], [reads[3]]] if odd else [[reads[4], reads[5]], [reads[6]], [], []]
        e = lambda i: a(f"v_exp_f32 v{Sc+i}, v{Sc+i}")
        c = lambda i: a(f"v_cvt_pk_bf16_f32 v{P0+i}, v{Sc+2*i}, v{Sc+2*i+1}")
        e(0); e(1)
        if odd: a("s_waitcnt lgkmcnt(0)")
        mf(a, O, ks + (12 if odd else 20), P1, O)
        for r in slots[0]: rd(*r)
        if u == 5:
            a(f"s_cmp_eq_u32 s{s_slot}, {2*CH}")
            a(f"s_cselect_b32 s{s_delta}, {(-2*CH) & 0xffffffff}, s{s_cch}")
            a(f"s_add_u32 s{s_slot}, s{s_slot}, s{s_delta}")
        e(2); e(3); c(0)
        if u == 5: a(f"v_add_u32 v{v_ka}, s{s_delta}, v{v_ka}")
        if u == 6: a(f"v_add_u32 v{v_va}, s{s_delta}, v{v_va}")
        e(4); c(1)
        mf(a, Sn, ks + (0 if odd else 4), Q1, "0")
        for r in slots[1]: rd(*r)
        e(5); e(6); e(7); c(2); e(8); c(3)
        mf8(a, Sn, ks + 8 + (0 if odd else 2), Q2)
        for r in slots[2]: rd(*r)
        if u == UBAR:
            a(f"s_cmp_eq_u32 s{s_c}, 0")
            a("s_cbranch_scc1 B_nobar")
            a("s_barrier")
            a.label("B_nobar")
        e(9); e(10); e(11); c(4); e(12); c(5)
        mf(a, O, ks + (16 if odd else 24), P0, O)
        for r in slots[3]: rd(*r)
        if u == 6:
            a(f"s_add_u32 s{s_c}, s{s_c}, 1")
            a(f"s_cmp_lt_u32 s{s_c}, 8")
        e(13); e(14); e(15); c(6); c(7)
        for _ in range(int(os.environ.get("XMOV", "0"))): a(f"v_max_f32 v{VT}, v{VT}, v{VT}")
    a("s_cbranch_scc1 B_loop")
    a.check_backedge(start)
    stamp(a, 13); stamp(a, 14, True)
    mf(a, O, KS[0] + 20, P1, O)
    a("s_waitcnt lgkmcnt(0)")
    a(f"v_mov_b32 v{VT+2}, {hex(f32bits(2.0**60))}")
    a(f"s_lshl_b32 s{s_base}, s2, 3")
    a(f"s_add_u32 s{s_base}, s{s_base}, s{s_w}")
    a(f"s_mul_i32 s{s_base}, s{s_base}, 1280")
    a(f"s_add_u32 s{s_base}, s{s_base}, {WS_O}")
    a(f"v_lshlrev_b32 v{v_g0}, 4, v0")
    a(f"v_lshlrev_b32 v{v_g0+1}, 3, v0")
    a(f"v_mov_b32 v{VT}, v{O+8}")
    a(f"v_mov_b32 v{VT+1}, v{O+8}")
    a(f"v_permlane32_swap_b32 v{VT}, v{VT+1}")
    a(f"v_cmp_nle_f32 vcc, {hex(f32bits(2.0**-60))}, v{VT+1}")
    a(f"v_cmp_nle_f32 s[52:53], v{VT+1}, v{VT+2}")
    a(f"s_or_b64 s[52:53], s[52:53], vcc")
    a("s_cbranch_scc1 B_fallback")
    a.label("B_norm")
    a(f"v_rcp_f32 v{VT}, v{VT+1}")
    for i in range(12): a(f"v_mul_f32 v{O+i}, v{VT}, v{O+i}")
    for i in range(6): a(f"v_cvt_pk_bf16_f32 v{O+i}, v{O+2*i}, v{O+2*i+1}")
    a(f"buffer_store_dwordx4 {vr(O,4)}, v{v_g0}, {WS}, s{s_base} offen sc1")
    a("s_mov_b32 exec_hi, 0")
    a(f"buffer_store_dwordx2 {vr(O+4,2)}, v{v_g0+1}, {WS}, s{s_base} offen offset:1024 sc1")
    publish(a, "B_pub", 4, 8, 2, WS_FL + 32768, VT)
    if STAMP:
        stamp(a, 7); stamp(a, 15, True)
        stamp_flush(a, 1, SWS, s_w, 12, 16)
    a("s_endpgm")
    a.label("B_fallback")
    a("s_mov_b32 exec_lo, 0")
    a(f"v_mov_b32 v{Q2}, 0")
    a("s_mov_b32 exec_lo, -1")
    a(f"v_subrev_u32 v{v_ka}, s{s_slot}, v{v_ka}")
    a(f"v_subrev_u32 v{v_va}, s{s_slot}, v{v_va}")
    a(f"v_mov_b32 v{VT}, 0xff800000")
    for r in range(O, O + 16): a(f"v_mov_b32 v{r}, 0")
    a(f"s_mov_b32 s{s_kvg}, {WS_KV}")
    def ldk():
        for i in range(3): a(f"buffer_load_dwordx4 {vr(k0+4*i,4)}, v{v_ka}, {WS}, s{s_kvg} offen offset:{1024*i} sc1")
    def qk(b):
        S = (S0, S1)[b]
        mf(a, S, k0 + 4 * b, Q1, "0"); mf8(a, S, k0 + 8 + 2 * b, Q2)
    def nxt(lbl):
        a(f"s_add_u32 s{s_kvg}, s{s_kvg}, {PAIR}")
        a(f"s_cmp_lt_u32 s{s_kvg}, {WS_KV + 32*PAIR}")
        a(f"s_cbranch_scc1 {lbl}")
    a.label("B_fb1")
    st = a.mark()
    ldk()
    a("s_waitcnt vmcnt(0)")
    qk(0); qk(1)
    for i in range(0, 32, 2): a(f"v_max3_f32 v{VT}, v{VT}, v{S0+i}, v{S0+i+1}")
    nxt("B_fb1")
    a.check_backedge(st)
    a(f"v_mov_b32 v{VT+1}, v{VT}")
    a(f"v_permlane32_swap_b32 v{VT}, v{VT+1}")
    a(f"v_max_f32 v{VT}, v{VT}, v{VT+1}")
    a(f"s_mov_b32 s{s_kvg}, {WS_KV}")
    a.label("B_fb2")
    st = a.mark()
    ldk()
    for i in range(4): a(f"buffer_load_dwordx4 {vr(k0+12+4*i,4)}, v{v_va}, {WS}, s{s_kvg} offen offset:{768*i} sc1")
    a("s_waitcnt vmcnt(0)")
    qk(0); qk(1)
    for b in range(2):
        S = (S0, S1)[b]
        for i in range(16): a(f"v_sub_f32 v{S+i}, v{S+i}, v{VT}")
        for i in range(16): a(f"v_exp_f32 v{S+i}, v{S+i}")
        for i in range(8): a(f"v_cvt_pk_bf16_f32 v{P0+i}, v{S+2*i}, v{S+2*i+1}")
        mf(a, O, k0 + 12 + 8 * b, P0, O); mf(a, O, k0 + 16 + 8 * b, P1, O)
    nxt("B_fb2")
    a.check_backedge(st)
    a(f"v_mov_b32 v{VT}, v{O+8}")
    a(f"v_mov_b32 v{VT+1}, v{O+8}")
    a(f"v_permlane32_swap_b32 v{VT}, v{VT+1}")
    a("s_nop 1")
    a("s_branch B_norm")

def gemm(a):
    decode_b(a)
    a(f"s_sub_u32 s{s_w}, s{s_w}, 8")
    srd(a, SW2, 56, 1728 * 1280)
    srd(a, SWO, 58, 640 * 1280)
    srd(a, SOUT, 60, 2048 * 1280)
    g = GW(a, 27, 4, 10, STG, PART, SW2, SWS, s_gw)
    v_wd2 = g.v_end
    v_wa2, vfl = 11, v_wd2 + 5
    vx = v_wd2 + 6
    s_kw, s_ka, s_w0, s_a0 = 50, 51, 54, 55
    a(f"s_mul_i32 s{s_kvl}, s{s_w}, 6144")
    a(f"s_add_u32 s{s_kvg}, s{s_kvl}, {WS_KV + 3*CH}")
    def kv(c):
        a(f"s_add_u32 m0, s{s_kvl}, {(c % 3)*CH}")
        for m in range(4):
            a(f"buffer_load_dwordx4 v{g.v_l16}, {WS}, s{s_kvg} offen offset:{m*1024} sc1 lds"); g.vm.issue(("KV", c))
        a(f"s_add_u32 m0, m0, 4096")
        a(f"s_add_u32 s{s_kvg}, s{s_kvg}, 4096")
        for m in range(2):
            a(f"buffer_load_dwordx4 v{g.v_l16}, {WS}, s{s_kvg} offen offset:{m*1024} sc1 lds"); g.vm.issue(("KV", c))
        a(f"s_add_u32 s{s_kvg}, s{s_kvg}, {CH-4096}")
    a(f"s_mul_i32 s{s_base}, s{s_tt}, {QH_TT}")
    a(f"s_add_u32 s{s_base}, s{s_base}, {WS_QH + 40*1024}")
    g.setup(s_w, s_hg, s_base)
    a(f"s_mov_b32 s{s_w0}, s{g.s_woff}")
    a(f"s_mov_b32 s{s_a0}, s{g.s_aoff}")
    a(f"s_lshr_b32 s{s_kw}, s2, 3")
    a(f"s_mul_i32 s{s_kw}, s{s_kw}, {GROT}")
    a(f"s_mul_i32 s{s_t0}, s{s_kw}, 2428")
    a(f"s_lshr_b32 s{s_t0}, s{s_t0}, 16")
    a(f"s_mul_i32 s{s_t0}, s{s_t0}, 27")
    a(f"s_sub_u32 s{s_kw}, s{s_kw}, s{s_t0}")
    a(f"s_mov_b32 s{s_ka}, s{s_kw}")
    ALT = {31: 2 * CH, 32: 0}
    def wslot(i): return (i if i < 31 else i - 2) % 4
    def bump(r):
        a(f"s_add_u32 s{r}, s{r}, 1")
        a(f"s_cmp_eq_u32 s{r}, 27")
        a(f"s_cselect_b32 s{r}, 0, s{r}")
    def load_w(i):
        if i > 36: return
        vd = g.v_wd
        if i < 27:
            S = f"s[{SW2}:{SW2+3}]"
            a(f"s_mul_i32 s{g.s_woff}, s{s_kw}, {16*1280}")
            a(f"s_add_u32 s{g.s_woff}, s{g.s_woff}, s{s_w0}")
            bump(s_kw)
        else:
            S = f"s[{SWO}:{SWO+3}]"
            j = i - 27
            row = 20 * j if j < 8 else 80 * (j - 8) + 16
            if j >= 8: vd = v_wd2
            a(f"s_add_u32 s{g.s_woff}, s{s_woff2}, {row*1280}")
        if i in ALT:
            a(f"s_mul_i32 s{s_t0}, s{s_w}, 5120")
            a(f"s_add_u32 m0, s{s_t0}, {ALT[i]}")
        else: a(f"s_add_u32 m0, s{g.s_lds}, {wslot(i)*5120}")
        for m in range(4):
            a(f"buffer_load_dwordx4 v{vd+m}, {S}, s{g.s_woff} offen offset:{m*1024} lds"); g.vm.issue(("W", i))
        a(f"s_add_u32 m0, m0, 4096")
        a(f"buffer_load_dwordx4 v{vd+4}, {S}, s{g.s_woff} offen lds"); g.vm.issue(("W", i))
    def areg(i): return g.v_act + 4 * ((i % 8) if i < 27 else i - 27)
    def load_a(i):
        a(f"s_lshl_b32 s{g.s_aoff}, s{s_ka}, 10")
        a(f"s_add_u32 s{g.s_aoff}, s{g.s_aoff}, s{s_a0}")
        bump(s_ka)
        a(f"buffer_load_dwordx4 {vr(areg(i),4)}, v{g.v_l16}, {WS}, s{g.s_aoff} offen sc1"); g.vm.issue(("A", i))
    def rd_t(i, T):
        base, off = (v_wa2, ALT[i]) if i in ALT else (g.v_wa, wslot(i) * 5120)
        for p in range(2):
            a(f"ds_read_b64_tr_b16 {vr(g.v_wf+4*T+2*p,2)}, v{base} offset:{off + T*64 + p*2560}"); g.lg.issue((i, T))
    def rd_w(i):
        g.vm.wait(("W", i))
        for T in range(5): rd_t(i, T)
    def mm(i, nxt=None):
        g.vm.wait(("A", i), ("W", nxt))
        for T in range(5):
            g.lg.wait((i, T))
            acc = vr(g.v_acc + 16 * T, 16)
            a(f"v_mfma_f32_32x32x16_bf16 {acc}, {vr(g.v_wf+4*T,4)}, {vr(areg(i),4)}, {acc}")
            if nxt is not None: rd_t(nxt, T)
    g.setup2()
    a(f"s_mul_i32 s{s_t0}, s{s_w}, 5120")
    a(f"s_sub_u32 s{s_t0}, s{s_t0}, s{g.s_lds}")
    a(f"v_add_u32 v{v_wa2}, s{s_t0}, v{g.v_wa}")
    for m in range(5):
        a(f"v_add_u32 v1, {64*m}, v0")
        a(f"v_mul_u32_u24 v2, 0xcccd, v1")
        a(f"v_lshrrev_b32 v2, 22, v2")
        a(f"v_mul_u32_u24 v2, {16*1280}, v2")
        a(f"v_add_u32 v{v_wd2+m}, v2, v{g.v_wd+m}")
    a(f"s_lshr_b32 s{s_t0}, s{s_tt}, 2")
    a(f"v_mov_b32 v1, s{s_t0}")
    flag_off(a, vfl, 1, 0, 2)
    a(f"s_mul_i32 s{s_woff2}, s{s_w}, {160*1280}")
    a(f"s_mul_i32 s{s_t0}, s{s_hg}, 320")
    a(f"s_add_u32 s{s_woff2}, s{s_woff2}, s{s_t0}")
    a(f"v_mov_b32 v1, {SC_CNT + 8}")
    lds_wait(a, "G_wait", 1, 16)
    for i in range(4): load_w(i)
    a(f"s_setprio {GPRIO}")
    stamp(a, 8)
    a("s_mov_b32 exec_lo, 0x1ff")
    a("s_mov_b32 exec_hi, 0")
    poll(a, "G_pollh", f"buffer_load_dword v2, v{vfl}, {WS}, 0 offen sc1", "v_cmp_gt_u32 vcc, 1, v2", 4)
    a("s_mov_b64 exec, -1")
    g.vm.q = []
    stamp(a, 9)
    if STAMP: a("s_waitcnt lgkmcnt(0)")
    for i in range(4): load_a(i)
    for c in range(7):
        if 1 <= c <= 5: kv(c + 2)
        for i in range(4 * c + 4, min(4 * c + 8, 27)): load_a(i)
        for i in range(4 * c, min(4 * c + 4, 27)):
            if "nomm" not in GX: rd_w(i); mm(i)
            if "nold" not in GX or i + 4 >= 27: load_w(i + 4)
        if c == 6: load_w(31)
        else: g.vm.wait(("KV", c + 2))
        if c in (0, 3, 6):
            stamp(a, {0: 10, 3: 11, 6: 12}[c])
            if STAMP: a("s_waitcnt lgkmcnt(0)")
        a("s_barrier")
    load_w(32)
    vo = vfl
    a(f"s_mul_i32 s{s_base}, s{s_tt}, {32*1280}")
    a(f"s_mul_i32 s{s_t0}, s{s_hg}, 320")
    a(f"s_add_u32 s{s_base}, s{s_base}, s{s_t0}")
    a(f"s_lshl_b32 s{s_t0}, s{s_w}, 4")
    a(f"s_add_u32 s{s_base}, s{s_base}, s{s_t0}")
    a(f"v_and_b32 v1, 31, v0")
    a(f"v_mul_u32_u24 v{vo}, 1280, v1")
    a(f"v_lshrrev_b32 v2, 5, v0")
    a(f"v_lshl_add_u32 v{vo}, v2, 3, v{vo}")
    for T in range(5):
        a(f"buffer_load_dwordx2 {vr(vx+2*T,2)}, v{vo}, s[{SX}:{SX+3}], s{s_base} offen offset:{64*T}")
    rd_w(27)
    a(f"v_mul_u32_u24 v3, 1280, v2")
    a(f"v_lshl_add_u32 v3, v1, 3, v3")
    a(f"s_lshl_b32 s{s_t0}, s{s_tt}, 2")
    a(f"s_add_u32 s{s_t0}, s{s_t0}, s{s_w}")
    a(f"s_mul_i32 s{g.s_aoff}, s{s_t0}, 10240")
    a(f"s_add_u32 s{g.s_aoff}, s{g.s_aoff}, {WS_O}")
    a(f"s_add_u32 s{s_a0}, s{g.s_aoff}, 5120")
    a(f"s_lshl_b32 s{s_t0}, s{s_t0}, 7")
    a(f"s_add_u32 s{s_t0}, s{s_t0}, {WS_FL + 32768}")
    a(f"v_mov_b32 v1, s{s_t0}")
    g.lg.drain()
    load_w(33)
    a("s_mov_b64 exec, 1")
    poll(a, "G_pollo", f"buffer_load_dword v2, v1, {WS}, 0 offen sc1", "v_cmp_gt_u32 vcc, 1, v2", 2)
    a("s_mov_b64 exec, -1")
    g.vm.q = []
    a("s_setprio 3")
    stamp(a, 13)
    if STAMP: a("s_waitcnt lgkmcnt(0)")
    for j in range(8):
        so = g.s_aoff if j < 4 else s_a0
        a(f"buffer_load_dwordx4 {vr(areg(27+j),4)}, v{g.v_l16}, {WS}, s{so} offen offset:{(j%4)*1280} sc1"); g.vm.issue(("A", 27 + j))
    for m in range(2):
        so = g.s_aoff if m == 0 else s_a0
        for j in range(2):
            a(f"buffer_load_dwordx2 {vr(areg(35+m)+2*j,2)}, v3, {WS}, s{so} offen offset:{1024+2560*j} sc1"); g.vm.issue(("A", 35 + m))
    for i in range(27, 37):
        mm(i, i + 1 if i < 36 else None)
        if 28 <= i <= 30: load_w(i + 6)
    stamp(a, 14)
    a(f"v_add_u32 v1, s{g.s_lds}, v{g.v_l16}")
    a(f"s_mul_i32 s{s_t0}, s{s_w}, 5120")
    a(f"s_add_u32 s{s_t0}, s{s_t0}, {STG}")
    a(f"v_add_u32 v2, s{s_t0}, v{g.v_l16}")
    for T in range(5):
        for q in range(4):
            a(f"ds_write_b128 v1, {vr(g.v_acc+16*T+4*q,4)} offset:{q*5120+T*1024}")
    xf = g.v_act
    for T in range(5):
        a(f"v_lshlrev_b32 v{xf+4*T}, 16, v{vx+2*T}")
        a(f"v_and_b32 v{xf+4*T+1}, 0xffff0000, v{vx+2*T}")
        a(f"v_lshlrev_b32 v{xf+4*T+2}, 16, v{vx+2*T+1}")
        a(f"v_and_b32 v{xf+4*T+3}, 0xffff0000, v{vx+2*T+1}")
    a("s_waitcnt lgkmcnt(0)")
    a("s_barrier")
    a(f"v_add_u32 v1, {2*PART}, v2")
    for T in range(5):
        for sidx in range(4):
            a(f"ds_read_b128 {vr(g.v_acc+16*T+4*sidx,4)}, v{2 if sidx < 2 else 1} offset:{(sidx%2)*PART+T*1024}"); g.lg.issue(T)
        if T >= 2: fin_tile(a, g, T - 2, xf, vo)
    fin_tile(a, g, 3, xf, vo); fin_tile(a, g, 4, xf, vo)
    if STAMP:
        a("s_waitcnt vmcnt(0)"); stamp(a, 7); stamp(a, 15, True)
        a(f"s_add_u32 s{s_w}, s{s_w}, 8")
        stamp_flush(a, 1, SWS, s_w, 12, 16, gsel=[(9, False), (10, False), (12, False), (13, False), (14, False), (15, False)], goff=8)
    a("s_endpgm")
    return vx + 10

def fin_tile(a, g, T, xf, vo):
    b = g.v_acc + 16 * T
    g.lg.wait(T)
    for h in range(2):
        a(f"v_pk_add_f32 {vr(b+2*h,2)}, {vr(b+2*h,2)}, {vr(b+4+2*h,2)}")
        a(f"v_pk_add_f32 {vr(b+8+2*h,2)}, {vr(b+8+2*h,2)}, {vr(b+12+2*h,2)}")
    for h in range(2):
        a(f"v_pk_add_f32 {vr(b+2*h,2)}, {vr(b+2*h,2)}, {vr(xf+4*T+2*h,2)}")
    for h in range(2):
        a(f"v_pk_add_f32 {vr(b+2*h,2)}, {vr(b+2*h,2)}, {vr(b+8+2*h,2)}")
    a(f"v_cvt_pk_bf16_f32 v{b}, v{b}, v{b+1}")
    a(f"v_cvt_pk_bf16_f32 v{b+1}, v{b+2}, v{b+3}")
    a(f"buffer_store_dwordx2 {vr(b,2)}, v{vo}, s[{SOUT}:{SOUT+3}], s{s_base} offen offset:{64*T}")

def gen_f(a, name="parallel_sum__grouped_kv_mqa__dense_activation_relu__prompt_kernel"):
    kernel_header(a, name)
    a("s_cmp_ge_u32 s2, 256")
    a("s_cbranch_scc1 F_end")
    stamp(a, 0, True); stamp(a, 1)
    if STAMP == 3: a("s_mov_b32 s72, 0")
    def start_hook(a):
        a(f"s_cmp_lg_u32 s{s_w}, 4")
        a("s_cbranch_scc1 F_nohook")
        a("v_lshlrev_b32 v1, 2, v0")
        a(f"v_add_u32 v1, {SC_CNT}, v1")
        a("v_mov_b32 v2, 0")
        a("ds_write_b32 v1, v2")
        a("s_waitcnt lgkmcnt(0)")
        a(f"s_cmp_lg_u32 s3, 15")
        a("s_cbranch_scc1 F_nohook")
        srd(a, SDBG, 62, 256)
        a("v_lshlrev_b32 v1, 7, v0")
        a("v_mov_b32 v3, 1")
        for i in range(8):
            a(f"s_mov_b32 s35, {WS_FL + i*8192}")
            a(f"buffer_store_dword v2, v1, {WS}, s35 offen sc1")
        a("s_waitcnt vmcnt(0)")
        a("s_mov_b64 exec, 1")
        a(f"buffer_store_dword v3, v2, s[{SDBG}:{SDBG+3}], 0 offen sc1")
        a("s_mov_b64 exec, -1")
        a.label("F_nohook")
    cnt = [0]
    def pre_ba(a):
        cnt[0] += 1
        n = f"F_dbg{cnt[0]}"
        a(f"s_cmp_lg_u32 s{s_w}, 0")
        a(f"s_cbranch_scc1 {n}_skip")
        srd(a, SDBG, 62, 256)
        a("v_mov_b32 v1, 0")
        a("s_mov_b64 exec, 1")
        poll(a, n, f"buffer_load_dword v2, v1, s[{SDBG}:{SDBG+3}], 0 offen sc1", "v_cmp_ne_u32 vcc, 1, v2", 8)
        a("s_mov_b64 exec, -1")
        a.label(f"{n}_skip")
    def done_help(a): a("s_branch F_attn")
    def done_comp(a): a("s_branch F_pub")
    def spare(a):
        pre_ba(a)
        a("s_barrier")
        a(f"s_cmp_lt_u32 s{s_w}, 8")
        a("s_cbranch_scc1 F_attn")
        a("s_branch F_gemm")
    phase_a(a, done_help, done_comp, spare, start_hook, pre_ba)
    a.label("F_attn")
    attention(a)
    a.label("F_pub")
    stamp(a, 3)
    publish(a, "F_pub2", 0, 4, 3, WS_FL, 1)
    stamp(a, 4)
    a.label("F_gemm")
    nv = gemm(a)
    a.label("F_end")
    a("s_endpgm")
    assert nv <= 168, nv
    return dict(name=name, grid=256, block=768, lds=LDS_A, vgpr=168, sgpr=102 if STAMP else 64, single=True)
```

```python
import sys, importlib
from common import *

HEADER = open("parallel_sum__grouped_kv_mqa__dense_activation_relu__prompt.s.ref").read().split("; Override launch")[0]

def build(parts, path):
    a = Asm()
    infos = [p(a) for p in parts]
    out = HEADER
    for i in infos:
        if i.get("single") and not os.environ.get("LIST"):
            out += f"; @launch grid=({i['grid']},1,1) block=({i['block']},1,1) lds={i['lds']}\n"
            continue
        out += f"; @launch kernel={i['name']} grid=({i['grid']},1,1) block=({i['block']},1,1) lds={i['lds']}\n"
    if STAMP: out += "; GMAP=" + ("team" if int(os.environ.get("TEAM", "0")) else os.environ.get("GMAP", "9aefb012c345d678")) + "\n"
    out += '.amdgcn_target "amdgcn-amd-amdhsa--gfx950"\n.text\n'
    out += a.text() + "\n"
    out += '.section .rodata,"a"\n'
    for i in infos:
        out += kernel_desc(i["name"], i["vgpr"], i["sgpr"]) + "\n"
    open(path, "w").write(out)
    print("wrote", path, "instrs", len(a.ins), "pads", a.pads)

if __name__ == "__main__":
    from kf import gen_f
    build([gen_f], sys.argv[1] if len(sys.argv) > 1 else "out.s")
```

```python
import math, struct
from asmlib import *

WS_QH = 0
QH_TT = 148 * 1024
WS_KV = 0xA00000
KV_TILE = 3072
WS_O = 0xB00000
O_TT = 40 * 1024
WS_F = 0xE00000
WS_END = WS_F + 2048 * 640 * 4
WS_FL = 0x1300000
import os
STAMP = int(os.environ.get("STAMP", "0"))
WS_SIZE = 0x2000000 if STAMP else 0x1400000
WS_ST = 0x1800000


def f32bits(x): return struct.unpack("<I", struct.pack("<f", x))[0]
QSCALE = math.log2(math.e) / math.sqrt(20.0)

class Cnt:
    def __init__(self, a, name, maxv):
        self.a = a; self.name = name; self.q = []; self.maxv = maxv
    def issue(self, tag): self.q.append(tag)
    def wait(self, *tags):
        last = -1
        for i, t in enumerate(self.q):
            if t in tags: last = i
        if last < 0: return
        n = len(self.q) - 1 - last
        n = min(n, self.maxv)
        self.a(f"s_waitcnt {self.name}({n})")
        self.q = self.q[len(self.q) - n:] if n else []
    def drain(self):
        self.a(f"s_waitcnt {self.name}(0)"); self.q = []

def srd(a, d, base, nbytes):
    a(f"s_mov_b32 s{d}, s{base}")
    a(f"s_and_b32 s{d+1}, s{base+1}, 0xffff")
    a(f"s_mov_b32 s{d+2}, {nbytes}")
    a(f"s_mov_b32 s{d+3}, 0x20000")

def stamp(a, k, real=False):
    if not STAMP: return
    if STAMP >= 2: real = True
    a(f"s_mem{'real' if real else ''}time s[{64+2*k}:{65+2*k}]")
def stamp_flush(a, kern, SWS, s_wave, nw, n=16, vt=1, gsel=None, goff=1):
    if not STAMP: return
    if STAMP == 3:
        lbl = f"ST3_{len(a.ins)}"
        a("s_waitcnt lgkmcnt(0)")
        a(f"s_and_b32 s100, s{s_wave}, 3")
        a(f"s_cmp_lg_u32 s100, 0")
        a(f"s_cbranch_scc1 {lbl}")
        a(f"s_cmp_eq_u32 s{s_wave}, 0")
        a(f"s_cbranch_scc1 {lbl}")
        srd(a, 24, 62, 256)
        a("s_mov_b64 exec, 1")
        a(f"v_mov_b32 v{vt}, 0")
        sel = [(0, True), (0, False), (4, False), (8, False), (9, False), (11, False), (13, False)] if gsel is None else gsel
        for j, (k, neg) in enumerate(sel):
            a(f"v_mov_b32 v{vt+1}, s{64+2*k}")
            if neg: a(f"v_not_b32 v{vt+1}, v{vt+1}")
            a(f"buffer_atomic_umax v{vt+1}, v{vt}, s[24:27], 0 offen offset:{4*(goff+j)}")
        a.label(lbl)
        return
    a("s_mov_b64 exec, -1")
    a("s_waitcnt lgkmcnt(0)")
    a(f"s_mul_i32 s100, s2, {nw}")
    a(f"s_add_u32 s100, s100, s{s_wave}")
    a(f"s_lshl_b32 s100, s100, 6")
    a(f"s_add_u32 s100, s100, {WS_ST + kern*0x40000}")
    a(f"v_mov_b32 v{vt}, 0")
    for k in range(n):
        a(f"v_mov_b32 v{vt+1}, s{64+2*k}")
        a(f"buffer_store_dword v{vt+1}, v{vt}, s[{SWS}:{SWS+3}], s100 offen offset:{4*k}")
```

```python
import math, struct
from asmlib import *

WS_QH = 0
QH_TT = 148 * 1024
WS_KV = 0xA00000
KV_TILE = 3072
WS_O = 0xB00000
O_TT = 40 * 1024
WS_P = 0x1400000
WS_F = 0xE00000
WS_END = WS_F + 2048 * 640 * 4
WS_STAT = 0x1320000
WS_TEAM = 0x1330000
WS_FL = 0x1300000
import os
STAMP = int(os.environ.get("STAMP", "0"))
WS_SIZE = 0x3000000 if STAMP else 0x1E00000
WS_ST = 0x2800000


def f32bits(x): return struct.unpack("<I", struct.pack("<f", x))[0]
QSCALE = math.log2(math.e) / math.sqrt(20.0)

class Cnt:
    def __init__(self, a, name, maxv):
        self.a = a; self.name = name; self.q = []; self.maxv = maxv
    def issue(self, tag): self.q.append(tag)
    def wait(self, *tags):
        last = -1
        for i, t in enumerate(self.q):
            if t in tags: last = i
        if last < 0: return
        n = len(self.q) - 1 - last
        n = min(n, self.maxv)
        self.a(f"s_waitcnt {self.name}({n})")
        self.q = self.q[len(self.q) - n:] if n else []
    def drain(self):
        self.a(f"s_waitcnt {self.name}(0)"); self.q = []

def srd(a, d, base, nbytes):
    a(f"s_mov_b32 s{d}, s{base}")
    a(f"s_and_b32 s{d+1}, s{base+1}, 0xffff")
    a(f"s_mov_b32 s{d+2}, {nbytes}")
    a(f"s_mov_b32 s{d+3}, 0x20000")

def stamp(a, k, real=False):
    if not STAMP: return
    if STAMP >= 2: real = real != 'cyc'
    a(f"s_mem{'real' if real else ''}time s[{64+2*k}:{65+2*k}]")
def stamp_flush(a, kern, SWS, s_wave, nw, n=16, vt=1, gsel=None, goff=1):
    if not STAMP: return
    if STAMP == 3:
        lbl = f"ST3_{len(a.ins)}"
        a("s_waitcnt lgkmcnt(0)")
        a(f"s_and_b32 s100, s{s_wave}, 3")
        a(f"s_cmp_lg_u32 s100, 0")
        a(f"s_cbranch_scc1 {lbl}")
        a(f"s_cmp_eq_u32 s{s_wave}, 0")
        a(f"s_cbranch_scc1 {lbl}")
        srd(a, 24, 62, 256)
        a("s_mov_b64 exec, 1")
        a(f"v_mov_b32 v{vt}, 0")
        sel = [(0, True), (0, False), (4, False), (8, False), (9, False), (11, False), (13, False)] if gsel is None else gsel
        for j, (k, neg) in enumerate(sel):
            a(f"v_mov_b32 v{vt+1}, s{64+2*k}")
            if neg: a(f"v_not_b32 v{vt+1}, v{vt+1}")
            a(f"buffer_atomic_umax v{vt+1}, v{vt}, s[24:27], 0 offen offset:{4*(goff+j)}")
        a.label(lbl)
        return
    a("s_mov_b64 exec, -1")
    a("s_waitcnt lgkmcnt(0)")
    a(f"s_mul_i32 s100, s2, {nw}")
    a(f"s_add_u32 s100, s100, s{s_wave}")
    a(f"s_lshl_b32 s100, s100, 6")
    a(f"s_add_u32 s100, s100, {WS_ST + kern*0x40000}")
    a(f"v_mov_b32 v{vt}, 0")
    for k in range(n):
        a(f"v_mov_b32 v{vt+1}, s{64+2*k}")
        a(f"buffer_store_dword v{vt+1}, v{vt}, s[{SWS}:{SWS+3}], s100 offen offset:{4*k}")

SPIN = 20000
def lds_arrive(a, addr, t):
    a("s_mov_b64 exec, 1")
    a(f"v_mov_b32 v{t}, {addr}")
    a(f"v_mov_b32 v{t+1}, 1")
    a(f"ds_add_u32 v{t}, v{t+1}")
    a("s_mov_b64 exec, -1")
def lds_wait(a, name, addr, target, t, s_spin, s_tmp, sleep=1):
    a(f"v_mov_b32 v{t}, {addr}")
    a(f"s_mov_b32 s{s_spin}, {SPIN * 40}")
    a.label(name)
    a(f"ds_read_b32 v{t+1}, v{t}")
    a("s_waitcnt lgkmcnt(0)")
    a(f"v_readfirstlane_b32 s{s_tmp}, v{t+1}")
    a(f"s_cmp_ge_u32 s{s_tmp}, {target}")
    a(f"s_cbranch_scc1 {name}_ok")
    if sleep: a(f"s_sleep {sleep}")
    a(f"s_sub_u32 s{s_spin}, s{s_spin}, 1")
    a(f"s_cmp_lg_u32 s{s_spin}, 0")
    a(f"s_cbranch_scc1 {name}")
    a.label(name + "_ok")

def poll(a, name, load, cmp, sleep=2, s_spin=42, between=None):
    a(f"s_mov_b32 s{s_spin}, {SPIN}")
    if between:
        a(load)
        between()
        a(f"s_branch {name}_chk")
    a.label(name)
    a(load)
    if between: a.label(name + "_chk")
    a("s_waitcnt vmcnt(0)")
    a(cmp)
    a("s_cmp_eq_u64 vcc, 0")
    a(f"s_cbranch_scc1 {name}_ok")
    if sleep: a(f"s_sleep {sleep}")
    a(f"s_sub_u32 s{s_spin}, s{s_spin}, 1")
    a(f"s_cmp_lg_u32 s{s_spin}, 0")
    a(f"s_cbranch_scc1 {name}")
    a.label(name + "_ok")
```

```python
from common import *

SLOT = 40960
LA = int(os.environ.get('LA', '2'))
SCR = 159744
SC_NM, SC_RS, SC_CS = SCR, SCR + 512, SCR + 1024
LDS_A = SCR + 4096
SC_CNT = SCR + 3072
ST = ' sc1'
ROT = int(os.environ.get('ROT', '0'))
NSB = 0
GATH = int(os.environ.get('GATH', '8'))
PD = int(os.environ.get('PD', '3'))
GMAP = [int(c, 16) for c in os.environ.get('GMAP', '9aefb012c345d678')]
GD = int(os.environ.get('GD', '5'))
SDOT = int(os.environ.get('SDOT', '3'))
HOLDH = int(os.environ.get('HOLDH', '1'))
LATEBIT = os.environ.get('LATEBIT', '1')
AX = os.environ.get('AX', '')
PF = int(os.environ.get('PF', '0'))

SX, SW, SO, SW2 = 4, 8, 12, 16
s_w, s_rb, s_g = 32, 33, 34
s_it, s_slot, s_xoff, s_woff, s_wstep = 35, 36, 37, 38, 39
s_m0x, s_m0w, s_delta, s_relu, s_scale, s_t0, s_t1, s_out, s_dslot, s_cslot, s_ch, s_xbase, s_stride, s_col = range(40, 54)
s_tab = 54

ROLES = {
    "h": (3, 384, 3), "q": (2, 256, 2), "kv": (1, 64, 1)}

def w_read_addr(a, role, dst, s_half, tmp=1):
    NTW, RB, _ = ROLES[role]
    t = tmp
    a(f"v_lshrrev_b32 v{t}, 5, v0")
    a(f"v_bfe_u32 v{t+1}, v0, 2, 2")
    a(f"v_lshl_add_u32 v{t}, v{t}, 3, v{t+1}")
    a(f"v_mul_u32_u24 v{t}, {RB}, v{t}")
    a(f"v_bfe_u32 v{t+2}, v0, 4, 1")
    a(f"v_lshl_add_u32 v{t}, v{t+2}, 5, v{t}")
    a(f"v_and_b32 v{t+2}, 3, v0")
    a(f"v_lshl_add_u32 v{t}, v{t+2}, 3, v{t}")
    a(f"v_add_u32 v{t}, {16384 + LA*SLOT}, v{t}")
    if role == "kv":
        a(f"s_lshl_b32 s{s_t0}, s{s_half}, 12")
        a(f"v_add_u32 v{dst}, s{s_t0}, v{t}")
        return
    if role == "h": a(f"v_lshrrev_b32 v{t+1}, 1, v{t+1}")
    a(f"s_mul_i32 s{s_t0}, s{s_half}, {NTW}")
    for T in range(NTW):
        a(f"s_add_u32 s{s_t1}, s{s_t0}, {T}")
        a(f"v_xor_b32 v{t+2}, s{s_t1}, v{t+1}")
        a(f"v_lshl_add_u32 v{dst+T}, v{t+2}, 6, v{t}")

def slot_advance(regs):
    L = [f"s_cmp_eq_u32 s{s_slot}, {LA*SLOT}",
         f"s_cselect_b32 s{s_delta}, {(-LA*SLOT) & 0xffffffff}, s{s_cslot}",
         f"s_add_u32 s{s_slot}, s{s_slot}, s{s_delta}"]
    return L + [f"v_add_u32 v{r}, s{s_delta}, v{r}" for r in regs]

def loader(a, role, done, pre_ba=None):
    NTW, RB, NW = ROLES[role]
    NW *= 2
    ND = 4 + NW
    v_xd, v_wd = 4, 8
    a(f"v_lshrrev_b32 v1, 3, v0")
    a(f"s_lshl_b32 s{s_t0}, s{s_w}, 5")
    a(f"v_add_u32 v1, s{s_t0}, v1")
    a(f"v_mul_u32_u24 v1, 1280, v1")
    a(f"v_and_b32 v2, 7, v0")
    a(f"v_lshrrev_b32 v3, 4, v0")
    a(f"v_xor_b32 v2, v2, v3")
    a(f"v_lshl_add_u32 v{v_xd}, v2, 4, v1")
    a(f"v_xor_b32 v2, 4, v2")
    a(f"v_lshl_add_u32 v{v_xd+1}, v2, 4, v1")
    a(f"v_add_u32 v{v_xd+1}, {10240-1024}, v{v_xd+1}")
    a(f"v_add_u32 v{v_xd+2}, {2*(10240-1024)}, v{v_xd}")
    a(f"v_add_u32 v{v_xd+3}, {2*(10240-1024)}, v{v_xd+1}")
    a(f"s_lshl_b32 s{s_m0x}, s{s_w}, 12")
    def dma_x():
        a(f"s_and_b32 s{s_ch}, s{s_tab}, 15")
        a(f"s_lshr_b64 s[{s_tab}:{s_tab+1}], s[{s_tab}:{s_tab+1}], 4")
        a(f"s_lshl_b32 s{s_xoff}, s{s_ch}, 7")
        a(f"s_add_u32 s{s_xoff}, s{s_xoff}, s{s_xbase}")
        a(f"s_add_u32 m0, s{s_dslot}, s{s_m0x}")
        a(f"s_mul_i32 s{s_woff}, s{s_ch}, s{s_wstep}")
        for e in range(4):
            a(f"buffer_load_dwordx4 v{v_xd+e}, s[{SX}:{SX+3}], s{s_xoff} offen offset:{e*1024} lds")
    def dma_w():
        a(f"s_add_u32 m0, s{s_dslot}, s{s_m0w}")
        if role == "kv":
            a(f"buffer_load_dwordx4 v{v_wd}, s[{SW}:{SW+3}], s{s_woff} offen lds")
            a(f"s_add_u32 m0, m0, 4096")
            a(f"buffer_load_dwordx4 v{v_wd}, s[{SW2}:{SW2+3}], s{s_woff} offen lds")
        else:
            for m in range(NW):
                if m == 4: a(f"s_add_u32 m0, m0, 4096")
                a(f"buffer_load_dwordx4 v{v_wd+m}, s[{SW}:{SW+3}], s{s_woff} offen offset:{(m%4)*1024} lds")
    a(f"s_mov_b32 s{s_dslot}, 0")
    dma_x()
    if role == "kv":
        a(f"s_lshl_b32 s{s_m0w}, s{s_w}, 10")
        a(f"s_add_u32 s{s_m0w}, s{s_m0w}, 16384")
        a(f"v_lshrrev_b32 v1, 2, v0")
        a(f"s_lshl_b32 s{s_t0}, s{s_w}, 4")
        a(f"v_add_u32 v1, s{s_t0}, v1")
        a(f"v_mul_u32_u24 v1, 40, v1")
        a(f"v_and_b32 v2, 3, v0")
        a(f"v_lshl_add_u32 v{v_wd}, v2, 4, v1")
    else:
        PR = RB // 16
        a(f"s_mul_i32 s{s_m0w}, s{s_w}, {NW*1024}")
        a(f"s_add_u32 s{s_m0w}, s{s_m0w}, 16384")
        a(f"s_lshl_b32 s{s_t0}, s{s_w}, 4")
        a(f"s_mul_i32 s{s_t0}, s{s_t0}, s{s_stride}")
        a(f"s_add_u32 s{s_t0}, s{s_t0}, s{s_col}")
        for m in range(NW // 2):
            a(f"v_add_u32 v1, {64*m}, v0")
            if PR == 16:
                a(f"v_lshrrev_b32 v2, 4, v1")
                a(f"v_and_b32 v3, 15, v1")
                a(f"v_and_b32 v1, 3, v2")
            else:
                a(f"v_mul_u32_u24 v2, 0xaaab, v1")
                a(f"v_lshrrev_b32 v2, 20, v2")
                a(f"v_mul_u32_u24 v3, 24, v2")
                a(f"v_sub_u32 v3, v1, v3")
                a(f"v_bfe_u32 v1, v2, 1, 1")
            a(f"v_lshlrev_b32 v1, 2, v1")
            a(f"v_xor_b32 v3, v3, v1")
            a(f"v_mul_lo_u32 v2, v2, s{s_stride}")
            a(f"v_lshl_add_u32 v2, v3, 4, v2")
            a(f"v_add_u32 v{v_wd+m}, s{s_t0}, v2")
        stride = 3456 if role == "h" else 1280
        for m in range(NW // 2, NW):
            a(f"v_add_u32 v{v_wd+m}, {8*stride - (m%4)*1024}, v{v_wd+m-NW//2}")
        for m in range(1, NW // 2): a(f"v_subrev_u32 v{v_wd+m}, {m*1024}, v{v_wd+m}")
    dma_w()
    for c in range(1, LA):
        a(f"s_mov_b32 s{s_dslot}, {c*SLOT}")
        dma_x(); dma_w()
    stamp(a, 2)
    a(f"s_mov_b32 s{s_it}, 0")
    a(f"s_mov_b32 s{s_dslot}, {LA*SLOT}")
    a.label(f"AL_loop_{role}")
    a(f"s_waitcnt vmcnt({(LA-1)*ND})")
    a("s_barrier")
    if "nodma" not in AX: dma_x(); dma_w()
    a(f"s_add_u32 s{s_dslot}, s{s_dslot}, s{s_cslot}")
    a(f"s_cmp_eq_u32 s{s_dslot}, {(LA+1)*SLOT}")
    a(f"s_cselect_b32 s{s_dslot}, 0, s{s_dslot}")
    a(f"s_add_u32 s{s_it}, s{s_it}, 1")
    a(f"s_cmp_lt_u32 s{s_it}, {10-LA}")
    a(f"s_cbranch_scc1 AL_loop_{role}")
    for k in range(LA):
        if k == LA - 1 and pre_ba: pre_ba(a)
        a(f"s_waitcnt vmcnt({(LA-1-k)*ND})")
        a("s_barrier")
    stamp(a, 3)
    done(a)

SDBG = 16
def dbg_check(a, name, between=None):
    srd(a, SDBG, 62, 256)
    a("v_lshlrev_b32 v1, 2, v0")
    a("s_mov_b32 exec_lo, 0xffff")
    a("s_mov_b32 exec_hi, 0")
    poll(a, name, f"buffer_load_dword v2, v1, s[{SDBG}:{SDBG+3}], 0 offen sc1", "v_cmp_ne_u32 vcc, 1, v2", 8, between=between)
    a("s_mov_b64 exec, -1")

def idle(a, done):
    a(f"s_cmp_eq_u32 s{s_w}, 4")
    a("s_cbranch_scc1 AI_w4")
    for it in range(10):
        a("s_barrier")
        if it in (0, 4): stamp(a, {0: 4, 4: 6}[it])
    done(a)
    a.label("AI_w4")
    a("s_setprio 3")
    bar = lambda: a("s_barrier")
    for it in range(GD): bar()
    dbg_check(a, "AI_dbg", bar)
    for it in range(GD + 1, GATH): bar()
    a(f"s_lshl_b32 s{s_t0}, s{s_rb}, 10")
    a(f"s_add_u32 s{s_t0}, s{s_t0}, {WS_STAT}")
    a(f"v_lshlrev_b32 v1, 3, v0")
    O = f"s[{SO}:{SO+3}]"
    poll(a, "AI_stat", f"buffer_load_dwordx2 v[4:5], v1, {O}, s{s_t0} offen sc1\nbuffer_load_dwordx2 v[6:7], v1, {O}, s{s_t0} offen offset:512 sc1",
         "v_min_u32 v2, v5, v7\nv_cmp_eq_u32 vcc, 0, v2", 2, between=bar)
    a(f"v_lshlrev_b32 v1, 2, v0")
    a(f"v_add_u32 v1, {SC_NM}, v1")
    a(f"v_mul_f32 v5, s{s_scale}, v5")
    a(f"v_mul_f32 v7, s{s_scale}, v7")
    a(f"ds_write_b32 v1, v4")
    a(f"ds_write_b32 v1, v6 offset:256")
    a(f"ds_write_b32 v1, v5 offset:512")
    a(f"ds_write_b32 v1, v7 offset:768")
    a("s_waitcnt lgkmcnt(0)")
    stamp(a, 3); stamp(a, 4); stamp(a, 6)
    for it in range(GATH + 1, 10): bar()
    a("s_setprio 0")
    done(a)

def clear_words(a):
    O = f"s[{SO}:{SO+3}]"
    for r in range(4, 8): a(f"v_mov_b32 v{r}, 0")
    a(f"v_lshlrev_b32 v1, 4, v0")
    a(f"s_lshl_b32 s{s_t0}, s{s_rb}, 10")
    a(f"s_add_u32 s{s_t0}, s{s_t0}, {WS_STAT}")
    a(f"buffer_store_dwordx4 v[4:7], v1, {O}, s{s_t0} offen sc1")
    a(f"v_lshlrev_b32 v1, 7, v0")
    a(f"s_lshl_b32 s{s_t0}, s{s_rb}, 12")
    a(f"s_add_u32 s{s_t0}, s{s_t0}, {WS_FL}")
    a("s_mov_b32 exec_hi, 0")
    a(f"buffer_store_dwordx4 v[4:7], v1, {O}, s{s_t0} offen sc1")
    srd(a, SDBG, 62, 256)
    a(f"v_mov_b32 v3, 1")
    a(f"s_lshl_b32 s{s_t0}, s{s_rb}, 2")
    stamp(a, 5)
    a("s_waitcnt vmcnt(0)")
    stamp(a, 6)
    a("s_mov_b64 exec, 1")
    a(f"buffer_store_dword v3, v4, s[{SDBG}:{SDBG+3}], s{s_t0} offen sc1")
    a("s_mov_b64 exec, -1")
    if STAMP: a("s_waitcnt vmcnt(0)")
    stamp(a, 3)

def produce_stats(a):
    O = f"s[{SO}:{SO+3}]"
    a(f"s_cmp_ge_u32 s{s_w}, 8")
    a("s_cbranch_scc1 AP_clear")
    a(f"v_lshrrev_b32 v1, 3, v0")
    a(f"s_lshl_b32 s{s_t0}, s{s_w}, 4")
    a(f"v_add_u32 v1, s{s_t0}, v1")
    a(f"v_mul_u32_u24 v1, 1280, v1")
    a(f"v_and_b32 v2, 7, v0")
    a(f"v_lshl_add_u32 v1, v2, 4, v1")
    a(f"s_add_u32 s{s_t0}, s{s_xbase}, 10240")
    XR, AS = 16, 8
    def ld(c):
        for e in range(2):
            a(f"buffer_load_dwordx4 {vr(XR+8*c+4*e,4)}, v1, s[{SX}:{SX+3}], s{s_t0 if e else s_xbase} offen offset:{128*c}")
    for c in range(PD): ld(c)
    a(f"s_mov_b32 s{s_relu}, 0x3f803f80")
    for r in range(AS, AS + 8): a(f"v_mov_b32 v{r}, 0")
    for c in range(10):
        a(f"s_waitcnt vmcnt({2*(min(c+PD, 10)-c-1)})")
        if c + PD < 10: ld(c + PD)
        for e in range(2):
            for i in range(4):
                x = XR + 8 * c + 4 * e + i
                a(f"v_dot2c_f32_bf16 v{AS+2*e+(i&1)}, s{s_relu}, v{x}")
                a(f"v_dot2c_f32_bf16 v{AS+4+2*e+(i&1)}, v{x}, v{x}")
    vals = [AS, AS + 2, AS + 4, AS + 6]
    for r in vals: a(f"v_add_f32 v{r}, v{r}, v{r+1}")
    for ctl in ("quad_perm:[1,0,3,2]", "quad_perm:[2,3,0,1]", "row_half_mirror"):
        for r in vals: a(f"v_add_f32_dpp v{r}, v{r}, v{r} {ctl} row_mask:0xf bank_mask:0xf")
    a(f"v_and_b32 v2, 1, v0")
    a(f"v_cmp_eq_u32 vcc, 1, v2")
    a(f"v_cndmask_b32 v4, v{AS}, v{AS+2}, vcc")
    a(f"v_cndmask_b32 v5, v{AS+4}, v{AS+6}, vcc")
    inv = f32bits(1.0 / 640.0)
    a(f"v_mul_f32 v4, {hex(inv)}, v4")
    a(f"v_mul_f32 v5, {hex(inv)}, v5")
    a(f"v_fma_f32 v5, -v4, v4, v5")
    a(f"v_max_f32 v5, 0, v5")
    a(f"v_cvt_pk_bf16_f32 v5, v5, v5")
    a(f"v_lshlrev_b32 v5, 16, v5")
    a(f"v_add_f32 v5, {hex(f32bits(1e-5))}, v5")
    a(f"v_cvt_pk_bf16_f32 v5, v5, v5")
    a(f"v_lshlrev_b32 v5, 16, v5")
    a(f"v_sqrt_f32 v5, v5")
    a(f"v_cvt_pk_bf16_f32 v5, v5, v5")
    a(f"v_lshlrev_b32 v5, 16, v5")
    a(f"v_rcp_f32 v5, v5")
    a(f"v_cvt_pk_bf16_f32 v4, -v4, -v4")
    a(f"v_lshrrev_b32 v1, 3, v0")
    a(f"v_lshl_add_u32 v1, v2, 3, v1")
    a(f"v_lshlrev_b32 v1, 3, v1")
    a(f"v_or_b32 v5, 1, v5")
    a(f"s_lshl_b32 s{s_t0}, s{s_rb}, 10")
    a(f"s_lshl_b32 s{s_t1}, s{s_w}, 7")
    a(f"s_add_u32 s{s_t0}, s{s_t0}, s{s_t1}")
    a(f"s_add_u32 s{s_t0}, s{s_t0}, {WS_STAT}")
    a("s_barrier")
    a("s_mov_b32 exec_lo, 0x03030303")
    a("s_mov_b32 exec_hi, 0x03030303")
    a(f"buffer_store_dwordx2 v[4:5], v1, {O}, s{s_t0} offen sc1")
    a("s_mov_b64 exec, -1")
    stamp(a, 3)
    a("s_branch AP_done")
    a.label("AP_clear")
    a.label("AP_bar")
    a("s_barrier")
    a.label("AP_done")

def prefetch(a, role):
    NTW, RB, _ = ROLES[role]
    c = s_t1
    a(f"s_sub_u32 s{c}, s{s_w}, 8")
    a(f"s_lshr_b32 s{s_t0}, s2, 6")
    a(f"s_lshl_b32 s{s_t0}, s{s_t0}, 2")
    a(f"s_add_u32 s{s_t0}, s{s_t0}, s{c}")
    a(f"s_mul_i32 s{s_t0}, s{s_t0}, {8*1280}")
    a(f"s_add_u32 s{s_t0}, s{s_t0}, s{s_xbase}")
    a(f"v_and_b32 v1, 7, v0")
    a(f"v_mul_u32_u24 v1, 1280, v1")
    a(f"v_lshrrev_b32 v2, 3, v0")
    a(f"v_lshl_add_u32 v3, v2, 7, v1")
    a(f"buffer_load_dword v5, v3, s[{SX}:{SX+3}], s{s_t0} offen offset:128")
    if role != "kv":
        NL = RB // 128
        a(f"v_mul_u32_u24 v2, {65536 // (2*NL) + 1}, v0")
        a(f"v_lshrrev_b32 v2, 16, v2")
        a(f"v_mul_u32_u24 v3, {2*NL}, v2")
        a(f"v_sub_u32 v3, v0, v3")
        a(f"v_and_b32 v4, 1, v3")
        a(f"v_lshrrev_b32 v3, 1, v3")
        a(f"v_lshl_add_u32 v2, v2, 6, v4")
        a(f"v_mul_lo_u32 v2, v2, s{s_stride}")
        a(f"v_lshl_add_u32 v2, v3, 7, v2")
        a(f"s_bfe_u32 s{s_t0}, s2, 0x30003")
        a(f"s_lshl_b32 s{s_t0}, s{s_t0}, 2")
        a(f"s_add_u32 s{s_t0}, s{s_t0}, s{c}")
        a(f"s_lshl_b32 s{s_t0}, s{s_t0}, 1")
        a(f"s_mul_i32 s{s_t0}, s{s_t0}, s{s_stride}")
        a(f"s_add_u32 s{s_delta}, s{s_t0}, s{s_col}")
        a(f"buffer_load_dword v7, v2, s[{SW}:{SW+3}], s{s_delta} offen")
    a(f"s_lshr_b32 s{s_t0}, s2, 6")
    a(f"s_lshl_b32 s{s_t0}, s{s_t0}, 2")
    a(f"s_add_u32 s{s_t0}, s{s_t0}, s{c}")
    a(f"s_mul_i32 s{s_t0}, s{s_t0}, {8*1280}")
    a(f"s_add_u32 s{s_t0}, s{s_t0}, s{s_xbase}")
    a(f"buffer_load_dword v15, v1, s[{SX}:{SX+3}], s{s_t0} offen offset:1152")

def compute(a, role, done, vmode=False):
    NTW, RB, _ = ROLES[role]
    tag = role + ("v" if vmode else "")
    v_xa, v_wa = 8, 12
    XF = [16, 36]; WF = [24, 44]
    SEL, CSA, ACC = 56, 60, 72
    lg = Cnt(a, "lgkmcnt", 15)
    s_rp, s_half = s_m0x, s_m0w
    if NSB: a("s_barrier")
    if PF: prefetch(a, role)
    for _ in range(NSB - 1): a("s_barrier")
    a(f"v_and_b32 v1, 31, v0")
    a(f"v_lshrrev_b32 v2, 5, v0")
    a(f"v_bfe_u32 v3, v0, 1, 3")
    a(f"v_xor_b32 v3, v3, v2")
    a(f"v_lshlrev_b32 v3, 4, v3")
    a(f"v_lshlrev_b32 v1, 7, v1")
    a(f"s_lshl_b32 s{s_t0}, s{s_rp}, 13")
    a(f"s_add_u32 s{s_t0}, s{s_t0}, {LA*SLOT}")
    a(f"v_add_u32 v1, s{s_t0}, v1")
    for j in range(4):
        a(f"v_xor_b32 v4, {j<<5}, v3")
        a(f"v_add_u32 v{v_xa+j}, v1, v4")
    w_read_addr(a, role, v_wa, s_half)
    a(f"v_lshrrev_b32 v1, 2, v0")
    a(f"v_lshrrev_b32 v2, 4, v0")
    a(f"v_xor_b32 v1, v1, v2")
    a(f"v_and_b32 v1, 1, v1")
    a(f"v_subrev_u32 v1, 1, v1")
    for i in range(4): a(f"v_and_b32 v{SEL+i}, 0x3f803f80, v1")
    for r in range(XF[1], WF[1] + 4 * NTW): a(f"v_mov_b32 v{r}, 0")
    z = vr(XF[1], 4)
    for t in range(2 * NTW): a(f"v_mfma_f32_32x32x16_bf16 {vr(ACC+16*t,16)}, {z}, {z}, 0")
    for T in range(NTW): a(f"v_mfma_f32_16x16x32_bf16 {vr(CSA+4*T,4)}, {z}, {z}, 0")
    a(f"s_mov_b32 s{s_it}, 0")
    a(f"s_mov_b32 s{s_slot}, {LA*SLOT}")
    def mfma(R, T, u):
        acc = vr(ACC + 16 * (R * NTW + T), 16); x = vr(XF[u] + 4 * R, 4); w = vr(WF[u] + 4 * T, 4)
        if vmode: a(f"v_mfma_f32_32x32x16_bf16 {acc}, {x}, {w}, {acc}")
        else: a(f"v_mfma_f32_32x32x16_bf16 {acc}, {w}, {x}, {acc}")
    def step(jn, u, cs, post=None, lo=0, hi=99):
        n = u ^ 1
        reads = []
        if jn is not None and "nord" not in AX:
            def rw(T):
                for p in range(2):
                    reads.append((f"ds_read_b64_tr_b16 {vr(WF[n]+4*T+2*p,2)}, v{v_wa+T} offset:{jn*16*RB+p*4*RB}", ("W", n, T)))
            reads.append((f"ds_read_b128 {vr(XF[n],4)}, v{v_xa+jn}", ("X", n, 0)))
            rw(0)
            reads.append((f"ds_read_b128 {vr(XF[n]+4,4)}, v{v_xa+jn} offset:4096", ("X", n, 1)))
            for T in range(1, NTW): rw(T)
        post = list(post or [])
        order = [(R, T) for T in range(NTW) for R in range(2)][lo:hi]
        per = 3 if post else 2
        for k, (R, T) in enumerate(order):
            last = k == len(order) - 1
            lg.wait(("X", u, R), ("W", u, T))
            mfma(R, T, u)
            room = 5
            for _ in range(99 if last else per):
                if reads:
                    t, g = reads.pop(0); a(t); lg.issue(g); room -= 1
            if not reads:
                while post and (room > 0 or last):
                    a(post.pop(0)); room -= 1
            if cs and R == 1 and 'nocs' not in AX:
                a(f"v_mfma_f32_16x16x32_bf16 {vr(CSA+4*T,4)}, {vr(SEL,4)}, {vr(WF[u]+4*T,4)}, {vr(CSA+4*T,4)}")
    stamp(a, 2)
    if STAMP: a("s_waitcnt lgkmcnt(0)")
    NM = 2 * NTW
    adv = slot_advance([v_xa, v_wa] + [v_wa + T for T in range(1, NTW)] + [v_xa + j for j in range(1, 4)])
    for t in adv: a(t)
    full = role != "h"
    if not full:
        a(f"s_cmp_eq_u32 s{s_rp}, 1")
        a(f"s_cbranch_scc1 AC_ent_{tag}1")
    for rp in range(1 if full else 2):
        e0 = full or rp == 0; e1 = full or rp == 1
        if rp == 0: a(f"s_branch AC_ent_{tag}0")
        a.raw(".p2align 6")
        a.label(f"AC_loop_{tag}{rp}")
        st = a.mark()
        a("s_waitcnt lgkmcnt(0)")
        if e0 and 'nocs' not in AX:
            a(f"v_mfma_f32_16x16x32_bf16 {vr(CSA+4*(NTW-1),4)}, {vr(SEL,4)}, {vr(WF[0]+4*(NTW-1),4)}, {vr(CSA+4*(NTW-1),4)}")
        step(None, 0, False, None, NM - 1, NM)
        a.label(f"AC_ent_{tag}{rp}")
        a("s_barrier")
        step(0, 1, e1)
        step(1, 0, e0); step(2, 1, e1)
        tail = adv + [f"s_add_u32 s{s_it}, s{s_it}, 1", f"s_cmp_lt_u32 s{s_it}, 10"]
        step(3, 0, e0, tail, 0, NM - 1)
        lg.q = []
        a(f"s_cbranch_scc1 AC_loop_{tag}{rp}")
        a.check_backedge(st)
        a("s_waitcnt lgkmcnt(0)")
        if e0 and 'nocs' not in AX:
            a(f"v_mfma_f32_16x16x32_bf16 {vr(CSA+4*(NTW-1),4)}, {vr(SEL,4)}, {vr(WF[0]+4*(NTW-1),4)}, {vr(CSA+4*(NTW-1),4)}")
        step(None, 0, False, None, NM - 1, NM)
        if e1:
            for T in range(NTW):
                a(f"v_mfma_f32_16x16x32_bf16 {vr(CSA+4*T,4)}, {vr(SEL,4)}, {vr(WF[1]+4*T,4)}, {vr(CSA+4*T,4)}")
        if rp == 0 and not full: a(f"s_branch AC_fin_{tag}")
    a.label(f"AC_fin_{tag}")
    a(f"v_and_b32 v1, 31, v0")
    a(f"s_lshl_b32 s{s_t0}, s{s_rp}, 8")
    a(f"s_add_u32 s{s_t0}, s{s_t0}, {SC_NM}")
    a(f"v_lshl_add_u32 v2, v1, 2, s{s_t0}")
    pre = [f"v_mov_b32 v{r}, 0" for r in range(XF[0], WF[0] + 4 * NTW)]
    pre += ["s_mov_b32 exec_hi, 0", f"ds_read_b32 v{XF[0]}, v2", f"ds_read_b32 v{XF[0]+4}, v2 offset:128", "s_mov_b32 exec_hi, -1",
            "ds_read_b32 v4, v2 offset:512", "ds_read_b32 v6, v2 offset:640"]
    step(None, 1, False, pre)
    stamp(a, 5)
    CS = CSA
    if not full:
        a(f"s_mul_i32 s{s_t1}, s{s_half}, {NTW*256}")
        a(f"s_add_u32 s{s_t1}, s{s_t1}, {SC_CS}")
        a(f"v_lshl_add_u32 v3, v1, 3, s{s_t1}")
        a(f"s_lshl_b32 s{s_t1}, s{s_rp}, 2")
        a(f"v_add_u32 v7, s{s_t1}, v3")
        for T in range(NTW): a(f"ds_write_b32 v7, v{CSA+4*T} offset:{T*256}")
        lds_arrive(a, SC_CNT + 12, 8)
        lds_wait(a, f"AC_sync_{tag}", SC_CNT + 12, 4, 8, s_it, s_slot, 1)
        for T in range(NTW): a(f"ds_read_b64 {vr(CS+4*T,2)}, v3 offset:{T*256}")
        a(f"s_waitcnt lgkmcnt(0)")
        for T in range(NTW): a(f"v_add_f32 v{CS+4*T}, v{CS+4*T}, v{CS+4*T+1}")
    for T in range(NTW): a(f"v_cvt_pk_bf16_f32 v{CS+4*T+1}, v{CS+4*T}, v{CS+4*T}")
    for T in range(NTW): a(f"v_lshlrev_b32 v{CS+4*T+1}, 16, v{CS+4*T+1}")
    for T in range(NTW): a(f"v_sub_f32 v{CS+4*T+1}, v{CS+4*T}, v{CS+4*T+1}")
    for T in range(NTW): a(f"v_cvt_pk_bf16_f32 v{WF[0]+4*T}, v{CS+4*T}, v{CS+4*T+1}")
    a("s_waitcnt lgkmcnt(0)")
    for R in range(2):
        for T in range(NTW): mfma(R, T, 0)
    stamp(a, 6)
    O = f"s[{SO}:{SO+3}]"
    a(f"v_lshlrev_b32 v1, 4, v0")
    if role != "kv":
        for R in range(2):
            for T in range(NTW):
                b = ACC + 16 * (R * NTW + T)
                if R == 0 and T < 2:
                    for i in range(16): a(f"v_mul_f32 v{b+i}, v{4+2*R}, v{b+i}")
                else:
                    for i in range(8): a(f"v_pk_mul_f32 {vr(b+2*i,2)}, {vr(b+2*i,2)}, {vr(4+2*R,2)} op_sel_hi:[1,0]")
                if role == "h":
                    d = ACC + 8 * (R * NTW + T)
                    for i in range(8): a(f"v_cvt_pk_bf16_f32 v{d+i}, v{b+2*i}, v{b+2*i+1}")
                    for i in range(8): a(f"v_pk_max_i16 v{d+i}, v{d+i}, 0")
                    continue
                for i in range(8): a(f"v_cvt_pk_bf16_f32 v{b+i}, v{b+2*i}, v{b+2*i+1}")
                o = 2 * T * 1024
                a(f"buffer_store_dwordx4 {vr(b,4)}, v1, {O}, s{s_out} offen offset:{o}{ST}")
                a(f"buffer_store_dwordx4 {vr(b+4,4)}, v1, {O}, s{s_out} offen offset:{o+1024}{ST}")
            if R == 0 and role != "h": a(f"s_add_u32 s{s_out}, s{s_out}, {QH_TT}")
        if role == "h":
            a(f"s_mov_b32 s53, s{s_out}")
            a("s_branch F_gemm")
            return
    elif not vmode:
        for R in range(2):
            b = ACC + 16 * R
            for i in range(12): a(f"v_mul_f32 v{b+i}, v{4+2*R}, v{b+i}")
            for i in range(4): a(f"v_cvt_pk_bf16_f32 v{b+i}, v{b+2*i}, v{b+2*i+1}")
            for i in range(2): a(f"v_cvt_pk_bf16_f32 v{16+2*R+i}, v{b+8+2*i}, v{b+9+2*i}")
            a(f"buffer_store_dwordx4 {vr(b,4)}, v1, {O}, s{s_out} offen offset:{1024*R}{ST}")
        a("s_mov_b32 exec_lo, 0")
        for i in range(4): a(f"v_mov_b32 v{16+i}, {'0x3f80' if i % 2 == 0 else 0}")
        a("s_mov_b32 exec_lo, -1")
        a(f"buffer_store_dwordx4 v[16:19], v1, {O}, s{s_out} offen offset:2048{ST}")
    else:
        a(f"v_lshrrev_b32 v6, 5, v0")
        a(f"v_lshl_add_u32 v3, v6, 4, s{s_t0}")
        for R in range(2):
            for q in range(4): a(f"ds_read_b128 {vr(16+16*R+4*q,4)}, v3 offset:{512+128*R+32*q}")
        a(f"v_and_b32 v2, 31, v0")
        a(f"v_mul_u32_u24 v6, 384, v6")
        a(f"v_lshl_add_u32 v6, v2, 4, v6")
        a(f"s_add_u32 s{s_out}, s{s_out}, 3072")
        a("s_waitcnt lgkmcnt(0)")
        for R in range(2):
            b = ACC + 16 * R
            for i in range(16): a(f"v_mul_f32 v{b+i}, v{16+16*R+i}, v{b+i}")
            for i in range(8): a(f"v_cvt_pk_bf16_f32 v{b+i}, v{b+2*i}, v{b+2*i+1}")
            a("s_mov_b32 exec_lo, 0x00100000")
            a("s_mov_b32 exec_hi, 0x00100000")
            for i in range(8): a(f"v_mov_b32 v{b+i}, 0x3f803f80")
            a("s_mov_b32 exec_lo, 0x00e00000")
            a("s_mov_b32 exec_hi, 0x00e00000")
            for i in range(8): a(f"v_mov_b32 v{b+i}, 0")
            a("s_mov_b32 exec_lo, 0x00ffffff")
            a("s_mov_b32 exec_hi, 0x00ffffff")
            a(f"buffer_store_dwordx4 {vr(b,4)}, v6, {O}, s{s_out} offen offset:{1536*R}{ST}")
            a(f"buffer_store_dwordx4 {vr(b+4,4)}, v6, {O}, s{s_out} offen offset:{1536*R+768}{ST}")
            a("s_mov_b64 exec, -1")
    done(a)

def phase_a(a, done_help, done_stats, done_comp, spare, start_hook=None, pre_ba=None):
    a("s_load_dwordx8 s[20:27], s[0:1], 0")
    a("s_load_dwordx2 s[28:29], s[0:1], 48")
    a("s_load_dwordx2 s[30:31], s[0:1], 80")
    a("s_load_dwordx2 s[56:57], s[0:1], 56")
    a("s_load_dwordx2 s[58:59], s[0:1], 32")
    a("s_load_dwordx4 s[60:63], s[0:1], 64")
    a("v_lshrrev_b32 v1, 6, v0")
    a("v_and_b32 v0, 63, v0")
    a(f"v_readfirstlane_b32 s{s_w}, v1")
    ORD = os.environ.get("ORD", "0124356789,0215346789,0312645789,0132745689,0123845679,0213945678,0312456789,0123456789").split(",")
    a(f"s_and_b32 s{s_t0}, s2, 1")
    a(f"s_lshl_b32 s{s_t0}, s{s_t0}, 3")
    a(f"s_bfe_u32 s{s_rb}, s2, 0x30003")
    a(f"s_lshr_b32 s{s_g}, s2, 6")
    a(f"s_add_u32 s{s_t1}, s{s_g}, s{s_rb}")
    a(f"s_and_b32 s{s_t1}, s{s_t1}, {len(ORD)-1}")
    a(f"s_add_u32 s{s_rb}, s{s_rb}, s{s_t0}")
    gv = sum(g << (4 * i) for i, g in enumerate(GMAP))
    a(f"s_bfe_u32 s{s_t0}, s2, 0x20001")
    a(f"s_lshl_b32 s{s_t0}, s{s_t0}, 2")
    a(f"s_add_u32 s{s_g}, s{s_g}, s{s_t0}")
    a(f"s_lshl_b32 s{s_g}, s{s_g}, 2")
    a(f"s_mov_b32 s{s_tab}, {hex(gv & 0xffffffff)}")
    a(f"s_mov_b32 s{s_tab+1}, {hex(gv >> 32)}")
    a(f"s_lshr_b64 s[{s_tab}:{s_tab+1}], s[{s_tab}:{s_tab+1}], s{s_g}")
    a(f"s_and_b32 s{s_g}, s{s_tab}, 15")
    a(f"s_lshl_b32 s3, s{s_rb}, 4")
    a(f"s_add_u32 s3, s3, s{s_g}")
    for k, o in enumerate(ORD):
        assert sorted(o) == list("0123456789")
        v = sum(int(d) << (4 * i) for i, d in enumerate(o))
        if k == 0:
            a(f"s_mov_b32 s{s_tab}, {hex(v & 0xffffffff)}")
            a(f"s_movk_i32 s{s_tab+1}, {hex(v >> 32)}")
        else:
            a(f"s_cmp_eq_u32 s{s_t1}, {k}")
            a(f"s_cselect_b32 s{s_tab}, {hex(v & 0xffffffff)}, s{s_tab}")
            a(f"s_cselect_b32 s{s_tab+1}, {hex(v >> 32)}, s{s_tab+1}")
    a(f"s_mov_b32 s{s_cslot}, {SLOT}")
    a(f"s_mul_i32 s{s_xbase}, s{s_rb}, {128*1280}")
    a(f"s_and_b32 s{s_m0x}, s{s_w}, 1")
    a(f"s_bfe_u32 s{s_m0w}, s{s_w}, 0x10001")
    a(f"s_lshl_b32 s{s_out}, s{s_rb}, 1")
    a(f"s_add_u32 s{s_out}, s{s_out}, s{s_m0x}")
    a(f"s_lshl_b32 s{s_out}, s{s_out}, 1")
    a("s_waitcnt lgkmcnt(0)")
    srd(a, SX, 20, 2048 * 1280)
    srd(a, SO, 30, WS_SIZE)
    a(f"s_lshl_b32 s{s_t0}, s{s_w}, 4")
    a(f"s_add_u32 s{s_t0}, s{s_t0}, s{s_g}")
    a(f"s_cmp_lg_u32 s{s_t0}, {8*16+15}")
    a("s_cbranch_scc1 A_noclear")
    clear_words(a)
    a.label("A_noclear")
    a(f"s_sub_u32 s{s_t0}, s{s_g}, 9")
    a(f"s_cmp_lt_u32 s{s_t0}, 5")
    a(f"s_cselect_b32 s{s_scale}, {hex(f32bits(QSCALE))}, 1.0")
    a(f"s_cmp_eq_u32 s{s_g}, 15")
    a("s_cbranch_scc1 A_spare")
    a(f"s_sub_u32 s{s_t0}, s{s_w}, 4")
    a(f"s_cmp_lt_u32 s{s_t0}, 4")
    a("s_cbranch_scc1 A_stats")
    a(f"s_cmp_eq_u32 s{s_g}, 14")
    a("s_cbranch_scc1 A_kv")
    a(f"s_cmp_ge_u32 s{s_g}, 9")
    a("s_cbranch_scc1 A_q")
    for role in ("h", "q"):
        NTW = ROLES[role][0]
        if role == "q":
            a.label("A_q")
            a(f"s_sub_u32 s{s_g}, s{s_g}, 9")
        stride = 3456 if role == "h" else 1280
        a(f"s_cmp_ge_u32 s{s_w}, 8")
        a(f"s_cbranch_scc1 A_c{role}")
        srd(a, SW, 28 if role == "h" else 22, 640 * stride)
        a(f"s_movk_i32 s{s_stride}, {stride}")
        a(f"s_mov_b32 s{s_wstep}, {64*stride}")
        a(f"s_mul_i32 s{s_col}, s{s_g}, {NTW*128}")
        loader(a, role, done_help, pre_ba)
        a.label(f"A_c{role}")
        a("s_setprio 2")
        a(f"s_mul_i32 s{s_out}, s{s_out}, {QH_TT}")
        a(f"s_lshl_b32 s{s_t0}, s{s_g}, 1")
        a(f"s_add_u32 s{s_t0}, s{s_t0}, s{s_m0w}")
        a(f"s_mul_i32 s{s_t0}, s{s_t0}, {NTW*2048}")
        a(f"s_add_u32 s{s_out}, s{s_out}, s{s_t0}")
        if role == "h": a(f"s_add_u32 s{s_out}, s{s_out}, {40*1024}")
        compute(a, role, done_comp)
    a.label("A_kv")
    a(f"s_cmp_ge_u32 s{s_w}, 8")
    a(f"s_cbranch_scc1 A_ckv")
    srd(a, SW, 24, 640 * 40)
    srd(a, SW2, 26, 640 * 40)
    a(f"s_movk_i32 s{s_wstep}, 2560")
    loader(a, "kv", done_help, pre_ba)
    a.label("A_ckv")
    a("s_setprio 2")
    a(f"s_mul_i32 s{s_out}, s{s_out}, {KV_TILE}")
    a(f"s_add_u32 s{s_out}, s{s_out}, {WS_KV}")
    a(f"s_cmp_eq_u32 s{s_m0w}, 1")
    a(f"s_cbranch_scc1 A_cv")
    compute(a, "kv", done_comp, False)
    a.label("A_cv")
    compute(a, "kv", done_comp, True)
    a.label("A_stats")
    start_hook(a)
    idle(a, done_stats)
    a.label("A_spare")
    spare(a)
```

```python
from common import *
from gw import *
import ka2
from ka2 import phase_a, SC_CNT, LDS_A

GPRIO = int(os.environ.get("GPRIO", "0"))
HOLD = 1
GROT = int(os.environ.get("GROT", "4"))
GX = os.environ.get("GX", "")
UARR = int(os.environ.get("UARR", "2"))
DRY = int(os.environ.get("DRY", "1"))
DEFW = int(os.environ.get("DEFW", "4"))
DEFER = int(os.environ.get("DEFER", "0"))
PAIR = 2 * KV_TILE
CH = 8 * KV_TILE
STG = 0
KVB = 4 * PART
assert KVB + 3 * CH <= ka2.SCR and KVB >= 2 * ka2.SLOT
RESET_WG = (3 << 6) | (3 << 1)

SX, SW2, SWS, SWO, SOUT, SDBG = 4, 8, 12, 16, 20, 16
s_w, s_tt, s_hg, s_t0, s_t1, s_c, s_slot, s_delta, s_cch, s_base, s_spin, s_kvl, s_kvg, s_woff2 = range(32, 46)
s_gw = 46
WS = f"s[{SWS}:{SWS+3}]"
Q1, Q2, P0, P1, O, S0, S1 = 4, 8, 12, 16, 20, 36, 52
KS = [68, 96]
v_ka, v_va, v_g0, VT = 124, 125, 126, 130
v_l16, v_cnt, v_one, v_chk = 136, 137, 138, 139
SC_K = SC_CNT + 256
s_tgt = 45

def mf(a, d, x, y, c): a(f"v_mfma_f32_32x32x16_bf16 {vr(d,16)}, {vr(x,4)}, {vr(y,4)}, {c if isinstance(c,str) else vr(c,16)}")
def mf8(a, d, x, y): a(f"v_mfma_f32_32x32x8_bf16 {vr(d,16)}, {vr(x,2)}, {vr(y,2)}, {vr(d,16)}")

def flag_off(a, vd, vrb, vg, t):
    a(f"v_lshl_add_u32 v{vd}, v{vrb}, 4, v{vg}")
    a(f"v_lshlrev_b32 v{vd}, 7, v{vd}")
    a(f"v_add_u32 v{vd}, {WS_FL}, v{vd}")

def publish(a, name, cnt_off, nwaves, sid, base, t, value=1, vm=0):
    a(f"s_waitcnt vmcnt({vm})")
    a("s_mov_b64 exec, 1")
    a(f"v_mov_b32 v{t}, {SC_CNT + cnt_off}")
    a(f"v_mov_b32 v{t+1}, 1")
    a(f"ds_add_rtn_u32 v{t+1}, v{t}, v{t+1}")
    a(f"s_lshl_b32 s{s_t0}, s{sid}, 7")
    a(f"s_add_u32 s{s_t0}, s{s_t0}, {base}")
    a(f"v_mov_b32 v{t}, 0")
    a(f"v_mov_b32 v{t+2}, {value}")
    a("s_waitcnt lgkmcnt(0)")
    a(f"v_readfirstlane_b32 s{s_t1}, v{t+1}")
    a(f"s_cmp_lg_u32 s{s_t1}, {nwaves-1}")
    a(f"s_cbranch_scc1 {name}")
    a(f"buffer_store_dword v{t+2}, v{t}, {WS}, s{s_t0} offen sc1")
    a.label(name)
    a("s_mov_b64 exec, -1")

def decode_b(a):
    a(f"s_lshr_b32 s{s_tt}, s2, 2")
    a(f"s_and_b32 s{s_hg}, s2, 3")

def attn_addr(a):
    a(f"s_and_b32 s{s_t0}, s2, 3")
    a(f"s_lshl_b32 s{s_t0}, s{s_t0}, 3")
    a(f"s_add_u32 s{s_t0}, s{s_t0}, s{s_w}")
    a(f"s_mul_i32 s{s_t0}, s{s_t0}, 5")
    a(f"v_lshrrev_b32 v2, 5, v0")
    a(f"v_and_b32 v3, 31, v0")
    a(f"v_lshlrev_b32 v3, 4, v3")
    for i in range(3):
        if i < 2: a(f"v_add_u32 v1, s{s_t0}, v2")
        else: a(f"v_mov_b32 v1, s{s_t0}")
        if i: a(f"v_add_u32 v1, {2*i}, v1")
        a(f"v_lshrrev_b32 v{VT}, 2, v1")
        a(f"v_lshl_add_u32 v{v_g0+i}, v{VT}, 10, v3")
        a(f"v_and_b32 v{VT}, 1, v1")
        a(f"v_lshl_add_u32 v{v_g0+i}, v{VT}, 9, v{v_g0+i}")
        a(f"v_bfe_u32 v{VT}, v1, 1, 1")
        a(f"v_lshl_add_u32 v{v_g0+i}, v{VT}, 3, v{v_g0+i}")
    a(f"v_lshlrev_b32 v{v_l16}, 4, v0")
    a(f"v_add_u32 v{v_ka}, {KVB}, v{v_l16}")
    a(f"v_lshlrev_b32 v{v_cnt}, 2, v0")
    a(f"v_add_u32 v{v_cnt}, {SC_K}, v{v_cnt}")
    a(f"v_mov_b32 v{v_one}, 1")
    a(f"v_and_b32 v1, 31, v0")
    a(f"v_min_u32 v1, 23, v1")
    a(f"v_mul_u32_u24 v{v_va}, 384, v2")
    a(f"v_lshl_add_u32 v{v_va}, v1, 4, v{v_va}")
    a(f"v_add_u32 v{v_va}, {KVB + 3072}, v{v_va}")

def fetch(a):
    decode_b(a)
    a(f"s_cmp_lg_u32 s{s_w}, 0")
    a("s_cbranch_scc1 B_fkv")
    a(f"s_lshr_b32 s{s_t0}, s{s_tt}, 2")
    a(f"s_add_u32 s{s_t1}, s{s_hg}, 9")
    a(f"v_mov_b32 v1, s{s_t0}")
    a(f"v_add_u32 v2, s{s_t1}, v0")
    flag_off(a, 4, 1, 2, 3)
    a("s_mov_b64 exec, 3")
    poll(a, "B_pollq", f"buffer_load_dword v2, v4, {WS}, 0 offen sc1", "v_cmp_gt_u32 vcc, 1, v2")
    a("s_branch B_arrive")
    a.label("B_fkv")
    a(f"v_mov_b32 v2, 14")
    flag_off(a, 4, 0, 2, 3)
    a(f"s_sub_u32 s{s_kvl}, s{s_w}, 1")
    a(f"s_lshl_b32 s{s_kvl}, s{s_kvl}, 13")
    a(f"s_add_u32 s{s_kvg}, s{s_kvl}, {WS_KV}")
    a(f"v_lshlrev_b32 v5, 4, v0")
    a("s_mov_b32 exec_lo, 0xffff")
    a("s_mov_b32 exec_hi, 0")
    poll(a, "B_pollkv", f"buffer_load_dword v2, v4, {WS}, 0 offen sc1", "v_cmp_gt_u32 vcc, 1, v2", 6)
    a("s_mov_b64 exec, -1")
    stamp(a, 5)
    for c in range(3):
        for hf in range(2):
            a(f"s_add_u32 m0, s{s_kvl}, {KVB + c*CH + hf*4096}")
            a(f"s_add_u32 s{s_t0}, s{s_kvg}, {c*CH + hf*4096}")
            for m in range(4): a(f"buffer_load_dwordx4 v5, {WS}, s{s_t0} offen offset:{m*1024} sc1 lds")
    a("s_waitcnt vmcnt(8)")
    stamp(a, 2)
    a.label("B_arrive")
    lds_arrive(a, SC_CNT + 8, 2)

def attention(a):
    decode_b(a)
    stamp(a, 8)
    a(f"s_mul_i32 s{s_base}, s{s_tt}, {QH_TT}")
    lds_wait(a, "B_wait", SC_CNT + 8, 4, 2, s_spin, s_t0)
    stamp(a, 9)
    a(f"buffer_load_dwordx2 {vr(Q1,2)}, v{v_g0}, {WS}, s{s_base} offen sc1")
    a(f"buffer_load_dwordx2 {vr(Q1+2,2)}, v{v_g0+1}, {WS}, s{s_base} offen sc1")
    a(f"buffer_load_dwordx2 {vr(Q2,2)}, v{v_g0+2}, {WS}, s{s_base} offen sc1")
    for r in list(range(KS[0] + 20, KS[0] + 24)) + list(range(P1, P1 + 4)) + list(range(O, O + 16)):
        a(f"v_mov_b32 v{r}, 0")
    a(f"s_mov_b32 s{s_c}, 0")
    a(f"s_mov_b32 s{s_slot}, 0")
    a(f"s_mov_b32 s{s_cch}, {CH}")
    a(f"s_mov_b32 s{s_tgt}, 8")
    a(f"s_mul_i32 s{s_kvl}, s{s_w}, 3072")
    a(f"s_add_u32 s{s_kvg}, s{s_kvl}, {WS_KV + 2*CH}")
    a(f"s_add_u32 s{s_kvl}, s{s_kvl}, {KVB}")
    a(f"s_mov_b32 s{s_t1}, {2*CH}")
    def kv_off(kind, t):
        p = (t % 8) // 2 * PAIR; b = t % 2
        return {"K1": p + 1024 * b, "K2": p + 2048, "V0": p + 1536 * b, "V1": p + 1536 * b + 768}[kind]
    def rd(dst, kind, t):
        a(f"ds_read_b128 {vr(dst,4)}, v{v_ka if kind[0] == 'K' else v_va} offset:{kv_off(kind, t)}")
    def group_reads(o):
        n = KS[((o + 1) // 2 + 1) % 2]
        return [(n + 12, "V1", o + 1), (n, "K1", o + 3), (n + 8, "K2", o + 3), (n + 16, "V0", o + 2),
                (n + 20, "V1", o + 2), (n + 4, "K1", o + 4), (n + 24, "V0", o + 3)]
    k0 = KS[0]
    rd(k0, "K1", 0); rd(k0 + 8, "K2", 0); rd(k0 + 4, "K1", 1); rd(k0 + 24, "V0", 0)
    for r in group_reads(-1)[:4]: rd(*r)
    a("s_waitcnt vmcnt(0)")
    lds_arrive(a, SC_CNT + 8, 2)
    a("s_mov_b32 exec_lo, 0")
    a(f"v_mov_b32 v{Q2}, 0")
    a(f"v_mov_b32 v{Q2+1}, 0")
    a("s_mov_b32 exec_lo, -1")
    stamp(a, 10)
    a("s_waitcnt lgkmcnt(0)")
    mf(a, S1, k0, Q1, "0"); mf8(a, S1, k0 + 8, Q2)
    mf(a, S0, k0, Q1, "0")
    a(f"v_max3_f32 v{VT}, v{S1}, v{S1+1}, v{S1+2}")
    a(f"v_max3_f32 v{VT+1}, v{S1+3}, v{S1+4}, v{S1+5}")
    a(f"v_max3_f32 v{VT+2}, v{S1+6}, v{S1+7}, v{S1+8}")
    a(f"v_max3_f32 v{VT+3}, v{S1+9}, v{S1+10}, v{S1+11}")
    a(f"v_max3_f32 v{VT}, v{VT}, v{S1+12}, v{S1+13}")
    a(f"v_max3_f32 v{VT+1}, v{VT+1}, v{S1+14}, v{S1+15}")
    a(f"v_max3_f32 v{VT}, v{VT}, v{VT+2}, v{VT+3}")
    a(f"v_max_f32 v{VT}, v{VT}, v{VT+1}")
    a(f"v_mov_b32 v{VT+1}, v{VT}")
    a(f"v_permlane32_swap_b32 v{VT}, v{VT+1}")
    a(f"v_max_f32 v{VT}, v{VT}, v{VT+1}")
    a("s_mov_b32 exec_lo, 0")
    a(f"v_cvt_pk_bf16_f32 v{Q2}, -v{VT}, 0")
    a("s_mov_b32 exec_lo, -1")
    mf8(a, S0, k0 + 8, Q2)
    stamp(a, 11); stamp(a, 12, 'cyc')
    a("s_waitcnt lgkmcnt(0)")
    a("s_nop 10")
    a.raw(".p2align 6")
    a.label("B_loop")
    start = a.mark()
    for u in range(8):
        Sc, Sn = (S0, S1) if u % 2 == 0 else (S1, S0)
        odd = u % 2
        o = u if odd else u - 1
        ks = KS[((o + 1) // 2) % 2]
        reads = group_reads(o)
        slots = [[reads[0]], [reads[1]], [reads[2]], [reads[3]]] if odd else [[reads[4], reads[5]], [reads[6]], [], []]
        e = lambda i: a(f"v_exp_f32 v{Sc+i}, v{Sc+i}")
        c = lambda i: a(f"v_cvt_pk_bf16_f32 v{P0+i}, v{Sc+2*i}, v{Sc+2*i+1}")
        if DRY and u == 3:
            a("s_cbranch_execz F_dryret")
            a.label("B_u3")
        if os.environ.get("CHST") and u == 0: a("s_memrealtime s[98:99]")
        e(0); e(1)
        if odd: a("s_waitcnt lgkmcnt(0)")
        if os.environ.get("CHST") and u == 1:
            sl = [2, 3, 4, 5, 6, 8, 9, 10]
            for k in range(7): a(f"s_mov_b32 s{64+2*sl[k]}, s{64+2*sl[k+1]}")
            a(f"s_mov_b32 s{64+2*sl[7]}, s98")
        mf(a, O, ks + (12 if odd else 20), P1, O)
        for r in slots[0]: rd(*r)
        if u == 5:
            if DRY: a("s_cbranch_execz F_dryret")
            a(f"v_readfirstlane_b32 s{s_t0}, v{v_chk}")
            a(f"s_add_u32 m0, s{s_kvl}, s{s_t1}")
            a(f"s_cmp_lt_u32 s{s_t0}, s{s_tgt}")
            a("s_cbranch_scc1 B_spin")
            a.label("B_synced")
            a(f"s_sub_u32 s{s_t0}, s{s_c}, 1")
            a(f"s_cmp_gt_u32 s{s_t0}, 4")
            a("s_cbranch_scc1 B_nodma")
            for m in range(0 if "nokv" in GX else 3): a(f"buffer_load_dwordx4 v{v_l16}, {WS}, s{s_kvg} offen offset:{m*1024} sc1 lds")
            a.label("B_nodma")
        if u == 2:
            a(f"s_cmp_eq_u32 s{s_slot}, {2*CH}")
            a(f"s_cselect_b32 s{s_delta}, {(-2*CH) & 0xffffffff}, s{s_cch}")
        e(2); e(3); c(0)
        if u == 5: a(f"v_add_u32 v{v_ka}, s{s_delta}, v{v_ka}")
        if u == 6: a(f"v_add_u32 v{v_va}, s{s_delta}, v{v_va}")
        e(4); c(1)
        mf(a, Sn, ks + (0 if odd else 4), Q1, "0")
        for r in slots[1]: rd(*r)
        e(5); e(6); e(7); c(2); e(8); c(3)
        mf8(a, Sn, ks + 8 + (0 if odd else 2), Q2)
        for r in slots[2]: rd(*r)
        if u == UARR:
            a("s_waitcnt vmcnt(0)")
            a(f"ds_add_u32 v{v_cnt}, v{v_one}")
        if u == 6:
            a(f"s_mov_b32 s{s_t1}, s{s_slot}")
            a(f"s_add_u32 s{s_slot}, s{s_slot}, s{s_delta}")
            a(f"s_add_u32 s{s_kvg}, s{s_kvg}, s{s_cch}")
            a(f"s_add_u32 s{s_tgt}, s{s_tgt}, 8")
        e(9); e(10); e(11); c(4); e(12); c(5)
        mf(a, O, ks + (16 if odd else 24), P0, O)
        for r in slots[3]: rd(*r)
        if u == 4: a(f"ds_read_b32 v{v_chk}, v{v_cnt}")
        if u == 6:
            a(f"s_add_u32 s{s_c}, s{s_c}, 1")
            a(f"s_cmp_lt_u32 s{s_c}, 8")
        e(13); e(14); e(15); c(6); c(7)
        for _ in range(int(os.environ.get("XMOV", "0"))): a(f"v_max_f32 v{VT}, v{VT}, v{VT}")
    a("s_cbranch_scc1 B_loop")
    a.check_backedge(start)
    stamp(a, 13); stamp(a, 14, 'cyc')
    mf(a, O, KS[0] + 20, P1, O)
    if DEFER: lds_arrive(a, SC_CNT + 16, VT)
    a("s_waitcnt lgkmcnt(0)")
    a(f"v_mov_b32 v{VT+2}, {hex(f32bits(2.0**60))}")
    a(f"s_lshl_b32 s{s_base}, s2, 3")
    a(f"s_add_u32 s{s_base}, s{s_base}, s{s_w}")
    a(f"s_mul_i32 s{s_base}, s{s_base}, 1280")
    a(f"s_add_u32 s{s_base}, s{s_base}, {WS_O}")
    a(f"v_lshlrev_b32 v{v_g0}, 4, v0")
    a(f"v_lshlrev_b32 v{v_g0+1}, 3, v0")
    a(f"v_mov_b32 v{VT}, v{O+8}")
    a(f"v_mov_b32 v{VT+1}, v{O+8}")
    a(f"v_permlane32_swap_b32 v{VT}, v{VT+1}")
    a(f"v_cmp_nle_f32 vcc, {hex(f32bits(2.0**-60))}, v{VT+1}")
    a(f"v_cmp_nle_f32 s[52:53], v{VT+1}, v{VT+2}")
    a(f"s_or_b64 s[52:53], s[52:53], vcc")
    a("s_cbranch_scc1 B_fallback")
    a.label("B_norm")
    a(f"v_rcp_f32 v{VT}, v{VT+1}")
    for i in range(12): a(f"v_mul_f32 v{O+i}, v{VT}, v{O+i}")
    for i in range(6): a(f"v_cvt_pk_bf16_f32 v{O+i}, v{O+2*i}, v{O+2*i+1}")
    if DRY: a("s_cbranch_execz F_dryret")
    a(f"buffer_store_dwordx4 {vr(O,4)}, v{v_g0}, {WS}, s{s_base} offen sc1")
    a("s_mov_b32 exec_hi, 0")
    a(f"buffer_store_dwordx2 {vr(O+4,2)}, v{v_g0+1}, {WS}, s{s_base} offen offset:1024 sc1")
    publish(a, "B_pub", 4, 8, 2, WS_FL + 32768, VT)
    if STAMP:
        stamp(a, 7); stamp(a, 15, True)
        stamp_flush(a, 1, SWS, s_w, 12, 16)
    a("s_endpgm")
    a.label("B_spin")
    a(f"s_mov_b32 s{s_spin}, {SPIN * 40}")
    a.label("B_spin1")
    a(f"s_sleep {os.environ.get('SSL', '1')}")
    a(f"ds_read_b32 v{v_chk}, v{v_cnt}")
    a("s_waitcnt lgkmcnt(0)")
    a(f"v_readfirstlane_b32 s{s_t0}, v{v_chk}")
    a(f"s_cmp_ge_u32 s{s_t0}, s{s_tgt}")
    a("s_cbranch_scc1 B_synced")
    a(f"s_sub_u32 s{s_spin}, s{s_spin}, 1")
    a(f"s_cmp_lg_u32 s{s_spin}, 0")
    a("s_cbranch_scc1 B_spin1")
    a("s_branch B_synced")
    a.label("B_fallback")
    a("s_mov_b32 exec_lo, 0")
    a(f"v_mov_b32 v{Q2}, 0")
    a("s_mov_b32 exec_lo, -1")
    a(f"s_add_u32 s{s_slot}, s{s_slot}, {KVB}")
    a(f"v_subrev_u32 v{v_ka}, s{s_slot}, v{v_ka}")
    a(f"v_subrev_u32 v{v_va}, s{s_slot}, v{v_va}")
    a(f"v_mov_b32 v{VT}, 0xff800000")
    for r in range(O, O + 16): a(f"v_mov_b32 v{r}, 0")
    a(f"s_mov_b32 s{s_kvg}, {WS_KV}")
    def ldk():
        for i in range(3): a(f"buffer_load_dwordx4 {vr(k0+4*i,4)}, v{v_ka}, {WS}, s{s_kvg} offen offset:{1024*i} sc1")
    def qk(b):
        S = (S0, S1)[b]
        mf(a, S, k0 + 4 * b, Q1, "0"); mf8(a, S, k0 + 8 + 2 * b, Q2)
    def nxt(lbl):
        a(f"s_add_u32 s{s_kvg}, s{s_kvg}, {PAIR}")
        a(f"s_cmp_lt_u32 s{s_kvg}, {WS_KV + 32*PAIR}")
        a(f"s_cbranch_scc1 {lbl}")
    a.label("B_fb1")
    st = a.mark()
    ldk()
    a("s_waitcnt vmcnt(0)")
    qk(0); qk(1)
    for i in range(0, 32, 2): a(f"v_max3_f32 v{VT}, v{VT}, v{S0+i}, v{S0+i+1}")
    nxt("B_fb1")
    a.check_backedge(st)
    a(f"v_mov_b32 v{VT+1}, v{VT}")
    a(f"v_permlane32_swap_b32 v{VT}, v{VT+1}")
    a(f"v_max_f32 v{VT}, v{VT}, v{VT+1}")
    a(f"s_mov_b32 s{s_kvg}, {WS_KV}")
    a.label("B_fb2")
    st = a.mark()
    ldk()
    for i in range(4): a(f"buffer_load_dwordx4 {vr(k0+12+4*i,4)}, v{v_va}, {WS}, s{s_kvg} offen offset:{768*i} sc1")
    a("s_waitcnt vmcnt(0)")
    qk(0); qk(1)
    for b in range(2):
        S = (S0, S1)[b]
        for i in range(16): a(f"v_sub_f32 v{S+i}, v{S+i}, v{VT}")
        for i in range(16): a(f"v_exp_f32 v{S+i}, v{S+i}")
        for i in range(8): a(f"v_cvt_pk_bf16_f32 v{P0+i}, v{S+2*i}, v{S+2*i+1}")
        mf(a, O, k0 + 12 + 8 * b, P0, O); mf(a, O, k0 + 16 + 8 * b, P1, O)
    nxt("B_fb2")
    a.check_backedge(st)
    a(f"v_mov_b32 v{VT}, v{O+8}")
    a(f"v_mov_b32 v{VT+1}, v{O+8}")
    a(f"v_permlane32_swap_b32 v{VT}, v{VT+1}")
    a("s_nop 1")
    a("s_branch B_norm")

def gemm(a):
    global stamp
    decode_b(a)
    a(f"s_sub_u32 s{s_w}, s{s_w}, 8")
    srd(a, SW2, 56, 1728 * 1280)
    srd(a, SWO, 58, 640 * 1280)
    srd(a, SOUT, 60, 2048 * 1280)
    g = GW(a, 27, 4, 10, STG, PART, SW2, SWS, s_gw)
    v_wd2 = g.v_end
    v_wa2, vfl = 11, v_wd2 + 5
    vx = v_wd2 + 6
    s_kw, s_ka, s_w0, s_a0 = 50, 51, 54, 55
    a(f"s_mul_i32 s{s_base}, s{s_tt}, {QH_TT}")
    a(f"s_add_u32 s{s_base}, s{s_base}, {WS_QH + 40*1024}")
    g.setup(s_w, s_hg, s_base)
    a(f"s_mov_b32 s{s_w0}, s{g.s_woff}")
    a(f"s_mov_b32 s{s_a0}, s{g.s_aoff}")
    a(f"s_lshr_b32 s{s_kw}, s2, 3")
    a(f"s_mul_i32 s{s_kw}, s{s_kw}, {GROT}")
    a(f"s_mul_i32 s{s_t0}, s{s_kw}, 2428")
    a(f"s_lshr_b32 s{s_t0}, s{s_t0}, 16")
    a(f"s_mul_i32 s{s_t0}, s{s_t0}, 27")
    a(f"s_sub_u32 s{s_kw}, s{s_kw}, s{s_t0}")
    a(f"s_mov_b32 s{s_ka}, s{s_kw}")
    ALT = {31: 2 * CH, 32: 0}
    def wslot(i): return (i if i < 31 else i - 2) % 4
    def bump(r):
        a(f"s_add_u32 s{r}, s{r}, 1")
        a(f"s_cmp_eq_u32 s{r}, 27")
        a(f"s_cselect_b32 s{r}, 0, s{r}")
    def load_w(i):
        if i > 36: return
        vd = g.v_wd
        if i < 27:
            S = f"s[{SW2}:{SW2+3}]"
            a(f"s_mul_i32 s{g.s_woff}, s{s_kw}, {16*1280}")
            a(f"s_add_u32 s{g.s_woff}, s{g.s_woff}, s{s_w0}")
            bump(s_kw)
        else:
            S = f"s[{SWO}:{SWO+3}]"
            j = i - 27
            row = 20 * j if j < 8 else 80 * (j - 8) + 16
            if j >= 8: vd = v_wd2
            a(f"s_add_u32 s{g.s_woff}, s{s_woff2}, {row*1280}")
        if i in ALT:
            a(f"s_mul_i32 s{s_t0}, s{s_w}, 5120")
            a(f"s_add_u32 m0, s{s_t0}, {KVB + ALT[i]}")
        else: a(f"s_add_u32 m0, s{g.s_lds}, {wslot(i)*5120}")
        for m in range(4):
            a(f"buffer_load_dwordx4 v{vd+m}, {S}, s{g.s_woff} offen offset:{m*1024} lds"); g.vm.issue(("W", i))
        a(f"s_add_u32 m0, m0, 4096")
        a(f"buffer_load_dwordx4 v{vd+4}, {S}, s{g.s_woff} offen lds"); g.vm.issue(("W", i))
    def areg(i): return g.v_act + 4 * ((i % 10) if i < 27 else i - 27)
    def load_a(i):
        a(f"s_lshl_b32 s{g.s_aoff}, s{s_ka}, 10")
        a(f"s_add_u32 s{g.s_aoff}, s{g.s_aoff}, s{s_a0}")
        bump(s_ka)
        a(f"buffer_load_dwordx4 {vr(areg(i),4)}, v{g.v_l16}, {WS}, s{g.s_aoff} offen sc1"); g.vm.issue(("A", i))
    def rd_t(i, T):
        base, off = (v_wa2, ALT[i]) if i in ALT else (g.v_wa, wslot(i) * 5120)
        for p in range(2):
            a(f"ds_read_b64_tr_b16 {vr(g.v_wf+4*T+2*p,2)}, v{base} offset:{off + T*64 + p*2560}"); g.lg.issue((i, T))
    def rd_w(i):
        g.vm.wait(("W", i))
        for T in range(5): rd_t(i, T)
    def mm(i, nxt=None):
        g.vm.wait(("A", i), ("W", nxt))
        for T in range(5):
            g.lg.wait((i, T))
            acc = vr(g.v_acc + 16 * T, 16)
            a(f"v_mfma_f32_32x32x16_bf16 {acc}, {vr(g.v_wf+4*T,4)}, {vr(areg(i),4)}, {acc if i else 0}")
            if nxt is not None: rd_t(nxt, T)
    g.setup2()
    a(f"s_mul_i32 s{s_t0}, s{s_w}, 5120")
    a(f"s_sub_u32 s{s_t0}, s{s_t0}, s{g.s_lds}")
    a(f"s_add_u32 s{s_t0}, s{s_t0}, {KVB}")
    a(f"v_add_u32 v{v_wa2}, s{s_t0}, v{g.v_wa}")
    for m in range(5):
        a(f"v_add_u32 v1, {64*m}, v0")
        a(f"v_mul_u32_u24 v2, 0xcccd, v1")
        a(f"v_lshrrev_b32 v2, 22, v2")
        a(f"v_mul_u32_u24 v2, {16*1280}, v2")
        a(f"v_add_u32 v{v_wd2+m}, v2, v{g.v_wd+m}")
    a(f"s_lshr_b32 s{s_t0}, s{s_tt}, 2")
    a(f"v_mov_b32 v1, s{s_t0}")
    flag_off(a, vfl, 1, 0, 2)
    a(f"s_mul_i32 s{s_woff2}, s{s_w}, {160*1280}")
    a(f"s_mul_i32 s{s_t0}, s{s_hg}, 320")
    a(f"s_add_u32 s{s_woff2}, s{s_woff2}, s{s_t0}")
    lds_wait(a, "G_wait", SC_CNT + 8, 12, 2, s_spin, s_t0, 2)
    a("s_cmp_eq_u32 s53, -1")
    a("s_cbranch_scc1 G_noh")
    for k in range(12):
        if k in (4, 10): a("s_add_u32 s53, s53, 4096")
        if k == 6: a(f"s_add_u32 s53, s53, {QH_TT - 4096}")
        a(f"buffer_store_dwordx4 {vr(72+4*k,4)}, v{g.v_l16}, {WS}, s53 offen offset:{(k % 6 % 4)*1024} sc1")
    stamp(a, 3)
    publish(a, "G_pub", 0, 4, 3, WS_FL, 1)
    stamp(a, 4)
    a.label("G_noh")
    for i in range(4): load_w(i)
    a(f"s_setprio {GPRIO}")
    stamp(a, 8)
    a("s_mov_b32 exec_lo, 0x1ff")
    a("s_mov_b32 exec_hi, 0")
    poll(a, "G_pollh", f"buffer_load_dword v2, v{vfl}, {WS}, 0 offen sc1", "v_cmp_gt_u32 vcc, 1, v2", 4)
    a("s_mov_b64 exec, -1")
    g.vm.q = []
    stamp(a, 9)
    if STAMP: a("s_waitcnt lgkmcnt(0)")
    for i in range(5): load_a(i)
    for i in range(27):
        if i % 5 == 0:
            for k in range(i + 5, min(i + 10, 27)): load_a(k)
        if DEFER and i == 27 - DEFER:
            break
        if "nomm" not in GX: rd_w(i); mm(i)
        if "nold" not in GX or i + 4 >= 27: load_w(i + 4)
        if i in (4, 13, 22):
            stamp(a, {4: 10, 13: 11, 22: 12}[i])
            if STAMP: a("s_waitcnt lgkmcnt(0)")
    lds_wait(a, "G_alt0", SC_K, 56, 2, s_spin, s_t0, 4)
    load_w(31)
    lds_wait(a, "G_alt1", SC_K, 64, 2, s_spin, s_t0, 4)
    load_w(32)
    if DEFER:
        lds_wait(a, "G_defer", SC_CNT + 16, DEFW, 2, s_spin, s_t0, 2)
        a("s_setprio 3")
        for i in range(27 - DEFER, 27):
            rd_w(i); mm(i); load_w(i + 4)
    vo = vfl
    a(f"s_mul_i32 s{s_base}, s{s_tt}, {32*1280}")
    a(f"s_mul_i32 s{s_t0}, s{s_hg}, 320")
    a(f"s_add_u32 s{s_base}, s{s_base}, s{s_t0}")
    a(f"s_lshl_b32 s{s_t0}, s{s_w}, 4")
    a(f"s_add_u32 s{s_base}, s{s_base}, s{s_t0}")
    a(f"v_and_b32 v1, 31, v0")
    a(f"v_mul_u32_u24 v{vo}, 1280, v1")
    a(f"v_lshrrev_b32 v2, 5, v0")
    a(f"v_lshl_add_u32 v{vo}, v2, 3, v{vo}")
    for T in range(5):
        a(f"buffer_load_dwordx2 {vr(vx+2*T,2)}, v{vo}, s[{SX}:{SX+3}], s{s_base} offen offset:{64*T}")
    rd_w(27)
    a(f"v_mul_u32_u24 v3, 1280, v2")
    a(f"v_lshl_add_u32 v3, v1, 3, v3")
    a(f"s_lshl_b32 s{s_t0}, s{s_tt}, 2")
    a(f"s_add_u32 s{s_t0}, s{s_t0}, s{s_w}")
    a(f"s_mul_i32 s{g.s_aoff}, s{s_t0}, 10240")
    a(f"s_add_u32 s{g.s_aoff}, s{g.s_aoff}, {WS_O}")
    a(f"s_add_u32 s{s_a0}, s{g.s_aoff}, 5120")
    a(f"s_lshl_b32 s{s_t0}, s{s_t0}, 7")
    a(f"s_add_u32 s{s_t0}, s{s_t0}, {WS_FL + 32768}")
    a(f"v_mov_b32 v1, s{s_t0}")
    g.lg.drain()
    load_w(33)
    a("s_mov_b64 exec, 1")
    poll(a, "G_pollo", f"buffer_load_dword v2, v1, {WS}, 0 offen sc1", "v_cmp_gt_u32 vcc, 1, v2", 2)
    a("s_mov_b64 exec, -1")
    g.vm.q = []
    a("s_setprio 3")
    stamp(a, 13)
    if STAMP: a("s_waitcnt lgkmcnt(0)")
    for j in range(8):
        so = g.s_aoff if j < 4 else s_a0
        a(f"buffer_load_dwordx4 {vr(areg(27+j),4)}, v{g.v_l16}, {WS}, s{so} offen offset:{(j%4)*1280} sc1"); g.vm.issue(("A", 27 + j))
    for m in range(2):
        so = g.s_aoff if m == 0 else s_a0
        for j in range(2):
            a(f"buffer_load_dwordx2 {vr(areg(35+m)+2*j,2)}, v3, {WS}, s{so} offen offset:{1024+2560*j} sc1"); g.vm.issue(("A", 35 + m))
    for i in range(27, 37):
        mm(i, i + 1 if i < 36 else None)
        if 28 <= i <= 30: load_w(i + 6)
    stamp(a, 14)
    a(f"v_add_u32 v1, s{g.s_lds}, v{g.v_l16}")
    a(f"s_mul_i32 s{s_t0}, s{s_w}, 5120")
    a(f"s_add_u32 s{s_t0}, s{s_t0}, {STG}")
    a(f"v_add_u32 v2, s{s_t0}, v{g.v_l16}")
    for T in range(5):
        for q in range(4):
            a(f"ds_write_b128 v1, {vr(g.v_acc+16*T+4*q,4)} offset:{q*5120+T*1024}")
    xf = g.v_act
    for T in range(5):
        a(f"v_lshlrev_b32 v{xf+4*T}, 16, v{vx+2*T}")
        a(f"v_and_b32 v{xf+4*T+1}, 0xffff0000, v{vx+2*T}")
        a(f"v_lshlrev_b32 v{xf+4*T+2}, 16, v{vx+2*T+1}")
        a(f"v_and_b32 v{xf+4*T+3}, 0xffff0000, v{vx+2*T+1}")
    a("s_waitcnt lgkmcnt(0)")
    a("s_barrier")
    a(f"v_add_u32 v1, {2*PART}, v2")
    for T in range(5):
        for sidx in range(4):
            a(f"ds_read_b128 {vr(g.v_acc+16*T+4*sidx,4)}, v{2 if sidx < 2 else 1} offset:{(sidx%2)*PART+T*1024}"); g.lg.issue(T)
        if T >= 2: fin_tile(a, g, T - 2, xf, vo)
    fin_tile(a, g, 3, xf, vo); fin_tile(a, g, 4, xf, vo)
    if STAMP:
        a("s_waitcnt vmcnt(0)"); stamp(a, 7); stamp(a, 15, True)
        a(f"s_add_u32 s{s_w}, s{s_w}, 8")
        stamp_flush(a, 1, SWS, s_w, 12, 16, gsel=[(9, False), (10, False), (12, False), (13, False), (14, False), (15, False)], goff=8)
    a("s_endpgm")
    return vx + 10

def fin_tile(a, g, T, xf, vo):
    b = g.v_acc + 16 * T
    g.lg.wait(T)
    for h in range(2):
        a(f"v_pk_add_f32 {vr(b+2*h,2)}, {vr(b+2*h,2)}, {vr(b+4+2*h,2)}")
        a(f"v_pk_add_f32 {vr(b+8+2*h,2)}, {vr(b+8+2*h,2)}, {vr(b+12+2*h,2)}")
    for h in range(2):
        a(f"v_pk_add_f32 {vr(b+2*h,2)}, {vr(b+2*h,2)}, {vr(xf+4*T+2*h,2)}")
    for h in range(2):
        a(f"v_pk_add_f32 {vr(b+2*h,2)}, {vr(b+2*h,2)}, {vr(b+8+2*h,2)}")
    a(f"v_cvt_pk_bf16_f32 v{b}, v{b}, v{b+1}")
    a(f"v_cvt_pk_bf16_f32 v{b+1}, v{b+2}, v{b+3}")
    a(f"buffer_store_dwordx2 {vr(b,2)}, v{vo}, s[{SOUT}:{SOUT+3}], s{s_base} offen offset:{64*T}")

def gen_f(a, name="parallel_sum__grouped_kv_mqa__dense_activation_relu__prompt_kernel"):
    kernel_header(a, name)
    a("s_cmp_ge_u32 s2, 256")
    a("s_cbranch_scc1 F_end")
    stamp(a, 0, True); stamp(a, 1)
    if STAMP == 3: a("s_mov_b32 s72, 0")
    def clear_cnt(a):
        a("v_lshlrev_b32 v1, 2, v0")
        a(f"v_add_u32 v1, {SC_CNT}, v1")
        a("v_mov_b32 v2, 0")
        a("ds_write_b32 v1, v2")
        a("ds_write_b32 v1, v2 offset:256")
        a("s_waitcnt lgkmcnt(0)")
    def start_hook(a):
        clear_cnt(a)
        attn_addr(a)
    def pre_ba(a): attn_addr(a)
    def done_help(a): a("s_branch F_fetch")
    def done_stats(a): a("s_branch F_dry" if DRY else "s_branch F_attn")
    def done_comp(a): a("s_branch F_pub")
    def spare(a):
        ka2.produce_stats(a)
        clear_cnt(a)
        attn_addr(a)
        a(f"s_cmp_lg_u32 s{s_w}, 0")
        a("s_cbranch_scc1 F_sp1")
        ka2.dbg_check(a, "F_dbg")
        a.label("F_sp1")
        a("s_barrier")
        a(f"s_cmp_ge_u32 s{s_w}, 8")
        a("s_cbranch_scc1 F_gemm0")
        a(f"s_cmp_ge_u32 s{s_w}, 4")
        a("s_cbranch_scc1 F_dry" if DRY else "s_cbranch_scc1 F_attn")
    phase_a(a, done_help, done_stats, done_comp, spare, start_hook, pre_ba)
    a.label("F_fetch")
    fetch(a)
    a.label("F_attn")
    attention(a)
    if DRY:
        a.label("F_dry")
        a(f"s_cmp_eq_u32 s{s_w}, 4")
        a("s_cbranch_scc1 F_attn")
        a("s_mov_b64 exec, 0")
        a(f"s_mov_b32 s{s_c}, 7")
        a(f"s_cmp_eq_u32 s{s_w}, 5")
        a("s_cbranch_scc1 B_loop")
        a(f"s_cmp_eq_u32 s{s_w}, 6")
        a("s_cbranch_scc1 B_u3")
        a("s_branch B_nodma")
        a.label("F_dryret")
        a("s_mov_b64 exec, -1")
        a("s_nop 7")
        a("s_nop 7")
        a("s_branch F_attn")
    a.label("F_pub")
    stamp(a, 3)
    publish(a, "F_pub2", 0, 4, 3, WS_FL, 1)
    stamp(a, 4)
    lds_wait(a, "F_all", SC_CNT, 4, 2, s_spin, s_t0)
    a.label("F_gemm0")
    a("s_mov_b32 s53, -1")
    a.label("F_gemm")
    nv = gemm(a)
    a.label("F_end")
    a("s_endpgm")
    assert nv <= 168, nv
    return dict(name=name, grid=256, block=768, lds=LDS_A, vgpr=168, sgpr=102 if STAMP else 64, single=True)
```

```python
from common import *

SLOT = 40960
LA = int(os.environ.get('LA', '2'))
SCR = 157696
SC_NM, SC_RS, SC_CS = SCR, SCR + 512, SCR + 1024
LDS_A = SCR + 4096
SC_CNT = SCR + 3072
ST = ' sc1'
ROT = int(os.environ.get('ROT', '0'))
NSB = 0
GATH = int(os.environ.get('GATH', '8'))
PD = int(os.environ.get('PD', '3'))
GMAP = [int(c, 16) for c in os.environ.get('GMAP', '9aefb012c345d678')]
GD = int(os.environ.get('GD', '5'))
SDOT = int(os.environ.get('SDOT', '3'))
HOLDH = int(os.environ.get('HOLDH', '1'))
LATEBIT = os.environ.get('LATEBIT', '1')
AX = os.environ.get('AX', '')
PF = int(os.environ.get('PF', '0'))

SX, SW, SO, SW2 = 4, 8, 12, 16
s_w, s_rb, s_g = 32, 33, 34
s_it, s_slot, s_xoff, s_woff, s_wstep = 35, 36, 37, 38, 39
s_m0x, s_m0w, s_delta, s_relu, s_scale, s_t0, s_t1, s_out, s_dslot, s_cslot, s_ch, s_xbase, s_stride, s_col = range(40, 54)
s_tab = 54

ROLES = {
    "h": (3, 384, 3), "q": (2, 256, 2), "kv": (1, 64, 1)}

def w_read_addr(a, role, dst, s_half, tmp=1):
    NTW, RB, _ = ROLES[role]
    t = tmp
    a(f"v_lshrrev_b32 v{t}, 5, v0")
    a(f"v_bfe_u32 v{t+1}, v0, 2, 2")
    a(f"v_lshl_add_u32 v{t}, v{t}, 3, v{t+1}")
    a(f"v_mul_u32_u24 v{t}, {RB}, v{t}")
    a(f"v_bfe_u32 v{t+2}, v0, 4, 1")
    a(f"v_lshl_add_u32 v{t}, v{t+2}, 5, v{t}")
    a(f"v_and_b32 v{t+2}, 3, v0")
    a(f"v_lshl_add_u32 v{t}, v{t+2}, 3, v{t}")
    a(f"v_add_u32 v{t}, {16384 + LA*SLOT}, v{t}")
    if role == "kv":
        a(f"s_lshl_b32 s{s_t0}, s{s_half}, 12")
        a(f"v_add_u32 v{dst}, s{s_t0}, v{t}")
        return
    if role == "h": a(f"v_lshrrev_b32 v{t+1}, 1, v{t+1}")
    a(f"s_mul_i32 s{s_t0}, s{s_half}, {NTW}")
    for T in range(NTW):
        a(f"s_add_u32 s{s_t1}, s{s_t0}, {T}")
        a(f"v_xor_b32 v{t+2}, s{s_t1}, v{t+1}")
        a(f"v_lshl_add_u32 v{dst+T}, v{t+2}, 6, v{t}")

def slot_advance(regs):
    L = [f"s_cmp_eq_u32 s{s_slot}, {LA*SLOT}",
         f"s_cselect_b32 s{s_delta}, {(-LA*SLOT) & 0xffffffff}, s{s_cslot}",
         f"s_add_u32 s{s_slot}, s{s_slot}, s{s_delta}"]
    return L + [f"v_add_u32 v{r}, s{s_delta}, v{r}" for r in regs]

def loader(a, role, done, pre_ba=None):
    NTW, RB, NW = ROLES[role]
    NW *= 2
    ND = 4 + NW
    v_xd, v_wd = 4, 8
    a(f"v_lshrrev_b32 v1, 3, v0")
    a(f"s_lshl_b32 s{s_t0}, s{s_w}, 5")
    a(f"v_add_u32 v1, s{s_t0}, v1")
    a(f"v_mul_u32_u24 v1, 1280, v1")
    a(f"v_and_b32 v2, 7, v0")
    a(f"v_lshrrev_b32 v3, 4, v0")
    a(f"v_xor_b32 v2, v2, v3")
    a(f"v_lshl_add_u32 v{v_xd}, v2, 4, v1")
    a(f"v_xor_b32 v2, 4, v2")
    a(f"v_lshl_add_u32 v{v_xd+1}, v2, 4, v1")
    a(f"v_add_u32 v{v_xd+1}, {10240-1024}, v{v_xd+1}")
    a(f"v_add_u32 v{v_xd+2}, {2*(10240-1024)}, v{v_xd}")
    a(f"v_add_u32 v{v_xd+3}, {2*(10240-1024)}, v{v_xd+1}")
    a(f"s_lshl_b32 s{s_m0x}, s{s_w}, 12")
    def dma_x():
        a(f"s_and_b32 s{s_ch}, s{s_tab}, 15")
        a(f"s_lshr_b64 s[{s_tab}:{s_tab+1}], s[{s_tab}:{s_tab+1}], 4")
        a(f"s_lshl_b32 s{s_xoff}, s{s_ch}, 7")
        a(f"s_add_u32 s{s_xoff}, s{s_xoff}, s{s_xbase}")
        a(f"s_add_u32 m0, s{s_dslot}, s{s_m0x}")
        a(f"s_mul_i32 s{s_woff}, s{s_ch}, s{s_wstep}")
        for e in range(4):
            a(f"buffer_load_dwordx4 v{v_xd+e}, s[{SX}:{SX+3}], s{s_xoff} offen offset:{e*1024} lds")
    def dma_w():
        a(f"s_add_u32 m0, s{s_dslot}, s{s_m0w}")
        if role == "kv":
            a(f"buffer_load_dwordx4 v{v_wd}, s[{SW}:{SW+3}], s{s_woff} offen lds")
            a(f"s_add_u32 m0, m0, 4096")
            a(f"buffer_load_dwordx4 v{v_wd}, s[{SW2}:{SW2+3}], s{s_woff} offen lds")
        else:
            for m in range(NW):
                if m == 4: a(f"s_add_u32 m0, m0, 4096")
                a(f"buffer_load_dwordx4 v{v_wd+m}, s[{SW}:{SW+3}], s{s_woff} offen offset:{(m%4)*1024} lds")
    a(f"s_mov_b32 s{s_dslot}, 0")
    dma_x()
    if role == "kv":
        a(f"s_lshl_b32 s{s_m0w}, s{s_w}, 10")
        a(f"s_add_u32 s{s_m0w}, s{s_m0w}, 16384")
        a(f"v_lshrrev_b32 v1, 2, v0")
        a(f"s_lshl_b32 s{s_t0}, s{s_w}, 4")
        a(f"v_add_u32 v1, s{s_t0}, v1")
        a(f"v_mul_u32_u24 v1, 40, v1")
        a(f"v_and_b32 v2, 3, v0")
        a(f"v_lshl_add_u32 v{v_wd}, v2, 4, v1")
    else:
        PR = RB // 16
        a(f"s_mul_i32 s{s_m0w}, s{s_w}, {NW*1024}")
        a(f"s_add_u32 s{s_m0w}, s{s_m0w}, 16384")
        a(f"s_lshl_b32 s{s_t0}, s{s_w}, 4")
        a(f"s_mul_i32 s{s_t0}, s{s_t0}, s{s_stride}")
        a(f"s_add_u32 s{s_t0}, s{s_t0}, s{s_col}")
        for m in range(NW // 2):
            a(f"v_add_u32 v1, {64*m}, v0")
            if PR == 16:
                a(f"v_lshrrev_b32 v2, 4, v1")
                a(f"v_and_b32 v3, 15, v1")
                a(f"v_and_b32 v1, 3, v2")
            else:
                a(f"v_mul_u32_u24 v2, 0xaaab, v1")
                a(f"v_lshrrev_b32 v2, 20, v2")
                a(f"v_mul_u32_u24 v3, 24, v2")
                a(f"v_sub_u32 v3, v1, v3")
                a(f"v_bfe_u32 v1, v2, 1, 1")
            a(f"v_lshlrev_b32 v1, 2, v1")
            a(f"v_xor_b32 v3, v3, v1")
            a(f"v_mul_lo_u32 v2, v2, s{s_stride}")
            a(f"v_lshl_add_u32 v2, v3, 4, v2")
            a(f"v_add_u32 v{v_wd+m}, s{s_t0}, v2")
        stride = 3456 if role == "h" else 1280
        for m in range(NW // 2, NW):
            a(f"v_add_u32 v{v_wd+m}, {8*stride - (m%4)*1024}, v{v_wd+m-NW//2}")
        for m in range(1, NW // 2): a(f"v_subrev_u32 v{v_wd+m}, {m*1024}, v{v_wd+m}")
    dma_w()
    for c in range(1, LA):
        a(f"s_mov_b32 s{s_dslot}, {c*SLOT}")
        dma_x(); dma_w()
    stamp(a, 2)
    a(f"s_mov_b32 s{s_it}, 0")
    a(f"s_mov_b32 s{s_dslot}, {LA*SLOT}")
    a.label(f"AL_loop_{role}")
    a(f"s_waitcnt vmcnt({(LA-1)*ND})")
    a("s_barrier")
    if "nodma" not in AX: dma_x(); dma_w()
    a(f"s_add_u32 s{s_dslot}, s{s_dslot}, s{s_cslot}")
    a(f"s_cmp_eq_u32 s{s_dslot}, {(LA+1)*SLOT}")
    a(f"s_cselect_b32 s{s_dslot}, 0, s{s_dslot}")
    a(f"s_add_u32 s{s_it}, s{s_it}, 1")
    a(f"s_cmp_lt_u32 s{s_it}, {10-LA}")
    a(f"s_cbranch_scc1 AL_loop_{role}")
    for k in range(LA):
        if k == LA - 1 and pre_ba: pre_ba(a)
        a(f"s_waitcnt vmcnt({(LA-1-k)*ND})")
        a("s_barrier")
    stamp(a, 3)
    done(a)

SDBG = 16
def dbg_check(a, name, between=None):
    srd(a, SDBG, 62, 256)
    a("v_lshlrev_b32 v1, 2, v0")
    a("s_mov_b32 exec_lo, 0xffff")
    a("s_mov_b32 exec_hi, 0")
    poll(a, name, f"buffer_load_dword v2, v1, s[{SDBG}:{SDBG+3}], 0 offen sc1", "v_cmp_ne_u32 vcc, 1, v2", 8, between=between)
    a("s_mov_b64 exec, -1")

def idle(a, done):
    a(f"s_cmp_eq_u32 s{s_w}, 4")
    a("s_cbranch_scc1 AI_w4")
    for it in range(10):
        a("s_barrier")
        if it in (0, 4): stamp(a, {0: 4, 4: 6}[it])
    done(a)
    a.label("AI_w4")
    a("s_setprio 3")
    bar = lambda: a("s_barrier")
    for it in range(GD): bar()
    dbg_check(a, "AI_dbg", bar)
    for it in range(GD + 1, GATH): bar()
    a(f"s_lshl_b32 s{s_t0}, s{s_rb}, 10")
    a(f"s_add_u32 s{s_t0}, s{s_t0}, {WS_STAT}")
    a(f"v_lshlrev_b32 v1, 3, v0")
    O = f"s[{SO}:{SO+3}]"
    poll(a, "AI_stat", f"buffer_load_dwordx2 v[4:5], v1, {O}, s{s_t0} offen sc1\nbuffer_load_dwordx2 v[6:7], v1, {O}, s{s_t0} offen offset:512 sc1",
         "v_min_u32 v2, v5, v7\nv_cmp_eq_u32 vcc, 0, v2", 2, between=bar)
    a(f"v_lshlrev_b32 v1, 2, v0")
    a(f"v_add_u32 v1, {SC_NM}, v1")
    a(f"v_mul_f32 v5, s{s_scale}, v5")
    a(f"v_mul_f32 v7, s{s_scale}, v7")
    a(f"ds_write_b32 v1, v4")
    a(f"ds_write_b32 v1, v6 offset:256")
    a(f"ds_write_b32 v1, v5 offset:512")
    a(f"ds_write_b32 v1, v7 offset:768")
    a("s_waitcnt lgkmcnt(0)")
    stamp(a, 3); stamp(a, 4); stamp(a, 6)
    for it in range(GATH + 1, 10): bar()
    a("s_setprio 0")
    done(a)

def clear_words(a):
    O = f"s[{SO}:{SO+3}]"
    for r in range(4, 8): a(f"v_mov_b32 v{r}, 0")
    a(f"v_lshlrev_b32 v1, 4, v0")
    a(f"s_lshl_b32 s{s_t0}, s{s_rb}, 10")
    a(f"s_add_u32 s{s_t0}, s{s_t0}, {WS_STAT}")
    a(f"buffer_store_dwordx4 v[4:7], v1, {O}, s{s_t0} offen sc1")
    a(f"v_lshlrev_b32 v1, 7, v0")
    a(f"s_lshl_b32 s{s_t0}, s{s_rb}, 12")
    a(f"s_add_u32 s{s_t0}, s{s_t0}, {WS_FL}")
    a("s_mov_b32 exec_hi, 0")
    a(f"buffer_store_dword v4, v1, {O}, s{s_t0} offen sc1")
    srd(a, SDBG, 62, 256)
    a(f"v_mov_b32 v3, 1")
    a(f"s_lshl_b32 s{s_t0}, s{s_rb}, 2")
    stamp(a, 5)
    a("s_waitcnt vmcnt(0)")
    stamp(a, 6)
    a("s_mov_b64 exec, 1")
    a(f"buffer_store_dword v3, v4, s[{SDBG}:{SDBG+3}], s{s_t0} offen sc1")
    a("s_mov_b64 exec, -1")
    if STAMP: a("s_waitcnt vmcnt(0)")
    stamp(a, 3)

def produce_stats(a):
    O = f"s[{SO}:{SO+3}]"
    a(f"s_cmp_ge_u32 s{s_w}, 8")
    a("s_cbranch_scc1 AP_clear")
    a(f"v_lshrrev_b32 v1, 3, v0")
    a(f"s_lshl_b32 s{s_t0}, s{s_w}, 4")
    a(f"v_add_u32 v1, s{s_t0}, v1")
    a(f"v_mul_u32_u24 v1, 1280, v1")
    a(f"v_and_b32 v2, 7, v0")
    a(f"v_lshl_add_u32 v1, v2, 4, v1")
    a(f"s_add_u32 s{s_t0}, s{s_xbase}, 10240")
    XR, AS = 16, 8
    def ld(c):
        for e in range(2):
            a(f"buffer_load_dwordx4 {vr(XR+8*c+4*e,4)}, v1, s[{SX}:{SX+3}], s{s_t0 if e else s_xbase} offen offset:{128*c}")
    for c in range(PD): ld(c)
    a(f"s_mov_b32 s{s_relu}, 0x3f803f80")
    for r in range(AS, AS + 8): a(f"v_mov_b32 v{r}, 0")
    for c in range(10):
        a(f"s_waitcnt vmcnt({2*(min(c+PD, 10)-c-1)})")
        if c + PD < 10: ld(c + PD)
        for e in range(2):
            for i in range(4):
                x = XR + 8 * c + 4 * e + i
                a(f"v_dot2c_f32_bf16 v{AS+2*e+(i&1)}, s{s_relu}, v{x}")
                a(f"v_dot2c_f32_bf16 v{AS+4+2*e+(i&1)}, v{x}, v{x}")
    vals = [AS, AS + 2, AS + 4, AS + 6]
    for r in vals: a(f"v_add_f32 v{r}, v{r}, v{r+1}")
    for ctl in ("quad_perm:[1,0,3,2]", "quad_perm:[2,3,0,1]", "row_half_mirror"):
        for r in vals: a(f"v_add_f32_dpp v{r}, v{r}, v{r} {ctl} row_mask:0xf bank_mask:0xf")
    a(f"v_and_b32 v2, 1, v0")
    a(f"v_cmp_eq_u32 vcc, 1, v2")
    a(f"v_cndmask_b32 v4, v{AS}, v{AS+2}, vcc")
    a(f"v_cndmask_b32 v5, v{AS+4}, v{AS+6}, vcc")
    inv = f32bits(1.0 / 640.0)
    a(f"v_mul_f32 v4, {hex(inv)}, v4")
    a(f"v_mul_f32 v5, {hex(inv)}, v5")
    a(f"v_fma_f32 v5, -v4, v4, v5")
    a(f"v_max_f32 v5, 0, v5")
    a(f"v_cvt_pk_bf16_f32 v5, v5, v5")
    a(f"v_lshlrev_b32 v5, 16, v5")
    a(f"v_add_f32 v5, {hex(f32bits(1e-5))}, v5")
    a(f"v_cvt_pk_bf16_f32 v5, v5, v5")
    a(f"v_lshlrev_b32 v5, 16, v5")
    a(f"v_sqrt_f32 v5, v5")
    a(f"v_cvt_pk_bf16_f32 v5, v5, v5")
    a(f"v_lshlrev_b32 v5, 16, v5")
    a(f"v_rcp_f32 v5, v5")
    a(f"v_cvt_pk_bf16_f32 v4, -v4, -v4")
    a(f"v_lshrrev_b32 v1, 3, v0")
    a(f"v_lshl_add_u32 v1, v2, 3, v1")
    a(f"v_lshlrev_b32 v1, 3, v1")
    a(f"v_or_b32 v5, 1, v5")
    a(f"s_lshl_b32 s{s_t0}, s{s_rb}, 10")
    a(f"s_lshl_b32 s{s_t1}, s{s_w}, 7")
    a(f"s_add_u32 s{s_t0}, s{s_t0}, s{s_t1}")
    a(f"s_add_u32 s{s_t0}, s{s_t0}, {WS_STAT}")
    a("s_barrier")
    a("s_mov_b32 exec_lo, 0x03030303")
    a("s_mov_b32 exec_hi, 0x03030303")
    a(f"buffer_store_dwordx2 v[4:5], v1, {O}, s{s_t0} offen sc1")
    a("s_mov_b64 exec, -1")
    stamp(a, 3)
    a("s_branch AP_done")
    a.label("AP_clear")
    a.label("AP_bar")
    a("s_barrier")
    a.label("AP_done")

def prefetch(a, role):
    NTW, RB, _ = ROLES[role]
    c = s_t1
    a(f"s_sub_u32 s{c}, s{s_w}, 8")
    a(f"s_lshr_b32 s{s_t0}, s2, 6")
    a(f"s_lshl_b32 s{s_t0}, s{s_t0}, 2")
    a(f"s_add_u32 s{s_t0}, s{s_t0}, s{c}")
    a(f"s_mul_i32 s{s_t0}, s{s_t0}, {8*1280}")
    a(f"s_add_u32 s{s_t0}, s{s_t0}, s{s_xbase}")
    a(f"v_and_b32 v1, 7, v0")
    a(f"v_mul_u32_u24 v1, 1280, v1")
    a(f"v_lshrrev_b32 v2, 3, v0")
    a(f"v_lshl_add_u32 v3, v2, 7, v1")
    a(f"buffer_load_dword v5, v3, s[{SX}:{SX+3}], s{s_t0} offen offset:128")
    if role != "kv":
        NL = RB // 128
        a(f"v_mul_u32_u24 v2, {65536 // (2*NL) + 1}, v0")
        a(f"v_lshrrev_b32 v2, 16, v2")
        a(f"v_mul_u32_u24 v3, {2*NL}, v2")
        a(f"v_sub_u32 v3, v0, v3")
        a(f"v_and_b32 v4, 1, v3")
        a(f"v_lshrrev_b32 v3, 1, v3")
        a(f"v_lshl_add_u32 v2, v2, 6, v4")
        a(f"v_mul_lo_u32 v2, v2, s{s_stride}")
        a(f"v_lshl_add_u32 v2, v3, 7, v2")
        a(f"s_bfe_u32 s{s_t0}, s2, 0x30003")
        a(f"s_lshl_b32 s{s_t0}, s{s_t0}, 2")
        a(f"s_add_u32 s{s_t0}, s{s_t0}, s{c}")
        a(f"s_lshl_b32 s{s_t0}, s{s_t0}, 1")
        a(f"s_mul_i32 s{s_t0}, s{s_t0}, s{s_stride}")
        a(f"s_add_u32 s{s_delta}, s{s_t0}, s{s_col}")
        a(f"buffer_load_dword v7, v2, s[{SW}:{SW+3}], s{s_delta} offen")
    a(f"s_lshr_b32 s{s_t0}, s2, 6")
    a(f"s_lshl_b32 s{s_t0}, s{s_t0}, 2")
    a(f"s_add_u32 s{s_t0}, s{s_t0}, s{c}")
    a(f"s_mul_i32 s{s_t0}, s{s_t0}, {8*1280}")
    a(f"s_add_u32 s{s_t0}, s{s_t0}, s{s_xbase}")
    a(f"buffer_load_dword v15, v1, s[{SX}:{SX+3}], s{s_t0} offen offset:1152")

def compute(a, role, done, vmode=False):
    NTW, RB, _ = ROLES[role]
    tag = role + ("v" if vmode else "")
    v_xa, v_wa = 8, 12
    XF = [16, 36]; WF = [24, 44]
    SEL, CSA, ACC = 56, 60, 72
    lg = Cnt(a, "lgkmcnt", 15)
    s_rp, s_half = s_m0x, s_m0w
    if NSB: a("s_barrier")
    if PF: prefetch(a, role)
    for _ in range(NSB - 1): a("s_barrier")
    a(f"v_and_b32 v1, 31, v0")
    a(f"v_lshrrev_b32 v2, 5, v0")
    a(f"v_bfe_u32 v3, v0, 1, 3")
    a(f"v_xor_b32 v3, v3, v2")
    a(f"v_lshlrev_b32 v3, 4, v3")
    a(f"v_lshlrev_b32 v1, 7, v1")
    a(f"s_lshl_b32 s{s_t0}, s{s_rp}, 13")
    a(f"s_add_u32 s{s_t0}, s{s_t0}, {LA*SLOT}")
    a(f"v_add_u32 v1, s{s_t0}, v1")
    for j in range(4):
        a(f"v_xor_b32 v4, {j<<5}, v3")
        a(f"v_add_u32 v{v_xa+j}, v1, v4")
    w_read_addr(a, role, v_wa, s_half)
    a(f"v_lshrrev_b32 v1, 2, v0")
    a(f"v_lshrrev_b32 v2, 4, v0")
    a(f"v_xor_b32 v1, v1, v2")
    a(f"v_and_b32 v1, 1, v1")
    a(f"v_subrev_u32 v1, 1, v1")
    for i in range(4): a(f"v_and_b32 v{SEL+i}, 0x3f803f80, v1")
    for r in range(XF[1], WF[1] + 4 * NTW): a(f"v_mov_b32 v{r}, 0")
    z = vr(XF[1], 4)
    for t in range(2 * NTW): a(f"v_mfma_f32_32x32x16_bf16 {vr(ACC+16*t,16)}, {z}, {z}, 0")
    for T in range(NTW): a(f"v_mfma_f32_16x16x32_bf16 {vr(CSA+4*T,4)}, {z}, {z}, 0")
    a(f"s_mov_b32 s{s_it}, 0")
    a(f"s_mov_b32 s{s_slot}, {LA*SLOT}")
    def mfma(R, T, u):
        acc = vr(ACC + 16 * (R * NTW + T), 16); x = vr(XF[u] + 4 * R, 4); w = vr(WF[u] + 4 * T, 4)
        if vmode: a(f"v_mfma_f32_32x32x16_bf16 {acc}, {x}, {w}, {acc}")
        else: a(f"v_mfma_f32_32x32x16_bf16 {acc}, {w}, {x}, {acc}")
    def step(jn, u, cs, post=None, lo=0, hi=99):
        n = u ^ 1
        reads = []
        if jn is not None and "nord" not in AX:
            def rw(T):
                for p in range(2):
                    reads.append((f"ds_read_b64_tr_b16 {vr(WF[n]+4*T+2*p,2)}, v{v_wa+T} offset:{jn*16*RB+p*4*RB}", ("W", n, T)))
            reads.append((f"ds_read_b128 {vr(XF[n],4)}, v{v_xa+jn}", ("X", n, 0)))
            rw(0)
            reads.append((f"ds_read_b128 {vr(XF[n]+4,4)}, v{v_xa+jn} offset:4096", ("X", n, 1)))
            for T in range(1, NTW): rw(T)
        post = list(post or [])
        order = [(R, T) for T in range(NTW) for R in range(2)][lo:hi]
        per = 3 if post else 2
        for k, (R, T) in enumerate(order):
            last = k == len(order) - 1
            lg.wait(("X", u, R), ("W", u, T))
            mfma(R, T, u)
            room = 5
            for _ in range(99 if last else per):
                if reads:
                    t, g = reads.pop(0); a(t); lg.issue(g); room -= 1
            if not reads:
                while post and (room > 0 or last):
                    a(post.pop(0)); room -= 1
            if cs and R == 1 and 'nocs' not in AX:
                a(f"v_mfma_f32_16x16x32_bf16 {vr(CSA+4*T,4)}, {vr(SEL,4)}, {vr(WF[u]+4*T,4)}, {vr(CSA+4*T,4)}")
    stamp(a, 2)
    if STAMP: a("s_waitcnt lgkmcnt(0)")
    NM = 2 * NTW
    adv = slot_advance([v_xa, v_wa] + [v_wa + T for T in range(1, NTW)] + [v_xa + j for j in range(1, 4)])
    for t in adv: a(t)
    full = role != "h"
    if not full:
        a(f"s_cmp_eq_u32 s{s_rp}, 1")
        a(f"s_cbranch_scc1 AC_ent_{tag}1")
    for rp in range(1 if full else 2):
        e0 = full or rp == 0; e1 = full or rp == 1
        if rp == 0: a(f"s_branch AC_ent_{tag}0")
        a.raw(".p2align 6")
        a.label(f"AC_loop_{tag}{rp}")
        st = a.mark()
        a("s_waitcnt lgkmcnt(0)")
        if e0 and 'nocs' not in AX:
            a(f"v_mfma_f32_16x16x32_bf16 {vr(CSA+4*(NTW-1),4)}, {vr(SEL,4)}, {vr(WF[0]+4*(NTW-1),4)}, {vr(CSA+4*(NTW-1),4)}")
        step(None, 0, False, None, NM - 1, NM)
        a.label(f"AC_ent_{tag}{rp}")
        a("s_barrier")
        step(0, 1, e1)
        step(1, 0, e0); step(2, 1, e1)
        tail = adv + [f"s_add_u32 s{s_it}, s{s_it}, 1", f"s_cmp_lt_u32 s{s_it}, 10"]
        step(3, 0, e0, tail, 0, NM - 1)
        lg.q = []
        a(f"s_cbranch_scc1 AC_loop_{tag}{rp}")
        a.check_backedge(st)
        a("s_waitcnt lgkmcnt(0)")
        if e0 and 'nocs' not in AX:
            a(f"v_mfma_f32_16x16x32_bf16 {vr(CSA+4*(NTW-1),4)}, {vr(SEL,4)}, {vr(WF[0]+4*(NTW-1),4)}, {vr(CSA+4*(NTW-1),4)}")
        step(None, 0, False, None, NM - 1, NM)
        if e1:
            for T in range(NTW):
                a(f"v_mfma_f32_16x16x32_bf16 {vr(CSA+4*T,4)}, {vr(SEL,4)}, {vr(WF[1]+4*T,4)}, {vr(CSA+4*T,4)}")
        if rp == 0 and not full: a(f"s_branch AC_fin_{tag}")
    a.label(f"AC_fin_{tag}")
    a(f"v_and_b32 v1, 31, v0")
    a(f"s_lshl_b32 s{s_t0}, s{s_rp}, 8")
    a(f"s_add_u32 s{s_t0}, s{s_t0}, {SC_NM}")
    a(f"v_lshl_add_u32 v2, v1, 2, s{s_t0}")
    pre = [f"v_mov_b32 v{r}, 0" for r in range(XF[0], WF[0] + 4 * NTW)]
    pre += ["s_mov_b32 exec_hi, 0", f"ds_read_b32 v{XF[0]}, v2", f"ds_read_b32 v{XF[0]+4}, v2 offset:128", "s_mov_b32 exec_hi, -1",
            "ds_read_b32 v4, v2 offset:512", "ds_read_b32 v6, v2 offset:640"]
    step(None, 1, False, pre)
    stamp(a, 5)
    CS = CSA
    if not full:
        a(f"s_mul_i32 s{s_t1}, s{s_half}, {NTW*256}")
        a(f"s_add_u32 s{s_t1}, s{s_t1}, {SC_CS}")
        a(f"v_lshl_add_u32 v3, v1, 3, s{s_t1}")
        a(f"s_lshl_b32 s{s_t1}, s{s_rp}, 2")
        a(f"v_add_u32 v7, s{s_t1}, v3")
        for T in range(NTW): a(f"ds_write_b32 v7, v{CSA+4*T} offset:{T*256}")
        lds_arrive(a, SC_CNT + 12, 8)
        lds_wait(a, f"AC_sync_{tag}", SC_CNT + 12, 4, 8, s_it, s_slot, 1)
        for T in range(NTW): a(f"ds_read_b64 {vr(CS+4*T,2)}, v3 offset:{T*256}")
        a(f"s_waitcnt lgkmcnt(0)")
        for T in range(NTW): a(f"v_add_f32 v{CS+4*T}, v{CS+4*T}, v{CS+4*T+1}")
    for T in range(NTW): a(f"v_cvt_pk_bf16_f32 v{CS+4*T+1}, v{CS+4*T}, v{CS+4*T}")
    for T in range(NTW): a(f"v_lshlrev_b32 v{CS+4*T+1}, 16, v{CS+4*T+1}")
    for T in range(NTW): a(f"v_sub_f32 v{CS+4*T+1}, v{CS+4*T}, v{CS+4*T+1}")
    for T in range(NTW): a(f"v_cvt_pk_bf16_f32 v{WF[0]+4*T}, v{CS+4*T}, v{CS+4*T+1}")
    a("s_waitcnt lgkmcnt(0)")
    for R in range(2):
        for T in range(NTW): mfma(R, T, 0)
    stamp(a, 6)
    O = f"s[{SO}:{SO+3}]"
    a(f"v_lshlrev_b32 v1, 4, v0")
    if role != "kv":
        for R in range(2):
            for T in range(NTW):
                b = ACC + 16 * (R * NTW + T)
                if R == 0 and T < 2:
                    for i in range(16): a(f"v_mul_f32 v{b+i}, v{4+2*R}, v{b+i}")
                else:
                    for i in range(8): a(f"v_pk_mul_f32 {vr(b+2*i,2)}, {vr(b+2*i,2)}, {vr(4+2*R,2)} op_sel_hi:[1,0]")
                for i in range(8): a(f"v_cvt_pk_bf16_f32 v{b+i}, v{b+2*i}, v{b+2*i+1}")
                if role == "h":
                    for i in range(8): a(f"v_pk_max_i16 v{b+i}, v{b+i}, 0")
                if role == "h" and HOLDH: continue
                if T == 2: a(f"s_add_u32 s{s_out}, s{s_out}, 4096")
                o = (2 * T % 4) * 1024
                a(f"buffer_store_dwordx4 {vr(b,4)}, v1, {O}, s{s_out} offen offset:{o}{ST}")
                a(f"buffer_store_dwordx4 {vr(b+4,4)}, v1, {O}, s{s_out} offen offset:{o+1024}{ST}")
            if role == "h" and HOLDH: continue
            if R == 0: a(f"s_add_u32 s{s_out}, s{s_out}, {QH_TT - (4096 if NTW == 3 else 0)}")
        if role == "h" and HOLDH:
            lds_wait(a, "AC_hold", SC_CNT + 8, 12, 8, s_it, s_slot, 2)
            for R in range(2):
                for T in range(NTW):
                    b = ACC + 16 * (R * NTW + T)
                    if T == 2: a(f"s_add_u32 s{s_out}, s{s_out}, 4096")
                    o = (2 * T % 4) * 1024
                    a(f"buffer_store_dwordx4 {vr(b,4)}, v1, {O}, s{s_out} offen offset:{o}{ST}")
                    a(f"buffer_store_dwordx4 {vr(b+4,4)}, v1, {O}, s{s_out} offen offset:{o+1024}{ST}")
                if R == 0: a(f"s_add_u32 s{s_out}, s{s_out}, {QH_TT - 4096}")
    elif not vmode:
        for R in range(2):
            b = ACC + 16 * R
            for i in range(12): a(f"v_mul_f32 v{b+i}, v{4+2*R}, v{b+i}")
            for i in range(4): a(f"v_cvt_pk_bf16_f32 v{b+i}, v{b+2*i}, v{b+2*i+1}")
            for i in range(2): a(f"v_cvt_pk_bf16_f32 v{16+2*R+i}, v{b+8+2*i}, v{b+9+2*i}")
            a(f"buffer_store_dwordx4 {vr(b,4)}, v1, {O}, s{s_out} offen offset:{1024*R}{ST}")
        a("s_mov_b32 exec_lo, 0")
        for i in range(4): a(f"v_mov_b32 v{16+i}, {'0x3f80' if i % 2 == 0 else 0}")
        a("s_mov_b32 exec_lo, -1")
        a(f"buffer_store_dwordx4 v[16:19], v1, {O}, s{s_out} offen offset:2048{ST}")
    else:
        a(f"v_lshrrev_b32 v6, 5, v0")
        a(f"v_lshl_add_u32 v3, v6, 4, s{s_t0}")
        for R in range(2):
            for q in range(4): a(f"ds_read_b128 {vr(16+16*R+4*q,4)}, v3 offset:{512+128*R+32*q}")
        a(f"v_and_b32 v2, 31, v0")
        a(f"v_mul_u32_u24 v6, 384, v6")
        a(f"v_lshl_add_u32 v6, v2, 4, v6")
        a(f"s_add_u32 s{s_out}, s{s_out}, 3072")
        a("s_waitcnt lgkmcnt(0)")
        for R in range(2):
            b = ACC + 16 * R
            for i in range(16): a(f"v_mul_f32 v{b+i}, v{16+16*R+i}, v{b+i}")
            for i in range(8): a(f"v_cvt_pk_bf16_f32 v{b+i}, v{b+2*i}, v{b+2*i+1}")
            a("s_mov_b32 exec_lo, 0x00100000")
            a("s_mov_b32 exec_hi, 0x00100000")
            for i in range(8): a(f"v_mov_b32 v{b+i}, 0x3f803f80")
            a("s_mov_b32 exec_lo, 0x00e00000")
            a("s_mov_b32 exec_hi, 0x00e00000")
            for i in range(8): a(f"v_mov_b32 v{b+i}, 0")
            a("s_mov_b32 exec_lo, 0x00ffffff")
            a("s_mov_b32 exec_hi, 0x00ffffff")
            a(f"buffer_store_dwordx4 {vr(b,4)}, v6, {O}, s{s_out} offen offset:{1536*R}{ST}")
            a(f"buffer_store_dwordx4 {vr(b+4,4)}, v6, {O}, s{s_out} offen offset:{1536*R+768}{ST}")
            a("s_mov_b64 exec, -1")
    done(a)

def phase_a(a, done_help, done_stats, done_comp, spare, start_hook=None, pre_ba=None):
    a("s_load_dwordx8 s[20:27], s[0:1], 0")
    a("s_load_dwordx2 s[28:29], s[0:1], 48")
    a("s_load_dwordx2 s[30:31], s[0:1], 80")
    a("s_load_dwordx2 s[56:57], s[0:1], 56")
    a("s_load_dwordx2 s[58:59], s[0:1], 32")
    a("s_load_dwordx4 s[60:63], s[0:1], 64")
    a("v_lshrrev_b32 v1, 6, v0")
    a("v_and_b32 v0, 63, v0")
    a(f"v_readfirstlane_b32 s{s_w}, v1")
    ORD = os.environ.get("ORD", "0124356789,0215346789,0312645789,0132745689,0123845679,0213945678,0312456789,0123456789").split(",")
    a(f"s_and_b32 s{s_t0}, s2, 1")
    a(f"s_lshl_b32 s{s_t0}, s{s_t0}, 3")
    a(f"s_bfe_u32 s{s_rb}, s2, 0x30003")
    a(f"s_lshr_b32 s{s_g}, s2, 6")
    a(f"s_add_u32 s{s_t1}, s{s_g}, s{s_rb}")
    a(f"s_and_b32 s{s_t1}, s{s_t1}, {len(ORD)-1}")
    a(f"s_add_u32 s{s_rb}, s{s_rb}, s{s_t0}")
    gv = sum(g << (4 * i) for i, g in enumerate(GMAP))
    a(f"s_bfe_u32 s{s_t0}, s2, 0x20001")
    a(f"s_lshl_b32 s{s_t0}, s{s_t0}, 2")
    a(f"s_add_u32 s{s_g}, s{s_g}, s{s_t0}")
    a(f"s_lshl_b32 s{s_g}, s{s_g}, 2")
    a(f"s_mov_b32 s{s_tab}, {hex(gv & 0xffffffff)}")
    a(f"s_mov_b32 s{s_tab+1}, {hex(gv >> 32)}")
    a(f"s_lshr_b64 s[{s_tab}:{s_tab+1}], s[{s_tab}:{s_tab+1}], s{s_g}")
    a(f"s_and_b32 s{s_g}, s{s_tab}, 15")
    a(f"s_lshl_b32 s3, s{s_rb}, 4")
    a(f"s_add_u32 s3, s3, s{s_g}")
    for k, o in enumerate(ORD):
        assert sorted(o) == list("0123456789")
        v = sum(int(d) << (4 * i) for i, d in enumerate(o))
        if k == 0:
            a(f"s_mov_b32 s{s_tab}, {hex(v & 0xffffffff)}")
            a(f"s_movk_i32 s{s_tab+1}, {hex(v >> 32)}")
        else:
            a(f"s_cmp_eq_u32 s{s_t1}, {k}")
            a(f"s_cselect_b32 s{s_tab}, {hex(v & 0xffffffff)}, s{s_tab}")
            a(f"s_cselect_b32 s{s_tab+1}, {hex(v >> 32)}, s{s_tab+1}")
    a(f"s_mov_b32 s{s_cslot}, {SLOT}")
    a(f"s_mul_i32 s{s_xbase}, s{s_rb}, {128*1280}")
    a(f"s_and_b32 s{s_m0x}, s{s_w}, 1")
    a(f"s_bfe_u32 s{s_m0w}, s{s_w}, 0x10001")
    a(f"s_lshl_b32 s{s_out}, s{s_rb}, 1")
    a(f"s_add_u32 s{s_out}, s{s_out}, s{s_m0x}")
    a(f"s_lshl_b32 s{s_out}, s{s_out}, 1")
    a("s_waitcnt lgkmcnt(0)")
    srd(a, SX, 20, 2048 * 1280)
    srd(a, SO, 30, WS_SIZE)
    a(f"s_lshl_b32 s{s_t0}, s{s_w}, 4")
    a(f"s_add_u32 s{s_t0}, s{s_t0}, s{s_g}")
    a(f"s_cmp_lg_u32 s{s_t0}, {8*16+15}")
    a("s_cbranch_scc1 A_noclear")
    clear_words(a)
    a.label("A_noclear")
    a(f"s_sub_u32 s{s_t0}, s{s_g}, 9")
    a(f"s_cmp_lt_u32 s{s_t0}, 5")
    a(f"s_cselect_b32 s{s_scale}, {hex(f32bits(QSCALE))}, 1.0")
    a(f"s_cmp_eq_u32 s{s_g}, 15")
    a("s_cbranch_scc1 A_spare")
    a(f"s_sub_u32 s{s_t0}, s{s_w}, 4")
    a(f"s_cmp_lt_u32 s{s_t0}, 4")
    a("s_cbranch_scc1 A_stats")
    a(f"s_cmp_eq_u32 s{s_g}, 14")
    a("s_cbranch_scc1 A_kv")
    a(f"s_cmp_ge_u32 s{s_g}, 9")
    a("s_cbranch_scc1 A_q")
    for role in ("h", "q"):
        NTW = ROLES[role][0]
        if role == "q":
            a.label("A_q")
            a(f"s_sub_u32 s{s_g}, s{s_g}, 9")
        stride = 3456 if role == "h" else 1280
        a(f"s_cmp_ge_u32 s{s_w}, 8")
        a(f"s_cbranch_scc1 A_c{role}")
        srd(a, SW, 28 if role == "h" else 22, 640 * stride)
        a(f"s_movk_i32 s{s_stride}, {stride}")
        a(f"s_mov_b32 s{s_wstep}, {64*stride}")
        a(f"s_mul_i32 s{s_col}, s{s_g}, {NTW*128}")
        loader(a, role, done_help, pre_ba)
        a.label(f"A_c{role}")
        a("s_setprio 2")
        a(f"s_mul_i32 s{s_out}, s{s_out}, {QH_TT}")
        a(f"s_lshl_b32 s{s_t0}, s{s_g}, 1")
        a(f"s_add_u32 s{s_t0}, s{s_t0}, s{s_m0w}")
        a(f"s_mul_i32 s{s_t0}, s{s_t0}, {NTW*2048}")
        a(f"s_add_u32 s{s_out}, s{s_out}, s{s_t0}")
        if role == "h": a(f"s_add_u32 s{s_out}, s{s_out}, {40*1024}")
        compute(a, role, done_comp)
    a.label("A_kv")
    a(f"s_cmp_ge_u32 s{s_w}, 8")
    a(f"s_cbranch_scc1 A_ckv")
    srd(a, SW, 24, 640 * 40)
    srd(a, SW2, 26, 640 * 40)
    a(f"s_movk_i32 s{s_wstep}, 2560")
    loader(a, "kv", done_help, pre_ba)
    a.label("A_ckv")
    a("s_setprio 2")
    a(f"s_mul_i32 s{s_out}, s{s_out}, {KV_TILE}")
    a(f"s_add_u32 s{s_out}, s{s_out}, {WS_KV}")
    a(f"s_cmp_eq_u32 s{s_m0w}, 1")
    a(f"s_cbranch_scc1 A_cv")
    compute(a, "kv", done_comp, False)
    a.label("A_cv")
    compute(a, "kv", done_comp, True)
    a.label("A_stats")
    start_hook(a)
    idle(a, done_stats)
    a.label("A_spare")
    spare(a)
```

```python
from common import *
from gw import *
import ka2
from ka2 import phase_a, SC_CNT, LDS_A

GPRIO = int(os.environ.get("GPRIO", "0"))
HOLD = 1
GROT = int(os.environ.get("GROT", "4"))
GX = os.environ.get("GX", "")
UARR = int(os.environ.get("UARR", "0"))
SC_L = None
DRY = int(os.environ.get("DRY", "0"))
PACE = [float(x) for x in os.environ.get("PACE", "1.7,7.0").split(",")]
PEND = int(os.environ.get("PEND", "22"))
ABAT = int(os.environ.get("ABAT", "0"))
DEFW = int(os.environ.get("DEFW", "4"))
DEFER = int(os.environ.get("DEFER", "0"))
PAIR = 2 * KV_TILE
CH = 8 * KV_TILE
STG = 0
KVB = 4 * PART
assert KVB + 3 * CH <= ka2.SCR and KVB >= 2 * ka2.SLOT
RESET_WG = (3 << 6) | (3 << 1)

SX, SW2, SWS, SWO, SOUT, SDBG = 4, 8, 12, 16, 20, 16
s_w, s_tt, s_hg, s_t0, s_t1, s_c, s_slot, s_delta, s_cch, s_base, s_spin, s_kvl, s_kvg, s_woff2 = range(32, 46)
s_gw = 46
WS = f"s[{SWS}:{SWS+3}]"
Q1, Q2, P0, P1, O, S0, S1 = 4, 8, 12, 16, 20, 36, 52
KS = [68, 96]
v_ka, v_va, v_g0, VT = 124, 125, 126, 130
v_l16, v_cnt, v_one, v_chk = 136, 137, 138, 139
SC_K = SC_CNT + 256
SC_L = SC_K + 256
s_tgt = 45

def mf(a, d, x, y, c): a(f"v_mfma_f32_32x32x16_bf16 {vr(d,16)}, {vr(x,4)}, {vr(y,4)}, {c if isinstance(c,str) else vr(c,16)}")
def mf8(a, d, x, y): a(f"v_mfma_f32_32x32x8_bf16 {vr(d,16)}, {vr(x,2)}, {vr(y,2)}, {vr(d,16)}")

def flag_off(a, vd, vrb, vg, t):
    a(f"v_lshl_add_u32 v{vd}, v{vrb}, 4, v{vg}")
    a(f"v_lshlrev_b32 v{vd}, 7, v{vd}")
    a(f"v_add_u32 v{vd}, {WS_FL}, v{vd}")

def publish(a, name, cnt_off, nwaves, sid, base, t, value=1, vm=0):
    a(f"s_waitcnt vmcnt({vm})")
    a("s_mov_b64 exec, 1")
    a(f"v_mov_b32 v{t}, {SC_CNT + cnt_off}")
    a(f"v_mov_b32 v{t+1}, 1")
    a(f"ds_add_rtn_u32 v{t+1}, v{t}, v{t+1}")
    a(f"s_lshl_b32 s{s_t0}, s{sid}, 7")
    a(f"s_add_u32 s{s_t0}, s{s_t0}, {base}")
    a(f"v_mov_b32 v{t}, 0")
    a(f"v_mov_b32 v{t+2}, {value}")
    a("s_waitcnt lgkmcnt(0)")
    a(f"v_readfirstlane_b32 s{s_t1}, v{t+1}")
    a(f"s_cmp_lg_u32 s{s_t1}, {nwaves-1}")
    a(f"s_cbranch_scc1 {name}")
    a(f"buffer_store_dword v{t+2}, v{t}, {WS}, s{s_t0} offen sc1")
    a.label(name)
    a("s_mov_b64 exec, -1")

def decode_b(a):
    a(f"s_lshr_b32 s{s_tt}, s2, 2")
    a(f"s_and_b32 s{s_hg}, s2, 3")

def attn_addr(a):
    a(f"s_and_b32 s{s_t0}, s2, 3")
    a(f"s_lshl_b32 s{s_t0}, s{s_t0}, 3")
    a(f"s_add_u32 s{s_t0}, s{s_t0}, s{s_w}")
    a(f"s_mul_i32 s{s_t0}, s{s_t0}, 5")
    a(f"v_lshrrev_b32 v2, 5, v0")
    a(f"v_and_b32 v3, 31, v0")
    a(f"v_lshlrev_b32 v3, 4, v3")
    for i in range(3):
        if i < 2: a(f"v_add_u32 v1, s{s_t0}, v2")
        else: a(f"v_mov_b32 v1, s{s_t0}")
        if i: a(f"v_add_u32 v1, {2*i}, v1")
        a(f"v_lshrrev_b32 v{VT}, 2, v1")
        a(f"v_lshl_add_u32 v{v_g0+i}, v{VT}, 10, v3")
        a(f"v_and_b32 v{VT}, 1, v1")
        a(f"v_lshl_add_u32 v{v_g0+i}, v{VT}, 9, v{v_g0+i}")
        a(f"v_bfe_u32 v{VT}, v1, 1, 1")
        a(f"v_lshl_add_u32 v{v_g0+i}, v{VT}, 3, v{v_g0+i}")
    a(f"v_lshlrev_b32 v{v_l16}, 4, v0")
    a(f"v_add_u32 v{v_ka}, {KVB}, v{v_l16}")
    a(f"v_lshlrev_b32 v{v_cnt}, 2, v0")
    a(f"v_add_u32 v{v_cnt}, {SC_K}, v{v_cnt}")
    a(f"v_cmp_eq_u32 vcc, 0, v0")
    a(f"v_cndmask_b32 v{v_one}, 0, 1, vcc")
    a(f"v_and_b32 v1, 31, v0")
    a(f"v_min_u32 v1, 23, v1")
    a(f"v_mul_u32_u24 v{v_va}, 384, v2")
    a(f"v_lshl_add_u32 v{v_va}, v1, 4, v{v_va}")
    a(f"v_add_u32 v{v_va}, {KVB + 3072}, v{v_va}")

def fetch(a):
    decode_b(a)
    a(f"s_cmp_lg_u32 s{s_w}, 0")
    a("s_cbranch_scc1 B_fkv")
    a(f"s_lshr_b32 s{s_t0}, s{s_tt}, 2")
    a(f"s_add_u32 s{s_t1}, s{s_hg}, 9")
    a(f"v_mov_b32 v1, s{s_t0}")
    a(f"v_add_u32 v2, s{s_t1}, v0")
    flag_off(a, 4, 1, 2, 3)
    a("s_mov_b64 exec, 3")
    poll(a, "B_pollq", f"buffer_load_dword v2, v4, {WS}, 0 offen sc1", "v_cmp_gt_u32 vcc, 1, v2")
    a("s_branch B_arrive")
    a.label("B_fkv")
    a(f"v_mov_b32 v2, 14")
    flag_off(a, 4, 0, 2, 3)
    a(f"s_sub_u32 s{s_kvl}, s{s_w}, 1")
    a(f"s_lshl_b32 s{s_kvl}, s{s_kvl}, 13")
    a(f"s_add_u32 s{s_kvg}, s{s_kvl}, {WS_KV}")
    a(f"v_lshlrev_b32 v5, 4, v0")
    a("s_mov_b32 exec_lo, 0xffff")
    a("s_mov_b32 exec_hi, 0")
    poll(a, "B_pollkv", f"buffer_load_dword v2, v4, {WS}, 0 offen sc1", "v_cmp_gt_u32 vcc, 1, v2", 6)
    a("s_mov_b64 exec, -1")
    stamp(a, 5)
    for c in range(3):
        for hf in range(2):
            a(f"s_add_u32 m0, s{s_kvl}, {KVB + c*CH + hf*4096}")
            a(f"s_add_u32 s{s_t0}, s{s_kvg}, {c*CH + hf*4096}")
            for m in range(4): a(f"buffer_load_dwordx4 v5, {WS}, s{s_t0} offen offset:{m*1024} sc1 lds")
    a("s_waitcnt vmcnt(8)")
    stamp(a, 2)
    a.label("B_arrive")
    lds_arrive(a, SC_CNT + 8, 2)

def attention(a):
    decode_b(a)
    stamp(a, 8)
    a(f"s_mul_i32 s{s_base}, s{s_tt}, {QH_TT}")
    lds_wait(a, "B_wait", SC_CNT + 8, 4, 2, s_spin, s_t0)
    stamp(a, 9)
    a(f"buffer_load_dwordx2 {vr(Q1,2)}, v{v_g0}, {WS}, s{s_base} offen sc1")
    a(f"buffer_load_dwordx2 {vr(Q1+2,2)}, v{v_g0+1}, {WS}, s{s_base} offen sc1")
    a(f"buffer_load_dwordx2 {vr(Q2,2)}, v{v_g0+2}, {WS}, s{s_base} offen sc1")
    for r in list(range(KS[0] + 20, KS[0] + 24)) + list(range(P1, P1 + 4)) + list(range(O, O + 16)):
        a(f"v_mov_b32 v{r}, 0")
    a(f"s_mov_b32 s{s_c}, 0")
    a(f"s_mov_b32 s{s_slot}, 0")
    a(f"s_mov_b32 s{s_cch}, {CH}")
    def kv_off(kind, t):
        p = (t % 8) // 2 * PAIR; b = t % 2
        return {"K1": p + 1024 * b, "K2": p + 2048, "V0": p + 1536 * b, "V1": p + 1536 * b + 768}[kind]
    def rd(dst, kind, t):
        a(f"ds_read_b128 {vr(dst,4)}, v{v_ka if kind[0] == 'K' else v_va} offset:{kv_off(kind, t)}")
    def group_reads(o):
        n = KS[((o + 1) // 2 + 1) % 2]
        return [(n + 12, "V1", o + 1), (n, "K1", o + 3), (n + 8, "K2", o + 3), (n + 16, "V0", o + 2),
                (n + 20, "V1", o + 2), (n + 4, "K1", o + 4), (n + 24, "V0", o + 3)]
    k0 = KS[0]
    rd(k0, "K1", 0); rd(k0 + 8, "K2", 0); rd(k0 + 4, "K1", 1); rd(k0 + 24, "V0", 0)
    for r in group_reads(-1)[:4]: rd(*r)
    a("s_waitcnt vmcnt(0)")
    lds_arrive(a, SC_CNT + 8, 2)
    a("s_mov_b32 exec_lo, 0")
    a(f"v_mov_b32 v{Q2}, 0")
    a(f"v_mov_b32 v{Q2+1}, 0")
    a("s_mov_b32 exec_lo, -1")
    stamp(a, 10)
    a("s_waitcnt lgkmcnt(0)")
    mf(a, S1, k0, Q1, "0"); mf8(a, S1, k0 + 8, Q2)
    mf(a, S0, k0, Q1, "0")
    a(f"v_max3_f32 v{VT}, v{S1}, v{S1+1}, v{S1+2}")
    a(f"v_max3_f32 v{VT+1}, v{S1+3}, v{S1+4}, v{S1+5}")
    a(f"v_max3_f32 v{VT+2}, v{S1+6}, v{S1+7}, v{S1+8}")
    a(f"v_max3_f32 v{VT+3}, v{S1+9}, v{S1+10}, v{S1+11}")
    a(f"v_max3_f32 v{VT}, v{VT}, v{S1+12}, v{S1+13}")
    a(f"v_max3_f32 v{VT+1}, v{VT+1}, v{S1+14}, v{S1+15}")
    a(f"v_max3_f32 v{VT}, v{VT}, v{VT+2}, v{VT+3}")
    a(f"v_max_f32 v{VT}, v{VT}, v{VT+1}")
    a(f"v_mov_b32 v{VT+1}, v{VT}")
    a(f"v_permlane32_swap_b32 v{VT}, v{VT+1}")
    a(f"v_max_f32 v{VT}, v{VT}, v{VT+1}")
    a("s_mov_b32 exec_lo, 0")
    a(f"v_cvt_pk_bf16_f32 v{Q2}, -v{VT}, 0")
    a("s_mov_b32 exec_lo, -1")
    mf8(a, S0, k0 + 8, Q2)
    stamp(a, 11); stamp(a, 12, 'cyc')
    a("s_waitcnt lgkmcnt(0)")
    a("s_nop 10")
    a.raw(".p2align 6")
    a.label("B_loop")
    start = a.mark()
    for u in range(8):
        Sc, Sn = (S0, S1) if u % 2 == 0 else (S1, S0)
        odd = u % 2
        o = u if odd else u - 1
        ks = KS[((o + 1) // 2) % 2]
        reads = group_reads(o)
        slots = [[reads[0]], [reads[1]], [reads[2]], [reads[3]]] if odd else [[reads[4], reads[5]], [reads[6]], [], []]
        e = lambda i: a(f"v_exp_f32 v{Sc+i}, v{Sc+i}")
        c = lambda i: a(f"v_cvt_pk_bf16_f32 v{P0+i}, v{Sc+2*i}, v{Sc+2*i+1}")
        if DRY and u == 3:
            a("s_cbranch_execz F_dryret")
            a.label("B_u3")
        if os.environ.get("CHST") and u == 0: a("s_memrealtime s[98:99]")
        e(0); e(1)
        if odd: a("s_waitcnt lgkmcnt(0)")
        if os.environ.get("CHST") and u == 1:
            sl = [2, 3, 4, 5, 6, 8, 9, 10]
            for k in range(7): a(f"s_mov_b32 s{64+2*sl[k]}, s{64+2*sl[k+1]}")
            a(f"s_mov_b32 s{64+2*sl[7]}, s98")
        mf(a, O, ks + (12 if odd else 20), P1, O)
        for r in slots[0]: rd(*r)
        if u == 5:
            if DRY: a("s_cbranch_execz F_dryret")
            a(f"v_readlane_b32 s{s_t0}, v{v_chk}, s{s_c}")
            a(f"s_add_u32 s{s_slot}, s{s_slot}, s{s_delta}")
            a(f"s_cmp_lt_u32 s{s_t0}, 4")
            a("s_cbranch_scc1 B_spin")
            a.label("B_synced")
        if u == 2:
            a(f"s_cmp_eq_u32 s{s_slot}, {2*CH}")
            a(f"s_cselect_b32 s{s_delta}, {(-2*CH) & 0xffffffff}, s{s_cch}")
        e(2); e(3); c(0)
        if u == 5: a(f"v_add_u32 v{v_ka}, s{s_delta}, v{v_ka}")
        if u == 2: a(f"v_mov_b32_dpp v{v_one}, v{v_one} row_shr:1 row_mask:0xf bank_mask:0xf bound_ctrl:0")
        if u == 6: a(f"v_add_u32 v{v_va}, s{s_delta}, v{v_va}")
        e(4); c(1)
        mf(a, Sn, ks + (0 if odd else 4), Q1, "0")
        for r in slots[1]: rd(*r)
        e(5); e(6); e(7); c(2); e(8); c(3)
        mf8(a, Sn, ks + 8 + (0 if odd else 2), Q2)
        for r in slots[2]: rd(*r)
        if u == UARR:
            a(f"ds_add_u32 v{v_cnt}, v{v_one}")
        e(9); e(10); e(11); c(4); e(12); c(5)
        mf(a, O, ks + (16 if odd else 24), P0, O)
        for r in slots[3]: rd(*r)
        if u == 4: a(f"ds_read_b32 v{v_chk}, v{v_cnt} offset:256")
        if u == 6:
            a(f"s_add_u32 s{s_c}, s{s_c}, 1")
            a(f"s_cmp_lt_u32 s{s_c}, 8")
        e(13); e(14); e(15); c(6); c(7)
        for _ in range(int(os.environ.get("XMOV", "0"))): a(f"v_max_f32 v{VT}, v{VT}, v{VT}")
    a("s_cbranch_scc1 B_loop")
    a.check_backedge(start)
    stamp(a, 13); stamp(a, 14, 'cyc')
    mf(a, O, KS[0] + 20, P1, O)
    if DEFER: lds_arrive(a, SC_CNT + 16, VT)
    a("s_waitcnt lgkmcnt(0)")
    a(f"v_mov_b32 v{VT+2}, {hex(f32bits(2.0**60))}")
    a(f"s_lshl_b32 s{s_base}, s2, 3")
    a(f"s_add_u32 s{s_base}, s{s_base}, s{s_w}")
    a(f"s_mul_i32 s{s_base}, s{s_base}, 1280")
    a(f"s_add_u32 s{s_base}, s{s_base}, {WS_O}")
    a(f"v_lshlrev_b32 v{v_g0}, 4, v0")
    a(f"v_lshlrev_b32 v{v_g0+1}, 3, v0")
    a(f"v_mov_b32 v{VT}, v{O+8}")
    a(f"v_mov_b32 v{VT+1}, v{O+8}")
    a(f"v_permlane32_swap_b32 v{VT}, v{VT+1}")
    a(f"v_cmp_nle_f32 vcc, {hex(f32bits(2.0**-60))}, v{VT+1}")
    a(f"v_cmp_nle_f32 s[52:53], v{VT+1}, v{VT+2}")
    a(f"s_or_b64 s[52:53], s[52:53], vcc")
    a("s_cbranch_scc1 B_fallback")
    a.label("B_norm")
    a(f"v_rcp_f32 v{VT}, v{VT+1}")
    for i in range(12): a(f"v_mul_f32 v{O+i}, v{VT}, v{O+i}")
    for i in range(6): a(f"v_cvt_pk_bf16_f32 v{O+i}, v{O+2*i}, v{O+2*i+1}")
    if DRY: a("s_cbranch_execz F_dryret")
    a(f"buffer_store_dwordx4 {vr(O,4)}, v{v_g0}, {WS}, s{s_base} offen sc1")
    a("s_mov_b32 exec_hi, 0")
    a(f"buffer_store_dwordx2 {vr(O+4,2)}, v{v_g0+1}, {WS}, s{s_base} offen offset:1024 sc1")
    publish(a, "B_pub", 4, 8, 2, WS_FL + 32768, VT)
    if STAMP:
        stamp(a, 7); stamp(a, 15, True)
        stamp_flush(a, 1, SWS, s_w, 12, 16)
    a("s_endpgm")
    a.label("B_spin")
    a(f"s_mov_b32 s{s_spin}, {SPIN * 40}")
    a.label("B_spin1")
    a(f"s_sleep {os.environ.get('SSL', '4')}")
    a(f"ds_read_b32 v{v_chk}, v{v_cnt} offset:256")
    a("s_waitcnt lgkmcnt(0)")
    a(f"v_readlane_b32 s{s_t0}, v{v_chk}, s{s_c}")
    a(f"s_cmp_ge_u32 s{s_t0}, 4")
    a("s_cbranch_scc1 B_synced")
    a(f"s_sub_u32 s{s_spin}, s{s_spin}, 1")
    a(f"s_cmp_lg_u32 s{s_spin}, 0")
    a("s_cbranch_scc1 B_spin1")
    a("s_branch B_synced")
    a.label("B_fallback")
    a("s_mov_b32 exec_lo, 0")
    a(f"v_mov_b32 v{Q2}, 0")
    a("s_mov_b32 exec_lo, -1")
    a(f"s_add_u32 s{s_slot}, s{s_slot}, {KVB}")
    a(f"v_subrev_u32 v{v_ka}, s{s_slot}, v{v_ka}")
    a(f"v_subrev_u32 v{v_va}, s{s_slot}, v{v_va}")
    a(f"v_mov_b32 v{VT}, 0xff800000")
    for r in range(O, O + 16): a(f"v_mov_b32 v{r}, 0")
    a(f"s_mov_b32 s{s_kvg}, {WS_KV}")
    def ldk():
        for i in range(3): a(f"buffer_load_dwordx4 {vr(k0+4*i,4)}, v{v_ka}, {WS}, s{s_kvg} offen offset:{1024*i} sc1")
    def qk(b):
        S = (S0, S1)[b]
        mf(a, S, k0 + 4 * b, Q1, "0"); mf8(a, S, k0 + 8 + 2 * b, Q2)
    def nxt(lbl):
        a(f"s_add_u32 s{s_kvg}, s{s_kvg}, {PAIR}")
        a(f"s_cmp_lt_u32 s{s_kvg}, {WS_KV + 32*PAIR}")
        a(f"s_cbranch_scc1 {lbl}")
    a.label("B_fb1")
    st = a.mark()
    ldk()
    a("s_waitcnt vmcnt(0)")
    qk(0); qk(1)
    for i in range(0, 32, 2): a(f"v_max3_f32 v{VT}, v{VT}, v{S0+i}, v{S0+i+1}")
    nxt("B_fb1")
    a.check_backedge(st)
    a(f"v_mov_b32 v{VT+1}, v{VT}")
    a(f"v_permlane32_swap_b32 v{VT}, v{VT+1}")
    a(f"v_max_f32 v{VT}, v{VT}, v{VT+1}")
    a(f"s_mov_b32 s{s_kvg}, {WS_KV}")
    a.label("B_fb2")
    st = a.mark()
    ldk()
    for i in range(4): a(f"buffer_load_dwordx4 {vr(k0+12+4*i,4)}, v{v_va}, {WS}, s{s_kvg} offen offset:{768*i} sc1")
    a("s_waitcnt vmcnt(0)")
    qk(0); qk(1)
    for b in range(2):
        S = (S0, S1)[b]
        for i in range(16): a(f"v_sub_f32 v{S+i}, v{S+i}, v{VT}")
        for i in range(16): a(f"v_exp_f32 v{S+i}, v{S+i}")
        for i in range(8): a(f"v_cvt_pk_bf16_f32 v{P0+i}, v{S+2*i}, v{S+2*i+1}")
        mf(a, O, k0 + 12 + 8 * b, P0, O); mf(a, O, k0 + 16 + 8 * b, P1, O)
    nxt("B_fb2")
    a.check_backedge(st)
    a(f"v_mov_b32 v{VT}, v{O+8}")
    a(f"v_mov_b32 v{VT+1}, v{O+8}")
    a(f"v_permlane32_swap_b32 v{VT}, v{VT+1}")
    a("s_nop 1")
    a("s_branch B_norm")

def gemm(a):
    global stamp
    decode_b(a)
    a(f"s_sub_u32 s{s_w}, s{s_w}, 8")
    srd(a, SW2, 56, 1728 * 1280)
    srd(a, SWO, 58, 640 * 1280)
    srd(a, SOUT, 60, 2048 * 1280)
    g = GW(a, 27, 4, 10, STG, PART, SW2, SWS, s_gw)
    v_wd2 = g.v_end
    v_wa2, vfl = 11, v_wd2 + 5
    vx = v_wd2 + 6
    s_kw, s_ka, s_w0, s_a0 = 50, 51, 54, 55
    a(f"s_mul_i32 s{s_kvl}, s{s_w}, 6144")
    a(f"s_add_u32 s{s_kvg}, s{s_kvl}, {WS_KV + 3*CH}")
    def kv(c):
        lds_wait(a, f"G_free{c}", SC_K + 4 * (c - 2), 8, 2, s_spin, s_t0, 4)
        a(f"s_add_u32 m0, s{s_kvl}, {KVB + (c % 3)*CH}")
        for m in range(4):
            a(f"buffer_load_dwordx4 v{g.v_l16}, {WS}, s{s_kvg} offen offset:{m*1024} sc1 lds"); g.vm.issue(("KV", c))
        a(f"s_add_u32 m0, m0, 4096")
        a(f"s_add_u32 s{s_kvg}, s{s_kvg}, 4096")
        for m in range(2):
            a(f"buffer_load_dwordx4 v{g.v_l16}, {WS}, s{s_kvg} offen offset:{m*1024} sc1 lds"); g.vm.issue(("KV", c))
        a(f"s_add_u32 s{s_kvg}, s{s_kvg}, {CH-4096}")
    def landed(c):
        g.vm.wait(("KV", c))
        a("s_mov_b64 exec, 1")
        a(f"v_mov_b32 v2, {SC_L + 4 * (c - 1)}")
        a(f"v_mov_b32 v3, 1")
        a(f"ds_add_u32 v2, v3"); g.lg.issue("arr")
        a("s_mov_b64 exec, -1")
    a(f"s_mul_i32 s{s_base}, s{s_tt}, {QH_TT}")
    a(f"s_add_u32 s{s_base}, s{s_base}, {WS_QH + 40*1024}")
    g.setup(s_w, s_hg, s_base)
    a(f"s_mov_b32 s{s_w0}, s{g.s_woff}")
    a(f"s_mov_b32 s{s_a0}, s{g.s_aoff}")
    a(f"s_lshr_b32 s{s_kw}, s2, 3")
    a(f"s_mul_i32 s{s_kw}, s{s_kw}, {GROT}")
    a(f"s_mul_i32 s{s_t0}, s{s_kw}, 2428")
    a(f"s_lshr_b32 s{s_t0}, s{s_t0}, 16")
    a(f"s_mul_i32 s{s_t0}, s{s_t0}, 27")
    a(f"s_sub_u32 s{s_kw}, s{s_kw}, s{s_t0}")
    a(f"s_mov_b32 s{s_ka}, s{s_kw}")
    ALT = {31: 2 * CH, 32: 0}
    def wslot(i): return (i if i < 31 else i - 2) % 4
    def bump(r):
        a(f"s_add_u32 s{r}, s{r}, 1")
        a(f"s_cmp_eq_u32 s{r}, 27")
        a(f"s_cselect_b32 s{r}, 0, s{r}")
    def load_w(i):
        if i > 36: return
        vd = g.v_wd
        if i < 27:
            S = f"s[{SW2}:{SW2+3}]"
            a(f"s_mul_i32 s{g.s_woff}, s{s_kw}, {16*1280}")
            a(f"s_add_u32 s{g.s_woff}, s{g.s_woff}, s{s_w0}")
            bump(s_kw)
        else:
            S = f"s[{SWO}:{SWO+3}]"
            j = i - 27
            row = 20 * j if j < 8 else 80 * (j - 8) + 16
            if j >= 8: vd = v_wd2
            a(f"s_add_u32 s{g.s_woff}, s{s_woff2}, {row*1280}")
        if i in ALT:
            a(f"s_mul_i32 s{s_t0}, s{s_w}, 5120")
            a(f"s_add_u32 m0, s{s_t0}, {KVB + ALT[i]}")
        else: a(f"s_add_u32 m0, s{g.s_lds}, {wslot(i)*5120}")
        for m in range(4):
            a(f"buffer_load_dwordx4 v{vd+m}, {S}, s{g.s_woff} offen offset:{m*1024} lds"); g.vm.issue(("W", i))
        a(f"s_add_u32 m0, m0, 4096")
        a(f"buffer_load_dwordx4 v{vd+4}, {S}, s{g.s_woff} offen lds"); g.vm.issue(("W", i))
    def areg(i): return g.v_act + 4 * ((i % 10) if i < 27 else i - 27)
    def load_a(i):
        a(f"s_lshl_b32 s{g.s_aoff}, s{s_ka}, 10")
        a(f"s_add_u32 s{g.s_aoff}, s{g.s_aoff}, s{s_a0}")
        bump(s_ka)
        a(f"buffer_load_dwordx4 {vr(areg(i),4)}, v{g.v_l16}, {WS}, s{g.s_aoff} offen sc1"); g.vm.issue(("A", i))
    def rd_t(i, T):
        base, off = (v_wa2, ALT[i]) if i in ALT else (g.v_wa, wslot(i) * 5120)
        for p in range(2):
            a(f"ds_read_b64_tr_b16 {vr(g.v_wf+4*T+2*p,2)}, v{base} offset:{off + T*64 + p*2560}"); g.lg.issue((i, T))
    def rd_w(i):
        g.vm.wait(("W", i))
        for T in range(5): rd_t(i, T)
    def mm(i, nxt=None):
        g.vm.wait(("A", i), ("W", nxt))
        for T in range(5):
            g.lg.wait((i, T))
            acc = vr(g.v_acc + 16 * T, 16)
            a(f"v_mfma_f32_32x32x16_bf16 {acc}, {vr(g.v_wf+4*T,4)}, {vr(areg(i),4)}, {acc if i else 0}")
            if nxt is not None: rd_t(nxt, T)
    g.setup2()
    a(f"s_mul_i32 s{s_t0}, s{s_w}, 5120")
    a(f"s_sub_u32 s{s_t0}, s{s_t0}, s{g.s_lds}")
    a(f"s_add_u32 s{s_t0}, s{s_t0}, {KVB}")
    a(f"v_add_u32 v{v_wa2}, s{s_t0}, v{g.v_wa}")
    for m in range(5):
        a(f"v_add_u32 v1, {64*m}, v0")
        a(f"v_mul_u32_u24 v2, 0xcccd, v1")
        a(f"v_lshrrev_b32 v2, 22, v2")
        a(f"v_mul_u32_u24 v2, {16*1280}, v2")
        a(f"v_add_u32 v{v_wd2+m}, v2, v{g.v_wd+m}")
    a(f"s_lshr_b32 s{s_t0}, s{s_tt}, 2")
    a(f"v_mov_b32 v1, s{s_t0}")
    flag_off(a, vfl, 1, 0, 2)
    a(f"s_mul_i32 s{s_woff2}, s{s_w}, {160*1280}")
    a(f"s_mul_i32 s{s_t0}, s{s_hg}, 320")
    a(f"s_add_u32 s{s_woff2}, s{s_woff2}, s{s_t0}")
    lds_wait(a, "G_wait", SC_CNT + 8, 12, 2, s_spin, s_t0, 2)
    landed(2)
    a("s_cmp_eq_u32 s53, -1")
    a("s_cbranch_scc1 G_noh")
    for k in range(12):
        if k in (4, 10): a("s_add_u32 s53, s53, 4096")
        if k == 6: a(f"s_add_u32 s53, s53, {QH_TT - 4096}")
        a(f"buffer_store_dwordx4 {vr(72+4*k,4)}, v{g.v_l16}, {WS}, s53 offen offset:{(k % 6 % 4)*1024} sc1")
    stamp(a, 3)
    publish(a, "G_pub", 0, 4, 3, WS_FL, 1)
    stamp(a, 4)
    a.label("G_noh")
    for i in range(4): load_w(i)
    stamp(a, 8)
    kv(3); landed(3)
    a(f"s_setprio {GPRIO}")
    a("s_mov_b32 exec_lo, 0x1ff")
    a("s_mov_b32 exec_hi, 0")
    poll(a, "G_pollh", f"buffer_load_dword v2, v{vfl}, {WS}, 0 offen sc1", "v_cmp_gt_u32 vcc, 1, v2", 4)
    a("s_mov_b64 exec, -1")
    g.vm.q = []
    stamp(a, 9)
    if STAMP: a("s_waitcnt lgkmcnt(0)")
    for i in range(5): load_a(i)
    KVAT = [int(x) for x in os.environ.get("KVAT", "3,8,13,18").split(",")]
    for i in range(27):
        if i in KVAT: kv(4 + KVAT.index(i))
        if i % 5 == ABAT:
            for k in range(i - ABAT + 5, min(i - ABAT + 10, 27)): load_a(k)
        if "nomm" not in GX: rd_w(i); mm(i)
        if i in KVAT:
            c = 4 + KVAT.index(i)
            landed(c)
        if "nold" not in GX or i + 4 >= 27: load_w(i + 4)
        if i == PEND: lds_wait(a, "G_pace", SC_K + 24, 8, 2, s_spin, s_t0, 4)
        if i in (4, 13, 22):
            stamp(a, {4: 10, 13: 11, 22: 12}[i])
            if STAMP: a("s_waitcnt lgkmcnt(0)")
    lds_wait(a, "G_alt0", SC_K + 24, 8, 2, s_spin, s_t0, 4)
    load_w(31)
    lds_wait(a, "G_alt1", SC_K + 28, 8, 2, s_spin, s_t0, 4)
    load_w(32)
    if DEFER:
        lds_wait(a, "G_defer", SC_CNT + 16, DEFW, 2, s_spin, s_t0, 2)
        a("s_setprio 3")
        for i in range(27 - DEFER, 27):
            rd_w(i); mm(i); load_w(i + 4)
    vo = vfl
    a(f"s_mul_i32 s{s_base}, s{s_tt}, {32*1280}")
    a(f"s_mul_i32 s{s_t0}, s{s_hg}, 320")
    a(f"s_add_u32 s{s_base}, s{s_base}, s{s_t0}")
    a(f"s_lshl_b32 s{s_t0}, s{s_w}, 4")
    a(f"s_add_u32 s{s_base}, s{s_base}, s{s_t0}")
    a(f"v_and_b32 v1, 31, v0")
    a(f"v_mul_u32_u24 v{vo}, 1280, v1")
    a(f"v_lshrrev_b32 v2, 5, v0")
    a(f"v_lshl_add_u32 v{vo}, v2, 3, v{vo}")
    for T in range(5):
        a(f"buffer_load_dwordx2 {vr(vx+2*T,2)}, v{vo}, s[{SX}:{SX+3}], s{s_base} offen offset:{64*T}")
    rd_w(27)
    a(f"v_mul_u32_u24 v3, 1280, v2")
    a(f"v_lshl_add_u32 v3, v1, 3, v3")
    a(f"s_lshl_b32 s{s_t0}, s{s_tt}, 2")
    a(f"s_add_u32 s{s_t0}, s{s_t0}, s{s_w}")
    a(f"s_mul_i32 s{g.s_aoff}, s{s_t0}, 10240")
    a(f"s_add_u32 s{g.s_aoff}, s{g.s_aoff}, {WS_O}")
    a(f"s_add_u32 s{s_a0}, s{g.s_aoff}, 5120")
    a(f"s_lshl_b32 s{s_t0}, s{s_t0}, 7")
    a(f"s_add_u32 s{s_t0}, s{s_t0}, {WS_FL + 32768}")
    a(f"v_mov_b32 v1, s{s_t0}")
    g.lg.drain()
    load_w(33)
    a("s_mov_b64 exec, 1")
    poll(a, "G_pollo", f"buffer_load_dword v2, v1, {WS}, 0 offen sc1", "v_cmp_gt_u32 vcc, 1, v2", 2)
    a("s_mov_b64 exec, -1")
    g.vm.q = []
    a("s_setprio 3")
    stamp(a, 13)
    if STAMP: a("s_waitcnt lgkmcnt(0)")
    for j in range(8):
        so = g.s_aoff if j < 4 else s_a0
        a(f"buffer_load_dwordx4 {vr(areg(27+j),4)}, v{g.v_l16}, {WS}, s{so} offen offset:{(j%4)*1280} sc1"); g.vm.issue(("A", 27 + j))
    for m in range(2):
        so = g.s_aoff if m == 0 else s_a0
        for j in range(2):
            a(f"buffer_load_dwordx2 {vr(areg(35+m)+2*j,2)}, v3, {WS}, s{so} offen offset:{1024+2560*j} sc1"); g.vm.issue(("A", 35 + m))
    for i in range(27, 37):
        mm(i, i + 1 if i < 36 else None)
        if 28 <= i <= 30: load_w(i + 6)
    stamp(a, 14)
    a(f"v_add_u32 v1, s{g.s_lds}, v{g.v_l16}")
    a(f"s_mul_i32 s{s_t0}, s{s_w}, 5120")
    a(f"s_add_u32 s{s_t0}, s{s_t0}, {STG}")
    a(f"v_add_u32 v2, s{s_t0}, v{g.v_l16}")
    for T in range(5):
        for q in range(4):
            a(f"ds_write_b128 v1, {vr(g.v_acc+16*T+4*q,4)} offset:{q*5120+T*1024}")
    xf = g.v_act
    for T in range(5):
        a(f"v_lshlrev_b32 v{xf+4*T}, 16, v{vx+2*T}")
        a(f"v_and_b32 v{xf+4*T+1}, 0xffff0000, v{vx+2*T}")
        a(f"v_lshlrev_b32 v{xf+4*T+2}, 16, v{vx+2*T+1}")
        a(f"v_and_b32 v{xf+4*T+3}, 0xffff0000, v{vx+2*T+1}")
    a("s_waitcnt lgkmcnt(0)")
    a("s_barrier")
    a(f"v_add_u32 v1, {2*PART}, v2")
    for T in range(5):
        for sidx in range(4):
            a(f"ds_read_b128 {vr(g.v_acc+16*T+4*sidx,4)}, v{2 if sidx < 2 else 1} offset:{(sidx%2)*PART+T*1024}"); g.lg.issue(T)
        if T >= 2: fin_tile(a, g, T - 2, xf, vo)
    fin_tile(a, g, 3, xf, vo); fin_tile(a, g, 4, xf, vo)
    if STAMP:
        a("s_waitcnt vmcnt(0)"); stamp(a, 7); stamp(a, 15, True)
        a(f"s_add_u32 s{s_w}, s{s_w}, 8")
        stamp_flush(a, 1, SWS, s_w, 12, 16, gsel=[(9, False), (10, False), (12, False), (13, False), (14, False), (15, False)], goff=8)
    a("s_endpgm")
    return vx + 10

def fin_tile(a, g, T, xf, vo):
    b = g.v_acc + 16 * T
    g.lg.wait(T)
    for h in range(2):
        a(f"v_pk_add_f32 {vr(b+2*h,2)}, {vr(b+2*h,2)}, {vr(b+4+2*h,2)}")
        a(f"v_pk_add_f32 {vr(b+8+2*h,2)}, {vr(b+8+2*h,2)}, {vr(b+12+2*h,2)}")
    for h in range(2):
        a(f"v_pk_add_f32 {vr(b+2*h,2)}, {vr(b+2*h,2)}, {vr(xf+4*T+2*h,2)}")
    for h in range(2):
        a(f"v_pk_add_f32 {vr(b+2*h,2)}, {vr(b+2*h,2)}, {vr(b+8+2*h,2)}")
    a(f"v_cvt_pk_bf16_f32 v{b}, v{b}, v{b+1}")
    a(f"v_cvt_pk_bf16_f32 v{b+1}, v{b+2}, v{b+3}")
    a(f"buffer_store_dwordx2 {vr(b,2)}, v{vo}, s[{SOUT}:{SOUT+3}], s{s_base} offen offset:{64*T}")

def gen_f(a, name="parallel_sum__grouped_kv_mqa__dense_activation_relu__prompt_kernel"):
    kernel_header(a, name)
    a("s_cmp_ge_u32 s2, 256")
    a("s_cbranch_scc1 F_end")
    stamp(a, 0, True); stamp(a, 1)
    if STAMP == 3: a("s_mov_b32 s72, 0")
    def clear_cnt(a):
        a("v_lshlrev_b32 v1, 2, v0")
        a(f"v_add_u32 v1, {SC_CNT}, v1")
        a("v_mov_b32 v2, 0")
        a("ds_write_b32 v1, v2")
        a("ds_write_b32 v1, v2 offset:256")
        a("v_add_u32 v3, -1, v0")
        a("v_cmp_lt_u32 vcc, 5, v3")
        a("v_cndmask_b32 v2, 0, 4, vcc")
        a("ds_write_b32 v1, v2 offset:512")
        a("s_waitcnt lgkmcnt(0)")
    def start_hook(a):
        clear_cnt(a)
        attn_addr(a)
    def pre_ba(a): attn_addr(a)
    def done_help(a): a("s_branch F_fetch")
    def done_stats(a): a("s_branch F_dry" if DRY else "s_branch F_attn")
    def done_comp(a): a("s_branch F_pub")
    def spare(a):
        ka2.produce_stats(a)
        clear_cnt(a)
        attn_addr(a)
        a(f"s_cmp_lg_u32 s{s_w}, 0")
        a("s_cbranch_scc1 F_sp1")
        ka2.dbg_check(a, "F_dbg")
        a.label("F_sp1")
        a("s_barrier")
        a(f"s_cmp_ge_u32 s{s_w}, 8")
        a("s_cbranch_scc1 F_gemm0")
        a(f"s_cmp_ge_u32 s{s_w}, 4")
        a("s_cbranch_scc1 F_dry" if DRY else "s_cbranch_scc1 F_attn")
    phase_a(a, done_help, done_stats, done_comp, spare, start_hook, pre_ba)
    a.label("F_fetch")
    fetch(a)
    a.label("F_attn")
    attention(a)
    if DRY:
        a.label("F_dry")
        a(f"s_cmp_eq_u32 s{s_w}, 4")
        a("s_cbranch_scc1 F_attn")
        a("s_mov_b64 exec, 0")
        a(f"s_mov_b32 s{s_c}, 7")
        a(f"s_cmp_eq_u32 s{s_w}, 5")
        a("s_cbranch_scc1 B_loop")
        a(f"s_cmp_eq_u32 s{s_w}, 6")
        a("s_cbranch_scc1 B_u3")
        a("s_branch B_synced")
        a.label("F_dryret")
        a("s_mov_b64 exec, -1")
        a("s_nop 7")
        a("s_nop 7")
        a("s_branch F_attn")
    a.label("F_pub")
    stamp(a, 3)
    publish(a, "F_pub2", 0, 4, 3, WS_FL, 1)
    stamp(a, 4)
    lds_wait(a, "F_all", SC_CNT, 4, 2, s_spin, s_t0)
    a.label("F_gemm0")
    a("s_mov_b32 s53, -1")
    a.label("F_gemm")
    nv = gemm(a)
    a.label("F_end")
    a("s_endpgm")
    assert nv <= 168, nv
    return dict(name=name, grid=256, block=768, lds=LDS_A, vgpr=168, sgpr=102 if STAMP else 64, single=True)
```

```python
from common import *
from gw import *
import ka2
from ka2 import phase_a, SC_CNT, LDS_A

GPRIO = int(os.environ.get("GPRIO", "0"))
HOLD = 1
GROT = int(os.environ.get("GROT", "4"))
GX = os.environ.get("GX", "")
UARR = int(os.environ.get("UARR", "0"))
SC_L = None
DRY = int(os.environ.get("DRY", "1"))
PACE = [float(x) for x in os.environ.get("PACE", "1.7,7.0").split(",")]
PEND = int(os.environ.get("PEND", "99"))
ABAT = int(os.environ.get("ABAT", "0"))
PIPE = int(os.environ.get("PIPE", "1"))
KV4 = int(os.environ.get("KV4", "0"))
TRIG = [int(x) for x in os.environ.get("TRIG", "4,8").split(",")]
TAILST = os.environ.get("TAILST")
OSL = [int(x) for x in os.environ.get("OSL", "4,2").split(",")]
WOPF = int(os.environ.get("WOPF", "10"))
DEFW = int(os.environ.get("DEFW", "4"))
DEFER = int(os.environ.get("DEFER", "0"))
PAIR = 2 * KV_TILE
CH = 8 * KV_TILE
STG = 0
KVB = 4 * PART
assert KVB + 3 * CH <= ka2.SCR and KVB >= 2 * ka2.SLOT
RESET_WG = (3 << 6) | (3 << 1)

SX, SW2, SWS, SWO, SOUT, SDBG = 4, 8, 12, 16, 20, 16
s_w, s_tt, s_hg, s_t0, s_t1, s_c, s_slot, s_delta, s_cch, s_base, s_spin, s_kvl, s_kvg, s_woff2 = range(32, 46)
s_gw = 46
s_lid = 97 if STAMP else 64
WS = f"s[{SWS}:{SWS+3}]"
Q1, Q2, P0, P1, O, S0, S1 = 4, 8, 12, 16, 20, 36, 52
KS = [68, 96]
v_ka, v_va, v_g0, VT = 124, 125, 126, 130
v_l16, v_cnt, v_one, v_chk = 136, 137, 138, 139
SC_K = SC_CNT + 256
SC_L = SC_K + 256
COMB = int(os.environ.get('COMB', '0'))
SCW, NW_ = (SC_L, 12) if COMB else (SC_K, 8)
s_tgt = 45

def mf(a, d, x, y, c): a(f"v_mfma_f32_32x32x16_bf16 {vr(d,16)}, {vr(x,4)}, {vr(y,4)}, {c if isinstance(c,str) else vr(c,16)}")
def mf8(a, d, x, y): a(f"v_mfma_f32_32x32x8_bf16 {vr(d,16)}, {vr(x,2)}, {vr(y,2)}, {vr(d,16)}")

def flag_off(a, vd, vrb, vg, t):
    a(f"v_lshl_add_u32 v{vd}, v{vrb}, 4, v{vg}")
    a(f"v_lshlrev_b32 v{vd}, 7, v{vd}")
    a(f"v_add_u32 v{vd}, {WS_FL}, v{vd}")

def publish(a, name, cnt_off, nwaves, sid, base, t, value=1, vm=0):
    a(f"s_waitcnt vmcnt({vm})")
    a("s_mov_b64 exec, 1")
    a(f"v_mov_b32 v{t}, {SC_CNT + cnt_off}")
    a(f"v_mov_b32 v{t+1}, 1")
    a(f"ds_add_rtn_u32 v{t+1}, v{t}, v{t+1}")
    a(f"s_lshl_b32 s{s_t0}, s{sid}, 7")
    a(f"s_add_u32 s{s_t0}, s{s_t0}, {base}")
    a(f"v_mov_b32 v{t}, 0")
    a(f"v_mov_b32 v{t+2}, {value}")
    a("s_waitcnt lgkmcnt(0)")
    a(f"v_readfirstlane_b32 s{s_t1}, v{t+1}")
    a(f"s_cmp_lg_u32 s{s_t1}, {nwaves-1}")
    a(f"s_cbranch_scc1 {name}")
    a(f"buffer_store_dword v{t+2}, v{t}, {WS}, s{s_t0} offen sc1")
    a.label(name)
    a("s_mov_b64 exec, -1")

def decode_b(a):
    a(f"s_lshr_b32 s{s_tt}, s{s_lid}, 2")
    a(f"s_and_b32 s{s_hg}, s{s_lid}, 3")

def attn_addr(a):
    a(f"s_and_b32 s{s_t0}, s{s_lid}, 3")
    a(f"s_lshl_b32 s{s_t0}, s{s_t0}, 3")
    a(f"s_add_u32 s{s_t0}, s{s_t0}, s{s_w}")
    a(f"s_mul_i32 s{s_t0}, s{s_t0}, 5")
    a(f"v_lshrrev_b32 v2, 5, v0")
    a(f"v_and_b32 v3, 31, v0")
    a(f"v_lshlrev_b32 v3, 4, v3")
    for i in range(3):
        if i < 2: a(f"v_add_u32 v1, s{s_t0}, v2")
        else: a(f"v_mov_b32 v1, s{s_t0}")
        if i: a(f"v_add_u32 v1, {2*i}, v1")
        a(f"v_lshrrev_b32 v{VT}, 2, v1")
        a(f"v_lshl_add_u32 v{v_g0+i}, v{VT}, 10, v3")
        a(f"v_and_b32 v{VT}, 1, v1")
        a(f"v_lshl_add_u32 v{v_g0+i}, v{VT}, 9, v{v_g0+i}")
        a(f"v_bfe_u32 v{VT}, v1, 1, 1")
        a(f"v_lshl_add_u32 v{v_g0+i}, v{VT}, 3, v{v_g0+i}")
    a(f"v_lshlrev_b32 v{v_l16}, 4, v0")
    a(f"v_add_u32 v{v_ka}, {KVB}, v{v_l16}")
    a(f"v_lshlrev_b32 v{v_cnt}, 2, v0")
    a(f"v_add_u32 v{v_cnt}, {SC_K}, v{v_cnt}")
    a(f"v_cmp_eq_u32 vcc, 0, v0")
    a(f"v_cndmask_b32 v{v_one}, 0, 1, vcc")
    a(f"v_and_b32 v1, 31, v0")
    a(f"v_min_u32 v1, 23, v1")
    a(f"v_mul_u32_u24 v{v_va}, 384, v2")
    a(f"v_lshl_add_u32 v{v_va}, v1, 4, v{v_va}")
    a(f"v_add_u32 v{v_va}, {KVB + 3072}, v{v_va}")

def fetch(a):
    decode_b(a)
    a(f"s_cmp_lg_u32 s{s_w}, 0")
    a("s_cbranch_scc1 B_fkv")
    a(f"s_lshr_b32 s{s_t0}, s{s_tt}, 2")
    a(f"s_add_u32 s{s_t1}, s{s_hg}, 9")
    a(f"v_mov_b32 v1, s{s_t0}")
    a(f"v_add_u32 v2, s{s_t1}, v0")
    flag_off(a, 4, 1, 2, 3)
    a("s_mov_b64 exec, 3")
    poll(a, "B_pollq", f"buffer_load_dword v2, v4, {WS}, 0 offen sc1", "v_cmp_gt_u32 vcc, 1, v2")
    a("s_branch B_arrive")
    a.label("B_fkv")
    a(f"v_mov_b32 v2, 14")
    flag_off(a, 4, 0, 2, 3)
    a(f"s_sub_u32 s{s_kvl}, s{s_w}, 1")
    a(f"s_lshl_b32 s{s_kvl}, s{s_kvl}, 13")
    a(f"s_add_u32 s{s_kvg}, s{s_kvl}, {WS_KV}")
    a(f"v_lshlrev_b32 v5, 4, v0")
    a("s_mov_b32 exec_lo, 0xffff")
    a("s_mov_b32 exec_hi, 0")
    poll(a, "B_pollkv", f"buffer_load_dword v2, v4, {WS}, 0 offen sc1", "v_cmp_gt_u32 vcc, 1, v2", 6)
    a("s_mov_b64 exec, -1")
    stamp(a, 5)
    for c in range(3):
        for hf in range(2):
            a(f"s_add_u32 m0, s{s_kvl}, {KVB + c*CH + hf*4096}")
            a(f"s_add_u32 s{s_t0}, s{s_kvg}, {c*CH + hf*4096}")
            for m in range(4): a(f"buffer_load_dwordx4 v5, {WS}, s{s_t0} offen offset:{m*1024} sc1 lds")
    a("s_waitcnt vmcnt(8)")
    stamp(a, 2)
    a.label("B_arrive")
    lds_arrive(a, SC_CNT + 8, 2)

def attention(a):
    decode_b(a)
    stamp(a, 8)
    a(f"s_mul_i32 s{s_base}, s{s_tt}, {QH_TT}")
    lds_wait(a, "B_wait", SC_CNT + 8, 4, 2, s_spin, s_t0)
    stamp(a, 9)
    a(f"buffer_load_dwordx2 {vr(Q1,2)}, v{v_g0}, {WS}, s{s_base} offen sc1")
    a(f"buffer_load_dwordx2 {vr(Q1+2,2)}, v{v_g0+1}, {WS}, s{s_base} offen sc1")
    a(f"buffer_load_dwordx2 {vr(Q2,2)}, v{v_g0+2}, {WS}, s{s_base} offen sc1")
    for r in list(range(KS[0] + 20, KS[0] + 24)) + list(range(P1, P1 + 4)) + list(range(O, O + 16)):
        a(f"v_mov_b32 v{r}, 0")
    a(f"s_mov_b32 s{s_c}, 0")
    a(f"s_mov_b32 s{s_slot}, 0")
    a(f"s_mov_b32 s{s_cch}, {CH}")
    def kv_off(kind, t):
        p = (t % 8) // 2 * PAIR; b = t % 2
        return {"K1": p + 1024 * b, "K2": p + 2048, "V0": p + 1536 * b, "V1": p + 1536 * b + 768}[kind]
    def rd(dst, kind, t):
        a(f"ds_read_b128 {vr(dst,4)}, v{v_ka if kind[0] == 'K' else v_va} offset:{kv_off(kind, t)}")
    def group_reads(o):
        n = KS[((o + 1) // 2 + 1) % 2]
        return [(n + 12, "V1", o + 1), (n, "K1", o + 3), (n + 8, "K2", o + 3), (n + 16, "V0", o + 2),
                (n + 20, "V1", o + 2), (n + 4, "K1", o + 4), (n + 24, "V0", o + 3)]
    k0 = KS[0]
    rd(k0, "K1", 0); rd(k0 + 8, "K2", 0); rd(k0 + 4, "K1", 1); rd(k0 + 24, "V0", 0)
    for r in group_reads(-1)[:4]: rd(*r)
    a("s_waitcnt vmcnt(0)")
    lds_arrive(a, SC_CNT + 8, 2)
    a("s_mov_b32 exec_lo, 0")
    a(f"v_mov_b32 v{Q2}, 0")
    a(f"v_mov_b32 v{Q2+1}, 0")
    a("s_mov_b32 exec_lo, -1")
    stamp(a, 10)
    a("s_waitcnt lgkmcnt(0)")
    mf(a, S1, k0, Q1, "0"); mf8(a, S1, k0 + 8, Q2)
    mf(a, S0, k0, Q1, "0")
    a(f"v_max3_f32 v{VT}, v{S1}, v{S1+1}, v{S1+2}")
    a(f"v_max3_f32 v{VT+1}, v{S1+3}, v{S1+4}, v{S1+5}")
    a(f"v_max3_f32 v{VT+2}, v{S1+6}, v{S1+7}, v{S1+8}")
    a(f"v_max3_f32 v{VT+3}, v{S1+9}, v{S1+10}, v{S1+11}")
    a(f"v_max3_f32 v{VT}, v{VT}, v{S1+12}, v{S1+13}")
    a(f"v_max3_f32 v{VT+1}, v{VT+1}, v{S1+14}, v{S1+15}")
    a(f"v_max3_f32 v{VT}, v{VT}, v{VT+2}, v{VT+3}")
    a(f"v_max_f32 v{VT}, v{VT}, v{VT+1}")
    a(f"v_mov_b32 v{VT+1}, v{VT}")
    a(f"v_permlane32_swap_b32 v{VT}, v{VT+1}")
    a(f"v_max_f32 v{VT}, v{VT}, v{VT+1}")
    a("s_mov_b32 exec_lo, 0")
    a(f"v_cvt_pk_bf16_f32 v{Q2}, -v{VT}, 0")
    a("s_mov_b32 exec_lo, -1")
    mf8(a, S0, k0 + 8, Q2)
    stamp(a, 11); stamp(a, 12, 'cyc')
    a("s_waitcnt lgkmcnt(0)")
    a("s_nop 10")
    a.raw(".p2align 6")
    a.label("B_loop")
    start = a.mark()
    for u in range(8):
        Sc, Sn = (S0, S1) if u % 2 == 0 else (S1, S0)
        odd = u % 2
        o = u if odd else u - 1
        ks = KS[((o + 1) // 2) % 2]
        reads = group_reads(o)
        slots = [[reads[0]], [reads[1]], [reads[2]], [reads[3]]] if odd else [[reads[4], reads[5]], [reads[6]], [], []]
        e = lambda i: a(f"v_exp_f32 v{Sc+i}, v{Sc+i}")
        c = lambda i: a(f"v_cvt_pk_bf16_f32 v{P0+i}, v{Sc+2*i}, v{Sc+2*i+1}")
        if DRY and u == 3:
            a("s_cbranch_execz F_dryret")
            a.label("B_u3")
        if os.environ.get("CHST") and u == 0: a("s_memrealtime s[98:99]")
        e(0); e(1)
        if odd: a("s_waitcnt lgkmcnt(0)")
        if os.environ.get("CHST") and u == 1:
            sl = [2, 3, 4, 5, 6, 8, 9, 10]
            for k in range(7): a(f"s_mov_b32 s{64+2*sl[k]}, s{64+2*sl[k+1]}")
            a(f"s_mov_b32 s{64+2*sl[7]}, s98")
        mf(a, O, ks + (12 if odd else 20), P1, O)
        for r in slots[0]: rd(*r)
        if u == 5:
            if DRY: a("s_cbranch_execz F_dryret")
            a(f"v_readlane_b32 s{s_t0}, v{v_chk}, s{s_c}")
            a(f"s_add_u32 s{s_slot}, s{s_slot}, s{s_delta}")
            a(f"s_cmp_lt_u32 s{s_t0}, {12 if COMB else 4}")
            a("s_cbranch_scc1 B_spin")
            a.label("B_synced")
        if u == 2:
            a(f"s_cmp_eq_u32 s{s_slot}, {2*CH}")
            a(f"s_cselect_b32 s{s_delta}, {(-2*CH) & 0xffffffff}, s{s_cch}")
        e(2); e(3); c(0)
        if u == 5: a(f"v_add_u32 v{v_ka}, s{s_delta}, v{v_ka}")
        if u == 2: a(f"v_mov_b32_dpp v{v_one}, v{v_one} row_shr:1 row_mask:0xf bank_mask:0xf bound_ctrl:0")
        if u == 6: a(f"v_add_u32 v{v_va}, s{s_delta}, v{v_va}")
        e(4); c(1)
        mf(a, Sn, ks + (0 if odd else 4), Q1, "0")
        for r in slots[1]: rd(*r)
        e(5); e(6); e(7); c(2); e(8); c(3)
        mf8(a, Sn, ks + 8 + (0 if odd else 2), Q2)
        for r in slots[2]: rd(*r)
        if u == UARR:
            a(f"ds_add_u32 v{v_cnt}, v{v_one} offset:{256 if COMB else 0}")
        e(9); e(10); e(11); c(4); e(12); c(5)
        mf(a, O, ks + (16 if odd else 24), P0, O)
        for r in slots[3]: rd(*r)
        if u == 4: a(f"ds_read_b32 v{v_chk}, v{v_cnt} offset:256")
        if u == 6:
            a(f"s_add_u32 s{s_c}, s{s_c}, 1")
            a(f"s_cmp_lt_u32 s{s_c}, 8")
        e(13); e(14); e(15); c(6); c(7)
        for _ in range(int(os.environ.get("XMOV", "0"))): a(f"v_max_f32 v{VT}, v{VT}, v{VT}")
    a("s_cbranch_scc1 B_loop")
    a.check_backedge(start)
    stamp(a, 13); stamp(a, 14, 'cyc')
    mf(a, O, KS[0] + 20, P1, O)
    a(f"ds_add_u32 v{v_cnt}, v{v_one}")
    a("s_waitcnt lgkmcnt(0)")
    a(f"v_mov_b32 v{VT+2}, {hex(f32bits(2.0**60))}")
    a(f"s_lshl_b32 s{s_base}, s{s_lid}, 3")
    a(f"s_add_u32 s{s_base}, s{s_base}, s{s_w}")
    a(f"s_mul_i32 s{s_base}, s{s_base}, 1280")
    a(f"s_add_u32 s{s_base}, s{s_base}, {WS_O}")
    a(f"v_lshlrev_b32 v{v_g0}, 4, v0")
    a(f"v_lshlrev_b32 v{v_g0+1}, 3, v0")
    a(f"v_mov_b32 v{VT}, v{O+8}")
    a(f"v_mov_b32 v{VT+1}, v{O+8}")
    a(f"v_permlane32_swap_b32 v{VT}, v{VT+1}")
    a(f"v_cmp_nle_f32 vcc, {hex(f32bits(2.0**-60))}, v{VT+1}")
    a(f"v_cmp_nle_f32 s[52:53], v{VT+1}, v{VT+2}")
    a(f"s_or_b64 s[52:53], s[52:53], vcc")
    a("s_cbranch_scc1 B_fallback")
    a.label("B_norm")
    a(f"v_rcp_f32 v{VT}, v{VT+1}")
    for i in range(12): a(f"v_mul_f32 v{O+i}, v{VT}, v{O+i}")
    for i in range(6): a(f"v_cvt_pk_bf16_f32 v{O+i}, v{O+2*i}, v{O+2*i+1}")
    if DRY: a("s_cbranch_execz F_dryret")
    a(f"buffer_store_dwordx4 {vr(O,4)}, v{v_g0}, {WS}, s{s_base} offen sc1")
    a("s_mov_b32 exec_hi, 0")
    a(f"buffer_store_dwordx2 {vr(O+4,2)}, v{v_g0+1}, {WS}, s{s_base} offen offset:1024 sc1")
    if STAMP: a("s_waitcnt vmcnt(0)")
    if STAMP:
        stamp(a, 7); stamp(a, 15, True)
        stamp_flush(a, 1, SWS, s_w, 12, 16)
    a("s_endpgm")
    a.label("B_spin")
    a(f"s_mov_b32 s{s_spin}, {SPIN * 40}")
    a.label("B_spin1")
    a(f"s_sleep {os.environ.get('SSL', '4')}")
    a(f"ds_read_b32 v{v_chk}, v{v_cnt} offset:256")
    a("s_waitcnt lgkmcnt(0)")
    a(f"v_readlane_b32 s{s_t0}, v{v_chk}, s{s_c}")
    a(f"s_cmp_ge_u32 s{s_t0}, {12 if COMB else 4}")
    a("s_cbranch_scc1 B_synced")
    a(f"s_sub_u32 s{s_spin}, s{s_spin}, 1")
    a(f"s_cmp_lg_u32 s{s_spin}, 0")
    a("s_cbranch_scc1 B_spin1")
    a("s_branch B_synced")
    a.label("B_fallback")
    a("s_mov_b32 exec_lo, 0")
    a(f"v_mov_b32 v{Q2}, 0")
    a("s_mov_b32 exec_lo, -1")
    a(f"s_add_u32 s{s_slot}, s{s_slot}, {KVB}")
    a(f"v_subrev_u32 v{v_ka}, s{s_slot}, v{v_ka}")
    a(f"v_subrev_u32 v{v_va}, s{s_slot}, v{v_va}")
    a(f"v_mov_b32 v{VT}, 0xff800000")
    for r in range(O, O + 16): a(f"v_mov_b32 v{r}, 0")
    a(f"s_mov_b32 s{s_kvg}, {WS_KV}")
    def ldk():
        for i in range(3): a(f"buffer_load_dwordx4 {vr(k0+4*i,4)}, v{v_ka}, {WS}, s{s_kvg} offen offset:{1024*i} sc1")
    def qk(b):
        S = (S0, S1)[b]
        mf(a, S, k0 + 4 * b, Q1, "0"); mf8(a, S, k0 + 8 + 2 * b, Q2)
    def nxt(lbl):
        a(f"s_add_u32 s{s_kvg}, s{s_kvg}, {PAIR}")
        a(f"s_cmp_lt_u32 s{s_kvg}, {WS_KV + 32*PAIR}")
        a(f"s_cbranch_scc1 {lbl}")
    a.label("B_fb1")
    st = a.mark()
    ldk()
    a("s_waitcnt vmcnt(0)")
    qk(0); qk(1)
    for i in range(0, 32, 2): a(f"v_max3_f32 v{VT}, v{VT}, v{S0+i}, v{S0+i+1}")
    nxt("B_fb1")
    a.check_backedge(st)
    a(f"v_mov_b32 v{VT+1}, v{VT}")
    a(f"v_permlane32_swap_b32 v{VT}, v{VT+1}")
    a(f"v_max_f32 v{VT}, v{VT}, v{VT+1}")
    a(f"s_mov_b32 s{s_kvg}, {WS_KV}")
    a.label("B_fb2")
    st = a.mark()
    ldk()
    for i in range(4): a(f"buffer_load_dwordx4 {vr(k0+12+4*i,4)}, v{v_va}, {WS}, s{s_kvg} offen offset:{768*i} sc1")
    a("s_waitcnt vmcnt(0)")
    qk(0); qk(1)
    for b in range(2):
        S = (S0, S1)[b]
        for i in range(16): a(f"v_sub_f32 v{S+i}, v{S+i}, v{VT}")
        for i in range(16): a(f"v_exp_f32 v{S+i}, v{S+i}")
        for i in range(8): a(f"v_cvt_pk_bf16_f32 v{P0+i}, v{S+2*i}, v{S+2*i+1}")
        mf(a, O, k0 + 12 + 8 * b, P0, O); mf(a, O, k0 + 16 + 8 * b, P1, O)
    nxt("B_fb2")
    a.check_backedge(st)
    a(f"v_mov_b32 v{VT}, v{O+8}")
    a(f"v_mov_b32 v{VT+1}, v{O+8}")
    a(f"v_permlane32_swap_b32 v{VT}, v{VT+1}")
    a("s_nop 1")
    a("s_branch B_norm")

def gemm(a):
    global stamp
    decode_b(a)
    a(f"s_sub_u32 s{s_w}, s{s_w}, 8")
    srd(a, SW2, 56, 1728 * 1280)
    srd(a, SWO, 58, 640 * 1280)
    srd(a, SOUT, 60, 2048 * 1280)
    g = GW(a, 27, 4, 10, STG, PART, SW2, SWS, s_gw)
    v_wd2 = g.v_end
    v_wa2, vfl = 11, v_wd2 + 5
    vx = v_wd2 + 6
    v_wa3 = 0
    s_kw, s_ka, s_w0, s_a0 = 50, 51, 54, 55
    a(f"s_mul_i32 s{s_kvl}, s{s_w}, 6144")
    a(f"s_add_u32 s{s_kvg}, s{s_kvl}, {WS_KV + 3*CH}")
    def kv(c):
        lds_wait(a, f"G_free{c}", SCW + 4 * (c - 2), NW_, 2, s_spin, s_t0, 4)
        a(f"s_add_u32 m0, s{s_kvl}, {KVB + (c % 3)*CH}")
        for m in range(4):
            a(f"buffer_load_dwordx4 v{g.v_l16}, {WS}, s{s_kvg} offen offset:{m*1024} sc1 lds"); g.vm.issue(("KV", c))
        a(f"s_add_u32 m0, m0, 4096")
        a(f"s_add_u32 s{s_kvg}, s{s_kvg}, 4096")
        for m in range(2):
            a(f"buffer_load_dwordx4 v{g.v_l16}, {WS}, s{s_kvg} offen offset:{m*1024} sc1 lds"); g.vm.issue(("KV", c))
        a(f"s_add_u32 s{s_kvg}, s{s_kvg}, {CH-4096}")
    def landed(c):
        g.vm.wait(("KV", c))
        a("s_mov_b64 exec, 1")
        a(f"v_mov_b32 v2, {SC_L + 4 * (c - 1)}")
        a(f"v_mov_b32 v3, 1")
        a(f"ds_add_u32 v2, v3"); g.lg.issue("arr")
        a("s_mov_b64 exec, -1")
    a(f"s_mul_i32 s{s_base}, s{s_tt}, {QH_TT}")
    a(f"s_add_u32 s{s_base}, s{s_base}, {WS_QH + 40*1024}")
    g.setup(s_w, s_hg, s_base)
    a(f"s_mov_b32 s{s_w0}, s{g.s_woff}")
    a(f"s_mov_b32 s{s_a0}, s{g.s_aoff}")
    a(f"s_lshr_b32 s{s_kw}, s2, 3")
    a(f"s_mul_i32 s{s_kw}, s{s_kw}, {GROT}")
    a(f"s_mul_i32 s{s_t0}, s{s_kw}, 2428")
    a(f"s_lshr_b32 s{s_t0}, s{s_t0}, 16")
    a(f"s_mul_i32 s{s_t0}, s{s_t0}, 27")
    a(f"s_sub_u32 s{s_kw}, s{s_kw}, s{s_t0}")
    a(f"s_mov_b32 s{s_ka}, s{s_kw}")
    ALT = {32: 2 * CH, 33: 0}
    def wslot(i): return (i if i < 32 else i - 2) % 4
    def bump(r):
        a(f"s_add_u32 s{r}, s{r}, 1")
        a(f"s_cmp_eq_u32 s{r}, 27")
        a(f"s_cselect_b32 s{r}, 0, s{r}")
    def load_w(i):
        if i > 36: return
        vd = g.v_wd
        if i < 27:
            S = f"s[{SW2}:{SW2+3}]"
            a(f"s_mul_i32 s{g.s_woff}, s{s_kw}, {16*1280}")
            a(f"s_add_u32 s{g.s_woff}, s{g.s_woff}, s{s_w0}")
            bump(s_kw)
        else:
            S = f"s[{SWO}:{SWO+3}]"
            j = i - 27
            row = 80 * (j // 5) + (20 * (j % 5) if j % 5 < 4 else 16)
            if j % 5 == 4: vd = v_wd2
            a(f"s_add_u32 s{g.s_woff}, s{s_woff2}, {row*1280}")
        if i in ALT:
            a(f"s_mul_i32 s{s_t0}, s{s_w}, 5120")
            a(f"s_add_u32 m0, s{s_t0}, {KVB + ALT[i]}")
        else: a(f"s_add_u32 m0, s{g.s_lds}, {wslot(i)*5120}")
        for m in range(4):
            a(f"buffer_load_dwordx4 v{vd+m}, {S}, s{g.s_woff} offen offset:{m*1024} lds"); g.vm.issue(("W", i))
        a(f"s_add_u32 m0, m0, 4096")
        a(f"buffer_load_dwordx4 v{vd+4}, {S}, s{g.s_woff} offen lds"); g.vm.issue(("W", i))
    def areg(i): return g.v_act + 4 * ((i % 10) if i < 27 else (i - 27 + 0) % 10)
    def load_a(i):
        a(f"s_lshl_b32 s{g.s_aoff}, s{s_ka}, 10")
        a(f"s_add_u32 s{g.s_aoff}, s{g.s_aoff}, s{s_a0}")
        bump(s_ka)
        a(f"buffer_load_dwordx4 {vr(areg(i),4)}, v{g.v_l16}, {WS}, s{g.s_aoff} offen sc1"); g.vm.issue(("A", i))
    def rd_t(i, T):
        base, off = (v_wa3, ALT[i]) if i in ALT else (g.v_wa, wslot(i) * 5120)
        for p in range(2):
            a(f"ds_read_b64_tr_b16 {vr(g.v_wf+4*T+2*p,2)}, v{base} offset:{off + T*64 + p*2560}"); g.lg.issue((i, T))
    def rd_w(i):
        g.vm.wait(("W", i))
        for T in range(5): rd_t(i, T)
    def mm(i, nxt=None):
        g.vm.wait(("A", i), ("W", nxt))
        for T in range(5):
            g.lg.wait((i, T))
            acc = vr(g.v_acc + 16 * T, 16)
            a(f"v_mfma_f32_32x32x16_bf16 {acc}, {vr(g.v_wf+4*T,4)}, {vr(areg(i),4)}, {acc if i else 0}")
            if nxt is not None: rd_t(nxt, T)
    g.setup2()
    for m in range(5):
        a(f"v_add_u32 v1, {64*m}, v0")
        a(f"v_mul_u32_u24 v2, 0xcccd, v1")
        a(f"v_lshrrev_b32 v2, 22, v2")
        a(f"v_mul_u32_u24 v2, {16*1280}, v2")
        a(f"v_add_u32 v{v_wd2+m}, v2, v{g.v_wd+m}")
    a(f"s_lshr_b32 s{s_t0}, s{s_tt}, 2")
    a(f"v_mov_b32 v1, s{s_t0}")
    flag_off(a, vfl, 1, 0, 2)
    a(f"s_lshl_b32 s{s_t0}, s{s_tt}, 2")
    a(f"s_add_u32 s{s_t0}, s{s_t0}, s{s_w}")
    a(f"s_lshl_b32 s{s_t0}, s{s_t0}, 7")
    a(f"s_add_u32 s{s_t0}, s{s_t0}, {WS_FL + 32768}")
    a(f"v_writelane_b32 v{vfl}, s{s_t0}, 9")
    a(f"s_mul_i32 s{s_woff2}, s{s_w}, {160*1280}")
    a(f"s_mul_i32 s{s_t0}, s{s_hg}, 320")
    a(f"s_add_u32 s{s_woff2}, s{s_woff2}, s{s_t0}")
    lds_wait(a, "G_wait", SC_CNT + 8, 12, 2, s_spin, s_t0, 2)
    landed(2)
    a("s_cmp_eq_u32 s53, -1")
    a("s_cbranch_scc1 G_noh")
    for k in range(12):
        if k in (4, 10): a("s_add_u32 s53, s53, 4096")
        if k == 6: a(f"s_add_u32 s53, s53, {QH_TT - 4096}")
        a(f"buffer_store_dwordx4 {vr(72+4*k,4)}, v{g.v_l16}, {WS}, s53 offen offset:{(k % 6 % 4)*1024} sc1")
    stamp(a, 3)
    publish(a, "G_pub", 0, 4, 3, WS_FL, 1)
    stamp(a, 4)
    a.label("G_noh")
    for r in range(4): a(f"v_mov_b32 v{g.v_wf+r}, -1")
    a(f"s_lshl_b32 s{s_t0}, s{s_lid}, 2")
    a(f"s_add_u32 s{s_t0}, s{s_t0}, s{s_w}")
    a(f"s_mul_i32 s{s_t0}, s{s_t0}, 2560")
    a(f"s_add_u32 s{s_t0}, s{s_t0}, {WS_O}")
    for o in (0, 1024, 1536):
        a(f"buffer_store_dwordx4 {vr(g.v_wf,4)}, v{g.v_l16}, {WS}, s{s_t0} offen offset:{o} sc1"); g.vm.issue("R")
    for i in range(4): load_w(i)
    stamp(a, 8)
    publish(a, "G_pubr", 4, 4, s_lid, WS_FL + 32768, 1, vm=20)
    g.vm.issue("F")
    a("s_mov_b32 exec_lo, 0x3ff")
    a("s_mov_b32 exec_hi, 0")
    poll(a, "G_pollh", f"buffer_load_dword v2, v{vfl}, {WS}, 0 offen sc1", "v_cmp_gt_u32 vcc, 1, v2", 4)
    a("s_mov_b64 exec, -1")
    g.vm.q = []
    stamp(a, 9)
    if STAMP: a("s_waitcnt lgkmcnt(0)")
    for i in range(5): load_a(i)
    vo = vfl
    a(f"s_mul_i32 s{s_base}, s{s_tt}, {32*1280}")
    a(f"s_mul_i32 s{s_t0}, s{s_hg}, 320")
    a(f"s_add_u32 s{s_base}, s{s_base}, s{s_t0}")
    a(f"s_lshl_b32 s{s_t0}, s{s_w}, 4")
    a(f"s_add_u32 s{s_base}, s{s_base}, s{s_t0}")
    a(f"v_and_b32 v1, 31, v0")
    a(f"v_mul_u32_u24 v{vo}, 1280, v1")
    a(f"v_lshrrev_b32 v2, 5, v0")
    a(f"v_lshl_add_u32 v{vo}, v2, 3, v{vo}")
    a(f"v_mul_u32_u24 v{v_wa2}, 1280, v2")
    a(f"v_lshl_add_u32 v{v_wa2}, v1, 3, v{v_wa2}")
    a(f"v_mul_u32_u24 v1, 0xcccd, v0")
    a(f"v_lshrrev_b32 v1, 18, v1")
    a(f"v_mul_u32_u24 v2, 5, v1")
    a(f"v_sub_u32 v2, v0, v2")
    a(f"v_mul_u32_u24 v1, 1280, v1")
    a(f"v_lshl_add_u32 v{vx}, v2, 6, v1")
    a(f"s_mul_i32 s{s_t0}, s{s_w}, 5120")
    a(f"s_sub_u32 s{s_t0}, s{s_t0}, s{g.s_lds}")
    a(f"s_add_u32 s{s_t0}, s{s_t0}, {KVB}")
    a(f"v_add_u32 v{v_wa3}, s{s_t0}, v{g.v_wa}")
    a(f"s_setprio {GPRIO}")
    KVAT = [int(x) for x in os.environ.get("KVAT", "0,4,9,14,19").split(",")]
    def ffn(i):
        if i in KVAT: kv(3 + KVAT.index(i))
        if i % 5 == ABAT:
            for k in range(i - ABAT + 5, min(i - ABAT + 10, 27)): load_a(k)
        if PIPE:
            if i == 0: rd_w(0)
            mm(i, i + 1)
        elif "nomm" not in GX: rd_w(i); mm(i)
        if i in KVAT:
            c = 3 + KVAT.index(i)
            landed(c)
        if "nold" not in GX or i + 4 >= 27: load_w(i + 4)
        if i == WOPF:
            a(f"s_and_b32 s{s_t0}, s{s_tt}, 7")
            a(f"s_mul_i32 s{s_t0}, s{s_t0}, {20*1280}")
            a(f"s_add_u32 s{s_t0}, s{s_t0}, s{s_woff2}")
            a(f"s_add_u32 s{s_t1}, s{s_t0}, {10*1280}")
            a(f"buffer_load_dword v{vx+2}, v{vx}, s[{SWO}:{SWO+3}], s{s_t0} offen"); g.vm.issue("P")
            a(f"buffer_load_dword v{vx+3}, v{vx}, s[{SWO}:{SWO+3}], s{s_t1} offen"); g.vm.issue("P")
        if i == WOPF + 5:
            g.vm.wait("P")
            for T in range(5):
                a(f"buffer_load_dwordx2 {vr(vx+2*T,2)}, v{vo}, s[{SX}:{SX+3}], s{s_base} offen offset:{64*T}"); g.vm.issue("X")
        if i == PEND: lds_wait(a, "G_pace", SCW + 24, NW_, 2, s_spin, s_t0, 4)
        if i in (4, 13, 22):
            stamp(a, {4: 10, 13: 11, 22: 12}[i])
            if STAMP: a("s_waitcnt lgkmcnt(0)")
    for i in range(25): ffn(i)
    a(f"s_lshl_b32 s{s_t0}, s{s_tt}, 2")
    a(f"s_add_u32 s{s_t0}, s{s_t0}, s{s_w}")
    a(f"s_mul_i32 s{g.s_aoff}, s{s_t0}, 10240")
    a(f"s_add_u32 s{g.s_aoff}, s{g.s_aoff}, {WS_O}")
    ffn(25); ffn(26)
    g.lg.drain()
    load_w(31)
    lds_wait(a, "G_alt0", SCW + 24, NW_, 2, s_spin, s_t0, 2)
    load_w(32)
    if TAILST: stamp(a, 5)
    lds_wait(a, "G_trig0", SC_K + 32, TRIG[0], 2, s_spin, s_t0, 1)
    a("s_setprio 3")
    def o_poll(half):
        b = areg(27 + 5 * half)
        so = g.s_aoff if half == 0 else s_a0
        ld = [f"buffer_load_dwordx4 {vr(b+4*j,4)}, v{g.v_l16}, {WS}, s{so} offen offset:{j*1280} sc1" for j in range(4)]
        ld += [f"buffer_load_dwordx2 {vr(b+16+2*j,2)}, v{v_wa2}, {WS}, s{so} offen offset:{1024+2560*j} sc1" for j in range(2)]
        ck = [f"v_max3_u32 v{1+k}, v{b+3*k}, v{b+3*k+1}, v{b+3*k+2}" for k in range(3)]
        ck += [f"v_max3_u32 v{1+k}, v{1+k}, v{b+9+2*k}, v{b+10+2*k}" for k in range(3)]
        ck += [f"v_max3_u32 v1, v1, v{b+15}, v{b+16}", f"v_max3_u32 v2, v2, v{b+17}, v{b+18}", f"v_max_u32 v3, v3, v{b+19}",
               "v_max3_u32 v1, v1, v2, v3", "v_cmp_eq_u32 vcc, -1, v1"]
        return "\n".join(ld), "\n".join(ck)
    a(f"s_add_u32 s{s_a0}, s{g.s_aoff}, 5120")
    poll(a, "G_pollo0", *o_poll(0), OSL[0])
    g.vm.q = []
    if TAILST: stamp(a, 6); a("s_waitcnt lgkmcnt(0)")
    for i in range(27, 32):
        mm(i, i + 1)
        if 28 <= i <= 30: load_w(i + 6)
    lds_wait(a, "G_alt1", SCW + 28, NW_, 2, s_spin, s_t0, 1)
    load_w(33)
    stamp(a, 2)
    lds_wait(a, "G_trig1", SC_K + 32, TRIG[1], 2, s_spin, s_t0, 1)
    g.lg.q = []
    poll(a, "G_pollo1", *o_poll(1), OSL[1])
    g.vm.q = []
    a("s_setprio 3")
    stamp(a, 13)
    if STAMP: a("s_waitcnt lgkmcnt(0)")
    for i in range(32, 37): mm(i, i + 1 if i < 36 else None)
    stamp(a, 14)
    a(f"v_add_u32 v1, s{g.s_lds}, v{g.v_l16}")
    a(f"s_mul_i32 s{s_t0}, s{s_w}, 5120")
    a(f"s_add_u32 s{s_t0}, s{s_t0}, {STG}")
    a(f"v_add_u32 v2, s{s_t0}, v{g.v_l16}")
    for T in range(5):
        for q in range(4):
            a(f"ds_write_b128 v1, {vr(g.v_acc+16*T+4*q,4)} offset:{q*5120+T*1024}")
    xf = g.v_act
    for T in range(5):
        a(f"v_lshlrev_b32 v{xf+4*T}, 16, v{vx+2*T}")
        a(f"v_and_b32 v{xf+4*T+1}, 0xffff0000, v{vx+2*T}")
        a(f"v_lshlrev_b32 v{xf+4*T+2}, 16, v{vx+2*T+1}")
        a(f"v_and_b32 v{xf+4*T+3}, 0xffff0000, v{vx+2*T+1}")
    a("s_waitcnt lgkmcnt(0)")
    if TAILST: stamp(a, 10)
    a("s_barrier")
    if TAILST: stamp(a, 11); a("s_waitcnt lgkmcnt(0)")
    a(f"v_add_u32 v1, {2*PART}, v2")
    for T in range(5):
        for sidx in range(4):
            a(f"ds_read_b128 {vr(g.v_acc+16*T+4*sidx,4)}, v{2 if sidx < 2 else 1} offset:{(sidx%2)*PART+T*1024}"); g.lg.issue(T)
        if T >= 2: fin_tile(a, g, T - 2, xf, vo)
    fin_tile(a, g, 3, xf, vo); fin_tile(a, g, 4, xf, vo)
    if STAMP:
        if TAILST: stamp(a, 9)
        a("s_waitcnt vmcnt(0)"); stamp(a, 7); stamp(a, 15, True)
        a(f"s_add_u32 s{s_w}, s{s_w}, 8")
        stamp_flush(a, 1, SWS, s_w, 12, 16, gsel=[(9, False), (10, False), (12, False), (13, False), (14, False), (15, False)], goff=8)
    a("s_endpgm")
    return vx + 10

def fin_tile(a, g, T, xf, vo):
    b = g.v_acc + 16 * T
    g.lg.wait(T)
    for h in range(2):
        a(f"v_pk_add_f32 {vr(b+2*h,2)}, {vr(b+2*h,2)}, {vr(b+4+2*h,2)}")
        a(f"v_pk_add_f32 {vr(b+8+2*h,2)}, {vr(b+8+2*h,2)}, {vr(b+12+2*h,2)}")
    for h in range(2):
        a(f"v_pk_add_f32 {vr(b+2*h,2)}, {vr(b+2*h,2)}, {vr(xf+4*T+2*h,2)}")
    for h in range(2):
        a(f"v_pk_add_f32 {vr(b+2*h,2)}, {vr(b+2*h,2)}, {vr(b+8+2*h,2)}")
    a(f"v_cvt_pk_bf16_f32 v{b}, v{b}, v{b+1}")
    a(f"v_cvt_pk_bf16_f32 v{b+1}, v{b+2}, v{b+3}")
    a(f"buffer_store_dwordx2 {vr(b,2)}, v{vo}, s[{SOUT}:{SOUT+3}], s{s_base} offen offset:{64*T}")

def gen_f(a, name="parallel_sum__grouped_kv_mqa__dense_activation_relu__prompt_kernel"):
    kernel_header(a, name)
    a("s_cmp_ge_u32 s2, 256")
    a("s_cbranch_scc1 F_end")
    stamp(a, 0, True); stamp(a, 1)
    BMAP = int(os.environ.get("BMAP", "2"))
    if BMAP == 0: a(f"s_mov_b32 s{s_lid}, s2")
    elif BMAP == 1:
        a(f"s_bfe_u32 s{s_lid}, s2, 0x20001")
        a(f"s_lshl_b32 s{s_lid}, s{s_lid}, 4")
        a(f"s_lshr_b32 s35, s2, 4")
        a(f"s_add_u32 s{s_lid}, s{s_lid}, s35")
        a(f"s_lshl_b32 s{s_lid}, s{s_lid}, 1")
        a(f"s_and_b32 s35, s2, 1")
        a(f"s_add_u32 s{s_lid}, s{s_lid}, s35")
        a(f"s_lshl_b32 s{s_lid}, s{s_lid}, 1")
        a(f"s_bfe_u32 s35, s2, 0x10003")
        a(f"s_add_u32 s{s_lid}, s{s_lid}, s35")
    else:
        a(f"s_and_b32 s{s_lid}, s2, 7")
        a(f"s_lshl_b32 s{s_lid}, s{s_lid}, 5")
        a(f"s_lshr_b32 s35, s2, 3")
        a(f"s_add_u32 s{s_lid}, s{s_lid}, s35")
    if STAMP == 3: a("s_mov_b32 s72, 0")
    def clear_cnt(a):
        a("v_lshlrev_b32 v1, 2, v0")
        a(f"v_add_u32 v1, {SC_CNT}, v1")
        a("v_mov_b32 v2, 0")
        a("ds_write_b32 v1, v2")
        a("ds_write_b32 v1, v2 offset:256")
        a("v_add_u32 v3, -1, v0")
        a("v_cmp_lt_u32 vcc, 5, v3")
        a("v_cndmask_b32 v2, 0, 4, vcc")
        a("ds_write_b32 v1, v2 offset:512")
        a("s_waitcnt lgkmcnt(0)")
    def start_hook(a):
        clear_cnt(a)
        attn_addr(a)
    def pre_ba(a): attn_addr(a)
    def done_help(a): a("s_branch F_fetch")
    def done_stats(a): a("s_branch F_dry" if DRY else "s_branch F_attn")
    def done_comp(a): a("s_branch F_pub")
    def spare(a):
        ka2.produce_stats(a)
        clear_cnt(a)
        attn_addr(a)
        a(f"s_cmp_lg_u32 s{s_w}, 0")
        a("s_cbranch_scc1 F_sp1")
        ka2.dbg_check(a, "F_dbg")
        a.label("F_sp1")
        a("s_barrier")
        a(f"s_cmp_ge_u32 s{s_w}, 8")
        a("s_cbranch_scc1 F_gemm0")
        a(f"s_cmp_ge_u32 s{s_w}, 4")
        a("s_cbranch_scc1 F_dry" if DRY else "s_cbranch_scc1 F_attn")
    phase_a(a, done_help, done_stats, done_comp, spare, start_hook, pre_ba)
    a.label("F_fetch")
    fetch(a)
    a.label("F_attn")
    attention(a)
    if DRY:
        a.label("F_dry")
        a(f"s_cmp_eq_u32 s{s_w}, 4")
        a("s_cbranch_scc1 F_attn")
        a("s_mov_b64 exec, 0")
        a(f"s_mov_b32 s{s_c}, 7")
        a(f"s_cmp_eq_u32 s{s_w}, 5")
        a("s_cbranch_scc1 B_loop")
        a(f"s_cmp_eq_u32 s{s_w}, 6")
        a("s_cbranch_scc1 B_u3")
        a("s_branch B_synced")
        a.label("F_dryret")
        a("s_mov_b64 exec, -1")
        a("s_nop 7")
        a("s_nop 7")
        a("s_branch F_attn")
    a.label("F_pub")
    stamp(a, 3)
    publish(a, "F_pub2", 0, 4, 3, WS_FL, 1)
    stamp(a, 4)
    lds_wait(a, "F_all", SC_CNT, 4, 2, s_spin, s_t0)
    a.label("F_gemm0")
    a("s_mov_b32 s53, -1")
    a.label("F_gemm")
    nv = gemm(a)
    a.label("F_end")
    a("s_endpgm")
    assert nv <= 168, nv
    return dict(name=name, grid=256, block=768, lds=LDS_A, vgpr=168, sgpr=102 if STAMP else 72, single=True)
```

```python
from common import *
from gw import *
import ka2
from ka2 import phase_a, SC_CNT, LDS_A

GPRIO = int(os.environ.get("GPRIO", "0"))
HOLD = 1
GROT = int(os.environ.get("GROT", "4"))
GX = os.environ.get("GX", "")
UARR = int(os.environ.get("UARR", "0"))
SC_L = None
DRY = int(os.environ.get("DRY", "1"))
PACE = [float(x) for x in os.environ.get("PACE", "1.7,7.0").split(",")]
PEND = int(os.environ.get("PEND", "22"))
ABAT = int(os.environ.get("ABAT", "0"))
PIPE = int(os.environ.get("PIPE", "1"))
KV4 = int(os.environ.get("KV4", "0"))
DEFW = int(os.environ.get("DEFW", "4"))
DEFER = int(os.environ.get("DEFER", "0"))
PAIR = 2 * KV_TILE
CH = 8 * KV_TILE
STG = 0
KVB = 4 * PART
assert KVB + 3 * CH <= ka2.SCR and KVB >= 2 * ka2.SLOT
RESET_WG = (3 << 6) | (3 << 1)

SX, SW2, SWS, SWO, SOUT, SDBG = 4, 8, 12, 16, 20, 16
s_w, s_tt, s_hg, s_t0, s_t1, s_c, s_slot, s_delta, s_cch, s_base, s_spin, s_kvl, s_kvg, s_woff2 = range(32, 46)
s_gw = 46
s_lid = 97 if STAMP else 64
WS = f"s[{SWS}:{SWS+3}]"
Q1, Q2, P0, P1, O, S0, S1 = 4, 8, 12, 16, 20, 36, 52
KS = [68, 96]
v_ka, v_va, v_g0, VT = 124, 125, 126, 130
v_l16, v_cnt, v_one, v_chk = 136, 137, 138, 139
SC_K = SC_CNT + 256
SC_L = SC_K + 256
COMB = int(os.environ.get('COMB', '1'))
SCW, NW_ = (SC_L, 12) if COMB else (SC_K, 8)
s_tgt = 45

def mf(a, d, x, y, c): a(f"v_mfma_f32_32x32x16_bf16 {vr(d,16)}, {vr(x,4)}, {vr(y,4)}, {c if isinstance(c,str) else vr(c,16)}")
def mf8(a, d, x, y): a(f"v_mfma_f32_32x32x8_bf16 {vr(d,16)}, {vr(x,2)}, {vr(y,2)}, {vr(d,16)}")

def flag_off(a, vd, vrb, vg, t):
    a(f"v_lshl_add_u32 v{vd}, v{vrb}, 4, v{vg}")
    a(f"v_lshlrev_b32 v{vd}, 7, v{vd}")
    a(f"v_add_u32 v{vd}, {WS_FL}, v{vd}")

def publish(a, name, cnt_off, nwaves, sid, base, t, value=1, vm=0):
    a(f"s_waitcnt vmcnt({vm})")
    a("s_mov_b64 exec, 1")
    a(f"v_mov_b32 v{t}, {SC_CNT + cnt_off}")
    a(f"v_mov_b32 v{t+1}, 1")
    a(f"ds_add_rtn_u32 v{t+1}, v{t}, v{t+1}")
    a(f"s_lshl_b32 s{s_t0}, s{sid}, 7")
    a(f"s_add_u32 s{s_t0}, s{s_t0}, {base}")
    a(f"v_mov_b32 v{t}, 0")
    a(f"v_mov_b32 v{t+2}, {value}")
    a("s_waitcnt lgkmcnt(0)")
    a(f"v_readfirstlane_b32 s{s_t1}, v{t+1}")
    a(f"s_cmp_lg_u32 s{s_t1}, {nwaves-1}")
    a(f"s_cbranch_scc1 {name}")
    a(f"buffer_store_dword v{t+2}, v{t}, {WS}, s{s_t0} offen sc1")
    a.label(name)
    a("s_mov_b64 exec, -1")

def decode_b(a):
    a(f"s_lshr_b32 s{s_tt}, s{s_lid}, 2")
    a(f"s_and_b32 s{s_hg}, s{s_lid}, 3")

def attn_addr(a):
    a(f"s_and_b32 s{s_t0}, s{s_lid}, 3")
    a(f"s_lshl_b32 s{s_t0}, s{s_t0}, 3")
    a(f"s_add_u32 s{s_t0}, s{s_t0}, s{s_w}")
    a(f"s_mul_i32 s{s_t0}, s{s_t0}, 5")
    a(f"v_lshrrev_b32 v2, 5, v0")
    a(f"v_and_b32 v3, 31, v0")
    a(f"v_lshlrev_b32 v3, 4, v3")
    for i in range(3):
        if i < 2: a(f"v_add_u32 v1, s{s_t0}, v2")
        else: a(f"v_mov_b32 v1, s{s_t0}")
        if i: a(f"v_add_u32 v1, {2*i}, v1")
        a(f"v_lshrrev_b32 v{VT}, 2, v1")
        a(f"v_lshl_add_u32 v{v_g0+i}, v{VT}, 10, v3")
        a(f"v_and_b32 v{VT}, 1, v1")
        a(f"v_lshl_add_u32 v{v_g0+i}, v{VT}, 9, v{v_g0+i}")
        a(f"v_bfe_u32 v{VT}, v1, 1, 1")
        a(f"v_lshl_add_u32 v{v_g0+i}, v{VT}, 3, v{v_g0+i}")
    a(f"v_lshlrev_b32 v{v_l16}, 4, v0")
    a(f"v_add_u32 v{v_ka}, {KVB}, v{v_l16}")
    a(f"v_lshlrev_b32 v{v_cnt}, 2, v0")
    a(f"v_add_u32 v{v_cnt}, {SC_K}, v{v_cnt}")
    a(f"v_cmp_eq_u32 vcc, 0, v0")
    a(f"v_cndmask_b32 v{v_one}, 0, 1, vcc")
    a(f"v_and_b32 v1, 31, v0")
    a(f"v_min_u32 v1, 23, v1")
    a(f"v_mul_u32_u24 v{v_va}, 384, v2")
    a(f"v_lshl_add_u32 v{v_va}, v1, 4, v{v_va}")
    a(f"v_add_u32 v{v_va}, {KVB + 3072}, v{v_va}")

def fetch(a):
    decode_b(a)
    a(f"s_cmp_lg_u32 s{s_w}, 0")
    a("s_cbranch_scc1 B_fkv")
    a(f"s_lshr_b32 s{s_t0}, s{s_tt}, 2")
    a(f"s_add_u32 s{s_t1}, s{s_hg}, 9")
    a(f"v_mov_b32 v1, s{s_t0}")
    a(f"v_add_u32 v2, s{s_t1}, v0")
    flag_off(a, 4, 1, 2, 3)
    a("s_mov_b64 exec, 3")
    poll(a, "B_pollq", f"buffer_load_dword v2, v4, {WS}, 0 offen sc1", "v_cmp_gt_u32 vcc, 1, v2")
    a("s_branch B_arrive")
    a.label("B_fkv")
    a(f"v_mov_b32 v2, 14")
    flag_off(a, 4, 0, 2, 3)
    a(f"s_sub_u32 s{s_kvl}, s{s_w}, 1")
    a(f"s_lshl_b32 s{s_kvl}, s{s_kvl}, 13")
    a(f"s_add_u32 s{s_kvg}, s{s_kvl}, {WS_KV}")
    a(f"v_lshlrev_b32 v5, 4, v0")
    a("s_mov_b32 exec_lo, 0xffff")
    a("s_mov_b32 exec_hi, 0")
    poll(a, "B_pollkv", f"buffer_load_dword v2, v4, {WS}, 0 offen sc1", "v_cmp_gt_u32 vcc, 1, v2", 6)
    a("s_mov_b64 exec, -1")
    stamp(a, 5)
    for c in range(3):
        for hf in range(2):
            a(f"s_add_u32 m0, s{s_kvl}, {KVB + c*CH + hf*4096}")
            a(f"s_add_u32 s{s_t0}, s{s_kvg}, {c*CH + hf*4096}")
            for m in range(4): a(f"buffer_load_dwordx4 v5, {WS}, s{s_t0} offen offset:{m*1024} sc1 lds")
    a("s_waitcnt vmcnt(8)")
    stamp(a, 2)
    a.label("B_arrive")
    lds_arrive(a, SC_CNT + 8, 2)

def attention(a):
    decode_b(a)
    stamp(a, 8)
    a(f"s_mul_i32 s{s_base}, s{s_tt}, {QH_TT}")
    lds_wait(a, "B_wait", SC_CNT + 8, 4, 2, s_spin, s_t0)
    stamp(a, 9)
    a(f"buffer_load_dwordx2 {vr(Q1,2)}, v{v_g0}, {WS}, s{s_base} offen sc1")
    a(f"buffer_load_dwordx2 {vr(Q1+2,2)}, v{v_g0+1}, {WS}, s{s_base} offen sc1")
    a(f"buffer_load_dwordx2 {vr(Q2,2)}, v{v_g0+2}, {WS}, s{s_base} offen sc1")
    for r in list(range(KS[0] + 20, KS[0] + 24)) + list(range(P1, P1 + 4)) + list(range(O, O + 16)):
        a(f"v_mov_b32 v{r}, 0")
    a(f"s_mov_b32 s{s_c}, 0")
    a(f"s_mov_b32 s{s_slot}, 0")
    a(f"s_mov_b32 s{s_cch}, {CH}")
    def kv_off(kind, t):
        p = (t % 8) // 2 * PAIR; b = t % 2
        return {"K1": p + 1024 * b, "K2": p + 2048, "V0": p + 1536 * b, "V1": p + 1536 * b + 768}[kind]
    def rd(dst, kind, t):
        a(f"ds_read_b128 {vr(dst,4)}, v{v_ka if kind[0] == 'K' else v_va} offset:{kv_off(kind, t)}")
    def group_reads(o):
        n = KS[((o + 1) // 2 + 1) % 2]
        return [(n + 12, "V1", o + 1), (n, "K1", o + 3), (n + 8, "K2", o + 3), (n + 16, "V0", o + 2),
                (n + 20, "V1", o + 2), (n + 4, "K1", o + 4), (n + 24, "V0", o + 3)]
    k0 = KS[0]
    rd(k0, "K1", 0); rd(k0 + 8, "K2", 0); rd(k0 + 4, "K1", 1); rd(k0 + 24, "V0", 0)
    for r in group_reads(-1)[:4]: rd(*r)
    a("s_waitcnt vmcnt(0)")
    lds_arrive(a, SC_CNT + 8, 2)
    a("s_mov_b32 exec_lo, 0")
    a(f"v_mov_b32 v{Q2}, 0")
    a(f"v_mov_b32 v{Q2+1}, 0")
    a("s_mov_b32 exec_lo, -1")
    stamp(a, 10)
    a("s_waitcnt lgkmcnt(0)")
    mf(a, S1, k0, Q1, "0"); mf8(a, S1, k0 + 8, Q2)
    mf(a, S0, k0, Q1, "0")
    a(f"v_max3_f32 v{VT}, v{S1}, v{S1+1}, v{S1+2}")
    a(f"v_max3_f32 v{VT+1}, v{S1+3}, v{S1+4}, v{S1+5}")
    a(f"v_max3_f32 v{VT+2}, v{S1+6}, v{S1+7}, v{S1+8}")
    a(f"v_max3_f32 v{VT+3}, v{S1+9}, v{S1+10}, v{S1+11}")
    a(f"v_max3_f32 v{VT}, v{VT}, v{S1+12}, v{S1+13}")
    a(f"v_max3_f32 v{VT+1}, v{VT+1}, v{S1+14}, v{S1+15}")
    a(f"v_max3_f32 v{VT}, v{VT}, v{VT+2}, v{VT+3}")
    a(f"v_max_f32 v{VT}, v{VT}, v{VT+1}")
    a(f"v_mov_b32 v{VT+1}, v{VT}")
    a(f"v_permlane32_swap_b32 v{VT}, v{VT+1}")
    a(f"v_max_f32 v{VT}, v{VT}, v{VT+1}")
    a("s_mov_b32 exec_lo, 0")
    a(f"v_cvt_pk_bf16_f32 v{Q2}, -v{VT}, 0")
    a("s_mov_b32 exec_lo, -1")
    mf8(a, S0, k0 + 8, Q2)
    stamp(a, 11); stamp(a, 12, 'cyc')
    a("s_waitcnt lgkmcnt(0)")
    a("s_nop 10")
    a.raw(".p2align 6")
    a.label("B_loop")
    start = a.mark()
    for u in range(8):
        Sc, Sn = (S0, S1) if u % 2 == 0 else (S1, S0)
        odd = u % 2
        o = u if odd else u - 1
        ks = KS[((o + 1) // 2) % 2]
        reads = group_reads(o)
        slots = [[reads[0]], [reads[1]], [reads[2]], [reads[3]]] if odd else [[reads[4], reads[5]], [reads[6]], [], []]
        e = lambda i: a(f"v_exp_f32 v{Sc+i}, v{Sc+i}")
        c = lambda i: a(f"v_cvt_pk_bf16_f32 v{P0+i}, v{Sc+2*i}, v{Sc+2*i+1}")
        if DRY and u == 3:
            a("s_cbranch_execz F_dryret")
            a.label("B_u3")
        if os.environ.get("CHST") and u == 0: a("s_memrealtime s[98:99]")
        e(0); e(1)
        if odd: a("s_waitcnt lgkmcnt(0)")
        if os.environ.get("CHST") and u == 1:
            sl = [2, 3, 4, 5, 6, 8, 9, 10]
            for k in range(7): a(f"s_mov_b32 s{64+2*sl[k]}, s{64+2*sl[k+1]}")
            a(f"s_mov_b32 s{64+2*sl[7]}, s98")
        mf(a, O, ks + (12 if odd else 20), P1, O)
        for r in slots[0]: rd(*r)
        if u == 5:
            if DRY: a("s_cbranch_execz F_dryret")
            a(f"v_readlane_b32 s{s_t0}, v{v_chk}, s{s_c}")
            a(f"s_add_u32 s{s_slot}, s{s_slot}, s{s_delta}")
            a(f"s_cmp_lt_u32 s{s_t0}, {12 if COMB else 4}")
            a("s_cbranch_scc1 B_spin")
            a.label("B_synced")
        if u == 2:
            a(f"s_cmp_eq_u32 s{s_slot}, {2*CH}")
            a(f"s_cselect_b32 s{s_delta}, {(-2*CH) & 0xffffffff}, s{s_cch}")
        e(2); e(3); c(0)
        if u == 5: a(f"v_add_u32 v{v_ka}, s{s_delta}, v{v_ka}")
        if u == 2: a(f"v_mov_b32_dpp v{v_one}, v{v_one} row_shr:1 row_mask:0xf bank_mask:0xf bound_ctrl:0")
        if u == 6: a(f"v_add_u32 v{v_va}, s{s_delta}, v{v_va}")
        e(4); c(1)
        mf(a, Sn, ks + (0 if odd else 4), Q1, "0")
        for r in slots[1]: rd(*r)
        e(5); e(6); e(7); c(2); e(8); c(3)
        mf8(a, Sn, ks + 8 + (0 if odd else 2), Q2)
        for r in slots[2]: rd(*r)
        if u == UARR:
            a(f"ds_add_u32 v{v_cnt}, v{v_one} offset:{256 if COMB else 0}")
        e(9); e(10); e(11); c(4); e(12); c(5)
        mf(a, O, ks + (16 if odd else 24), P0, O)
        for r in slots[3]: rd(*r)
        if u == 4: a(f"ds_read_b32 v{v_chk}, v{v_cnt} offset:256")
        if u == 6:
            a(f"s_add_u32 s{s_c}, s{s_c}, 1")
            a(f"s_cmp_lt_u32 s{s_c}, 8")
        e(13); e(14); e(15); c(6); c(7)
        for _ in range(int(os.environ.get("XMOV", "0"))): a(f"v_max_f32 v{VT}, v{VT}, v{VT}")
    a("s_cbranch_scc1 B_loop")
    a.check_backedge(start)
    stamp(a, 13); stamp(a, 14, 'cyc')
    mf(a, O, KS[0] + 20, P1, O)
    if DEFER: lds_arrive(a, SC_CNT + 16, VT)
    a("s_waitcnt lgkmcnt(0)")
    a(f"v_mov_b32 v{VT+2}, {hex(f32bits(2.0**60))}")
    a(f"s_lshl_b32 s{s_base}, s{s_lid}, 3")
    a(f"s_add_u32 s{s_base}, s{s_base}, s{s_w}")
    a(f"s_mul_i32 s{s_base}, s{s_base}, 1280")
    a(f"s_add_u32 s{s_base}, s{s_base}, {WS_O}")
    a(f"v_lshlrev_b32 v{v_g0}, 4, v0")
    a(f"v_lshlrev_b32 v{v_g0+1}, 3, v0")
    a(f"v_mov_b32 v{VT}, v{O+8}")
    a(f"v_mov_b32 v{VT+1}, v{O+8}")
    a(f"v_permlane32_swap_b32 v{VT}, v{VT+1}")
    a(f"v_cmp_nle_f32 vcc, {hex(f32bits(2.0**-60))}, v{VT+1}")
    a(f"v_cmp_nle_f32 s[52:53], v{VT+1}, v{VT+2}")
    a(f"s_or_b64 s[52:53], s[52:53], vcc")
    a("s_cbranch_scc1 B_fallback")
    a.label("B_norm")
    a(f"v_rcp_f32 v{VT}, v{VT+1}")
    for i in range(12): a(f"v_mul_f32 v{O+i}, v{VT}, v{O+i}")
    for i in range(6): a(f"v_cvt_pk_bf16_f32 v{O+i}, v{O+2*i}, v{O+2*i+1}")
    if DRY: a("s_cbranch_execz F_dryret")
    a(f"buffer_store_dwordx4 {vr(O,4)}, v{v_g0}, {WS}, s{s_base} offen sc1")
    a("s_mov_b32 exec_hi, 0")
    a(f"buffer_store_dwordx2 {vr(O+4,2)}, v{v_g0+1}, {WS}, s{s_base} offen offset:1024 sc1")
    publish(a, "B_pub", 4, 8, s_lid, WS_FL + 32768, VT)
    if STAMP:
        stamp(a, 7); stamp(a, 15, True)
        stamp_flush(a, 1, SWS, s_w, 12, 16)
    a("s_endpgm")
    a.label("B_spin")
    a(f"s_mov_b32 s{s_spin}, {SPIN * 40}")
    a.label("B_spin1")
    a(f"s_sleep {os.environ.get('SSL', '4')}")
    a(f"ds_read_b32 v{v_chk}, v{v_cnt} offset:256")
    a("s_waitcnt lgkmcnt(0)")
    a(f"v_readlane_b32 s{s_t0}, v{v_chk}, s{s_c}")
    a(f"s_cmp_ge_u32 s{s_t0}, {12 if COMB else 4}")
    a("s_cbranch_scc1 B_synced")
    a(f"s_sub_u32 s{s_spin}, s{s_spin}, 1")
    a(f"s_cmp_lg_u32 s{s_spin}, 0")
    a("s_cbranch_scc1 B_spin1")
    a("s_branch B_synced")
    a.label("B_fallback")
    a("s_mov_b32 exec_lo, 0")
    a(f"v_mov_b32 v{Q2}, 0")
    a("s_mov_b32 exec_lo, -1")
    a(f"s_add_u32 s{s_slot}, s{s_slot}, {KVB}")
    a(f"v_subrev_u32 v{v_ka}, s{s_slot}, v{v_ka}")
    a(f"v_subrev_u32 v{v_va}, s{s_slot}, v{v_va}")
    a(f"v_mov_b32 v{VT}, 0xff800000")
    for r in range(O, O + 16): a(f"v_mov_b32 v{r}, 0")
    a(f"s_mov_b32 s{s_kvg}, {WS_KV}")
    def ldk():
        for i in range(3): a(f"buffer_load_dwordx4 {vr(k0+4*i,4)}, v{v_ka}, {WS}, s{s_kvg} offen offset:{1024*i} sc1")
    def qk(b):
        S = (S0, S1)[b]
        mf(a, S, k0 + 4 * b, Q1, "0"); mf8(a, S, k0 + 8 + 2 * b, Q2)
    def nxt(lbl):
        a(f"s_add_u32 s{s_kvg}, s{s_kvg}, {PAIR}")
        a(f"s_cmp_lt_u32 s{s_kvg}, {WS_KV + 32*PAIR}")
        a(f"s_cbranch_scc1 {lbl}")
    a.label("B_fb1")
    st = a.mark()
    ldk()
    a("s_waitcnt vmcnt(0)")
    qk(0); qk(1)
    for i in range(0, 32, 2): a(f"v_max3_f32 v{VT}, v{VT}, v{S0+i}, v{S0+i+1}")
    nxt("B_fb1")
    a.check_backedge(st)
    a(f"v_mov_b32 v{VT+1}, v{VT}")
    a(f"v_permlane32_swap_b32 v{VT}, v{VT+1}")
    a(f"v_max_f32 v{VT}, v{VT}, v{VT+1}")
    a(f"s_mov_b32 s{s_kvg}, {WS_KV}")
    a.label("B_fb2")
    st = a.mark()
    ldk()
    for i in range(4): a(f"buffer_load_dwordx4 {vr(k0+12+4*i,4)}, v{v_va}, {WS}, s{s_kvg} offen offset:{768*i} sc1")
    a("s_waitcnt vmcnt(0)")
    qk(0); qk(1)
    for b in range(2):
        S = (S0, S1)[b]
        for i in range(16): a(f"v_sub_f32 v{S+i}, v{S+i}, v{VT}")
        for i in range(16): a(f"v_exp_f32 v{S+i}, v{S+i}")
        for i in range(8): a(f"v_cvt_pk_bf16_f32 v{P0+i}, v{S+2*i}, v{S+2*i+1}")
        mf(a, O, k0 + 12 + 8 * b, P0, O); mf(a, O, k0 + 16 + 8 * b, P1, O)
    nxt("B_fb2")
    a.check_backedge(st)
    a(f"v_mov_b32 v{VT}, v{O+8}")
    a(f"v_mov_b32 v{VT+1}, v{O+8}")
    a(f"v_permlane32_swap_b32 v{VT}, v{VT+1}")
    a("s_nop 1")
    a("s_branch B_norm")

def gemm(a):
    global stamp
    decode_b(a)
    a(f"s_sub_u32 s{s_w}, s{s_w}, 8")
    srd(a, SW2, 56, 1728 * 1280)
    srd(a, SWO, 58, 640 * 1280)
    srd(a, SOUT, 60, 2048 * 1280)
    g = GW(a, 27, 4, 10, STG, PART, SW2, SWS, s_gw)
    v_wd2 = g.v_end
    v_wa2, vfl = 11, v_wd2 + 5
    vx = v_wd2 + 6
    s_kw, s_ka, s_w0, s_a0 = 50, 51, 54, 55
    a(f"s_mul_i32 s{s_kvl}, s{s_w}, 6144")
    a(f"s_add_u32 s{s_kvg}, s{s_kvl}, {WS_KV + 3*CH}")
    def kv(c):
        lds_wait(a, f"G_free{c}", SCW + 4 * (c - 2), NW_, 2, s_spin, s_t0, 4)
        a(f"s_add_u32 m0, s{s_kvl}, {KVB + (c % 3)*CH}")
        for m in range(4):
            a(f"buffer_load_dwordx4 v{g.v_l16}, {WS}, s{s_kvg} offen offset:{m*1024} sc1 lds"); g.vm.issue(("KV", c))
        a(f"s_add_u32 m0, m0, 4096")
        a(f"s_add_u32 s{s_kvg}, s{s_kvg}, 4096")
        for m in range(2):
            a(f"buffer_load_dwordx4 v{g.v_l16}, {WS}, s{s_kvg} offen offset:{m*1024} sc1 lds"); g.vm.issue(("KV", c))
        a(f"s_add_u32 s{s_kvg}, s{s_kvg}, {CH-4096}")
    def landed(c):
        g.vm.wait(("KV", c))
        a("s_mov_b64 exec, 1")
        a(f"v_mov_b32 v2, {SC_L + 4 * (c - 1)}")
        a(f"v_mov_b32 v3, 1")
        a(f"ds_add_u32 v2, v3"); g.lg.issue("arr")
        a("s_mov_b64 exec, -1")
    a(f"s_mul_i32 s{s_base}, s{s_tt}, {QH_TT}")
    a(f"s_add_u32 s{s_base}, s{s_base}, {WS_QH + 40*1024}")
    g.setup(s_w, s_hg, s_base)
    a(f"s_mov_b32 s{s_w0}, s{g.s_woff}")
    a(f"s_mov_b32 s{s_a0}, s{g.s_aoff}")
    a(f"s_lshr_b32 s{s_kw}, s2, 3")
    a(f"s_mul_i32 s{s_kw}, s{s_kw}, {GROT}")
    a(f"s_mul_i32 s{s_t0}, s{s_kw}, 2428")
    a(f"s_lshr_b32 s{s_t0}, s{s_t0}, 16")
    a(f"s_mul_i32 s{s_t0}, s{s_t0}, 27")
    a(f"s_sub_u32 s{s_kw}, s{s_kw}, s{s_t0}")
    a(f"s_mov_b32 s{s_ka}, s{s_kw}")
    ALT = {31: 2 * CH, 32: 0}
    def wslot(i): return (i if i < 31 else i - 2) % 4
    def bump(r):
        a(f"s_add_u32 s{r}, s{r}, 1")
        a(f"s_cmp_eq_u32 s{r}, 27")
        a(f"s_cselect_b32 s{r}, 0, s{r}")
    def load_w(i):
        if i > 36: return
        vd = g.v_wd
        if i < 27:
            S = f"s[{SW2}:{SW2+3}]"
            a(f"s_mul_i32 s{g.s_woff}, s{s_kw}, {16*1280}")
            a(f"s_add_u32 s{g.s_woff}, s{g.s_woff}, s{s_w0}")
            bump(s_kw)
        else:
            S = f"s[{SWO}:{SWO+3}]"
            j = i - 27
            row = 20 * j if j < 8 else 80 * (j - 8) + 16
            if j >= 8: vd = v_wd2
            a(f"s_add_u32 s{g.s_woff}, s{s_woff2}, {row*1280}")
        if i in ALT:
            a(f"s_mul_i32 s{s_t0}, s{s_w}, 5120")
            a(f"s_add_u32 m0, s{s_t0}, {KVB + ALT[i]}")
        else: a(f"s_add_u32 m0, s{g.s_lds}, {wslot(i)*5120}")
        for m in range(4):
            a(f"buffer_load_dwordx4 v{vd+m}, {S}, s{g.s_woff} offen offset:{m*1024} lds"); g.vm.issue(("W", i))
        a(f"s_add_u32 m0, m0, 4096")
        a(f"buffer_load_dwordx4 v{vd+4}, {S}, s{g.s_woff} offen lds"); g.vm.issue(("W", i))
    def areg(i): return g.v_act + 4 * ((i % 10) if i < 27 else i - 27)
    def load_a(i):
        a(f"s_lshl_b32 s{g.s_aoff}, s{s_ka}, 10")
        a(f"s_add_u32 s{g.s_aoff}, s{g.s_aoff}, s{s_a0}")
        bump(s_ka)
        a(f"buffer_load_dwordx4 {vr(areg(i),4)}, v{g.v_l16}, {WS}, s{g.s_aoff} offen sc1"); g.vm.issue(("A", i))
    def rd_t(i, T):
        base, off = (v_wa2, ALT[i]) if i in ALT else (g.v_wa, wslot(i) * 5120)
        for p in range(2):
            a(f"ds_read_b64_tr_b16 {vr(g.v_wf+4*T+2*p,2)}, v{base} offset:{off + T*64 + p*2560}"); g.lg.issue((i, T))
    def rd_w(i):
        g.vm.wait(("W", i))
        for T in range(5): rd_t(i, T)
    def mm(i, nxt=None):
        g.vm.wait(("A", i), ("W", nxt))
        for T in range(5):
            g.lg.wait((i, T))
            acc = vr(g.v_acc + 16 * T, 16)
            a(f"v_mfma_f32_32x32x16_bf16 {acc}, {vr(g.v_wf+4*T,4)}, {vr(areg(i),4)}, {acc if i else 0}")
            if nxt is not None: rd_t(nxt, T)
    g.setup2()
    a(f"s_mul_i32 s{s_t0}, s{s_w}, 5120")
    a(f"s_sub_u32 s{s_t0}, s{s_t0}, s{g.s_lds}")
    a(f"s_add_u32 s{s_t0}, s{s_t0}, {KVB}")
    a(f"v_add_u32 v{v_wa2}, s{s_t0}, v{g.v_wa}")
    for m in range(5):
        a(f"v_add_u32 v1, {64*m}, v0")
        a(f"v_mul_u32_u24 v2, 0xcccd, v1")
        a(f"v_lshrrev_b32 v2, 22, v2")
        a(f"v_mul_u32_u24 v2, {16*1280}, v2")
        a(f"v_add_u32 v{v_wd2+m}, v2, v{g.v_wd+m}")
    a(f"s_lshr_b32 s{s_t0}, s{s_tt}, 2")
    a(f"v_mov_b32 v1, s{s_t0}")
    flag_off(a, vfl, 1, 0, 2)
    a(f"s_mul_i32 s{s_woff2}, s{s_w}, {160*1280}")
    a(f"s_mul_i32 s{s_t0}, s{s_hg}, 320")
    a(f"s_add_u32 s{s_woff2}, s{s_woff2}, s{s_t0}")
    lds_wait(a, "G_wait", SC_CNT + 8, 12, 2, s_spin, s_t0, 2)
    landed(2)
    a("s_cmp_eq_u32 s53, -1")
    a("s_cbranch_scc1 G_noh")
    for k in range(12):
        if k in (4, 10): a("s_add_u32 s53, s53, 4096")
        if k == 6: a(f"s_add_u32 s53, s53, {QH_TT - 4096}")
        a(f"buffer_store_dwordx4 {vr(72+4*k,4)}, v{g.v_l16}, {WS}, s53 offen offset:{(k % 6 % 4)*1024} sc1")
    stamp(a, 3)
    publish(a, "G_pub", 0, 4, 3, WS_FL, 1)
    stamp(a, 4)
    a.label("G_noh")
    for i in range(4): load_w(i)
    stamp(a, 8)
    kv(3); landed(3)
    if KV4: kv(4); landed(4)
    a(f"s_setprio {GPRIO}")
    a("s_mov_b32 exec_lo, 0x1ff")
    a("s_mov_b32 exec_hi, 0")
    poll(a, "G_pollh", f"buffer_load_dword v2, v{vfl}, {WS}, 0 offen sc1", "v_cmp_gt_u32 vcc, 1, v2", 4)
    a("s_mov_b64 exec, -1")
    g.vm.q = []
    stamp(a, 9)
    if STAMP: a("s_waitcnt lgkmcnt(0)")
    for i in range(5): load_a(i)
    KVAT = [int(x) for x in os.environ.get("KVAT", "3,8,13,18").split(",")]
    for i in range(27):
        if i in KVAT: kv(4 + KVAT.index(i))
        if i % 5 == ABAT:
            for k in range(i - ABAT + 5, min(i - ABAT + 10, 27)): load_a(k)
        if PIPE:
            if i == 0: rd_w(0)
            mm(i, i + 1)
        elif "nomm" not in GX: rd_w(i); mm(i)
        if i in KVAT:
            c = 4 + KVAT.index(i)
            landed(c)
        if "nold" not in GX or i + 4 >= 27: load_w(i + 4)
        if i == PEND: lds_wait(a, "G_pace", SCW + 24, NW_, 2, s_spin, s_t0, 4)
        if i in (4, 13, 22):
            stamp(a, {4: 10, 13: 11, 22: 12}[i])
            if STAMP: a("s_waitcnt lgkmcnt(0)")
    lds_wait(a, "G_alt0", SCW + 24, NW_, 2, s_spin, s_t0, 4)
    load_w(31)
    lds_wait(a, "G_alt1", SCW + 28, NW_, 2, s_spin, s_t0, 4)
    load_w(32)
    if DEFER:
        lds_wait(a, "G_defer", SC_CNT + 16, DEFW, 2, s_spin, s_t0, 2)
        a("s_setprio 3")
        for i in range(27 - DEFER, 27):
            rd_w(i); mm(i); load_w(i + 4)
    vo = vfl
    a(f"s_mul_i32 s{s_base}, s{s_tt}, {32*1280}")
    a(f"s_mul_i32 s{s_t0}, s{s_hg}, 320")
    a(f"s_add_u32 s{s_base}, s{s_base}, s{s_t0}")
    a(f"s_lshl_b32 s{s_t0}, s{s_w}, 4")
    a(f"s_add_u32 s{s_base}, s{s_base}, s{s_t0}")
    a(f"v_and_b32 v1, 31, v0")
    a(f"v_mul_u32_u24 v{vo}, 1280, v1")
    a(f"v_lshrrev_b32 v2, 5, v0")
    a(f"v_lshl_add_u32 v{vo}, v2, 3, v{vo}")
    for T in range(5):
        a(f"buffer_load_dwordx2 {vr(vx+2*T,2)}, v{vo}, s[{SX}:{SX+3}], s{s_base} offen offset:{64*T}")
    if not PIPE: rd_w(27)
    a(f"v_mul_u32_u24 v3, 1280, v2")
    a(f"v_lshl_add_u32 v3, v1, 3, v3")
    a(f"s_lshl_b32 s{s_t0}, s{s_tt}, 2")
    a(f"s_add_u32 s{s_t0}, s{s_t0}, s{s_w}")
    a(f"s_mul_i32 s{g.s_aoff}, s{s_t0}, 10240")
    a(f"s_add_u32 s{g.s_aoff}, s{g.s_aoff}, {WS_O}")
    a(f"s_add_u32 s{s_a0}, s{g.s_aoff}, 5120")
    a(f"s_lshl_b32 s{s_t0}, s{s_t0}, 7")
    a(f"s_add_u32 s{s_t0}, s{s_t0}, {WS_FL + 32768}")
    a(f"v_mov_b32 v1, s{s_t0}")
    g.lg.drain()
    load_w(33)
    a("s_mov_b64 exec, 1")
    poll(a, "G_pollo", f"buffer_load_dword v2, v1, {WS}, 0 offen sc1", "v_cmp_gt_u32 vcc, 1, v2", 2)
    a("s_mov_b64 exec, -1")
    g.vm.q = []
    a("s_setprio 3")
    stamp(a, 13)
    if STAMP: a("s_waitcnt lgkmcnt(0)")
    for j in range(8):
        so = g.s_aoff if j < 4 else s_a0
        a(f"buffer_load_dwordx4 {vr(areg(27+j),4)}, v{g.v_l16}, {WS}, s{so} offen offset:{(j%4)*1280} sc1"); g.vm.issue(("A", 27 + j))
    for m in range(2):
        so = g.s_aoff if m == 0 else s_a0
        for j in range(2):
            a(f"buffer_load_dwordx2 {vr(areg(35+m)+2*j,2)}, v3, {WS}, s{so} offen offset:{1024+2560*j} sc1"); g.vm.issue(("A", 35 + m))
    for i in range(27, 37):
        mm(i, i + 1 if i < 36 else None)
        if 28 <= i <= 30: load_w(i + 6)
    stamp(a, 14)
    a(f"v_add_u32 v1, s{g.s_lds}, v{g.v_l16}")
    a(f"s_mul_i32 s{s_t0}, s{s_w}, 5120")
    a(f"s_add_u32 s{s_t0}, s{s_t0}, {STG}")
    a(f"v_add_u32 v2, s{s_t0}, v{g.v_l16}")
    for T in range(5):
        for q in range(4):
            a(f"ds_write_b128 v1, {vr(g.v_acc+16*T+4*q,4)} offset:{q*5120+T*1024}")
    xf = g.v_act
    for T in range(5):
        a(f"v_lshlrev_b32 v{xf+4*T}, 16, v{vx+2*T}")
        a(f"v_and_b32 v{xf+4*T+1}, 0xffff0000, v{vx+2*T}")
        a(f"v_lshlrev_b32 v{xf+4*T+2}, 16, v{vx+2*T+1}")
        a(f"v_and_b32 v{xf+4*T+3}, 0xffff0000, v{vx+2*T+1}")
    a("s_waitcnt lgkmcnt(0)")
    a("s_barrier")
    a(f"v_add_u32 v1, {2*PART}, v2")
    for T in range(5):
        for sidx in range(4):
            a(f"ds_read_b128 {vr(g.v_acc+16*T+4*sidx,4)}, v{2 if sidx < 2 else 1} offset:{(sidx%2)*PART+T*1024}"); g.lg.issue(T)
        if T >= 2: fin_tile(a, g, T - 2, xf, vo)
    fin_tile(a, g, 3, xf, vo); fin_tile(a, g, 4, xf, vo)
    if STAMP:
        a("s_waitcnt vmcnt(0)"); stamp(a, 7); stamp(a, 15, True)
        a(f"s_add_u32 s{s_w}, s{s_w}, 8")
        stamp_flush(a, 1, SWS, s_w, 12, 16, gsel=[(9, False), (10, False), (12, False), (13, False), (14, False), (15, False)], goff=8)
    a("s_endpgm")
    return vx + 10

def fin_tile(a, g, T, xf, vo):
    b = g.v_acc + 16 * T
    g.lg.wait(T)
    for h in range(2):
        a(f"v_pk_add_f32 {vr(b+2*h,2)}, {vr(b+2*h,2)}, {vr(b+4+2*h,2)}")
        a(f"v_pk_add_f32 {vr(b+8+2*h,2)}, {vr(b+8+2*h,2)}, {vr(b+12+2*h,2)}")
    for h in range(2):
        a(f"v_pk_add_f32 {vr(b+2*h,2)}, {vr(b+2*h,2)}, {vr(xf+4*T+2*h,2)}")
    for h in range(2):
        a(f"v_pk_add_f32 {vr(b+2*h,2)}, {vr(b+2*h,2)}, {vr(b+8+2*h,2)}")
    a(f"v_cvt_pk_bf16_f32 v{b}, v{b}, v{b+1}")
    a(f"v_cvt_pk_bf16_f32 v{b+1}, v{b+2}, v{b+3}")
    a(f"buffer_store_dwordx2 {vr(b,2)}, v{vo}, s[{SOUT}:{SOUT+3}], s{s_base} offen offset:{64*T}")

def gen_f(a, name="parallel_sum__grouped_kv_mqa__dense_activation_relu__prompt_kernel"):
    kernel_header(a, name)
    a("s_cmp_ge_u32 s2, 256")
    a("s_cbranch_scc1 F_end")
    stamp(a, 0, True); stamp(a, 1)
    BMAP = int(os.environ.get("BMAP", "2"))
    if BMAP == 0: a(f"s_mov_b32 s{s_lid}, s2")
    elif BMAP == 1:
        a(f"s_bfe_u32 s{s_lid}, s2, 0x20001")
        a(f"s_lshl_b32 s{s_lid}, s{s_lid}, 4")
        a(f"s_lshr_b32 s35, s2, 4")
        a(f"s_add_u32 s{s_lid}, s{s_lid}, s35")
        a(f"s_lshl_b32 s{s_lid}, s{s_lid}, 1")
        a(f"s_and_b32 s35, s2, 1")
        a(f"s_add_u32 s{s_lid}, s{s_lid}, s35")
        a(f"s_lshl_b32 s{s_lid}, s{s_lid}, 1")
        a(f"s_bfe_u32 s35, s2, 0x10003")
        a(f"s_add_u32 s{s_lid}, s{s_lid}, s35")
    else:
        a(f"s_and_b32 s{s_lid}, s2, 7")
        a(f"s_lshl_b32 s{s_lid}, s{s_lid}, 5")
        a(f"s_lshr_b32 s35, s2, 3")
        a(f"s_add_u32 s{s_lid}, s{s_lid}, s35")
    if STAMP == 3: a("s_mov_b32 s72, 0")
    def clear_cnt(a):
        a("v_lshlrev_b32 v1, 2, v0")
        a(f"v_add_u32 v1, {SC_CNT}, v1")
        a("v_mov_b32 v2, 0")
        a("ds_write_b32 v1, v2")
        a("ds_write_b32 v1, v2 offset:256")
        a("v_add_u32 v3, -1, v0")
        a("v_cmp_lt_u32 vcc, 5, v3")
        a("v_cndmask_b32 v2, 0, 4, vcc")
        a("ds_write_b32 v1, v2 offset:512")
        a("s_waitcnt lgkmcnt(0)")
    def start_hook(a):
        clear_cnt(a)
        attn_addr(a)
    def pre_ba(a): attn_addr(a)
    def done_help(a): a("s_branch F_fetch")
    def done_stats(a): a("s_branch F_dry" if DRY else "s_branch F_attn")
    def done_comp(a): a("s_branch F_pub")
    def spare(a):
        ka2.produce_stats(a)
        clear_cnt(a)
        attn_addr(a)
        a(f"s_cmp_lg_u32 s{s_w}, 0")
        a("s_cbranch_scc1 F_sp1")
        ka2.dbg_check(a, "F_dbg")
        a.label("F_sp1")
        a("s_barrier")
        a(f"s_cmp_ge_u32 s{s_w}, 8")
        a("s_cbranch_scc1 F_gemm0")
        a(f"s_cmp_ge_u32 s{s_w}, 4")
        a("s_cbranch_scc1 F_dry" if DRY else "s_cbranch_scc1 F_attn")
    phase_a(a, done_help, done_stats, done_comp, spare, start_hook, pre_ba)
    a.label("F_fetch")
    fetch(a)
    a.label("F_attn")
    attention(a)
    if DRY:
        a.label("F_dry")
        a(f"s_cmp_eq_u32 s{s_w}, 4")
        a("s_cbranch_scc1 F_attn")
        a("s_mov_b64 exec, 0")
        a(f"s_mov_b32 s{s_c}, 7")
        a(f"s_cmp_eq_u32 s{s_w}, 5")
        a("s_cbranch_scc1 B_loop")
        a(f"s_cmp_eq_u32 s{s_w}, 6")
        a("s_cbranch_scc1 B_u3")
        a("s_branch B_synced")
        a.label("F_dryret")
        a("s_mov_b64 exec, -1")
        a("s_nop 7")
        a("s_nop 7")
        a("s_branch F_attn")
    a.label("F_pub")
    stamp(a, 3)
    publish(a, "F_pub2", 0, 4, 3, WS_FL, 1)
    stamp(a, 4)
    lds_wait(a, "F_all", SC_CNT, 4, 2, s_spin, s_t0)
    a.label("F_gemm0")
    a("s_mov_b32 s53, -1")
    a.label("F_gemm")
    nv = gemm(a)
    a.label("F_end")
    a("s_endpgm")
    assert nv <= 168, nv
    return dict(name=name, grid=256, block=768, lds=LDS_A, vgpr=168, sgpr=102 if STAMP else 72, single=True)
```

```python
from common import *
from gw import *
import ka2
from ka2 import phase_a, SC_CNT, LDS_A

GPRIO = int(os.environ.get("GPRIO", "0"))
HOLD = 1
GROT = int(os.environ.get("GROT", "9"))
GX = os.environ.get("GX", "")
UARR = int(os.environ.get("UARR", "0"))
SC_L = None
DRY = int(os.environ.get("DRY", "1"))
PACE = [float(x) for x in os.environ.get("PACE", "1.7,7.0").split(",")]
PEND = int(os.environ.get("PEND", "99"))
ABAT = int(os.environ.get("ABAT", "0"))
PIPE = int(os.environ.get("PIPE", "1"))
KV4 = int(os.environ.get("KV4", "0"))
TRIG = [int(x) for x in os.environ.get("TRIG", "4,8").split(",")]
TAILST = os.environ.get("TAILST")
OSL = [int(x) for x in os.environ.get("OSL", "1,0").split(",")]
WOPF = int(os.environ.get("WOPF", "10"))
ALT1 = int(os.environ.get("ALT1", "0"))
MARK = int(os.environ.get("MARK", "1"))
NS0 = int(os.environ.get("NS0", "2"))
WEARLY = int(os.environ.get("WEARLY", "2"))
W2PF = int(os.environ.get("W2PF", "3"))
HP = int(os.environ.get("HP", "1"))
FASTO = int(os.environ.get("FASTO", "1"))
TRIGST = int(os.environ.get("TRIGST", "1"))
PMASK = int(os.environ.get("PMASK", "0"))
DEFW = int(os.environ.get("DEFW", "4"))
DEFER = int(os.environ.get("DEFER", "0"))
PAIR = 2 * KV_TILE
CH = 8 * KV_TILE
STG = 0
KVB = 4 * PART
assert KVB + 4 * CH <= ka2.SCR and KVB >= ka2.SLOT
RESET_WG = (3 << 6) | (3 << 1)

SX, SW2, SWS, SWO, SOUT, SDBG = 4, 8, 12, 16, 20, 16
s_w, s_tt, s_hg, s_t0, s_t1, s_c, s_slot, s_delta, s_cch, s_base, s_spin, s_kvl, s_kvg, s_woff2 = range(32, 46)
s_gw = 46
s_lid = 97 if STAMP else 64
WS = f"s[{SWS}:{SWS+3}]"
Q1, Q2, P0, P1, O, S0, S1 = 4, 8, 12, 16, 20, 36, 52
KS = [68, 96]
v_ka, v_va, v_g0, VT = 124, 125, 126, 130
v_l16, v_cnt, v_one, v_chk = 136, 137, 138, 139
SC_K = SC_CNT + 256
SC_L = SC_K + 256
COMB = int(os.environ.get('COMB', '1'))
SCW, NW_ = (SC_L, 12) if COMB else (SC_K, 8)
s_tgt = 45

def mf(a, d, x, y, c): a(f"v_mfma_f32_32x32x16_bf16 {vr(d,16)}, {vr(x,4)}, {vr(y,4)}, {c if isinstance(c,str) else vr(c,16)}")
def mf8(a, d, x, y): a(f"v_mfma_f32_32x32x8_bf16 {vr(d,16)}, {vr(x,2)}, {vr(y,2)}, {vr(d,16)}")

def flag_off(a, vd, vrb, vg, t):
    a(f"v_lshl_add_u32 v{vd}, v{vrb}, 4, v{vg}")
    a(f"v_lshlrev_b32 v{vd}, 7, v{vd}")
    a(f"v_add_u32 v{vd}, {WS_FL}, v{vd}")

def publish(a, name, cnt_off, nwaves, sid, base, t, value=1, vm=0, word=None):
    a(f"s_waitcnt vmcnt({vm})")
    a("s_mov_b64 exec, 1")
    a(f"v_mov_b32 v{t}, {SC_CNT + cnt_off}")
    a(f"v_mov_b32 v{t+1}, 1")
    a(f"ds_add_rtn_u32 v{t+1}, v{t}, v{t+1}")
    a(f"s_lshl_b32 s{s_t0}, s{sid}, 7")
    a(f"s_add_u32 s{s_t0}, s{s_t0}, {base}")
    a(f"v_mov_b32 v{t}, {0 if word is None else 's%d' % word}")
    a(f"v_mov_b32 v{t+2}, {value}")
    a("s_waitcnt lgkmcnt(0)")
    a(f"v_readfirstlane_b32 s{s_t1}, v{t+1}")
    a(f"s_cmp_lg_u32 s{s_t1}, {nwaves-1}")
    a(f"s_cbranch_scc1 {name}")
    a(f"buffer_store_dword v{t+2}, v{t}, {WS}, s{s_t0} offen sc1")
    a.label(name)
    a("s_mov_b64 exec, -1")

def decode_b(a):
    a(f"s_lshr_b32 s{s_tt}, s{s_lid}, 2")
    a(f"s_and_b32 s{s_hg}, s{s_lid}, 3")

def attn_addr(a):
    a(f"s_and_b32 s{s_t0}, s{s_lid}, 3")
    a(f"s_lshl_b32 s{s_t0}, s{s_t0}, 3")
    a(f"s_add_u32 s{s_t0}, s{s_t0}, s{s_w}")
    a(f"s_mul_i32 s{s_t0}, s{s_t0}, 5")
    a(f"v_lshrrev_b32 v2, 5, v0")
    a(f"v_and_b32 v3, 31, v0")
    a(f"v_lshlrev_b32 v3, 4, v3")
    for i in range(3):
        if i < 2: a(f"v_add_u32 v1, s{s_t0}, v2")
        else: a(f"v_mov_b32 v1, s{s_t0}")
        if i: a(f"v_add_u32 v1, {2*i}, v1")
        a(f"v_lshrrev_b32 v{VT}, 2, v1")
        a(f"v_lshl_add_u32 v{v_g0+i}, v{VT}, 10, v3")
        a(f"v_and_b32 v{VT}, 1, v1")
        a(f"v_lshl_add_u32 v{v_g0+i}, v{VT}, 9, v{v_g0+i}")
        a(f"v_bfe_u32 v{VT}, v1, 1, 1")
        a(f"v_lshl_add_u32 v{v_g0+i}, v{VT}, 3, v{v_g0+i}")
    a(f"v_lshlrev_b32 v{v_l16}, 4, v0")
    a(f"v_add_u32 v{v_ka}, {KVB}, v{v_l16}")
    a(f"v_lshlrev_b32 v{v_cnt}, 2, v0")
    a(f"v_add_u32 v{v_cnt}, {SC_K}, v{v_cnt}")
    a(f"v_cmp_eq_u32 vcc, 0, v0")
    a(f"v_cndmask_b32 v{v_one}, 0, 1, vcc")
    a(f"v_and_b32 v1, 31, v0")
    a(f"v_min_u32 v1, 23, v1")
    a(f"v_mul_u32_u24 v{v_va}, 384, v2")
    a(f"v_lshl_add_u32 v{v_va}, v1, 4, v{v_va}")
    a(f"v_add_u32 v{v_va}, {KVB + 3072}, v{v_va}")

def fetch(a):
    decode_b(a)
    a(f"s_cmp_lg_u32 s{s_w}, 0")
    a("s_cbranch_scc1 B_fkv")
    a(f"s_lshr_b32 s{s_t0}, s{s_tt}, 2")
    a(f"s_add_u32 s{s_t1}, s{s_hg}, 9")
    a(f"v_mov_b32 v1, s{s_t0}")
    a(f"v_add_u32 v2, s{s_t1}, v0")
    flag_off(a, 4, 1, 2, 3)
    a("s_mov_b64 exec, 3")
    poll(a, "B_pollq", f"buffer_load_dword v2, v4, {WS}, 0 offen sc1", "v_cmp_gt_u32 vcc, 1, v2")
    a("s_branch B_arrive")
    a.label("B_fkv")
    a(f"v_mov_b32 v2, 14")
    flag_off(a, 4, 0, 2, 3)
    a(f"s_sub_u32 s{s_kvl}, s{s_w}, 1")
    a(f"s_lshl_b32 s{s_kvl}, s{s_kvl}, 13")
    a(f"s_add_u32 s{s_kvg}, s{s_kvl}, {WS_KV}")
    a(f"v_lshlrev_b32 v5, 4, v0")
    a("s_mov_b32 exec_lo, 0xffff")
    a("s_mov_b32 exec_hi, 0")
    poll(a, "B_pollkv", f"buffer_load_dword v2, v4, {WS}, 0 offen sc1", "v_cmp_gt_u32 vcc, 1, v2", 6)
    a("s_mov_b64 exec, -1")
    stamp(a, 5)
    for c in range(4):
        for hf in range(2):
            a(f"s_add_u32 m0, s{s_kvl}, {KVB + c*CH + hf*4096}")
            a(f"s_add_u32 s{s_t0}, s{s_kvg}, {c*CH + hf*4096}")
            for m in range(4): a(f"buffer_load_dwordx4 v5, {WS}, s{s_t0} offen offset:{m*1024} sc1 lds")
    a("s_waitcnt vmcnt(16)")
    stamp(a, 2)
    a.label("B_arrive")
    lds_arrive(a, SC_CNT + 8, 2)

def attention(a):
    decode_b(a)
    stamp(a, 8)
    a(f"s_mul_i32 s{s_base}, s{s_tt}, {QH_TT}")
    lds_wait(a, "B_wait", SC_CNT + 8, 4, 2, s_spin, s_t0)
    stamp(a, 9)
    a(f"buffer_load_dwordx2 {vr(Q1,2)}, v{v_g0}, {WS}, s{s_base} offen sc1")
    a(f"buffer_load_dwordx2 {vr(Q1+2,2)}, v{v_g0+1}, {WS}, s{s_base} offen sc1")
    a(f"buffer_load_dwordx2 {vr(Q2,2)}, v{v_g0+2}, {WS}, s{s_base} offen sc1")
    for r in list(range(KS[0] + 20, KS[0] + 24)) + list(range(P1, P1 + 4)) + list(range(O, O + 16)):
        a(f"v_mov_b32 v{r}, 0")
    a(f"s_mov_b32 s{s_c}, 0")
    a(f"s_mov_b32 s{s_slot}, 0")
    a(f"s_mov_b32 s{s_cch}, {CH}")
    def kv_off(kind, t):
        p = (t % 8) // 2 * PAIR; b = t % 2
        return {"K1": p + 1024 * b, "K2": p + 2048, "V0": p + 1536 * b, "V1": p + 1536 * b + 768}[kind]
    def rd(dst, kind, t):
        a(f"ds_read_b128 {vr(dst,4)}, v{v_ka if kind[0] == 'K' else v_va} offset:{kv_off(kind, t)}")
    def group_reads(o):
        n = KS[((o + 1) // 2 + 1) % 2]
        return [(n + 12, "V1", o + 1), (n, "K1", o + 3), (n + 8, "K2", o + 3), (n + 16, "V0", o + 2),
                (n + 20, "V1", o + 2), (n + 4, "K1", o + 4), (n + 24, "V0", o + 3)]
    k0 = KS[0]
    rd(k0, "K1", 0); rd(k0 + 8, "K2", 0); rd(k0 + 4, "K1", 1); rd(k0 + 24, "V0", 0)
    for r in group_reads(-1)[:4]: rd(*r)
    a("s_waitcnt vmcnt(0)")
    lds_arrive(a, SC_CNT + 8, 2)
    a("s_mov_b32 exec_lo, 0")
    a(f"v_mov_b32 v{Q2}, 0")
    a(f"v_mov_b32 v{Q2+1}, 0")
    a("s_mov_b32 exec_lo, -1")
    stamp(a, 10)
    a("s_waitcnt lgkmcnt(0)")
    mf(a, S1, k0, Q1, "0"); mf8(a, S1, k0 + 8, Q2)
    mf(a, S0, k0, Q1, "0")
    a(f"v_max3_f32 v{VT}, v{S1}, v{S1+1}, v{S1+2}")
    a(f"v_max3_f32 v{VT+1}, v{S1+3}, v{S1+4}, v{S1+5}")
    a(f"v_max3_f32 v{VT+2}, v{S1+6}, v{S1+7}, v{S1+8}")
    a(f"v_max3_f32 v{VT+3}, v{S1+9}, v{S1+10}, v{S1+11}")
    a(f"v_max3_f32 v{VT}, v{VT}, v{S1+12}, v{S1+13}")
    a(f"v_max3_f32 v{VT+1}, v{VT+1}, v{S1+14}, v{S1+15}")
    a(f"v_max3_f32 v{VT}, v{VT}, v{VT+2}, v{VT+3}")
    a(f"v_max_f32 v{VT}, v{VT}, v{VT+1}")
    a(f"v_mov_b32 v{VT+1}, v{VT}")
    a(f"v_permlane32_swap_b32 v{VT}, v{VT+1}")
    a(f"v_max_f32 v{VT}, v{VT}, v{VT+1}")
    a("s_mov_b32 exec_lo, 0")
    a(f"v_cvt_pk_bf16_f32 v{Q2}, -v{VT}, 0")
    a("s_mov_b32 exec_lo, -1")
    mf8(a, S0, k0 + 8, Q2)
    stamp(a, 11); stamp(a, 12, 'cyc')
    a("s_waitcnt lgkmcnt(0)")
    a("s_nop 10")
    a.raw(".p2align 6")
    a.label("B_loop")
    start = a.mark()
    for u in range(8):
        Sc, Sn = (S0, S1) if u % 2 == 0 else (S1, S0)
        odd = u % 2
        o = u if odd else u - 1
        ks = KS[((o + 1) // 2) % 2]
        reads = group_reads(o)
        slots = [[reads[0]], [reads[1]], [reads[2]], [reads[3]]] if odd else [[reads[4], reads[5]], [reads[6]], [], []]
        e = lambda i: a(f"v_exp_f32 v{Sc+i}, v{Sc+i}")
        c = lambda i: a(f"v_cvt_pk_bf16_f32 v{P0+i}, v{Sc+2*i}, v{Sc+2*i+1}")
        if DRY and u == 3:
            a("s_cbranch_execz F_dryret")
            a.label("B_u3")
        if os.environ.get("CHST") and u == 0: a("s_memrealtime s[98:99]")
        e(0); e(1)
        if odd: a("s_waitcnt lgkmcnt(0)")
        if os.environ.get("CHST") and u == 1:
            sl = [2, 3, 4, 5, 6, 8, 9, 10]
            for k in range(7): a(f"s_mov_b32 s{64+2*sl[k]}, s{64+2*sl[k+1]}")
            a(f"s_mov_b32 s{64+2*sl[7]}, s98")
        mf(a, O, ks + (12 if odd else 20), P1, O)
        for r in slots[0]: rd(*r)
        if u == 5:
            if DRY: a("s_cbranch_execz F_dryret")
            a(f"v_readlane_b32 s{s_t0}, v{v_chk}, s{s_c}")
            a(f"s_add_u32 s{s_slot}, s{s_slot}, s{s_delta}")
            a(f"s_cmp_lt_u32 s{s_t0}, {12 if COMB else 4}")
            a("s_cbranch_scc1 B_spin")
            a.label("B_synced")
        if u == 2:
            a(f"s_cmp_eq_u32 s{s_slot}, {3*CH}")
            a(f"s_cselect_b32 s{s_delta}, {(-3*CH) & 0xffffffff}, s{s_cch}")
        e(2); e(3); c(0)
        if u == 5: a(f"v_add_u32 v{v_ka}, s{s_delta}, v{v_ka}")
        if u == 2: a(f"v_mov_b32_dpp v{v_one}, v{v_one} row_shr:1 row_mask:0xf bank_mask:0xf bound_ctrl:0")
        if u == 6: a(f"v_add_u32 v{v_va}, s{s_delta}, v{v_va}")
        e(4); c(1)
        mf(a, Sn, ks + (0 if odd else 4), Q1, "0")
        for r in slots[1]: rd(*r)
        e(5); e(6); e(7); c(2); e(8); c(3)
        mf8(a, Sn, ks + 8 + (0 if odd else 2), Q2)
        for r in slots[2]: rd(*r)
        if u == UARR:
            a(f"ds_add_u32 v{v_cnt}, v{v_one} offset:{256 if COMB else 0}")
        e(9); e(10); e(11); c(4); e(12); c(5)
        mf(a, O, ks + (16 if odd else 24), P0, O)
        for r in slots[3]: rd(*r)
        if u == 4: a(f"ds_read_b32 v{v_chk}, v{v_cnt} offset:256")
        if u == 6:
            a(f"s_add_u32 s{s_c}, s{s_c}, 1")
            a(f"s_cmp_lt_u32 s{s_c}, 8")
        e(13); e(14); e(15); c(6); c(7)
        for _ in range(int(os.environ.get("XMOV", "0"))): a(f"v_max_f32 v{VT}, v{VT}, v{VT}")
    a("s_cbranch_scc1 B_loop")
    a.check_backedge(start)
    stamp(a, 13); stamp(a, 14, 'cyc')
    mf(a, O, KS[0] + 20, P1, O)
    if not TRIGST: a(f"ds_add_u32 v{v_cnt}, v{v_one}")
    a(f"ds_read_b32 v{v_chk}, v{v_cnt}")
    a("s_waitcnt lgkmcnt(0)")
    a(f"v_mov_b32 v{VT+2}, {hex(f32bits(2.0**60))}")
    a(f"s_lshl_b32 s{s_base}, s{s_lid}, 3")
    a(f"s_add_u32 s{s_base}, s{s_base}, s{s_w}")
    a(f"s_mul_i32 s{s_base}, s{s_base}, 1280")
    a(f"s_add_u32 s{s_base}, s{s_base}, {WS_O}")
    a(f"v_lshlrev_b32 v{v_g0}, 4, v0")
    a(f"v_lshlrev_b32 v{v_g0+1}, 3, v0")
    a(f"v_mov_b32 v{VT}, v{O+8}")
    a(f"v_mov_b32 v{VT+1}, v{O+8}")
    a(f"v_permlane32_swap_b32 v{VT}, v{VT+1}")
    a(f"v_cmp_nle_f32 vcc, {hex(f32bits(2.0**-60))}, v{VT+1}")
    a(f"v_cmp_nle_f32 s[52:53], v{VT+1}, v{VT+2}")
    a(f"s_or_b64 s[52:53], s[52:53], vcc")
    a("s_cbranch_scc1 B_fallback")
    a.label("B_norm")
    a(f"v_rcp_f32 v{VT}, v{VT+1}")
    for i in range(12): a(f"v_mul_f32 v{O+i}, v{VT}, v{O+i}")
    for i in range(6): a(f"v_cvt_pk_bf16_f32 v{O+i}, v{O+2*i}, v{O+2*i+1}")
    if DRY: a("s_cbranch_execz F_dryret")
    a(f"v_readlane_b32 s{s_t0}, v{v_chk}, 9")
    a(f"s_cmp_eq_u32 s{s_t0}, 4")
    a("s_cbranch_scc1 B_near")
    a(f"buffer_store_dwordx4 {vr(O,4)}, v{v_g0}, {WS}, s{s_base} offen sc1")
    a("s_mov_b32 exec_hi, 0")
    a(f"buffer_store_dwordx2 {vr(O+4,2)}, v{v_g0+1}, {WS}, s{s_base} offen offset:1024 sc1")
    a("s_branch B_done")
    a.label("B_near")
    a(f"buffer_store_dwordx4 {vr(O,4)}, v{v_g0}, {WS}, s{s_base} offen")
    a("s_mov_b32 exec_hi, 0")
    a(f"buffer_store_dwordx2 {vr(O+4,2)}, v{v_g0+1}, {WS}, s{s_base} offen offset:1024")
    a.label("B_done")
    if TRIGST == 2: a("s_waitcnt vmcnt(0)")
    if TRIGST: a(f"ds_add_u32 v{v_cnt}, v{v_one}")
    if STAMP: a("s_waitcnt vmcnt(0)")
    if STAMP:
        stamp(a, 7); stamp(a, 15, True)
        stamp_flush(a, 1, SWS, s_w, 12, 16)
    a("s_endpgm")
    a.label("B_spin")
    a(f"s_mov_b32 s{s_spin}, {SPIN * 40}")
    a.label("B_spin1")
    a(f"s_sleep {os.environ.get('SSL', '4')}")
    a(f"ds_read_b32 v{v_chk}, v{v_cnt} offset:256")
    a("s_waitcnt lgkmcnt(0)")
    a(f"v_readlane_b32 s{s_t0}, v{v_chk}, s{s_c}")
    a(f"s_cmp_ge_u32 s{s_t0}, {12 if COMB else 4}")
    a("s_cbranch_scc1 B_synced")
    a(f"s_sub_u32 s{s_spin}, s{s_spin}, 1")
    a(f"s_cmp_lg_u32 s{s_spin}, 0")
    a("s_cbranch_scc1 B_spin1")
    a("s_branch B_synced")
    a.label("B_fallback")
    a("s_mov_b32 exec_lo, 0")
    a(f"v_mov_b32 v{Q2}, 0")
    a("s_mov_b32 exec_lo, -1")
    a(f"s_add_u32 s{s_slot}, s{s_slot}, {KVB}")
    a(f"v_subrev_u32 v{v_ka}, s{s_slot}, v{v_ka}")
    a(f"v_subrev_u32 v{v_va}, s{s_slot}, v{v_va}")
    a(f"v_mov_b32 v{VT}, 0xff800000")
    for r in range(O, O + 16): a(f"v_mov_b32 v{r}, 0")
    a(f"s_mov_b32 s{s_kvg}, {WS_KV}")
    def ldk():
        for i in range(3): a(f"buffer_load_dwordx4 {vr(k0+4*i,4)}, v{v_ka}, {WS}, s{s_kvg} offen offset:{1024*i} sc1")
    def qk(b):
        S = (S0, S1)[b]
        mf(a, S, k0 + 4 * b, Q1, "0"); mf8(a, S, k0 + 8 + 2 * b, Q2)
    def nxt(lbl):
        a(f"s_add_u32 s{s_kvg}, s{s_kvg}, {PAIR}")
        a(f"s_cmp_lt_u32 s{s_kvg}, {WS_KV + 32*PAIR}")
        a(f"s_cbranch_scc1 {lbl}")
    a.label("B_fb1")
    st = a.mark()
    ldk()
    a("s_waitcnt vmcnt(0)")
    qk(0); qk(1)
    for i in range(0, 32, 2): a(f"v_max3_f32 v{VT}, v{VT}, v{S0+i}, v{S0+i+1}")
    nxt("B_fb1")
    a.check_backedge(st)
    a(f"v_mov_b32 v{VT+1}, v{VT}")
    a(f"v_permlane32_swap_b32 v{VT}, v{VT+1}")
    a(f"v_max_f32 v{VT}, v{VT}, v{VT+1}")
    a(f"s_mov_b32 s{s_kvg}, {WS_KV}")
    a.label("B_fb2")
    st = a.mark()
    ldk()
    for i in range(4): a(f"buffer_load_dwordx4 {vr(k0+12+4*i,4)}, v{v_va}, {WS}, s{s_kvg} offen offset:{768*i} sc1")
    a("s_waitcnt vmcnt(0)")
    qk(0); qk(1)
    for b in range(2):
        S = (S0, S1)[b]
        for i in range(16): a(f"v_sub_f32 v{S+i}, v{S+i}, v{VT}")
        for i in range(16): a(f"v_exp_f32 v{S+i}, v{S+i}")
        for i in range(8): a(f"v_cvt_pk_bf16_f32 v{P0+i}, v{S+2*i}, v{S+2*i+1}")
        mf(a, O, k0 + 12 + 8 * b, P0, O); mf(a, O, k0 + 16 + 8 * b, P1, O)
    nxt("B_fb2")
    a.check_backedge(st)
    a(f"v_mov_b32 v{VT}, v{O+8}")
    a(f"v_mov_b32 v{VT+1}, v{O+8}")
    a(f"v_permlane32_swap_b32 v{VT}, v{VT+1}")
    a("s_nop 1")
    a("s_branch B_norm")

def gemm(a):
    global stamp
    decode_b(a)
    a(f"s_sub_u32 s{s_w}, s{s_w}, 8")
    srd(a, SW2, 56, 1728 * 1280)
    srd(a, SWO, 58, 640 * 1280)
    srd(a, SOUT, 60, 2048 * 1280)
    g = GW(a, 27, 4, 10, STG, PART, SW2, SWS, s_gw)
    v_wd2 = g.v_end
    v_wa2, vfl = 11, v_wd2 + 5
    vx = v_wd2 + 6
    v_wa3 = 0
    s_kw, s_ka, s_w0, s_a0 = 50, 51, 54, 55
    a(f"s_mul_i32 s{s_kvl}, s{s_w}, 6144")
    a(f"s_add_u32 s{s_kvg}, s{s_kvl}, {WS_KV + 4*CH}")
    def kv(c):
        lds_wait(a, f"G_free{c}", SCW + 4 * (c - 3), NW_, 2, s_spin, s_t0, 4)
        a(f"s_add_u32 m0, s{s_kvl}, {KVB + (c % 4)*CH}")
        for m in range(4):
            a(f"buffer_load_dwordx4 v{g.v_l16}, {WS}, s{s_kvg} offen offset:{m*1024} sc1 lds"); g.vm.issue(("KV", c))
        a(f"s_add_u32 m0, m0, 4096")
        a(f"s_add_u32 s{s_kvg}, s{s_kvg}, 4096")
        for m in range(2):
            a(f"buffer_load_dwordx4 v{g.v_l16}, {WS}, s{s_kvg} offen offset:{m*1024} sc1 lds"); g.vm.issue(("KV", c))
        a(f"s_add_u32 s{s_kvg}, s{s_kvg}, {CH-4096}")
    def landed(c):
        g.vm.wait(("KV", c))
        a("s_mov_b64 exec, 1")
        a(f"v_mov_b32 v2, {SC_L + 4 * (c - 1)}")
        a(f"v_mov_b32 v3, 1")
        a(f"ds_add_u32 v2, v3"); g.lg.issue("arr")
        a("s_mov_b64 exec, -1")
    s_i4 = s_c
    a(f"s_getreg_b32 s{s_delta}, hwreg(HW_REG_XCC_ID, 0, 4)")
    a(f"s_add_u32 s{s_delta}, s{s_delta}, 16")
    a(f"s_mov_b32 s{s_base}, 0")
    g.setup(s_w, s_hg, s_base)
    a(f"s_and_b32 s{s_t1}, s{s_tt}, 3")
    a(f"s_lshl_b32 s{s_i4}, s{s_t1}, 2")
    a(f"s_mul_i32 s{s_w0}, s{s_t1}, {27*16*1280}")
    a(f"s_mul_i32 s{s_t0}, s{s_hg}, 320")
    a(f"s_add_u32 s{s_w0}, s{s_w0}, s{s_t0}")
    a(f"s_mul_i32 s{s_woff2}, s{s_w}, {160*1280}")
    a(f"s_add_u32 s{s_woff2}, s{s_woff2}, s{s_t0}")
    a(f"s_and_b32 s{s_slot}, s{s_tt}, 0xfc")
    a(f"s_add_u32 s{s_slot}, s{s_slot}, s{s_w}")
    a(f"s_mul_i32 s{s_a0}, s{s_slot}, {QH_TT}")
    a(f"s_mul_i32 s{s_t0}, s{s_t1}, {27*1024}")
    a(f"s_add_u32 s{s_a0}, s{s_a0}, s{s_t0}")
    a(f"s_add_u32 s{s_a0}, s{s_a0}, {WS_QH + 40*1024}")
    a(f"s_lshr_b32 s{s_ka}, s{s_tt}, 2")
    a(f"s_mul_i32 s{s_ka}, s{s_ka}, {GROT}")
    a(f"s_mul_i32 s{s_t0}, s{s_ka}, 2428")
    a(f"s_lshr_b32 s{s_t0}, s{s_t0}, 16")
    a(f"s_mul_i32 s{s_t0}, s{s_t0}, 27")
    a(f"s_sub_u32 s{s_ka}, s{s_ka}, s{s_t0}")
    a(f"s_add_u32 s{s_kw}, s{s_ka}, s{s_w}")
    ALT = {31: 0, 32: CH, 33: 2 * CH}
    def dma5(vd, S, tag):
        for m in range(4):
            a(f"buffer_load_dwordx4 v{vd+m}, {S}, s{g.s_woff} offen offset:{m*1024} lds"); g.vm.issue(tag)
        a(f"s_add_u32 m0, m0, 4096")
        a(f"buffer_load_dwordx4 v{vd+4}, {S}, s{g.s_woff} offen lds"); g.vm.issue(tag)
    def load_stage(st):
        a(f"s_cmp_ge_u32 s{s_kw}, 27")
        a(f"s_cselect_b32 s{s_t0}, 27, 0")
        a(f"s_sub_u32 s{s_kw}, s{s_kw}, s{s_t0}")
        a(f"s_mul_i32 s{g.s_woff}, s{s_kw}, {16*1280}")
        a(f"s_add_u32 s{g.s_woff}, s{g.s_woff}, s{s_w0}")
        a(f"s_add_u32 s{s_kw}, s{s_kw}, 4")
        a(f"s_add_u32 m0, s{g.s_lds}, {(st % 3)*5120}")
        dma5(g.v_wd, f"s[{SW2}:{SW2+3}]", ("S", st))
    def load_w(i):
        j = i - 27
        row = 80 * (j // 5) + (20 * (j % 5) if j % 5 < 4 else 16)
        a(f"s_add_u32 s{g.s_woff}, s{s_woff2}, {row*1280}")
        if i in ALT:
            a(f"s_mul_i32 s{s_t0}, s{s_w}, 5120")
            a(f"s_add_u32 m0, s{s_t0}, {KVB + ALT[i]}")
        else: a(f"s_add_u32 m0, s{g.s_lds}, {(i % 3)*5120}")
        dma5(v_wd2 if j % 5 == 4 else g.v_wd, f"s[{SWO}:{SWO+3}]", ("W", i))
    def areg(i): return g.v_act + 4 * ((i % 8) if i < 27 else i - 27)
    def load_a(i):
        a(f"s_lshl_b32 s{g.s_aoff}, s{s_ka}, 10")
        a(f"s_add_u32 s{g.s_aoff}, s{g.s_aoff}, s{s_a0}")
        a(f"s_add_u32 s{s_ka}, s{s_ka}, 1")
        a(f"s_cmp_eq_u32 s{s_ka}, 27")
        a(f"s_cselect_b32 s{s_ka}, 0, s{s_ka}")
        a(f"buffer_load_dwordx4 {vr(areg(i),4)}, v{g.v_l16}, {WS}, s{g.s_aoff} offen sc1"); g.vm.issue(("A", i))
    def rd_t(i, T):
        if i < 27: base, off = g.v_wa, (i % 4) * PART + (i // 4 % 3) * 5120
        else: base, off = (v_wa3, ALT[i]) if i in ALT else (g.v_wa, (i % 3) * 5120)
        for p in range(2):
            a(f"ds_read_b64_tr_b16 {vr(g.v_wf+4*T+2*p,2)}, v{base} offset:{off + T*64 + p*2560}"); g.lg.issue((i, T))
    def rd_w(i):
        g.vm.wait(("W", i))
        for T in range(5): rd_t(i, T)
    def mm(i, nxt=None):
        g.vm.wait(("A", i), ("W", nxt))
        if HP and i < 32 and not PMASK: a(f"s_setprio {GPRIO}")
        for T in range(5):
            if PMASK and i < 32 and (T == 0 or (PMASK >> T & 1) != (PMASK >> (T - 1) & 1)): a(f"s_setprio {PMASK >> T & 1}")
            g.lg.wait((i, T))
            acc = vr(g.v_acc + 16 * T, 16)
            a(f"v_mfma_f32_32x32x16_bf16 {acc}, {vr(g.v_wf+4*T,4)}, {vr(areg(i),4)}, {acc if i else 0}")
            if nxt is not None: rd_t(nxt, T)
        if HP and i < 32: a("s_setprio 3")
    def sync(st):
        g.vm.wait(("S", st))
        lds_arrive(a, SC_CNT + 32 + 4 * st, 2)
        lds_wait(a, f"G_sync{st}", SC_CNT + 32 + 4 * st, 4, 2, s_spin, s_t0, 1)
        g.lg.q = []
    g.setup2()
    a(f"v_subrev_u32 v{g.v_wa}, s{g.s_lds}, v{g.v_wa}")
    for m in range(5):
        a(f"v_add_u32 v1, {64*m}, v0")
        a(f"v_mul_u32_u24 v2, 0xcccd, v1")
        a(f"v_lshrrev_b32 v2, 22, v2")
        a(f"v_mul_u32_u24 v2, {16*1280}, v2")
        a(f"v_add_u32 v{v_wd2+m}, v2, v{g.v_wd+m}")
    a(f"s_lshr_b32 s{s_t0}, s{s_tt}, 2")
    a(f"v_mov_b32 v1, s{s_t0}")
    a(f"s_lshr_b32 s{s_t0}, s{s_i4}, 1")
    a(f"v_add_u32 v2, s{s_t0}, v0")
    flag_off(a, vfl, 1, 2, 3)
    lds_wait(a, "G_wait", SC_CNT + 8, 12, 2, s_spin, s_t0, 2)
    landed(2); landed(3)
    a("s_cmp_eq_u32 s53, -1")
    a("s_cbranch_scc1 G_noh")
    for k in range(12):
        if k in (4, 10): a("s_add_u32 s53, s53, 4096")
        if k == 6: a(f"s_add_u32 s53, s53, {QH_TT - 4096}")
        a(f"buffer_store_dwordx4 {vr(72+4*k,4)}, v{g.v_l16}, {WS}, s53 offen offset:{(k % 6 % 4)*1024} sc1")
    stamp(a, 3)
    publish(a, "G_pub", 0, 4, 3, WS_FL, 1)
    stamp(a, 4)
    a.label("G_noh")
    for st in range(NS0): load_stage(st)
    stamp(a, 8)
    a("s_mov_b64 exec, 7")
    poll(a, "G_pollh", f"buffer_load_dword v2, v{vfl}, {WS}, 0 offen sc1", "v_cmp_gt_u32 vcc, 1, v2", 4)
    a("s_mov_b64 exec, -1")
    g.vm.q = []
    stamp(a, 9)
    if STAMP: a("s_waitcnt lgkmcnt(0)")
    for i in range(4): load_a(i)
    for st in range(NS0, 3): load_stage(st)
    for i in range(4, 8): load_a(i)
    vo = vfl
    a(f"s_mul_i32 s{s_base}, s{s_tt}, {32*1280}")
    a(f"s_mul_i32 s{s_t0}, s{s_hg}, 320")
    a(f"s_add_u32 s{s_base}, s{s_base}, s{s_t0}")
    a(f"s_lshl_b32 s{s_t0}, s{s_w}, 4")
    a(f"s_add_u32 s{s_base}, s{s_base}, s{s_t0}")
    a(f"v_and_b32 v1, 31, v0")
    a(f"v_mul_u32_u24 v{vo}, 1280, v1")
    a(f"v_lshrrev_b32 v2, 5, v0")
    a(f"v_lshl_add_u32 v{vo}, v2, 3, v{vo}")
    a(f"v_mul_u32_u24 v{v_wa2}, 1280, v2")
    a(f"v_lshl_add_u32 v{v_wa2}, v1, 3, v{v_wa2}")
    a(f"v_mul_u32_u24 v1, 0xcccd, v0")
    a(f"v_lshrrev_b32 v1, 18, v1")
    a(f"v_mul_u32_u24 v2, 5, v1")
    a(f"v_sub_u32 v2, v0, v2")
    a(f"v_mul_u32_u24 v1, 1280, v1")
    a(f"v_lshl_add_u32 v{vx}, v2, 6, v1")
    a(f"s_mul_i32 s{s_t0}, s{s_w}, 5120")
    a(f"s_add_u32 s{s_t0}, s{s_t0}, {KVB}")
    a(f"v_add_u32 v{v_wa3}, s{s_t0}, v{g.v_wa}")
    for r in range(4): a(f"v_mov_b32 v{vx+4+r}, -1")
    if not HP: a(f"s_setprio {GPRIO}")
    KVAT = [int(x) for x in os.environ.get("KVAT", "0,2,4,6").split(",")]
    sync(0)
    for T in range(5): rd_t(0, T)
    for st in range(7):
        if st in KVAT: kv(4 + KVAT.index(st))
        n = 4 if st < 6 else 3
        for j in range(n):
            i = 4 * st + j
            if j == 3:
                sync(st + 1)
                if st + 3 <= 6: load_stage(st + 3)
                else: load_w(24 + st)
            mm(i, i + 1 if i < 26 else None)
            if j == 1 and st in KVAT: landed(4 + KVAT.index(st))
        for i in range(4 * st + 8, min(4 * st + 12, 27)): load_a(i)
        if st == MARK:
            a(f"s_lshl_b32 s{s_t0}, s{s_lid}, 2")
            a(f"s_add_u32 s{s_t0}, s{s_t0}, s{s_w}")
            a(f"s_mul_i32 s{s_t0}, s{s_t0}, 2560")
            a(f"s_add_u32 s{s_t0}, s{s_t0}, {WS_O}")
            for o in (0, 1024, 1536):
                a(f"buffer_store_dwordx4 {vr(vx+4,4)}, v{g.v_l16}, {WS}, s{s_t0} offen offset:{o} sc1"); g.vm.issue("R")
        if st == MARK + 2:
            g.vm.wait("R")
            publish(a, "G_pubr", 4, 4, s_lid, WS_FL + 32768, 1, value=f"s{s_delta}", vm=63, word=s_i4)
            g.lg.q = []
        if st == 2:
            a(f"s_bfe_u32 s{s_t0}, s{s_tt}, 0x30002")
            a(f"s_mul_i32 s{s_t0}, s{s_t0}, {20*1280}")
            a(f"s_add_u32 s{s_t0}, s{s_t0}, s{s_woff2}")
            a(f"s_add_u32 s{s_t1}, s{s_t0}, {10*1280}")
            a(f"buffer_load_dword v{vx+2}, v{vx}, s[{SWO}:{SWO+3}], s{s_t0} offen"); g.vm.issue("P")
            a(f"buffer_load_dword v{vx+3}, v{vx}, s[{SWO}:{SWO+3}], s{s_t1} offen"); g.vm.issue("P")
        if st == 4:
            g.vm.wait("P", "R")
            for T in range(5):
                a(f"buffer_load_dwordx2 {vr(vx+2*T,2)}, v{vo}, s[{SX}:{SX+3}], s{s_base} offen offset:{64*T}"); g.vm.issue("X")
        if st == 5:
            a(f"s_lshl_b32 s{s_t0}, s{s_tt}, 2")
            a(f"s_add_u32 s{s_t0}, s{s_t0}, s{s_w}")
            a(f"s_lshl_b32 s{s_t0}, s{s_t0}, 7")
            a(f"s_add_u32 s{s_t0}, s{s_t0}, s{s_i4}")
            a(f"s_add_u32 s{s_cch}, s{s_t0}, {WS_FL + 32768}")
            a(f"buffer_load_dword v1, off, {WS}, s{s_cch} sc1"); g.vm.issue("M")
        if st == 6:
            g.vm.wait("M")
            a("v_cmp_gt_u32 vcc, 1, v1")
            a("s_cmp_eq_u64 vcc, 0")
            a("s_cbranch_scc1 G_pollm_ok")
            poll(a, "G_pollm", f"buffer_load_dword v1, off, {WS}, s{s_cch} sc1", "v_cmp_gt_u32 vcc, 1, v1", 8)
            a(f"v_readfirstlane_b32 s{s_t0}, v1")
            a(f"s_cmp_lg_u32 s{s_t0}, s{s_delta}")
            a("s_cbranch_scc1 G_novote")
            if FASTO: lds_arrive(a, SC_K + 36, 2)
            a.label("G_novote")
        if os.environ.get("STGST"):
            stamp(a, [1, 3, 4, 6, 8, 10, 12][st]); a("s_waitcnt lgkmcnt(0)")
        elif st in (0, 3, 6):
            stamp(a, {0: 10, 3: 11, 6: 12}[st])
            if STAMP: a("s_waitcnt lgkmcnt(0)")
    assert MARK + 2 < KVAT[-1] and MARK < 4
    pk = g.v_act
    a(f"s_lshl_b32 s{s_t0}, s{s_w}, 2")
    a(f"s_cmp_eq_u32 s{s_t0}, s{s_i4}")
    a("s_cbranch_scc1 G_keep")
    a(f"s_lshl_b32 s{s_t0}, s{s_lid}, 2")
    a(f"s_add_u32 s{s_t0}, s{s_t0}, s{s_w}")
    a(f"s_mul_i32 s{s_t0}, s{s_t0}, 10240")
    a(f"s_add_u32 s{s_t0}, s{s_t0}, {WS_P}")
    for k in range(10):
        for r in range(4): a(f"v_cvt_pk_bf16_f32 v{pk+4*k+r}, v{g.v_acc+8*k+2*r}, v{g.v_acc+8*k+2*r+1}")
        if k in (4, 8): a(f"s_add_u32 s{s_t0}, s{s_t0}, 4096")
        a(f"buffer_store_dwordx4 {vr(pk+4*k,4)}, v{g.v_l16}, {WS}, s{s_t0} offen offset:{(k%4)*1024} sc1")
    a.label("G_keep")
    sync(7)
    a(f"v_add_u32 v{g.v_wa}, s{g.s_lds}, v{g.v_wa}")
    if 7 in KVAT: kv(4 + KVAT.index(7))
    load_w(27)
    a("s_waitcnt vmcnt(5)"); g.vm.q = g.vm.q[-5:]
    if 7 in KVAT: landed(4 + KVAT.index(7))
    a(f"s_lshl_b32 s{s_t0}, s{s_lid}, 7")
    a(f"s_lshl_b32 s{s_t1}, s{s_w}, 2")
    a(f"s_cmp_eq_u32 s{s_t1}, s{s_i4}")
    a("s_cbranch_scc1 G_keep2")
    a(f"s_add_u32 s{s_t0}, s{s_t0}, s{s_t1}")
    a(f"s_add_u32 s{s_t0}, s{s_t0}, {WS_FL + 32768}")
    a("v_mov_b32 v1, 1")
    a("s_mov_b64 exec, 1")
    a(f"buffer_store_dword v1, off, {WS}, s{s_t0} sc1")
    a("s_mov_b64 exec, -1")
    a.label("G_keep2")
    if os.environ.get("STGST"): stamp(a, 11)
    rd_w(27); g.lg.drain(); load_w(30)
    lds_wait(a, "G_alta", SCW + 20, NW_, 2, s_spin, s_t0, 2)
    load_w(31)
    a(f"s_lshl_b32 s{s_t0}, s{s_tt}, 2")
    a(f"s_add_u32 s{s_t0}, s{s_t0}, s{s_w}")
    a(f"s_mul_i32 s{g.s_aoff}, s{s_t0}, 10240")
    a(f"s_add_u32 s{g.s_aoff}, s{g.s_aoff}, {WS_O}")
    a(f"s_lshl_b32 s{s_slot}, s{s_slot}, 2")
    a(f"s_add_u32 s{s_slot}, s{s_slot}, s{s_hg}")
    a(f"s_lshl_b32 s{s_t0}, s{s_slot}, 7")
    a(f"s_add_u32 s{s_t0}, s{s_t0}, s{s_i4}")
    a(f"s_add_u32 s{s_kvg}, s{s_t0}, {WS_FL + 32768}")
    poll(a, "G_pollr", f"buffer_load_dword v1, off, {WS}, s{s_kvg} sc1", "v_cmp_gt_u32 vcc, 1, v1", 8)
    g.vm.q = []
    a(f"s_lshl_b32 s{s_t1}, s{s_w}, 2")
    a(f"s_cmp_eq_u32 s{s_t1}, s{s_i4}")
    a("s_cbranch_scc1 G_keep3")
    a(f"s_mul_i32 s{s_t0}, s{s_slot}, 40960")
    a(f"s_mul_i32 s{s_t1}, s{s_i4}, 2560")
    a(f"s_add_u32 s{s_t0}, s{s_t0}, s{s_t1}")
    a(f"s_add_u32 s{s_t0}, s{s_t0}, {WS_P}")
    for k in range(10):
        if k in (4, 8): a(f"s_add_u32 s{s_t0}, s{s_t0}, 4096")
        a(f"buffer_load_dwordx4 {vr(pk+4*k,4)}, v{g.v_l16}, {WS}, s{s_t0} offen offset:{(k%4)*1024} sc1")
    a(f"s_mov_b32 s{s_t1}, 0xffff0000")
    for k in range(10):
        a(f"s_waitcnt vmcnt({9-k})")
        for r in range(4):
            a(f"v_lshlrev_b32 v{g.v_acc+8*k+2*r}, 16, v{pk+4*k+r}")
            a(f"v_and_b32 v{g.v_acc+8*k+2*r+1}, s{s_t1}, v{pk+4*k+r}")
    a.label("G_keep3")
    if not TAILST: stamp(a, 5)
    lds_wait(a, "G_alt0", SCW + 24, NW_, 2, s_spin, s_t0, 2)
    load_w(32)
    if ALT1 == 0:
        lds_wait(a, "G_alt1", SCW + 28, NW_, 2, s_spin, s_t0, 2)
        load_w(33)
    if TAILST: stamp(a, 5)
    lds_wait(a, "G_trig0", SC_K + 32, TRIG[0], 2, s_spin, s_t0, 1)
    if not HP: a(f"s_setprio {os.environ.get('TPRIO', '0')}")
    def o_poll(half):
        b = areg(27 + 5 * half)
        so = g.s_aoff if half == 0 else s_a0
        ld = [f"buffer_load_dwordx4 {vr(b+4*j,4)}, v{g.v_l16}, {WS}, s{so} offen offset:{j*1280} sc1" for j in range(4)]
        ld += [f"buffer_load_dwordx2 {vr(b+16+2*j,2)}, v{v_wa2}, {WS}, s{so} offen offset:{1024+2560*j} sc1" for j in range(2)]
        ck = [f"v_max3_u32 v{1+k}, v{b+3*k}, v{b+3*k+1}, v{b+3*k+2}" for k in range(3)]
        ck += [f"v_max3_u32 v{1+k}, v{1+k}, v{b+9+2*k}, v{b+10+2*k}" for k in range(3)]
        ck += [f"v_max3_u32 v1, v1, v{b+15}, v{b+16}", f"v_max3_u32 v2, v2, v{b+17}, v{b+18}", f"v_max_u32 v3, v3, v{b+19}",
               "v_max3_u32 v1, v1, v2, v3", "v_cmp_eq_u32 vcc, -1, v1"]
        return "\n".join(ld), "\n".join(ck)
    a(f"s_add_u32 s{s_a0}, s{g.s_aoff}, 5120")
    poll(a, "G_pollo0", *o_poll(0), OSL[0])
    g.vm.q = []
    if TAILST: stamp(a, 6); a("s_waitcnt lgkmcnt(0)")
    for i in range(27, 32):
        mm(i, i + 1)
        if 28 <= i <= 30: load_w(i + 6)
    if ALT1:
        lds_wait(a, "G_alt1", SCW + 28, NW_, 2, s_spin, s_t0, 1)
        load_w(33)
    stamp(a, 2)
    lds_wait(a, "G_trig1", SC_K + 32, TRIG[1], 2, s_spin, s_t0, 1)
    g.lg.q = []
    poll(a, "G_pollo1", *o_poll(1), OSL[1])
    g.vm.q = []
    a("s_setprio 3")
    stamp(a, 13)
    if STAMP: a("s_waitcnt lgkmcnt(0)")
    for i in range(32, 37): mm(i, i + 1 if i < 36 else None)
    stamp(a, 14)
    xf = g.v_act
    for T in range(5):
        a(f"v_lshlrev_b32 v{xf+4*T}, 16, v{vx+2*T}")
        a(f"v_and_b32 v{xf+4*T+1}, 0xffff0000, v{vx+2*T}")
        a(f"v_lshlrev_b32 v{xf+4*T+2}, 16, v{vx+2*T+1}")
        a(f"v_and_b32 v{xf+4*T+3}, 0xffff0000, v{vx+2*T+1}")
    for q in range(4):
        a(f"s_sub_u32 s{s_t0}, {q + 3}, s{s_w}")
        a(f"s_and_b32 s{s_t0}, s{s_t0}, 3")
        a(f"s_cmp_eq_u32 s{s_t0}, 3")
        a(f"s_cbranch_scc1 G_own{q}")
        a(f"s_mul_i32 s{s_t0}, s{s_t0}, 5120")
        a(f"s_add_u32 s{s_t0}, s{s_t0}, s{g.s_lds}")
        a(f"v_add_u32 v1, s{s_t0}, v{g.v_l16}")
        for T in range(5): a(f"ds_write_b128 v1, {vr(g.v_acc+16*T+4*q,4)} offset:{T*1024}")
        a(f"s_branch G_nxt{q}")
        a.label(f"G_own{q}")
        for T in range(5):
            for h in range(2): a(f"v_pk_add_f32 {vr(xf+4*T+2*h,2)}, {vr(xf+4*T+2*h,2)}, {vr(g.v_acc+16*T+4*q+2*h,2)}")
        a.label(f"G_nxt{q}")
    for k in range(3):
        a(f"s_add_u32 s{s_t0}, s{s_w}, {3 - k}")
        a(f"s_and_b32 s{s_t0}, s{s_t0}, 3")
        a(f"s_mul_i32 s{s_t0}, s{s_t0}, {PART}")
        a(f"s_add_u32 s{s_t0}, s{s_t0}, {STG + k*5120}")
        a(f"v_add_u32 v{4+k}, s{s_t0}, v{g.v_l16}")
    a("s_waitcnt lgkmcnt(0)")
    if TAILST: stamp(a, 10)
    a("s_barrier")
    if TAILST: stamp(a, 11); a("s_waitcnt lgkmcnt(0)")
    for T in range(5):
        for k in range(3):
            a(f"ds_read_b128 {vr(g.v_acc+16*T+4*k,4)}, v{4+k} offset:{T*1024}"); g.lg.issue(T)
    for T in range(5): fin_tile(a, g, T, xf, vo)
    if STAMP:
        if TAILST: stamp(a, 9)
        a("s_waitcnt vmcnt(0)"); stamp(a, 7); stamp(a, 15, True)
        a(f"s_add_u32 s{s_w}, s{s_w}, 8")
        stamp_flush(a, 1, SWS, s_w, 12, 16, gsel=[(9, False), (10, False), (12, False), (13, False), (14, False), (15, False)], goff=8)
    a("s_endpgm")
    return vx + 10

def fin_tile(a, g, T, xf, vo):
    b = g.v_acc + 16 * T
    g.lg.wait(T)
    for h in range(2):
        a(f"v_pk_add_f32 {vr(b+2*h,2)}, {vr(b+2*h,2)}, {vr(b+4+2*h,2)}")
        a(f"v_pk_add_f32 {vr(b+8+2*h,2)}, {vr(b+8+2*h,2)}, {vr(xf+4*T+2*h,2)}")
    for h in range(2):
        a(f"v_pk_add_f32 {vr(b+2*h,2)}, {vr(b+2*h,2)}, {vr(b+8+2*h,2)}")
    a(f"v_cvt_pk_bf16_f32 v{b}, v{b}, v{b+1}")
    a(f"v_cvt_pk_bf16_f32 v{b+1}, v{b+2}, v{b+3}")
    a(f"buffer_store_dwordx2 {vr(b,2)}, v{vo}, s[{SOUT}:{SOUT+3}], s{s_base} offen offset:{64*T}")

def gen_f(a, name="parallel_sum__grouped_kv_mqa__dense_activation_relu__prompt_kernel"):
    kernel_header(a, name)
    a("s_cmp_ge_u32 s2, 256")
    a("s_cbranch_scc1 F_end")
    stamp(a, 0, True); stamp(a, 1)
    BMAP = int(os.environ.get("BMAP", "4"))
    if BMAP == 0: a(f"s_mov_b32 s{s_lid}, s2")
    elif BMAP == 1:
        a(f"s_bfe_u32 s{s_lid}, s2, 0x20001")
        a(f"s_lshl_b32 s{s_lid}, s{s_lid}, 4")
        a(f"s_lshr_b32 s35, s2, 4")
        a(f"s_add_u32 s{s_lid}, s{s_lid}, s35")
        a(f"s_lshl_b32 s{s_lid}, s{s_lid}, 1")
        a(f"s_and_b32 s35, s2, 1")
        a(f"s_add_u32 s{s_lid}, s{s_lid}, s35")
        a(f"s_lshl_b32 s{s_lid}, s{s_lid}, 1")
        a(f"s_bfe_u32 s35, s2, 0x10003")
        a(f"s_add_u32 s{s_lid}, s{s_lid}, s35")
    elif BMAP == 3:
        a(f"s_lshr_b32 s{s_lid}, s2, 4")
        a(f"s_lshl_b32 s{s_lid}, s{s_lid}, 3")
        a(f"s_and_b32 s35, s2, 7")
        a(f"s_add_u32 s{s_lid}, s{s_lid}, s35")
        a(f"s_lshl_b32 s{s_lid}, s{s_lid}, 1")
        a(f"s_bfe_u32 s35, s2, 0x10003")
        a(f"s_add_u32 s{s_lid}, s{s_lid}, s35")
    elif BMAP == 4:
        a(f"s_and_b32 s{s_lid}, s2, 1")
        a(f"s_lshl_b32 s{s_lid}, s{s_lid}, 3")
        a(f"s_lshr_b32 s35, s2, 5")
        a(f"s_add_u32 s{s_lid}, s{s_lid}, s35")
        a(f"s_lshl_b32 s{s_lid}, s{s_lid}, 2")
        a(f"s_bfe_u32 s35, s2, 0x20001")
        a(f"s_add_u32 s{s_lid}, s{s_lid}, s35")
        a(f"s_lshl_b32 s{s_lid}, s{s_lid}, 2")
        a(f"s_bfe_u32 s35, s2, 0x20003")
        a(f"s_add_u32 s{s_lid}, s{s_lid}, s35")
    else:
        a(f"s_and_b32 s{s_lid}, s2, 7")
        a(f"s_lshl_b32 s{s_lid}, s{s_lid}, 5")
        a(f"s_lshr_b32 s35, s2, 3")
        a(f"s_add_u32 s{s_lid}, s{s_lid}, s35")
    if STAMP == 3: a("s_mov_b32 s72, 0")
    def clear_cnt(a):
        a("v_lshlrev_b32 v1, 2, v0")
        a(f"v_add_u32 v1, {SC_CNT}, v1")
        a("v_mov_b32 v2, 0")
        a("ds_write_b32 v1, v2")
        a("ds_write_b32 v1, v2 offset:256")
        a("v_add_u32 v3, -1, v0")
        a("v_cmp_lt_u32 vcc, 5, v3")
        a("v_cndmask_b32 v2, 0, 4, vcc")
        a("ds_write_b32 v1, v2 offset:512")
        a("s_waitcnt lgkmcnt(0)")
    def start_hook(a):
        clear_cnt(a)
        attn_addr(a)
    def pre_ba(a): attn_addr(a)
    def done_help(a): a("s_branch F_fetch")
    def done_stats(a): a("s_branch F_dry" if DRY else "s_branch F_attn")
    def done_comp(a): a("s_branch F_pub")
    def spare(a):
        ka2.produce_stats(a)
        clear_cnt(a)
        attn_addr(a)
        a(f"s_cmp_lg_u32 s{s_w}, 0")
        a("s_cbranch_scc1 F_sp1")
        ka2.dbg_check(a, "F_dbg")
        a.label("F_sp1")
        a("s_barrier")
        a(f"s_cmp_ge_u32 s{s_w}, 8")
        a("s_cbranch_scc1 F_gemm0")
        a(f"s_cmp_ge_u32 s{s_w}, 4")
        a("s_cbranch_scc1 F_dry" if DRY else "s_cbranch_scc1 F_attn")
    phase_a(a, done_help, done_stats, done_comp, spare, start_hook, pre_ba)
    a.label("F_fetch")
    fetch(a)
    a.label("F_attn")
    attention(a)
    if DRY:
        a.label("F_dry")
        a(f"s_cmp_eq_u32 s{s_w}, 4")
        a("s_cbranch_scc1 F_attn")
        a("s_mov_b64 exec, 0")
        a(f"s_mov_b32 s{s_c}, 7")
        a(f"s_cmp_eq_u32 s{s_w}, 5")
        a("s_cbranch_scc1 B_loop")
        a(f"s_cmp_eq_u32 s{s_w}, 6")
        a("s_cbranch_scc1 B_u3")
        a("s_branch B_synced")
        a.label("F_dryret")
        a("s_mov_b64 exec, -1")
        a("s_nop 7")
        a("s_nop 7")
        a("s_branch F_attn")
    a.label("F_pub")
    stamp(a, 3)
    publish(a, "F_pub2", 0, 4, 3, WS_FL, 1)
    stamp(a, 4)
    lds_wait(a, "F_all", SC_CNT, 4, 2, s_spin, s_t0)
    a.label("F_gemm0")
    a("s_mov_b32 s53, -1")
    a.label("F_gemm")
    nv = gemm(a)
    a.label("F_end")
    a("s_endpgm")
    assert nv <= 168, nv
    return dict(name=name, grid=256, block=768, lds=LDS_A, vgpr=168, sgpr=102 if STAMP else 72, single=True)
```

```python
import re

TRANS = ("v_exp_f32", "v_log_f32", "v_rcp_f32", "v_rsq_f32", "v_sqrt_f32", "v_sin_f32", "v_cos_f32")
REG = re.compile(r"^(-?)(?:abs\()?([vas])(?:(\d+)|\[(\d+):(\d+)\])\)?$")

def regs_of(tok):
    tok = tok.strip()
    if tok in ("vcc",): return {("s", 106), ("s", 107)}
    if tok == "vcc_lo": return {("s", 106)}
    if tok == "vcc_hi": return {("s", 107)}
    if tok == "exec": return {("s", 126), ("s", 127)}
    if tok == "exec_lo": return {("s", 126)}
    if tok == "exec_hi": return {("s", 127)}
    if tok == "m0": return {("s", 124)}
    m = REG.match(tok)
    if not m: return set()
    k = m.group(2)
    if m.group(3) is not None: return {(k, int(m.group(3)))}
    return {(k, i) for i in range(int(m.group(4)), int(m.group(5)) + 1)}

class Ins:
    def __init__(self, text):
        self.text = text
        t = text.split(";")[0].strip()
        self.label = t.endswith(":")
        self.directive = t.startswith(".")
        self.op = t.split()[0] if t else ""
        self.R = set(); self.W = set()
        self.srcs = []
        self.states = 1
        if self.label or self.directive or not t:
            self.states = 0; self.kind = "none"; return
        rest = t[len(self.op):].strip()
        ops = [o.strip() for o in re.split(r",(?![^\[]*\])", rest)] if rest else []
        mods = ""
        if ops:
            parts = ops[-1].split(None, 1)
            ops[-1] = parts[0]
            if len(parts) > 1: mods = parts[1]
        self.mods = mods
        op = self.op
        rs = [regs_of(o) for o in ops]
        self.ops = ops
        if op == "s_nop":
            self.kind = "nop"; self.states = int(ops[0], 0) + 1; return
        if op.startswith("v_mfma"):
            self.kind = "mfma"; self.W = rs[0]; self.A = rs[1]; self.B = rs[2]; self.C = rs[3]
            self.R = rs[1] | rs[2] | rs[3]
            self.passes = 8 if "32x32" in op else 4
            return
        if op.startswith("v_"):
            self.kind = "valu"
            if op.startswith("v_cmp"):
                self.W = rs[0]; self.R = set().union(*rs[1:])
            elif op.startswith("v_permlane32_swap") or op.startswith("v_permlane16_swap") or op.startswith("v_swap"):
                self.W = rs[0] | rs[1]; self.R = rs[0] | rs[1]
            elif op.startswith("v_add_co") or op.startswith("v_addc_co") or op.startswith("v_sub_co"):
                self.W = rs[0] | rs[1]; self.R = set().union(*rs[2:])
            else:
                self.W = rs[0]; self.R = set().union(*rs[1:]) if len(rs) > 1 else set()
                if op.startswith("v_fmac") or op.startswith("v_dot2c") or "sdwa" in op or op.startswith("v_writelane"): self.R |= rs[0]
            self.trans = any(op.startswith(x) for x in TRANS)
            self.dot = op.startswith("v_dot")
            self.dpp = "dpp" in op or "row_" in mods or "quad_perm" in mods
            return
        if op.startswith("ds_"):
            self.kind = "ds"
            if op.startswith("ds_read") or op.startswith("ds_bpermute") or op.startswith("ds_swizzle") or "_rtn" in op:
                self.W = rs[0]; self.R = set().union(*rs[1:])
            else:
                self.R = set().union(*rs)
            return
        if op.startswith("buffer_") or op.startswith("global_"):
            self.kind = "vmem"
            self.lds = " lds" in (" " + mods) or "load_lds" in op
            self.widestore = False
            if op in ("buffer_wbl2", "buffer_inv"): return
            if self.lds:
                self.R = set().union(*rs) | {("s", 124)}
            elif "load" in op:
                self.W = rs[0]; self.R = set().union(*rs[1:])
            elif "atomic" in op:
                self.R = set().union(*rs)
                if "sc0" in mods: self.W = rs[0]
            else:
                self.R = set().union(*rs)
                data = rs[0] if op.startswith("buffer_") else rs[1]
                if "x3" in op or "x4" in op:
                    self.widestore = True; self.data = data
            return
        if op.startswith("s_"):
            self.kind = "salu"
            if op.startswith("s_cmp") or op.startswith("s_bitcmp") or op.startswith("s_cbranch") or op in ("s_branch", "s_waitcnt", "s_barrier", "s_endpgm", "s_setprio", "s_sleep"):
                self.R = set().union(*rs) if rs else set()
            else:
                self.W = rs[0] if rs else set(); self.R = set().union(*rs[1:]) if len(rs) > 1 else set()
                if "saveexec" in op: self.W |= regs_of("exec"); self.R |= regs_of("exec")
            return
        raise ValueError("unknown op " + text)

def vg(s): return {r for r in s if r[0] in "va"}
def sg(s): return {r for r in s if r[0] == "s"}

def need(p, c):
    n = 0
    if p.kind == "valu":
        wv = vg(p.W); ws = sg(p.W)
        if c.kind == "mfma" and wv & c.R: n = max(n, 2)
        if c.kind == "valu":
            if p.trans and not c.trans and wv & c.R: n = max(n, 1)
            if p.trans and c.trans and wv & c.R: n = max(n, 1)
            if c.op.startswith("v_permlane") and wv & c.R: n = max(n, 2)
            if (c.op.startswith("v_readfirstlane") or c.op.startswith("v_readlane")) and wv & c.R: n = max(n, 1)
            if c.dpp and wv & c.R: n = max(n, 2)
            if ws & c.R: n = max(n, 4 if c.op.startswith(("v_readlane", "v_writelane")) else 2)
            if p.dot and (wv & (c.R | c.W)) and c.op != p.op: n = max(n, 3)
            if p.dot and c.op == p.op and (wv & (set().union(*[regs_of(o) for o in c.ops[1:3]]))): n = max(n, 3)
            if ("sdwa" in p.op or "op_sel:" in p.mods) and wv & (c.R | c.W): n = max(n, 1)
        if p.dot and c.kind in ("mfma", "ds", "vmem") and wv & c.R: n = max(n, 3)
        if c.kind == "vmem" and ws & c.R: n = max(n, 5)
        if c.kind == "salu" and ws & c.R: n = max(n, 1)
    if p.kind == "mfma":
        big = p.passes == 8
        if c.kind == "mfma":
            if p.W & (c.A | c.B): n = max(n, 12 if big else 8)
            if p.W & c.C and not (p.W == c.C and p.passes == c.passes): n = max(n, 10 if big else 6)
            if p.W & c.W and not (p.W & c.C): n = max(n, 12 if big else 8)
        elif c.kind in ("valu", "ds", "vmem"):
            if p.W & (c.R | c.W): n = max(n, 12 if big else 8)
            if c.kind == "valu" and p.C & c.W: n = max(n, 7 if big else 3)
    if p.kind == "vmem" and getattr(p, "widestore", False):
        if c.kind == "valu" and p.data & c.W: n = max(n, 2)
        elif c.kind in ("ds", "vmem", "mfma") and p.data & c.W: n = max(n, 1)
    if p.kind == "ds" and p.op in ("ds_write_b128", "ds_write_b96") and c.kind == "valu" and (p.R & c.W): n = max(n, 2)
    if p.kind == "salu" and ("s", 124) in p.W and c.kind == "vmem" and c.lds: n = max(n, 1)
    return n

class Asm:
    def __init__(self):
        self.ins = []
        self.pads = 0
    def raw(self, text):
        self.ins.append(Ins(text))
    def __call__(self, text):
        for line in text.strip().split("\n"):
            line = line.strip()
            if not line or line.startswith(";"): continue
            c = Ins(line)
            if c.kind not in ("none", "nop"):
                dist = 0; req = 0
                for p in reversed(self.ins):
                    if dist >= 20: break
                    if p.kind not in ("none", "nop"):
                        r = need(p, c) - dist
                        req = max(req, r)
                    dist += p.states
                if req > 0:
                    self.ins.append(Ins(f"s_nop {req-1}")); self.pads += 1
            self.ins.append(c)
    def label(self, name):
        self.ins.append(Ins(name + ":"))
    def mark(self): return len(self.ins)
    def check_backedge(self, start, end=None):
        body = self.ins[start:end]
        tail = [i for i in body]
        seq = tail + body
        n0 = len(tail)
        acc = 0
        for idx in range(n0, len(seq)):
            c = seq[idx]
            if acc > 20: break
            if c.kind not in ("none", "nop"):
                dist = 0
                for j in range(idx - 1, -1, -1):
                    p = seq[j]
                    if dist >= 20: break
                    if p.kind not in ("none", "nop") and j < n0:
                        if need(p, c) > dist:
                            raise ValueError(f"backedge hazard: {p.text} -> {c.text} dist {dist} need {need(p,c)}")
                    dist += p.states
            acc += c.states
    def align8(self, start, end=None):
        def size(i):
            if i.kind == "none": return 0
            op = i.op
            if i.kind in ("mfma", "ds", "vmem"): return 8
            if i.kind == "nop": return 4
            if i.kind == "salu":
                if op.startswith("s_mem"): return 8
                for o in i.ops:
                    try:
                        v = int(o, 0)
                        if not -16 <= v <= 64 and not op.startswith(("s_waitcnt", "s_movk", "s_sleep")): return 8
                    except ValueError: pass
                return 4
            if op.endswith("_e64") or "dpp" in op or op.startswith(("v_cvt_pk", "v_readlane", "v_max3", "v_lshl_add", "v_fma", "v_pk")): return 8
            if op in ("v_exp_f32", "v_add_u32", "v_mov_b32", "v_mul_f32", "v_max_f32"): return 4
            raise ValueError("size? " + i.text)
        end = len(self.ins) if end is None else end
        off = 0; last = None; fixed = 0
        for k in range(start, end):
            i = self.ins[k]; sz = size(i)
            if sz == 8 and off % 8:
                assert last is not None, i.text
                self.ins[last] = Ins(self.ins[last].text.replace("v_exp_f32 ", "v_exp_f32_e64 ", 1)); off += 4; fixed += 1
            if sz == 8: last = None
            if i.op == "v_exp_f32": last = k
            off += sz
        return off, fixed
    def text(self):
        out = []
        for i in self.ins:
            out.append(i.text if (i.label or i.directive) else "    " + i.text)
        return "\n".join(out)

def vr(a, n=1): return f"v{a}" if n == 1 else f"v[{a}:{a+n-1}]"
def sr(a, n=1): return f"s{a}" if n == 1 else f"s[{a}:{a+n-1}]"

def kernel_header(a, name):
    a.raw(".p2align 8")
    a.raw(f".globl {name}")
    a.raw(f".type {name},@function")
    a.label(name)

def kernel_desc(name, vgpr, sgpr=102, accum=None):
    acc = accum if accum is not None else (vgpr + 3) // 4 * 4
    return f""".p2align 6
.amdhsa_kernel {name}
  .amdhsa_next_free_vgpr {vgpr}
  .amdhsa_next_free_sgpr {sgpr}
  .amdhsa_accum_offset {acc}
  .amdhsa_group_segment_fixed_size 0
  .amdhsa_kernarg_size 88
  .amdhsa_user_sgpr_count 2
  .amdhsa_user_sgpr_kernarg_segment_ptr 1
  .amdhsa_system_sgpr_workgroup_id_x 1
.end_amdhsa_kernel"""
```

```python
from common import *

SLOT = 40960
LA = int(os.environ.get('LA', '2'))
SCR = 159744
SC_NM, SC_RS, SC_CS = SCR, SCR + 512, SCR + 1024
LDS_A = SCR + 4096
SC_CNT = SCR + 3072
ST = ' sc1'
ROT = int(os.environ.get('ROT', '0'))
NSB = 0
GATH = int(os.environ.get('GATH', '8'))
PD = int(os.environ.get('PD', '3'))
GMAP = [int(c, 16) for c in os.environ.get('GMAP', '9aefb012c345d678')]
TEAM = int(os.environ.get('TEAM', '0'))
GD = int(os.environ.get('GD', '5'))
SDOT = int(os.environ.get('SDOT', '3'))
HOLDH = int(os.environ.get('HOLDH', '1'))
LATEBIT = os.environ.get('LATEBIT', '1')
AX = os.environ.get('AX', '')
PF = int(os.environ.get('PF', '0'))

SX, SW, SO, SW2 = 4, 8, 12, 16
s_w, s_rb, s_g = 32, 33, 34
s_it, s_slot, s_xoff, s_woff, s_wstep = 35, 36, 37, 38, 39
s_m0x, s_m0w, s_delta, s_relu, s_scale, s_t0, s_t1, s_out, s_dslot, s_cslot, s_ch, s_xbase, s_stride, s_col = range(40, 54)
s_tab = 54

ROLES = {
    "h": (3, 384, 3), "q": (2, 256, 2), "kv": (1, 64, 1)}

def w_read_addr(a, role, dst, s_half, tmp=1):
    NTW, RB, _ = ROLES[role]
    t = tmp
    a(f"v_lshrrev_b32 v{t}, 5, v0")
    a(f"v_bfe_u32 v{t+1}, v0, 2, 2")
    a(f"v_lshl_add_u32 v{t}, v{t}, 3, v{t+1}")
    a(f"v_mul_u32_u24 v{t}, {RB}, v{t}")
    a(f"v_bfe_u32 v{t+2}, v0, 4, 1")
    a(f"v_lshl_add_u32 v{t}, v{t+2}, 5, v{t}")
    a(f"v_and_b32 v{t+2}, 3, v0")
    a(f"v_lshl_add_u32 v{t}, v{t+2}, 3, v{t}")
    a(f"v_add_u32 v{t}, {16384 + LA*SLOT}, v{t}")
    if role == "kv":
        a(f"s_lshl_b32 s{s_t0}, s{s_half}, 12")
        a(f"v_add_u32 v{dst}, s{s_t0}, v{t}")
        return
    if role == "h": a(f"v_lshrrev_b32 v{t+1}, 1, v{t+1}")
    a(f"s_mul_i32 s{s_t0}, s{s_half}, {NTW}")
    for T in range(NTW):
        a(f"s_add_u32 s{s_t1}, s{s_t0}, {T}")
        a(f"v_xor_b32 v{t+2}, s{s_t1}, v{t+1}")
        a(f"v_lshl_add_u32 v{dst+T}, v{t+2}, 6, v{t}")

def slot_advance(regs):
    L = [f"s_cmp_eq_u32 s{s_slot}, {LA*SLOT}",
         f"s_cselect_b32 s{s_delta}, {(-LA*SLOT) & 0xffffffff}, s{s_cslot}",
         f"s_add_u32 s{s_slot}, s{s_slot}, s{s_delta}"]
    return L + [f"v_add_u32 v{r}, s{s_delta}, v{r}" for r in regs]

def loader(a, role, done, pre_ba=None):
    NTW, RB, NW = ROLES[role]
    NW *= 2
    ND = 4 + NW
    v_xd, v_wd = 4, 8
    a(f"v_lshrrev_b32 v1, 3, v0")
    a(f"s_lshl_b32 s{s_t0}, s{s_w}, 5")
    a(f"v_add_u32 v1, s{s_t0}, v1")
    a(f"v_mul_u32_u24 v1, 1280, v1")
    a(f"v_and_b32 v2, 7, v0")
    a(f"v_lshrrev_b32 v3, 4, v0")
    a(f"v_xor_b32 v2, v2, v3")
    a(f"v_lshl_add_u32 v{v_xd}, v2, 4, v1")
    a(f"v_xor_b32 v2, 4, v2")
    a(f"v_lshl_add_u32 v{v_xd+1}, v2, 4, v1")
    a(f"v_add_u32 v{v_xd+1}, {10240-1024}, v{v_xd+1}")
    a(f"v_add_u32 v{v_xd+2}, {2*(10240-1024)}, v{v_xd}")
    a(f"v_add_u32 v{v_xd+3}, {2*(10240-1024)}, v{v_xd+1}")
    a(f"s_lshl_b32 s{s_m0x}, s{s_w}, 12")
    def dma_x():
        a(f"s_and_b32 s{s_ch}, s{s_tab}, 15")
        a(f"s_lshr_b64 s[{s_tab}:{s_tab+1}], s[{s_tab}:{s_tab+1}], 4")
        a(f"s_lshl_b32 s{s_xoff}, s{s_ch}, 7")
        a(f"s_add_u32 s{s_xoff}, s{s_xoff}, s{s_xbase}")
        a(f"s_add_u32 m0, s{s_dslot}, s{s_m0x}")
        a(f"s_mul_i32 s{s_woff}, s{s_ch}, s{s_wstep}")
        for e in range(4):
            a(f"buffer_load_dwordx4 v{v_xd+e}, s[{SX}:{SX+3}], s{s_xoff} offen offset:{e*1024} lds")
    def dma_w():
        a(f"s_add_u32 m0, s{s_dslot}, s{s_m0w}")
        if role == "kv":
            a(f"buffer_load_dwordx4 v{v_wd}, s[{SW}:{SW+3}], s{s_woff} offen lds")
            a(f"s_add_u32 m0, m0, 4096")
            a(f"buffer_load_dwordx4 v{v_wd}, s[{SW2}:{SW2+3}], s{s_woff} offen lds")
        else:
            for m in range(NW):
                if m == 4: a(f"s_add_u32 m0, m0, 4096")
                a(f"buffer_load_dwordx4 v{v_wd+m}, s[{SW}:{SW+3}], s{s_woff} offen offset:{(m%4)*1024} lds")
    a(f"s_mov_b32 s{s_dslot}, 0")
    dma_x()
    if role == "kv":
        a(f"s_lshl_b32 s{s_m0w}, s{s_w}, 10")
        a(f"s_add_u32 s{s_m0w}, s{s_m0w}, 16384")
        a(f"v_lshrrev_b32 v1, 2, v0")
        a(f"s_lshl_b32 s{s_t0}, s{s_w}, 4")
        a(f"v_add_u32 v1, s{s_t0}, v1")
        a(f"v_mul_u32_u24 v1, 40, v1")
        a(f"v_and_b32 v2, 3, v0")
        a(f"v_lshl_add_u32 v{v_wd}, v2, 4, v1")
    else:
        PR = RB // 16
        a(f"s_mul_i32 s{s_m0w}, s{s_w}, {NW*1024}")
        a(f"s_add_u32 s{s_m0w}, s{s_m0w}, 16384")
        a(f"s_lshl_b32 s{s_t0}, s{s_w}, 4")
        a(f"s_mul_i32 s{s_t0}, s{s_t0}, s{s_stride}")
        a(f"s_add_u32 s{s_t0}, s{s_t0}, s{s_col}")
        for m in range(NW // 2):
            a(f"v_add_u32 v1, {64*m}, v0")
            if PR == 16:
                a(f"v_lshrrev_b32 v2, 4, v1")
                a(f"v_and_b32 v3, 15, v1")
                a(f"v_and_b32 v1, 3, v2")
            else:
                a(f"v_mul_u32_u24 v2, 0xaaab, v1")
                a(f"v_lshrrev_b32 v2, 20, v2")
                a(f"v_mul_u32_u24 v3, 24, v2")
                a(f"v_sub_u32 v3, v1, v3")
                a(f"v_bfe_u32 v1, v2, 1, 1")
            a(f"v_lshlrev_b32 v1, 2, v1")
            a(f"v_xor_b32 v3, v3, v1")
            a(f"v_mul_lo_u32 v2, v2, s{s_stride}")
            a(f"v_lshl_add_u32 v2, v3, 4, v2")
            a(f"v_add_u32 v{v_wd+m}, s{s_t0}, v2")
        stride = 3456 if role == "h" else 1280
        for m in range(NW // 2, NW):
            a(f"v_add_u32 v{v_wd+m}, {8*stride - (m%4)*1024}, v{v_wd+m-NW//2}")
        for m in range(1, NW // 2): a(f"v_subrev_u32 v{v_wd+m}, {m*1024}, v{v_wd+m}")
    dma_w()
    for c in range(1, LA):
        a(f"s_mov_b32 s{s_dslot}, {c*SLOT}")
        dma_x(); dma_w()
    stamp(a, 2)
    a(f"s_mov_b32 s{s_it}, 0")
    a(f"s_mov_b32 s{s_dslot}, {LA*SLOT}")
    a.label(f"AL_loop_{role}")
    a(f"s_waitcnt vmcnt({(LA-1)*ND})")
    a("s_barrier")
    if "nodma" not in AX: dma_x(); dma_w()
    a(f"s_add_u32 s{s_dslot}, s{s_dslot}, s{s_cslot}")
    a(f"s_cmp_eq_u32 s{s_dslot}, {(LA+1)*SLOT}")
    a(f"s_cselect_b32 s{s_dslot}, 0, s{s_dslot}")
    a(f"s_add_u32 s{s_it}, s{s_it}, 1")
    a(f"s_cmp_lt_u32 s{s_it}, {10-LA}")
    a(f"s_cbranch_scc1 AL_loop_{role}")
    for k in range(LA):
        if k == LA - 1 and pre_ba: pre_ba(a)
        a(f"s_waitcnt vmcnt({(LA-1-k)*ND})")
        a("s_barrier")
    stamp(a, 3)
    done(a)

SDBG = 16
def dbg_check(a, name, between=None):
    srd(a, SDBG, 62, 256)
    a("v_lshlrev_b32 v1, 2, v0")
    a("s_mov_b32 exec_lo, 0xffff")
    a("s_mov_b32 exec_hi, 0")
    poll(a, name, f"buffer_load_dword v2, v1, s[{SDBG}:{SDBG+3}], 0 offen sc1", "v_cmp_ne_u32 vcc, 1, v2", 8, between=between)
    a("s_mov_b64 exec, -1")

def idle(a, done):
    a(f"s_cmp_eq_u32 s{s_w}, 4")
    a("s_cbranch_scc1 AI_w4")
    for it in range(10):
        a("s_barrier")
        if it in (0, 4): stamp(a, {0: 4, 4: 6}[it])
    done(a)
    a.label("AI_w4")
    a("s_setprio 3")
    bar = lambda: a("s_barrier")
    for it in range(GD): bar()
    dbg_check(a, "AI_dbg", bar)
    for it in range(GD + 1, GATH): bar()
    a(f"s_lshl_b32 s{s_t0}, s{s_rb}, 10")
    a(f"s_add_u32 s{s_t0}, s{s_t0}, {WS_STAT}")
    a(f"v_lshlrev_b32 v1, 3, v0")
    O = f"s[{SO}:{SO+3}]"
    poll(a, "AI_stat", f"buffer_load_dwordx2 v[4:5], v1, {O}, s{s_t0} offen sc1\nbuffer_load_dwordx2 v[6:7], v1, {O}, s{s_t0} offen offset:512 sc1",
         "v_min_u32 v2, v5, v7\nv_cmp_eq_u32 vcc, 0, v2", 2, between=bar)
    a(f"v_lshlrev_b32 v1, 2, v0")
    a(f"v_add_u32 v1, {SC_NM}, v1")
    a(f"v_mul_f32 v5, s{s_scale}, v5")
    a(f"v_mul_f32 v7, s{s_scale}, v7")
    a(f"ds_write_b32 v1, v4")
    a(f"ds_write_b32 v1, v6 offset:256")
    a(f"ds_write_b32 v1, v5 offset:512")
    a(f"ds_write_b32 v1, v7 offset:768")
    a("s_waitcnt lgkmcnt(0)")
    stamp(a, 3); stamp(a, 4); stamp(a, 6)
    for it in range(GATH + 1, 10): bar()
    a("s_setprio 0")
    done(a)

def clear_words(a):
    O = f"s[{SO}:{SO+3}]"
    for r in range(4, 8): a(f"v_mov_b32 v{r}, 0")
    a(f"v_lshlrev_b32 v1, 4, v0")
    a(f"s_lshl_b32 s{s_t0}, s{s_rb}, 10")
    a(f"s_add_u32 s{s_t0}, s{s_t0}, {WS_STAT}")
    a(f"buffer_store_dwordx4 v[4:7], v1, {O}, s{s_t0} offen sc1")
    a(f"v_lshlrev_b32 v1, 7, v0")
    a(f"s_lshl_b32 s{s_t0}, s{s_rb}, 12")
    a(f"s_add_u32 s{s_t0}, s{s_t0}, {WS_FL}")
    a("s_mov_b32 exec_hi, 0")
    a(f"buffer_store_dwordx4 v[4:7], v1, {O}, s{s_t0} offen sc1")
    srd(a, SDBG, 62, 256)
    a(f"v_mov_b32 v3, 1")
    a(f"s_lshl_b32 s{s_t0}, s{s_rb}, 2")
    stamp(a, 5)
    a("s_waitcnt vmcnt(0)")
    stamp(a, 6)
    a("s_mov_b64 exec, 1")
    a(f"buffer_store_dword v3, v4, s[{SDBG}:{SDBG+3}], s{s_t0} offen sc1")
    a("s_mov_b64 exec, -1")
    if STAMP: a("s_waitcnt vmcnt(0)")
    stamp(a, 3)

def produce_stats(a):
    O = f"s[{SO}:{SO+3}]"
    a(f"s_cmp_ge_u32 s{s_w}, 8")
    a("s_cbranch_scc1 AP_clear")
    a(f"v_lshrrev_b32 v1, 3, v0")
    a(f"s_lshl_b32 s{s_t0}, s{s_w}, 4")
    a(f"v_add_u32 v1, s{s_t0}, v1")
    a(f"v_mul_u32_u24 v1, 1280, v1")
    a(f"v_and_b32 v2, 7, v0")
    a(f"v_lshl_add_u32 v1, v2, 4, v1")
    a(f"s_add_u32 s{s_t0}, s{s_xbase}, 10240")
    XR, AS = 16, 8
    def ld(c):
        for e in range(2):
            a(f"buffer_load_dwordx4 {vr(XR+8*c+4*e,4)}, v1, s[{SX}:{SX+3}], s{s_t0 if e else s_xbase} offen offset:{128*c}")
    for c in range(PD): ld(c)
    a(f"s_mov_b32 s{s_relu}, 0x3f803f80")
    for r in range(AS, AS + 8): a(f"v_mov_b32 v{r}, 0")
    for c in range(10):
        a(f"s_waitcnt vmcnt({2*(min(c+PD, 10)-c-1)})")
        if c + PD < 10: ld(c + PD)
        for e in range(2):
            for i in range(4):
                x = XR + 8 * c + 4 * e + i
                a(f"v_dot2c_f32_bf16 v{AS+2*e+(i&1)}, s{s_relu}, v{x}")
                a(f"v_dot2c_f32_bf16 v{AS+4+2*e+(i&1)}, v{x}, v{x}")
    vals = [AS, AS + 2, AS + 4, AS + 6]
    for r in vals: a(f"v_add_f32 v{r}, v{r}, v{r+1}")
    for ctl in ("quad_perm:[1,0,3,2]", "quad_perm:[2,3,0,1]", "row_half_mirror"):
        for r in vals: a(f"v_add_f32_dpp v{r}, v{r}, v{r} {ctl} row_mask:0xf bank_mask:0xf")
    a(f"v_and_b32 v2, 1, v0")
    a(f"v_cmp_eq_u32 vcc, 1, v2")
    a(f"v_cndmask_b32 v4, v{AS}, v{AS+2}, vcc")
    a(f"v_cndmask_b32 v5, v{AS+4}, v{AS+6}, vcc")
    inv = f32bits(1.0 / 640.0)
    a(f"v_mul_f32 v4, {hex(inv)}, v4")
    a(f"v_mul_f32 v5, {hex(inv)}, v5")
    a(f"v_fma_f32 v5, -v4, v4, v5")
    a(f"v_max_f32 v5, 0, v5")
    a(f"v_cvt_pk_bf16_f32 v5, v5, v5")
    a(f"v_lshlrev_b32 v5, 16, v5")
    a(f"v_add_f32 v5, {hex(f32bits(1e-5))}, v5")
    a(f"v_cvt_pk_bf16_f32 v5, v5, v5")
    a(f"v_lshlrev_b32 v5, 16, v5")
    a(f"v_sqrt_f32 v5, v5")
    a(f"v_cvt_pk_bf16_f32 v5, v5, v5")
    a(f"v_lshlrev_b32 v5, 16, v5")
    a(f"v_rcp_f32 v5, v5")
    a(f"v_cvt_pk_bf16_f32 v4, -v4, -v4")
    a(f"v_lshrrev_b32 v1, 3, v0")
    a(f"v_lshl_add_u32 v1, v2, 3, v1")
    a(f"v_lshlrev_b32 v1, 3, v1")
    a(f"v_or_b32 v5, 1, v5")
    a(f"s_lshl_b32 s{s_t0}, s{s_rb}, 10")
    a(f"s_lshl_b32 s{s_t1}, s{s_w}, 7")
    a(f"s_add_u32 s{s_t0}, s{s_t0}, s{s_t1}")
    a(f"s_add_u32 s{s_t0}, s{s_t0}, {WS_STAT}")
    a("s_barrier")
    a("s_mov_b32 exec_lo, 0x03030303")
    a("s_mov_b32 exec_hi, 0x03030303")
    a(f"buffer_store_dwordx2 v[4:5], v1, {O}, s{s_t0} offen sc1")
    a("s_mov_b64 exec, -1")
    stamp(a, 3)
    a("s_branch AP_done")
    a.label("AP_clear")
    a.label("AP_bar")
    a("s_barrier")
    a.label("AP_done")

def prefetch(a, role):
    NTW, RB, _ = ROLES[role]
    c = s_t1
    a(f"s_sub_u32 s{c}, s{s_w}, 8")
    a(f"s_lshr_b32 s{s_t0}, s2, 6")
    a(f"s_lshl_b32 s{s_t0}, s{s_t0}, 2")
    a(f"s_add_u32 s{s_t0}, s{s_t0}, s{c}")
    a(f"s_mul_i32 s{s_t0}, s{s_t0}, {8*1280}")
    a(f"s_add_u32 s{s_t0}, s{s_t0}, s{s_xbase}")
    a(f"v_and_b32 v1, 7, v0")
    a(f"v_mul_u32_u24 v1, 1280, v1")
    a(f"v_lshrrev_b32 v2, 3, v0")
    a(f"v_lshl_add_u32 v3, v2, 7, v1")
    a(f"buffer_load_dword v5, v3, s[{SX}:{SX+3}], s{s_t0} offen offset:128")
    if role != "kv":
        NL = RB // 128
        a(f"v_mul_u32_u24 v2, {65536 // (2*NL) + 1}, v0")
        a(f"v_lshrrev_b32 v2, 16, v2")
        a(f"v_mul_u32_u24 v3, {2*NL}, v2")
        a(f"v_sub_u32 v3, v0, v3")
        a(f"v_and_b32 v4, 1, v3")
        a(f"v_lshrrev_b32 v3, 1, v3")
        a(f"v_lshl_add_u32 v2, v2, 6, v4")
        a(f"v_mul_lo_u32 v2, v2, s{s_stride}")
        a(f"v_lshl_add_u32 v2, v3, 7, v2")
        a(f"s_bfe_u32 s{s_t0}, s2, 0x30003")
        a(f"s_lshl_b32 s{s_t0}, s{s_t0}, 2")
        a(f"s_add_u32 s{s_t0}, s{s_t0}, s{c}")
        a(f"s_lshl_b32 s{s_t0}, s{s_t0}, 1")
        a(f"s_mul_i32 s{s_t0}, s{s_t0}, s{s_stride}")
        a(f"s_add_u32 s{s_delta}, s{s_t0}, s{s_col}")
        a(f"buffer_load_dword v7, v2, s[{SW}:{SW+3}], s{s_delta} offen")
    a(f"s_lshr_b32 s{s_t0}, s2, 6")
    a(f"s_lshl_b32 s{s_t0}, s{s_t0}, 2")
    a(f"s_add_u32 s{s_t0}, s{s_t0}, s{c}")
    a(f"s_mul_i32 s{s_t0}, s{s_t0}, {8*1280}")
    a(f"s_add_u32 s{s_t0}, s{s_t0}, s{s_xbase}")
    a(f"buffer_load_dword v15, v1, s[{SX}:{SX+3}], s{s_t0} offen offset:1152")

def compute(a, role, done, vmode=False):
    NTW, RB, _ = ROLES[role]
    tag = role + ("v" if vmode else "")
    v_xa, v_wa = 8, 12
    XF = [16, 36]; WF = [24, 44]
    SEL, CSA, ACC = 56, 60, 72
    lg = Cnt(a, "lgkmcnt", 15)
    s_rp, s_half = s_m0x, s_m0w
    if NSB: a("s_barrier")
    if PF: prefetch(a, role)
    for _ in range(NSB - 1): a("s_barrier")
    a(f"v_and_b32 v1, 31, v0")
    a(f"v_lshrrev_b32 v2, 5, v0")
    a(f"v_bfe_u32 v3, v0, 1, 3")
    a(f"v_xor_b32 v3, v3, v2")
    a(f"v_lshlrev_b32 v3, 4, v3")
    a(f"v_lshlrev_b32 v1, 7, v1")
    a(f"s_lshl_b32 s{s_t0}, s{s_rp}, 13")
    a(f"s_add_u32 s{s_t0}, s{s_t0}, {LA*SLOT}")
    a(f"v_add_u32 v1, s{s_t0}, v1")
    for j in range(4):
        a(f"v_xor_b32 v4, {j<<5}, v3")
        a(f"v_add_u32 v{v_xa+j}, v1, v4")
    w_read_addr(a, role, v_wa, s_half)
    a(f"v_lshrrev_b32 v1, 2, v0")
    a(f"v_lshrrev_b32 v2, 4, v0")
    a(f"v_xor_b32 v1, v1, v2")
    a(f"v_and_b32 v1, 1, v1")
    a(f"v_subrev_u32 v1, 1, v1")
    for i in range(4): a(f"v_and_b32 v{SEL+i}, 0x3f803f80, v1")
    for r in range(XF[1], WF[1] + 4 * NTW): a(f"v_mov_b32 v{r}, 0")
    z = vr(XF[1], 4)
    for t in range(2 * NTW): a(f"v_mfma_f32_32x32x16_bf16 {vr(ACC+16*t,16)}, {z}, {z}, 0")
    for T in range(NTW): a(f"v_mfma_f32_16x16x32_bf16 {vr(CSA+4*T,4)}, {z}, {z}, 0")
    a(f"s_mov_b32 s{s_it}, 0")
    a(f"s_mov_b32 s{s_slot}, {LA*SLOT}")
    def mfma(R, T, u):
        acc = vr(ACC + 16 * (R * NTW + T), 16); x = vr(XF[u] + 4 * R, 4); w = vr(WF[u] + 4 * T, 4)
        if vmode: a(f"v_mfma_f32_32x32x16_bf16 {acc}, {x}, {w}, {acc}")
        else: a(f"v_mfma_f32_32x32x16_bf16 {acc}, {w}, {x}, {acc}")
    def step(jn, u, cs, post=None, lo=0, hi=99):
        n = u ^ 1
        reads = []
        if jn is not None and "nord" not in AX:
            def rw(T):
                for p in range(2):
                    reads.append((f"ds_read_b64_tr_b16 {vr(WF[n]+4*T+2*p,2)}, v{v_wa+T} offset:{jn*16*RB+p*4*RB}", ("W", n, T)))
            reads.append((f"ds_read_b128 {vr(XF[n],4)}, v{v_xa+jn}", ("X", n, 0)))
            rw(0)
            reads.append((f"ds_read_b128 {vr(XF[n]+4,4)}, v{v_xa+jn} offset:4096", ("X", n, 1)))
            for T in range(1, NTW): rw(T)
        post = list(post or [])
        order = [(R, T) for T in range(NTW) for R in range(2)][lo:hi]
        per = 3 if post else 2
        for k, (R, T) in enumerate(order):
            last = k == len(order) - 1
            lg.wait(("X", u, R), ("W", u, T))
            mfma(R, T, u)
            room = 5
            for _ in range(99 if last else per):
                if reads:
                    t, g = reads.pop(0); a(t); lg.issue(g); room -= 1
            if not reads:
                while post and (room > 0 or last):
                    a(post.pop(0)); room -= 1
            if cs and R == 1 and 'nocs' not in AX:
                a(f"v_mfma_f32_16x16x32_bf16 {vr(CSA+4*T,4)}, {vr(SEL,4)}, {vr(WF[u]+4*T,4)}, {vr(CSA+4*T,4)}")
    stamp(a, 2)
    if STAMP: a("s_waitcnt lgkmcnt(0)")
    NM = 2 * NTW
    adv = slot_advance([v_xa, v_wa] + [v_wa + T for T in range(1, NTW)] + [v_xa + j for j in range(1, 4)])
    for t in adv: a(t)
    full = role != "h"
    if not full:
        a(f"s_cmp_eq_u32 s{s_rp}, 1")
        a(f"s_cbranch_scc1 AC_ent_{tag}1")
    for rp in range(1 if full else 2):
        e0 = full or rp == 0; e1 = full or rp == 1
        if rp == 0: a(f"s_branch AC_ent_{tag}0")
        a.raw(".p2align 6")
        a.label(f"AC_loop_{tag}{rp}")
        st = a.mark()
        a("s_waitcnt lgkmcnt(0)")
        if e0 and 'nocs' not in AX:
            a(f"v_mfma_f32_16x16x32_bf16 {vr(CSA+4*(NTW-1),4)}, {vr(SEL,4)}, {vr(WF[0]+4*(NTW-1),4)}, {vr(CSA+4*(NTW-1),4)}")
        step(None, 0, False, None, NM - 1, NM)
        a.label(f"AC_ent_{tag}{rp}")
        a("s_barrier")
        step(0, 1, e1)
        step(1, 0, e0); step(2, 1, e1)
        tail = adv + [f"s_add_u32 s{s_it}, s{s_it}, 1", f"s_cmp_lt_u32 s{s_it}, 10"]
        step(3, 0, e0, tail, 0, NM - 1)
        lg.q = []
        a(f"s_cbranch_scc1 AC_loop_{tag}{rp}")
        a.check_backedge(st)
        a("s_waitcnt lgkmcnt(0)")
        if e0 and 'nocs' not in AX:
            a(f"v_mfma_f32_16x16x32_bf16 {vr(CSA+4*(NTW-1),4)}, {vr(SEL,4)}, {vr(WF[0]+4*(NTW-1),4)}, {vr(CSA+4*(NTW-1),4)}")
        step(None, 0, False, None, NM - 1, NM)
        if e1:
            for T in range(NTW):
                a(f"v_mfma_f32_16x16x32_bf16 {vr(CSA+4*T,4)}, {vr(SEL,4)}, {vr(WF[1]+4*T,4)}, {vr(CSA+4*T,4)}")
        if rp == 0 and not full: a(f"s_branch AC_fin_{tag}")
    a.label(f"AC_fin_{tag}")
    a(f"v_and_b32 v1, 31, v0")
    a(f"s_lshl_b32 s{s_t0}, s{s_rp}, 8")
    a(f"s_add_u32 s{s_t0}, s{s_t0}, {SC_NM}")
    a(f"v_lshl_add_u32 v2, v1, 2, s{s_t0}")
    pre = [f"v_mov_b32 v{r}, 0" for r in range(XF[0], WF[0] + 4 * NTW)]
    pre += ["s_mov_b32 exec_hi, 0", f"ds_read_b32 v{XF[0]}, v2", f"ds_read_b32 v{XF[0]+4}, v2 offset:128", "s_mov_b32 exec_hi, -1",
            "ds_read_b32 v4, v2 offset:512", "ds_read_b32 v6, v2 offset:640"]
    step(None, 1, False, pre)
    stamp(a, 5)
    CS = CSA
    if not full:
        a(f"s_mul_i32 s{s_t1}, s{s_half}, {NTW*256}")
        a(f"s_add_u32 s{s_t1}, s{s_t1}, {SC_CS}")
        a(f"v_lshl_add_u32 v3, v1, 3, s{s_t1}")
        a(f"s_lshl_b32 s{s_t1}, s{s_rp}, 2")
        a(f"v_add_u32 v7, s{s_t1}, v3")
        for T in range(NTW): a(f"ds_write_b32 v7, v{CSA+4*T} offset:{T*256}")
        lds_arrive(a, SC_CNT + 12, 8)
        lds_wait(a, f"AC_sync_{tag}", SC_CNT + 12, 4, 8, s_it, s_slot, 1)
        for T in range(NTW): a(f"ds_read_b64 {vr(CS+4*T,2)}, v3 offset:{T*256}")
        a(f"s_waitcnt lgkmcnt(0)")
        for T in range(NTW): a(f"v_add_f32 v{CS+4*T}, v{CS+4*T}, v{CS+4*T+1}")
    for T in range(NTW): a(f"v_cvt_pk_bf16_f32 v{CS+4*T+1}, v{CS+4*T}, v{CS+4*T}")
    for T in range(NTW): a(f"v_lshlrev_b32 v{CS+4*T+1}, 16, v{CS+4*T+1}")
    for T in range(NTW): a(f"v_sub_f32 v{CS+4*T+1}, v{CS+4*T}, v{CS+4*T+1}")
    for T in range(NTW): a(f"v_cvt_pk_bf16_f32 v{WF[0]+4*T}, v{CS+4*T}, v{CS+4*T+1}")
    a("s_waitcnt lgkmcnt(0)")
    for R in range(2):
        for T in range(NTW): mfma(R, T, 0)
    stamp(a, 6)
    O = f"s[{SO}:{SO+3}]"
    a(f"v_lshlrev_b32 v1, 4, v0")
    if role != "kv":
        for R in range(2):
            for T in range(NTW):
                b = ACC + 16 * (R * NTW + T)
                if R == 0 and T < 2:
                    for i in range(16): a(f"v_mul_f32 v{b+i}, v{4+2*R}, v{b+i}")
                else:
                    for i in range(8): a(f"v_pk_mul_f32 {vr(b+2*i,2)}, {vr(b+2*i,2)}, {vr(4+2*R,2)} op_sel_hi:[1,0]")
                if role == "h":
                    d = ACC + 8 * (R * NTW + T)
                    for i in range(8): a(f"v_cvt_pk_bf16_f32 v{d+i}, v{b+2*i}, v{b+2*i+1}")
                    for i in range(8): a(f"v_pk_max_i16 v{d+i}, v{d+i}, 0")
                    continue
                for i in range(8): a(f"v_cvt_pk_bf16_f32 v{b+i}, v{b+2*i}, v{b+2*i+1}")
                o = 2 * T * 1024
                a(f"buffer_store_dwordx4 {vr(b,4)}, v1, {O}, s{s_out} offen offset:{o}{ST}")
                a(f"buffer_store_dwordx4 {vr(b+4,4)}, v1, {O}, s{s_out} offen offset:{o+1024}{ST}")
            if R == 0 and role != "h": a(f"s_add_u32 s{s_out}, s{s_out}, {QH_TT}")
        if role == "h":
            a(f"s_mov_b32 s53, s{s_out}")
            a("s_branch F_gemm")
            return
    elif not vmode:
        for R in range(2):
            b = ACC + 16 * R
            for i in range(12): a(f"v_mul_f32 v{b+i}, v{4+2*R}, v{b+i}")
            for i in range(4): a(f"v_cvt_pk_bf16_f32 v{b+i}, v{b+2*i}, v{b+2*i+1}")
            for i in range(2): a(f"v_cvt_pk_bf16_f32 v{16+2*R+i}, v{b+8+2*i}, v{b+9+2*i}")
            a(f"buffer_store_dwordx4 {vr(b,4)}, v1, {O}, s{s_out} offen offset:{1024*R}{ST}")
        a("s_mov_b32 exec_lo, 0")
        for i in range(4): a(f"v_mov_b32 v{16+i}, {'0x3f80' if i % 2 == 0 else 0}")
        a("s_mov_b32 exec_lo, -1")
        a(f"buffer_store_dwordx4 v[16:19], v1, {O}, s{s_out} offen offset:2048{ST}")
    else:
        a(f"v_lshrrev_b32 v6, 5, v0")
        a(f"v_lshl_add_u32 v3, v6, 4, s{s_t0}")
        for R in range(2):
            for q in range(4): a(f"ds_read_b128 {vr(16+16*R+4*q,4)}, v3 offset:{512+128*R+32*q}")
        a(f"v_and_b32 v2, 31, v0")
        a(f"v_mul_u32_u24 v6, 384, v6")
        a(f"v_lshl_add_u32 v6, v2, 4, v6")
        a(f"s_add_u32 s{s_out}, s{s_out}, 3072")
        a("s_waitcnt lgkmcnt(0)")
        for R in range(2):
            b = ACC + 16 * R
            for i in range(16): a(f"v_mul_f32 v{b+i}, v{16+16*R+i}, v{b+i}")
            for i in range(8): a(f"v_cvt_pk_bf16_f32 v{b+i}, v{b+2*i}, v{b+2*i+1}")
            a("s_mov_b32 exec_lo, 0x00100000")
            a("s_mov_b32 exec_hi, 0x00100000")
            for i in range(8): a(f"v_mov_b32 v{b+i}, 0x3f803f80")
            a("s_mov_b32 exec_lo, 0x00e00000")
            a("s_mov_b32 exec_hi, 0x00e00000")
            for i in range(8): a(f"v_mov_b32 v{b+i}, 0")
            a("s_mov_b32 exec_lo, 0x00ffffff")
            a("s_mov_b32 exec_hi, 0x00ffffff")
            a(f"buffer_store_dwordx4 {vr(b,4)}, v6, {O}, s{s_out} offen offset:{1536*R}{ST}")
            a(f"buffer_store_dwordx4 {vr(b+4,4)}, v6, {O}, s{s_out} offen offset:{1536*R+768}{ST}")
            a("s_mov_b64 exec, -1")
    done(a)

def phase_a(a, done_help, done_stats, done_comp, spare, start_hook=None, pre_ba=None):
    a("s_load_dwordx8 s[20:27], s[0:1], 0")
    a("s_load_dwordx2 s[28:29], s[0:1], 48")
    a("s_load_dwordx2 s[30:31], s[0:1], 80")
    a("s_load_dwordx2 s[56:57], s[0:1], 56")
    a("s_load_dwordx2 s[58:59], s[0:1], 32")
    a("s_load_dwordx4 s[60:63], s[0:1], 64")
    a("v_lshrrev_b32 v1, 6, v0")
    a("v_and_b32 v0, 63, v0")
    a(f"v_readfirstlane_b32 s{s_w}, v1")
    ORD = os.environ.get("ORD", "0124356789,0215346789,0312645789,0132745689,0123845679,0213945678,0312456789,0123456789").split(",")
    a(f"s_and_b32 s{s_t0}, s2, 1")
    a(f"s_lshl_b32 s{s_t0}, s{s_t0}, 3")
    a(f"s_bfe_u32 s{s_rb}, s2, 0x30003")
    a(f"s_lshr_b32 s{s_g}, s2, 6")
    a(f"s_add_u32 s{s_t1}, s{s_g}, s{s_rb}")
    a(f"s_and_b32 s{s_t1}, s{s_t1}, {len(ORD)-1}")
    a(f"s_add_u32 s{s_rb}, s{s_rb}, s{s_t0}")
    gv = sum(g << (4 * i) for i, g in enumerate(GMAP))
    a(f"s_bfe_u32 s{s_t0}, s2, 0x20001")
    a(f"s_lshl_b32 s{s_t0}, s{s_t0}, 2")
    a(f"s_add_u32 s{s_g}, s{s_g}, s{s_t0}")
    a(f"s_lshl_b32 s{s_g}, s{s_g}, 2")
    a(f"s_mov_b32 s{s_tab}, {hex(gv & 0xffffffff)}")
    a(f"s_mov_b32 s{s_tab+1}, {hex(gv >> 32)}")
    a(f"s_lshr_b64 s[{s_tab}:{s_tab+1}], s[{s_tab}:{s_tab+1}], s{s_g}")
    a(f"s_and_b32 s{s_g}, s{s_tab}, 15")
    if TEAM:
        a(f"s_and_b32 s{s_rb}, s2, 7")
        a(f"s_lshl_b32 s{s_rb}, s{s_rb}, 1")
        a(f"s_lshr_b32 s{s_t0}, s2, 7")
        a(f"s_add_u32 s{s_rb}, s{s_rb}, s{s_t0}")
        a(f"s_bfe_u32 s{s_g}, s2, 0x40003")
        a(f"s_{'add' if TEAM == 1 else 'xor'}_{'u' if TEAM == 1 else 'b'}32 s{s_t1}, s{s_t0}, {'s%d' % s_g if TEAM == 1 else '0'}")
        if TEAM == 3:
            a(f"s_lshl_b32 s{s_t1}, s2, 1")
            a(f"s_add_u32 s{s_t1}, s{s_t1}, s{s_t0}")
        a(f"s_and_b32 s{s_t1}, s{s_t1}, {len(ORD)-1}")
    a(f"s_lshl_b32 s3, s{s_rb}, 4")
    a(f"s_add_u32 s3, s3, s{s_g}")
    for k, o in enumerate(ORD):
        assert sorted(o) == list("0123456789")
        v = sum(int(d) << (4 * i) for i, d in enumerate(o))
        if k == 0:
            a(f"s_mov_b32 s{s_tab}, {hex(v & 0xffffffff)}")
            a(f"s_movk_i32 s{s_tab+1}, {hex(v >> 32)}")
        else:
            a(f"s_cmp_eq_u32 s{s_t1}, {k}")
            a(f"s_cselect_b32 s{s_tab}, {hex(v & 0xffffffff)}, s{s_tab}")
            a(f"s_cselect_b32 s{s_tab+1}, {hex(v >> 32)}, s{s_tab+1}")
    a(f"s_mov_b32 s{s_cslot}, {SLOT}")
    a(f"s_mul_i32 s{s_xbase}, s{s_rb}, {128*1280}")
    a(f"s_and_b32 s{s_m0x}, s{s_w}, 1")
    a(f"s_bfe_u32 s{s_m0w}, s{s_w}, 0x10001")
    a(f"s_lshl_b32 s{s_out}, s{s_rb}, 1")
    a(f"s_add_u32 s{s_out}, s{s_out}, s{s_m0x}")
    a(f"s_lshl_b32 s{s_out}, s{s_out}, 1")
    a("s_waitcnt lgkmcnt(0)")
    srd(a, SX, 20, 2048 * 1280)
    srd(a, SO, 30, WS_SIZE)
    a(f"s_lshl_b32 s{s_t0}, s{s_w}, 4")
    a(f"s_add_u32 s{s_t0}, s{s_t0}, s{s_g}")
    a(f"s_cmp_lg_u32 s{s_t0}, {8*16+15}")
    a("s_cbranch_scc1 A_noclear")
    clear_words(a)
    a.label("A_noclear")
    a(f"s_sub_u32 s{s_t0}, s{s_g}, 9")
    a(f"s_cmp_lt_u32 s{s_t0}, 5")
    a(f"s_cselect_b32 s{s_scale}, {hex(f32bits(QSCALE))}, 1.0")
    a(f"s_cmp_eq_u32 s{s_g}, 15")
    a("s_cbranch_scc1 A_spare")
    a(f"s_sub_u32 s{s_t0}, s{s_w}, 4")
    a(f"s_cmp_lt_u32 s{s_t0}, 4")
    a("s_cbranch_scc1 A_stats")
    a(f"s_cmp_eq_u32 s{s_g}, 14")
    a("s_cbranch_scc1 A_kv")
    a(f"s_cmp_ge_u32 s{s_g}, 9")
    a("s_cbranch_scc1 A_q")
    for role in ("h", "q"):
        NTW = ROLES[role][0]
        if role == "q":
            a.label("A_q")
            a(f"s_sub_u32 s{s_g}, s{s_g}, 9")
        stride = 3456 if role == "h" else 1280
        a(f"s_cmp_ge_u32 s{s_w}, 8")
        a(f"s_cbranch_scc1 A_c{role}")
        srd(a, SW, 28 if role == "h" else 22, 640 * stride)
        a(f"s_movk_i32 s{s_stride}, {stride}")
        a(f"s_mov_b32 s{s_wstep}, {64*stride}")
        a(f"s_mul_i32 s{s_col}, s{s_g}, {NTW*128}")
        loader(a, role, done_help, pre_ba)
        a.label(f"A_c{role}")
        a("s_setprio 2")
        a(f"s_mul_i32 s{s_out}, s{s_out}, {QH_TT}")
        a(f"s_lshl_b32 s{s_t0}, s{s_g}, 1")
        a(f"s_add_u32 s{s_t0}, s{s_t0}, s{s_m0w}")
        a(f"s_mul_i32 s{s_t0}, s{s_t0}, {NTW*2048}")
        a(f"s_add_u32 s{s_out}, s{s_out}, s{s_t0}")
        if role == "h": a(f"s_add_u32 s{s_out}, s{s_out}, {40*1024}")
        compute(a, role, done_comp)
    a.label("A_kv")
    a(f"s_cmp_ge_u32 s{s_w}, 8")
    a(f"s_cbranch_scc1 A_ckv")
    srd(a, SW, 24, 640 * 40)
    srd(a, SW2, 26, 640 * 40)
    a(f"s_movk_i32 s{s_wstep}, 2560")
    loader(a, "kv", done_help, pre_ba)
    a.label("A_ckv")
    a("s_setprio 2")
    a(f"s_mul_i32 s{s_out}, s{s_out}, {KV_TILE}")
    a(f"s_add_u32 s{s_out}, s{s_out}, {WS_KV}")
    a(f"s_cmp_eq_u32 s{s_m0w}, 1")
    a(f"s_cbranch_scc1 A_cv")
    compute(a, "kv", done_comp, False)
    a.label("A_cv")
    compute(a, "kv", done_comp, True)
    a.label("A_stats")
    start_hook(a)
    idle(a, done_stats)
    a.label("A_spare")
    spare(a)
```

```python
from common import *
from gw import *
import ka2
from ka2 import phase_a, SC_CNT, LDS_A
def two_ways(a, name, body): body(' sc1')

GPRIO = int(os.environ.get("GPRIO", "0"))
HOLD = 1
GROT = int(os.environ.get("GROT", "9"))
GX = os.environ.get("GX", "")
UARR = int(os.environ.get("UARR", "0"))
SC_L = None
DRY = int(os.environ.get("DRY", "0"))
PACE = [float(x) for x in os.environ.get("PACE", "1.7,7.0").split(",")]
PEND = int(os.environ.get("PEND", "99"))
ABAT = int(os.environ.get("ABAT", "0"))
PIPE = int(os.environ.get("PIPE", "1"))
KV4 = int(os.environ.get("KV4", "0"))
TRIG = [int(x) for x in os.environ.get("TRIG", "4,8").split(",")]
TAILST = os.environ.get("TAILST")
OSL = [int(x) for x in os.environ.get("OSL", "1,0").split(",")]
WOPF = int(os.environ.get("WOPF", "10"))
ALT1 = int(os.environ.get("ALT1", "0"))
MARK = int(os.environ.get("MARK", "1"))
NS0 = int(os.environ.get("NS0", "2"))
WEARLY = int(os.environ.get("WEARLY", "2"))
W2PF = int(os.environ.get("W2PF", "3"))
HP = int(os.environ.get("HP", "1"))
FASTO = int(os.environ.get("FASTO", "1"))
TRIGST = int(os.environ.get("TRIGST", "1"))
PMASK = int(os.environ.get("PMASK", "0"))
PSTEP = [int(x) for x in os.environ.get("PSTEP", "").split(",") if x]
PBASE = int(os.environ.get("PBASE", "0"))
ALIGN = int(os.environ.get("ALIGN", "0"))
HNEAR = int(os.environ.get("HNEAR", "0"))
JIT = int(os.environ.get("JIT", "0"))
LAY = int(os.environ.get("LAY", "0"))
TLBW = int(os.environ.get("TLBW", "0"))
TLBS = int(os.environ.get("TLBS", "21"))
DEFW = int(os.environ.get("DEFW", "4"))
DEFER = int(os.environ.get("DEFER", "0"))
PAIR = 2 * KV_TILE
CH = 8 * KV_TILE
STG = 0
KVB = 4 * PART
assert KVB + 4 * CH <= ka2.SCR and KVB >= ka2.SLOT
RESET_WG = (3 << 6) | (3 << 1)

SX, SW2, SWS, SWO, SOUT, SDBG = 4, 8, 12, 16, 20, 16
s_w, s_tt, s_hg, s_t0, s_t1, s_c, s_slot, s_delta, s_cch, s_base, s_spin, s_kvl, s_kvg, s_woff2 = range(32, 46)
s_gw = 46
s_lid = 97 if STAMP else 64
WS = f"s[{SWS}:{SWS+3}]"
Q1, Q2, P0, P1, O, S0, S1 = 4, 8, 12, 16, 20, 36, 52
KS = [68, 96]
v_ka, v_va, v_g0, VT = 124, 125, 126, 130
v_l16, v_cnt, v_one, v_chk = 136, 137, 138, 139
SC_K = SC_CNT + 256
SC_L = SC_K + 256
COMB = int(os.environ.get('COMB', '1'))
SCW, NW_ = (SC_L, 12) if COMB else (SC_K, 8)
s_tgt = 45

def mf(a, d, x, y, c): a(f"v_mfma_f32_32x32x16_bf16 {vr(d,16)}, {vr(x,4)}, {vr(y,4)}, {c if isinstance(c,str) else vr(c,16)}")
def mf8(a, d, x, y): a(f"v_mfma_f32_32x32x8_bf16 {vr(d,16)}, {vr(x,2)}, {vr(y,2)}, {vr(d,16)}")

def flag_off(a, vd, vrb, vg, t):
    a(f"v_lshl_add_u32 v{vd}, v{vrb}, 4, v{vg}")
    a(f"v_lshlrev_b32 v{vd}, 7, v{vd}")
    a(f"v_add_u32 v{vd}, {WS_FL}, v{vd}")

def publish(a, name, cnt_off, nwaves, sid, base, t, value=1, vm=0, word=None, near=False):
    a(f"s_waitcnt vmcnt({vm})")
    a("s_mov_b64 exec, 1")
    a(f"v_mov_b32 v{t}, {SC_CNT + cnt_off}")
    a(f"v_mov_b32 v{t+1}, 1")
    a(f"ds_add_rtn_u32 v{t+1}, v{t}, v{t+1}")
    a(f"s_lshl_b32 s{s_t0}, s{sid}, 7")
    a(f"s_add_u32 s{s_t0}, s{s_t0}, {base}")
    a(f"v_mov_b32 v{t}, {0 if word is None else 's%d' % word}")
    a(f"v_mov_b32 v{t+2}, {value}")
    a("s_waitcnt lgkmcnt(0)")
    a(f"v_readfirstlane_b32 s{s_t1}, v{t+1}")
    a(f"s_cmp_lg_u32 s{s_t1}, {nwaves-1}")
    a(f"s_cbranch_scc1 {name}")
    if near: two_ways(a, name + "w", lambda sc: a(f"buffer_store_dword v{t+2}, v{t}, {WS}, s{s_t0} offen{sc}"))
    else: a(f"buffer_store_dword v{t+2}, v{t}, {WS}, s{s_t0} offen sc1")
    a.label(name)
    a("s_mov_b64 exec, -1")

def decode_b(a):
    a(f"s_lshr_b32 s{s_tt}, s{s_lid}, 2")
    a(f"s_and_b32 s{s_hg}, s{s_lid}, 3")

def attn_addr(a):
    a(f"s_and_b32 s{s_t0}, s{s_lid}, 3")
    a(f"s_lshl_b32 s{s_t0}, s{s_t0}, 3")
    a(f"s_add_u32 s{s_t0}, s{s_t0}, s{s_w}")
    a(f"s_mul_i32 s{s_t0}, s{s_t0}, 5")
    a(f"v_lshrrev_b32 v2, 5, v0")
    a(f"v_and_b32 v3, 31, v0")
    a(f"v_lshlrev_b32 v3, 4, v3")
    for i in range(3):
        if i < 2: a(f"v_add_u32 v1, s{s_t0}, v2")
        else: a(f"v_mov_b32 v1, s{s_t0}")
        if i: a(f"v_add_u32 v1, {2*i}, v1")
        a(f"v_lshrrev_b32 v{VT}, 2, v1")
        a(f"v_lshl_add_u32 v{v_g0+i}, v{VT}, 10, v3")
        a(f"v_and_b32 v{VT}, 1, v1")
        a(f"v_lshl_add_u32 v{v_g0+i}, v{VT}, 9, v{v_g0+i}")
        a(f"v_bfe_u32 v{VT}, v1, 1, 1")
        a(f"v_lshl_add_u32 v{v_g0+i}, v{VT}, 3, v{v_g0+i}")
    a(f"v_lshlrev_b32 v{v_l16}, 4, v0")
    a(f"v_add_u32 v{v_ka}, {KVB}, v{v_l16}")
    a(f"v_lshlrev_b32 v{v_cnt}, 2, v0")
    a(f"v_add_u32 v{v_cnt}, {SC_K}, v{v_cnt}")
    a(f"v_cmp_eq_u32 vcc, 0, v0")
    a(f"v_cndmask_b32 v{v_one}, 0, 1, vcc")
    a(f"v_and_b32 v1, 31, v0")
    a(f"v_min_u32 v1, 23, v1")
    a(f"v_mul_u32_u24 v{v_va}, 384, v2")
    a(f"v_lshl_add_u32 v{v_va}, v1, 4, v{v_va}")
    a(f"v_add_u32 v{v_va}, {KVB + 3072}, v{v_va}")

def fetch(a):
    decode_b(a)
    a(f"s_cmp_lg_u32 s{s_w}, 0")
    a("s_cbranch_scc1 B_fkv")
    a(f"s_lshr_b32 s{s_t0}, s{s_tt}, 2")
    a(f"s_add_u32 s{s_t1}, s{s_hg}, 9")
    a(f"v_mov_b32 v1, s{s_t0}")
    a(f"v_add_u32 v2, s{s_t1}, v0")
    flag_off(a, 4, 1, 2, 3)
    a("s_mov_b64 exec, 3")
    poll(a, "B_pollq", f"buffer_load_dword v2, v4, {WS}, 0 offen sc1", "v_cmp_gt_u32 vcc, 1, v2")
    lds_arrive(a, SC_CNT + 16, 2)
    a("s_branch F_attn")
    a.label("B_fkv")
    a(f"s_lshr_b32 s{s_t0}, s{s_tt}, 3")
    a(f"s_lshl_b32 s{s_t1}, s{s_t0}, 1")
    a(f"v_add_u32 v1, s{s_t1}, v0")
    a(f"v_mov_b32 v2, 14")
    flag_off(a, 4, 1, 2, 3)
    a(f"s_mul_i32 s{s_t0}, s{s_t0}, {CH}")
    a(f"s_sub_u32 s{s_kvl}, s{s_w}, 1")
    a(f"s_lshl_b32 s{s_kvl}, s{s_kvl}, 13")
    a(f"s_add_u32 s{s_kvg}, s{s_kvl}, s{s_t0}")
    a("s_mov_b64 exec, 3")
    poll(a, "B_pollkv", f"buffer_load_dword v2, v4, {WS}, 0 offen sc1", "v_cmp_gt_u32 vcc, 1, v2", 3)
    a("s_mov_b64 exec, -1")
    stamp(a, 5)
    for hf in range(2):
        a(f"s_add_u32 m0, s{s_kvl}, {KVB + hf*4096}")
        a(f"s_add_u32 s{s_t0}, s{s_kvg}, {WS_KV + hf*4096}")
        for m in range(4): a(f"buffer_load_dwordx4 v{v_l16}, {WS}, s{s_t0} offen offset:{m*1024} sc1 lds")

def attention(a):
    decode_b(a)
    stamp(a, 8)
    a(f"s_mul_i32 s{s_base}, s{s_tt}, {QH_TT}")
    lds_wait(a, "B_wait", SC_CNT + 16, 1, 2, s_spin, s_t0)
    stamp(a, 9)
    a(f"buffer_load_dwordx2 {vr(Q1,2)}, v{v_g0}, {WS}, s{s_base} offen sc1")
    a(f"buffer_load_dwordx2 {vr(Q1+2,2)}, v{v_g0+1}, {WS}, s{s_base} offen sc1")
    a(f"buffer_load_dwordx2 {vr(Q2,2)}, v{v_g0+2}, {WS}, s{s_base} offen sc1")
    for r in list(range(KS[0] + 20, KS[0] + (28 if LAY else 24))) + list(range(P0 if LAY else P1, P1 + 4)) + list(range(O, O + 16)):
        a(f"v_mov_b32 v{r}, 0")
    a(f"s_mov_b32 s{s_c}, 0")
    a(f"s_mov_b32 s{s_slot}, 0")
    a(f"s_mov_b32 s{s_cch}, {CH}")
    if PSTEP:
        a(f"s_mov_b32 s{s_tgt}, {sum(1 << c for c in PSTEP)}")
        a(f"s_setprio {len(PSTEP) + PBASE}")
    def kv_off(kind, t):
        p = (t % 8) // 2 * PAIR; b = t % 2
        return {"K1": p + 1024 * b, "K2": p + 2048, "V0": p + 1536 * b, "V1": p + 1536 * b + 768}[kind]
    def rd(dst, kind, t):
        a(f"ds_read_b128 {vr(dst,4)}, v{v_ka if kind[0] == 'K' else v_va} offset:{kv_off(kind, t)}")
    def group_reads(o):
        n = KS[((o + 1) // 2 + 1) % 2]
        if LAY:
            return [(n + 12, "V0", o + 1), (n + 16, "V1", o + 1), (n, "K1", o + 3), (n + 8, "K2", o + 3),
                    (n + 4, "K1", o + 4), (n + 20, "V0", o + 2), (n + 24, "V1", o + 2)]
        return [(n + 12, "V1", o + 1), (n, "K1", o + 3), (n + 8, "K2", o + 3), (n + 16, "V0", o + 2),
                (n + 20, "V1", o + 2), (n + 4, "K1", o + 4), (n + 24, "V0", o + 3)]
    k0 = KS[0]
    a("s_waitcnt vmcnt(0)")
    lds_arrive(a, SC_CNT + 8, 2)
    a("s_mov_b32 exec_lo, 0")
    a(f"v_mov_b32 v{Q2}, 0")
    a(f"v_mov_b32 v{Q2+1}, 0")
    a("s_mov_b32 exec_lo, -1")
    stamp(a, 10)
    lds_wait(a, "B_wait2", SC_CNT + 8, 8, 2, s_spin, s_t0, 0)
    rd(k0, "K1", 0); rd(k0 + 8, "K2", 0); rd(k0 + 4, "K1", 1)
    if not LAY: rd(k0 + 24, "V0", 0)
    for r in group_reads(-1)[:4]: rd(*r)
    a(f"s_waitcnt lgkmcnt({5 if LAY else 6})")
    mf(a, S1, k0, Q1, "0"); mf8(a, S1, k0 + 8, Q2)
    mf(a, S0, k0, Q1, "0")
    a(f"v_max3_f32 v{VT}, v{S1}, v{S1+1}, v{S1+2}")
    a(f"v_max3_f32 v{VT+1}, v{S1+3}, v{S1+4}, v{S1+5}")
    a(f"v_max3_f32 v{VT+2}, v{S1+6}, v{S1+7}, v{S1+8}")
    a(f"v_max3_f32 v{VT+3}, v{S1+9}, v{S1+10}, v{S1+11}")
    a(f"v_max3_f32 v{VT}, v{VT}, v{S1+12}, v{S1+13}")
    a(f"v_max3_f32 v{VT+1}, v{VT+1}, v{S1+14}, v{S1+15}")
    a(f"v_max3_f32 v{VT}, v{VT}, v{VT+2}, v{VT+3}")
    a(f"v_max_f32 v{VT}, v{VT}, v{VT+1}")
    a(f"v_mov_b32 v{VT+1}, v{VT}")
    a(f"v_permlane32_swap_b32 v{VT}, v{VT+1}")
    a(f"v_max_f32 v{VT}, v{VT}, v{VT+1}")
    a("s_mov_b32 exec_lo, 0")
    a(f"v_cvt_pk_bf16_f32 v{Q2}, -v{VT}, 0")
    a("s_mov_b32 exec_lo, -1")
    mf8(a, S0, k0 + 8, Q2)
    stamp(a, 11); stamp(a, 12, 'cyc')
    a("s_waitcnt lgkmcnt(0)")
    a("s_nop 10")
    a.raw(".p2align 6")
    a.label("B_loop")
    start = a.mark()
    for u in range(8):
        Sc, Sn = (S0, S1) if u % 2 == 0 else (S1, S0)
        odd = u % 2
        o = u if odd else u - 1
        ks = KS[((o + 1) // 2) % 2]
        reads = group_reads(o)
        slots = [[reads[0]], [reads[1]], [reads[2]], [reads[3]]] if odd else [[reads[4], reads[5]], [reads[6]], [], []]
        e = lambda i: a(f"v_exp_f32 v{Sc+i}, v{Sc+i}")
        c = lambda i: a(f"v_cvt_pk_bf16_f32 v{P0+i}, v{Sc+2*i}, v{Sc+2*i+1}")
        cp = lambda i: a(f"v_cvt_pk_bf16_f32 v{P0+i}, v{Sn+2*i}, v{Sn+2*i+1}")
        if LAY:
            rs = list(reads[:4] if odd else reads[4:])
            def misc():
                if u == 0:
                    a(f"ds_add_u32 v{v_cnt}, v{v_one} offset:{256 if COMB else 0}")
                    if PSTEP:
                        a(f"s_bitcmp1_b32 s{s_tgt}, s{s_c}")
                        a("s_cbranch_scc1 B_prio")
                        a.label("B_prioret")
                if u == 4: a(f"ds_read_b32 v{v_chk}, v{v_cnt} offset:256")
                if u == 2:
                    a(f"s_cmp_eq_u32 s{s_slot}, {3*CH}")
                    a(f"s_cselect_b32 s{s_delta}, {(-3*CH) & 0xffffffff}, s{s_cch}")
                if u == 6:
                    a(f"s_add_u32 s{s_c}, s{s_c}, 1")
                    a(f"s_cmp_lt_u32 s{s_c}, 8")
            if odd: a("s_waitcnt lgkmcnt(0)")
            mf(a, Sn, ks + (0 if odd else 4), Q1, "0")
            if u == 5:
                a(f"v_readlane_b32 s{s_t0}, v{v_chk}, s{s_c}")
                a(f"s_add_u32 s{s_slot}, s{s_slot}, s{s_delta}")
                a(f"s_cmp_lt_u32 s{s_t0}, {12 if COMB else 4}")
                if "nospin" not in GX: a("s_cbranch_scc1 B_spin")
                a.label("B_synced")
                a(f"v_add_u32 v{v_ka}, s{s_delta}, v{v_ka}")
            if u == 7: a(f"v_add_u32 v{v_va}, s{s_delta}, v{v_va}")
            if u == 2: a(f"v_mov_b32_dpp v{v_one}, v{v_one} row_shr:1 row_mask:0xf bank_mask:0xf bound_ctrl:0")
            e(0); e(1); e(2)
            mf8(a, Sn, ks + 8 + (0 if odd else 2), Q2)
            rd(*rs.pop(0))
            e(3); e(4); e(5)
            mf(a, O, ks + (12 if odd else 20), P0, O)
            if LAY == 2: rd(*rs.pop(0))
            e(6); e(7); e(8)
            mf(a, O, ks + (16 if odd else 24), P1, O)
            if LAY == 1:
                e(9); e(10); c(0); c(1)
                for r in rs: rd(*r)
                misc()
                c(2); e(11); e(12); c(3); c(4); e(13); e(14); e(15); c(5); c(6); c(7)
            else:
                rd(*rs.pop(0))
                e(9); e(10); c(0)
                for r in rs: rd(*r)
                misc()
                c(1); c(2); e(11); e(12); c(3); c(4); e(13); e(14); e(15); c(5); c(6); c(7)
            continue
        if os.environ.get("CHST") and u == 0: a("s_memtime s[98:99]" if os.environ.get("CHST") == "2" else "s_memrealtime s[98:99]")
        cp(6); e(0); e(1); cp(7); e(2); e(3)
        if odd: a("s_waitcnt lgkmcnt(0)")
        if os.environ.get("CHST") and u == 1:
            sl = [2, 3, 4, 5, 6, 8, 9, 10]
            for k in range(7): a(f"s_mov_b32 s{64+2*sl[k]}, s{64+2*sl[k+1]}")
            a(f"s_mov_b32 s{64+2*sl[7]}, s98")
        mf(a, Sn, ks + (0 if odd else 4), Q1, "0")
        for r in slots[0]: rd(*r)
        if u == 5:
            a(f"v_readlane_b32 s{s_t0}, v{v_chk}, s{s_c}")
            a(f"s_add_u32 s{s_slot}, s{s_slot}, s{s_delta}")
            a(f"s_cmp_lt_u32 s{s_t0}, {12 if COMB else 4}")
            if "nospin" not in GX: a("s_cbranch_scc1 B_spin")
            a.label("B_synced")
        if u == 2:
            a(f"s_cmp_eq_u32 s{s_slot}, {3*CH}")
            a(f"s_cselect_b32 s{s_delta}, {(-3*CH) & 0xffffffff}, s{s_cch}")
        e(4); e(5)
        if u == 5: a(f"v_add_u32 v{v_ka}, s{s_delta}, v{v_ka}")
        if u == 2: a(f"v_mov_b32_dpp v{v_one}, v{v_one} row_shr:1 row_mask:0xf bank_mask:0xf bound_ctrl:0")
        if u == 6: a(f"v_add_u32 v{v_va}, s{s_delta}, v{v_va}")
        c(0); c(1); e(6); e(7)
        mf8(a, Sn, ks + 8 + (0 if odd else 2), Q2)
        for r in slots[1]: rd(*r)
        e(8); e(9); c(2); c(3); e(10); e(11)
        mf(a, O, ks + (12 if odd else 20), P1, O)
        for r in slots[2]: rd(*r)
        if u == 0 and PSTEP:
            a(f"s_bitcmp1_b32 s{s_tgt}, s{s_c}")
            a("s_cbranch_scc1 B_prio")
            a.label("B_prioret")
        if u == 0:
            a(f"ds_add_u32 v{v_cnt}, v{v_one} offset:{256 if COMB else 0}")
        if u == 4: a(f"ds_read_b32 v{v_chk}, v{v_cnt} offset:256")
        e(12); e(13); c(4); c(5); e(14); e(15)
        mf(a, O, ks + (16 if odd else 24), P0, O)
        for r in slots[3]: rd(*r)
        if u == 6:
            a(f"s_add_u32 s{s_c}, s{s_c}, 1")
            a(f"s_cmp_lt_u32 s{s_c}, 8")
    a("s_cbranch_scc1 B_loop")
    if ALIGN: print("loop bytes/fixed", a.align8(start))
    a.check_backedge(start)
    stamp(a, 13); stamp(a, 14, 'cyc')
    if LAY:
        mf(a, O, KS[0] + 20, P0, O); mf(a, O, KS[0] + 24, P1, O)
    else:
        for i in (6, 7): a(f"v_cvt_pk_bf16_f32 v{P0+i}, v{S1+2*i}, v{S1+2*i+1}")
        mf(a, O, KS[0] + 20, P1, O)
    if not TRIGST: a(f"ds_add_u32 v{v_cnt}, v{v_one}")
    a(f"ds_read_b32 v{v_chk}, v{v_cnt}")
    a("s_waitcnt lgkmcnt(0)")
    a(f"v_mov_b32 v{VT+2}, {hex(f32bits(2.0**60))}")
    a(f"s_lshl_b32 s{s_base}, s{s_lid}, 3")
    a(f"s_add_u32 s{s_base}, s{s_base}, s{s_w}")
    a(f"s_mul_i32 s{s_base}, s{s_base}, 1280")
    a(f"s_add_u32 s{s_base}, s{s_base}, {WS_O}")
    a(f"v_lshlrev_b32 v{v_g0}, 4, v0")
    a(f"v_lshlrev_b32 v{v_g0+1}, 3, v0")
    a(f"v_mov_b32 v{VT}, v{O+8}")
    a(f"v_mov_b32 v{VT+1}, v{O+8}")
    a(f"v_permlane32_swap_b32 v{VT}, v{VT+1}")
    a(f"v_cmp_nle_f32 vcc, {hex(f32bits(2.0**-60))}, v{VT+1}")
    a(f"v_cmp_nle_f32 s[52:53], v{VT+1}, v{VT+2}")
    a(f"s_or_b64 s[52:53], s[52:53], vcc")
    a("s_cbranch_scc1 B_fallback")
    a.label("B_norm")
    a(f"v_rcp_f32 v{VT}, v{VT+1}")
    for i in range(12): a(f"v_mul_f32 v{O+i}, v{VT}, v{O+i}")
    for i in range(6): a(f"v_cvt_pk_bf16_f32 v{O+i}, v{O+2*i}, v{O+2*i+1}")
    if DRY: a("s_cbranch_execz F_dryret")
    a(f"v_readlane_b32 s{s_t0}, v{v_chk}, 9")
    a(f"s_cmp_eq_u32 s{s_t0}, 4")
    a("s_cbranch_scc1 B_near")
    a(f"buffer_store_dwordx4 {vr(O,4)}, v{v_g0}, {WS}, s{s_base} offen sc1")
    a("s_mov_b32 exec_hi, 0")
    a(f"buffer_store_dwordx2 {vr(O+4,2)}, v{v_g0+1}, {WS}, s{s_base} offen offset:1024 sc1")
    a("s_branch B_done")
    a.label("B_near")
    a(f"buffer_store_dwordx4 {vr(O,4)}, v{v_g0}, {WS}, s{s_base} offen")
    a("s_mov_b32 exec_hi, 0")
    a(f"buffer_store_dwordx2 {vr(O+4,2)}, v{v_g0+1}, {WS}, s{s_base} offen offset:1024")
    a.label("B_done")
    if TRIGST == 2: a("s_waitcnt vmcnt(0)")
    if TRIGST: a(f"ds_add_u32 v{v_cnt}, v{v_one}")
    if STAMP: a("s_waitcnt vmcnt(0)")
    if STAMP:
        stamp(a, 7); stamp(a, 15, True)
        stamp_flush(a, 1, SWS, s_w, 12, 16)
    a("s_endpgm")
    if PSTEP:
        a.label("B_prio")
        for k, c in enumerate(PSTEP):
            a(f"s_setprio {len(PSTEP) - 1 - k + PBASE}")
            a(f"s_cmp_eq_u32 s{s_c}, {c}")
            a("s_cbranch_scc1 B_prioret")
        a("s_branch B_prioret")
    a.label("B_spin")
    a(f"s_mov_b32 s{s_spin}, {SPIN * 40}")
    a.label("B_spin1")
    a(f"s_sleep {os.environ.get('SSL', '4')}")
    a(f"ds_read_b32 v{v_chk}, v{v_cnt} offset:256")
    a("s_waitcnt lgkmcnt(0)")
    a(f"v_readlane_b32 s{s_t0}, v{v_chk}, s{s_c}")
    a(f"s_cmp_ge_u32 s{s_t0}, {12 if COMB else 4}")
    a("s_cbranch_scc1 B_synced")
    a(f"s_sub_u32 s{s_spin}, s{s_spin}, 1")
    a(f"s_cmp_lg_u32 s{s_spin}, 0")
    a("s_cbranch_scc1 B_spin1")
    a("s_branch B_synced")
    a.label("B_fallback")
    a("s_mov_b32 exec_lo, 0")
    a(f"v_mov_b32 v{Q2}, 0")
    a("s_mov_b32 exec_lo, -1")
    a(f"s_add_u32 s{s_slot}, s{s_slot}, {KVB}")
    a(f"v_subrev_u32 v{v_ka}, s{s_slot}, v{v_ka}")
    a(f"v_subrev_u32 v{v_va}, s{s_slot}, v{v_va}")
    a(f"v_mov_b32 v{VT}, 0xff800000")
    for r in range(O, O + 16): a(f"v_mov_b32 v{r}, 0")
    a(f"s_mov_b32 s{s_kvg}, {WS_KV}")
    def ldk():
        for i in range(3): a(f"buffer_load_dwordx4 {vr(k0+4*i,4)}, v{v_ka}, {WS}, s{s_kvg} offen offset:{1024*i} sc1")
    def qk(b):
        S = (S0, S1)[b]
        mf(a, S, k0 + 4 * b, Q1, "0"); mf8(a, S, k0 + 8 + 2 * b, Q2)
    def nxt(lbl):
        a(f"s_add_u32 s{s_kvg}, s{s_kvg}, {PAIR}")
        a(f"s_cmp_lt_u32 s{s_kvg}, {WS_KV + 32*PAIR}")
        a(f"s_cbranch_scc1 {lbl}")
    a.label("B_fb1")
    st = a.mark()
    ldk()
    a("s_waitcnt vmcnt(0)")
    qk(0); qk(1)
    for i in range(0, 32, 2): a(f"v_max3_f32 v{VT}, v{VT}, v{S0+i}, v{S0+i+1}")
    nxt("B_fb1")
    a.check_backedge(st)
    a(f"v_mov_b32 v{VT+1}, v{VT}")
    a(f"v_permlane32_swap_b32 v{VT}, v{VT+1}")
    a(f"v_max_f32 v{VT}, v{VT}, v{VT+1}")
    a(f"s_mov_b32 s{s_kvg}, {WS_KV}")
    a.label("B_fb2")
    st = a.mark()
    ldk()
    for i in range(4): a(f"buffer_load_dwordx4 {vr(k0+12+4*i,4)}, v{v_va}, {WS}, s{s_kvg} offen offset:{768*i} sc1")
    a("s_waitcnt vmcnt(0)")
    qk(0); qk(1)
    for b in range(2):
        S = (S0, S1)[b]
        for i in range(16): a(f"v_sub_f32 v{S+i}, v{S+i}, v{VT}")
        for i in range(16): a(f"v_exp_f32 v{S+i}, v{S+i}")
        for i in range(8): a(f"v_cvt_pk_bf16_f32 v{P0+i}, v{S+2*i}, v{S+2*i+1}")
        mf(a, O, k0 + 12 + 8 * b, P0, O); mf(a, O, k0 + 16 + 8 * b, P1, O)
    nxt("B_fb2")
    a.check_backedge(st)
    a(f"v_mov_b32 v{VT}, v{O+8}")
    a(f"v_mov_b32 v{VT+1}, v{O+8}")
    a(f"v_permlane32_swap_b32 v{VT}, v{VT+1}")
    a("s_nop 1")
    a("s_branch B_norm")

def gemm(a):
    global stamp
    def h_store(sc, vl):
        for k in range(12):
            if k in (4, 10): a("s_add_u32 s53, s53, 4096")
            if k == 6: a(f"s_add_u32 s53, s53, {QH_TT - 4096}")
            a(f"buffer_store_dwordx4 {vr(72+4*k,4)}, v{vl}, {WS}, s53 offen offset:{(k % 6 % 4)*1024}{sc}")
        stamp(a, 3)
    a("s_setprio 3")
    decode_b(a)
    a(f"s_sub_u32 s{s_w}, s{s_w}, 8")
    srd(a, SW2, 56, 1728 * 1280)
    srd(a, SWO, 58, 640 * 1280)
    srd(a, SOUT, 60, 2048 * 1280)
    g = GW(a, 27, 4, 10, STG, PART, SW2, SWS, s_gw)
    v_wd2 = g.v_end
    v_wa2, vfl = 11, v_wd2 + 5
    vx = v_wd2 + 6
    v_wa3 = 0
    s_kw, s_ka, s_w0, s_a0 = 50, 51, 54, 55
    a(f"s_mul_i32 s{s_kvl}, s{s_w}, 6144")
    def kv(c):
        if c >= 4: lds_wait(a, f"G_free{c}", SCW + 4 * (c - 3), NW_, 2, s_spin, s_t0, 4)
        a(f"s_lshr_b32 s{s_kvg}, s{s_tt}, 3")
        a(f"s_add_u32 s{s_kvg}, s{s_kvg}, {c}")
        a(f"s_and_b32 s{s_kvg}, s{s_kvg}, 7")
        a(f"s_mul_i32 s{s_kvg}, s{s_kvg}, {CH}")
        a(f"s_add_u32 s{s_kvg}, s{s_kvg}, s{s_kvl}")
        a(f"s_add_u32 s{s_kvg}, s{s_kvg}, {WS_KV}")
        a(f"s_add_u32 m0, s{s_kvl}, {KVB + (c % 4)*CH}")
        for m in range(4):
            a(f"buffer_load_dwordx4 v{g.v_l16}, {WS}, s{s_kvg} offen offset:{m*1024} sc1 lds"); g.vm.issue(("KV", c))
        a(f"s_add_u32 m0, m0, 4096")
        a(f"s_add_u32 s{s_kvg}, s{s_kvg}, 4096")
        for m in range(2):
            a(f"buffer_load_dwordx4 v{g.v_l16}, {WS}, s{s_kvg} offen offset:{m*1024} sc1 lds"); g.vm.issue(("KV", c))
    def landed(c):
        g.vm.wait(("KV", c))
        a("s_mov_b64 exec, 1")
        a(f"v_mov_b32 v2, {SC_L + 4 * (c - 1)}")
        a(f"v_mov_b32 v3, 1")
        a(f"ds_add_u32 v2, v3"); g.lg.issue("arr")
        a("s_mov_b64 exec, -1")
    s_i4 = s_c
    a(f"s_getreg_b32 s{s_delta}, hwreg(HW_REG_XCC_ID, 0, 4)")
    a(f"s_add_u32 s{s_delta}, s{s_delta}, 16")
    a(f"s_mov_b32 s{s_base}, 0")
    g.setup(s_w, s_hg, s_base)
    a(f"s_and_b32 s{s_t1}, s{s_tt}, 3")
    a(f"s_lshl_b32 s{s_i4}, s{s_t1}, 2")
    a(f"s_mul_i32 s{s_w0}, s{s_t1}, {27*16*1280}")
    a(f"s_mul_i32 s{s_t0}, s{s_hg}, 320")
    a(f"s_add_u32 s{s_w0}, s{s_w0}, s{s_t0}")
    a(f"s_mul_i32 s{s_woff2}, s{s_w}, {160*1280}")
    a(f"s_add_u32 s{s_woff2}, s{s_woff2}, s{s_t0}")
    a(f"s_and_b32 s{s_slot}, s{s_tt}, 0xfc")
    a(f"s_add_u32 s{s_slot}, s{s_slot}, s{s_w}")
    a(f"s_mul_i32 s{s_a0}, s{s_slot}, {QH_TT}")
    a(f"s_mul_i32 s{s_t0}, s{s_t1}, {27*1024}")
    a(f"s_add_u32 s{s_a0}, s{s_a0}, s{s_t0}")
    a(f"s_add_u32 s{s_a0}, s{s_a0}, {WS_QH + 40*1024}")
    a(f"s_lshr_b32 s{s_ka}, s{s_tt}, 2")
    a(f"s_mul_i32 s{s_ka}, s{s_ka}, {GROT}")
    a(f"s_mul_i32 s{s_t0}, s{s_ka}, 2428")
    a(f"s_lshr_b32 s{s_t0}, s{s_t0}, 16")
    a(f"s_mul_i32 s{s_t0}, s{s_t0}, 27")
    a(f"s_sub_u32 s{s_ka}, s{s_ka}, s{s_t0}")
    a(f"s_add_u32 s{s_kw}, s{s_ka}, s{s_w}")
    ALT = {31: 0, 32: CH, 33: 2 * CH}
    def dma5(vd, S, tag):
        for m in range(4):
            a(f"buffer_load_dwordx4 v{vd+m}, {S}, s{g.s_woff} offen offset:{m*1024} lds"); g.vm.issue(tag)
        a(f"s_add_u32 m0, m0, 4096")
        a(f"buffer_load_dwordx4 v{vd+4}, {S}, s{g.s_woff} offen lds"); g.vm.issue(tag)
    def load_stage(st):
        a(f"s_cmp_ge_u32 s{s_kw}, 27")
        a(f"s_cselect_b32 s{s_t0}, 27, 0")
        a(f"s_sub_u32 s{s_kw}, s{s_kw}, s{s_t0}")
        a(f"s_mul_i32 s{g.s_woff}, s{s_kw}, {16*1280}")
        a(f"s_add_u32 s{g.s_woff}, s{g.s_woff}, s{s_w0}")
        a(f"s_add_u32 s{s_kw}, s{s_kw}, 4")
        a(f"s_add_u32 m0, s{g.s_lds}, {(st % 3)*5120}")
        dma5(g.v_wd, f"s[{SW2}:{SW2+3}]", ("S", st))
    def load_w(i):
        j = i - 27
        row = 80 * (j // 5) + (20 * (j % 5) if j % 5 < 4 else 16)
        a(f"s_add_u32 s{g.s_woff}, s{s_woff2}, {row*1280}")
        if i in ALT:
            a(f"s_mul_i32 s{s_t0}, s{s_w}, 5120")
            a(f"s_add_u32 m0, s{s_t0}, {KVB + ALT[i]}")
        else: a(f"s_add_u32 m0, s{g.s_lds}, {(i % 3)*5120}")
        dma5(v_wd2 if j % 5 == 4 else g.v_wd, f"s[{SWO}:{SWO+3}]", ("W", i))
    def areg(i): return g.v_act + 4 * ((i % 8) if i < 27 else i - 27)
    def load_a(i):
        a(f"s_lshl_b32 s{g.s_aoff}, s{s_ka}, 10")
        a(f"s_add_u32 s{g.s_aoff}, s{g.s_aoff}, s{s_a0}")
        a(f"s_add_u32 s{s_ka}, s{s_ka}, 1")
        a(f"s_cmp_eq_u32 s{s_ka}, 27")
        a(f"s_cselect_b32 s{s_ka}, 0, s{s_ka}")
        a(f"buffer_load_dwordx4 {vr(areg(i),4)}, v{g.v_l16}, {WS}, s{g.s_aoff} offen sc1"); g.vm.issue(("A", i))
    def rd_t(i, T):
        if i < 27: base, off = g.v_wa, (i % 4) * PART + (i // 4 % 3) * 5120
        else: base, off = (v_wa3, ALT[i]) if i in ALT else (g.v_wa, (i % 3) * 5120)
        for p in range(2):
            a(f"ds_read_b64_tr_b16 {vr(g.v_wf+4*T+2*p,2)}, v{base} offset:{off + T*64 + p*2560}"); g.lg.issue((i, T))
    def rd_w(i):
        g.vm.wait(("W", i))
        for T in range(5): rd_t(i, T)
    def mm(i, nxt=None):
        if JIT and i < 27:
            g.vm.wait(("A", i))
            for T in range(5):
                g.lg.wait((i, T))
                acc = vr(g.v_acc + 16 * T, 16)
                if JIT == 1:
                    a(f"v_mfma_f32_32x32x16_bf16 {acc}, {vr(g.v_wf+4*T,4)}, {vr(areg(i),4)}, {acc if i else 0}")
                if T + JIT < 5: rd_t(i, T + JIT)
                elif nxt is not None: rd_t(nxt, T + JIT - 5)
                if JIT > 1:
                    a(f"v_mfma_f32_32x32x16_bf16 {acc}, {vr(g.v_wf+4*T,4)}, {vr(areg(i),4)}, {acc if i else 0}")
            return
        g.vm.wait(("A", i), ("W", nxt))
        if HP and i < 32 and not PMASK: a(f"s_setprio {GPRIO}")
        for T in range(5):
            if PMASK and i < 32 and (T == 0 or (PMASK >> T & 1) != (PMASK >> (T - 1) & 1)): a(f"s_setprio {3 * (PMASK >> T & 1)}")
            g.lg.wait((i, T))
            acc = vr(g.v_acc + 16 * T, 16)
            if not ("nomm" in GX and 0 < i < 27): a(f"v_mfma_f32_32x32x16_bf16 {acc}, {vr(g.v_wf+4*T,4)}, {vr(areg(i),4)}, {acc if i else 0}")
            if nxt is not None and not ("nord" in GX and nxt < 27): rd_t(nxt, T)
        if HP and i < 32: a("s_setprio 3")
    def sync(st):
        g.vm.wait(("S", st))
        lds_arrive(a, SC_CNT + 32 + 4 * st, 2)
        lds_wait(a, f"G_sync{st}", SC_CNT + 32 + 4 * st, 4, 2, s_spin, s_t0, 1)
        g.lg.q = []
    g.setup2()
    a(f"v_subrev_u32 v{g.v_wa}, s{g.s_lds}, v{g.v_wa}")
    for m in range(5):
        a(f"v_add_u32 v1, {64*m}, v0")
        a(f"v_mul_u32_u24 v2, 0xcccd, v1")
        a(f"v_lshrrev_b32 v2, 22, v2")
        a(f"v_mul_u32_u24 v2, {16*1280}, v2")
        a(f"v_add_u32 v{v_wd2+m}, v2, v{g.v_wd+m}")
    a(f"s_lshr_b32 s{s_t0}, s{s_tt}, 2")
    a(f"v_mov_b32 v1, s{s_t0}")
    a(f"s_lshr_b32 s{s_t0}, s{s_i4}, 1")
    a(f"v_add_u32 v2, s{s_t0}, v0")
    flag_off(a, vfl, 1, 2, 3)
    a(f"v_mov_b32 v2, 14")
    flag_off(a, 1, 0, 2, 3)
    a("s_mov_b32 exec_lo, 0xffff")
    a("s_mov_b32 exec_hi, 0")
    poll(a, "G_pollkv", f"buffer_load_dword v2, v1, {WS}, 0 offen sc1", "v_cmp_gt_u32 vcc, 1, v2", 6)
    a("s_mov_b64 exec, -1")
    lds_wait(a, "G_wait", SC_CNT + 8, 8, 2, s_spin, s_t0, 1)
    kv(1); kv(2); landed(1); kv(3); landed(2); landed(3)
    a("s_cmp_eq_u32 s53, -1")
    a("s_cbranch_scc1 G_noh")
    h_store(" sc1", g.v_l16)
    publish(a, "G_pub", 0, 4, 3, WS_FL, 1)
    stamp(a, 4)
    a.label("G_noh")
    for st in range(NS0): load_stage(st)
    stamp(a, 8)
    a("s_mov_b64 exec, 7")
    poll(a, "G_pollh", f"buffer_load_dword v2, v{vfl}, {WS}, 0 offen sc1", "v_cmp_gt_u32 vcc, 1, v2", 4)
    a("s_mov_b64 exec, -1")
    g.vm.q = []
    stamp(a, 9)
    if STAMP: a("s_waitcnt lgkmcnt(0)")
    for i in range(4): load_a(i)
    for st in range(NS0, 3): load_stage(st)
    for i in range(4, 8): load_a(i)
    vo = vfl
    a(f"s_mul_i32 s{s_base}, s{s_tt}, {32*1280}")
    a(f"s_mul_i32 s{s_t0}, s{s_hg}, 320")
    a(f"s_add_u32 s{s_base}, s{s_base}, s{s_t0}")
    a(f"s_lshl_b32 s{s_t0}, s{s_w}, 4")
    a(f"s_add_u32 s{s_base}, s{s_base}, s{s_t0}")
    a(f"v_and_b32 v1, 31, v0")
    a(f"v_mul_u32_u24 v{vo}, 1280, v1")
    a(f"v_lshrrev_b32 v2, 5, v0")
    a(f"v_lshl_add_u32 v{vo}, v2, 3, v{vo}")
    a(f"v_mul_u32_u24 v{v_wa2}, 1280, v2")
    a(f"v_lshl_add_u32 v{v_wa2}, v1, 3, v{v_wa2}")
    a(f"v_mul_u32_u24 v1, 0xcccd, v0")
    a(f"v_lshrrev_b32 v1, 18, v1")
    a(f"v_mul_u32_u24 v2, 5, v1")
    a(f"v_sub_u32 v2, v0, v2")
    a(f"v_mul_u32_u24 v1, 1280, v1")
    a(f"v_lshl_add_u32 v{vx}, v2, 6, v1")
    a(f"s_mul_i32 s{s_t0}, s{s_w}, 5120")
    a(f"s_add_u32 s{s_t0}, s{s_t0}, {KVB}")
    a(f"v_add_u32 v{v_wa3}, s{s_t0}, v{g.v_wa}")
    for r in range(4): a(f"v_mov_b32 v{vx+4+r}, -1")
    if not HP: a(f"s_setprio {GPRIO}")
    KVAT = [int(x) for x in os.environ.get("KVAT", "0,2,4,6").split(",")]
    sync(0)
    for T in range(JIT or 5): rd_t(0, T)
    for st in range(7):
        if st in KVAT: kv(4 + KVAT.index(st))
        n = 4 if st < 6 else 3
        for j in range(n):
            i = 4 * st + j
            if JIT:
                mm(i, i + 1 if j < n - 1 else None)
                if j == 3:
                    sync(st + 1)
                    for T in range(JIT): rd_t(i + 1, T)
                    if st + 3 <= 6: load_stage(st + 3)
                    else: load_w(24 + st)
            else:
                if j == 3:
                    sync(st + 1)
                    if st + 3 <= 6: load_stage(st + 3)
                    else: load_w(24 + st)
                mm(i, i + 1 if i < 26 else None)
            if j == 1 and st in KVAT: landed(4 + KVAT.index(st))
        for i in range(4 * st + 8, min(4 * st + 12, 27)): load_a(i)
        if st == MARK:
            a(f"s_lshl_b32 s{s_t0}, s{s_lid}, 2")
            a(f"s_add_u32 s{s_t0}, s{s_t0}, s{s_w}")
            a(f"s_mul_i32 s{s_t0}, s{s_t0}, 2560")
            a(f"s_add_u32 s{s_t0}, s{s_t0}, {WS_O}")
            def mk(sc):
                for o in (0, 1024, 1536): a(f"buffer_store_dwordx4 {vr(vx+4,4)}, v{g.v_l16}, {WS}, s{s_t0} offen offset:{o}{sc}")
            two_ways(a, "G_mk", mk)
            for _ in range(3): g.vm.issue("R")
        if st == MARK + 2:
            g.vm.wait("R")
            publish(a, "G_pubr", 4, 4, s_lid, WS_FL + 32768, 1, value=f"s{s_delta}", vm=63, word=s_i4)
            g.lg.q = []
        if st == 2:
            a(f"s_and_b32 s{s_t0}, s{s_tt}, 7" if os.environ.get("BMAP", "4") == "2" else f"s_bfe_u32 s{s_t0}, s{s_tt}, 0x30002")
            a(f"s_mul_i32 s{s_t0}, s{s_t0}, {20*1280}")
            a(f"s_add_u32 s{s_t0}, s{s_t0}, s{s_woff2}")
            a(f"s_add_u32 s{s_t1}, s{s_t0}, {10*1280}")
            a(f"buffer_load_dword v{vx+2}, v{vx}, s[{SWO}:{SWO+3}], s{s_t0} offen"); g.vm.issue("P")
            a(f"buffer_load_dword v{vx+3}, v{vx}, s[{SWO}:{SWO+3}], s{s_t1} offen"); g.vm.issue("P")
        if st == 4:
            g.vm.wait("P", "R")
            for T in range(5):
                a(f"buffer_load_dwordx2 {vr(vx+2*T,2)}, v{vo}, s[{SX}:{SX+3}], s{s_base} offen offset:{64*T}"); g.vm.issue("X")
        if st == 5:
            a(f"s_lshl_b32 s{s_t0}, s{s_tt}, 2")
            a(f"s_add_u32 s{s_t0}, s{s_t0}, s{s_w}")
            a(f"s_lshl_b32 s{s_t0}, s{s_t0}, 7")
            a(f"s_add_u32 s{s_t0}, s{s_t0}, s{s_i4}")
            a(f"s_add_u32 s{s_cch}, s{s_t0}, {WS_FL + 32768}")
            a(f"buffer_load_dword v1, off, {WS}, s{s_cch} sc1"); g.vm.issue("M")
        if st == 6:
            g.vm.wait("M")
            a("v_cmp_gt_u32 vcc, 1, v1")
            a("s_cmp_eq_u64 vcc, 0")
            a("s_cbranch_scc1 G_pollm_ok")
            poll(a, "G_pollm", f"buffer_load_dword v1, off, {WS}, s{s_cch} sc1", "v_cmp_gt_u32 vcc, 1, v1", 8)
            a(f"v_readfirstlane_b32 s{s_t0}, v1")
            a(f"s_cmp_lg_u32 s{s_t0}, s{s_delta}")
            a("s_cbranch_scc1 G_novote")
            if FASTO: lds_arrive(a, SC_K + 36, 2)
            a.label("G_novote")
        if os.environ.get("STGST"):
            stamp(a, [1, 3, 4, 6, 8, 10, 12][st]); a("s_waitcnt lgkmcnt(0)")
        elif st in (0, 3, 6):
            stamp(a, {0: 10, 3: 11, 6: 12}[st])
            if STAMP: a("s_waitcnt lgkmcnt(0)")
    assert MARK + 2 <= KVAT[-1] - 1 and MARK < 4
    pk = g.v_act
    assert 7 not in KVAT
    lds_arrive(a, SC_CNT + 32 + 28, 2)
    a(f"s_lshl_b32 s{s_t0}, s{s_w}, 2")
    a(f"s_cmp_eq_u32 s{s_t0}, s{s_i4}")
    a("s_cbranch_scc1 G_keep")
    a(f"s_lshl_b32 s{s_t0}, s{s_lid}, 2")
    a(f"s_add_u32 s{s_t0}, s{s_t0}, s{s_w}")
    a(f"s_mul_i32 s{s_t0}, s{s_t0}, 10240")
    a(f"s_add_u32 s{s_t0}, s{s_t0}, {WS_P}")
    for k in range(40): a(f"v_cvt_pk_bf16_f32 v{pk+k}, v{g.v_acc+2*k}, v{g.v_acc+2*k+1}")
    def snd(sc):
        for k in range(10):
            if k in (4, 8): a(f"s_add_u32 s{s_t0}, s{s_t0}, 4096")
            a(f"buffer_store_dwordx4 {vr(pk+4*k,4)}, v{g.v_l16}, {WS}, s{s_t0} offen offset:{(k%4)*1024}{sc}")
    two_ways(a, "G_snd", snd)
    a(f"s_lshl_b32 s{s_t0}, s{s_lid}, 7")
    a(f"s_lshl_b32 s{s_t1}, s{s_w}, 2")
    a(f"s_add_u32 s{s_t0}, s{s_t0}, s{s_t1}")
    a(f"s_add_u32 s{s_t0}, s{s_t0}, {WS_FL + 32768}")
    a("v_mov_b32 v1, 1")
    a(f"s_lshl_b32 s{s_slot}, s{s_slot}, 2")
    a(f"s_add_u32 s{s_slot}, s{s_slot}, s{s_hg}")
    a(f"s_lshl_b32 s{s_t1}, s{s_slot}, 7")
    a(f"s_add_u32 s{s_t1}, s{s_t1}, s{s_i4}")
    a(f"s_add_u32 s{s_kvg}, s{s_t1}, {WS_FL + 32768}")
    a("s_waitcnt vmcnt(0)")
    a("s_mov_b64 exec, 1")
    two_ways(a, "G_sfl", lambda sc: a(f"buffer_store_dword v1, off, {WS}, s{s_t0}{sc}"))
    a("s_mov_b64 exec, -1")
    if os.environ.get("STGST"): stamp(a, 11)
    poll(a, "G_pollr", f"buffer_load_dword v1, off, {WS}, s{s_kvg} sc1", "v_cmp_gt_u32 vcc, 1, v1", 3)
    a(f"s_mul_i32 s{s_t0}, s{s_slot}, 40960")
    a(f"s_mul_i32 s{s_t1}, s{s_i4}, 2560")
    a(f"s_add_u32 s{s_t0}, s{s_t0}, s{s_t1}")
    a(f"s_add_u32 s{s_t0}, s{s_t0}, {WS_P}")
    for k in range(10):
        if k in (4, 8): a(f"s_add_u32 s{s_t0}, s{s_t0}, 4096")
        a(f"buffer_load_dwordx4 {vr(pk+4*k,4)}, v{g.v_l16}, {WS}, s{s_t0} offen offset:{(k%4)*1024} sc1")
    a.label("G_keep")
    lds_wait(a, "G_sync7", SC_CNT + 32 + 28, 4, 2, s_spin, s_t0, 1)
    g.lg.q = []
    a(f"v_add_u32 v{g.v_wa}, s{g.s_lds}, v{g.v_wa}")
    load_w(27)
    lds_wait(a, "G_alta", SCW + 20, NW_, 2, s_spin, s_t0, 2)
    load_w(31)
    a(f"s_lshl_b32 s{s_t0}, s{s_tt}, 2")
    a(f"s_add_u32 s{s_t0}, s{s_t0}, s{s_w}")
    a(f"s_mul_i32 s{g.s_aoff}, s{s_t0}, 10240")
    a(f"s_add_u32 s{g.s_aoff}, s{g.s_aoff}, {WS_O}")
    a(f"s_lshl_b32 s{s_t1}, s{s_w}, 2")
    a(f"s_cmp_eq_u32 s{s_t1}, s{s_i4}")
    a("s_cbranch_scc1 G_keep3")
    a(f"s_mov_b32 s{s_t1}, 0xffff0000")
    for k in range(10):
        if k % 5 == 0: a(f"s_waitcnt vmcnt({15-k})")
        for r in range(4):
            a(f"v_lshlrev_b32 v{g.v_acc+8*k+2*r}, 16, v{pk+4*k+r}")
            a(f"v_and_b32 v{g.v_acc+8*k+2*r+1}, s{s_t1}, v{pk+4*k+r}")
    a.label("G_keep3")
    rd_w(27); g.lg.drain(); load_w(30)
    if not TAILST: stamp(a, 5)
    lds_wait(a, "G_alt0", SCW + 24, NW_, 2, s_spin, s_t0, 2)
    load_w(32)
    if ALT1 == 0:
        lds_wait(a, "G_alt1", SCW + 28, NW_, 2, s_spin, s_t0, 2)
        load_w(33)
    if TAILST: stamp(a, 5)
    lds_wait(a, "G_trig0", SC_K + 32, TRIG[0], 2, s_spin, s_t0, 1)
    if not HP: a(f"s_setprio {os.environ.get('TPRIO', '0')}")
    def o_poll(half):
        b = areg(27 + 5 * half)
        so = g.s_aoff if half == 0 else s_a0
        ld = [f"buffer_load_dwordx4 {vr(b+4*j,4)}, v{g.v_l16}, {WS}, s{so} offen offset:{j*1280} sc1" for j in range(4)]
        ld += [f"buffer_load_dwordx2 {vr(b+16+2*j,2)}, v{v_wa2}, {WS}, s{so} offen offset:{1024+2560*j} sc1" for j in range(2)]
        ck = [f"v_max3_u32 v{1+k}, v{b+3*k}, v{b+3*k+1}, v{b+3*k+2}" for k in range(3)]
        ck += [f"v_max3_u32 v{1+k}, v{1+k}, v{b+9+2*k}, v{b+10+2*k}" for k in range(3)]
        ck += [f"v_max3_u32 v1, v1, v{b+15}, v{b+16}", f"v_max3_u32 v2, v2, v{b+17}, v{b+18}", f"v_max_u32 v3, v3, v{b+19}",
               "v_max3_u32 v1, v1, v2, v3", "v_cmp_eq_u32 vcc, -1, v1"]
        return "\n".join(ld), "\n".join(ck)
    a(f"s_add_u32 s{s_a0}, s{g.s_aoff}, 5120")
    poll(a, "G_pollo0", *o_poll(0), OSL[0])
    g.vm.q = []
    if TAILST: stamp(a, 6); a("s_waitcnt lgkmcnt(0)")
    for i in range(27, 32):
        mm(i, i + 1)
        if 28 <= i <= 30: load_w(i + 6)
    if ALT1:
        lds_wait(a, "G_alt1", SCW + 28, NW_, 2, s_spin, s_t0, 1)
        load_w(33)
    stamp(a, 2)
    lds_wait(a, "G_trig1", SC_K + 32, TRIG[1], 2, s_spin, s_t0, 1)
    g.lg.q = []
    poll(a, "G_pollo1", *o_poll(1), OSL[1])
    g.vm.q = []
    a("s_setprio 3")
    stamp(a, 13)
    if STAMP: a("s_waitcnt lgkmcnt(0)")
    for i in range(32, 37): mm(i, i + 1 if i < 36 else None)
    stamp(a, 14)
    xf = g.v_act
    for T in range(5):
        a(f"v_lshlrev_b32 v{xf+4*T}, 16, v{vx+2*T}")
        a(f"v_and_b32 v{xf+4*T+1}, 0xffff0000, v{vx+2*T}")
        a(f"v_lshlrev_b32 v{xf+4*T+2}, 16, v{vx+2*T+1}")
        a(f"v_and_b32 v{xf+4*T+3}, 0xffff0000, v{vx+2*T+1}")
    for q in range(4):
        a(f"s_sub_u32 s{s_t0}, {q + 3}, s{s_w}")
        a(f"s_and_b32 s{s_t0}, s{s_t0}, 3")
        a(f"s_cmp_eq_u32 s{s_t0}, 3")
        a(f"s_cbranch_scc1 G_own{q}")
        a(f"s_mul_i32 s{s_t0}, s{s_t0}, 5120")
        a(f"s_add_u32 s{s_t0}, s{s_t0}, s{g.s_lds}")
        a(f"v_add_u32 v1, s{s_t0}, v{g.v_l16}")
        for T in range(5): a(f"ds_write_b128 v1, {vr(g.v_acc+16*T+4*q,4)} offset:{T*1024}")
        a(f"s_branch G_nxt{q}")
        a.label(f"G_own{q}")
        for T in range(5):
            for h in range(2): a(f"v_pk_add_f32 {vr(xf+4*T+2*h,2)}, {vr(xf+4*T+2*h,2)}, {vr(g.v_acc+16*T+4*q+2*h,2)}")
        a.label(f"G_nxt{q}")
    for k in range(3):
        a(f"s_add_u32 s{s_t0}, s{s_w}, {3 - k}")
        a(f"s_and_b32 s{s_t0}, s{s_t0}, 3")
        a(f"s_mul_i32 s{s_t0}, s{s_t0}, {PART}")
        a(f"s_add_u32 s{s_t0}, s{s_t0}, {STG + k*5120}")
        a(f"v_add_u32 v{4+k}, s{s_t0}, v{g.v_l16}")
    a("s_waitcnt lgkmcnt(0)")
    if TAILST: stamp(a, 10)
    a("s_barrier")
    if TAILST: stamp(a, 11); a("s_waitcnt lgkmcnt(0)")
    for T in range(5):
        for k in range(3):
            a(f"ds_read_b128 {vr(g.v_acc+16*T+4*k,4)}, v{4+k} offset:{T*1024}"); g.lg.issue(T)
    for T in range(5): fin_tile(a, g, T, xf, vo)
    if STAMP:
        if TAILST: stamp(a, 9)
        a("s_waitcnt vmcnt(0)"); stamp(a, 7); stamp(a, 15, True)
        a(f"s_add_u32 s{s_w}, s{s_w}, 8")
        stamp_flush(a, 1, SWS, s_w, 12, 16, gsel=[(9, False), (10, False), (12, False), (13, False), (14, False), (15, False)], goff=8)
    a("s_endpgm")
    return vx + 10

def fin_tile(a, g, T, xf, vo):
    b = g.v_acc + 16 * T
    g.lg.wait(T)
    for h in range(2):
        a(f"v_pk_add_f32 {vr(b+2*h,2)}, {vr(b+2*h,2)}, {vr(b+4+2*h,2)}")
        a(f"v_pk_add_f32 {vr(b+8+2*h,2)}, {vr(b+8+2*h,2)}, {vr(xf+4*T+2*h,2)}")
    for h in range(2):
        a(f"v_pk_add_f32 {vr(b+2*h,2)}, {vr(b+2*h,2)}, {vr(b+8+2*h,2)}")
    a(f"v_cvt_pk_bf16_f32 v{b}, v{b}, v{b+1}")
    a(f"v_cvt_pk_bf16_f32 v{b+1}, v{b+2}, v{b+3}")
    a(f"buffer_store_dwordx2 {vr(b,2)}, v{vo}, s[{SOUT}:{SOUT+3}], s{s_base} offen offset:{64*T}")

def gen_f(a, name="parallel_sum__grouped_kv_mqa__dense_activation_relu__prompt_kernel"):
    kernel_header(a, name)
    a("s_cmp_ge_u32 s2, 256")
    a("s_cbranch_scc1 F_end")
    stamp(a, 0, True); stamp(a, 1)
    BMAP = int(os.environ.get("BMAP", "4"))
    if BMAP == 0: a(f"s_mov_b32 s{s_lid}, s2")
    elif BMAP == 1:
        a(f"s_bfe_u32 s{s_lid}, s2, 0x20001")
        a(f"s_lshl_b32 s{s_lid}, s{s_lid}, 4")
        a(f"s_lshr_b32 s35, s2, 4")
        a(f"s_add_u32 s{s_lid}, s{s_lid}, s35")
        a(f"s_lshl_b32 s{s_lid}, s{s_lid}, 1")
        a(f"s_and_b32 s35, s2, 1")
        a(f"s_add_u32 s{s_lid}, s{s_lid}, s35")
        a(f"s_lshl_b32 s{s_lid}, s{s_lid}, 1")
        a(f"s_bfe_u32 s35, s2, 0x10003")
        a(f"s_add_u32 s{s_lid}, s{s_lid}, s35")
    elif BMAP == 3:
        a(f"s_lshr_b32 s{s_lid}, s2, 4")
        a(f"s_lshl_b32 s{s_lid}, s{s_lid}, 3")
        a(f"s_and_b32 s35, s2, 7")
        a(f"s_add_u32 s{s_lid}, s{s_lid}, s35")
        a(f"s_lshl_b32 s{s_lid}, s{s_lid}, 1")
        a(f"s_bfe_u32 s35, s2, 0x10003")
        a(f"s_add_u32 s{s_lid}, s{s_lid}, s35")
    elif BMAP == 4:
        a(f"s_and_b32 s{s_lid}, s2, 1")
        a(f"s_lshl_b32 s{s_lid}, s{s_lid}, 3")
        a(f"s_lshr_b32 s35, s2, 5")
        a(f"s_add_u32 s{s_lid}, s{s_lid}, s35")
        a(f"s_lshl_b32 s{s_lid}, s{s_lid}, 2")
        a(f"s_bfe_u32 s35, s2, 0x20001")
        a(f"s_add_u32 s{s_lid}, s{s_lid}, s35")
        a(f"s_lshl_b32 s{s_lid}, s{s_lid}, 2")
        a(f"s_bfe_u32 s35, s2, 0x20003")
        a(f"s_add_u32 s{s_lid}, s{s_lid}, s35")
    else:
        a(f"s_and_b32 s{s_lid}, s2, 7")
        a(f"s_lshl_b32 s{s_lid}, s{s_lid}, 5")
        a(f"s_lshr_b32 s35, s2, 3")
        a(f"s_add_u32 s{s_lid}, s{s_lid}, s35")
    if STAMP == 3: a("s_mov_b32 s72, 0")
    def clear_cnt(a):
        a("v_lshlrev_b32 v1, 2, v0")
        a(f"v_add_u32 v1, {SC_CNT}, v1")
        a("v_mov_b32 v2, 0")
        a("ds_write_b32 v1, v2")
        a("ds_write_b32 v1, v2 offset:256")
        a("v_cmp_lt_u32 vcc, 6, v0")
        a("v_cndmask_b32 v2, 0, 4, vcc")
        a("ds_write_b32 v1, v2 offset:512")
        a("s_waitcnt lgkmcnt(0)")
    def start_hook(a):
        clear_cnt(a)
        attn_addr(a)
        if TLBW:
            a(f"s_cmp_lg_u32 s{s_w}, 5")
            a("s_cbranch_scc1 F_notlb")
            for _ in range(TLBW - 1): a("s_barrier")
            a(f"v_lshlrev_b32 v1, {TLBS}, v0")
            a(f"v_add_u32 v1, 0x100, v1")
            for ptr, n in ((56, 1728 * 1280), (58, 640 * 1280), (60, 2048 * 1280)):
                srd(a, 16, ptr, n)
                a(f"buffer_load_dword v2, v1, s[16:19], 0 offen")
            for k in range((WS_SIZE >> TLBS) // 64 + 1):
                a(f"s_mov_b32 s35, {k * 64 << TLBS}")
                a(f"buffer_load_dword v2, v1, {WS}, s35 offen sc1")
            for _ in range(10 - (TLBW - 1)): a("s_barrier")
            a("s_waitcnt vmcnt(0)")
            a("s_branch F_attn")
            a.label("F_notlb")
    def pre_ba(a): attn_addr(a)
    def done_help(a): a("s_branch F_fetch")
    def done_stats(a): a("s_branch F_dry" if DRY else "s_branch F_attn")
    def done_comp(a): a("s_branch F_pub")
    def spare(a):
        ka2.produce_stats(a)
        clear_cnt(a)
        attn_addr(a)
        a(f"s_cmp_lg_u32 s{s_w}, 0")
        a("s_cbranch_scc1 F_sp1")
        ka2.dbg_check(a, "F_dbg")
        a.label("F_sp1")
        a("s_barrier")
        a(f"s_cmp_ge_u32 s{s_w}, 8")
        a("s_cbranch_scc1 F_gemm0")
        a(f"s_cmp_ge_u32 s{s_w}, 4")
        a("s_cbranch_scc1 F_dry" if DRY else "s_cbranch_scc1 F_attn")
    phase_a(a, done_help, done_stats, done_comp, spare, start_hook, pre_ba)
    a.label("F_fetch")
    fetch(a)
    a.label("F_attn")
    attention(a)
    if DRY:
        a.label("F_dry")
        a(f"s_cmp_eq_u32 s{s_w}, 4")
        a("s_cbranch_scc1 F_attn")
        a("s_mov_b64 exec, 0")
        a(f"s_mov_b32 s{s_c}, 7")
        a(f"s_cmp_eq_u32 s{s_w}, 5")
        a("s_cbranch_scc1 B_loop")
        a(f"s_cmp_eq_u32 s{s_w}, 6")
        a("s_cbranch_scc1 B_u3")
        a("s_branch B_synced")
        a.label("F_dryret")
        a("s_mov_b64 exec, -1")
        a("s_nop 7")
        a("s_nop 7")
        a("s_branch F_attn")
    a.label("F_pub")
    stamp(a, 3)
    publish(a, "F_pub2", 0, 4, 3, WS_FL, 1)
    stamp(a, 4)
    lds_wait(a, "F_all", SC_CNT, 4, 2, s_spin, s_t0)
    a.label("F_gemm0")
    a("s_mov_b32 s53, -1")
    a.label("F_gemm")
    nv = gemm(a)
    a.label("F_end")
    a("s_endpgm")
    assert nv <= 168, nv
    return dict(name=name, grid=256, block=768, lds=LDS_A, vgpr=168, sgpr=102 if STAMP else 72, single=True)
```

```python
from common import *
from gw import *
import ka2
from ka2 import phase_a, SC_CNT, LDS_A
def two_ways(a, name, body): body(' sc1')

GPRIO = int(os.environ.get("GPRIO", "0"))
HOLD = 1
GROT = int(os.environ.get("GROT", "9"))
GX = os.environ.get("GX", "")
UARR = int(os.environ.get("UARR", "0"))
SC_L = None
DRY = int(os.environ.get("DRY", "0"))
PACE = [float(x) for x in os.environ.get("PACE", "1.7,7.0").split(",")]
PEND = int(os.environ.get("PEND", "99"))
ABAT = int(os.environ.get("ABAT", "0"))
PIPE = int(os.environ.get("PIPE", "1"))
KV4 = int(os.environ.get("KV4", "0"))
TRIG = [int(x) for x in os.environ.get("TRIG", "4,8").split(",")]
TAILST = os.environ.get("TAILST")
OSL = [int(x) for x in os.environ.get("OSL", "1,0").split(",")]
WOPF = int(os.environ.get("WOPF", "10"))
ALT1 = int(os.environ.get("ALT1", "0"))
MARK = int(os.environ.get("MARK", "1"))
NS0 = int(os.environ.get("NS0", "2"))
WEARLY = int(os.environ.get("WEARLY", "2"))
W2PF = int(os.environ.get("W2PF", "3"))
HP = int(os.environ.get("HP", "1"))
FASTO = int(os.environ.get("FASTO", "1"))
TRIGST = int(os.environ.get("TRIGST", "1"))
PMASK = int(os.environ.get("PMASK", "0"))
PSTEP = [int(x) for x in os.environ.get("PSTEP", "").split(",") if x]
PBASE = int(os.environ.get("PBASE", "0"))
ALIGN = int(os.environ.get("ALIGN", "0"))
HNEAR = int(os.environ.get("HNEAR", "0"))
JIT = int(os.environ.get("JIT", "0"))
LAY = int(os.environ.get("LAY", "0"))
TLBW = int(os.environ.get("TLBW", "0"))
TLBS = int(os.environ.get("TLBS", "21"))
DEFW = int(os.environ.get("DEFW", "4"))
DEFER = int(os.environ.get("DEFER", "0"))
PAIR = 2 * KV_TILE
CH = 8 * KV_TILE
STG = 0
KVB = 4 * PART
assert KVB + 4 * CH <= ka2.SCR and KVB >= ka2.SLOT
RESET_WG = (3 << 6) | (3 << 1)

SX, SW2, SWS, SWO, SOUT, SDBG = 4, 8, 12, 16, 20, 16
s_w, s_tt, s_hg, s_t0, s_t1, s_c, s_slot, s_delta, s_cch, s_base, s_spin, s_kvl, s_kvg, s_woff2 = range(32, 46)
s_gw = 46
s_lid = 97 if STAMP else 64
WS = f"s[{SWS}:{SWS+3}]"
Q1, Q2, P0, P1, O, S0, S1 = 4, 8, 12, 16, 20, 36, 52
KS = [68, 96]
v_ka, v_va, v_g0, VT = 124, 125, 126, 130
v_l16, v_cnt, v_one, v_chk = 136, 137, 138, 139
SC_K = SC_CNT + 256
SC_L = SC_K + 256
COMB = int(os.environ.get('COMB', '0'))
SCW, NW_ = (SC_L, 12) if COMB else (SC_K, 8)
s_tgt = 45

def mf(a, d, x, y, c): a(f"v_mfma_f32_32x32x16_bf16 {vr(d,16)}, {vr(x,4)}, {vr(y,4)}, {c if isinstance(c,str) else vr(c,16)}")
def mf8(a, d, x, y): a(f"v_mfma_f32_32x32x8_bf16 {vr(d,16)}, {vr(x,2)}, {vr(y,2)}, {vr(d,16)}")

def flag_off(a, vd, vrb, vg, t):
    a(f"v_lshl_add_u32 v{vd}, v{vrb}, 4, v{vg}")
    a(f"v_lshlrev_b32 v{vd}, 7, v{vd}")
    a(f"v_add_u32 v{vd}, {WS_FL}, v{vd}")

def publish(a, name, cnt_off, nwaves, sid, base, t, value=1, vm=0, word=None, near=False):
    a(f"s_waitcnt vmcnt({vm})")
    a("s_mov_b64 exec, 1")
    a(f"v_mov_b32 v{t}, {SC_CNT + cnt_off}")
    a(f"v_mov_b32 v{t+1}, 1")
    a(f"ds_add_rtn_u32 v{t+1}, v{t}, v{t+1}")
    a(f"s_lshl_b32 s{s_t0}, s{sid}, 7")
    a(f"s_add_u32 s{s_t0}, s{s_t0}, {base}")
    a(f"v_mov_b32 v{t}, {0 if word is None else 's%d' % word}")
    a(f"v_mov_b32 v{t+2}, {value}")
    a("s_waitcnt lgkmcnt(0)")
    a(f"v_readfirstlane_b32 s{s_t1}, v{t+1}")
    a(f"s_cmp_lg_u32 s{s_t1}, {nwaves-1}")
    a(f"s_cbranch_scc1 {name}")
    if near: two_ways(a, name + "w", lambda sc: a(f"buffer_store_dword v{t+2}, v{t}, {WS}, s{s_t0} offen{sc}"))
    else: a(f"buffer_store_dword v{t+2}, v{t}, {WS}, s{s_t0} offen sc1")
    a.label(name)
    a("s_mov_b64 exec, -1")

def decode_b(a):
    a(f"s_lshr_b32 s{s_tt}, s{s_lid}, 2")
    a(f"s_and_b32 s{s_hg}, s{s_lid}, 3")

def attn_addr(a):
    a(f"s_and_b32 s{s_t0}, s{s_lid}, 3")
    a(f"s_lshl_b32 s{s_t0}, s{s_t0}, 3")
    a(f"s_add_u32 s{s_t0}, s{s_t0}, s{s_w}")
    a(f"s_mul_i32 s{s_t0}, s{s_t0}, 5")
    a(f"v_lshrrev_b32 v2, 5, v0")
    a(f"v_and_b32 v3, 31, v0")
    a(f"v_lshlrev_b32 v3, 4, v3")
    for i in range(3):
        if i < 2: a(f"v_add_u32 v1, s{s_t0}, v2")
        else: a(f"v_mov_b32 v1, s{s_t0}")
        if i: a(f"v_add_u32 v1, {2*i}, v1")
        a(f"v_lshrrev_b32 v{VT}, 2, v1")
        a(f"v_lshl_add_u32 v{v_g0+i}, v{VT}, 10, v3")
        a(f"v_and_b32 v{VT}, 1, v1")
        a(f"v_lshl_add_u32 v{v_g0+i}, v{VT}, 9, v{v_g0+i}")
        a(f"v_bfe_u32 v{VT}, v1, 1, 1")
        a(f"v_lshl_add_u32 v{v_g0+i}, v{VT}, 3, v{v_g0+i}")
    a(f"v_lshlrev_b32 v{v_l16}, 4, v0")
    a(f"v_add_u32 v{v_ka}, {KVB}, v{v_l16}")
    a(f"v_lshlrev_b32 v{v_cnt}, 2, v0")
    a(f"v_add_u32 v{v_cnt}, {SC_K}, v{v_cnt}")
    a(f"v_cmp_eq_u32 vcc, 0, v0")
    a(f"v_cndmask_b32 v{v_one}, 0, 1, vcc")
    a(f"v_and_b32 v1, 31, v0")
    a(f"v_min_u32 v1, 23, v1")
    a(f"v_mul_u32_u24 v{v_va}, 384, v2")
    a(f"v_lshl_add_u32 v{v_va}, v1, 4, v{v_va}")
    a(f"v_add_u32 v{v_va}, {KVB + 3072}, v{v_va}")

def fetch(a):
    decode_b(a)
    a(f"s_cmp_lg_u32 s{s_w}, 0")
    a("s_cbranch_scc1 B_fkv")
    a(f"s_lshr_b32 s{s_t0}, s{s_tt}, 2")
    a(f"s_add_u32 s{s_t1}, s{s_hg}, 9")
    a(f"v_mov_b32 v1, s{s_t0}")
    a(f"v_add_u32 v2, s{s_t1}, v0")
    flag_off(a, 4, 1, 2, 3)
    a("s_mov_b64 exec, 3")
    poll(a, "B_pollq", f"buffer_load_dword v2, v4, {WS}, 0 offen sc1", "v_cmp_gt_u32 vcc, 1, v2")
    lds_arrive(a, SC_CNT + 16, 2)
    a("s_branch F_attn")
    a.label("B_fkv")
    a(f"s_lshr_b32 s{s_t0}, s{s_tt}, 3")
    a(f"s_lshl_b32 s{s_t1}, s{s_t0}, 1")
    a(f"v_add_u32 v1, s{s_t1}, v0")
    a(f"v_mov_b32 v2, 14")
    flag_off(a, 4, 1, 2, 3)
    a(f"s_mul_i32 s{s_t0}, s{s_t0}, {CH}")
    a(f"s_sub_u32 s{s_kvl}, s{s_w}, 1")
    a(f"s_lshl_b32 s{s_kvl}, s{s_kvl}, 13")
    a(f"s_add_u32 s{s_kvg}, s{s_kvl}, s{s_t0}")
    a("s_mov_b64 exec, 3")
    poll(a, "B_pollkv", f"buffer_load_dword v2, v4, {WS}, 0 offen sc1", "v_cmp_gt_u32 vcc, 1, v2", 3)
    a("s_mov_b64 exec, -1")
    stamp(a, 5)
    for hf in range(2):
        a(f"s_add_u32 m0, s{s_kvl}, {KVB + hf*4096}")
        a(f"s_add_u32 s{s_t0}, s{s_kvg}, {WS_KV + hf*4096}")
        for m in range(4): a(f"buffer_load_dwordx4 v{v_l16}, {WS}, s{s_t0} offen offset:{m*1024} sc1 lds")

def attention(a):
    decode_b(a)
    stamp(a, 8)
    a(f"s_mul_i32 s{s_base}, s{s_tt}, {QH_TT}")
    lds_wait(a, "B_wait", SC_CNT + 16, 1, 2, s_spin, s_t0)
    stamp(a, 9)
    a(f"buffer_load_dwordx2 {vr(Q1,2)}, v{v_g0}, {WS}, s{s_base} offen sc1")
    a(f"buffer_load_dwordx2 {vr(Q1+2,2)}, v{v_g0+1}, {WS}, s{s_base} offen sc1")
    a(f"buffer_load_dwordx2 {vr(Q2,2)}, v{v_g0+2}, {WS}, s{s_base} offen sc1")
    for r in list(range(KS[0] + 20, KS[0] + (28 if LAY else 24))) + list(range(P0 if LAY else P1, P1 + 4)) + list(range(O, O + 16)):
        a(f"v_mov_b32 v{r}, 0")
    a(f"s_mov_b32 s{s_c}, 0")
    a(f"s_mov_b32 s{s_slot}, 0")
    a(f"s_mov_b32 s{s_cch}, {CH}")
    if PSTEP:
        a(f"s_mov_b32 s{s_tgt}, {sum(1 << c for c in PSTEP)}")
        a(f"s_setprio {len(PSTEP) + PBASE}")
    def kv_off(kind, t):
        p = (t % 8) // 2 * PAIR; b = t % 2
        return {"K1": p + 1024 * b, "K2": p + 2048, "V0": p + 1536 * b, "V1": p + 1536 * b + 768}[kind]
    def rd(dst, kind, t):
        a(f"ds_read_b128 {vr(dst,4)}, v{v_ka if kind[0] == 'K' else v_va} offset:{kv_off(kind, t)}")
    def group_reads(o):
        n = KS[((o + 1) // 2 + 1) % 2]
        if LAY:
            return [(n + 12, "V0", o + 1), (n + 16, "V1", o + 1), (n, "K1", o + 3), (n + 8, "K2", o + 3),
                    (n + 4, "K1", o + 4), (n + 20, "V0", o + 2), (n + 24, "V1", o + 2)]
        return [(n + 12, "V1", o + 1), (n, "K1", o + 3), (n + 8, "K2", o + 3), (n + 16, "V0", o + 2),
                (n + 20, "V1", o + 2), (n + 4, "K1", o + 4), (n + 24, "V0", o + 3)]
    k0 = KS[0]
    a("s_waitcnt vmcnt(0)")
    lds_arrive(a, SC_CNT + 8, 2)
    a("s_mov_b32 exec_lo, 0")
    a(f"v_mov_b32 v{Q2}, 0")
    a(f"v_mov_b32 v{Q2+1}, 0")
    a("s_mov_b32 exec_lo, -1")
    stamp(a, 10)
    lds_wait(a, "B_wait2", SC_CNT + 8, 8, 2, s_spin, s_t0, 0)
    rd(k0, "K1", 0); rd(k0 + 8, "K2", 0); rd(k0 + 4, "K1", 1)
    if not LAY: rd(k0 + 24, "V0", 0)
    for r in group_reads(-1)[:4]: rd(*r)
    a(f"s_waitcnt lgkmcnt({5 if LAY else 6})")
    mf(a, S1, k0, Q1, "0"); mf8(a, S1, k0 + 8, Q2)
    mf(a, S0, k0, Q1, "0")
    a(f"v_max3_f32 v{VT}, v{S1}, v{S1+1}, v{S1+2}")
    a(f"v_max3_f32 v{VT+1}, v{S1+3}, v{S1+4}, v{S1+5}")
    a(f"v_max3_f32 v{VT+2}, v{S1+6}, v{S1+7}, v{S1+8}")
    a(f"v_max3_f32 v{VT+3}, v{S1+9}, v{S1+10}, v{S1+11}")
    a(f"v_max3_f32 v{VT}, v{VT}, v{S1+12}, v{S1+13}")
    a(f"v_max3_f32 v{VT+1}, v{VT+1}, v{S1+14}, v{S1+15}")
    a(f"v_max3_f32 v{VT}, v{VT}, v{VT+2}, v{VT+3}")
    a(f"v_max_f32 v{VT}, v{VT}, v{VT+1}")
    a(f"v_mov_b32 v{VT+1}, v{VT}")
    a(f"v_permlane32_swap_b32 v{VT}, v{VT+1}")
    a(f"v_max_f32 v{VT}, v{VT}, v{VT+1}")
    a("s_mov_b32 exec_lo, 0")
    a(f"v_cvt_pk_bf16_f32 v{Q2}, -v{VT}, 0")
    a("s_mov_b32 exec_lo, -1")
    mf8(a, S0, k0 + 8, Q2)
    stamp(a, 11); stamp(a, 12, 'cyc')
    a("s_waitcnt lgkmcnt(0)")
    a("s_nop 10")
    a.raw(".p2align 6")
    a.label("B_loop")
    start = a.mark()
    for u in range(8):
        Sc, Sn = (S0, S1) if u % 2 == 0 else (S1, S0)
        odd = u % 2
        o = u if odd else u - 1
        ks = KS[((o + 1) // 2) % 2]
        reads = group_reads(o)
        slots = [[reads[0]], [reads[1]], [reads[2]], [reads[3]]] if odd else [[reads[4], reads[5]], [reads[6]], [], []]
        e = lambda i: a(f"v_exp_f32 v{Sc+i}, v{Sc+i}")
        c = lambda i: a(f"v_cvt_pk_bf16_f32 v{P0+i}, v{Sc+2*i}, v{Sc+2*i+1}")
        cp = lambda i: a(f"v_cvt_pk_bf16_f32 v{P0+i}, v{Sn+2*i}, v{Sn+2*i+1}")
        if LAY:
            rs = list(reads[:4] if odd else reads[4:])
            def misc():
                if u == 0:
                    a(f"ds_add_u32 v{v_cnt}, v{v_one} offset:{256 if COMB else 0}")
                    if PSTEP:
                        a(f"s_bitcmp1_b32 s{s_tgt}, s{s_c}")
                        a("s_cbranch_scc1 B_prio")
                        a.label("B_prioret")
                if u == 4: a(f"ds_read_b32 v{v_chk}, v{v_cnt} offset:256")
                if u == 2:
                    a(f"s_cmp_eq_u32 s{s_slot}, {3*CH}")
                    a(f"s_cselect_b32 s{s_delta}, {(-3*CH) & 0xffffffff}, s{s_cch}")
                if u == 6:
                    a(f"s_add_u32 s{s_c}, s{s_c}, 1")
                    a(f"s_cmp_lt_u32 s{s_c}, 8")
            if odd: a("s_waitcnt lgkmcnt(0)")
            mf(a, Sn, ks + (0 if odd else 4), Q1, "0")
            if u == 5:
                a(f"v_readlane_b32 s{s_t0}, v{v_chk}, s{s_c}")
                a(f"s_add_u32 s{s_slot}, s{s_slot}, s{s_delta}")
                a(f"s_cmp_lt_u32 s{s_t0}, {12 if COMB else 4}")
                if "nospin" not in GX: a("s_cbranch_scc1 B_spin")
                a.label("B_synced")
                a(f"v_add_u32 v{v_ka}, s{s_delta}, v{v_ka}")
            if u == 7: a(f"v_add_u32 v{v_va}, s{s_delta}, v{v_va}")
            if u == 2: a(f"v_mov_b32_dpp v{v_one}, v{v_one} row_shr:1 row_mask:0xf bank_mask:0xf bound_ctrl:0")
            e(0); e(1); e(2)
            mf8(a, Sn, ks + 8 + (0 if odd else 2), Q2)
            rd(*rs.pop(0))
            e(3); e(4); e(5)
            mf(a, O, ks + (12 if odd else 20), P0, O)
            if LAY == 2: rd(*rs.pop(0))
            e(6); e(7); e(8)
            mf(a, O, ks + (16 if odd else 24), P1, O)
            if LAY == 1:
                e(9); e(10); c(0); c(1)
                for r in rs: rd(*r)
                misc()
                c(2); e(11); e(12); c(3); c(4); e(13); e(14); e(15); c(5); c(6); c(7)
            else:
                rd(*rs.pop(0))
                e(9); e(10); c(0)
                for r in rs: rd(*r)
                misc()
                c(1); c(2); e(11); e(12); c(3); c(4); e(13); e(14); e(15); c(5); c(6); c(7)
            continue
        if os.environ.get("CHST") and u == 0: a("s_memtime s[98:99]" if os.environ.get("CHST") == "2" else "s_memrealtime s[98:99]")
        cp(6); e(0); e(1); cp(7); e(2); e(3)
        if odd: a("s_waitcnt lgkmcnt(0)")
        if os.environ.get("CHST") and u == 1:
            sl = [2, 3, 4, 5, 6, 8, 9, 10]
            for k in range(7): a(f"s_mov_b32 s{64+2*sl[k]}, s{64+2*sl[k+1]}")
            a(f"s_mov_b32 s{64+2*sl[7]}, s98")
        mf(a, Sn, ks + (0 if odd else 4), Q1, "0")
        for r in slots[0]: rd(*r)
        if u == 5:
            a(f"v_readlane_b32 s{s_t0}, v{v_chk}, s{s_c}")
            a(f"s_add_u32 s{s_slot}, s{s_slot}, s{s_delta}")
            a(f"s_cmp_lt_u32 s{s_t0}, {12 if COMB else 4}")
            if "nospin" not in GX: a("s_cbranch_scc1 B_spin")
            a.label("B_synced")
        if u == 2:
            a(f"s_cmp_eq_u32 s{s_slot}, {3*CH}")
            a(f"s_cselect_b32 s{s_delta}, {(-3*CH) & 0xffffffff}, s{s_cch}")
        e(4); e(5)
        if u == 5: a(f"v_add_u32 v{v_ka}, s{s_delta}, v{v_ka}")
        if u == 2: a(f"v_mov_b32_dpp v{v_one}, v{v_one} row_shr:1 row_mask:0xf bank_mask:0xf bound_ctrl:0")
        if u == 6: a(f"v_add_u32 v{v_va}, s{s_delta}, v{v_va}")
        c(0); c(1); e(6); e(7)
        mf8(a, Sn, ks + 8 + (0 if odd else 2), Q2)
        for r in slots[1]: rd(*r)
        e(8); e(9); c(2); c(3); e(10); e(11)
        mf(a, O, ks + (12 if odd else 20), P1, O)
        for r in slots[2]: rd(*r)
        if u == 0 and PSTEP:
            a(f"s_bitcmp1_b32 s{s_tgt}, s{s_c}")
            a("s_cbranch_scc1 B_prio")
            a.label("B_prioret")
        if u == 0:
            a(f"ds_add_u32 v{v_cnt}, v{v_one} offset:{256 if COMB else 0}")
        if u == 4: a(f"ds_read_b32 v{v_chk}, v{v_cnt} offset:256")
        e(12); e(13); c(4); c(5); e(14); e(15)
        mf(a, O, ks + (16 if odd else 24), P0, O)
        for r in slots[3]: rd(*r)
        if u == 6:
            a(f"s_add_u32 s{s_c}, s{s_c}, 1")
            a(f"s_cmp_lt_u32 s{s_c}, 8")
    a("s_cbranch_scc1 B_loop")
    if ALIGN: print("loop bytes/fixed", a.align8(start))
    a.check_backedge(start)
    stamp(a, 13); stamp(a, 14, 'cyc')
    if LAY:
        mf(a, O, KS[0] + 20, P0, O); mf(a, O, KS[0] + 24, P1, O)
    else:
        for i in (6, 7): a(f"v_cvt_pk_bf16_f32 v{P0+i}, v{S1+2*i}, v{S1+2*i+1}")
        mf(a, O, KS[0] + 20, P1, O)
    if not TRIGST: a(f"ds_add_u32 v{v_cnt}, v{v_one}")
    a(f"ds_read_b32 v{v_chk}, v{v_cnt}")
    a("s_waitcnt lgkmcnt(0)")
    a(f"v_mov_b32 v{VT+2}, {hex(f32bits(2.0**60))}")
    a(f"s_lshl_b32 s{s_base}, s{s_lid}, 3")
    a(f"s_add_u32 s{s_base}, s{s_base}, s{s_w}")
    a(f"s_mul_i32 s{s_base}, s{s_base}, 1280")
    a(f"s_add_u32 s{s_base}, s{s_base}, {WS_O}")
    a(f"v_lshlrev_b32 v{v_g0}, 4, v0")
    a(f"v_lshlrev_b32 v{v_g0+1}, 3, v0")
    a(f"v_mov_b32 v{VT}, v{O+8}")
    a(f"v_mov_b32 v{VT+1}, v{O+8}")
    a(f"v_permlane32_swap_b32 v{VT}, v{VT+1}")
    a(f"v_cmp_nle_f32 vcc, {hex(f32bits(2.0**-60))}, v{VT+1}")
    a(f"v_cmp_nle_f32 s[52:53], v{VT+1}, v{VT+2}")
    a(f"s_or_b64 s[52:53], s[52:53], vcc")
    a("s_cbranch_scc1 B_fallback")
    a.label("B_norm")
    a(f"v_rcp_f32 v{VT}, v{VT+1}")
    for i in range(12): a(f"v_mul_f32 v{O+i}, v{VT}, v{O+i}")
    for i in range(6): a(f"v_cvt_pk_bf16_f32 v{O+i}, v{O+2*i}, v{O+2*i+1}")
    if DRY: a("s_cbranch_execz F_dryret")
    a(f"v_readlane_b32 s{s_t0}, v{v_chk}, 9")
    a(f"s_cmp_eq_u32 s{s_t0}, 4")
    a("s_cbranch_scc1 B_near")
    a(f"buffer_store_dwordx4 {vr(O,4)}, v{v_g0}, {WS}, s{s_base} offen sc1")
    a("s_mov_b32 exec_hi, 0")
    a(f"buffer_store_dwordx2 {vr(O+4,2)}, v{v_g0+1}, {WS}, s{s_base} offen offset:1024 sc1")
    a("s_branch B_done")
    a.label("B_near")
    a(f"buffer_store_dwordx4 {vr(O,4)}, v{v_g0}, {WS}, s{s_base} offen")
    a("s_mov_b32 exec_hi, 0")
    a(f"buffer_store_dwordx2 {vr(O+4,2)}, v{v_g0+1}, {WS}, s{s_base} offen offset:1024")
    a.label("B_done")
    if TRIGST == 2: a("s_waitcnt vmcnt(0)")
    if TRIGST: a(f"ds_add_u32 v{v_cnt}, v{v_one}")
    if STAMP: a("s_waitcnt vmcnt(0)")
    if STAMP:
        stamp(a, 7); stamp(a, 15, True)
        stamp_flush(a, 1, SWS, s_w, 12, 16)
    a("s_endpgm")
    if PSTEP:
        a.label("B_prio")
        for k, c in enumerate(PSTEP):
            a(f"s_setprio {len(PSTEP) - 1 - k + PBASE}")
            a(f"s_cmp_eq_u32 s{s_c}, {c}")
            a("s_cbranch_scc1 B_prioret")
        a("s_branch B_prioret")
    a.label("B_spin")
    a(f"s_mov_b32 s{s_spin}, {SPIN * 40}")
    a.label("B_spin1")
    a(f"s_sleep {os.environ.get('SSL', '4')}")
    a(f"ds_read_b32 v{v_chk}, v{v_cnt} offset:256")
    a("s_waitcnt lgkmcnt(0)")
    a(f"v_readlane_b32 s{s_t0}, v{v_chk}, s{s_c}")
    a(f"s_cmp_ge_u32 s{s_t0}, {12 if COMB else 4}")
    a("s_cbranch_scc1 B_synced")
    a(f"s_sub_u32 s{s_spin}, s{s_spin}, 1")
    a(f"s_cmp_lg_u32 s{s_spin}, 0")
    a("s_cbranch_scc1 B_spin1")
    a("s_branch B_synced")
    a.label("B_fallback")
    a("s_mov_b32 exec_lo, 0")
    a(f"v_mov_b32 v{Q2}, 0")
    a("s_mov_b32 exec_lo, -1")
    a(f"s_add_u32 s{s_slot}, s{s_slot}, {KVB}")
    a(f"v_subrev_u32 v{v_ka}, s{s_slot}, v{v_ka}")
    a(f"v_subrev_u32 v{v_va}, s{s_slot}, v{v_va}")
    a(f"v_mov_b32 v{VT}, 0xff800000")
    for r in range(O, O + 16): a(f"v_mov_b32 v{r}, 0")
    a(f"s_mov_b32 s{s_kvg}, {WS_KV}")
    def ldk():
        for i in range(3): a(f"buffer_load_dwordx4 {vr(k0+4*i,4)}, v{v_ka}, {WS}, s{s_kvg} offen offset:{1024*i} sc1")
    def qk(b):
        S = (S0, S1)[b]
        mf(a, S, k0 + 4 * b, Q1, "0"); mf8(a, S, k0 + 8 + 2 * b, Q2)
    def nxt(lbl):
        a(f"s_add_u32 s{s_kvg}, s{s_kvg}, {PAIR}")
        a(f"s_cmp_lt_u32 s{s_kvg}, {WS_KV + 32*PAIR}")
        a(f"s_cbranch_scc1 {lbl}")
    a.label("B_fb1")
    st = a.mark()
    ldk()
    a("s_waitcnt vmcnt(0)")
    qk(0); qk(1)
    for i in range(0, 32, 2): a(f"v_max3_f32 v{VT}, v{VT}, v{S0+i}, v{S0+i+1}")
    nxt("B_fb1")
    a.check_backedge(st)
    a(f"v_mov_b32 v{VT+1}, v{VT}")
    a(f"v_permlane32_swap_b32 v{VT}, v{VT+1}")
    a(f"v_max_f32 v{VT}, v{VT}, v{VT+1}")
    a(f"s_mov_b32 s{s_kvg}, {WS_KV}")
    a.label("B_fb2")
    st = a.mark()
    ldk()
    for i in range(4): a(f"buffer_load_dwordx4 {vr(k0+12+4*i,4)}, v{v_va}, {WS}, s{s_kvg} offen offset:{768*i} sc1")
    a("s_waitcnt vmcnt(0)")
    qk(0); qk(1)
    for b in range(2):
        S = (S0, S1)[b]
        for i in range(16): a(f"v_sub_f32 v{S+i}, v{S+i}, v{VT}")
        for i in range(16): a(f"v_exp_f32 v{S+i}, v{S+i}")
        for i in range(8): a(f"v_cvt_pk_bf16_f32 v{P0+i}, v{S+2*i}, v{S+2*i+1}")
        mf(a, O, k0 + 12 + 8 * b, P0, O); mf(a, O, k0 + 16 + 8 * b, P1, O)
    nxt("B_fb2")
    a.check_backedge(st)
    a(f"v_mov_b32 v{VT}, v{O+8}")
    a(f"v_mov_b32 v{VT+1}, v{O+8}")
    a(f"v_permlane32_swap_b32 v{VT}, v{VT+1}")
    a("s_nop 1")
    a("s_branch B_norm")

def gemm(a):
    global stamp
    def h_store(sc, vl):
        for k in range(12):
            if k in (4, 10): a("s_add_u32 s53, s53, 4096")
            if k == 6: a(f"s_add_u32 s53, s53, {QH_TT - 4096}")
            a(f"buffer_store_dwordx4 {vr(72+4*k,4)}, v{vl}, {WS}, s53 offen offset:{(k % 6 % 4)*1024}{sc}")
        stamp(a, 3)
    a("s_setprio 3")
    decode_b(a)
    a(f"s_sub_u32 s{s_w}, s{s_w}, 8")
    srd(a, SW2, 56, 1728 * 1280)
    srd(a, SWO, 58, 640 * 1280)
    srd(a, SOUT, 60, 2048 * 1280)
    g = GW(a, 27, 4, 10, STG, PART, SW2, SWS, s_gw)
    v_wd2 = g.v_end
    v_wa2, vfl = 11, v_wd2 + 5
    vx = v_wd2 + 6
    v_wa3 = 0
    s_kw, s_ka, s_w0, s_a0 = 50, 51, 54, 55
    a(f"s_mul_i32 s{s_kvl}, s{s_w}, 6144")
    def kv(c):
        if c >= 4: lds_wait(a, f"G_free{c}", SCW + 4 * (c - 3), NW_, 2, s_spin, s_t0, 4)
        a(f"s_lshr_b32 s{s_kvg}, s{s_tt}, 3")
        a(f"s_add_u32 s{s_kvg}, s{s_kvg}, {c}")
        a(f"s_and_b32 s{s_kvg}, s{s_kvg}, 7")
        a(f"s_mul_i32 s{s_kvg}, s{s_kvg}, {CH}")
        a(f"s_add_u32 s{s_kvg}, s{s_kvg}, s{s_kvl}")
        a(f"s_add_u32 s{s_kvg}, s{s_kvg}, {WS_KV}")
        a(f"s_add_u32 m0, s{s_kvl}, {KVB + (c % 4)*CH}")
        for m in range(4):
            a(f"buffer_load_dwordx4 v{g.v_l16}, {WS}, s{s_kvg} offen offset:{m*1024} sc1 lds"); g.vm.issue(("KV", c))
        a(f"s_add_u32 m0, m0, 4096")
        a(f"s_add_u32 s{s_kvg}, s{s_kvg}, 4096")
        for m in range(2):
            a(f"buffer_load_dwordx4 v{g.v_l16}, {WS}, s{s_kvg} offen offset:{m*1024} sc1 lds"); g.vm.issue(("KV", c))
    def landed(c):
        g.vm.wait(("KV", c))
        a("s_mov_b64 exec, 1")
        a(f"v_mov_b32 v2, {SC_L + 4 * (c - 1)}")
        a(f"v_mov_b32 v3, 1")
        a(f"ds_add_u32 v2, v3"); g.lg.issue("arr")
        a("s_mov_b64 exec, -1")
    s_i4 = s_c
    a(f"s_getreg_b32 s{s_delta}, hwreg(HW_REG_XCC_ID, 0, 4)")
    a(f"s_add_u32 s{s_delta}, s{s_delta}, 16")
    a(f"s_mov_b32 s{s_base}, 0")
    g.setup(s_w, s_hg, s_base)
    a(f"s_and_b32 s{s_t1}, s{s_tt}, 3")
    a(f"s_lshl_b32 s{s_i4}, s{s_t1}, 2")
    a(f"s_mul_i32 s{s_w0}, s{s_t1}, {27*16*1280}")
    a(f"s_mul_i32 s{s_t0}, s{s_hg}, 320")
    a(f"s_add_u32 s{s_w0}, s{s_w0}, s{s_t0}")
    a(f"s_mul_i32 s{s_woff2}, s{s_w}, {160*1280}")
    a(f"s_add_u32 s{s_woff2}, s{s_woff2}, s{s_t0}")
    a(f"s_and_b32 s{s_slot}, s{s_tt}, 0xfc")
    a(f"s_add_u32 s{s_slot}, s{s_slot}, s{s_w}")
    a(f"s_mul_i32 s{s_a0}, s{s_slot}, {QH_TT}")
    a(f"s_mul_i32 s{s_t0}, s{s_t1}, {27*1024}")
    a(f"s_add_u32 s{s_a0}, s{s_a0}, s{s_t0}")
    a(f"s_add_u32 s{s_a0}, s{s_a0}, {WS_QH + 40*1024}")
    a(f"s_lshr_b32 s{s_ka}, s{s_tt}, 2")
    a(f"s_mul_i32 s{s_ka}, s{s_ka}, {GROT}")
    a(f"s_mul_i32 s{s_t0}, s{s_ka}, 2428")
    a(f"s_lshr_b32 s{s_t0}, s{s_t0}, 16")
    a(f"s_mul_i32 s{s_t0}, s{s_t0}, 27")
    a(f"s_sub_u32 s{s_ka}, s{s_ka}, s{s_t0}")
    a(f"s_add_u32 s{s_kw}, s{s_ka}, s{s_w}")
    ALT = {31: 0, 32: CH, 33: 2 * CH}
    def dma5(vd, S, tag):
        for m in range(4):
            a(f"buffer_load_dwordx4 v{vd+m}, {S}, s{g.s_woff} offen offset:{m*1024} lds"); g.vm.issue(tag)
        a(f"s_add_u32 m0, m0, 4096")
        a(f"buffer_load_dwordx4 v{vd+4}, {S}, s{g.s_woff} offen lds"); g.vm.issue(tag)
    def load_stage(st):
        a(f"s_cmp_ge_u32 s{s_kw}, 27")
        a(f"s_cselect_b32 s{s_t0}, 27, 0")
        a(f"s_sub_u32 s{s_kw}, s{s_kw}, s{s_t0}")
        a(f"s_mul_i32 s{g.s_woff}, s{s_kw}, {16*1280}")
        a(f"s_add_u32 s{g.s_woff}, s{g.s_woff}, s{s_w0}")
        a(f"s_add_u32 s{s_kw}, s{s_kw}, 4")
        a(f"s_add_u32 m0, s{g.s_lds}, {(st % 3)*5120}")
        dma5(g.v_wd, f"s[{SW2}:{SW2+3}]", ("S", st))
    def load_w(i):
        j = i - 27
        row = 80 * (j // 5) + (20 * (j % 5) if j % 5 < 4 else 16)
        a(f"s_add_u32 s{g.s_woff}, s{s_woff2}, {row*1280}")
        if i in ALT:
            a(f"s_mul_i32 s{s_t0}, s{s_w}, 5120")
            a(f"s_add_u32 m0, s{s_t0}, {KVB + ALT[i]}")
        else: a(f"s_add_u32 m0, s{g.s_lds}, {(i % 3)*5120}")
        dma5(v_wd2 if j % 5 == 4 else g.v_wd, f"s[{SWO}:{SWO+3}]", ("W", i))
    def areg(i): return g.v_act + 4 * ((i % 8) if i < 27 else i - 27)
    def load_a(i):
        a(f"s_lshl_b32 s{g.s_aoff}, s{s_ka}, 10")
        a(f"s_add_u32 s{g.s_aoff}, s{g.s_aoff}, s{s_a0}")
        a(f"s_add_u32 s{s_ka}, s{s_ka}, 1")
        a(f"s_cmp_eq_u32 s{s_ka}, 27")
        a(f"s_cselect_b32 s{s_ka}, 0, s{s_ka}")
        a(f"buffer_load_dwordx4 {vr(areg(i),4)}, v{g.v_l16}, {WS}, s{g.s_aoff} offen sc1"); g.vm.issue(("A", i))
    def rd_t(i, T):
        if i < 27: base, off = g.v_wa, (i % 4) * PART + (i // 4 % 3) * 5120
        else: base, off = (v_wa3, ALT[i]) if i in ALT else (g.v_wa, (i % 3) * 5120)
        for p in range(2):
            a(f"ds_read_b64_tr_b16 {vr(g.v_wf+4*T+2*p,2)}, v{base} offset:{off + T*64 + p*2560}"); g.lg.issue((i, T))
    def rd_w(i):
        g.vm.wait(("W", i))
        for T in range(5): rd_t(i, T)
    def mm(i, nxt=None):
        if JIT and i < 27:
            g.vm.wait(("A", i))
            for T in range(5):
                g.lg.wait((i, T))
                acc = vr(g.v_acc + 16 * T, 16)
                if JIT == 1:
                    a(f"v_mfma_f32_32x32x16_bf16 {acc}, {vr(g.v_wf+4*T,4)}, {vr(areg(i),4)}, {acc if i else 0}")
                if T + JIT < 5: rd_t(i, T + JIT)
                elif nxt is not None: rd_t(nxt, T + JIT - 5)
                if JIT > 1:
                    a(f"v_mfma_f32_32x32x16_bf16 {acc}, {vr(g.v_wf+4*T,4)}, {vr(areg(i),4)}, {acc if i else 0}")
            return
        g.vm.wait(("A", i), ("W", nxt))
        if HP and i < 32 and not PMASK: a(f"s_setprio {GPRIO}")
        for T in range(5):
            if PMASK and i < 32 and (T == 0 or (PMASK >> T & 1) != (PMASK >> (T - 1) & 1)): a(f"s_setprio {3 * (PMASK >> T & 1)}")
            g.lg.wait((i, T))
            acc = vr(g.v_acc + 16 * T, 16)
            if not ("nomm" in GX and 0 < i < 27): a(f"v_mfma_f32_32x32x16_bf16 {acc}, {vr(g.v_wf+4*T,4)}, {vr(areg(i),4)}, {acc if i else 0}")
            if nxt is not None and not ("nord" in GX and nxt < 27): rd_t(nxt, T)
        if HP and i < 32: a("s_setprio 3")
    def sync(st):
        g.vm.wait(("S", st))
        lds_arrive(a, SC_CNT + 32 + 4 * st, 2)
        lds_wait(a, f"G_sync{st}", SC_CNT + 32 + 4 * st, 4, 2, s_spin, s_t0, 1)
        g.lg.q = []
    g.setup2()
    a(f"v_subrev_u32 v{g.v_wa}, s{g.s_lds}, v{g.v_wa}")
    for m in range(5):
        a(f"v_add_u32 v1, {64*m}, v0")
        a(f"v_mul_u32_u24 v2, 0xcccd, v1")
        a(f"v_lshrrev_b32 v2, 22, v2")
        a(f"v_mul_u32_u24 v2, {16*1280}, v2")
        a(f"v_add_u32 v{v_wd2+m}, v2, v{g.v_wd+m}")
    a(f"s_lshr_b32 s{s_t0}, s{s_tt}, 2")
    a(f"v_mov_b32 v1, s{s_t0}")
    a(f"s_lshr_b32 s{s_t0}, s{s_i4}, 1")
    a(f"v_add_u32 v2, s{s_t0}, v0")
    flag_off(a, vfl, 1, 2, 3)
    a(f"v_mov_b32 v2, 14")
    flag_off(a, 1, 0, 2, 3)
    a("s_mov_b32 exec_lo, 0xffff")
    a("s_mov_b32 exec_hi, 0")
    poll(a, "G_pollkv", f"buffer_load_dword v2, v1, {WS}, 0 offen sc1", "v_cmp_gt_u32 vcc, 1, v2", 6)
    a("s_mov_b64 exec, -1")
    lds_wait(a, "G_wait", SC_CNT + 8, 8, 2, s_spin, s_t0, 1)
    kv(1); kv(2); landed(1); kv(3); landed(2); landed(3)
    a("s_cmp_eq_u32 s53, -1")
    a("s_cbranch_scc1 G_noh")
    h_store(" sc1", g.v_l16)
    publish(a, "G_pub", 0, 4, 3, WS_FL, 1)
    stamp(a, 4)
    a.label("G_noh")
    for st in range(NS0): load_stage(st)
    stamp(a, 8)
    a("s_mov_b64 exec, 7")
    poll(a, "G_pollh", f"buffer_load_dword v2, v{vfl}, {WS}, 0 offen sc1", "v_cmp_gt_u32 vcc, 1, v2", 4)
    a("s_mov_b64 exec, -1")
    g.vm.q = []
    stamp(a, 9)
    if STAMP: a("s_waitcnt lgkmcnt(0)")
    for i in range(4): load_a(i)
    for st in range(NS0, 3): load_stage(st)
    for i in range(4, 8): load_a(i)
    vo = vfl
    a(f"s_mul_i32 s{s_base}, s{s_tt}, {32*1280}")
    a(f"s_mul_i32 s{s_t0}, s{s_hg}, 320")
    a(f"s_add_u32 s{s_base}, s{s_base}, s{s_t0}")
    a(f"s_lshl_b32 s{s_t0}, s{s_w}, 4")
    a(f"s_add_u32 s{s_base}, s{s_base}, s{s_t0}")
    a(f"v_and_b32 v1, 31, v0")
    a(f"v_mul_u32_u24 v{vo}, 1280, v1")
    a(f"v_lshrrev_b32 v2, 5, v0")
    a(f"v_lshl_add_u32 v{vo}, v2, 3, v{vo}")
    a(f"v_mul_u32_u24 v{v_wa2}, 1280, v2")
    a(f"v_lshl_add_u32 v{v_wa2}, v1, 3, v{v_wa2}")
    a(f"v_mul_u32_u24 v1, 0xcccd, v0")
    a(f"v_lshrrev_b32 v1, 18, v1")
    a(f"v_mul_u32_u24 v2, 5, v1")
    a(f"v_sub_u32 v2, v0, v2")
    a(f"v_mul_u32_u24 v1, 1280, v1")
    a(f"v_lshl_add_u32 v{vx}, v2, 6, v1")
    a(f"s_mul_i32 s{s_t0}, s{s_w}, 5120")
    a(f"s_add_u32 s{s_t0}, s{s_t0}, {KVB}")
    a(f"v_add_u32 v{v_wa3}, s{s_t0}, v{g.v_wa}")
    for r in range(4): a(f"v_mov_b32 v{vx+4+r}, -1")
    if not HP: a(f"s_setprio {GPRIO}")
    KVAT = [int(x) for x in os.environ.get("KVAT", "0,2,4,6").split(",")]
    sync(0)
    for T in range(JIT or 5): rd_t(0, T)
    for st in range(7):
        if st in KVAT: kv(4 + KVAT.index(st))
        n = 4 if st < 6 else 3
        for j in range(n):
            i = 4 * st + j
            if JIT:
                mm(i, i + 1 if j < n - 1 else None)
                if j == 3:
                    sync(st + 1)
                    for T in range(JIT): rd_t(i + 1, T)
                    if st + 3 <= 6: load_stage(st + 3)
                    else: load_w(24 + st)
            else:
                if j == 3:
                    sync(st + 1)
                    if st + 3 <= 6: load_stage(st + 3)
                    else: load_w(24 + st)
                mm(i, i + 1 if i < 26 else None)
            if j == 1 and st in KVAT: landed(4 + KVAT.index(st))
        for i in range(4 * st + 8, min(4 * st + 12, 27)): load_a(i)
        if st == MARK:
            a(f"s_lshl_b32 s{s_t0}, s{s_lid}, 2")
            a(f"s_add_u32 s{s_t0}, s{s_t0}, s{s_w}")
            a(f"s_mul_i32 s{s_t0}, s{s_t0}, 2560")
            a(f"s_add_u32 s{s_t0}, s{s_t0}, {WS_O}")
            def mk(sc):
                for o in (0, 1024, 1536): a(f"buffer_store_dwordx4 {vr(vx+4,4)}, v{g.v_l16}, {WS}, s{s_t0} offen offset:{o}{sc}")
            two_ways(a, "G_mk", mk)
            for _ in range(3): g.vm.issue("R")
        if st == MARK + 2:
            g.vm.wait("R")
            publish(a, "G_pubr", 4, 4, s_lid, WS_FL + 32768, 1, value=f"s{s_delta}", vm=63, word=s_i4)
            g.lg.q = []
        if st == 2:
            a(f"s_and_b32 s{s_t0}, s{s_tt}, 7" if os.environ.get("BMAP", "4") == "2" else f"s_bfe_u32 s{s_t0}, s{s_tt}, 0x30002")
            a(f"s_mul_i32 s{s_t0}, s{s_t0}, {20*1280}")
            a(f"s_add_u32 s{s_t0}, s{s_t0}, s{s_woff2}")
            a(f"s_add_u32 s{s_t1}, s{s_t0}, {10*1280}")
            a(f"buffer_load_dword v{vx+2}, v{vx}, s[{SWO}:{SWO+3}], s{s_t0} offen"); g.vm.issue("P")
            a(f"buffer_load_dword v{vx+3}, v{vx}, s[{SWO}:{SWO+3}], s{s_t1} offen"); g.vm.issue("P")
        if st == 4:
            g.vm.wait("P", "R")
            for T in range(5):
                a(f"buffer_load_dwordx2 {vr(vx+2*T,2)}, v{vo}, s[{SX}:{SX+3}], s{s_base} offen offset:{64*T}"); g.vm.issue("X")
        if st == 5:
            a(f"s_lshl_b32 s{s_t0}, s{s_tt}, 2")
            a(f"s_add_u32 s{s_t0}, s{s_t0}, s{s_w}")
            a(f"s_lshl_b32 s{s_t0}, s{s_t0}, 7")
            a(f"s_add_u32 s{s_t0}, s{s_t0}, s{s_i4}")
            a(f"s_add_u32 s{s_cch}, s{s_t0}, {WS_FL + 32768}")
            a(f"buffer_load_dword v1, off, {WS}, s{s_cch} sc1"); g.vm.issue("M")
        if st == 6:
            g.vm.wait("M")
            a("v_cmp_gt_u32 vcc, 1, v1")
            a("s_cmp_eq_u64 vcc, 0")
            a("s_cbranch_scc1 G_pollm_ok")
            poll(a, "G_pollm", f"buffer_load_dword v1, off, {WS}, s{s_cch} sc1", "v_cmp_gt_u32 vcc, 1, v1", 8)
            a(f"v_readfirstlane_b32 s{s_t0}, v1")
            a(f"s_cmp_lg_u32 s{s_t0}, s{s_delta}")
            a("s_cbranch_scc1 G_novote")
            if FASTO: lds_arrive(a, SC_K + 36, 2)
            a.label("G_novote")
        if os.environ.get("STGST"):
            stamp(a, [1, 3, 4, 6, 8, 10, 12][st]); a("s_waitcnt lgkmcnt(0)")
        elif st in (0, 3, 6):
            stamp(a, {0: 10, 3: 11, 6: 12}[st])
            if STAMP: a("s_waitcnt lgkmcnt(0)")
    assert MARK + 2 <= KVAT[-1] - 1 and MARK < 4
    pk = g.v_act
    assert 7 not in KVAT
    lds_arrive(a, SC_CNT + 32 + 28, 2)
    a(f"s_lshl_b32 s{s_t0}, s{s_w}, 2")
    a(f"s_cmp_eq_u32 s{s_t0}, s{s_i4}")
    a("s_cbranch_scc1 G_keep")
    a(f"s_lshl_b32 s{s_t0}, s{s_lid}, 2")
    a(f"s_add_u32 s{s_t0}, s{s_t0}, s{s_w}")
    a(f"s_mul_i32 s{s_t0}, s{s_t0}, 10240")
    a(f"s_add_u32 s{s_t0}, s{s_t0}, {WS_P}")
    for k in range(40): a(f"v_cvt_pk_bf16_f32 v{pk+k}, v{g.v_acc+2*k}, v{g.v_acc+2*k+1}")
    def snd(sc):
        for k in range(10):
            if k in (4, 8): a(f"s_add_u32 s{s_t0}, s{s_t0}, 4096")
            a(f"buffer_store_dwordx4 {vr(pk+4*k,4)}, v{g.v_l16}, {WS}, s{s_t0} offen offset:{(k%4)*1024}{sc}")
    two_ways(a, "G_snd", snd)
    a(f"s_lshl_b32 s{s_t0}, s{s_lid}, 7")
    a(f"s_lshl_b32 s{s_t1}, s{s_w}, 2")
    a(f"s_add_u32 s{s_t0}, s{s_t0}, s{s_t1}")
    a(f"s_add_u32 s{s_t0}, s{s_t0}, {WS_FL + 32768}")
    a("v_mov_b32 v1, 1")
    a(f"s_lshl_b32 s{s_slot}, s{s_slot}, 2")
    a(f"s_add_u32 s{s_slot}, s{s_slot}, s{s_hg}")
    a(f"s_lshl_b32 s{s_t1}, s{s_slot}, 7")
    a(f"s_add_u32 s{s_t1}, s{s_t1}, s{s_i4}")
    a(f"s_add_u32 s{s_kvg}, s{s_t1}, {WS_FL + 32768}")
    a("s_waitcnt vmcnt(0)")
    a("s_mov_b64 exec, 1")
    two_ways(a, "G_sfl", lambda sc: a(f"buffer_store_dword v1, off, {WS}, s{s_t0}{sc}"))
    a("s_mov_b64 exec, -1")
    if os.environ.get("STGST"): stamp(a, 11)
    poll(a, "G_pollr", f"buffer_load_dword v1, off, {WS}, s{s_kvg} sc1", "v_cmp_gt_u32 vcc, 1, v1", 3)
    a(f"s_mul_i32 s{s_t0}, s{s_slot}, 40960")
    a(f"s_mul_i32 s{s_t1}, s{s_i4}, 2560")
    a(f"s_add_u32 s{s_t0}, s{s_t0}, s{s_t1}")
    a(f"s_add_u32 s{s_t0}, s{s_t0}, {WS_P}")
    for k in range(10):
        if k in (4, 8): a(f"s_add_u32 s{s_t0}, s{s_t0}, 4096")
        a(f"buffer_load_dwordx4 {vr(pk+4*k,4)}, v{g.v_l16}, {WS}, s{s_t0} offen offset:{(k%4)*1024} sc1")
    a.label("G_keep")
    lds_wait(a, "G_sync7", SC_CNT + 32 + 28, 4, 2, s_spin, s_t0, 1)
    g.lg.q = []
    a(f"v_add_u32 v{g.v_wa}, s{g.s_lds}, v{g.v_wa}")
    load_w(27)
    lds_wait(a, "G_alta", SCW + 20, NW_, 2, s_spin, s_t0, 2)
    load_w(31)
    a(f"s_lshl_b32 s{s_t0}, s{s_tt}, 2")
    a(f"s_add_u32 s{s_t0}, s{s_t0}, s{s_w}")
    a(f"s_mul_i32 s{g.s_aoff}, s{s_t0}, 10240")
    a(f"s_add_u32 s{g.s_aoff}, s{g.s_aoff}, {WS_O}")
    a(f"s_lshl_b32 s{s_t1}, s{s_w}, 2")
    a(f"s_cmp_eq_u32 s{s_t1}, s{s_i4}")
    a("s_cbranch_scc1 G_keep3")
    a(f"s_mov_b32 s{s_t1}, 0xffff0000")
    for k in range(10):
        if k % 5 == 0: a(f"s_waitcnt vmcnt({15-k})")
        for r in range(4):
            a(f"v_lshlrev_b32 v{g.v_acc+8*k+2*r}, 16, v{pk+4*k+r}")
            a(f"v_and_b32 v{g.v_acc+8*k+2*r+1}, s{s_t1}, v{pk+4*k+r}")
    a.label("G_keep3")
    rd_w(27); g.lg.drain(); load_w(30)
    if not TAILST: stamp(a, 5)
    lds_wait(a, "G_alt0", SCW + 24, NW_, 2, s_spin, s_t0, 2)
    load_w(32)
    if ALT1 == 0:
        lds_wait(a, "G_alt1", SCW + 28, NW_, 2, s_spin, s_t0, 2)
        load_w(33)
    if TAILST: stamp(a, 5)
    lds_wait(a, "G_trig0", SC_K + 32, TRIG[0], 2, s_spin, s_t0, 1)
    if not HP: a(f"s_setprio {os.environ.get('TPRIO', '0')}")
    def o_poll(half):
        b = areg(27 + 5 * half)
        so = g.s_aoff if half == 0 else s_a0
        ld = [f"buffer_load_dwordx4 {vr(b+4*j,4)}, v{g.v_l16}, {WS}, s{so} offen offset:{j*1280} sc1" for j in range(4)]
        ld += [f"buffer_load_dwordx2 {vr(b+16+2*j,2)}, v{v_wa2}, {WS}, s{so} offen offset:{1024+2560*j} sc1" for j in range(2)]
        ck = [f"v_max3_u32 v{1+k}, v{b+3*k}, v{b+3*k+1}, v{b+3*k+2}" for k in range(3)]
        ck += [f"v_max3_u32 v{1+k}, v{1+k}, v{b+9+2*k}, v{b+10+2*k}" for k in range(3)]
        ck += [f"v_max3_u32 v1, v1, v{b+15}, v{b+16}", f"v_max3_u32 v2, v2, v{b+17}, v{b+18}", f"v_max_u32 v3, v3, v{b+19}",
               "v_max3_u32 v1, v1, v2, v3", "v_cmp_eq_u32 vcc, -1, v1"]
        return "\n".join(ld), "\n".join(ck)
    a(f"s_add_u32 s{s_a0}, s{g.s_aoff}, 5120")
    poll(a, "G_pollo0", *o_poll(0), OSL[0])
    g.vm.q = []
    if TAILST: stamp(a, 6); a("s_waitcnt lgkmcnt(0)")
    for i in range(27, 32):
        mm(i, i + 1)
        if 28 <= i <= 30: load_w(i + 6)
    if ALT1:
        lds_wait(a, "G_alt1", SCW + 28, NW_, 2, s_spin, s_t0, 1)
        load_w(33)
    stamp(a, 2)
    lds_wait(a, "G_trig1", SC_K + 32, TRIG[1], 2, s_spin, s_t0, 1)
    g.lg.q = []
    poll(a, "G_pollo1", *o_poll(1), OSL[1])
    g.vm.q = []
    a("s_setprio 3")
    stamp(a, 13)
    if STAMP: a("s_waitcnt lgkmcnt(0)")
    for i in range(32, 37): mm(i, i + 1 if i < 36 else None)
    stamp(a, 14)
    xf = g.v_act
    for T in range(5):
        a(f"v_lshlrev_b32 v{xf+4*T}, 16, v{vx+2*T}")
        a(f"v_and_b32 v{xf+4*T+1}, 0xffff0000, v{vx+2*T}")
        a(f"v_lshlrev_b32 v{xf+4*T+2}, 16, v{vx+2*T+1}")
        a(f"v_and_b32 v{xf+4*T+3}, 0xffff0000, v{vx+2*T+1}")
    for q in range(4):
        a(f"s_sub_u32 s{s_t0}, {q + 3}, s{s_w}")
        a(f"s_and_b32 s{s_t0}, s{s_t0}, 3")
        a(f"s_cmp_eq_u32 s{s_t0}, 3")
        a(f"s_cbranch_scc1 G_own{q}")
        a(f"s_mul_i32 s{s_t0}, s{s_t0}, 5120")
        a(f"s_add_u32 s{s_t0}, s{s_t0}, s{g.s_lds}")
        a(f"v_add_u32 v1, s{s_t0}, v{g.v_l16}")
        for T in range(5): a(f"ds_write_b128 v1, {vr(g.v_acc+16*T+4*q,4)} offset:{T*1024}")
        a(f"s_branch G_nxt{q}")
        a.label(f"G_own{q}")
        for T in range(5):
            for h in range(2): a(f"v_pk_add_f32 {vr(xf+4*T+2*h,2)}, {vr(xf+4*T+2*h,2)}, {vr(g.v_acc+16*T+4*q+2*h,2)}")
        a.label(f"G_nxt{q}")
    for k in range(3):
        a(f"s_add_u32 s{s_t0}, s{s_w}, {3 - k}")
        a(f"s_and_b32 s{s_t0}, s{s_t0}, 3")
        a(f"s_mul_i32 s{s_t0}, s{s_t0}, {PART}")
        a(f"s_add_u32 s{s_t0}, s{s_t0}, {STG + k*5120}")
        a(f"v_add_u32 v{4+k}, s{s_t0}, v{g.v_l16}")
    a("s_waitcnt lgkmcnt(0)")
    if TAILST: stamp(a, 10)
    a("s_barrier")
    if TAILST: stamp(a, 11); a("s_waitcnt lgkmcnt(0)")
    for T in range(5):
        for k in range(3):
            a(f"ds_read_b128 {vr(g.v_acc+16*T+4*k,4)}, v{4+k} offset:{T*1024}"); g.lg.issue(T)
    for T in range(5): fin_tile(a, g, T, xf, vo)
    if STAMP:
        if TAILST: stamp(a, 9)
        a("s_waitcnt vmcnt(0)"); stamp(a, 7); stamp(a, 15, True)
        a(f"s_add_u32 s{s_w}, s{s_w}, 8")
        stamp_flush(a, 1, SWS, s_w, 12, 16, gsel=[(9, False), (10, False), (12, False), (13, False), (14, False), (15, False)], goff=8)
    if os.environ.get("PADT"):
        a.label("G_pad")
        a("s_memrealtime s[68:69]")
        a("s_waitcnt lgkmcnt(0)")
        a("s_sub_u32 s68, s68, s66")
        a(f"s_cmp_lt_u32 s68, {os.environ['PADT']}")
        a("s_cbranch_scc1 G_pad")
    a("s_endpgm")
    return vx + 10

def fin_tile(a, g, T, xf, vo):
    b = g.v_acc + 16 * T
    g.lg.wait(T)
    for h in range(2):
        a(f"v_pk_add_f32 {vr(b+2*h,2)}, {vr(b+2*h,2)}, {vr(b+4+2*h,2)}")
        a(f"v_pk_add_f32 {vr(b+8+2*h,2)}, {vr(b+8+2*h,2)}, {vr(xf+4*T+2*h,2)}")
    for h in range(2):
        a(f"v_pk_add_f32 {vr(b+2*h,2)}, {vr(b+2*h,2)}, {vr(b+8+2*h,2)}")
    a(f"v_cvt_pk_bf16_f32 v{b}, v{b}, v{b+1}")
    a(f"v_cvt_pk_bf16_f32 v{b+1}, v{b+2}, v{b+3}")
    a(f"buffer_store_dwordx2 {vr(b,2)}, v{vo}, s[{SOUT}:{SOUT+3}], s{s_base} offen offset:{64*T}{os.environ.get('OUTP', '')}")

def gen_f(a, name="parallel_sum__grouped_kv_mqa__dense_activation_relu__prompt_kernel"):
    kernel_header(a, name)
    a("s_cmp_ge_u32 s2, 256")
    a("s_cbranch_scc1 F_end")
    stamp(a, 0, True); stamp(a, 1)
    if os.environ.get("PADT"): a("s_memrealtime s[66:67]")
    BMAP = int(os.environ.get("BMAP", "4"))
    if BMAP == 0: a(f"s_mov_b32 s{s_lid}, s2")
    elif BMAP == 1:
        a(f"s_bfe_u32 s{s_lid}, s2, 0x20001")
        a(f"s_lshl_b32 s{s_lid}, s{s_lid}, 4")
        a(f"s_lshr_b32 s35, s2, 4")
        a(f"s_add_u32 s{s_lid}, s{s_lid}, s35")
        a(f"s_lshl_b32 s{s_lid}, s{s_lid}, 1")
        a(f"s_and_b32 s35, s2, 1")
        a(f"s_add_u32 s{s_lid}, s{s_lid}, s35")
        a(f"s_lshl_b32 s{s_lid}, s{s_lid}, 1")
        a(f"s_bfe_u32 s35, s2, 0x10003")
        a(f"s_add_u32 s{s_lid}, s{s_lid}, s35")
    elif BMAP == 3:
        a(f"s_lshr_b32 s{s_lid}, s2, 4")
        a(f"s_lshl_b32 s{s_lid}, s{s_lid}, 3")
        a(f"s_and_b32 s35, s2, 7")
        a(f"s_add_u32 s{s_lid}, s{s_lid}, s35")
        a(f"s_lshl_b32 s{s_lid}, s{s_lid}, 1")
        a(f"s_bfe_u32 s35, s2, 0x10003")
        a(f"s_add_u32 s{s_lid}, s{s_lid}, s35")
    elif BMAP == 4:
        a(f"s_and_b32 s{s_lid}, s2, 1")
        a(f"s_lshl_b32 s{s_lid}, s{s_lid}, 3")
        a(f"s_lshr_b32 s35, s2, 5")
        a(f"s_add_u32 s{s_lid}, s{s_lid}, s35")
        a(f"s_lshl_b32 s{s_lid}, s{s_lid}, 2")
        a(f"s_bfe_u32 s35, s2, 0x20001")
        a(f"s_add_u32 s{s_lid}, s{s_lid}, s35")
        a(f"s_lshl_b32 s{s_lid}, s{s_lid}, 2")
        a(f"s_bfe_u32 s35, s2, 0x20003")
        a(f"s_add_u32 s{s_lid}, s{s_lid}, s35")
    else:
        a(f"s_and_b32 s{s_lid}, s2, 7")
        a(f"s_lshl_b32 s{s_lid}, s{s_lid}, 5")
        a(f"s_lshr_b32 s35, s2, 3")
        a(f"s_add_u32 s{s_lid}, s{s_lid}, s35")
    if STAMP == 3: a("s_mov_b32 s72, 0")
    def clear_cnt(a):
        a("v_lshlrev_b32 v1, 2, v0")
        a(f"v_add_u32 v1, {SC_CNT}, v1")
        a("v_mov_b32 v2, 0")
        a("ds_write_b32 v1, v2")
        a("ds_write_b32 v1, v2 offset:256")
        a("v_cmp_lt_u32 vcc, 6, v0")
        a("v_cndmask_b32 v2, 0, 4, vcc")
        a("ds_write_b32 v1, v2 offset:512")
        a("s_waitcnt lgkmcnt(0)")
    def start_hook(a):
        clear_cnt(a)
        attn_addr(a)
        if TLBW:
            a(f"s_cmp_lg_u32 s{s_w}, 5")
            a("s_cbranch_scc1 F_notlb")
            for _ in range(TLBW - 1): a("s_barrier")
            a(f"v_lshlrev_b32 v1, {TLBS}, v0")
            a(f"v_add_u32 v1, 0x100, v1")
            for ptr, n in ((56, 1728 * 1280), (58, 640 * 1280), (60, 2048 * 1280)):
                srd(a, 16, ptr, n)
                a(f"buffer_load_dword v2, v1, s[16:19], 0 offen")
            for k in range((WS_SIZE >> TLBS) // 64 + 1):
                a(f"s_mov_b32 s35, {k * 64 << TLBS}")
                a(f"buffer_load_dword v2, v1, {WS}, s35 offen sc1")
            for _ in range(10 - (TLBW - 1)): a("s_barrier")
            a("s_waitcnt vmcnt(0)")
            a("s_branch F_attn")
            a.label("F_notlb")
    def pre_ba(a): attn_addr(a)
    def done_help(a): a("s_branch F_fetch")
    def done_stats(a): a("s_branch F_dry" if DRY else "s_branch F_attn")
    def done_comp(a): a("s_branch F_pub")
    def spare(a):
        ka2.produce_stats(a)
        clear_cnt(a)
        attn_addr(a)
        a(f"s_cmp_lg_u32 s{s_w}, 0")
        a("s_cbranch_scc1 F_sp1")
        ka2.dbg_check(a, "F_dbg")
        a.label("F_sp1")
        a("s_barrier")
        a(f"s_cmp_ge_u32 s{s_w}, 8")
        a("s_cbranch_scc1 F_gemm0")
        a(f"s_cmp_ge_u32 s{s_w}, 4")
        a("s_cbranch_scc1 F_dry" if DRY else "s_cbranch_scc1 F_attn")
    phase_a(a, done_help, done_stats, done_comp, spare, start_hook, pre_ba)
    a.label("F_fetch")
    fetch(a)
    a.label("F_attn")
    attention(a)
    if DRY:
        a.label("F_dry")
        a(f"s_cmp_eq_u32 s{s_w}, 4")
        a("s_cbranch_scc1 F_attn")
        a("s_mov_b64 exec, 0")
        a(f"s_mov_b32 s{s_c}, 7")
        a(f"s_cmp_eq_u32 s{s_w}, 5")
        a("s_cbranch_scc1 B_loop")
        a(f"s_cmp_eq_u32 s{s_w}, 6")
        a("s_cbranch_scc1 B_u3")
        a("s_branch B_synced")
        a.label("F_dryret")
        a("s_mov_b64 exec, -1")
        a("s_nop 7")
        a("s_nop 7")
        a("s_branch F_attn")
    a.label("F_pub")
    stamp(a, 3)
    publish(a, "F_pub2", 0, 4, 3, WS_FL, 1)
    stamp(a, 4)
    lds_wait(a, "F_all", SC_CNT, 4, 2, s_spin, s_t0)
    a.label("F_gemm0")
    a("s_mov_b32 s53, -1")
    a.label("F_gemm")
    nv = gemm(a)
    a.label("F_end")
    a("s_endpgm")
    assert nv <= 168, nv
    return dict(name=name, grid=256, block=768, lds=LDS_A, vgpr=168, sgpr=102 if STAMP else 72, single=True)
```

```python
import sys, importlib
from common import *

HEADER = open("parallel_sum__grouped_kv_mqa__dense_activation_relu__prompt.s.ref").read().split("; Override launch")[0]

def build(parts, path):
    a = Asm()
    infos = [p(a) for p in parts]
    out = HEADER
    for i in infos:
        if i.get("single") and not os.environ.get("LIST"):
            out += f"; @launch grid=({i['grid']},1,1) block=({i['block']},1,1) lds={i['lds']}\n"
            continue
        out += f"; @launch kernel={i['name']} grid=({i['grid']},1,1) block=({i['block']},1,1) lds={i['lds']}\n"
    if STAMP: out += "; GMAP=" + ("team" if int(os.environ.get("TEAM", "0")) else os.environ.get("GMAP", "9abf0123cde45678")) + "\n; AMAP=" + os.environ.get("AMAP", "2") + "\n"
    out += '.amdgcn_target "amdgcn-amd-amdhsa--gfx950"\n.text\n'
    out += a.text() + "\n"
    out += '.section .rodata,"a"\n'
    for i in infos:
        out += kernel_desc(i["name"], i["vgpr"], i["sgpr"]) + "\n"
    open(path, "w").write(out)
    print("wrote", path, "instrs", len(a.ins), "pads", a.pads)

if __name__ == "__main__":
    from kf import gen_f
    parts = [gen_f]
    if os.environ.get("PRE0"):
        def ge(a):
            kernel_header(a, "e0_kernel"); a("s_endpgm")
            return dict(name="e0_kernel", grid=int(os.environ["PRE0"]), block=64, lds=0, vgpr=8, sgpr=16)
        parts = [ge, gen_f]
    build(parts, sys.argv[1] if len(sys.argv) > 1 else "out.s")
```

```python
from common import *

SLOT = 40960
LA = int(os.environ.get('LA', '2'))
SCR = 159744
SC_NM, SC_RS, SC_CS = SCR, SCR + 512, SCR + 1024
LDS_A = SCR + 4096
SC_CNT = SCR + 3072
ST = ' sc1'
ROT = int(os.environ.get('ROT', '0'))
NSB = 0
GATH = int(os.environ.get('GATH', '8'))
PD = int(os.environ.get('PD', '3'))
GMAP = [int(c, 16) for c in os.environ.get('GMAP', '9aefb012c345d678')]
TEAM = int(os.environ.get('TEAM', '0'))
GD = int(os.environ.get('GD', '5'))
SDOT = int(os.environ.get('SDOT', '3'))
HOLDH = int(os.environ.get('HOLDH', '1'))
LATEBIT = os.environ.get('LATEBIT', '1')
AX = os.environ.get('AX', '')
PF = int(os.environ.get('PF', '0'))

SX, SW, SO, SW2 = 4, 8, 12, 16
s_w, s_rb, s_g = 32, 33, 34
s_it, s_slot, s_xoff, s_woff, s_wstep = 35, 36, 37, 38, 39
s_m0x, s_m0w, s_delta, s_relu, s_scale, s_t0, s_t1, s_out, s_dslot, s_cslot, s_ch, s_xbase, s_stride, s_col = range(40, 54)
s_tab = 54

ROLES = {
    "h": (3, 384, 3), "q": (2, 256, 2), "kv": (1, 64, 1)}

def w_read_addr(a, role, dst, s_half, tmp=1):
    NTW, RB, _ = ROLES[role]
    t = tmp
    a(f"v_lshrrev_b32 v{t}, 5, v0")
    a(f"v_bfe_u32 v{t+1}, v0, 2, 2")
    a(f"v_lshl_add_u32 v{t}, v{t}, 3, v{t+1}")
    a(f"v_mul_u32_u24 v{t}, {RB}, v{t}")
    a(f"v_bfe_u32 v{t+2}, v0, 4, 1")
    a(f"v_lshl_add_u32 v{t}, v{t+2}, 5, v{t}")
    a(f"v_and_b32 v{t+2}, 3, v0")
    a(f"v_lshl_add_u32 v{t}, v{t+2}, 3, v{t}")
    a(f"v_add_u32 v{t}, {16384 + LA*SLOT}, v{t}")
    if role == "kv":
        a(f"s_lshl_b32 s{s_t0}, s{s_half}, 12")
        a(f"v_add_u32 v{dst}, s{s_t0}, v{t}")
        return
    if role == "h": a(f"v_lshrrev_b32 v{t+1}, 1, v{t+1}")
    a(f"s_mul_i32 s{s_t0}, s{s_half}, {NTW}")
    for T in range(NTW):
        a(f"s_add_u32 s{s_t1}, s{s_t0}, {T}")
        a(f"v_xor_b32 v{t+2}, s{s_t1}, v{t+1}")
        a(f"v_lshl_add_u32 v{dst+T}, v{t+2}, 6, v{t}")

def slot_advance(regs):
    L = [f"s_cmp_eq_u32 s{s_slot}, {LA*SLOT}",
         f"s_cselect_b32 s{s_delta}, {(-LA*SLOT) & 0xffffffff}, s{s_cslot}",
         f"s_add_u32 s{s_slot}, s{s_slot}, s{s_delta}"]
    return L + [f"v_add_u32 v{r}, s{s_delta}, v{r}" for r in regs]

def loader(a, role, done, pre_ba=None):
    NTW, RB, NW = ROLES[role]
    NW *= 2
    ND = 4 + NW
    v_xd, v_wd = 4, 8
    a(f"v_lshrrev_b32 v1, 3, v0")
    a(f"s_lshl_b32 s{s_t0}, s{s_w}, 5")
    a(f"v_add_u32 v1, s{s_t0}, v1")
    a(f"v_mul_u32_u24 v1, 1280, v1")
    a(f"v_and_b32 v2, 7, v0")
    a(f"v_lshrrev_b32 v3, 4, v0")
    a(f"v_xor_b32 v2, v2, v3")
    a(f"v_lshl_add_u32 v{v_xd}, v2, 4, v1")
    a(f"v_xor_b32 v2, 4, v2")
    a(f"v_lshl_add_u32 v{v_xd+1}, v2, 4, v1")
    a(f"v_add_u32 v{v_xd+1}, {10240-1024}, v{v_xd+1}")
    a(f"v_add_u32 v{v_xd+2}, {2*(10240-1024)}, v{v_xd}")
    a(f"v_add_u32 v{v_xd+3}, {2*(10240-1024)}, v{v_xd+1}")
    a(f"s_lshl_b32 s{s_m0x}, s{s_w}, 12")
    def dma_x():
        a(f"s_and_b32 s{s_ch}, s{s_tab}, 15")
        a(f"s_lshr_b64 s[{s_tab}:{s_tab+1}], s[{s_tab}:{s_tab+1}], 4")
        a(f"s_lshl_b32 s{s_xoff}, s{s_ch}, 7")
        a(f"s_add_u32 s{s_xoff}, s{s_xoff}, s{s_xbase}")
        a(f"s_add_u32 m0, s{s_dslot}, s{s_m0x}")
        a(f"s_mul_i32 s{s_woff}, s{s_ch}, s{s_wstep}")
        for e in range(4):
            a(f"buffer_load_dwordx4 v{v_xd+e}, s[{SX}:{SX+3}], s{s_xoff} offen offset:{e*1024} lds")
    def dma_w():
        a(f"s_add_u32 m0, s{s_dslot}, s{s_m0w}")
        if role == "kv":
            a(f"buffer_load_dwordx4 v{v_wd}, s[{SW}:{SW+3}], s{s_woff} offen lds")
            a(f"s_add_u32 m0, m0, 4096")
            a(f"buffer_load_dwordx4 v{v_wd}, s[{SW2}:{SW2+3}], s{s_woff} offen lds")
        else:
            for m in range(NW):
                if m == 4: a(f"s_add_u32 m0, m0, 4096")
                a(f"buffer_load_dwordx4 v{v_wd+m}, s[{SW}:{SW+3}], s{s_woff} offen offset:{(m%4)*1024} lds")
    a(f"s_mov_b32 s{s_dslot}, 0")
    dma_x()
    if role == "kv":
        a(f"s_lshl_b32 s{s_m0w}, s{s_w}, 10")
        a(f"s_add_u32 s{s_m0w}, s{s_m0w}, 16384")
        a(f"v_lshrrev_b32 v1, 2, v0")
        a(f"s_lshl_b32 s{s_t0}, s{s_w}, 4")
        a(f"v_add_u32 v1, s{s_t0}, v1")
        a(f"v_mul_u32_u24 v1, 40, v1")
        a(f"v_and_b32 v2, 3, v0")
        a(f"v_lshl_add_u32 v{v_wd}, v2, 4, v1")
    else:
        PR = RB // 16
        a(f"s_mul_i32 s{s_m0w}, s{s_w}, {NW*1024}")
        a(f"s_add_u32 s{s_m0w}, s{s_m0w}, 16384")
        a(f"s_lshl_b32 s{s_t0}, s{s_w}, 4")
        a(f"s_mul_i32 s{s_t0}, s{s_t0}, s{s_stride}")
        a(f"s_add_u32 s{s_t0}, s{s_t0}, s{s_col}")
        for m in range(NW // 2):
            a(f"v_add_u32 v1, {64*m}, v0")
            if PR == 16:
                a(f"v_lshrrev_b32 v2, 4, v1")
                a(f"v_and_b32 v3, 15, v1")
                a(f"v_and_b32 v1, 3, v2")
            else:
                a(f"v_mul_u32_u24 v2, 0xaaab, v1")
                a(f"v_lshrrev_b32 v2, 20, v2")
                a(f"v_mul_u32_u24 v3, 24, v2")
                a(f"v_sub_u32 v3, v1, v3")
                a(f"v_bfe_u32 v1, v2, 1, 1")
            a(f"v_lshlrev_b32 v1, 2, v1")
            a(f"v_xor_b32 v3, v3, v1")
            a(f"v_mul_lo_u32 v2, v2, s{s_stride}")
            a(f"v_lshl_add_u32 v2, v3, 4, v2")
            a(f"v_add_u32 v{v_wd+m}, s{s_t0}, v2")
        stride = 3456 if role == "h" else 1280
        for m in range(NW // 2, NW):
            a(f"v_add_u32 v{v_wd+m}, {8*stride - (m%4)*1024}, v{v_wd+m-NW//2}")
        for m in range(1, NW // 2): a(f"v_subrev_u32 v{v_wd+m}, {m*1024}, v{v_wd+m}")
    dma_w()
    for c in range(1, LA):
        a(f"s_mov_b32 s{s_dslot}, {c*SLOT}")
        dma_x(); dma_w()
    stamp(a, 2)
    a(f"s_mov_b32 s{s_it}, 0")
    a(f"s_mov_b32 s{s_dslot}, {LA*SLOT}")
    a.label(f"AL_loop_{role}")
    a(f"s_waitcnt vmcnt({(LA-1)*ND})")
    a("s_barrier")
    if "nodma" not in AX: dma_x(); dma_w()
    a(f"s_add_u32 s{s_dslot}, s{s_dslot}, s{s_cslot}")
    a(f"s_cmp_eq_u32 s{s_dslot}, {(LA+1)*SLOT}")
    a(f"s_cselect_b32 s{s_dslot}, 0, s{s_dslot}")
    a(f"s_add_u32 s{s_it}, s{s_it}, 1")
    a(f"s_cmp_lt_u32 s{s_it}, {10-LA}")
    a(f"s_cbranch_scc1 AL_loop_{role}")
    for k in range(LA):
        if k == LA - 1 and pre_ba: pre_ba(a)
        a(f"s_waitcnt vmcnt({(LA-1-k)*ND})")
        a("s_barrier")
    stamp(a, 3)
    done(a)

SDBG = 16
def dbg_check(a, name, between=None):
    srd(a, SDBG, 62, 256)
    a("v_lshlrev_b32 v1, 2, v0")
    a("s_mov_b32 exec_lo, 0xffff")
    a("s_mov_b32 exec_hi, 0")
    poll(a, name, f"buffer_load_dword v2, v1, s[{SDBG}:{SDBG+3}], 0 offen sc1", "v_cmp_ne_u32 vcc, 1, v2", 8, between=between)
    a("s_mov_b64 exec, -1")

def idle(a, done):
    a(f"s_cmp_eq_u32 s{s_w}, 4")
    a("s_cbranch_scc1 AI_w4")
    for it in range(10):
        a("s_barrier")
        if it in (0, 4): stamp(a, {0: 4, 4: 6}[it])
    done(a)
    a.label("AI_w4")
    a("s_setprio 3")
    bar = lambda: a("s_barrier")
    for it in range(GD): bar()
    dbg_check(a, "AI_dbg", bar)
    for it in range(GD + 1, GATH): bar()
    a(f"s_lshl_b32 s{s_t0}, s{s_rb}, 10")
    a(f"s_add_u32 s{s_t0}, s{s_t0}, {WS_STAT}")
    a(f"v_lshlrev_b32 v1, 3, v0")
    O = f"s[{SO}:{SO+3}]"
    poll(a, "AI_stat", f"buffer_load_dwordx2 v[4:5], v1, {O}, s{s_t0} offen sc1\nbuffer_load_dwordx2 v[6:7], v1, {O}, s{s_t0} offen offset:512 sc1",
         "v_min_u32 v2, v5, v7\nv_cmp_eq_u32 vcc, 0, v2", 2, between=bar)
    a(f"v_lshlrev_b32 v1, 2, v0")
    a(f"v_add_u32 v1, {SC_NM}, v1")
    a(f"v_mul_f32 v5, s{s_scale}, v5")
    a(f"v_mul_f32 v7, s{s_scale}, v7")
    a(f"ds_write_b32 v1, v4")
    a(f"ds_write_b32 v1, v6 offset:256")
    a(f"ds_write_b32 v1, v5 offset:512")
    a(f"ds_write_b32 v1, v7 offset:768")
    a("s_waitcnt lgkmcnt(0)")
    stamp(a, 3); stamp(a, 4); stamp(a, 6)
    for it in range(GATH + 1, 10): bar()
    a("s_setprio 0")
    done(a)

def clear_words(a):
    O = f"s[{SO}:{SO+3}]"
    for r in range(4, 8): a(f"v_mov_b32 v{r}, 0")
    a(f"v_lshlrev_b32 v1, 4, v0")
    a(f"s_lshl_b32 s{s_t0}, s{s_rb}, 10")
    a(f"s_add_u32 s{s_t0}, s{s_t0}, {WS_STAT}")
    a(f"buffer_store_dwordx4 v[4:7], v1, {O}, s{s_t0} offen sc1")
    a(f"v_lshlrev_b32 v1, 7, v0")
    a(f"s_lshl_b32 s{s_t0}, s{s_rb}, 12")
    a(f"s_add_u32 s{s_t0}, s{s_t0}, {WS_FL}")
    a("s_mov_b32 exec_hi, 0")
    a(f"buffer_store_dwordx4 v[4:7], v1, {O}, s{s_t0} offen sc1")
    srd(a, SDBG, 62, 256)
    a(f"v_mov_b32 v3, 1")
    a(f"s_lshl_b32 s{s_t0}, s{s_rb}, 2")
    stamp(a, 5)
    a("s_waitcnt vmcnt(0)")
    stamp(a, 6)
    a("s_mov_b64 exec, 1")
    a(f"buffer_store_dword v3, v4, s[{SDBG}:{SDBG+3}], s{s_t0} offen sc1")
    a("s_mov_b64 exec, -1")
    if STAMP: a("s_waitcnt vmcnt(0)")
    stamp(a, 3)

def produce_stats(a):
    O = f"s[{SO}:{SO+3}]"
    a(f"s_cmp_ge_u32 s{s_w}, 8")
    a("s_cbranch_scc1 AP_clear")
    a(f"v_lshrrev_b32 v1, 3, v0")
    a(f"s_lshl_b32 s{s_t0}, s{s_w}, 4")
    a(f"v_add_u32 v1, s{s_t0}, v1")
    a(f"v_mul_u32_u24 v1, 1280, v1")
    a(f"v_and_b32 v2, 7, v0")
    a(f"v_lshl_add_u32 v1, v2, 4, v1")
    a(f"s_add_u32 s{s_t0}, s{s_xbase}, 10240")
    XR, AS = 16, 8
    def ld(c):
        a(f"s_and_b32 s{s_ch}, s{s_tab}, 15")
        a(f"s_lshr_b64 s[{s_tab}:{s_tab+1}], s[{s_tab}:{s_tab+1}], 4")
        a(f"s_lshl_b32 s{s_ch}, s{s_ch}, 7")
        a(f"s_add_u32 s{s_xoff}, s{s_ch}, s{s_xbase}")
        a(f"s_add_u32 s{s_woff}, s{s_ch}, s{s_t0}")
        for e in range(2):
            a(f"buffer_load_dwordx4 {vr(XR+8*c+4*e,4)}, v1, s[{SX}:{SX+3}], s{s_woff if e else s_xoff} offen")
    for c in range(PD): ld(c)
    a(f"s_mov_b32 s{s_relu}, 0x3f803f80")
    for r in range(AS, AS + 8): a(f"v_mov_b32 v{r}, 0")
    for c in range(10):
        a(f"s_waitcnt vmcnt({2*(min(c+PD, 10)-c-1)})")
        if c + PD < 10: ld(c + PD)
        for e in range(2):
            for i in range(4):
                x = XR + 8 * c + 4 * e + i
                a(f"v_dot2c_f32_bf16 v{AS+2*e+(i&1)}, s{s_relu}, v{x}")
                a(f"v_dot2c_f32_bf16 v{AS+4+2*e+(i&1)}, v{x}, v{x}")
    vals = [AS, AS + 2, AS + 4, AS + 6]
    for r in vals: a(f"v_add_f32 v{r}, v{r}, v{r+1}")
    for ctl in ("quad_perm:[1,0,3,2]", "quad_perm:[2,3,0,1]", "row_half_mirror"):
        for r in vals: a(f"v_add_f32_dpp v{r}, v{r}, v{r} {ctl} row_mask:0xf bank_mask:0xf")
    a(f"v_and_b32 v2, 1, v0")
    a(f"v_cmp_eq_u32 vcc, 1, v2")
    a(f"v_cndmask_b32 v4, v{AS}, v{AS+2}, vcc")
    a(f"v_cndmask_b32 v5, v{AS+4}, v{AS+6}, vcc")
    inv = f32bits(1.0 / 640.0)
    a(f"v_mul_f32 v4, {hex(inv)}, v4")
    a(f"v_mul_f32 v5, {hex(inv)}, v5")
    a(f"v_fma_f32 v5, -v4, v4, v5")
    a(f"v_max_f32 v5, 0, v5")
    a(f"v_cvt_pk_bf16_f32 v5, v5, v5")
    a(f"v_lshlrev_b32 v5, 16, v5")
    a(f"v_add_f32 v5, {hex(f32bits(1e-5))}, v5")
    a(f"v_cvt_pk_bf16_f32 v5, v5, v5")
    a(f"v_lshlrev_b32 v5, 16, v5")
    a(f"v_sqrt_f32 v5, v5")
    a(f"v_cvt_pk_bf16_f32 v5, v5, v5")
    a(f"v_lshlrev_b32 v5, 16, v5")
    a(f"v_rcp_f32 v5, v5")
    a(f"v_cvt_pk_bf16_f32 v4, -v4, -v4")
    a(f"v_lshrrev_b32 v1, 3, v0")
    a(f"v_lshl_add_u32 v1, v2, 3, v1")
    a(f"v_lshlrev_b32 v1, 3, v1")
    a(f"v_or_b32 v5, 1, v5")
    a(f"s_lshl_b32 s{s_t0}, s{s_rb}, 10")
    a(f"s_lshl_b32 s{s_t1}, s{s_w}, 7")
    a(f"s_add_u32 s{s_t0}, s{s_t0}, s{s_t1}")
    a(f"s_add_u32 s{s_t0}, s{s_t0}, {WS_STAT}")
    a("s_barrier")
    a("s_mov_b32 exec_lo, 0x03030303")
    a("s_mov_b32 exec_hi, 0x03030303")
    a(f"buffer_store_dwordx2 v[4:5], v1, {O}, s{s_t0} offen sc1")
    a("s_mov_b64 exec, -1")
    stamp(a, 3)
    a("s_branch AP_done")
    a.label("AP_clear")
    a.label("AP_bar")
    a("s_barrier")
    a.label("AP_done")

def prefetch(a, role):
    NTW, RB, _ = ROLES[role]
    c = s_t1
    a(f"s_sub_u32 s{c}, s{s_w}, 8")
    a(f"s_lshr_b32 s{s_t0}, s2, 6")
    a(f"s_lshl_b32 s{s_t0}, s{s_t0}, 2")
    a(f"s_add_u32 s{s_t0}, s{s_t0}, s{c}")
    a(f"s_mul_i32 s{s_t0}, s{s_t0}, {8*1280}")
    a(f"s_add_u32 s{s_t0}, s{s_t0}, s{s_xbase}")
    a(f"v_and_b32 v1, 7, v0")
    a(f"v_mul_u32_u24 v1, 1280, v1")
    a(f"v_lshrrev_b32 v2, 3, v0")
    a(f"v_lshl_add_u32 v3, v2, 7, v1")
    a(f"buffer_load_dword v5, v3, s[{SX}:{SX+3}], s{s_t0} offen offset:128")
    if role != "kv":
        NL = RB // 128
        a(f"v_mul_u32_u24 v2, {65536 // (2*NL) + 1}, v0")
        a(f"v_lshrrev_b32 v2, 16, v2")
        a(f"v_mul_u32_u24 v3, {2*NL}, v2")
        a(f"v_sub_u32 v3, v0, v3")
        a(f"v_and_b32 v4, 1, v3")
        a(f"v_lshrrev_b32 v3, 1, v3")
        a(f"v_lshl_add_u32 v2, v2, 6, v4")
        a(f"v_mul_lo_u32 v2, v2, s{s_stride}")
        a(f"v_lshl_add_u32 v2, v3, 7, v2")
        a(f"s_bfe_u32 s{s_t0}, s2, 0x30003")
        a(f"s_lshl_b32 s{s_t0}, s{s_t0}, 2")
        a(f"s_add_u32 s{s_t0}, s{s_t0}, s{c}")
        a(f"s_lshl_b32 s{s_t0}, s{s_t0}, 1")
        a(f"s_mul_i32 s{s_t0}, s{s_t0}, s{s_stride}")
        a(f"s_add_u32 s{s_delta}, s{s_t0}, s{s_col}")
        a(f"buffer_load_dword v7, v2, s[{SW}:{SW+3}], s{s_delta} offen")
    a(f"s_lshr_b32 s{s_t0}, s2, 6")
    a(f"s_lshl_b32 s{s_t0}, s{s_t0}, 2")
    a(f"s_add_u32 s{s_t0}, s{s_t0}, s{c}")
    a(f"s_mul_i32 s{s_t0}, s{s_t0}, {8*1280}")
    a(f"s_add_u32 s{s_t0}, s{s_t0}, s{s_xbase}")
    a(f"buffer_load_dword v15, v1, s[{SX}:{SX+3}], s{s_t0} offen offset:1152")

def compute(a, role, done, vmode=False):
    NTW, RB, _ = ROLES[role]
    tag = role + ("v" if vmode else "")
    v_xa, v_wa = 8, 12
    XF = [16, 36]; WF = [24, 44]
    SEL, CSA, ACC = 56, 60, 72
    lg = Cnt(a, "lgkmcnt", 15)
    s_rp, s_half = s_m0x, s_m0w
    if NSB: a("s_barrier")
    if PF: prefetch(a, role)
    for _ in range(NSB - 1): a("s_barrier")
    a(f"v_and_b32 v1, 31, v0")
    a(f"v_lshrrev_b32 v2, 5, v0")
    a(f"v_bfe_u32 v3, v0, 1, 3")
    a(f"v_xor_b32 v3, v3, v2")
    a(f"v_lshlrev_b32 v3, 4, v3")
    a(f"v_lshlrev_b32 v1, 7, v1")
    a(f"s_lshl_b32 s{s_t0}, s{s_rp}, 13")
    a(f"s_add_u32 s{s_t0}, s{s_t0}, {LA*SLOT}")
    a(f"v_add_u32 v1, s{s_t0}, v1")
    for j in range(4):
        a(f"v_xor_b32 v4, {j<<5}, v3")
        a(f"v_add_u32 v{v_xa+j}, v1, v4")
    w_read_addr(a, role, v_wa, s_half)
    a(f"v_lshrrev_b32 v1, 2, v0")
    a(f"v_lshrrev_b32 v2, 4, v0")
    a(f"v_xor_b32 v1, v1, v2")
    a(f"v_and_b32 v1, 1, v1")
    a(f"v_subrev_u32 v1, 1, v1")
    for i in range(4): a(f"v_and_b32 v{SEL+i}, 0x3f803f80, v1")
    for r in range(XF[1], WF[1] + 4 * NTW): a(f"v_mov_b32 v{r}, 0")
    z = vr(XF[1], 4)
    for t in range(2 * NTW): a(f"v_mfma_f32_32x32x16_bf16 {vr(ACC+16*t,16)}, {z}, {z}, 0")
    for T in range(NTW): a(f"v_mfma_f32_16x16x32_bf16 {vr(CSA+4*T,4)}, {z}, {z}, 0")
    a(f"s_mov_b32 s{s_it}, 0")
    a(f"s_mov_b32 s{s_slot}, {LA*SLOT}")
    def mfma(R, T, u):
        acc = vr(ACC + 16 * (R * NTW + T), 16); x = vr(XF[u] + 4 * R, 4); w = vr(WF[u] + 4 * T, 4)
        if vmode: a(f"v_mfma_f32_32x32x16_bf16 {acc}, {x}, {w}, {acc}")
        else: a(f"v_mfma_f32_32x32x16_bf16 {acc}, {w}, {x}, {acc}")
    def step(jn, u, cs, post=None, lo=0, hi=99):
        n = u ^ 1
        reads = []
        if jn is not None and "nord" not in AX:
            def rw(T):
                for p in range(2):
                    reads.append((f"ds_read_b64_tr_b16 {vr(WF[n]+4*T+2*p,2)}, v{v_wa+T} offset:{jn*16*RB+p*4*RB}", ("W", n, T)))
            reads.append((f"ds_read_b128 {vr(XF[n],4)}, v{v_xa+jn}", ("X", n, 0)))
            rw(0)
            reads.append((f"ds_read_b128 {vr(XF[n]+4,4)}, v{v_xa+jn} offset:4096", ("X", n, 1)))
            for T in range(1, NTW): rw(T)
        post = list(post or [])
        order = [(R, T) for T in range(NTW) for R in range(2)][lo:hi]
        per = 3 if post else 2
        for k, (R, T) in enumerate(order):
            last = k == len(order) - 1
            lg.wait(("X", u, R), ("W", u, T))
            mfma(R, T, u)
            room = 5
            for _ in range(99 if last else per):
                if reads:
                    t, g = reads.pop(0); a(t); lg.issue(g); room -= 1
            if not reads:
                while post and (room > 0 or last):
                    a(post.pop(0)); room -= 1
            if cs and R == 1 and 'nocs' not in AX:
                a(f"v_mfma_f32_16x16x32_bf16 {vr(CSA+4*T,4)}, {vr(SEL,4)}, {vr(WF[u]+4*T,4)}, {vr(CSA+4*T,4)}")
    stamp(a, 2)
    if STAMP: a("s_waitcnt lgkmcnt(0)")
    NM = 2 * NTW
    adv = slot_advance([v_xa, v_wa] + [v_wa + T for T in range(1, NTW)] + [v_xa + j for j in range(1, 4)])
    for t in adv: a(t)
    full = role != "h"
    if not full:
        a(f"s_cmp_eq_u32 s{s_rp}, 1")
        a(f"s_cbranch_scc1 AC_ent_{tag}1")
    for rp in range(1 if full else 2):
        e0 = full or rp == 0; e1 = full or rp == 1
        if rp == 0: a(f"s_branch AC_ent_{tag}0")
        a.raw(".p2align 6")
        a.label(f"AC_loop_{tag}{rp}")
        st = a.mark()
        a("s_waitcnt lgkmcnt(0)")
        if e0 and 'nocs' not in AX:
            a(f"v_mfma_f32_16x16x32_bf16 {vr(CSA+4*(NTW-1),4)}, {vr(SEL,4)}, {vr(WF[0]+4*(NTW-1),4)}, {vr(CSA+4*(NTW-1),4)}")
        step(None, 0, False, None, NM - 1, NM)
        a.label(f"AC_ent_{tag}{rp}")
        a("s_barrier")
        step(0, 1, e1)
        step(1, 0, e0); step(2, 1, e1)
        tail = adv + [f"s_add_u32 s{s_it}, s{s_it}, 1", f"s_cmp_lt_u32 s{s_it}, 10"]
        step(3, 0, e0, tail, 0, NM - 1)
        lg.q = []
        a(f"s_cbranch_scc1 AC_loop_{tag}{rp}")
        a.check_backedge(st)
        a("s_waitcnt lgkmcnt(0)")
        if e0 and 'nocs' not in AX:
            a(f"v_mfma_f32_16x16x32_bf16 {vr(CSA+4*(NTW-1),4)}, {vr(SEL,4)}, {vr(WF[0]+4*(NTW-1),4)}, {vr(CSA+4*(NTW-1),4)}")
        step(None, 0, False, None, NM - 1, NM)
        if e1:
            for T in range(NTW):
                a(f"v_mfma_f32_16x16x32_bf16 {vr(CSA+4*T,4)}, {vr(SEL,4)}, {vr(WF[1]+4*T,4)}, {vr(CSA+4*T,4)}")
        if rp == 0 and not full: a(f"s_branch AC_fin_{tag}")
    a.label(f"AC_fin_{tag}")
    a(f"v_and_b32 v1, 31, v0")
    a(f"s_lshl_b32 s{s_t0}, s{s_rp}, 8")
    a(f"s_add_u32 s{s_t0}, s{s_t0}, {SC_NM}")
    a(f"v_lshl_add_u32 v2, v1, 2, s{s_t0}")
    pre = [f"v_mov_b32 v{r}, 0" for r in range(XF[0], WF[0] + 4 * NTW)]
    pre += ["s_mov_b32 exec_hi, 0", f"ds_read_b32 v{XF[0]}, v2", f"ds_read_b32 v{XF[0]+4}, v2 offset:128", "s_mov_b32 exec_hi, -1",
            "ds_read_b32 v4, v2 offset:512", "ds_read_b32 v6, v2 offset:640"]
    step(None, 1, False, pre)
    stamp(a, 5)
    CS = CSA
    if not full:
        a(f"s_mul_i32 s{s_t1}, s{s_half}, {NTW*256}")
        a(f"s_add_u32 s{s_t1}, s{s_t1}, {SC_CS}")
        a(f"v_lshl_add_u32 v3, v1, 3, s{s_t1}")
        a(f"s_lshl_b32 s{s_t1}, s{s_rp}, 2")
        a(f"v_add_u32 v7, s{s_t1}, v3")
        for T in range(NTW): a(f"ds_write_b32 v7, v{CSA+4*T} offset:{T*256}")
        lds_arrive(a, SC_CNT + 12, 8)
        lds_wait(a, f"AC_sync_{tag}", SC_CNT + 12, 4, 8, s_it, s_slot, 1)
        for T in range(NTW): a(f"ds_read_b64 {vr(CS+4*T,2)}, v3 offset:{T*256}")
        a(f"s_waitcnt lgkmcnt(0)")
        for T in range(NTW): a(f"v_add_f32 v{CS+4*T}, v{CS+4*T}, v{CS+4*T+1}")
    for T in range(NTW): a(f"v_cvt_pk_bf16_f32 v{CS+4*T+1}, v{CS+4*T}, v{CS+4*T}")
    for T in range(NTW): a(f"v_lshlrev_b32 v{CS+4*T+1}, 16, v{CS+4*T+1}")
    for T in range(NTW): a(f"v_sub_f32 v{CS+4*T+1}, v{CS+4*T}, v{CS+4*T+1}")
    for T in range(NTW): a(f"v_cvt_pk_bf16_f32 v{WF[0]+4*T}, v{CS+4*T}, v{CS+4*T+1}")
    a("s_waitcnt lgkmcnt(0)")
    for R in range(2):
        for T in range(NTW): mfma(R, T, 0)
    stamp(a, 6)
    O = f"s[{SO}:{SO+3}]"
    a(f"v_lshlrev_b32 v1, 4, v0")
    if role != "kv":
        for R in range(2):
            for T in range(NTW):
                b = ACC + 16 * (R * NTW + T)
                if R == 0 and T < 2:
                    for i in range(16): a(f"v_mul_f32 v{b+i}, v{4+2*R}, v{b+i}")
                else:
                    for i in range(8): a(f"v_pk_mul_f32 {vr(b+2*i,2)}, {vr(b+2*i,2)}, {vr(4+2*R,2)} op_sel_hi:[1,0]")
                if role == "h":
                    d = ACC + 8 * (R * NTW + T)
                    for i in range(8): a(f"v_cvt_pk_bf16_f32 v{d+i}, v{b+2*i}, v{b+2*i+1}")
                    for i in range(8): a(f"v_pk_max_i16 v{d+i}, v{d+i}, 0")
                    continue
                for i in range(8): a(f"v_cvt_pk_bf16_f32 v{b+i}, v{b+2*i}, v{b+2*i+1}")
                o = 2 * T * 1024
                a(f"buffer_store_dwordx4 {vr(b,4)}, v1, {O}, s{s_out} offen offset:{o}{ST}")
                a(f"buffer_store_dwordx4 {vr(b+4,4)}, v1, {O}, s{s_out} offen offset:{o+1024}{ST}")
            if R == 0 and role != "h": a(f"s_add_u32 s{s_out}, s{s_out}, {QH_TT}")
        if role == "h":
            a(f"s_mov_b32 s53, s{s_out}")
            a("s_branch F_gemm")
            return
    elif not vmode:
        for R in range(2):
            b = ACC + 16 * R
            for i in range(12): a(f"v_mul_f32 v{b+i}, v{4+2*R}, v{b+i}")
            for i in range(4): a(f"v_cvt_pk_bf16_f32 v{b+i}, v{b+2*i}, v{b+2*i+1}")
            for i in range(2): a(f"v_cvt_pk_bf16_f32 v{16+2*R+i}, v{b+8+2*i}, v{b+9+2*i}")
            a(f"buffer_store_dwordx4 {vr(b,4)}, v1, {O}, s{s_out} offen offset:{1024*R}{ST}")
        a("s_mov_b32 exec_lo, 0")
        for i in range(4): a(f"v_mov_b32 v{16+i}, {'0x3f80' if i % 2 == 0 else 0}")
        a("s_mov_b32 exec_lo, -1")
        a(f"buffer_store_dwordx4 v[16:19], v1, {O}, s{s_out} offen offset:2048{ST}")
    else:
        a(f"v_lshrrev_b32 v6, 5, v0")
        a(f"v_lshl_add_u32 v3, v6, 4, s{s_t0}")
        for R in range(2):
            for q in range(4): a(f"ds_read_b128 {vr(16+16*R+4*q,4)}, v3 offset:{512+128*R+32*q}")
        a(f"v_and_b32 v2, 31, v0")
        a(f"v_mul_u32_u24 v6, 384, v6")
        a(f"v_lshl_add_u32 v6, v2, 4, v6")
        a(f"s_add_u32 s{s_out}, s{s_out}, 3072")
        a("s_waitcnt lgkmcnt(0)")
        for R in range(2):
            b = ACC + 16 * R
            for i in range(16): a(f"v_mul_f32 v{b+i}, v{16+16*R+i}, v{b+i}")
            for i in range(8): a(f"v_cvt_pk_bf16_f32 v{b+i}, v{b+2*i}, v{b+2*i+1}")
            a("s_mov_b32 exec_lo, 0x00100000")
            a("s_mov_b32 exec_hi, 0x00100000")
            for i in range(8): a(f"v_mov_b32 v{b+i}, 0x3f803f80")
            a("s_mov_b32 exec_lo, 0x00e00000")
            a("s_mov_b32 exec_hi, 0x00e00000")
            for i in range(8): a(f"v_mov_b32 v{b+i}, 0")
            a("s_mov_b32 exec_lo, 0x00ffffff")
            a("s_mov_b32 exec_hi, 0x00ffffff")
            a(f"buffer_store_dwordx4 {vr(b,4)}, v6, {O}, s{s_out} offen offset:{1536*R}{ST}")
            a(f"buffer_store_dwordx4 {vr(b+4,4)}, v6, {O}, s{s_out} offen offset:{1536*R+768}{ST}")
            a("s_mov_b64 exec, -1")
    done(a)

def phase_a(a, done_help, done_stats, done_comp, spare, start_hook=None, pre_ba=None):
    a("s_load_dwordx8 s[20:27], s[0:1], 0")
    a("s_load_dwordx2 s[28:29], s[0:1], 48")
    a("s_load_dwordx2 s[30:31], s[0:1], 80")
    a("s_load_dwordx2 s[56:57], s[0:1], 56")
    a("s_load_dwordx2 s[58:59], s[0:1], 32")
    a("s_load_dwordx4 s[60:63], s[0:1], 64")
    a("v_lshrrev_b32 v1, 6, v0")
    a("v_and_b32 v0, 63, v0")
    a(f"v_readfirstlane_b32 s{s_w}, v1")
    ORD = os.environ.get("ORD", "0123456789,5678901234").split(",")
    a(f"s_and_b32 s{s_t0}, s2, 1")
    a(f"s_lshl_b32 s{s_t0}, s{s_t0}, 3")
    a(f"s_bfe_u32 s{s_rb}, s2, 0x30003")
    a(f"s_lshr_b32 s{s_g}, s2, 6")
    a(f"s_add_u32 s{s_t1}, s{s_g}, s{s_rb}")
    a(f"s_and_b32 s{s_t1}, s{s_t1}, {len(ORD)-1}")
    a(f"s_add_u32 s{s_rb}, s{s_rb}, s{s_t0}")
    gv = sum(g << (4 * i) for i, g in enumerate(GMAP))
    a(f"s_bfe_u32 s{s_t0}, s2, 0x20001")
    a(f"s_lshl_b32 s{s_t0}, s{s_t0}, 2")
    a(f"s_add_u32 s{s_g}, s{s_g}, s{s_t0}")
    a(f"s_lshl_b32 s{s_g}, s{s_g}, 2")
    a(f"s_mov_b32 s{s_tab}, {hex(gv & 0xffffffff)}")
    a(f"s_mov_b32 s{s_tab+1}, {hex(gv >> 32)}")
    a(f"s_lshr_b64 s[{s_tab}:{s_tab+1}], s[{s_tab}:{s_tab+1}], s{s_g}")
    a(f"s_and_b32 s{s_g}, s{s_tab}, 15")
    if TEAM:
        a(f"s_and_b32 s{s_rb}, s2, 7")
        a(f"s_lshl_b32 s{s_rb}, s{s_rb}, 1")
        a(f"s_lshr_b32 s{s_t0}, s2, 7")
        a(f"s_add_u32 s{s_rb}, s{s_rb}, s{s_t0}")
        a(f"s_bfe_u32 s{s_g}, s2, 0x40003")
        a(f"s_{'add' if TEAM == 1 else 'xor'}_{'u' if TEAM == 1 else 'b'}32 s{s_t1}, s{s_t0}, {'s%d' % s_g if TEAM == 1 else '0'}")
        if TEAM == 3:
            a(f"s_lshl_b32 s{s_t1}, s2, 1")
            a(f"s_add_u32 s{s_t1}, s{s_t1}, s{s_t0}")
        a(f"s_and_b32 s{s_t1}, s{s_t1}, {len(ORD)-1}")
    a(f"s_lshl_b32 s3, s{s_rb}, 4")
    a(f"s_add_u32 s3, s3, s{s_g}")
    for k, o in enumerate(ORD):
        assert sorted(o) == list("0123456789")
        v = sum(int(d) << (4 * i) for i, d in enumerate(o))
        if k == 0:
            a(f"s_mov_b32 s{s_tab}, {hex(v & 0xffffffff)}")
            a(f"s_movk_i32 s{s_tab+1}, {hex(v >> 32)}")
        else:
            a(f"s_cmp_eq_u32 s{s_t1}, {k}")
            a(f"s_cselect_b32 s{s_tab}, {hex(v & 0xffffffff)}, s{s_tab}")
            a(f"s_cselect_b32 s{s_tab+1}, {hex(v >> 32)}, s{s_tab+1}")
    a(f"s_mov_b32 s{s_cslot}, {SLOT}")
    a(f"s_mul_i32 s{s_xbase}, s{s_rb}, {128*1280}")
    a(f"s_and_b32 s{s_m0x}, s{s_w}, 1")
    a(f"s_bfe_u32 s{s_m0w}, s{s_w}, 0x10001")
    a(f"s_lshl_b32 s{s_out}, s{s_rb}, 1")
    a(f"s_add_u32 s{s_out}, s{s_out}, s{s_m0x}")
    a(f"s_lshl_b32 s{s_out}, s{s_out}, 1")
    a("s_waitcnt lgkmcnt(0)")
    srd(a, SX, 20, 2048 * 1280)
    srd(a, SO, 30, WS_SIZE)
    a(f"s_lshl_b32 s{s_t0}, s{s_w}, 4")
    a(f"s_add_u32 s{s_t0}, s{s_t0}, s{s_g}")
    a(f"s_cmp_lg_u32 s{s_t0}, {8*16+15}")
    a("s_cbranch_scc1 A_noclear")
    clear_words(a)
    a.label("A_noclear")
    a(f"s_sub_u32 s{s_t0}, s{s_g}, 9")
    a(f"s_cmp_lt_u32 s{s_t0}, 5")
    a(f"s_cselect_b32 s{s_scale}, {hex(f32bits(QSCALE))}, 1.0")
    a(f"s_cmp_eq_u32 s{s_g}, 15")
    a("s_cbranch_scc1 A_spare")
    a(f"s_sub_u32 s{s_t0}, s{s_w}, 4")
    a(f"s_cmp_lt_u32 s{s_t0}, 4")
    a("s_cbranch_scc1 A_stats")
    a(f"s_cmp_eq_u32 s{s_g}, 14")
    a("s_cbranch_scc1 A_kv")
    a(f"s_cmp_ge_u32 s{s_g}, 9")
    a("s_cbranch_scc1 A_q")
    for role in ("h", "q"):
        NTW = ROLES[role][0]
        if role == "q":
            a.label("A_q")
            a(f"s_sub_u32 s{s_g}, s{s_g}, 9")
        stride = 3456 if role == "h" else 1280
        a(f"s_cmp_ge_u32 s{s_w}, 8")
        a(f"s_cbranch_scc1 A_c{role}")
        srd(a, SW, 28 if role == "h" else 22, 640 * stride)
        a(f"s_movk_i32 s{s_stride}, {stride}")
        a(f"s_mov_b32 s{s_wstep}, {64*stride}")
        a(f"s_mul_i32 s{s_col}, s{s_g}, {NTW*128}")
        loader(a, role, done_help, pre_ba)
        a.label(f"A_c{role}")
        a("s_setprio 2")
        a(f"s_mul_i32 s{s_out}, s{s_out}, {QH_TT}")
        a(f"s_lshl_b32 s{s_t0}, s{s_g}, 1")
        a(f"s_add_u32 s{s_t0}, s{s_t0}, s{s_m0w}")
        a(f"s_mul_i32 s{s_t0}, s{s_t0}, {NTW*2048}")
        a(f"s_add_u32 s{s_out}, s{s_out}, s{s_t0}")
        if role == "h": a(f"s_add_u32 s{s_out}, s{s_out}, {40*1024}")
        compute(a, role, done_comp)
    a.label("A_kv")
    a(f"s_cmp_ge_u32 s{s_w}, 8")
    a(f"s_cbranch_scc1 A_ckv")
    srd(a, SW, 24, 640 * 40)
    srd(a, SW2, 26, 640 * 40)
    a(f"s_movk_i32 s{s_wstep}, 2560")
    loader(a, "kv", done_help, pre_ba)
    a.label("A_ckv")
    a("s_setprio 2")
    a(f"s_mul_i32 s{s_out}, s{s_out}, {KV_TILE}")
    a(f"s_add_u32 s{s_out}, s{s_out}, {WS_KV}")
    a(f"s_cmp_eq_u32 s{s_m0w}, 1")
    a(f"s_cbranch_scc1 A_cv")
    compute(a, "kv", done_comp, False)
    a.label("A_cv")
    compute(a, "kv", done_comp, True)
    a.label("A_stats")
    start_hook(a)
    idle(a, done_stats)
    a.label("A_spare")
    spare(a)
```

```python
from common import *
from gw import *
import ka2
from ka2 import phase_a, SC_CNT, LDS_A
def two_ways(a, name, body): body(' sc1')

GPRIO = int(os.environ.get("GPRIO", "0"))
HOLD = 1
GROT = int(os.environ.get("GROT", "9"))
GX = os.environ.get("GX", "")
UARR = int(os.environ.get("UARR", "0"))
SC_L = None
DRY = int(os.environ.get("DRY", "0"))
PACE = [float(x) for x in os.environ.get("PACE", "1.7,7.0").split(",")]
PEND = int(os.environ.get("PEND", "99"))
ABAT = int(os.environ.get("ABAT", "0"))
PIPE = int(os.environ.get("PIPE", "1"))
KV4 = int(os.environ.get("KV4", "0"))
TRIG = [int(x) for x in os.environ.get("TRIG", "4,8").split(",")]
TAILST = os.environ.get("TAILST")
OSL = [int(x) for x in os.environ.get("OSL", "1,0").split(",")]
WOPF = int(os.environ.get("WOPF", "10"))
ALT1 = int(os.environ.get("ALT1", "0"))
MARK = int(os.environ.get("MARK", "1"))
NS0 = int(os.environ.get("NS0", "2"))
WEARLY = int(os.environ.get("WEARLY", "2"))
W2PF = int(os.environ.get("W2PF", "3"))
HP = int(os.environ.get("HP", "1"))
FASTO = int(os.environ.get("FASTO", "1"))
TRIGST = int(os.environ.get("TRIGST", "1"))
PMASK = int(os.environ.get("PMASK", "0"))
PSTEP = [int(x) for x in os.environ.get("PSTEP", "").split(",") if x]
PBASE = int(os.environ.get("PBASE", "0"))
ALIGN = int(os.environ.get("ALIGN", "0"))
HNEAR = int(os.environ.get("HNEAR", "0"))
JIT = int(os.environ.get("JIT", "0"))
LAY = int(os.environ.get("LAY", "0"))
TLBW = int(os.environ.get("TLBW", "0"))
TLBS = int(os.environ.get("TLBS", "21"))
HORD = int(os.environ.get("HORD", "0"))
GW_N = int(os.environ.get("GW_N", "8"))
OPF = int(os.environ.get("OPF", "3"))
DEFW = int(os.environ.get("DEFW", "4"))
DEFER = int(os.environ.get("DEFER", "0"))
PAIR = 2 * KV_TILE
CH = 8 * KV_TILE
STG = 0
KVB = 4 * PART
assert KVB + 4 * CH <= ka2.SCR and KVB >= ka2.SLOT
RESET_WG = (3 << 6) | (3 << 1)

SX, SW2, SWS, SWO, SOUT, SDBG = 4, 8, 12, 16, 20, 16
s_w, s_tt, s_hg, s_t0, s_t1, s_c, s_slot, s_delta, s_cch, s_base, s_spin, s_kvl, s_kvg, s_woff2 = range(32, 46)
s_gw = 46
s_lid = 97 if STAMP else 64
WS = f"s[{SWS}:{SWS+3}]"
Q1, Q2, P0, P1, O, S0, S1 = 4, 8, 12, 16, 20, 36, 52
KS = [68, 96]
v_ka, v_va, v_g0, VT = 124, 125, 126, 130
v_l16, v_cnt, v_one, v_chk = 136, 137, 138, 139
SC_K = SC_CNT + 256
SC_L = SC_K + 256
COMB = int(os.environ.get('COMB', '0'))
SCW, NW_ = (SC_L, 12) if COMB else (SC_K, 8)
s_tgt = 45

def mf(a, d, x, y, c): a(f"v_mfma_f32_32x32x16_bf16 {vr(d,16)}, {vr(x,4)}, {vr(y,4)}, {c if isinstance(c,str) else vr(c,16)}")
def mf8(a, d, x, y): a(f"v_mfma_f32_32x32x8_bf16 {vr(d,16)}, {vr(x,2)}, {vr(y,2)}, {vr(d,16)}")

def flag_off(a, vd, vrb, vg, t):
    a(f"v_lshl_add_u32 v{vd}, v{vrb}, 4, v{vg}")
    a(f"v_lshlrev_b32 v{vd}, 7, v{vd}")
    a(f"v_add_u32 v{vd}, {WS_FL}, v{vd}")

def publish(a, name, cnt_off, nwaves, sid, base, t, value=1, vm=0, word=None, near=False):
    a(f"s_waitcnt vmcnt({vm})")
    a("s_mov_b64 exec, 1")
    a(f"v_mov_b32 v{t}, {SC_CNT + cnt_off}")
    a(f"v_mov_b32 v{t+1}, 1")
    a(f"ds_add_rtn_u32 v{t+1}, v{t}, v{t+1}")
    a(f"s_lshl_b32 s{s_t0}, s{sid}, 7")
    a(f"s_add_u32 s{s_t0}, s{s_t0}, {base}")
    a(f"v_mov_b32 v{t}, {0 if word is None else 's%d' % word}")
    a(f"v_mov_b32 v{t+2}, {value}")
    a("s_waitcnt lgkmcnt(0)")
    a(f"v_readfirstlane_b32 s{s_t1}, v{t+1}")
    a(f"s_cmp_lg_u32 s{s_t1}, {nwaves-1}")
    a(f"s_cbranch_scc1 {name}")
    if near: two_ways(a, name + "w", lambda sc: a(f"buffer_store_dword v{t+2}, v{t}, {WS}, s{s_t0} offen{sc}"))
    else: a(f"buffer_store_dword v{t+2}, v{t}, {WS}, s{s_t0} offen sc1")
    a.label(name)
    a("s_mov_b64 exec, -1")

def decode_b(a):
    a(f"s_lshr_b32 s{s_tt}, s{s_lid}, 2")
    a(f"s_and_b32 s{s_hg}, s{s_lid}, 3")

def attn_addr(a):
    a(f"s_and_b32 s{s_t0}, s{s_lid}, 3")
    a(f"s_lshl_b32 s{s_t0}, s{s_t0}, 3")
    a(f"s_add_u32 s{s_t0}, s{s_t0}, s{s_w}")
    a(f"s_mul_i32 s{s_t0}, s{s_t0}, 5")
    a(f"v_lshrrev_b32 v2, 5, v0")
    a(f"v_and_b32 v3, 31, v0")
    a(f"v_lshlrev_b32 v3, 4, v3")
    for i in range(3):
        if i < 2: a(f"v_add_u32 v1, s{s_t0}, v2")
        else: a(f"v_mov_b32 v1, s{s_t0}")
        if i: a(f"v_add_u32 v1, {2*i}, v1")
        a(f"v_lshrrev_b32 v{VT}, 2, v1")
        a(f"v_lshl_add_u32 v{v_g0+i}, v{VT}, 10, v3")
        a(f"v_and_b32 v{VT}, 1, v1")
        a(f"v_lshl_add_u32 v{v_g0+i}, v{VT}, 9, v{v_g0+i}")
        a(f"v_bfe_u32 v{VT}, v1, 1, 1")
        a(f"v_lshl_add_u32 v{v_g0+i}, v{VT}, 3, v{v_g0+i}")
    a(f"v_lshlrev_b32 v{v_l16}, 4, v0")
    a(f"v_add_u32 v{v_ka}, {KVB}, v{v_l16}")
    a(f"v_lshlrev_b32 v{v_cnt}, 2, v0")
    a(f"v_add_u32 v{v_cnt}, {SC_K}, v{v_cnt}")
    a(f"v_cmp_eq_u32 vcc, 0, v0")
    a(f"v_cndmask_b32 v{v_one}, 0, 1, vcc")
    a(f"v_and_b32 v1, 31, v0")
    a(f"v_min_u32 v1, 23, v1")
    a(f"v_mul_u32_u24 v{v_va}, 384, v2")
    a(f"v_lshl_add_u32 v{v_va}, v1, 4, v{v_va}")
    a(f"v_add_u32 v{v_va}, {KVB + 3072}, v{v_va}")

def fetch(a):
    decode_b(a)
    a(f"s_cmp_lg_u32 s{s_w}, 0")
    a("s_cbranch_scc1 B_fkv")
    a(f"s_lshr_b32 s{s_t0}, s{s_tt}, 2")
    a(f"s_add_u32 s{s_t1}, s{s_hg}, 9")
    a(f"v_mov_b32 v1, s{s_t0}")
    a(f"v_add_u32 v2, s{s_t1}, v0")
    flag_off(a, 4, 1, 2, 3)
    a("s_mov_b64 exec, 3")
    poll(a, "B_pollq", f"buffer_load_dword v2, v4, {WS}, 0 offen sc1", "v_cmp_gt_u32 vcc, 1, v2")
    lds_arrive(a, SC_CNT + 16, 2)
    a("s_branch F_attn")
    a.label("B_fkv")
    a(f"s_lshr_b32 s{s_t0}, s{s_tt}, 3")
    a(f"s_lshl_b32 s{s_t1}, s{s_t0}, 1")
    a(f"v_add_u32 v1, s{s_t1}, v0")
    a(f"v_mov_b32 v2, 14")
    flag_off(a, 4, 1, 2, 3)
    a(f"s_mul_i32 s{s_t0}, s{s_t0}, {CH}")
    a(f"s_sub_u32 s{s_kvl}, s{s_w}, 1")
    a(f"s_lshl_b32 s{s_kvl}, s{s_kvl}, 13")
    a(f"s_add_u32 s{s_kvg}, s{s_kvl}, s{s_t0}")
    a("s_mov_b64 exec, 3")
    poll(a, "B_pollkv", f"buffer_load_dword v2, v4, {WS}, 0 offen sc1", "v_cmp_gt_u32 vcc, 1, v2", 3)
    a("s_mov_b64 exec, -1")
    stamp(a, 5)
    for hf in range(2):
        a(f"s_add_u32 m0, s{s_kvl}, {KVB + hf*4096}")
        a(f"s_add_u32 s{s_t0}, s{s_kvg}, {WS_KV + hf*4096}")
        for m in range(4): a(f"buffer_load_dwordx4 v{v_l16}, {WS}, s{s_t0} offen offset:{m*1024} sc1 lds")

def attention(a):
    decode_b(a)
    stamp(a, 8)
    a(f"s_mul_i32 s{s_base}, s{s_tt}, {QH_TT}")
    lds_wait(a, "B_wait", SC_CNT + 16, 1, 2, s_spin, s_t0)
    stamp(a, 9)
    a(f"buffer_load_dwordx2 {vr(Q1,2)}, v{v_g0}, {WS}, s{s_base} offen sc1")
    a(f"buffer_load_dwordx2 {vr(Q1+2,2)}, v{v_g0+1}, {WS}, s{s_base} offen sc1")
    a(f"buffer_load_dwordx2 {vr(Q2,2)}, v{v_g0+2}, {WS}, s{s_base} offen sc1")
    for r in list(range(KS[0] + 20, KS[0] + (28 if LAY else 24))) + list(range(P0 if LAY else P1, P1 + 4)) + list(range(O, O + 16)):
        a(f"v_mov_b32 v{r}, 0")
    a(f"s_mov_b32 s{s_c}, 0")
    a(f"s_mov_b32 s{s_slot}, 0")
    a(f"s_mov_b32 s{s_cch}, {CH}")
    if PSTEP:
        a(f"s_mov_b32 s{s_tgt}, {sum(1 << c for c in PSTEP)}")
        a(f"s_setprio {len(PSTEP) + PBASE}")
    def kv_off(kind, t):
        p = (t % 8) // 2 * PAIR; b = t % 2
        return {"K1": p + 1024 * b, "K2": p + 2048, "V0": p + 1536 * b, "V1": p + 1536 * b + 768}[kind]
    def rd(dst, kind, t):
        a(f"ds_read_b128 {vr(dst,4)}, v{v_ka if kind[0] == 'K' else v_va} offset:{kv_off(kind, t)}")
    def group_reads(o):
        n = KS[((o + 1) // 2 + 1) % 2]
        if LAY:
            return [(n + 12, "V0", o + 1), (n + 16, "V1", o + 1), (n, "K1", o + 3), (n + 8, "K2", o + 3),
                    (n + 4, "K1", o + 4), (n + 20, "V0", o + 2), (n + 24, "V1", o + 2)]
        return [(n + 12, "V1", o + 1), (n, "K1", o + 3), (n + 8, "K2", o + 3), (n + 16, "V0", o + 2),
                (n + 20, "V1", o + 2), (n + 4, "K1", o + 4), (n + 24, "V0", o + 3)]
    k0 = KS[0]
    a("s_waitcnt vmcnt(0)")
    lds_arrive(a, SC_CNT + 8, 2)
    a("s_mov_b32 exec_lo, 0")
    a(f"v_mov_b32 v{Q2}, 0")
    a(f"v_mov_b32 v{Q2+1}, 0")
    a("s_mov_b32 exec_lo, -1")
    stamp(a, 10)
    lds_wait(a, "B_wait2", SC_CNT + 8, 8, 2, s_spin, s_t0, 0)
    rd(k0, "K1", 0); rd(k0 + 8, "K2", 0); rd(k0 + 4, "K1", 1)
    if not LAY: rd(k0 + 24, "V0", 0)
    for r in group_reads(-1)[:4]: rd(*r)
    a(f"s_waitcnt lgkmcnt({5 if LAY else 6})")
    mf(a, S1, k0, Q1, "0"); mf8(a, S1, k0 + 8, Q2)
    mf(a, S0, k0, Q1, "0")
    a(f"v_max3_f32 v{VT}, v{S1}, v{S1+1}, v{S1+2}")
    a(f"v_max3_f32 v{VT+1}, v{S1+3}, v{S1+4}, v{S1+5}")
    a(f"v_max3_f32 v{VT+2}, v{S1+6}, v{S1+7}, v{S1+8}")
    a(f"v_max3_f32 v{VT+3}, v{S1+9}, v{S1+10}, v{S1+11}")
    a(f"v_max3_f32 v{VT}, v{VT}, v{S1+12}, v{S1+13}")
    a(f"v_max3_f32 v{VT+1}, v{VT+1}, v{S1+14}, v{S1+15}")
    a(f"v_max3_f32 v{VT}, v{VT}, v{VT+2}, v{VT+3}")
    a(f"v_max_f32 v{VT}, v{VT}, v{VT+1}")
    a(f"v_mov_b32 v{VT+1}, v{VT}")
    a(f"v_permlane32_swap_b32 v{VT}, v{VT+1}")
    a(f"v_max_f32 v{VT}, v{VT}, v{VT+1}")
    a("s_mov_b32 exec_lo, 0")
    a(f"v_cvt_pk_bf16_f32 v{Q2}, -v{VT}, 0")
    a("s_mov_b32 exec_lo, -1")
    mf8(a, S0, k0 + 8, Q2)
    stamp(a, 11); stamp(a, 12, 'cyc')
    a("s_waitcnt lgkmcnt(0)")
    a("s_nop 10")
    a.raw(".p2align 6")
    a.label("B_loop")
    start = a.mark()
    for u in range(8):
        Sc, Sn = (S0, S1) if u % 2 == 0 else (S1, S0)
        odd = u % 2
        o = u if odd else u - 1
        ks = KS[((o + 1) // 2) % 2]
        reads = group_reads(o)
        slots = [[reads[0]], [reads[1]], [reads[2]], [reads[3]]] if odd else [[reads[4], reads[5]], [reads[6]], [], []]
        e = lambda i: a(f"v_exp_f32 v{Sc+i}, v{Sc+i}")
        c = lambda i: a(f"v_cvt_pk_bf16_f32 v{P0+i}, v{Sc+2*i}, v{Sc+2*i+1}")
        cp = lambda i: a(f"v_cvt_pk_bf16_f32 v{P0+i}, v{Sn+2*i}, v{Sn+2*i+1}")
        if LAY:
            rs = list(reads[:4] if odd else reads[4:])
            def misc():
                if u == 0:
                    a(f"ds_add_u32 v{v_cnt}, v{v_one} offset:{256 if COMB else 0}")
                    if PSTEP:
                        a(f"s_bitcmp1_b32 s{s_tgt}, s{s_c}")
                        a("s_cbranch_scc1 B_prio")
                        a.label("B_prioret")
                if u == 4: a(f"ds_read_b32 v{v_chk}, v{v_cnt} offset:256")
                if u == 2:
                    a(f"s_cmp_eq_u32 s{s_slot}, {3*CH}")
                    a(f"s_cselect_b32 s{s_delta}, {(-3*CH) & 0xffffffff}, s{s_cch}")
                if u == 6:
                    a(f"s_add_u32 s{s_c}, s{s_c}, 1")
                    a(f"s_cmp_lt_u32 s{s_c}, 8")
            if odd: a("s_waitcnt lgkmcnt(0)")
            mf(a, Sn, ks + (0 if odd else 4), Q1, "0")
            if u == 5:
                a(f"v_readlane_b32 s{s_t0}, v{v_chk}, s{s_c}")
                a(f"s_add_u32 s{s_slot}, s{s_slot}, s{s_delta}")
                a(f"s_cmp_lt_u32 s{s_t0}, {12 if COMB else 4}")
                if "nospin" not in GX: a("s_cbranch_scc1 B_spin")
                a.label("B_synced")
                a(f"v_add_u32 v{v_ka}, s{s_delta}, v{v_ka}")
            if u == 7: a(f"v_add_u32 v{v_va}, s{s_delta}, v{v_va}")
            if u == 2: a(f"v_mov_b32_dpp v{v_one}, v{v_one} row_shr:1 row_mask:0xf bank_mask:0xf bound_ctrl:0")
            e(0); e(1); e(2)
            mf8(a, Sn, ks + 8 + (0 if odd else 2), Q2)
            rd(*rs.pop(0))
            e(3); e(4); e(5)
            mf(a, O, ks + (12 if odd else 20), P0, O)
            if LAY == 2: rd(*rs.pop(0))
            e(6); e(7); e(8)
            mf(a, O, ks + (16 if odd else 24), P1, O)
            if LAY == 1:
                e(9); e(10); c(0); c(1)
                for r in rs: rd(*r)
                misc()
                c(2); e(11); e(12); c(3); c(4); e(13); e(14); e(15); c(5); c(6); c(7)
            else:
                rd(*rs.pop(0))
                e(9); e(10); c(0)
                for r in rs: rd(*r)
                misc()
                c(1); c(2); e(11); e(12); c(3); c(4); e(13); e(14); e(15); c(5); c(6); c(7)
            continue
        if os.environ.get("CHST") and u == 0: a("s_memtime s[98:99]" if os.environ.get("CHST") == "2" else "s_memrealtime s[98:99]")
        cp(6); e(0); e(1); cp(7); e(2); e(3)
        if odd: a("s_waitcnt lgkmcnt(0)")
        if os.environ.get("CHST") and u == 1:
            sl = [2, 3, 4, 5, 6, 8, 9, 10]
            for k in range(7): a(f"s_mov_b32 s{64+2*sl[k]}, s{64+2*sl[k+1]}")
            a(f"s_mov_b32 s{64+2*sl[7]}, s98")
        mf(a, Sn, ks + (0 if odd else 4), Q1, "0")
        for r in slots[0]: rd(*r)
        if u == 5:
            a(f"v_readlane_b32 s{s_t0}, v{v_chk}, s{s_c}")
            a(f"s_add_u32 s{s_slot}, s{s_slot}, s{s_delta}")
            a(f"s_cmp_lt_u32 s{s_t0}, {12 if COMB else 4}")
            if "nospin" not in GX: a("s_cbranch_scc1 B_spin")
            a.label("B_synced")
        if u == 2:
            a(f"s_cmp_eq_u32 s{s_slot}, {3*CH}")
            a(f"s_cselect_b32 s{s_delta}, {(-3*CH) & 0xffffffff}, s{s_cch}")
        e(4); e(5)
        if u == 5: a(f"v_add_u32 v{v_ka}, s{s_delta}, v{v_ka}")
        if u == 2: a(f"v_mov_b32_dpp v{v_one}, v{v_one} row_shr:1 row_mask:0xf bank_mask:0xf bound_ctrl:0")
        if u == 6: a(f"v_add_u32 v{v_va}, s{s_delta}, v{v_va}")
        c(0); c(1); e(6); e(7)
        mf8(a, Sn, ks + 8 + (0 if odd else 2), Q2)
        for r in slots[1]: rd(*r)
        e(8); e(9); c(2); c(3); e(10); e(11)
        mf(a, O, ks + (12 if odd else 20), P1, O)
        for r in slots[2]: rd(*r)
        if u == 0 and PSTEP:
            a(f"s_bitcmp1_b32 s{s_tgt}, s{s_c}")
            a("s_cbranch_scc1 B_prio")
            a.label("B_prioret")
        if u == 0:
            a(f"ds_add_u32 v{v_cnt}, v{v_one} offset:{256 if COMB else 0}")
        if u == 4: a(f"ds_read_b32 v{v_chk}, v{v_cnt} offset:256")
        e(12); e(13); c(4); c(5); e(14); e(15)
        mf(a, O, ks + (16 if odd else 24), P0, O)
        for r in slots[3]: rd(*r)
        if u == 6:
            a(f"s_add_u32 s{s_c}, s{s_c}, 1")
            a(f"s_cmp_lt_u32 s{s_c}, 8")
    a("s_cbranch_scc1 B_loop")
    if ALIGN: print("loop bytes/fixed", a.align8(start))
    a.check_backedge(start)
    stamp(a, 13); stamp(a, 14, 'cyc')
    if LAY:
        mf(a, O, KS[0] + 20, P0, O); mf(a, O, KS[0] + 24, P1, O)
    else:
        for i in (6, 7): a(f"v_cvt_pk_bf16_f32 v{P0+i}, v{S1+2*i}, v{S1+2*i+1}")
        mf(a, O, KS[0] + 20, P1, O)
    if not TRIGST: a(f"ds_add_u32 v{v_cnt}, v{v_one}")
    a(f"ds_read_b32 v{v_chk}, v{v_cnt}")
    a("s_waitcnt lgkmcnt(0)")
    a(f"v_mov_b32 v{VT+2}, {hex(f32bits(2.0**60))}")
    a(f"s_lshl_b32 s{s_base}, s{s_lid}, 3")
    a(f"s_add_u32 s{s_base}, s{s_base}, s{s_w}")
    a(f"s_mul_i32 s{s_base}, s{s_base}, 1280")
    a(f"s_add_u32 s{s_base}, s{s_base}, {WS_O}")
    a(f"v_lshlrev_b32 v{v_g0}, 4, v0")
    a(f"v_lshlrev_b32 v{v_g0+1}, 3, v0")
    a(f"v_mov_b32 v{VT}, v{O+8}")
    a(f"v_mov_b32 v{VT+1}, v{O+8}")
    a(f"v_permlane32_swap_b32 v{VT}, v{VT+1}")
    a(f"v_cmp_nle_f32 vcc, {hex(f32bits(2.0**-60))}, v{VT+1}")
    a(f"v_cmp_nle_f32 s[52:53], v{VT+1}, v{VT+2}")
    a(f"s_or_b64 s[52:53], s[52:53], vcc")
    a("s_cbranch_scc1 B_fallback")
    a.label("B_norm")
    a(f"v_rcp_f32 v{VT}, v{VT+1}")
    for i in range(12): a(f"v_mul_f32 v{O+i}, v{VT}, v{O+i}")
    for i in range(6): a(f"v_cvt_pk_bf16_f32 v{O+i}, v{O+2*i}, v{O+2*i+1}")
    if DRY: a("s_cbranch_execz F_dryret")
    a(f"v_readlane_b32 s{s_t0}, v{v_chk}, 9")
    a(f"s_cmp_eq_u32 s{s_t0}, 4")
    a("s_cbranch_scc1 B_near")
    a(f"buffer_store_dwordx4 {vr(O,4)}, v{v_g0}, {WS}, s{s_base} offen sc1")
    a("s_mov_b32 exec_hi, 0")
    a(f"buffer_store_dwordx2 {vr(O+4,2)}, v{v_g0+1}, {WS}, s{s_base} offen offset:1024 sc1")
    a("s_branch B_done")
    a.label("B_near")
    a(f"buffer_store_dwordx4 {vr(O,4)}, v{v_g0}, {WS}, s{s_base} offen")
    a("s_mov_b32 exec_hi, 0")
    a(f"buffer_store_dwordx2 {vr(O+4,2)}, v{v_g0+1}, {WS}, s{s_base} offen offset:1024")
    a.label("B_done")
    if TRIGST == 2: a("s_waitcnt vmcnt(0)")
    if TRIGST: a(f"ds_add_u32 v{v_cnt}, v{v_one}")
    if STAMP: a("s_waitcnt vmcnt(0)")
    if STAMP:
        stamp(a, 7); stamp(a, 15, True)
        stamp_flush(a, 1, SWS, s_w, 12, 16)
    a("s_endpgm")
    if PSTEP:
        a.label("B_prio")
        for k, c in enumerate(PSTEP):
            a(f"s_setprio {len(PSTEP) - 1 - k + PBASE}")
            a(f"s_cmp_eq_u32 s{s_c}, {c}")
            a("s_cbranch_scc1 B_prioret")
        a("s_branch B_prioret")
    a.label("B_spin")
    a(f"s_mov_b32 s{s_spin}, {SPIN * 40}")
    a.label("B_spin1")
    a(f"s_sleep {os.environ.get('SSL', '4')}")
    a(f"ds_read_b32 v{v_chk}, v{v_cnt} offset:256")
    a("s_waitcnt lgkmcnt(0)")
    a(f"v_readlane_b32 s{s_t0}, v{v_chk}, s{s_c}")
    a(f"s_cmp_ge_u32 s{s_t0}, {12 if COMB else 4}")
    a("s_cbranch_scc1 B_synced")
    a(f"s_sub_u32 s{s_spin}, s{s_spin}, 1")
    a(f"s_cmp_lg_u32 s{s_spin}, 0")
    a("s_cbranch_scc1 B_spin1")
    a("s_branch B_synced")
    a.label("B_fallback")
    a("s_mov_b32 exec_lo, 0")
    a(f"v_mov_b32 v{Q2}, 0")
    a("s_mov_b32 exec_lo, -1")
    a(f"s_add_u32 s{s_slot}, s{s_slot}, {KVB}")
    a(f"v_subrev_u32 v{v_ka}, s{s_slot}, v{v_ka}")
    a(f"v_subrev_u32 v{v_va}, s{s_slot}, v{v_va}")
    a(f"v_mov_b32 v{VT}, 0xff800000")
    for r in range(O, O + 16): a(f"v_mov_b32 v{r}, 0")
    a(f"s_mov_b32 s{s_kvg}, {WS_KV}")
    def ldk():
        for i in range(3): a(f"buffer_load_dwordx4 {vr(k0+4*i,4)}, v{v_ka}, {WS}, s{s_kvg} offen offset:{1024*i} sc1")
    def qk(b):
        S = (S0, S1)[b]
        mf(a, S, k0 + 4 * b, Q1, "0"); mf8(a, S, k0 + 8 + 2 * b, Q2)
    def nxt(lbl):
        a(f"s_add_u32 s{s_kvg}, s{s_kvg}, {PAIR}")
        a(f"s_cmp_lt_u32 s{s_kvg}, {WS_KV + 32*PAIR}")
        a(f"s_cbranch_scc1 {lbl}")
    a.label("B_fb1")
    st = a.mark()
    ldk()
    a("s_waitcnt vmcnt(0)")
    qk(0); qk(1)
    for i in range(0, 32, 2): a(f"v_max3_f32 v{VT}, v{VT}, v{S0+i}, v{S0+i+1}")
    nxt("B_fb1")
    a.check_backedge(st)
    a(f"v_mov_b32 v{VT+1}, v{VT}")
    a(f"v_permlane32_swap_b32 v{VT}, v{VT+1}")
    a(f"v_max_f32 v{VT}, v{VT}, v{VT+1}")
    a(f"s_mov_b32 s{s_kvg}, {WS_KV}")
    a.label("B_fb2")
    st = a.mark()
    ldk()
    for i in range(4): a(f"buffer_load_dwordx4 {vr(k0+12+4*i,4)}, v{v_va}, {WS}, s{s_kvg} offen offset:{768*i} sc1")
    a("s_waitcnt vmcnt(0)")
    qk(0); qk(1)
    for b in range(2):
        S = (S0, S1)[b]
        for i in range(16): a(f"v_sub_f32 v{S+i}, v{S+i}, v{VT}")
        for i in range(16): a(f"v_exp_f32 v{S+i}, v{S+i}")
        for i in range(8): a(f"v_cvt_pk_bf16_f32 v{P0+i}, v{S+2*i}, v{S+2*i+1}")
        mf(a, O, k0 + 12 + 8 * b, P0, O); mf(a, O, k0 + 16 + 8 * b, P1, O)
    nxt("B_fb2")
    a.check_backedge(st)
    a(f"v_mov_b32 v{VT}, v{O+8}")
    a(f"v_mov_b32 v{VT+1}, v{O+8}")
    a(f"v_permlane32_swap_b32 v{VT}, v{VT+1}")
    a("s_nop 1")
    a("s_branch B_norm")

def gemm(a):
    global stamp
    def h_store(sc, vl):
        for k in range(12):
            if k in (4, 10): a("s_add_u32 s53, s53, 4096")
            if k == 6: a(f"s_add_u32 s53, s53, {QH_TT - 4096}")
            a(f"buffer_store_dwordx4 {vr(72+4*k,4)}, v{vl}, {WS}, s53 offen offset:{(k % 6 % 4)*1024}{sc}")
        stamp(a, 3)
    a("s_setprio 3")
    decode_b(a)
    a(f"s_sub_u32 s{s_w}, s{s_w}, 8")
    srd(a, SW2, 56, 1728 * 1280)
    srd(a, SWO, 58, 640 * 1280)
    srd(a, SOUT, 60, 2048 * 1280)
    g = GW(a, 27, 4, 10, STG, PART, SW2, SWS, s_gw)
    v_wd2 = g.v_end
    v_wa2, vfl = 11, v_wd2 + 5
    vx = v_wd2 + 6
    v_wa3 = 0
    s_kw, s_ka, s_w0, s_a0 = 50, 51, 54, 55
    a(f"s_mul_i32 s{s_kvl}, s{s_w}, 6144")
    def kv(c):
        if c >= 4: lds_wait(a, f"G_free{c}", SCW + 4 * (c - 3), NW_, 2, s_spin, s_t0, 4)
        a(f"s_lshr_b32 s{s_kvg}, s{s_tt}, 3")
        a(f"s_add_u32 s{s_kvg}, s{s_kvg}, {c}")
        a(f"s_and_b32 s{s_kvg}, s{s_kvg}, 7")
        a(f"s_mul_i32 s{s_kvg}, s{s_kvg}, {CH}")
        a(f"s_add_u32 s{s_kvg}, s{s_kvg}, s{s_kvl}")
        a(f"s_add_u32 s{s_kvg}, s{s_kvg}, {WS_KV}")
        a(f"s_add_u32 m0, s{s_kvl}, {KVB + (c % 4)*CH}")
        for m in range(4):
            a(f"buffer_load_dwordx4 v{g.v_l16}, {WS}, s{s_kvg} offen offset:{m*1024} sc1 lds"); g.vm.issue(("KV", c))
        a(f"s_add_u32 m0, m0, 4096")
        a(f"s_add_u32 s{s_kvg}, s{s_kvg}, 4096")
        for m in range(2):
            a(f"buffer_load_dwordx4 v{g.v_l16}, {WS}, s{s_kvg} offen offset:{m*1024} sc1 lds"); g.vm.issue(("KV", c))
    def landed(c):
        g.vm.wait(("KV", c))
        a("s_mov_b64 exec, 1")
        a(f"v_mov_b32 v2, {SC_L + 4 * (c - 1)}")
        a(f"v_mov_b32 v3, 1")
        a(f"ds_add_u32 v2, v3"); g.lg.issue("arr")
        a("s_mov_b64 exec, -1")
    s_i4 = s_c
    a(f"s_getreg_b32 s{s_delta}, hwreg(HW_REG_XCC_ID, 0, 4)")
    a(f"s_add_u32 s{s_delta}, s{s_delta}, 16")
    a(f"s_mov_b32 s{s_base}, 0")
    g.setup(s_w, s_hg, s_base)
    a(f"s_and_b32 s{s_t1}, s{s_tt}, 3")
    a(f"s_lshl_b32 s{s_i4}, s{s_t1}, 2")
    a(f"s_mul_i32 s{s_w0}, s{s_t1}, {27*16*1280}")
    a(f"s_mul_i32 s{s_t0}, s{s_hg}, 320")
    a(f"s_add_u32 s{s_w0}, s{s_w0}, s{s_t0}")
    a(f"s_mul_i32 s{s_woff2}, s{s_w}, {160*1280}")
    a(f"s_add_u32 s{s_woff2}, s{s_woff2}, s{s_t0}")
    a(f"s_and_b32 s{s_slot}, s{s_tt}, 0xfc")
    a(f"s_add_u32 s{s_slot}, s{s_slot}, s{s_w}")
    a(f"s_mul_i32 s{s_a0}, s{s_slot}, {QH_TT}")
    a(f"s_mul_i32 s{s_t0}, s{s_t1}, {27*1024}")
    a(f"s_add_u32 s{s_a0}, s{s_a0}, s{s_t0}")
    a(f"s_add_u32 s{s_a0}, s{s_a0}, {WS_QH + 40*1024}")
    a(f"s_lshr_b32 s{s_ka}, s{s_tt}, 2")
    a(f"s_mul_i32 s{s_ka}, s{s_ka}, {GROT}")
    a(f"s_mul_i32 s{s_t0}, s{s_ka}, 2428")
    a(f"s_lshr_b32 s{s_t0}, s{s_t0}, 16")
    a(f"s_mul_i32 s{s_t0}, s{s_t0}, 27")
    a(f"s_sub_u32 s{s_ka}, s{s_ka}, s{s_t0}")
    a(f"s_add_u32 s{s_kw}, s{s_ka}, s{s_w}")
    ALT = {31: 0, 32: CH, 33: 2 * CH}
    def dma5(vd, S, tag):
        for m in range(4):
            a(f"buffer_load_dwordx4 v{vd+m}, {S}, s{g.s_woff} offen offset:{m*1024} lds"); g.vm.issue(tag)
        a(f"s_add_u32 m0, m0, 4096")
        a(f"buffer_load_dwordx4 v{vd+4}, {S}, s{g.s_woff} offen lds"); g.vm.issue(tag)
    def load_stage(st):
        a(f"s_cmp_ge_u32 s{s_kw}, 27")
        a(f"s_cselect_b32 s{s_t0}, 27, 0")
        a(f"s_sub_u32 s{s_kw}, s{s_kw}, s{s_t0}")
        a(f"s_mul_i32 s{g.s_woff}, s{s_kw}, {16*1280}")
        a(f"s_add_u32 s{g.s_woff}, s{g.s_woff}, s{s_w0}")
        a(f"s_add_u32 s{s_kw}, s{s_kw}, 4")
        a(f"s_add_u32 m0, s{g.s_lds}, {(st % 3)*5120}")
        dma5(g.v_wd, f"s[{SW2}:{SW2+3}]", ("S", st))
    def load_w(i):
        j = i - 27
        row = 80 * (j // 5) + (20 * (j % 5) if j % 5 < 4 else 16)
        a(f"s_add_u32 s{g.s_woff}, s{s_woff2}, {row*1280}")
        if i in ALT:
            a(f"s_mul_i32 s{s_t0}, s{s_w}, 5120")
            a(f"s_add_u32 m0, s{s_t0}, {KVB + ALT[i]}")
        else: a(f"s_add_u32 m0, s{g.s_lds}, {(i % 3)*5120}")
        dma5(v_wd2 if j % 5 == 4 else g.v_wd, f"s[{SWO}:{SWO+3}]", ("W", i))
    def areg(i): return g.v_act + 4 * ((i % 8) if i < 27 else i - 27)
    def load_a(i):
        a(f"s_lshl_b32 s{g.s_aoff}, s{s_ka}, 10")
        a(f"s_add_u32 s{g.s_aoff}, s{g.s_aoff}, s{s_a0}")
        a(f"s_add_u32 s{s_ka}, s{s_ka}, 1")
        a(f"s_cmp_eq_u32 s{s_ka}, 27")
        a(f"s_cselect_b32 s{s_ka}, 0, s{s_ka}")
        a(f"buffer_load_dwordx4 {vr(areg(i),4)}, v{g.v_l16}, {WS}, s{g.s_aoff} offen sc1"); g.vm.issue(("A", i))
    def rd_t(i, T):
        if i < 27: base, off = g.v_wa, (i % 4) * PART + (i // 4 % 3) * 5120
        else: base, off = (v_wa3, ALT[i]) if i in ALT else (g.v_wa, (i % 3) * 5120)
        for p in range(2):
            a(f"ds_read_b64_tr_b16 {vr(g.v_wf+4*T+2*p,2)}, v{base} offset:{off + T*64 + p*2560}"); g.lg.issue((i, T))
    def rd_w(i):
        g.vm.wait(("W", i))
        for T in range(5): rd_t(i, T)
    def mm(i, nxt=None):
        if JIT and i < 27:
            g.vm.wait(("A", i))
            for T in range(5):
                g.lg.wait((i, T))
                acc = vr(g.v_acc + 16 * T, 16)
                if JIT == 1:
                    a(f"v_mfma_f32_32x32x16_bf16 {acc}, {vr(g.v_wf+4*T,4)}, {vr(areg(i),4)}, {acc if i else 0}")
                if T + JIT < 5: rd_t(i, T + JIT)
                elif nxt is not None: rd_t(nxt, T + JIT - 5)
                if JIT > 1:
                    a(f"v_mfma_f32_32x32x16_bf16 {acc}, {vr(g.v_wf+4*T,4)}, {vr(areg(i),4)}, {acc if i else 0}")
            return
        g.vm.wait(("A", i), ("W", nxt))
        if HP and i < 32 and not PMASK: a(f"s_setprio {GPRIO}")
        for T in range(5):
            if PMASK and i < 32 and (T == 0 or (PMASK >> T & 1) != (PMASK >> (T - 1) & 1)): a(f"s_setprio {3 * (PMASK >> T & 1)}")
            g.lg.wait((i, T))
            acc = vr(g.v_acc + 16 * T, 16)
            if not ("nomm" in GX and 0 < i < 27): a(f"v_mfma_f32_32x32x16_bf16 {acc}, {vr(g.v_wf+4*T,4)}, {vr(areg(i),4)}, {acc if i else 0}")
            if nxt is not None and not ("nord" in GX and nxt < 27): rd_t(nxt, T)
        if HP and i < 32: a("s_setprio 3")
    def sync(st):
        g.vm.wait(("S", st))
        lds_arrive(a, SC_CNT + 32 + 4 * st, 2)
        lds_wait(a, f"G_sync{st}", SC_CNT + 32 + 4 * st, 4, 2, s_spin, s_t0, 1)
        g.lg.q = []
    g.setup2()
    a(f"v_subrev_u32 v{g.v_wa}, s{g.s_lds}, v{g.v_wa}")
    for m in range(5):
        a(f"v_add_u32 v1, {64*m}, v0")
        a(f"v_mul_u32_u24 v2, 0xcccd, v1")
        a(f"v_lshrrev_b32 v2, 22, v2")
        a(f"v_mul_u32_u24 v2, {16*1280}, v2")
        a(f"v_add_u32 v{v_wd2+m}, v2, v{g.v_wd+m}")
    a(f"s_lshr_b32 s{s_t0}, s{s_tt}, 2")
    a(f"v_mov_b32 v1, s{s_t0}")
    a(f"s_lshr_b32 s{s_t0}, s{s_i4}, 1")
    a(f"v_add_u32 v2, s{s_t0}, v0")
    flag_off(a, vfl, 1, 2, 3)
    a(f"v_mov_b32 v2, 14")
    flag_off(a, 1, 0, 2, 3)
    a("s_mov_b32 exec_lo, 0xffff")
    a("s_mov_b32 exec_hi, 0")
    poll(a, "G_pollkv", f"buffer_load_dword v2, v1, {WS}, 0 offen sc1", "v_cmp_gt_u32 vcc, 1, v2", 6)
    a("s_mov_b64 exec, -1")
    lds_wait(a, "G_wait", SC_CNT + 8, GW_N, 2, s_spin, s_t0, 1)
    if HORD == 0:
        kv(1); kv(2); landed(1); kv(3); landed(2); landed(3)
        a("s_cmp_eq_u32 s53, -1")
        a("s_cbranch_scc1 G_noh")
        h_store(" sc1", g.v_l16)
        publish(a, "G_pub", 0, 4, 3, WS_FL, 1)
        stamp(a, 4)
        a.label("G_noh")
    else:
        for c in range(1, HORD + 1): kv(c)
        a("s_cmp_eq_u32 s53, -1")
        a("s_cbranch_scc1 G_noh")
        h_store(" sc1", g.v_l16)
        q0 = list(g.vm.q)
        g.vm.q += ["H"] * 12
        for c in range(1, HORD + 1): landed(c)
        for c in range(HORD + 1, 4): kv(c)
        publish(a, "G_pub", 0, 4, 3, WS_FL, 1, vm=6 * (3 - HORD))
        stamp(a, 4)
        a("s_branch G_noh2")
        a.label("G_noh")
        g.vm.q = q0
        for c in range(HORD + 1, 4): kv(c)
        for c in range(1, HORD + 1): landed(c)
        a.label("G_noh2")
        g.vm.q = [("KV", c) for c in range(HORD + 1, 4) for _ in range(6)]
        for c in range(HORD + 1, 4): landed(c)
    for st in range(NS0): load_stage(st)
    stamp(a, 8)
    a("s_mov_b64 exec, 7")
    poll(a, "G_pollh", f"buffer_load_dword v2, v{vfl}, {WS}, 0 offen sc1", "v_cmp_gt_u32 vcc, 1, v2", 4)
    a("s_mov_b64 exec, -1")
    g.vm.q = []
    stamp(a, 9)
    if STAMP: a("s_waitcnt lgkmcnt(0)")
    for i in range(4): load_a(i)
    for st in range(NS0, 3): load_stage(st)
    for i in range(4, 8): load_a(i)
    vo = vfl
    a(f"s_mul_i32 s{s_base}, s{s_tt}, {32*1280}")
    a(f"s_mul_i32 s{s_t0}, s{s_hg}, 320")
    a(f"s_add_u32 s{s_base}, s{s_base}, s{s_t0}")
    a(f"s_lshl_b32 s{s_t0}, s{s_w}, 4")
    a(f"s_add_u32 s{s_base}, s{s_base}, s{s_t0}")
    a(f"v_and_b32 v1, 31, v0")
    a(f"v_mul_u32_u24 v{vo}, 1280, v1")
    a(f"v_lshrrev_b32 v2, 5, v0")
    a(f"v_lshl_add_u32 v{vo}, v2, 3, v{vo}")
    a(f"v_mul_u32_u24 v{v_wa2}, 1280, v2")
    a(f"v_lshl_add_u32 v{v_wa2}, v1, 3, v{v_wa2}")
    a(f"v_mul_u32_u24 v1, 0xcccd, v0")
    a(f"v_lshrrev_b32 v1, 18, v1")
    a(f"v_mul_u32_u24 v2, 5, v1")
    a(f"v_sub_u32 v2, v0, v2")
    a(f"v_mul_u32_u24 v1, 1280, v1")
    a(f"v_lshl_add_u32 v{vx}, v2, 6, v1")
    a(f"s_mul_i32 s{s_t0}, s{s_w}, 5120")
    a(f"s_add_u32 s{s_t0}, s{s_t0}, {KVB}")
    a(f"v_add_u32 v{v_wa3}, s{s_t0}, v{g.v_wa}")
    for r in range(4): a(f"v_mov_b32 v{vx+4+r}, -1")
    if not HP: a(f"s_setprio {GPRIO}")
    KVAT = [int(x) for x in os.environ.get("KVAT", "0,2,4,6").split(",")]
    sync(0)
    for T in range(JIT or 5): rd_t(0, T)
    for st in range(7):
        if st in KVAT: kv(4 + KVAT.index(st))
        n = 4 if st < 6 else 3
        for j in range(n):
            i = 4 * st + j
            if JIT:
                mm(i, i + 1 if j < n - 1 else None)
                if j == 3:
                    sync(st + 1)
                    for T in range(JIT): rd_t(i + 1, T)
                    if st + 3 <= 6: load_stage(st + 3)
                    else: load_w(24 + st)
            else:
                if j == 3:
                    sync(st + 1)
                    if st + 3 <= 6: load_stage(st + 3)
                    else: load_w(24 + st)
                mm(i, i + 1 if i < 26 else None)
            if j == 1 and st in KVAT: landed(4 + KVAT.index(st))
        for i in range(4 * st + 8, min(4 * st + 12, 27)): load_a(i)
        if st == MARK:
            a(f"s_lshl_b32 s{s_t0}, s{s_lid}, 2")
            a(f"s_add_u32 s{s_t0}, s{s_t0}, s{s_w}")
            a(f"s_mul_i32 s{s_t0}, s{s_t0}, 2560")
            a(f"s_add_u32 s{s_t0}, s{s_t0}, {WS_O}")
            def mk(sc):
                for o in (0, 1024, 1536): a(f"buffer_store_dwordx4 {vr(vx+4,4)}, v{g.v_l16}, {WS}, s{s_t0} offen offset:{o}{sc}")
            two_ways(a, "G_mk", mk)
            for _ in range(3): g.vm.issue("R")
        if st == MARK + 2:
            g.vm.wait("R")
            publish(a, "G_pubr", 4, 4, s_lid, WS_FL + 32768, 1, value=f"s{s_delta}", vm=63, word=s_i4)
            g.lg.q = []
        if st == 2:
            a(f"s_and_b32 s{s_t0}, s{s_tt}, 7" if os.environ.get("BMAP", "4") == "2" else f"s_bfe_u32 s{s_t0}, s{s_tt}, 0x30002")
            a(f"s_mul_i32 s{s_t0}, s{s_t0}, {20*1280}")
            a(f"s_add_u32 s{s_t0}, s{s_t0}, s{s_woff2}")
            a(f"s_add_u32 s{s_t1}, s{s_t0}, {10*1280}")
            a(f"buffer_load_dword v{vx+2}, v{vx}, s[{SWO}:{SWO+3}], s{s_t0} offen"); g.vm.issue("P")
            a(f"buffer_load_dword v{vx+3}, v{vx}, s[{SWO}:{SWO+3}], s{s_t1} offen"); g.vm.issue("P")
        if st == OPF:
            a(f"s_mul_i32 s{s_t0}, s{s_w}, {8*1280 - 16}")
            a(f"s_add_u32 s{s_t0}, s{s_t0}, s{s_base}")
            a("s_mov_b32 exec_hi, 0xff")
            a(f"buffer_load_dword v{vx+1}, v{vx}, s[{SOUT}:{SOUT+3}], s{s_t0} offen"); g.vm.issue("P")
            a("s_mov_b32 exec_hi, -1")
        if st == 4:
            g.vm.wait("P", "R")
            for T in range(5):
                a(f"buffer_load_dwordx2 {vr(vx+2*T,2)}, v{vo}, s[{SX}:{SX+3}], s{s_base} offen offset:{64*T}"); g.vm.issue("X")
        if st == 5:
            a(f"s_lshl_b32 s{s_t0}, s{s_tt}, 2")
            a(f"s_add_u32 s{s_t0}, s{s_t0}, s{s_w}")
            a(f"s_lshl_b32 s{s_t0}, s{s_t0}, 7")
            a(f"s_add_u32 s{s_t0}, s{s_t0}, s{s_i4}")
            a(f"s_add_u32 s{s_cch}, s{s_t0}, {WS_FL + 32768}")
            a(f"buffer_load_dword v1, off, {WS}, s{s_cch} sc1"); g.vm.issue("M")
        if st == 6:
            g.vm.wait("M")
            a("v_cmp_gt_u32 vcc, 1, v1")
            a("s_cmp_eq_u64 vcc, 0")
            a("s_cbranch_scc1 G_pollm_ok")
            poll(a, "G_pollm", f"buffer_load_dword v1, off, {WS}, s{s_cch} sc1", "v_cmp_gt_u32 vcc, 1, v1", 8)
            a(f"v_readfirstlane_b32 s{s_t0}, v1")
            a(f"s_cmp_lg_u32 s{s_t0}, s{s_delta}")
            a("s_cbranch_scc1 G_novote")
            if FASTO: lds_arrive(a, SC_K + 36, 2)
            a.label("G_novote")
        if os.environ.get("STGST"):
            stamp(a, [1, 3, 4, 6, 8, 10, 12][st]); a("s_waitcnt lgkmcnt(0)")
        elif st in (0, 3, 6):
            stamp(a, {0: 10, 3: 11, 6: 12}[st])
            if STAMP: a("s_waitcnt lgkmcnt(0)")
    assert MARK + 2 <= KVAT[-1] - 1 and MARK < 4
    pk = g.v_act
    assert 7 not in KVAT
    lds_arrive(a, SC_CNT + 32 + 28, 2)
    a(f"s_lshl_b32 s{s_t0}, s{s_w}, 2")
    a(f"s_cmp_eq_u32 s{s_t0}, s{s_i4}")
    a("s_cbranch_scc1 G_keep")
    a(f"s_lshl_b32 s{s_t0}, s{s_lid}, 2")
    a(f"s_add_u32 s{s_t0}, s{s_t0}, s{s_w}")
    a(f"s_mul_i32 s{s_t0}, s{s_t0}, 10240")
    a(f"s_add_u32 s{s_t0}, s{s_t0}, {WS_P}")
    for k in range(40): a(f"v_cvt_pk_bf16_f32 v{pk+k}, v{g.v_acc+2*k}, v{g.v_acc+2*k+1}")
    def snd(sc):
        for k in range(10):
            if k in (4, 8): a(f"s_add_u32 s{s_t0}, s{s_t0}, 4096")
            a(f"buffer_store_dwordx4 {vr(pk+4*k,4)}, v{g.v_l16}, {WS}, s{s_t0} offen offset:{(k%4)*1024}{sc}")
    two_ways(a, "G_snd", snd)
    a(f"s_lshl_b32 s{s_t0}, s{s_lid}, 7")
    a(f"s_lshl_b32 s{s_t1}, s{s_w}, 2")
    a(f"s_add_u32 s{s_t0}, s{s_t0}, s{s_t1}")
    a(f"s_add_u32 s{s_t0}, s{s_t0}, {WS_FL + 32768}")
    a("v_mov_b32 v1, 1")
    a(f"s_lshl_b32 s{s_slot}, s{s_slot}, 2")
    a(f"s_add_u32 s{s_slot}, s{s_slot}, s{s_hg}")
    a(f"s_lshl_b32 s{s_t1}, s{s_slot}, 7")
    a(f"s_add_u32 s{s_t1}, s{s_t1}, s{s_i4}")
    a(f"s_add_u32 s{s_kvg}, s{s_t1}, {WS_FL + 32768}")
    a("s_waitcnt vmcnt(0)")
    a("s_mov_b64 exec, 1")
    two_ways(a, "G_sfl", lambda sc: a(f"buffer_store_dword v1, off, {WS}, s{s_t0}{sc}"))
    a("s_mov_b64 exec, -1")
    if os.environ.get("STGST"): stamp(a, 11)
    poll(a, "G_pollr", f"buffer_load_dword v1, off, {WS}, s{s_kvg} sc1", "v_cmp_gt_u32 vcc, 1, v1", 3)
    a(f"s_mul_i32 s{s_t0}, s{s_slot}, 40960")
    a(f"s_mul_i32 s{s_t1}, s{s_i4}, 2560")
    a(f"s_add_u32 s{s_t0}, s{s_t0}, s{s_t1}")
    a(f"s_add_u32 s{s_t0}, s{s_t0}, {WS_P}")
    for k in range(10):
        if k in (4, 8): a(f"s_add_u32 s{s_t0}, s{s_t0}, 4096")
        a(f"buffer_load_dwordx4 {vr(pk+4*k,4)}, v{g.v_l16}, {WS}, s{s_t0} offen offset:{(k%4)*1024} sc1")
    a.label("G_keep")
    lds_wait(a, "G_sync7", SC_CNT + 32 + 28, 4, 2, s_spin, s_t0, 1)
    g.lg.q = []
    a(f"v_add_u32 v{g.v_wa}, s{g.s_lds}, v{g.v_wa}")
    load_w(27)
    lds_wait(a, "G_alta", SCW + 20, NW_, 2, s_spin, s_t0, 2)
    load_w(31)
    a(f"s_lshl_b32 s{s_t0}, s{s_tt}, 2")
    a(f"s_add_u32 s{s_t0}, s{s_t0}, s{s_w}")
    a(f"s_mul_i32 s{g.s_aoff}, s{s_t0}, 10240")
    a(f"s_add_u32 s{g.s_aoff}, s{g.s_aoff}, {WS_O}")
    a(f"s_lshl_b32 s{s_t1}, s{s_w}, 2")
    a(f"s_cmp_eq_u32 s{s_t1}, s{s_i4}")
    a("s_cbranch_scc1 G_keep3")
    a(f"s_mov_b32 s{s_t1}, 0xffff0000")
    for k in range(10):
        if k % 5 == 0: a(f"s_waitcnt vmcnt({15-k})")
        for r in range(4):
            a(f"v_lshlrev_b32 v{g.v_acc+8*k+2*r}, 16, v{pk+4*k+r}")
            a(f"v_and_b32 v{g.v_acc+8*k+2*r+1}, s{s_t1}, v{pk+4*k+r}")
    a.label("G_keep3")
    rd_w(27); g.lg.drain(); load_w(30)
    if not TAILST: stamp(a, 5)
    lds_wait(a, "G_alt0", SCW + 24, NW_, 2, s_spin, s_t0, 2)
    load_w(32)
    if ALT1 == 0:
        lds_wait(a, "G_alt1", SCW + 28, NW_, 2, s_spin, s_t0, 2)
        load_w(33)
    if TAILST: stamp(a, 5)
    lds_wait(a, "G_trig0", SC_K + 32, TRIG[0], 2, s_spin, s_t0, 1)
    if not HP: a(f"s_setprio {os.environ.get('TPRIO', '0')}")
    def o_poll(half):
        b = areg(27 + 5 * half)
        so = g.s_aoff if half == 0 else s_a0
        ld = [f"buffer_load_dwordx4 {vr(b+4*j,4)}, v{g.v_l16}, {WS}, s{so} offen offset:{j*1280} sc1" for j in range(4)]
        ld += [f"buffer_load_dwordx2 {vr(b+16+2*j,2)}, v{v_wa2}, {WS}, s{so} offen offset:{1024+2560*j} sc1" for j in range(2)]
        ck = [f"v_max3_u32 v{1+k}, v{b+3*k}, v{b+3*k+1}, v{b+3*k+2}" for k in range(3)]
        ck += [f"v_max3_u32 v{1+k}, v{1+k}, v{b+9+2*k}, v{b+10+2*k}" for k in range(3)]
        ck += [f"v_max3_u32 v1, v1, v{b+15}, v{b+16}", f"v_max3_u32 v2, v2, v{b+17}, v{b+18}", f"v_max_u32 v3, v3, v{b+19}",
               "v_max3_u32 v1, v1, v2, v3", "v_cmp_eq_u32 vcc, -1, v1"]
        return "\n".join(ld), "\n".join(ck)
    a(f"s_add_u32 s{s_a0}, s{g.s_aoff}, 5120")
    poll(a, "G_pollo0", *o_poll(0), OSL[0])
    g.vm.q = []
    if TAILST: stamp(a, 6); a("s_waitcnt lgkmcnt(0)")
    for i in range(27, 32):
        mm(i, i + 1)
        if 28 <= i <= 30: load_w(i + 6)
    if ALT1:
        lds_wait(a, "G_alt1", SCW + 28, NW_, 2, s_spin, s_t0, 1)
        load_w(33)
    stamp(a, 2)
    lds_wait(a, "G_trig1", SC_K + 32, TRIG[1], 2, s_spin, s_t0, 1)
    g.lg.q = []
    poll(a, "G_pollo1", *o_poll(1), OSL[1])
    g.vm.q = []
    a("s_setprio 3")
    stamp(a, 13)
    if STAMP: a("s_waitcnt lgkmcnt(0)")
    for i in range(32, 37): mm(i, i + 1 if i < 36 else None)
    stamp(a, 14)
    xf = g.v_act
    for T in range(5):
        a(f"v_lshlrev_b32 v{xf+4*T}, 16, v{vx+2*T}")
        a(f"v_and_b32 v{xf+4*T+1}, 0xffff0000, v{vx+2*T}")
        a(f"v_lshlrev_b32 v{xf+4*T+2}, 16, v{vx+2*T+1}")
        a(f"v_and_b32 v{xf+4*T+3}, 0xffff0000, v{vx+2*T+1}")
    for q in range(4):
        a(f"s_sub_u32 s{s_t0}, {q + 3}, s{s_w}")
        a(f"s_and_b32 s{s_t0}, s{s_t0}, 3")
        a(f"s_cmp_eq_u32 s{s_t0}, 3")
        a(f"s_cbranch_scc1 G_own{q}")
        a(f"s_mul_i32 s{s_t0}, s{s_t0}, 5120")
        a(f"s_add_u32 s{s_t0}, s{s_t0}, s{g.s_lds}")
        a(f"v_add_u32 v1, s{s_t0}, v{g.v_l16}")
        for T in range(5): a(f"ds_write_b128 v1, {vr(g.v_acc+16*T+4*q,4)} offset:{T*1024}")
        a(f"s_branch G_nxt{q}")
        a.label(f"G_own{q}")
        for T in range(5):
            for h in range(2): a(f"v_pk_add_f32 {vr(xf+4*T+2*h,2)}, {vr(xf+4*T+2*h,2)}, {vr(g.v_acc+16*T+4*q+2*h,2)}")
        a.label(f"G_nxt{q}")
    for k in range(3):
        a(f"s_add_u32 s{s_t0}, s{s_w}, {3 - k}")
        a(f"s_and_b32 s{s_t0}, s{s_t0}, 3")
        a(f"s_mul_i32 s{s_t0}, s{s_t0}, {PART}")
        a(f"s_add_u32 s{s_t0}, s{s_t0}, {STG + k*5120}")
        a(f"v_add_u32 v{4+k}, s{s_t0}, v{g.v_l16}")
    a("s_waitcnt lgkmcnt(0)")
    if TAILST: stamp(a, 10)
    a("s_barrier")
    if TAILST: stamp(a, 11); a("s_waitcnt lgkmcnt(0)")
    for T in range(5):
        for k in range(3):
            a(f"ds_read_b128 {vr(g.v_acc+16*T+4*k,4)}, v{4+k} offset:{T*1024}"); g.lg.issue(T)
    for T in range(5): fin_tile(a, g, T, xf, vo)
    if STAMP:
        if TAILST: stamp(a, 9)
        a("s_waitcnt vmcnt(0)"); stamp(a, 7); stamp(a, 15, True)
        a(f"s_add_u32 s{s_w}, s{s_w}, 8")
        stamp_flush(a, 1, SWS, s_w, 12, 16, gsel=[(9, False), (10, False), (12, False), (13, False), (14, False), (15, False)], goff=8)
    if os.environ.get("PADT"):
        a.label("G_pad")
        a("s_memrealtime s[68:69]")
        a("s_waitcnt lgkmcnt(0)")
        a("s_sub_u32 s68, s68, s66")
        a(f"s_cmp_lt_u32 s68, {os.environ['PADT']}")
        a("s_cbranch_scc1 G_pad")
    a("s_endpgm")
    return vx + 10

def fin_tile(a, g, T, xf, vo):
    b = g.v_acc + 16 * T
    g.lg.wait(T)
    for h in range(2):
        a(f"v_pk_add_f32 {vr(b+2*h,2)}, {vr(b+2*h,2)}, {vr(b+4+2*h,2)}")
        a(f"v_pk_add_f32 {vr(b+8+2*h,2)}, {vr(b+8+2*h,2)}, {vr(xf+4*T+2*h,2)}")
    for h in range(2):
        a(f"v_pk_add_f32 {vr(b+2*h,2)}, {vr(b+2*h,2)}, {vr(b+8+2*h,2)}")
    a(f"v_cvt_pk_bf16_f32 v{b}, v{b}, v{b+1}")
    a(f"v_cvt_pk_bf16_f32 v{b+1}, v{b+2}, v{b+3}")
    a(f"buffer_store_dwordx2 {vr(b,2)}, v{vo}, s[{SOUT}:{SOUT+3}], s{s_base} offen offset:{64*T}{os.environ.get('OUTP', '')}")

def gen_f(a, name="parallel_sum__grouped_kv_mqa__dense_activation_relu__prompt_kernel"):
    kernel_header(a, name)
    a("s_cmp_ge_u32 s2, 256")
    a("s_cbranch_scc1 F_end")
    stamp(a, 0, True); stamp(a, 1)
    if os.environ.get("PADT"): a("s_memrealtime s[66:67]")
    BMAP = int(os.environ.get("BMAP", "4"))
    if BMAP == 0: a(f"s_mov_b32 s{s_lid}, s2")
    elif BMAP == 1:
        a(f"s_bfe_u32 s{s_lid}, s2, 0x20001")
        a(f"s_lshl_b32 s{s_lid}, s{s_lid}, 4")
        a(f"s_lshr_b32 s35, s2, 4")
        a(f"s_add_u32 s{s_lid}, s{s_lid}, s35")
        a(f"s_lshl_b32 s{s_lid}, s{s_lid}, 1")
        a(f"s_and_b32 s35, s2, 1")
        a(f"s_add_u32 s{s_lid}, s{s_lid}, s35")
        a(f"s_lshl_b32 s{s_lid}, s{s_lid}, 1")
        a(f"s_bfe_u32 s35, s2, 0x10003")
        a(f"s_add_u32 s{s_lid}, s{s_lid}, s35")
    elif BMAP == 3:
        a(f"s_lshr_b32 s{s_lid}, s2, 4")
        a(f"s_lshl_b32 s{s_lid}, s{s_lid}, 3")
        a(f"s_and_b32 s35, s2, 7")
        a(f"s_add_u32 s{s_lid}, s{s_lid}, s35")
        a(f"s_lshl_b32 s{s_lid}, s{s_lid}, 1")
        a(f"s_bfe_u32 s35, s2, 0x10003")
        a(f"s_add_u32 s{s_lid}, s{s_lid}, s35")
    elif BMAP == 4:
        a(f"s_and_b32 s{s_lid}, s2, 1")
        a(f"s_lshl_b32 s{s_lid}, s{s_lid}, 3")
        a(f"s_lshr_b32 s35, s2, 5")
        a(f"s_add_u32 s{s_lid}, s{s_lid}, s35")
        a(f"s_lshl_b32 s{s_lid}, s{s_lid}, 2")
        a(f"s_bfe_u32 s35, s2, 0x20001")
        a(f"s_add_u32 s{s_lid}, s{s_lid}, s35")
        a(f"s_lshl_b32 s{s_lid}, s{s_lid}, 2")
        a(f"s_bfe_u32 s35, s2, 0x20003")
        a(f"s_add_u32 s{s_lid}, s{s_lid}, s35")
    else:
        a(f"s_and_b32 s{s_lid}, s2, 7")
        a(f"s_lshl_b32 s{s_lid}, s{s_lid}, 5")
        a(f"s_lshr_b32 s35, s2, 3")
        a(f"s_add_u32 s{s_lid}, s{s_lid}, s35")
    if STAMP == 3: a("s_mov_b32 s72, 0")
    def clear_cnt(a):
        a("v_lshlrev_b32 v1, 2, v0")
        a(f"v_add_u32 v1, {SC_CNT}, v1")
        a("v_mov_b32 v2, 0")
        a("ds_write_b32 v1, v2")
        a("ds_write_b32 v1, v2 offset:256")
        a("v_cmp_lt_u32 vcc, 6, v0")
        a("v_cndmask_b32 v2, 0, 4, vcc")
        a("ds_write_b32 v1, v2 offset:512")
        a("s_waitcnt lgkmcnt(0)")
    def start_hook(a):
        clear_cnt(a)
        attn_addr(a)
        if TLBW:
            a(f"s_cmp_lg_u32 s{s_w}, 5")
            a("s_cbranch_scc1 F_notlb")
            for _ in range(TLBW - 1): a("s_barrier")
            a(f"v_lshlrev_b32 v1, {TLBS}, v0")
            a(f"v_add_u32 v1, 0x100, v1")
            for ptr, n in ((56, 1728 * 1280), (58, 640 * 1280), (60, 2048 * 1280)):
                srd(a, 16, ptr, n)
                a(f"buffer_load_dword v2, v1, s[16:19], 0 offen")
            for k in range((WS_SIZE >> TLBS) // 64 + 1):
                a(f"s_mov_b32 s35, {k * 64 << TLBS}")
                a(f"buffer_load_dword v2, v1, {WS}, s35 offen sc1")
            for _ in range(10 - (TLBW - 1)): a("s_barrier")
            a("s_waitcnt vmcnt(0)")
            a("s_branch F_attn")
            a.label("F_notlb")
    def pre_ba(a): attn_addr(a)
    def done_help(a): a("s_branch F_fetch")
    def done_stats(a): a("s_branch F_dry" if DRY else "s_branch F_attn")
    def done_comp(a): a("s_branch F_pub")
    def spare(a):
        ka2.produce_stats(a)
        clear_cnt(a)
        attn_addr(a)
        a(f"s_cmp_lg_u32 s{s_w}, 0")
        a("s_cbranch_scc1 F_sp1")
        ka2.dbg_check(a, "F_dbg")
        a.label("F_sp1")
        a("s_barrier")
        a(f"s_cmp_ge_u32 s{s_w}, 8")
        a("s_cbranch_scc1 F_gemm0")
        a(f"s_cmp_ge_u32 s{s_w}, 4")
        a("s_cbranch_scc1 F_dry" if DRY else "s_cbranch_scc1 F_attn")
    phase_a(a, done_help, done_stats, done_comp, spare, start_hook, pre_ba)
    a.label("F_fetch")
    fetch(a)
    a.label("F_attn")
    attention(a)
    if DRY:
        a.label("F_dry")
        a(f"s_cmp_eq_u32 s{s_w}, 4")
        a("s_cbranch_scc1 F_attn")
        a("s_mov_b64 exec, 0")
        a(f"s_mov_b32 s{s_c}, 7")
        a(f"s_cmp_eq_u32 s{s_w}, 5")
        a("s_cbranch_scc1 B_loop")
        a(f"s_cmp_eq_u32 s{s_w}, 6")
        a("s_cbranch_scc1 B_u3")
        a("s_branch B_synced")
        a.label("F_dryret")
        a("s_mov_b64 exec, -1")
        a("s_nop 7")
        a("s_nop 7")
        a("s_branch F_attn")
    a.label("F_pub")
    stamp(a, 3)
    publish(a, "F_pub2", 0, 4, 3, WS_FL, 1)
    stamp(a, 4)
    lds_wait(a, "F_all", SC_CNT, 4, 2, s_spin, s_t0)
    a.label("F_gemm0")
    a("s_mov_b32 s53, -1")
    a.label("F_gemm")
    nv = gemm(a)
    a.label("F_end")
    a("s_endpgm")
    assert nv <= 168, nv
    return dict(name=name, grid=256, block=768, lds=LDS_A, vgpr=168, sgpr=102 if STAMP else 72, single=True)
```

```python
from common import *

SLOT = 40960
LA = int(os.environ.get('LA', '2'))
SCR = 159744
SC_NM, SC_RS, SC_CS = SCR, SCR + 512, SCR + 1024
LDS_A = SCR + 4096
SC_CNT = SCR + 3072
ST = ' sc1'
ROT = int(os.environ.get('ROT', '0'))
NSB = 0
GATH = int(os.environ.get('GATH', '8'))
PD = int(os.environ.get('PD', '3'))
GMAP = [int(c, 16) for c in os.environ.get('GMAP', '9aefb012c345d678')]
TEAM = int(os.environ.get('TEAM', '0'))
GD = int(os.environ.get('GD', '5'))
SDOT = int(os.environ.get('SDOT', '3'))
HOLDH = int(os.environ.get('HOLDH', '1'))
LATEBIT = os.environ.get('LATEBIT', '1')
AX = os.environ.get('AX', '')
PF = int(os.environ.get('PF', '0'))

SX, SW, SO, SW2 = 4, 8, 12, 16
s_w, s_rb, s_g = 32, 33, 34
s_it, s_slot, s_xoff, s_woff, s_wstep = 35, 36, 37, 38, 39
s_m0x, s_m0w, s_delta, s_relu, s_scale, s_t0, s_t1, s_out, s_dslot, s_cslot, s_ch, s_xbase, s_stride, s_col = range(40, 54)
s_tab = 54

ROLES = {
    "h": (3, 384, 3), "q": (2, 256, 2), "kv": (1, 64, 1)}

def w_read_addr(a, role, dst, s_half, tmp=1):
    NTW, RB, _ = ROLES[role]
    t = tmp
    a(f"v_lshrrev_b32 v{t}, 5, v0")
    a(f"v_bfe_u32 v{t+1}, v0, 2, 2")
    a(f"v_lshl_add_u32 v{t}, v{t}, 3, v{t+1}")
    a(f"v_mul_u32_u24 v{t}, {RB}, v{t}")
    a(f"v_bfe_u32 v{t+2}, v0, 4, 1")
    a(f"v_lshl_add_u32 v{t}, v{t+2}, 5, v{t}")
    a(f"v_and_b32 v{t+2}, 3, v0")
    a(f"v_lshl_add_u32 v{t}, v{t+2}, 3, v{t}")
    a(f"v_add_u32 v{t}, {16384 + LA*SLOT}, v{t}")
    if role == "kv":
        a(f"s_lshl_b32 s{s_t0}, s{s_half}, 12")
        a(f"v_add_u32 v{dst}, s{s_t0}, v{t}")
        return
    if role == "h": a(f"v_lshrrev_b32 v{t+1}, 1, v{t+1}")
    a(f"s_mul_i32 s{s_t0}, s{s_half}, {NTW}")
    for T in range(NTW):
        a(f"s_add_u32 s{s_t1}, s{s_t0}, {T}")
        a(f"v_xor_b32 v{t+2}, s{s_t1}, v{t+1}")
        a(f"v_lshl_add_u32 v{dst+T}, v{t+2}, 6, v{t}")

def slot_advance(regs):
    L = [f"s_cmp_eq_u32 s{s_slot}, {LA*SLOT}",
         f"s_cselect_b32 s{s_delta}, {(-LA*SLOT) & 0xffffffff}, s{s_cslot}",
         f"s_add_u32 s{s_slot}, s{s_slot}, s{s_delta}"]
    return L + [f"v_add_u32 v{r}, s{s_delta}, v{r}" for r in regs]

def ready(a):
    a("s_waitcnt lgkmcnt(0)")
    srd(a, SX, 20, 2048 * 1280)
    srd(a, SO, 30, WS_SIZE)

def loader(a, role, done, pre_ba, wsrd):
    NTW, RB, NW = ROLES[role]
    NW *= 2
    ND = 4 + NW
    v_xd, v_wd = 4, 8
    a(f"v_lshrrev_b32 v1, 3, v0")
    a(f"s_lshl_b32 s{s_t0}, s{s_w}, 5")
    a(f"v_add_u32 v1, s{s_t0}, v1")
    a(f"v_mul_u32_u24 v1, 1280, v1")
    a(f"v_and_b32 v2, 7, v0")
    a(f"v_lshrrev_b32 v3, 4, v0")
    a(f"v_xor_b32 v2, v2, v3")
    a(f"v_lshl_add_u32 v{v_xd}, v2, 4, v1")
    a(f"v_xor_b32 v2, 4, v2")
    a(f"v_lshl_add_u32 v{v_xd+1}, v2, 4, v1")
    a(f"v_add_u32 v{v_xd+1}, {10240-1024}, v{v_xd+1}")
    a(f"v_add_u32 v{v_xd+2}, {2*(10240-1024)}, v{v_xd}")
    a(f"v_add_u32 v{v_xd+3}, {2*(10240-1024)}, v{v_xd+1}")
    a(f"s_lshl_b32 s{s_m0x}, s{s_w}, 12")
    def dma_x():
        a(f"s_and_b32 s{s_ch}, s{s_tab}, 15")
        a(f"s_lshr_b64 s[{s_tab}:{s_tab+1}], s[{s_tab}:{s_tab+1}], 4")
        a(f"s_lshl_b32 s{s_xoff}, s{s_ch}, 7")
        a(f"s_add_u32 s{s_xoff}, s{s_xoff}, s{s_xbase}")
        a(f"s_add_u32 m0, s{s_dslot}, s{s_m0x}")
        a(f"s_mul_i32 s{s_woff}, s{s_ch}, s{s_wstep}")
        for e in range(4):
            a(f"buffer_load_dwordx4 v{v_xd+e}, s[{SX}:{SX+3}], s{s_xoff} offen offset:{e*1024} lds")
    def dma_w():
        a(f"s_add_u32 m0, s{s_dslot}, s{s_m0w}")
        if role == "kv":
            a(f"buffer_load_dwordx4 v{v_wd}, s[{SW}:{SW+3}], s{s_woff} offen lds")
            a(f"s_add_u32 m0, m0, 4096")
            a(f"buffer_load_dwordx4 v{v_wd}, s[{SW2}:{SW2+3}], s{s_woff} offen lds")
        else:
            for m in range(NW):
                if m == 4: a(f"s_add_u32 m0, m0, 4096")
                a(f"buffer_load_dwordx4 v{v_wd+m}, s[{SW}:{SW+3}], s{s_woff} offen offset:{(m%4)*1024} lds")
    a(f"s_mov_b32 s{s_dslot}, 0")
    if role == "kv":
        a(f"s_lshl_b32 s{s_m0w}, s{s_w}, 10")
        a(f"s_add_u32 s{s_m0w}, s{s_m0w}, 16384")
        a(f"v_lshrrev_b32 v1, 2, v0")
        a(f"s_lshl_b32 s{s_t0}, s{s_w}, 4")
        a(f"v_add_u32 v1, s{s_t0}, v1")
        a(f"v_mul_u32_u24 v1, 40, v1")
        a(f"v_and_b32 v2, 3, v0")
        a(f"v_lshl_add_u32 v{v_wd}, v2, 4, v1")
    else:
        PR = RB // 16
        a(f"s_mul_i32 s{s_m0w}, s{s_w}, {NW*1024}")
        a(f"s_add_u32 s{s_m0w}, s{s_m0w}, 16384")
        a(f"s_lshl_b32 s{s_t0}, s{s_w}, 4")
        a(f"s_mul_i32 s{s_t0}, s{s_t0}, s{s_stride}")
        a(f"s_add_u32 s{s_t0}, s{s_t0}, s{s_col}")
        for m in range(NW // 2):
            a(f"v_add_u32 v1, {64*m}, v0")
            if PR == 16:
                a(f"v_lshrrev_b32 v2, 4, v1")
                a(f"v_and_b32 v3, 15, v1")
                a(f"v_and_b32 v1, 3, v2")
            else:
                a(f"v_mul_u32_u24 v2, 0xaaab, v1")
                a(f"v_lshrrev_b32 v2, 20, v2")
                a(f"v_mul_u32_u24 v3, 24, v2")
                a(f"v_sub_u32 v3, v1, v3")
                a(f"v_bfe_u32 v1, v2, 1, 1")
            a(f"v_lshlrev_b32 v1, 2, v1")
            a(f"v_xor_b32 v3, v3, v1")
            a(f"v_mul_lo_u32 v2, v2, s{s_stride}")
            a(f"v_lshl_add_u32 v2, v3, 4, v2")
            a(f"v_add_u32 v{v_wd+m}, s{s_t0}, v2")
        stride = 3456 if role == "h" else 1280
        for m in range(NW // 2, NW):
            a(f"v_add_u32 v{v_wd+m}, {8*stride - (m%4)*1024}, v{v_wd+m-NW//2}")
        for m in range(1, NW // 2): a(f"v_subrev_u32 v{v_wd+m}, {m*1024}, v{v_wd+m}")
    a("s_waitcnt lgkmcnt(0)")
    srd(a, SX, 20, 2048 * 1280)
    wsrd()
    dma_x(); dma_w()
    srd(a, SO, 30, WS_SIZE)
    for c in range(1, LA):
        a(f"s_mov_b32 s{s_dslot}, {c*SLOT}")
        dma_x(); dma_w()
    stamp(a, 2)
    a(f"s_mov_b32 s{s_it}, 0")
    a(f"s_mov_b32 s{s_dslot}, {LA*SLOT}")
    a.label(f"AL_loop_{role}")
    a(f"s_waitcnt vmcnt({(LA-1)*ND})")
    a("s_barrier")
    if "nodma" not in AX: dma_x(); dma_w()
    a(f"s_add_u32 s{s_dslot}, s{s_dslot}, s{s_cslot}")
    a(f"s_cmp_eq_u32 s{s_dslot}, {(LA+1)*SLOT}")
    a(f"s_cselect_b32 s{s_dslot}, 0, s{s_dslot}")
    a(f"s_add_u32 s{s_it}, s{s_it}, 1")
    a(f"s_cmp_lt_u32 s{s_it}, {10-LA}")
    a(f"s_cbranch_scc1 AL_loop_{role}")
    for k in range(LA):
        if k == LA - 1 and pre_ba: pre_ba(a)
        a(f"s_waitcnt vmcnt({(LA-1-k)*ND})")
        a("s_barrier")
    stamp(a, 3)
    done(a)

SDBG = 16
def dbg_check(a, name, between=None):
    srd(a, SDBG, 62, 256)
    a("v_lshlrev_b32 v1, 2, v0")
    a("s_mov_b32 exec_lo, 0xffff")
    a("s_mov_b32 exec_hi, 0")
    poll(a, name, f"buffer_load_dword v2, v1, s[{SDBG}:{SDBG+3}], 0 offen sc1", "v_cmp_ne_u32 vcc, 1, v2", 8, between=between)
    a("s_mov_b64 exec, -1")

def idle(a, done):
    a(f"s_cmp_eq_u32 s{s_w}, 4")
    a("s_cbranch_scc1 AI_w4")
    for it in range(10):
        a("s_barrier")
        if it in (0, 4): stamp(a, {0: 4, 4: 6}[it])
    done(a)
    a.label("AI_w4")
    a("s_setprio 3")
    bar = lambda: a("s_barrier")
    for it in range(GD): bar()
    dbg_check(a, "AI_dbg", bar)
    for it in range(GD + 1, GATH): bar()
    a(f"s_lshl_b32 s{s_t0}, s{s_rb}, 10")
    a(f"s_add_u32 s{s_t0}, s{s_t0}, {WS_STAT}")
    a(f"v_lshlrev_b32 v1, 3, v0")
    O = f"s[{SO}:{SO+3}]"
    poll(a, "AI_stat", f"buffer_load_dwordx2 v[4:5], v1, {O}, s{s_t0} offen sc1\nbuffer_load_dwordx2 v[6:7], v1, {O}, s{s_t0} offen offset:512 sc1",
         "v_min_u32 v2, v5, v7\nv_cmp_eq_u32 vcc, 0, v2", 2, between=bar)
    a(f"v_lshlrev_b32 v1, 2, v0")
    a(f"v_add_u32 v1, {SC_NM}, v1")
    a(f"v_mul_f32 v5, s{s_scale}, v5")
    a(f"v_mul_f32 v7, s{s_scale}, v7")
    a(f"ds_write_b32 v1, v4")
    a(f"ds_write_b32 v1, v6 offset:256")
    a(f"ds_write_b32 v1, v5 offset:512")
    a(f"ds_write_b32 v1, v7 offset:768")
    a("s_waitcnt lgkmcnt(0)")
    stamp(a, 3); stamp(a, 4); stamp(a, 6)
    for it in range(GATH + 1, 10): bar()
    a("s_setprio 0")
    done(a)

def clear_words(a):
    O = f"s[{SO}:{SO+3}]"
    for r in range(4, 8): a(f"v_mov_b32 v{r}, 0")
    a(f"v_lshlrev_b32 v1, 4, v0")
    a(f"s_lshl_b32 s{s_t0}, s{s_rb}, 10")
    a(f"s_add_u32 s{s_t0}, s{s_t0}, {WS_STAT}")
    a(f"buffer_store_dwordx4 v[4:7], v1, {O}, s{s_t0} offen sc1")
    a(f"v_lshlrev_b32 v1, 7, v0")
    a(f"s_lshl_b32 s{s_t0}, s{s_rb}, 12")
    a(f"s_add_u32 s{s_t0}, s{s_t0}, {WS_FL}")
    a("s_mov_b32 exec_hi, 0")
    a(f"buffer_store_dwordx4 v[4:7], v1, {O}, s{s_t0} offen sc1")
    srd(a, SDBG, 62, 256)
    a(f"v_mov_b32 v3, 1")
    a(f"s_lshl_b32 s{s_t0}, s{s_rb}, 2")
    stamp(a, 5)
    a("s_waitcnt vmcnt(0)")
    stamp(a, 6)
    a("s_mov_b64 exec, 1")
    a(f"buffer_store_dword v3, v4, s[{SDBG}:{SDBG+3}], s{s_t0} offen sc1")
    a("s_mov_b64 exec, -1")
    if STAMP: a("s_waitcnt vmcnt(0)")
    stamp(a, 3)

def produce_stats(a):
    O = f"s[{SO}:{SO+3}]"
    a(f"s_cmp_ge_u32 s{s_w}, 8")
    a("s_cbranch_scc1 AP_clear")
    a(f"v_lshrrev_b32 v1, 3, v0")
    a(f"s_lshl_b32 s{s_t0}, s{s_w}, 4")
    a(f"v_add_u32 v1, s{s_t0}, v1")
    a(f"v_mul_u32_u24 v1, 1280, v1")
    a(f"v_and_b32 v2, 7, v0")
    a(f"v_lshl_add_u32 v1, v2, 4, v1")
    a(f"s_add_u32 s{s_t0}, s{s_xbase}, 10240")
    XR, AS = 16, 8
    def ld(c):
        a(f"s_and_b32 s{s_ch}, s{s_tab}, 15")
        a(f"s_lshr_b64 s[{s_tab}:{s_tab+1}], s[{s_tab}:{s_tab+1}], 4")
        a(f"s_lshl_b32 s{s_ch}, s{s_ch}, 7")
        a(f"s_add_u32 s{s_xoff}, s{s_ch}, s{s_xbase}")
        a(f"s_add_u32 s{s_woff}, s{s_ch}, s{s_t0}")
        for e in range(2):
            a(f"buffer_load_dwordx4 {vr(XR+8*c+4*e,4)}, v1, s[{SX}:{SX+3}], s{s_woff if e else s_xoff} offen")
    for c in range(PD): ld(c)
    a(f"s_mov_b32 s{s_relu}, 0x3f803f80")
    for r in range(AS, AS + 8): a(f"v_mov_b32 v{r}, 0")
    for c in range(10):
        a(f"s_waitcnt vmcnt({2*(min(c+PD, 10)-c-1)})")
        if c + PD < 10: ld(c + PD)
        for e in range(2):
            for i in range(4):
                x = XR + 8 * c + 4 * e + i
                a(f"v_dot2c_f32_bf16 v{AS+2*e+(i&1)}, s{s_relu}, v{x}")
                a(f"v_dot2c_f32_bf16 v{AS+4+2*e+(i&1)}, v{x}, v{x}")
    vals = [AS, AS + 2, AS + 4, AS + 6]
    for r in vals: a(f"v_add_f32 v{r}, v{r}, v{r+1}")
    for ctl in ("quad_perm:[1,0,3,2]", "quad_perm:[2,3,0,1]", "row_half_mirror"):
        for r in vals: a(f"v_add_f32_dpp v{r}, v{r}, v{r} {ctl} row_mask:0xf bank_mask:0xf")
    a(f"v_and_b32 v2, 1, v0")
    a(f"v_cmp_eq_u32 vcc, 1, v2")
    a(f"v_cndmask_b32 v4, v{AS}, v{AS+2}, vcc")
    a(f"v_cndmask_b32 v5, v{AS+4}, v{AS+6}, vcc")
    inv = f32bits(1.0 / 640.0)
    a(f"v_mul_f32 v4, {hex(inv)}, v4")
    a(f"v_mul_f32 v5, {hex(inv)}, v5")
    a(f"v_fma_f32 v5, -v4, v4, v5")
    a(f"v_max_f32 v5, 0, v5")
    a(f"v_cvt_pk_bf16_f32 v5, v5, v5")
    a(f"v_lshlrev_b32 v5, 16, v5")
    a(f"v_add_f32 v5, {hex(f32bits(1e-5))}, v5")
    a(f"v_cvt_pk_bf16_f32 v5, v5, v5")
    a(f"v_lshlrev_b32 v5, 16, v5")
    a(f"v_sqrt_f32 v5, v5")
    a(f"v_cvt_pk_bf16_f32 v5, v5, v5")
    a(f"v_lshlrev_b32 v5, 16, v5")
    a(f"v_rcp_f32 v5, v5")
    a(f"v_cvt_pk_bf16_f32 v4, -v4, -v4")
    a(f"v_lshrrev_b32 v1, 3, v0")
    a(f"v_lshl_add_u32 v1, v2, 3, v1")
    a(f"v_lshlrev_b32 v1, 3, v1")
    a(f"v_or_b32 v5, 1, v5")
    a(f"s_lshl_b32 s{s_t0}, s{s_rb}, 10")
    a(f"s_lshl_b32 s{s_t1}, s{s_w}, 7")
    a(f"s_add_u32 s{s_t0}, s{s_t0}, s{s_t1}")
    a(f"s_add_u32 s{s_t0}, s{s_t0}, {WS_STAT}")
    a("s_barrier")
    a("s_mov_b32 exec_lo, 0x03030303")
    a("s_mov_b32 exec_hi, 0x03030303")
    a(f"buffer_store_dwordx2 v[4:5], v1, {O}, s{s_t0} offen sc1")
    a("s_mov_b64 exec, -1")
    stamp(a, 3)
    a("s_branch AP_done")
    a.label("AP_clear")
    a.label("AP_bar")
    a("s_barrier")
    a.label("AP_done")

def prefetch(a, role):
    NTW, RB, _ = ROLES[role]
    c = s_t1
    a(f"s_sub_u32 s{c}, s{s_w}, 8")
    a(f"s_lshr_b32 s{s_t0}, s2, 6")
    a(f"s_lshl_b32 s{s_t0}, s{s_t0}, 2")
    a(f"s_add_u32 s{s_t0}, s{s_t0}, s{c}")
    a(f"s_mul_i32 s{s_t0}, s{s_t0}, {8*1280}")
    a(f"s_add_u32 s{s_t0}, s{s_t0}, s{s_xbase}")
    a(f"v_and_b32 v1, 7, v0")
    a(f"v_mul_u32_u24 v1, 1280, v1")
    a(f"v_lshrrev_b32 v2, 3, v0")
    a(f"v_lshl_add_u32 v3, v2, 7, v1")
    a(f"buffer_load_dword v5, v3, s[{SX}:{SX+3}], s{s_t0} offen offset:128")
    if role != "kv":
        NL = RB // 128
        a(f"v_mul_u32_u24 v2, {65536 // (2*NL) + 1}, v0")
        a(f"v_lshrrev_b32 v2, 16, v2")
        a(f"v_mul_u32_u24 v3, {2*NL}, v2")
        a(f"v_sub_u32 v3, v0, v3")
        a(f"v_and_b32 v4, 1, v3")
        a(f"v_lshrrev_b32 v3, 1, v3")
        a(f"v_lshl_add_u32 v2, v2, 6, v4")
        a(f"v_mul_lo_u32 v2, v2, s{s_stride}")
        a(f"v_lshl_add_u32 v2, v3, 7, v2")
        a(f"s_bfe_u32 s{s_t0}, s2, 0x30003")
        a(f"s_lshl_b32 s{s_t0}, s{s_t0}, 2")
        a(f"s_add_u32 s{s_t0}, s{s_t0}, s{c}")
        a(f"s_lshl_b32 s{s_t0}, s{s_t0}, 1")
        a(f"s_mul_i32 s{s_t0}, s{s_t0}, s{s_stride}")
        a(f"s_add_u32 s{s_delta}, s{s_t0}, s{s_col}")
        a(f"buffer_load_dword v7, v2, s[{SW}:{SW+3}], s{s_delta} offen")
    a(f"s_lshr_b32 s{s_t0}, s2, 6")
    a(f"s_lshl_b32 s{s_t0}, s{s_t0}, 2")
    a(f"s_add_u32 s{s_t0}, s{s_t0}, s{c}")
    a(f"s_mul_i32 s{s_t0}, s{s_t0}, {8*1280}")
    a(f"s_add_u32 s{s_t0}, s{s_t0}, s{s_xbase}")
    a(f"buffer_load_dword v15, v1, s[{SX}:{SX+3}], s{s_t0} offen offset:1152")

def compute(a, role, done, vmode=False):
    NTW, RB, _ = ROLES[role]
    tag = role + ("v" if vmode else "")
    v_xa, v_wa = 8, 12
    XF = [16, 36]; WF = [24, 44]
    SEL, CSA, ACC = 56, 60, 72
    lg = Cnt(a, "lgkmcnt", 15)
    s_rp, s_half = s_m0x, s_m0w
    if NSB: a("s_barrier")
    if PF: prefetch(a, role)
    for _ in range(NSB - 1): a("s_barrier")
    a(f"v_and_b32 v1, 31, v0")
    a(f"v_lshrrev_b32 v2, 5, v0")
    a(f"v_bfe_u32 v3, v0, 1, 3")
    a(f"v_xor_b32 v3, v3, v2")
    a(f"v_lshlrev_b32 v3, 4, v3")
    a(f"v_lshlrev_b32 v1, 7, v1")
    a(f"s_lshl_b32 s{s_t0}, s{s_rp}, 13")
    a(f"s_add_u32 s{s_t0}, s{s_t0}, {LA*SLOT}")
    a(f"v_add_u32 v1, s{s_t0}, v1")
    for j in range(4):
        a(f"v_xor_b32 v4, {j<<5}, v3")
        a(f"v_add_u32 v{v_xa+j}, v1, v4")
    w_read_addr(a, role, v_wa, s_half)
    a(f"v_lshrrev_b32 v1, 2, v0")
    a(f"v_lshrrev_b32 v2, 4, v0")
    a(f"v_xor_b32 v1, v1, v2")
    a(f"v_and_b32 v1, 1, v1")
    a(f"v_subrev_u32 v1, 1, v1")
    for i in range(4): a(f"v_and_b32 v{SEL+i}, 0x3f803f80, v1")
    for r in range(XF[1], WF[1] + 4 * NTW): a(f"v_mov_b32 v{r}, 0")
    z = vr(XF[1], 4)
    for t in range(2 * NTW): a(f"v_mfma_f32_32x32x16_bf16 {vr(ACC+16*t,16)}, {z}, {z}, 0")
    for T in range(NTW): a(f"v_mfma_f32_16x16x32_bf16 {vr(CSA+4*T,4)}, {z}, {z}, 0")
    a(f"s_mov_b32 s{s_it}, 0")
    a(f"s_mov_b32 s{s_slot}, {LA*SLOT}")
    def mfma(R, T, u):
        acc = vr(ACC + 16 * (R * NTW + T), 16); x = vr(XF[u] + 4 * R, 4); w = vr(WF[u] + 4 * T, 4)
        if vmode: a(f"v_mfma_f32_32x32x16_bf16 {acc}, {x}, {w}, {acc}")
        else: a(f"v_mfma_f32_32x32x16_bf16 {acc}, {w}, {x}, {acc}")
    def step(jn, u, cs, post=None, lo=0, hi=99):
        n = u ^ 1
        reads = []
        if jn is not None and "nord" not in AX:
            def rw(T):
                for p in range(2):
                    reads.append((f"ds_read_b64_tr_b16 {vr(WF[n]+4*T+2*p,2)}, v{v_wa+T} offset:{jn*16*RB+p*4*RB}", ("W", n, T)))
            reads.append((f"ds_read_b128 {vr(XF[n],4)}, v{v_xa+jn}", ("X", n, 0)))
            rw(0)
            reads.append((f"ds_read_b128 {vr(XF[n]+4,4)}, v{v_xa+jn} offset:4096", ("X", n, 1)))
            for T in range(1, NTW): rw(T)
        post = list(post or [])
        order = [(R, T) for T in range(NTW) for R in range(2)][lo:hi]
        per = 3 if post else 2
        for k, (R, T) in enumerate(order):
            last = k == len(order) - 1
            lg.wait(("X", u, R), ("W", u, T))
            mfma(R, T, u)
            room = 5
            for _ in range(99 if last else per):
                if reads:
                    t, g = reads.pop(0); a(t); lg.issue(g); room -= 1
            if not reads:
                while post and (room > 0 or last):
                    a(post.pop(0)); room -= 1
            if cs and R == 1 and 'nocs' not in AX:
                a(f"v_mfma_f32_16x16x32_bf16 {vr(CSA+4*T,4)}, {vr(SEL,4)}, {vr(WF[u]+4*T,4)}, {vr(CSA+4*T,4)}")
    stamp(a, 2)
    if STAMP: a("s_waitcnt lgkmcnt(0)")
    NM = 2 * NTW
    adv = slot_advance([v_xa, v_wa] + [v_wa + T for T in range(1, NTW)] + [v_xa + j for j in range(1, 4)])
    for t in adv: a(t)
    full = role != "h"
    if not full:
        a(f"s_cmp_eq_u32 s{s_rp}, 1")
        a(f"s_cbranch_scc1 AC_ent_{tag}1")
    for rp in range(1 if full else 2):
        e0 = full or rp == 0; e1 = full or rp == 1
        if rp == 0: a(f"s_branch AC_ent_{tag}0")
        a.raw(".p2align 6")
        a.label(f"AC_loop_{tag}{rp}")
        st = a.mark()
        a("s_waitcnt lgkmcnt(0)")
        if e0 and 'nocs' not in AX:
            a(f"v_mfma_f32_16x16x32_bf16 {vr(CSA+4*(NTW-1),4)}, {vr(SEL,4)}, {vr(WF[0]+4*(NTW-1),4)}, {vr(CSA+4*(NTW-1),4)}")
        step(None, 0, False, None, NM - 1, NM)
        a.label(f"AC_ent_{tag}{rp}")
        a("s_barrier")
        step(0, 1, e1)
        step(1, 0, e0); step(2, 1, e1)
        tail = adv + [f"s_add_u32 s{s_it}, s{s_it}, 1", f"s_cmp_lt_u32 s{s_it}, 10"]
        step(3, 0, e0, tail, 0, NM - 1)
        lg.q = []
        a(f"s_cbranch_scc1 AC_loop_{tag}{rp}")
        a.check_backedge(st)
        a("s_waitcnt lgkmcnt(0)")
        if e0 and 'nocs' not in AX:
            a(f"v_mfma_f32_16x16x32_bf16 {vr(CSA+4*(NTW-1),4)}, {vr(SEL,4)}, {vr(WF[0]+4*(NTW-1),4)}, {vr(CSA+4*(NTW-1),4)}")
        step(None, 0, False, None, NM - 1, NM)
        if e1:
            for T in range(NTW):
                a(f"v_mfma_f32_16x16x32_bf16 {vr(CSA+4*T,4)}, {vr(SEL,4)}, {vr(WF[1]+4*T,4)}, {vr(CSA+4*T,4)}")
        if rp == 0 and not full: a(f"s_branch AC_fin_{tag}")
    a.label(f"AC_fin_{tag}")
    a(f"v_and_b32 v1, 31, v0")
    a(f"s_lshl_b32 s{s_t0}, s{s_rp}, 8")
    a(f"s_add_u32 s{s_t0}, s{s_t0}, {SC_NM}")
    a(f"v_lshl_add_u32 v2, v1, 2, s{s_t0}")
    pre = [f"v_mov_b32 v{r}, 0" for r in range(XF[0], WF[0] + 4 * NTW)]
    pre += ["s_mov_b32 exec_hi, 0", f"ds_read_b32 v{XF[0]}, v2", f"ds_read_b32 v{XF[0]+4}, v2 offset:128", "s_mov_b32 exec_hi, -1",
            "ds_read_b32 v4, v2 offset:512", "ds_read_b32 v6, v2 offset:640"]
    step(None, 1, False, pre)
    stamp(a, 5)
    CS = CSA
    if not full:
        a(f"s_mul_i32 s{s_t1}, s{s_half}, {NTW*256}")
        a(f"s_add_u32 s{s_t1}, s{s_t1}, {SC_CS}")
        a(f"v_lshl_add_u32 v3, v1, 3, s{s_t1}")
        a(f"s_lshl_b32 s{s_t1}, s{s_rp}, 2")
        a(f"v_add_u32 v7, s{s_t1}, v3")
        for T in range(NTW): a(f"ds_write_b32 v7, v{CSA+4*T} offset:{T*256}")
        lds_arrive(a, SC_CNT + 12, 8)
        lds_wait(a, f"AC_sync_{tag}", SC_CNT + 12, 4, 8, s_it, s_slot, 1)
        for T in range(NTW): a(f"ds_read_b64 {vr(CS+4*T,2)}, v3 offset:{T*256}")
        a(f"s_waitcnt lgkmcnt(0)")
        for T in range(NTW): a(f"v_add_f32 v{CS+4*T}, v{CS+4*T}, v{CS+4*T+1}")
    for T in range(NTW): a(f"v_cvt_pk_bf16_f32 v{CS+4*T+1}, v{CS+4*T}, v{CS+4*T}")
    for T in range(NTW): a(f"v_lshlrev_b32 v{CS+4*T+1}, 16, v{CS+4*T+1}")
    for T in range(NTW): a(f"v_sub_f32 v{CS+4*T+1}, v{CS+4*T}, v{CS+4*T+1}")
    for T in range(NTW): a(f"v_cvt_pk_bf16_f32 v{WF[0]+4*T}, v{CS+4*T}, v{CS+4*T+1}")
    a("s_waitcnt lgkmcnt(0)")
    for R in range(2):
        for T in range(NTW): mfma(R, T, 0)
    stamp(a, 6)
    O = f"s[{SO}:{SO+3}]"
    a(f"v_lshlrev_b32 v1, 4, v0")
    if role != "kv":
        for R in range(2):
            for T in range(NTW):
                b = ACC + 16 * (R * NTW + T)
                if R == 0 and T < 2:
                    for i in range(16): a(f"v_mul_f32 v{b+i}, v{4+2*R}, v{b+i}")
                else:
                    for i in range(8): a(f"v_pk_mul_f32 {vr(b+2*i,2)}, {vr(b+2*i,2)}, {vr(4+2*R,2)} op_sel_hi:[1,0]")
                if role == "h":
                    d = ACC + 8 * (R * NTW + T)
                    for i in range(8): a(f"v_cvt_pk_bf16_f32 v{d+i}, v{b+2*i}, v{b+2*i+1}")
                    for i in range(8): a(f"v_pk_max_i16 v{d+i}, v{d+i}, 0")
                    continue
                for i in range(8): a(f"v_cvt_pk_bf16_f32 v{b+i}, v{b+2*i}, v{b+2*i+1}")
                o = 2 * T * 1024
                a(f"buffer_store_dwordx4 {vr(b,4)}, v1, {O}, s{s_out} offen offset:{o}{ST}")
                a(f"buffer_store_dwordx4 {vr(b+4,4)}, v1, {O}, s{s_out} offen offset:{o+1024}{ST}")
            if R == 0 and role != "h": a(f"s_add_u32 s{s_out}, s{s_out}, {QH_TT}")
        if role == "h":
            a(f"s_mov_b32 s53, s{s_out}")
            a("s_branch F_gemm")
            return
    elif not vmode:
        for R in range(2):
            b = ACC + 16 * R
            for i in range(12): a(f"v_mul_f32 v{b+i}, v{4+2*R}, v{b+i}")
            for i in range(4): a(f"v_cvt_pk_bf16_f32 v{b+i}, v{b+2*i}, v{b+2*i+1}")
            for i in range(2): a(f"v_cvt_pk_bf16_f32 v{16+2*R+i}, v{b+8+2*i}, v{b+9+2*i}")
            a(f"buffer_store_dwordx4 {vr(b,4)}, v1, {O}, s{s_out} offen offset:{1024*R}{ST}")
        a("s_mov_b32 exec_lo, 0")
        for i in range(4): a(f"v_mov_b32 v{16+i}, {'0x3f80' if i % 2 == 0 else 0}")
        a("s_mov_b32 exec_lo, -1")
        a(f"buffer_store_dwordx4 v[16:19], v1, {O}, s{s_out} offen offset:2048{ST}")
    else:
        a(f"v_lshrrev_b32 v6, 5, v0")
        a(f"v_lshl_add_u32 v3, v6, 4, s{s_t0}")
        for R in range(2):
            for q in range(4): a(f"ds_read_b128 {vr(16+16*R+4*q,4)}, v3 offset:{512+128*R+32*q}")
        a(f"v_and_b32 v2, 31, v0")
        a(f"v_mul_u32_u24 v6, 384, v6")
        a(f"v_lshl_add_u32 v6, v2, 4, v6")
        a(f"s_add_u32 s{s_out}, s{s_out}, 3072")
        a("s_waitcnt lgkmcnt(0)")
        for R in range(2):
            b = ACC + 16 * R
            for i in range(16): a(f"v_mul_f32 v{b+i}, v{16+16*R+i}, v{b+i}")
            for i in range(8): a(f"v_cvt_pk_bf16_f32 v{b+i}, v{b+2*i}, v{b+2*i+1}")
            a("s_mov_b32 exec_lo, 0x00100000")
            a("s_mov_b32 exec_hi, 0x00100000")
            for i in range(8): a(f"v_mov_b32 v{b+i}, 0x3f803f80")
            a("s_mov_b32 exec_lo, 0x00e00000")
            a("s_mov_b32 exec_hi, 0x00e00000")
            for i in range(8): a(f"v_mov_b32 v{b+i}, 0")
            a("s_mov_b32 exec_lo, 0x00ffffff")
            a("s_mov_b32 exec_hi, 0x00ffffff")
            a(f"buffer_store_dwordx4 {vr(b,4)}, v6, {O}, s{s_out} offen offset:{1536*R}{ST}")
            a(f"buffer_store_dwordx4 {vr(b+4,4)}, v6, {O}, s{s_out} offen offset:{1536*R+768}{ST}")
            a("s_mov_b64 exec, -1")
    done(a)

def phase_a(a, done_help, done_stats, done_comp, spare, start_hook=None, pre_ba=None):
    a("s_load_dwordx8 s[20:27], s[0:1], 0")
    a("s_load_dwordx2 s[28:29], s[0:1], 48")
    a("s_load_dwordx2 s[30:31], s[0:1], 80")
    a("s_load_dwordx2 s[56:57], s[0:1], 56")
    a("s_load_dwordx2 s[58:59], s[0:1], 32")
    a("s_load_dwordx4 s[60:63], s[0:1], 64")
    a("v_lshrrev_b32 v1, 6, v0")
    a("v_and_b32 v0, 63, v0")
    a(f"v_readfirstlane_b32 s{s_w}, v1")
    ORD = os.environ.get("ORD", "0123456789,5678901234").split(",")
    a(f"s_and_b32 s{s_t0}, s2, 1")
    a(f"s_lshl_b32 s{s_t0}, s{s_t0}, 3")
    a(f"s_bfe_u32 s{s_rb}, s2, 0x30003")
    a(f"s_lshr_b32 s{s_g}, s2, 6")
    a(f"s_add_u32 s{s_t1}, s{s_g}, s{s_rb}")
    a(f"s_and_b32 s{s_t1}, s{s_t1}, {len(ORD)-1}")
    a(f"s_add_u32 s{s_rb}, s{s_rb}, s{s_t0}")
    gv = sum(g << (4 * i) for i, g in enumerate(GMAP))
    a(f"s_bfe_u32 s{s_t0}, s2, 0x20001")
    a(f"s_lshl_b32 s{s_t0}, s{s_t0}, 2")
    a(f"s_add_u32 s{s_g}, s{s_g}, s{s_t0}")
    a(f"s_lshl_b32 s{s_g}, s{s_g}, 2")
    a(f"s_mov_b32 s{s_tab}, {hex(gv & 0xffffffff)}")
    a(f"s_mov_b32 s{s_tab+1}, {hex(gv >> 32)}")
    a(f"s_lshr_b64 s[{s_tab}:{s_tab+1}], s[{s_tab}:{s_tab+1}], s{s_g}")
    a(f"s_and_b32 s{s_g}, s{s_tab}, 15")
    if TEAM:
        a(f"s_and_b32 s{s_rb}, s2, 7")
        a(f"s_lshl_b32 s{s_rb}, s{s_rb}, 1")
        a(f"s_lshr_b32 s{s_t0}, s2, 7")
        a(f"s_add_u32 s{s_rb}, s{s_rb}, s{s_t0}")
        a(f"s_bfe_u32 s{s_g}, s2, 0x40003")
        a(f"s_{'add' if TEAM == 1 else 'xor'}_{'u' if TEAM == 1 else 'b'}32 s{s_t1}, s{s_t0}, {'s%d' % s_g if TEAM == 1 else '0'}")
        if TEAM == 3:
            a(f"s_lshl_b32 s{s_t1}, s2, 1")
            a(f"s_add_u32 s{s_t1}, s{s_t1}, s{s_t0}")
        a(f"s_and_b32 s{s_t1}, s{s_t1}, {len(ORD)-1}")
    a(f"s_lshl_b32 s3, s{s_rb}, 4")
    a(f"s_add_u32 s3, s3, s{s_g}")
    for k, o in enumerate(ORD):
        assert sorted(o) == list("0123456789")
        v = sum(int(d) << (4 * i) for i, d in enumerate(o))
        if k == 0:
            a(f"s_mov_b32 s{s_tab}, {hex(v & 0xffffffff)}")
            a(f"s_movk_i32 s{s_tab+1}, {hex(v >> 32)}")
        else:
            a(f"s_cmp_eq_u32 s{s_t1}, {k}")
            a(f"s_cselect_b32 s{s_tab}, {hex(v & 0xffffffff)}, s{s_tab}")
            a(f"s_cselect_b32 s{s_tab+1}, {hex(v >> 32)}, s{s_tab+1}")
    a(f"s_mov_b32 s{s_cslot}, {SLOT}")
    a(f"s_mul_i32 s{s_xbase}, s{s_rb}, {128*1280}")
    a(f"s_cmp_ge_u32 s{s_w}, 4")
    a("s_cbranch_scc1 A_other")
    a(f"s_cmp_lt_u32 s{s_g}, 9")
    a("s_cbranch_scc1 A_lh")
    a(f"s_cmp_ge_u32 s{s_g}, 14")
    a("s_cbranch_scc1 A_lk")
    for role in ("q", "h"):
        NTW = ROLES[role][0]
        stride = 3456 if role == "h" else 1280
        if role == "h": a.label("A_lh")
        else: a(f"s_sub_u32 s{s_g}, s{s_g}, 9")
        a(f"s_movk_i32 s{s_stride}, {stride}")
        a(f"s_mov_b32 s{s_wstep}, {64*stride}")
        a(f"s_mul_i32 s{s_col}, s{s_g}, {NTW*128}")
        loader(a, role, done_help, pre_ba, lambda: srd(a, SW, 28 if role == "h" else 22, 640 * stride))
    a.label("A_lk")
    a(f"s_cmp_eq_u32 s{s_g}, 15")
    a("s_cbranch_scc1 A_spare")
    a(f"s_movk_i32 s{s_wstep}, 2560")
    loader(a, "kv", done_help, pre_ba, lambda: (srd(a, SW, 24, 640 * 40), srd(a, SW2, 26, 640 * 40)))
    a.label("A_other")
    a(f"s_cmp_eq_u32 s{s_g}, 15")
    a("s_cbranch_scc1 A_spare")
    ready(a)
    a(f"s_cmp_lt_u32 s{s_w}, 8")
    a("s_cbranch_scc1 A_stats")
    a("s_setprio 2")
    a(f"s_and_b32 s{s_m0x}, s{s_w}, 1")
    a(f"s_bfe_u32 s{s_m0w}, s{s_w}, 0x10001")
    a(f"s_lshl_b32 s{s_out}, s{s_rb}, 1")
    a(f"s_add_u32 s{s_out}, s{s_out}, s{s_m0x}")
    a(f"s_lshl_b32 s{s_out}, s{s_out}, 1")
    a(f"s_cmp_eq_u32 s{s_g}, 14")
    a("s_cbranch_scc1 A_ckv")
    a(f"s_cmp_lt_u32 s{s_g}, 9")
    a("s_cbranch_scc1 A_ch")
    for role in ("q", "h"):
        NTW = ROLES[role][0]
        if role == "h": a.label("A_ch")
        else: a(f"s_sub_u32 s{s_g}, s{s_g}, 9")
        a(f"s_mul_i32 s{s_out}, s{s_out}, {QH_TT}")
        a(f"s_lshl_b32 s{s_t0}, s{s_g}, 1")
        a(f"s_add_u32 s{s_t0}, s{s_t0}, s{s_m0w}")
        a(f"s_mul_i32 s{s_t0}, s{s_t0}, {NTW*2048}")
        a(f"s_add_u32 s{s_out}, s{s_out}, s{s_t0}")
        if role == "h": a(f"s_add_u32 s{s_out}, s{s_out}, {40*1024}")
        compute(a, role, done_comp)
    a.label("A_ckv")
    a(f"s_mul_i32 s{s_out}, s{s_out}, {KV_TILE}")
    a(f"s_add_u32 s{s_out}, s{s_out}, {WS_KV}")
    a(f"s_cmp_eq_u32 s{s_m0w}, 1")
    a(f"s_cbranch_scc1 A_cv")
    compute(a, "kv", done_comp, False)
    a.label("A_cv")
    compute(a, "kv", done_comp, True)
    a.label("A_stats")
    a(f"s_sub_u32 s{s_t0}, s{s_g}, 9")
    a(f"s_cmp_lt_u32 s{s_t0}, 5")
    a(f"s_cselect_b32 s{s_scale}, {hex(f32bits(QSCALE))}, 1.0")
    start_hook(a)
    idle(a, done_stats)
    a.label("A_spare")
    ready(a)
    a(f"s_cmp_lg_u32 s{s_w}, 8")
    a("s_cbranch_scc1 A_noclear")
    clear_words(a)
    a.label("A_noclear")
    spare(a)
```

```python
from common import *
from gw import *
import ka2
from ka2 import phase_a, SC_CNT, LDS_A
def two_ways(a, name, body): body(' sc1')

GPRIO = int(os.environ.get("GPRIO", "0"))
HOLD = 1
GROT = int(os.environ.get("GROT", "9"))
GX = os.environ.get("GX", "")
UARR = int(os.environ.get("UARR", "0"))
SC_L = None
DRY = int(os.environ.get("DRY", "0"))
PACE = [float(x) for x in os.environ.get("PACE", "1.7,7.0").split(",")]
PEND = int(os.environ.get("PEND", "99"))
ABAT = int(os.environ.get("ABAT", "0"))
PIPE = int(os.environ.get("PIPE", "1"))
KV4 = int(os.environ.get("KV4", "0"))
TRIG = [int(x) for x in os.environ.get("TRIG", "4,8").split(",")]
TAILST = os.environ.get("TAILST")
OSL = [int(x) for x in os.environ.get("OSL", "1,1").split(",")]
WOPF = int(os.environ.get("WOPF", "10"))
ALT1 = int(os.environ.get("ALT1", "0"))
MARK = int(os.environ.get("MARK", "1"))
NS0 = int(os.environ.get("NS0", "2"))
WEARLY = int(os.environ.get("WEARLY", "2"))
W2PF = int(os.environ.get("W2PF", "3"))
HP = int(os.environ.get("HP", "1"))
FASTO = int(os.environ.get("FASTO", "1"))
TRIGST = int(os.environ.get("TRIGST", "1"))
PMASK = int(os.environ.get("PMASK", "0"))
PSTEP = [int(x) for x in os.environ.get("PSTEP", "").split(",") if x]
PBASE = int(os.environ.get("PBASE", "0"))
ALIGN = int(os.environ.get("ALIGN", "0"))
HNEAR = int(os.environ.get("HNEAR", "0"))
JIT = int(os.environ.get("JIT", "0"))
LAY = int(os.environ.get("LAY", "0"))
TLBW = int(os.environ.get("TLBW", "0"))
TLBS = int(os.environ.get("TLBS", "21"))
HORD = int(os.environ.get("HORD", "0"))
GW_N = int(os.environ.get("GW_N", "8"))
OPF = int(os.environ.get("OPF", "9"))
SPEC = int(os.environ.get("SPEC", "1"))
HPI = int(os.environ.get("HPI", "32"))
NEARP = int(os.environ.get("NEARP", "0"))
AD = int(os.environ.get("AD", "8"))
LJ = int(os.environ.get("LJ", "1"))
MD = int(os.environ.get("MD", "2"))
WPF = int(os.environ.get("WPF", "2"))
XST = int(os.environ.get("XST", "4"))
BSL = int(os.environ.get("BSL", "1"))
NF = int(os.environ.get("NF", "2"))
DEFW = int(os.environ.get("DEFW", "4"))
DEFER = int(os.environ.get("DEFER", "0"))
PAIR = 2 * KV_TILE
CH = 8 * KV_TILE
STG = 0
KVB = 4 * PART
assert KVB + 4 * CH <= ka2.SCR and KVB >= ka2.SLOT
RESET_WG = (3 << 6) | (3 << 1)

SX, SW2, SWS, SWO, SOUT, SDBG = 4, 8, 12, 16, 20, 16
s_w, s_tt, s_hg, s_t0, s_t1, s_c, s_slot, s_delta, s_cch, s_base, s_spin, s_kvl, s_kvg, s_woff2 = range(32, 46)
s_gw = 46
s_lid = 97 if STAMP else 64
WS = f"s[{SWS}:{SWS+3}]"
Q1, Q2, P0, P1, O, S0, S1 = 4, 8, 12, 16, 20, 36, 52
KS = [68, 96]
v_ka, v_va, v_g0, VT = 124, 125, 126, 130
v_l16, v_cnt, v_one, v_chk = 136, 137, 138, 139
SC_K = SC_CNT + 256
SC_L = SC_K + 256
COMB = int(os.environ.get('COMB', '0'))
SCW, NW_ = (SC_L, 12) if COMB else (SC_K, 8)
s_tgt = 45

def mf(a, d, x, y, c): a(f"v_mfma_f32_32x32x16_bf16 {vr(d,16)}, {vr(x,4)}, {vr(y,4)}, {c if isinstance(c,str) else vr(c,16)}")
def mf8(a, d, x, y): a(f"v_mfma_f32_32x32x8_bf16 {vr(d,16)}, {vr(x,2)}, {vr(y,2)}, {vr(d,16)}")

def flag_off(a, vd, vrb, vg, t):
    a(f"v_lshl_add_u32 v{vd}, v{vrb}, 4, v{vg}")
    a(f"v_lshlrev_b32 v{vd}, 7, v{vd}")
    a(f"v_add_u32 v{vd}, {WS_FL}, v{vd}")

def publish(a, name, cnt_off, nwaves, sid, base, t, value=1, vm=0, word=None, near=False):
    a(f"s_waitcnt vmcnt({vm})")
    a("s_mov_b64 exec, 1")
    a(f"v_mov_b32 v{t}, {SC_CNT + cnt_off}")
    a(f"v_mov_b32 v{t+1}, 1")
    a(f"ds_add_rtn_u32 v{t+1}, v{t}, v{t+1}")
    a(f"s_lshl_b32 s{s_t0}, s{sid}, 7")
    a(f"s_add_u32 s{s_t0}, s{s_t0}, {base}")
    a(f"v_mov_b32 v{t}, {0 if word is None else 's%d' % word}")
    a(f"v_mov_b32 v{t+2}, {value}")
    a("s_waitcnt lgkmcnt(0)")
    a(f"v_readfirstlane_b32 s{s_t1}, v{t+1}")
    a(f"s_cmp_lg_u32 s{s_t1}, {nwaves-1}")
    a(f"s_cbranch_scc1 {name}")
    if near: two_ways(a, name + "w", lambda sc: a(f"buffer_store_dword v{t+2}, v{t}, {WS}, s{s_t0} offen{sc}"))
    else: a(f"buffer_store_dword v{t+2}, v{t}, {WS}, s{s_t0} offen sc1")
    a.label(name)
    a("s_mov_b64 exec, -1")

def lid(a):
    BMAP = int(os.environ.get("BMAP", "4"))
    if BMAP == 0: a(f"s_mov_b32 s{s_lid}, s2")
    elif BMAP == 1:
        a(f"s_bfe_u32 s{s_lid}, s2, 0x20001")
        a(f"s_lshl_b32 s{s_lid}, s{s_lid}, 4")
        a(f"s_lshr_b32 s35, s2, 4")
        a(f"s_add_u32 s{s_lid}, s{s_lid}, s35")
        a(f"s_lshl_b32 s{s_lid}, s{s_lid}, 1")
        a(f"s_and_b32 s35, s2, 1")
        a(f"s_add_u32 s{s_lid}, s{s_lid}, s35")
        a(f"s_lshl_b32 s{s_lid}, s{s_lid}, 1")
        a(f"s_bfe_u32 s35, s2, 0x10003")
        a(f"s_add_u32 s{s_lid}, s{s_lid}, s35")
    elif BMAP == 3:
        a(f"s_lshr_b32 s{s_lid}, s2, 4")
        a(f"s_lshl_b32 s{s_lid}, s{s_lid}, 3")
        a(f"s_and_b32 s35, s2, 7")
        a(f"s_add_u32 s{s_lid}, s{s_lid}, s35")
        a(f"s_lshl_b32 s{s_lid}, s{s_lid}, 1")
        a(f"s_bfe_u32 s35, s2, 0x10003")
        a(f"s_add_u32 s{s_lid}, s{s_lid}, s35")
    elif BMAP == 4:
        a(f"s_and_b32 s{s_lid}, s2, 1")
        a(f"s_lshl_b32 s{s_lid}, s{s_lid}, 3")
        a(f"s_lshr_b32 s35, s2, 5")
        a(f"s_add_u32 s{s_lid}, s{s_lid}, s35")
        a(f"s_lshl_b32 s{s_lid}, s{s_lid}, 2")
        a(f"s_bfe_u32 s35, s2, 0x20001")
        a(f"s_add_u32 s{s_lid}, s{s_lid}, s35")
        a(f"s_lshl_b32 s{s_lid}, s{s_lid}, 2")
        a(f"s_bfe_u32 s35, s2, 0x20003")
        a(f"s_add_u32 s{s_lid}, s{s_lid}, s35")
    else:
        a(f"s_and_b32 s{s_lid}, s2, 7")
        a(f"s_lshl_b32 s{s_lid}, s{s_lid}, 5")
        a(f"s_lshr_b32 s35, s2, 3")
        a(f"s_add_u32 s{s_lid}, s{s_lid}, s35")
    if STAMP == 3: a("s_mov_b32 s72, 0")

def decode_b(a):
    a(f"s_lshr_b32 s{s_tt}, s{s_lid}, 2")
    a(f"s_and_b32 s{s_hg}, s{s_lid}, 3")

def attn_addr(a):
    lid(a)
    a(f"s_and_b32 s{s_t0}, s{s_lid}, 3")
    a(f"s_lshl_b32 s{s_t0}, s{s_t0}, 3")
    a(f"s_add_u32 s{s_t0}, s{s_t0}, s{s_w}")
    a(f"s_mul_i32 s{s_t0}, s{s_t0}, 5")
    a(f"v_lshrrev_b32 v2, 5, v0")
    a(f"v_and_b32 v3, 31, v0")
    a(f"v_lshlrev_b32 v3, 4, v3")
    for i in range(3):
        if i < 2: a(f"v_add_u32 v1, s{s_t0}, v2")
        else: a(f"v_mov_b32 v1, s{s_t0}")
        if i: a(f"v_add_u32 v1, {2*i}, v1")
        a(f"v_lshrrev_b32 v{VT}, 2, v1")
        a(f"v_lshl_add_u32 v{v_g0+i}, v{VT}, 10, v3")
        a(f"v_and_b32 v{VT}, 1, v1")
        a(f"v_lshl_add_u32 v{v_g0+i}, v{VT}, 9, v{v_g0+i}")
        a(f"v_bfe_u32 v{VT}, v1, 1, 1")
        a(f"v_lshl_add_u32 v{v_g0+i}, v{VT}, 3, v{v_g0+i}")
    a(f"v_lshlrev_b32 v{v_l16}, 4, v0")
    a(f"v_add_u32 v{v_ka}, {KVB}, v{v_l16}")
    a(f"v_lshlrev_b32 v{v_cnt}, 2, v0")
    a(f"v_add_u32 v{v_cnt}, {SC_K}, v{v_cnt}")
    a(f"v_cmp_eq_u32 vcc, 0, v0")
    a(f"v_cndmask_b32 v{v_one}, 0, 1, vcc")
    a(f"v_and_b32 v1, 31, v0")
    a(f"v_min_u32 v1, 23, v1")
    a(f"v_mul_u32_u24 v{v_va}, 384, v2")
    a(f"v_lshl_add_u32 v{v_va}, v1, 4, v{v_va}")
    a(f"v_add_u32 v{v_va}, {KVB + 3072}, v{v_va}")

def fetch(a):
    decode_b(a)
    a(f"s_cmp_lg_u32 s{s_w}, 0")
    a("s_cbranch_scc1 B_fkv")
    a(f"s_lshr_b32 s{s_t0}, s{s_tt}, 2")
    a(f"s_add_u32 s{s_t1}, s{s_hg}, 9")
    a(f"v_mov_b32 v1, s{s_t0}")
    a(f"v_add_u32 v2, s{s_t1}, v0")
    flag_off(a, 4, 1, 2, 3)
    a("s_mov_b64 exec, 3")
    poll(a, "B_pollq", f"buffer_load_dword v2, v4, {WS}, 0 offen sc1", "v_cmp_gt_u32 vcc, 1, v2", int(os.environ.get("QSL", "2")))
    lds_arrive(a, SC_CNT + 16, 2)
    a("s_branch F_attn")
    a.label("B_fkv")
    a(f"s_lshr_b32 s{s_t0}, s{s_tt}, 3")
    a(f"s_lshl_b32 s{s_t1}, s{s_t0}, 1")
    a(f"v_add_u32 v1, s{s_t1}, v0")
    a(f"v_and_b32 v1, 15, v1")
    a(f"v_mov_b32 v2, 14")
    flag_off(a, 4, 1, 2, 3)
    a(f"s_sub_u32 s{s_kvl}, s{s_w}, 1")
    a(f"s_lshl_b32 s{s_kvl}, s{s_kvl}, 13")
    a(f"s_mov_b64 exec, {(1 << (2 * NF)) - 1}")
    poll(a, "B_pollkv", f"buffer_load_dword v2, v4, {WS}, 0 offen sc1", "v_cmp_gt_u32 vcc, 1, v2", 3)
    a("s_mov_b64 exec, -1")
    stamp(a, 5)
    for c in range(NF):
        a(f"s_add_u32 s{s_t1}, s{s_t0}, {c}")
        a(f"s_and_b32 s{s_t1}, s{s_t1}, 7")
        a(f"s_mul_i32 s{s_t1}, s{s_t1}, {CH}")
        a(f"s_add_u32 s{s_kvg}, s{s_kvl}, s{s_t1}")
        for hf in range(2):
            a(f"s_add_u32 m0, s{s_kvl}, {KVB + c*CH + hf*4096}")
            a(f"s_add_u32 s{s_t1}, s{s_kvg}, {WS_KV + hf*4096}")
            for m in range(4): a(f"buffer_load_dwordx4 v{v_l16}, {WS}, s{s_t1} offen offset:{m*1024} sc1 lds")
    a(f"s_waitcnt vmcnt({8*(NF-1)})")
    lds_arrive(a, SC_CNT + 16, 2)

def attention(a):
    decode_b(a)
    stamp(a, 8)
    a(f"s_mul_i32 s{s_base}, s{s_tt}, {QH_TT}")
    for r in list(range(KS[0] + 20, KS[0] + (28 if LAY else 24))) + list(range(P0 if LAY else P1, P1 + 4)) + list(range(O, O + 16)):
        a(f"v_mov_b32 v{r}, 0")
    a(f"s_mov_b32 s{s_c}, 0")
    a(f"s_mov_b32 s{s_slot}, 0")
    a(f"s_mov_b32 s{s_cch}, {CH}")
    if PSTEP:
        a(f"s_mov_b32 s{s_tgt}, {sum(1 << c for c in PSTEP)}")
        a(f"s_setprio {len(PSTEP) + PBASE}")
    a(f"v_mov_b32 v{Q2}, 0")
    a(f"v_mov_b32 v{Q2+1}, 0")
    lds_wait(a, "B_wait", SC_CNT + 16, 4, 2, s_spin, s_t0, BSL)
    stamp(a, 9)
    a(f"buffer_load_dwordx2 {vr(Q1,2)}, v{v_g0}, {WS}, s{s_base} offen sc1")
    a(f"buffer_load_dwordx2 {vr(Q1+2,2)}, v{v_g0+1}, {WS}, s{s_base} offen sc1")
    a("s_mov_b32 exec_hi, 0")
    a(f"buffer_load_dwordx2 {vr(Q2,2)}, v{v_g0+2}, {WS}, s{s_base} offen sc1")
    a("s_mov_b32 exec_hi, -1")
    def kv_off(kind, t):
        p = (t % 8) // 2 * PAIR; b = t % 2
        return {"K1": p + 1024 * b, "K2": p + 2048, "V0": p + 1536 * b, "V1": p + 1536 * b + 768}[kind]
    def rd(dst, kind, t):
        a(f"ds_read_b128 {vr(dst,4)}, v{v_ka if kind[0] == 'K' else v_va} offset:{kv_off(kind, t)}")
    def group_reads(o):
        n = KS[((o + 1) // 2 + 1) % 2]
        if LAY:
            return [(n + 12, "V0", o + 1), (n + 16, "V1", o + 1), (n, "K1", o + 3), (n + 8, "K2", o + 3),
                    (n + 4, "K1", o + 4), (n + 20, "V0", o + 2), (n + 24, "V1", o + 2)]
        return [(n + 12, "V1", o + 1), (n, "K1", o + 3), (n + 8, "K2", o + 3), (n + 16, "V0", o + 2),
                (n + 20, "V1", o + 2), (n + 4, "K1", o + 4), (n + 24, "V0", o + 3)]
    k0 = KS[0]
    rd(k0, "K1", 0); rd(k0 + 8, "K2", 0); rd(k0 + 4, "K1", 1)
    if not LAY: rd(k0 + 24, "V0", 0)
    for r in group_reads(-1)[:4]: rd(*r)
    a(f"v_mov_b32 v2, {SC_CNT + 8}")
    a("s_waitcnt vmcnt(0) lgkmcnt(0)")
    stamp(a, 10)
    mf(a, S1, k0, Q1, "0"); mf8(a, S1, k0 + 8, Q2)
    mf(a, S0, k0, Q1, "0")
    a("s_mov_b64 exec, 1")
    a(f"ds_add_u32 v2, v{v_one}")
    a("s_mov_b64 exec, -1")
    a(f"v_max3_f32 v{VT}, v{S1}, v{S1+1}, v{S1+2}")
    a(f"v_max3_f32 v{VT+1}, v{S1+3}, v{S1+4}, v{S1+5}")
    a(f"v_max3_f32 v{VT+2}, v{S1+6}, v{S1+7}, v{S1+8}")
    a(f"v_max3_f32 v{VT+3}, v{S1+9}, v{S1+10}, v{S1+11}")
    a(f"v_max3_f32 v{VT}, v{VT}, v{S1+12}, v{S1+13}")
    a(f"v_max3_f32 v{VT+1}, v{VT+1}, v{S1+14}, v{S1+15}")
    a(f"v_max3_f32 v{VT}, v{VT}, v{VT+2}, v{VT+3}")
    a(f"v_max_f32 v{VT}, v{VT}, v{VT+1}")
    a(f"v_mov_b32 v{VT+1}, v{VT}")
    a(f"v_permlane32_swap_b32 v{VT}, v{VT+1}")
    a(f"v_max_f32 v{VT}, v{VT}, v{VT+1}")
    a("s_mov_b32 exec_lo, 0")
    a(f"v_cvt_pk_bf16_f32 v{Q2}, -v{VT}, 0")
    a("s_mov_b32 exec_lo, -1")
    mf8(a, S0, k0 + 8, Q2)
    stamp(a, 11); stamp(a, 12, 'cyc')
    a("s_waitcnt lgkmcnt(0)")
    a("s_nop 10")
    a.raw(".p2align 6")
    a.label("B_loop")
    start = a.mark()
    for u in range(8):
        Sc, Sn = (S0, S1) if u % 2 == 0 else (S1, S0)
        odd = u % 2
        o = u if odd else u - 1
        ks = KS[((o + 1) // 2) % 2]
        reads = group_reads(o)
        slots = [[reads[0]], [reads[1]], [reads[2]], [reads[3]]] if odd else [[reads[4], reads[5]], [reads[6]], [], []]
        e = lambda i: a(f"v_exp_f32 v{Sc+i}, v{Sc+i}")
        c = lambda i: a(f"v_cvt_pk_bf16_f32 v{P0+i}, v{Sc+2*i}, v{Sc+2*i+1}")
        cp = lambda i: a(f"v_cvt_pk_bf16_f32 v{P0+i}, v{Sn+2*i}, v{Sn+2*i+1}")
        if LAY:
            rs = list(reads[:4] if odd else reads[4:])
            def misc():
                if u == 0:
                    a(f"ds_add_u32 v{v_cnt}, v{v_one} offset:{256 if COMB else 0}")
                    if PSTEP:
                        a(f"s_bitcmp1_b32 s{s_tgt}, s{s_c}")
                        a("s_cbranch_scc1 B_prio")
                        a.label("B_prioret")
                if u == 4: a(f"ds_read_b32 v{v_chk}, v{v_cnt} offset:256")
                if u == 2:
                    a(f"s_cmp_eq_u32 s{s_slot}, {3*CH}")
                    a(f"s_cselect_b32 s{s_delta}, {(-3*CH) & 0xffffffff}, s{s_cch}")
                if u == 6:
                    a(f"s_add_u32 s{s_c}, s{s_c}, 1")
                    a(f"s_cmp_lt_u32 s{s_c}, 8")
            if odd: a("s_waitcnt lgkmcnt(0)")
            mf(a, Sn, ks + (0 if odd else 4), Q1, "0")
            if u == 5:
                a(f"v_readlane_b32 s{s_t0}, v{v_chk}, s{s_c}")
                a(f"s_add_u32 s{s_slot}, s{s_slot}, s{s_delta}")
                a(f"s_cmp_lt_u32 s{s_t0}, {12 if COMB else 4}")
                if "nospin" not in GX: a("s_cbranch_scc1 B_spin")
                a.label("B_synced")
                a(f"v_add_u32 v{v_ka}, s{s_delta}, v{v_ka}")
            if u == 7: a(f"v_add_u32 v{v_va}, s{s_delta}, v{v_va}")
            if u == 2: a(f"v_mov_b32_dpp v{v_one}, v{v_one} row_shr:1 row_mask:0xf bank_mask:0xf bound_ctrl:0")
            e(0); e(1); e(2)
            mf8(a, Sn, ks + 8 + (0 if odd else 2), Q2)
            rd(*rs.pop(0))
            e(3); e(4); e(5)
            mf(a, O, ks + (12 if odd else 20), P0, O)
            if LAY == 2: rd(*rs.pop(0))
            e(6); e(7); e(8)
            mf(a, O, ks + (16 if odd else 24), P1, O)
            if LAY == 1:
                e(9); e(10); c(0); c(1)
                for r in rs: rd(*r)
                misc()
                c(2); e(11); e(12); c(3); c(4); e(13); e(14); e(15); c(5); c(6); c(7)
            else:
                rd(*rs.pop(0))
                e(9); e(10); c(0)
                for r in rs: rd(*r)
                misc()
                c(1); c(2); e(11); e(12); c(3); c(4); e(13); e(14); e(15); c(5); c(6); c(7)
            continue
        if os.environ.get("CHST") and u == 0: a("s_memtime s[98:99]" if os.environ.get("CHST") == "2" else "s_memrealtime s[98:99]")
        cp(6); e(0); e(1); cp(7); e(2); e(3)
        if odd: a("s_waitcnt lgkmcnt(0)")
        if os.environ.get("CHST") and u == 1:
            sl = [2, 3, 4, 5, 6, 8, 9, 10]
            for k in range(7): a(f"s_mov_b32 s{64+2*sl[k]}, s{64+2*sl[k+1]}")
            a(f"s_mov_b32 s{64+2*sl[7]}, s98")
        mf(a, Sn, ks + (0 if odd else 4), Q1, "0")
        for r in slots[0]: rd(*r)
        if u == 5:
            a(f"v_readlane_b32 s{s_t0}, v{v_chk}, s{s_c}")
            a(f"s_add_u32 s{s_slot}, s{s_slot}, s{s_delta}")
            a(f"s_cmp_lt_u32 s{s_t0}, {12 if COMB else 4}")
            if "nospin" not in GX: a("s_cbranch_scc1 B_spin")
            a.label("B_synced")
        if u == 2:
            a(f"s_cmp_eq_u32 s{s_slot}, {3*CH}")
            a(f"s_cselect_b32 s{s_delta}, {(-3*CH) & 0xffffffff}, s{s_cch}")
        e(4); e(5)
        if u == 5: a(f"v_add_u32 v{v_ka}, s{s_delta}, v{v_ka}")
        if u == 2: a(f"v_mov_b32_dpp v{v_one}, v{v_one} row_shr:1 row_mask:0xf bank_mask:0xf bound_ctrl:0")
        if u == 6: a(f"v_add_u32 v{v_va}, s{s_delta}, v{v_va}")
        c(0); c(1); e(6); e(7)
        mf8(a, Sn, ks + 8 + (0 if odd else 2), Q2)
        for r in slots[1]: rd(*r)
        e(8); e(9); c(2); c(3); e(10); e(11)
        mf(a, O, ks + (12 if odd else 20), P1, O)
        for r in slots[2]: rd(*r)
        if u == 0 and PSTEP:
            a(f"s_bitcmp1_b32 s{s_tgt}, s{s_c}")
            a("s_cbranch_scc1 B_prio")
            a.label("B_prioret")
        if u == 0:
            a(f"ds_add_u32 v{v_cnt}, v{v_one} offset:{256 if COMB else 0}")
        if u == 4: a(f"ds_read_b32 v{v_chk}, v{v_cnt} offset:256")
        e(12); e(13); c(4); c(5); e(14); e(15)
        mf(a, O, ks + (16 if odd else 24), P0, O)
        for r in slots[3]: rd(*r)
        if u == 6:
            a(f"s_add_u32 s{s_c}, s{s_c}, 1")
            a(f"s_cmp_lt_u32 s{s_c}, 8")
    a("s_cbranch_scc1 B_loop")
    if ALIGN: print("loop bytes/fixed", a.align8(start))
    a.check_backedge(start)
    stamp(a, 13); stamp(a, 14, 'cyc')
    if LAY:
        mf(a, O, KS[0] + 20, P0, O); mf(a, O, KS[0] + 24, P1, O)
    else:
        for i in (6, 7): a(f"v_cvt_pk_bf16_f32 v{P0+i}, v{S1+2*i}, v{S1+2*i+1}")
        mf(a, O, KS[0] + 20, P1, O)
    if not TRIGST: a(f"ds_add_u32 v{v_cnt}, v{v_one}")
    a(f"ds_read_b32 v{v_chk}, v{v_cnt}")
    a("s_waitcnt lgkmcnt(0)")
    a(f"v_mov_b32 v{VT+2}, {hex(f32bits(2.0**60))}")
    a(f"s_lshl_b32 s{s_base}, s{s_lid}, 3")
    a(f"s_add_u32 s{s_base}, s{s_base}, s{s_w}")
    a(f"s_mul_i32 s{s_base}, s{s_base}, 1280")
    a(f"s_add_u32 s{s_base}, s{s_base}, {WS_O}")
    a(f"v_lshlrev_b32 v{v_g0}, 4, v0")
    a(f"v_lshlrev_b32 v{v_g0+1}, 3, v0")
    a(f"v_mov_b32 v{VT}, v{O+8}")
    a(f"v_mov_b32 v{VT+1}, v{O+8}")
    a(f"v_permlane32_swap_b32 v{VT}, v{VT+1}")
    a(f"v_cmp_nle_f32 vcc, {hex(f32bits(2.0**-60))}, v{VT+1}")
    a(f"v_cmp_nle_f32 s[52:53], v{VT+1}, v{VT+2}")
    a(f"s_or_b64 s[52:53], s[52:53], vcc")
    a("s_cbranch_scc1 B_fallback")
    a.label("B_norm")
    a(f"v_rcp_f32 v{VT}, v{VT+1}")
    for i in range(12): a(f"v_mul_f32 v{O+i}, v{VT}, v{O+i}")
    for i in range(6): a(f"v_cvt_pk_bf16_f32 v{O+i}, v{O+2*i}, v{O+2*i+1}")
    if DRY: a("s_cbranch_execz F_dryret")
    a(f"v_readlane_b32 s{s_t0}, v{v_chk}, 9")
    a(f"s_cmp_eq_u32 s{s_t0}, 4")
    a("s_cbranch_scc1 B_near")
    a(f"buffer_store_dwordx4 {vr(O,4)}, v{v_g0}, {WS}, s{s_base} offen sc1")
    a("s_mov_b32 exec_hi, 0")
    a(f"buffer_store_dwordx2 {vr(O+4,2)}, v{v_g0+1}, {WS}, s{s_base} offen offset:1024 sc1")
    a("s_branch B_done")
    a.label("B_near")
    a(f"buffer_store_dwordx4 {vr(O,4)}, v{v_g0}, {WS}, s{s_base} offen")
    a("s_mov_b32 exec_hi, 0")
    a(f"buffer_store_dwordx2 {vr(O+4,2)}, v{v_g0+1}, {WS}, s{s_base} offen offset:1024")
    a.label("B_done")
    if TRIGST == 2: a("s_waitcnt vmcnt(0)")
    if TRIGST: a(f"ds_add_u32 v{v_cnt}, v{v_one}")
    if STAMP: a("s_waitcnt vmcnt(0)")
    if STAMP:
        stamp(a, 7); stamp(a, 15, True)
        stamp_flush(a, 1, SWS, s_w, 12, 16)
    a("s_endpgm")
    if PSTEP:
        a.label("B_prio")
        for k, c in enumerate(PSTEP):
            a(f"s_setprio {len(PSTEP) - 1 - k + PBASE}")
            a(f"s_cmp_eq_u32 s{s_c}, {c}")
            a("s_cbranch_scc1 B_prioret")
        a("s_branch B_prioret")
    a.label("B_spin")
    a(f"s_mov_b32 s{s_spin}, {SPIN * 40}")
    a.label("B_spin1")
    a(f"s_sleep {os.environ.get('SSL', '4')}")
    a(f"ds_read_b32 v{v_chk}, v{v_cnt} offset:256")
    a("s_waitcnt lgkmcnt(0)")
    a(f"v_readlane_b32 s{s_t0}, v{v_chk}, s{s_c}")
    a(f"s_cmp_ge_u32 s{s_t0}, {12 if COMB else 4}")
    a("s_cbranch_scc1 B_synced")
    a(f"s_sub_u32 s{s_spin}, s{s_spin}, 1")
    a(f"s_cmp_lg_u32 s{s_spin}, 0")
    a("s_cbranch_scc1 B_spin1")
    a("s_branch B_synced")
    a.label("B_fallback")
    a("s_mov_b32 exec_lo, 0")
    a(f"v_mov_b32 v{Q2}, 0")
    a("s_mov_b32 exec_lo, -1")
    a(f"s_add_u32 s{s_slot}, s{s_slot}, {KVB}")
    a(f"v_subrev_u32 v{v_ka}, s{s_slot}, v{v_ka}")
    a(f"v_subrev_u32 v{v_va}, s{s_slot}, v{v_va}")
    a(f"v_mov_b32 v{VT}, 0xff800000")
    for r in range(O, O + 16): a(f"v_mov_b32 v{r}, 0")
    a(f"s_mov_b32 s{s_kvg}, {WS_KV}")
    def ldk():
        for i in range(3): a(f"buffer_load_dwordx4 {vr(k0+4*i,4)}, v{v_ka}, {WS}, s{s_kvg} offen offset:{1024*i} sc1")
    def qk(b):
        S = (S0, S1)[b]
        mf(a, S, k0 + 4 * b, Q1, "0"); mf8(a, S, k0 + 8 + 2 * b, Q2)
    def nxt(lbl):
        a(f"s_add_u32 s{s_kvg}, s{s_kvg}, {PAIR}")
        a(f"s_cmp_lt_u32 s{s_kvg}, {WS_KV + 32*PAIR}")
        a(f"s_cbranch_scc1 {lbl}")
    a.label("B_fb1")
    st = a.mark()
    ldk()
    a("s_waitcnt vmcnt(0)")
    qk(0); qk(1)
    for i in range(0, 32, 2): a(f"v_max3_f32 v{VT}, v{VT}, v{S0+i}, v{S0+i+1}")
    nxt("B_fb1")
    a.check_backedge(st)
    a(f"v_mov_b32 v{VT+1}, v{VT}")
    a(f"v_permlane32_swap_b32 v{VT}, v{VT+1}")
    a(f"v_max_f32 v{VT}, v{VT}, v{VT+1}")
    a(f"s_mov_b32 s{s_kvg}, {WS_KV}")
    a.label("B_fb2")
    st = a.mark()
    ldk()
    for i in range(4): a(f"buffer_load_dwordx4 {vr(k0+12+4*i,4)}, v{v_va}, {WS}, s{s_kvg} offen offset:{768*i} sc1")
    a("s_waitcnt vmcnt(0)")
    qk(0); qk(1)
    for b in range(2):
        S = (S0, S1)[b]
        for i in range(16): a(f"v_sub_f32 v{S+i}, v{S+i}, v{VT}")
        for i in range(16): a(f"v_exp_f32 v{S+i}, v{S+i}")
        for i in range(8): a(f"v_cvt_pk_bf16_f32 v{P0+i}, v{S+2*i}, v{S+2*i+1}")
        mf(a, O, k0 + 12 + 8 * b, P0, O); mf(a, O, k0 + 16 + 8 * b, P1, O)
    nxt("B_fb2")
    a.check_backedge(st)
    a(f"v_mov_b32 v{VT}, v{O+8}")
    a(f"v_mov_b32 v{VT+1}, v{O+8}")
    a(f"v_permlane32_swap_b32 v{VT}, v{VT+1}")
    a("s_nop 1")
    a("s_branch B_norm")

def gemm(a):
    global stamp
    def h_store(sc, vl):
        for k in range(12):
            if k in (4, 10): a("s_add_u32 s53, s53, 4096")
            if k == 6: a(f"s_add_u32 s53, s53, {QH_TT - 4096}")
            a(f"buffer_store_dwordx4 {vr(72+4*k,4)}, v{vl}, {WS}, s53 offen offset:{(k % 6 % 4)*1024}{sc}")
        stamp(a, 3)
    a("s_setprio 3")
    lid(a)
    decode_b(a)
    a(f"s_sub_u32 s{s_w}, s{s_w}, 8")
    srd(a, SW2, 56, 1728 * 1280)
    srd(a, SWO, 58, 640 * 1280)
    srd(a, SOUT, 60, 2048 * 1280)
    g = GW(a, 27, 4, 10, STG, PART, SW2, SWS, s_gw)
    v_wd2 = g.v_end
    v_wa2, vfl = 11, v_wd2 + 5
    vx = v_wd2 + 6
    v_wa3 = 0
    s_kw, s_ka, s_w0, s_a0 = 50, 51, 54, 55
    a(f"s_mul_i32 s{s_kvl}, s{s_w}, 6144")
    def kv(c):
        if c >= 4: lds_wait(a, f"G_free{c}", SCW + 4 * (c - 3), NW_, 2, s_spin, s_t0, 4)
        a(f"s_lshr_b32 s{s_kvg}, s{s_tt}, 3")
        a(f"s_add_u32 s{s_kvg}, s{s_kvg}, {c}")
        a(f"s_and_b32 s{s_kvg}, s{s_kvg}, 7")
        a(f"s_mul_i32 s{s_kvg}, s{s_kvg}, {CH}")
        a(f"s_add_u32 s{s_kvg}, s{s_kvg}, s{s_kvl}")
        a(f"s_add_u32 s{s_kvg}, s{s_kvg}, {WS_KV}")
        a(f"s_add_u32 m0, s{s_kvl}, {KVB + (c % 4)*CH}")
        for m in range(4):
            a(f"buffer_load_dwordx4 v{g.v_l16}, {WS}, s{s_kvg} offen offset:{m*1024} sc1 lds"); g.vm.issue(("KV", c))
        a(f"s_add_u32 m0, m0, 4096")
        a(f"s_add_u32 s{s_kvg}, s{s_kvg}, 4096")
        for m in range(2):
            a(f"buffer_load_dwordx4 v{g.v_l16}, {WS}, s{s_kvg} offen offset:{m*1024} sc1 lds"); g.vm.issue(("KV", c))
    def landed(c):
        g.vm.wait(("KV", c))
        a("s_mov_b64 exec, 1")
        a(f"v_mov_b32 v2, {SC_L + 4 * (c - 1)}")
        a(f"v_mov_b32 v3, 1")
        a(f"ds_add_u32 v2, v3"); g.lg.issue("arr")
        a("s_mov_b64 exec, -1")
    s_i4 = s_c
    a(f"s_getreg_b32 s{s_delta}, hwreg(HW_REG_XCC_ID, 0, 4)")
    a(f"s_add_u32 s{s_delta}, s{s_delta}, 16")
    a(f"s_mov_b32 s{s_base}, 0")
    g.setup(s_w, s_hg, s_base)
    a(f"s_and_b32 s{s_t1}, s{s_tt}, 3")
    a(f"s_lshl_b32 s{s_i4}, s{s_t1}, 2")
    a(f"s_mul_i32 s{s_w0}, s{s_t1}, {27*16*1280}")
    a(f"s_mul_i32 s{s_t0}, s{s_hg}, 320")
    a(f"s_add_u32 s{s_w0}, s{s_w0}, s{s_t0}")
    a(f"s_mul_i32 s{s_woff2}, s{s_w}, {160*1280}")
    a(f"s_add_u32 s{s_woff2}, s{s_woff2}, s{s_t0}")
    a(f"s_and_b32 s{s_slot}, s{s_tt}, 0xfc")
    a(f"s_add_u32 s{s_slot}, s{s_slot}, s{s_w}")
    a(f"s_mul_i32 s{s_a0}, s{s_slot}, {QH_TT}")
    a(f"s_mul_i32 s{s_t0}, s{s_t1}, {27*1024}")
    a(f"s_add_u32 s{s_a0}, s{s_a0}, s{s_t0}")
    a(f"s_add_u32 s{s_a0}, s{s_a0}, {WS_QH + 40*1024}")
    a(f"s_lshr_b32 s{s_ka}, s{s_tt}, 2")
    a(f"s_mul_i32 s{s_ka}, s{s_ka}, {GROT}")
    a(f"s_mul_i32 s{s_t0}, s{s_ka}, 2428")
    a(f"s_lshr_b32 s{s_t0}, s{s_t0}, 16")
    a(f"s_mul_i32 s{s_t0}, s{s_t0}, 27")
    a(f"s_sub_u32 s{s_ka}, s{s_ka}, s{s_t0}")
    a(f"s_add_u32 s{s_kw}, s{s_ka}, s{s_w}")
    ALT = {31: 0, 32: CH, 33: 2 * CH}
    def dma5(vd, S, tag):
        for m in range(4):
            a(f"buffer_load_dwordx4 v{vd+m}, {S}, s{g.s_woff} offen offset:{m*1024} lds"); g.vm.issue(tag)
        a(f"s_add_u32 m0, m0, 4096")
        a(f"buffer_load_dwordx4 v{vd+4}, {S}, s{g.s_woff} offen lds"); g.vm.issue(tag)
    def load_stage(st):
        a(f"s_cmp_ge_u32 s{s_kw}, 27")
        a(f"s_cselect_b32 s{s_t0}, 27, 0")
        a(f"s_sub_u32 s{s_kw}, s{s_kw}, s{s_t0}")
        a(f"s_mul_i32 s{g.s_woff}, s{s_kw}, {16*1280}")
        a(f"s_add_u32 s{g.s_woff}, s{g.s_woff}, s{s_w0}")
        a(f"s_add_u32 s{s_kw}, s{s_kw}, 4")
        a(f"s_add_u32 m0, s{g.s_lds}, {(st % 3)*5120}")
        dma5(g.v_wd, f"s[{SW2}:{SW2+3}]", ("S", st))
    def load_w(i):
        j = i - 27
        row = 80 * (j // 5) + (20 * (j % 5) if j % 5 < 4 else 16)
        a(f"s_add_u32 s{g.s_woff}, s{s_woff2}, {row*1280}")
        if i in ALT:
            a(f"s_mul_i32 s{s_t0}, s{s_w}, 5120")
            a(f"s_add_u32 m0, s{s_t0}, {KVB + ALT[i]}")
        else: a(f"s_add_u32 m0, s{g.s_lds}, {(i % 3)*5120}")
        dma5(v_wd2 if j % 5 == 4 else g.v_wd, f"s[{SWO}:{SWO+3}]", ("W", i))
    def areg(i): return g.v_act + 4 * ((i % AD) if i < 27 else i - 27)
    def load_a(i):
        a(f"s_lshl_b32 s{g.s_aoff}, s{s_ka}, 10")
        a(f"s_add_u32 s{g.s_aoff}, s{g.s_aoff}, s{s_a0}")
        a(f"s_add_u32 s{s_ka}, s{s_ka}, 1")
        a(f"s_cmp_eq_u32 s{s_ka}, 27")
        a(f"s_cselect_b32 s{s_ka}, 0, s{s_ka}")
        a(f"buffer_load_dwordx4 {vr(areg(i),4)}, v{g.v_l16}, {WS}, s{g.s_aoff} offen sc1"); g.vm.issue(("A", i))
    def rd_t(i, T):
        if i < 27: base, off = g.v_wa, (i % 4) * PART + (i // 4 % 3) * 5120
        else: base, off = (v_wa3, ALT[i]) if i in ALT else (g.v_wa, (i % 3) * 5120)
        for p in range(2):
            a(f"ds_read_b64_tr_b16 {vr(g.v_wf+4*T+2*p,2)}, v{base} offset:{off + T*64 + p*2560}"); g.lg.issue((i, T))
    def rd_w(i):
        g.vm.wait(("W", i))
        for T in range(5): rd_t(i, T)
    def mm(i, nxt=None):
        if JIT and i < 27:
            g.vm.wait(("A", i))
            for T in range(5):
                g.lg.wait((i, T))
                acc = vr(g.v_acc + 16 * T, 16)
                if JIT == 1:
                    a(f"v_mfma_f32_32x32x16_bf16 {acc}, {vr(g.v_wf+4*T,4)}, {vr(areg(i),4)}, {acc if i else 0}")
                if T + JIT < 5: rd_t(i, T + JIT)
                elif nxt is not None: rd_t(nxt, T + JIT - 5)
                if JIT > 1:
                    a(f"v_mfma_f32_32x32x16_bf16 {acc}, {vr(g.v_wf+4*T,4)}, {vr(areg(i),4)}, {acc if i else 0}")
            return
        g.vm.wait(("A", i), ("W", nxt))
        if HP and i < HPI and not PMASK: a(f"s_setprio {GPRIO}")
        for T in range(5):
            if PMASK and i < 32 and (T == 0 or (PMASK >> T & 1) != (PMASK >> (T - 1) & 1)): a(f"s_setprio {3 * (PMASK >> T & 1)}")
            g.lg.wait((i, T))
            acc = vr(g.v_acc + 16 * T, 16)
            if not ("nomm" in GX and 0 < i < 27): a(f"v_mfma_f32_32x32x16_bf16 {acc}, {vr(g.v_wf+4*T,4)}, {vr(areg(i),4)}, {acc if i else 0}")
            if nxt is not None and not ("nord" in GX and nxt < 27): rd_t(nxt, T)
        if HP and i < HPI: a("s_setprio 3")
    def sync(st):
        g.vm.wait(("S", st))
        lds_arrive(a, SC_CNT + 32 + 4 * st, 2)
        lds_wait(a, f"G_sync{st}", SC_CNT + 32 + 4 * st, 4, 2, s_spin, s_t0, 1)
        g.lg.q = []
    g.setup2()
    a(f"v_subrev_u32 v{g.v_wa}, s{g.s_lds}, v{g.v_wa}")
    for m in range(5):
        a(f"v_add_u32 v1, {64*m}, v0")
        a(f"v_mul_u32_u24 v2, 0xcccd, v1")
        a(f"v_lshrrev_b32 v2, 22, v2")
        a(f"v_mul_u32_u24 v2, {16*1280}, v2")
        a(f"v_add_u32 v{v_wd2+m}, v2, v{g.v_wd+m}")
    a(f"s_lshr_b32 s{s_t0}, s{s_tt}, 2")
    a(f"v_mov_b32 v1, s{s_t0}")
    a(f"s_lshr_b32 s{s_t0}, s{s_i4}, 1")
    a(f"v_add_u32 v2, s{s_t0}, v0")
    flag_off(a, vfl, 1, 2, 3)
    a(f"v_mov_b32 v2, 14")
    flag_off(a, 1, 0, 2, 3)
    a("s_mov_b32 exec_lo, 0xffff")
    a("s_mov_b32 exec_hi, 0")
    poll(a, "G_pollkv", f"buffer_load_dword v2, v1, {WS}, 0 offen sc1", "v_cmp_gt_u32 vcc, 1, v2", 6)
    a("s_mov_b64 exec, -1")
    lds_wait(a, "G_wait", SC_CNT + 8, GW_N, 2, s_spin, s_t0, 1)
    for c in range(1, NF): landed(c)
    first = list(range(NF, NF + HORD)); later = list(range(NF + HORD, 4))
    for c in first: kv(c)
    a("s_cmp_eq_u32 s53, -1")
    a("s_cbranch_scc1 G_noh")
    h_store(" sc1", g.v_l16)
    q0 = list(g.vm.q)
    g.vm.q += ["H"] * 12
    for c in first: landed(c)
    for c in later: kv(c)
    publish(a, "G_pub", 0, 4, 3, WS_FL, 1, vm=6 * len(later))
    stamp(a, 4)
    a("s_branch G_noh2")
    a.label("G_noh")
    g.vm.q = q0
    for c in later: kv(c)
    for c in first: landed(c)
    a.label("G_noh2")
    g.vm.q = [("KV", c) for c in later for _ in range(6)]
    for c in later: landed(c)
    for st in range(NS0): load_stage(st)
    stamp(a, 8)
    a("s_mov_b64 exec, 7")
    poll(a, "G_pollh", f"buffer_load_dword v2, v{vfl}, {WS}, 0 offen sc1", "v_cmp_gt_u32 vcc, 1, v2", 4)
    a("s_mov_b64 exec, -1")
    g.vm.q = []
    stamp(a, 9)
    if STAMP: a("s_waitcnt lgkmcnt(0)")
    for i in range(4): load_a(i)
    for st in range(NS0, 3): load_stage(st)
    for i in range(4, AD): load_a(i)
    vo = vfl
    a(f"s_mul_i32 s{s_base}, s{s_tt}, {32*1280}")
    a(f"s_mul_i32 s{s_t0}, s{s_hg}, 320")
    a(f"s_add_u32 s{s_base}, s{s_base}, s{s_t0}")
    a(f"s_lshl_b32 s{s_t0}, s{s_w}, 4")
    a(f"s_add_u32 s{s_base}, s{s_base}, s{s_t0}")
    a(f"v_and_b32 v1, 31, v0")
    a(f"v_mul_u32_u24 v{vo}, 1280, v1")
    a(f"v_lshrrev_b32 v2, 5, v0")
    a(f"v_lshl_add_u32 v{vo}, v2, 3, v{vo}")
    a(f"v_mul_u32_u24 v{v_wa2}, 1280, v2")
    a(f"v_lshl_add_u32 v{v_wa2}, v1, 3, v{v_wa2}")
    a(f"v_mul_u32_u24 v1, 0xcccd, v0")
    a(f"v_lshrrev_b32 v1, 18, v1")
    a(f"v_mul_u32_u24 v2, 5, v1")
    a(f"v_sub_u32 v2, v0, v2")
    a(f"v_mul_u32_u24 v1, 1280, v1")
    a(f"v_lshl_add_u32 v{vx}, v2, 6, v1")
    a(f"s_mul_i32 s{s_t0}, s{s_w}, 5120")
    a(f"s_add_u32 s{s_t0}, s{s_t0}, {KVB}")
    a(f"v_add_u32 v{v_wa3}, s{s_t0}, v{g.v_wa}")
    for r in range(4): a(f"v_mov_b32 v{vx+4+r}, -1")
    if not HP: a(f"s_setprio {GPRIO}")
    KVAT = [int(x) for x in os.environ.get("KVAT", "0,2,4,6").split(",")]
    sync(0)
    for T in range(JIT or 5): rd_t(0, T)
    for st in range(7):
        if st in KVAT: kv(4 + KVAT.index(st))
        n = 4 if st < 6 else 3
        for j in range(n):
            i = 4 * st + j
            if JIT:
                mm(i, i + 1 if j < n - 1 else None)
                if j == 3:
                    sync(st + 1)
                    for T in range(JIT): rd_t(i + 1, T)
                    if st + 3 <= 6: load_stage(st + 3)
                    else: load_w(24 + st)
            else:
                if j == 3:
                    sync(st + 1)
                    if st + 3 <= 6: load_stage(st + 3)
                    else: load_w(24 + st)
                mm(i, i + 1 if i < 26 else None)
            if j == min(LJ, n - 1) and st in KVAT: landed(4 + KVAT.index(st))
            if AD == 10 and j % 2 == 1:
                for k in (i + 9, i + 10):
                    if k < 27: load_a(k)
        if AD == 8:
            for i in range(4 * st + 8, min(4 * st + 12, 27)): load_a(i)
        if st == MARK:
            a(f"s_lshl_b32 s{s_t0}, s{s_lid}, 2")
            a(f"s_add_u32 s{s_t0}, s{s_t0}, s{s_w}")
            a(f"s_mul_i32 s{s_t0}, s{s_t0}, 2560")
            a(f"s_add_u32 s{s_t0}, s{s_t0}, {WS_O}")
            def mk(sc):
                for o in (0, 1024, 1536): a(f"buffer_store_dwordx4 {vr(vx+4,4)}, v{g.v_l16}, {WS}, s{s_t0} offen offset:{o}{sc}")
            two_ways(a, "G_mk", mk)
            for _ in range(3): g.vm.issue("R")
        if st == MARK + MD:
            g.vm.wait("R")
            publish(a, "G_pubr", 4, 4, s_lid, WS_FL + 32768, 1, value=f"s{s_delta}", vm=63, word=s_i4)
            g.lg.q = []
        if st == WPF:
            a(f"s_and_b32 s{s_t0}, s{s_tt}, 7" if os.environ.get("BMAP", "4") == "2" else f"s_bfe_u32 s{s_t0}, s{s_tt}, 0x30002")
            a(f"s_mul_i32 s{s_t0}, s{s_t0}, {20*1280}")
            a(f"s_add_u32 s{s_t0}, s{s_t0}, s{s_woff2}")
            a(f"s_add_u32 s{s_t1}, s{s_t0}, {10*1280}")
            a(f"buffer_load_dword v{vx+2}, v{vx}, s[{SWO}:{SWO+3}], s{s_t0} offen"); g.vm.issue("P")
            a(f"buffer_load_dword v{vx+3}, v{vx}, s[{SWO}:{SWO+3}], s{s_t1} offen"); g.vm.issue("P")
        if st == 3 and NEARP >= 2:
            a(f"s_lshl_b32 s{s_t0}, s{s_lid}, 2")
            a(f"s_add_u32 s{s_t0}, s{s_t0}, s{s_w}")
            a(f"s_mul_i32 s{s_t0}, s{s_t0}, 10240")
            a(f"s_add_u32 s{s_t0}, s{s_t0}, {WS_P}")
            a(f"v_lshlrev_b32 v1, 2, v{g.v_l16}")
            for k in range(3):
                a(f"buffer_load_dword v{vx+1}, v1, {WS}, s{s_t0} offen sc1"); g.vm.issue("P")
                a(f"s_add_u32 s{s_t0}, s{s_t0}, {4096 if k == 0 else 2048}")
        if st == OPF:
            a(f"s_mul_i32 s{s_t0}, s{s_w}, {8*1280 - 16}")
            a(f"s_add_u32 s{s_t0}, s{s_t0}, s{s_base}")
            a("s_mov_b32 exec_hi, 0xff")
            a(f"buffer_load_dword v{vx+1}, v{vx}, s[{SOUT}:{SOUT+3}], s{s_t0} offen"); g.vm.issue("P")
            a("s_mov_b32 exec_hi, -1")
        if st == XST:
            g.vm.wait("P", "R")
            for T in range(5):
                a(f"buffer_load_dwordx2 {vr(vx+2*T,2)}, v{vo}, s[{SX}:{SX+3}], s{s_base} offen offset:{64*T}"); g.vm.issue("X")
        if st == 5:
            a(f"s_lshl_b32 s{s_t0}, s{s_tt}, 2")
            a(f"s_add_u32 s{s_t0}, s{s_t0}, s{s_w}")
            a(f"s_lshl_b32 s{s_t0}, s{s_t0}, 7")
            a(f"s_add_u32 s{s_t0}, s{s_t0}, s{s_i4}")
            a(f"s_add_u32 s{s_cch}, s{s_t0}, {WS_FL + 32768}")
            if NEARP:
                a(f"s_lshl_b32 s{s_t0}, s{s_slot}, 2")
                a(f"s_add_u32 s{s_t0}, s{s_t0}, s{s_hg}")
                a(f"s_lshl_b32 s{s_t0}, s{s_t0}, 5")
                a(f"s_add_u32 s{s_t0}, s{s_t0}, s{s_w}")
                a(f"s_lshl_b32 s{s_t0}, s{s_t0}, 2")
                a(f"s_add_u32 s{s_t0}, s{s_t0}, {WS_FL + 32768}")
                a(f"buffer_load_dword v{vx+9}, off, {WS}, s{s_t0} sc1"); g.vm.issue("M")
            a(f"buffer_load_dword v1, off, {WS}, s{s_cch} sc1"); g.vm.issue("M")
        if st == 6:
            g.vm.wait("M")
            if NEARP: a(f"v_readfirstlane_b32 s52, v{vx+9}")
            a("v_cmp_gt_u32 vcc, 1, v1")
            a("s_cmp_eq_u64 vcc, 0")
            a("s_cbranch_scc1 G_pollm_ok")
            poll(a, "G_pollm", f"buffer_load_dword v1, off, {WS}, s{s_cch} sc1", "v_cmp_gt_u32 vcc, 1, v1", 8)
            a(f"v_readfirstlane_b32 s{s_t0}, v1")
            a(f"s_cmp_lg_u32 s{s_t0}, s{s_delta}")
            a("s_cbranch_scc1 G_novote")
            if FASTO: lds_arrive(a, SC_K + 36, 2)
            a.label("G_novote")
        if os.environ.get("STGST"):
            stamp(a, [1, 3, 4, 6, 8, 10, 12][st]); a("s_waitcnt lgkmcnt(0)")
        elif st in (0, 3, 6):
            stamp(a, {0: 10, 3: 11, 6: 12}[st])
            if STAMP: a("s_waitcnt lgkmcnt(0)")
    assert MARK + MD <= KVAT[-1] - 1 and MARK < 4
    pk = g.v_act
    assert 7 not in KVAT
    lds_arrive(a, SC_CNT + 32 + 28, 2)
    a(f"s_lshl_b32 s{s_t0}, s{s_w}, 2")
    a(f"s_cmp_eq_u32 s{s_t0}, s{s_i4}")
    a("s_cbranch_scc1 G_keep")
    a(f"s_lshl_b32 s{s_t0}, s{s_lid}, 2")
    a(f"s_add_u32 s{s_t0}, s{s_t0}, s{s_w}")
    a(f"s_mul_i32 s{s_t0}, s{s_t0}, 10240")
    a(f"s_add_u32 s{s_t0}, s{s_t0}, {WS_P}")
    def pick(name, body):
        if not NEARP: body(" sc1"); return
        a(f"s_cmp_eq_u32 s52, s{s_delta}")
        a(f"s_cbranch_scc1 {name}_n")
        body(" sc1")
        a(f"s_branch {name}_e")
        a.label(f"{name}_n")
        body(os.environ.get("NPOL", "") if name == "G_snd" else "")
        a.label(f"{name}_e")
    def snd(sc):
        a("s_nop 7")
        for k in range(10):
            for r in range(4): a(f"v_cvt_pk_bf16_f32 v{pk+4*k+r}, v{g.v_acc+8*k+2*r}, v{g.v_acc+8*k+2*r+1}")
            if k in (4, 8): a(f"s_add_u32 s{s_t0}, s{s_t0}, 4096")
            a(f"buffer_store_dwordx4 {vr(pk+4*k,4)}, v{g.v_l16}, {WS}, s{s_t0} offen offset:{(k%4)*1024}{sc}")
    pick("G_snd", snd)
    a.label("G_keep")
    def not_owner(lbl):
        a(f"s_lshl_b32 s{s_t1}, s{s_w}, 2")
        a(f"s_cmp_eq_u32 s{s_t1}, s{s_i4}")
        a(f"s_cbranch_scc1 {lbl}")
    lds_wait(a, "G_sync7", SC_CNT + 32 + 28, 4, 2, s_spin, s_t0, 1)
    g.lg.q = []
    a(f"v_add_u32 v{g.v_wa}, s{g.s_lds}, v{g.v_wa}")
    load_w(27)
    a(f"s_lshl_b32 s{s_t0}, s{s_tt}, 2")
    a(f"s_add_u32 s{s_t0}, s{s_t0}, s{s_w}")
    a(f"s_mul_i32 s{g.s_aoff}, s{s_t0}, 10240")
    a(f"s_add_u32 s{g.s_aoff}, s{g.s_aoff}, {WS_O}")
    a(f"s_add_u32 s{s_a0}, s{g.s_aoff}, 5120")
    a(f"s_lshl_b32 s{s_slot}, s{s_slot}, 2")
    a(f"s_add_u32 s{s_slot}, s{s_slot}, s{s_hg}")
    a(f"s_lshl_b32 s{s_t1}, s{s_slot}, 7")
    a(f"s_add_u32 s{s_t1}, s{s_t1}, s{s_i4}")
    a(f"s_add_u32 s{s_kvg}, s{s_t1}, {WS_FL + 32768}")
    not_owner("G_keep2")
    a(f"s_lshl_b32 s{s_t0}, s{s_lid}, 7")
    a(f"s_add_u32 s{s_t0}, s{s_t0}, s{s_t1}")
    a(f"s_add_u32 s{s_t0}, s{s_t0}, {WS_FL + 32768}")
    a("v_mov_b32 v1, 1")
    a("s_waitcnt vmcnt(5)")
    a("s_mov_b64 exec, 1")
    pick("G_sfl", lambda sc: a(f"buffer_store_dword v1, off, {WS}, s{s_t0}{sc}"))
    a("s_mov_b64 exec, -1")
    a.label("G_keep2")
    if os.environ.get("STGST"): stamp(a, 11)
    lds_wait(a, "G_alta", SCW + 20, NW_, 2, s_spin, s_t0, 2)
    load_w(31)
    rd_w(27); g.lg.drain(); load_w(30)
    lds_wait(a, "G_alt0", SCW + 24, NW_, 2, s_spin, s_t0, 2)
    load_w(32)
    def unpack(k0_, k1_):
        for k in range(k0_, k1_):
            for r in range(4):
                a(f"v_lshlrev_b32 v{g.v_acc+8*k+2*r}, 16, v{pk+4*k+r}")
                a(f"v_and_b32 v{g.v_acc+8*k+2*r+1}, s{s_cch}, v{pk+4*k+r}")
    a(f"s_mov_b32 s{s_cch}, 0xffff0000")
    not_owner("G_keep3")
    poll(a, "G_pollr", f"buffer_load_dword v1, off, {WS}, s{s_kvg} sc1", "v_cmp_gt_u32 vcc, 1, v1", 2)
    a(f"s_mul_i32 s{s_t0}, s{s_slot}, 40960")
    a(f"s_mul_i32 s{s_t1}, s{s_i4}, 2560")
    a(f"s_add_u32 s{s_t0}, s{s_t0}, s{s_t1}")
    a(f"s_add_u32 s{s_t0}, s{s_t0}, {WS_P}")
    for k in range(10):
        if k in (4, 8): a(f"s_add_u32 s{s_t0}, s{s_t0}, 4096")
        a(f"buffer_load_dwordx4 {vr(pk+4*k,4)}, v{g.v_l16}, {WS}, s{s_t0} offen offset:{(k%4)*1024} sc1")
    a("s_waitcnt vmcnt(5)")
    unpack(0, 5)
    a.label("G_keep3")
    stamp(a, 5)
    lds_wait(a, "G_trig0", SC_K + 32, TRIG[0], 2, s_spin, s_t0, 1)
    def o_poll(half):
        b = areg(27 + 5 * half)
        so = g.s_aoff if half == 0 else s_a0
        ld = [f"buffer_load_dwordx4 {vr(b+4*j,4)}, v{g.v_l16}, {WS}, s{so} offen offset:{j*1280} sc1" for j in range(4)]
        ld += [f"buffer_load_dwordx2 {vr(b+16+2*j,2)}, v{v_wa2}, {WS}, s{so} offen offset:{1024+2560*j} sc1" for j in range(2)]
        ck = [f"v_max3_u32 v{1+k}, v{b+3*k}, v{b+3*k+1}, v{b+3*k+2}" for k in range(3)]
        ck += [f"v_max3_u32 v{1+k}, v{1+k}, v{b+9+2*k}, v{b+10+2*k}" for k in range(3)]
        ck += [f"v_max3_u32 v1, v1, v{b+15}, v{b+16}", f"v_max3_u32 v2, v2, v{b+17}, v{b+18}", f"v_max_u32 v3, v3, v{b+19}",
               "v_max3_u32 v1, v1, v2, v3", "v_cmp_eq_u32 vcc, -1, v1"]
        return "\n".join(ld), "\n".join(ck)
    def rest():
        not_owner("G_keep4")
        a("s_waitcnt vmcnt(6)")
        unpack(5, 10)
        a.label("G_keep4")
    poll(a, "G_pollo0", *o_poll(0), OSL[0], between=rest)
    g.vm.q = []
    if TAILST: stamp(a, 6); a("s_waitcnt lgkmcnt(0)")
    lds_wait(a, "G_alt1", SCW + 28, NW_, 2, s_spin, s_t0, 1)
    load_w(33)
    for i in range(27, 31):
        mm(i, i + 1)
        if 28 <= i <= 30: load_w(i + 6)
    def last_first():
        for _ in range(6): g.vm.issue("O")
        mm(31, 32)
        stamp(a, 2)
    if SPEC:
        poll(a, "G_pollo1", *o_poll(1), OSL[1], between=last_first)
    else:
        mm(31, 32)
        stamp(a, 2)
        lds_wait(a, "G_trig1", SC_K + 32, TRIG[1], 2, s_spin, s_t0, 1)
        g.lg.q = []
        poll(a, "G_pollo1", *o_poll(1), OSL[1])
    g.vm.q = []
    a("s_setprio 3")
    stamp(a, 13)
    if STAMP: a("s_waitcnt lgkmcnt(0)")
    for i in range(32, 37): mm(i, i + 1 if i < 36 else None)
    stamp(a, 14)
    xf = g.v_act
    for T in range(5):
        a(f"v_lshlrev_b32 v{xf+4*T}, 16, v{vx+2*T}")
        a(f"v_and_b32 v{xf+4*T+1}, 0xffff0000, v{vx+2*T}")
        a(f"v_lshlrev_b32 v{xf+4*T+2}, 16, v{vx+2*T+1}")
        a(f"v_and_b32 v{xf+4*T+3}, 0xffff0000, v{vx+2*T+1}")
    for q in range(4):
        a(f"s_sub_u32 s{s_t0}, {q + 3}, s{s_w}")
        a(f"s_and_b32 s{s_t0}, s{s_t0}, 3")
        a(f"s_cmp_eq_u32 s{s_t0}, 3")
        a(f"s_cbranch_scc1 G_own{q}")
        a(f"s_mul_i32 s{s_t0}, s{s_t0}, 5120")
        a(f"s_add_u32 s{s_t0}, s{s_t0}, s{g.s_lds}")
        a(f"v_add_u32 v1, s{s_t0}, v{g.v_l16}")
        for T in range(5): a(f"ds_write_b128 v1, {vr(g.v_acc+16*T+4*q,4)} offset:{T*1024}")
        a(f"s_branch G_nxt{q}")
        a.label(f"G_own{q}")
        for T in range(5):
            for h in range(2): a(f"v_pk_add_f32 {vr(xf+4*T+2*h,2)}, {vr(xf+4*T+2*h,2)}, {vr(g.v_acc+16*T+4*q+2*h,2)}")
        a.label(f"G_nxt{q}")
    for k in range(3):
        a(f"s_add_u32 s{s_t0}, s{s_w}, {3 - k}")
        a(f"s_and_b32 s{s_t0}, s{s_t0}, 3")
        a(f"s_mul_i32 s{s_t0}, s{s_t0}, {PART}")
        a(f"s_add_u32 s{s_t0}, s{s_t0}, {STG + k*5120}")
        a(f"v_add_u32 v{4+k}, s{s_t0}, v{g.v_l16}")
    a("s_waitcnt lgkmcnt(0)")
    if TAILST: stamp(a, 10)
    a("s_barrier")
    if TAILST: stamp(a, 11); a("s_waitcnt lgkmcnt(0)")
    for T in range(5):
        for k in range(3):
            a(f"ds_read_b128 {vr(g.v_acc+16*T+4*k,4)}, v{4+k} offset:{T*1024}"); g.lg.issue(T)
    for T in range(5): fin_tile(a, g, T, xf, vo)
    if STAMP:
        if TAILST: stamp(a, 9)
        a("s_waitcnt vmcnt(0)"); stamp(a, 7); stamp(a, 15, True)
        a(f"s_add_u32 s{s_w}, s{s_w}, 8")
        stamp_flush(a, 1, SWS, s_w, 12, 16, gsel=[(9, False), (10, False), (12, False), (13, False), (14, False), (15, False)], goff=8)
    if os.environ.get("PADT"):
        a.label("G_pad")
        a("s_memrealtime s[68:69]")
        a("s_waitcnt lgkmcnt(0)")
        a("s_sub_u32 s68, s68, s66")
        a(f"s_cmp_lt_u32 s68, {os.environ['PADT']}")
        a("s_cbranch_scc1 G_pad")
    a("s_endpgm")
    return vx + 10

def fin_tile(a, g, T, xf, vo):
    b = g.v_acc + 16 * T
    g.lg.wait(T)
    for h in range(2):
        a(f"v_pk_add_f32 {vr(b+2*h,2)}, {vr(b+2*h,2)}, {vr(b+4+2*h,2)}")
        a(f"v_pk_add_f32 {vr(b+8+2*h,2)}, {vr(b+8+2*h,2)}, {vr(xf+4*T+2*h,2)}")
    for h in range(2):
        a(f"v_pk_add_f32 {vr(b+2*h,2)}, {vr(b+2*h,2)}, {vr(b+8+2*h,2)}")
    a(f"v_cvt_pk_bf16_f32 v{b}, v{b}, v{b+1}")
    a(f"v_cvt_pk_bf16_f32 v{b+1}, v{b+2}, v{b+3}")
    a(f"buffer_store_dwordx2 {vr(b,2)}, v{vo}, s[{SOUT}:{SOUT+3}], s{s_base} offen offset:{64*T}{os.environ.get('OUTP', '')}")

def gen_f(a, name="parallel_sum__grouped_kv_mqa__dense_activation_relu__prompt_kernel"):
    kernel_header(a, name)
    a("s_cmp_ge_u32 s2, 256")
    a("s_cbranch_scc1 F_end")
    stamp(a, 0, True); stamp(a, 1)
    if os.environ.get("PADT"): a("s_memrealtime s[66:67]")
    def clear_cnt(a):
        a("v_lshlrev_b32 v1, 2, v0")
        a(f"v_add_u32 v1, {SC_CNT}, v1")
        a("v_mov_b32 v2, 0")
        a("ds_write_b32 v1, v2")
        a("ds_write_b32 v1, v2 offset:256")
        a("v_cmp_lt_u32 vcc, 6, v0")
        a("v_cndmask_b32 v2, 0, 4, vcc")
        a("ds_write_b32 v1, v2 offset:512")
        a("s_waitcnt lgkmcnt(0)")
    def start_hook(a):
        clear_cnt(a)
        attn_addr(a)
        if TLBW:
            a(f"s_cmp_lg_u32 s{s_w}, 5")
            a("s_cbranch_scc1 F_notlb")
            for _ in range(TLBW - 1): a("s_barrier")
            a(f"v_lshlrev_b32 v1, {TLBS}, v0")
            a(f"v_add_u32 v1, 0x100, v1")
            for ptr, n in ((56, 1728 * 1280), (58, 640 * 1280), (60, 2048 * 1280)):
                srd(a, 16, ptr, n)
                a(f"buffer_load_dword v2, v1, s[16:19], 0 offen")
            for k in range((WS_SIZE >> TLBS) // 64 + 1):
                a(f"s_mov_b32 s35, {k * 64 << TLBS}")
                a(f"buffer_load_dword v2, v1, {WS}, s35 offen sc1")
            for _ in range(10 - (TLBW - 1)): a("s_barrier")
            a("s_waitcnt vmcnt(0)")
            a("s_branch F_attn")
            a.label("F_notlb")
    def pre_ba(a): attn_addr(a)
    def done_help(a): a("s_branch F_fetch")
    def done_stats(a): a("s_branch F_dry" if DRY else "s_branch F_attn")
    def done_comp(a): a("s_branch F_pub")
    def spare(a):
        ka2.produce_stats(a)
        clear_cnt(a)
        attn_addr(a)
        a(f"s_cmp_lg_u32 s{s_w}, 0")
        a("s_cbranch_scc1 F_sp1")
        ka2.dbg_check(a, "F_dbg")
        a.label("F_sp1")
        a("s_barrier")
        a(f"s_cmp_ge_u32 s{s_w}, 8")
        a("s_cbranch_scc1 F_gemm0")
        a(f"s_cmp_ge_u32 s{s_w}, 4")
        a("s_cbranch_scc1 F_dry" if DRY else "s_cbranch_scc1 F_attn")
    phase_a(a, done_help, done_stats, done_comp, spare, start_hook, pre_ba)
    a.label("F_fetch")
    fetch(a)
    a.label("F_attn")
    attention(a)
    if DRY:
        a.label("F_dry")
        a(f"s_cmp_eq_u32 s{s_w}, 4")
        a("s_cbranch_scc1 F_attn")
        a("s_mov_b64 exec, 0")
        a(f"s_mov_b32 s{s_c}, 7")
        a(f"s_cmp_eq_u32 s{s_w}, 5")
        a("s_cbranch_scc1 B_loop")
        a(f"s_cmp_eq_u32 s{s_w}, 6")
        a("s_cbranch_scc1 B_u3")
        a("s_branch B_synced")
        a.label("F_dryret")
        a("s_mov_b64 exec, -1")
        a("s_nop 7")
        a("s_nop 7")
        a("s_branch F_attn")
    a.label("F_pub")
    stamp(a, 3)
    publish(a, "F_pub2", 0, 4, 3, WS_FL, 1)
    stamp(a, 4)
    lds_wait(a, "F_all", SC_CNT, 4, 2, s_spin, s_t0)
    a.label("F_gemm0")
    a("s_mov_b32 s53, -1")
    a.label("F_gemm")
    nv = gemm(a)
    a.label("F_end")
    a("s_endpgm")
    assert nv <= 168, nv
    return dict(name=name, grid=256, block=768, lds=LDS_A, vgpr=168, sgpr=102 if STAMP else 72, single=True)
```

```python
from common import *

SLOT = 40960
LA = int(os.environ.get('LA', '2'))
SCR = 159744
SC_NM, SC_RS, SC_CS = SCR, SCR + 512, SCR + 1024
LDS_A = SCR + 4096
SC_CNT = SCR + 3072
ST = ' sc1'
ROT = int(os.environ.get('ROT', '0'))
NSB = 0
GATH = int(os.environ.get('GATH', '8'))
PD = int(os.environ.get('PD', '3'))
GMAP = [int(c, 16) for c in os.environ.get('GMAP', '9aefb012c345d678')]
TEAM = int(os.environ.get('TEAM', '0'))
QS = int(os.environ.get('QS', '0'))
QMK = int(os.environ.get('QMK', '1'))
GD = int(os.environ.get('GD', '5'))
SDOT = int(os.environ.get('SDOT', '3'))
HOLDH = int(os.environ.get('HOLDH', '1'))
LATEBIT = os.environ.get('LATEBIT', '1')
AX = os.environ.get('AX', '')
PF = int(os.environ.get('PF', '0'))

SX, SW, SO, SW2 = 4, 8, 12, 16
s_w, s_rb, s_g = 32, 33, 34
s_it, s_slot, s_xoff, s_woff, s_wstep = 35, 36, 37, 38, 39
s_m0x, s_m0w, s_delta, s_relu, s_scale, s_t0, s_t1, s_out, s_dslot, s_cslot, s_ch, s_xbase, s_stride, s_col = range(40, 54)
s_tab = 54

ROLES = {
    "h": (3, 384, 3), "q": (2, 256, 2), "kv": (1, 64, 1)}

def w_read_addr(a, role, dst, s_half, tmp=1):
    NTW, RB, _ = ROLES[role]
    t = tmp
    a(f"v_lshrrev_b32 v{t}, 5, v0")
    a(f"v_bfe_u32 v{t+1}, v0, 2, 2")
    a(f"v_lshl_add_u32 v{t}, v{t}, 3, v{t+1}")
    a(f"v_mul_u32_u24 v{t}, {RB}, v{t}")
    a(f"v_bfe_u32 v{t+2}, v0, 4, 1")
    a(f"v_lshl_add_u32 v{t}, v{t+2}, 5, v{t}")
    a(f"v_and_b32 v{t+2}, 3, v0")
    a(f"v_lshl_add_u32 v{t}, v{t+2}, 3, v{t}")
    a(f"v_add_u32 v{t}, {16384 + LA*SLOT}, v{t}")
    if role == "kv":
        a(f"s_lshl_b32 s{s_t0}, s{s_half}, 12")
        a(f"v_add_u32 v{dst}, s{s_t0}, v{t}")
        return
    if role == "h": a(f"v_lshrrev_b32 v{t+1}, 1, v{t+1}")
    a(f"s_mul_i32 s{s_t0}, s{s_half}, {NTW}")
    for T in range(NTW):
        a(f"s_add_u32 s{s_t1}, s{s_t0}, {T}")
        a(f"v_xor_b32 v{t+2}, s{s_t1}, v{t+1}")
        a(f"v_lshl_add_u32 v{dst+T}, v{t+2}, 6, v{t}")

def slot_advance(regs):
    L = [f"s_cmp_eq_u32 s{s_slot}, {LA*SLOT}",
         f"s_cselect_b32 s{s_delta}, {(-LA*SLOT) & 0xffffffff}, s{s_cslot}",
         f"s_add_u32 s{s_slot}, s{s_slot}, s{s_delta}"]
    return L + [f"v_add_u32 v{r}, s{s_delta}, v{r}" for r in regs]

def ready(a):
    a("s_waitcnt lgkmcnt(0)")
    srd(a, SX, 20, 2048 * 1280)
    srd(a, SO, 30, WS_SIZE)

def loader(a, role, done, pre_ba, wsrd):
    NTW, RB, NW = ROLES[role]
    NW *= 2
    ND = 4 + NW
    v_xd, v_wd = 4, 8
    a(f"v_lshrrev_b32 v1, 3, v0")
    a(f"s_lshl_b32 s{s_t0}, s{s_w}, 5")
    a(f"v_add_u32 v1, s{s_t0}, v1")
    a(f"v_mul_u32_u24 v1, 1280, v1")
    a(f"v_and_b32 v2, 7, v0")
    a(f"v_lshrrev_b32 v3, 4, v0")
    a(f"v_xor_b32 v2, v2, v3")
    a(f"v_lshl_add_u32 v{v_xd}, v2, 4, v1")
    a(f"v_xor_b32 v2, 4, v2")
    a(f"v_lshl_add_u32 v{v_xd+1}, v2, 4, v1")
    a(f"v_add_u32 v{v_xd+1}, {10240-1024}, v{v_xd+1}")
    a(f"v_add_u32 v{v_xd+2}, {2*(10240-1024)}, v{v_xd}")
    a(f"v_add_u32 v{v_xd+3}, {2*(10240-1024)}, v{v_xd+1}")
    a(f"s_lshl_b32 s{s_m0x}, s{s_w}, 12")
    def dma_x():
        a(f"s_and_b32 s{s_ch}, s{s_tab}, 15")
        a(f"s_lshr_b64 s[{s_tab}:{s_tab+1}], s[{s_tab}:{s_tab+1}], 4")
        a(f"s_lshl_b32 s{s_xoff}, s{s_ch}, 7")
        a(f"s_add_u32 s{s_xoff}, s{s_xoff}, s{s_xbase}")
        a(f"s_add_u32 m0, s{s_dslot}, s{s_m0x}")
        a(f"s_mul_i32 s{s_woff}, s{s_ch}, s{s_wstep}")
        for e in range(4):
            a(f"buffer_load_dwordx4 v{v_xd+e}, s[{SX}:{SX+3}], s{s_xoff} offen offset:{e*1024} lds")
    def dma_w():
        a(f"s_add_u32 m0, s{s_dslot}, s{s_m0w}")
        if role == "kv":
            a(f"buffer_load_dwordx4 v{v_wd}, s[{SW}:{SW+3}], s{s_woff} offen lds")
            a(f"s_add_u32 m0, m0, 4096")
            a(f"buffer_load_dwordx4 v{v_wd}, s[{SW2}:{SW2+3}], s{s_woff} offen lds")
        else:
            for m in range(NW):
                if m == 4: a(f"s_add_u32 m0, m0, 4096")
                a(f"buffer_load_dwordx4 v{v_wd+m}, s[{SW}:{SW+3}], s{s_woff} offen offset:{(m%4)*1024} lds")
    a(f"s_mov_b32 s{s_dslot}, 0")
    if role == "kv":
        a(f"s_lshl_b32 s{s_m0w}, s{s_w}, 10")
        a(f"s_add_u32 s{s_m0w}, s{s_m0w}, 16384")
        a(f"v_lshrrev_b32 v1, 2, v0")
        a(f"s_lshl_b32 s{s_t0}, s{s_w}, 4")
        a(f"v_add_u32 v1, s{s_t0}, v1")
        a(f"v_mul_u32_u24 v1, 40, v1")
        a(f"v_and_b32 v2, 3, v0")
        a(f"v_lshl_add_u32 v{v_wd}, v2, 4, v1")
    else:
        PR = RB // 16
        a(f"s_mul_i32 s{s_m0w}, s{s_w}, {NW*1024}")
        a(f"s_add_u32 s{s_m0w}, s{s_m0w}, 16384")
        a(f"s_lshl_b32 s{s_t0}, s{s_w}, 4")
        a(f"s_mul_i32 s{s_t0}, s{s_t0}, s{s_stride}")
        a(f"s_add_u32 s{s_t0}, s{s_t0}, s{s_col}")
        for m in range(NW // 2):
            a(f"v_add_u32 v1, {64*m}, v0")
            if PR == 16:
                a(f"v_lshrrev_b32 v2, 4, v1")
                a(f"v_and_b32 v3, 15, v1")
                a(f"v_and_b32 v1, 3, v2")
            else:
                a(f"v_mul_u32_u24 v2, 0xaaab, v1")
                a(f"v_lshrrev_b32 v2, 20, v2")
                a(f"v_mul_u32_u24 v3, 24, v2")
                a(f"v_sub_u32 v3, v1, v3")
                a(f"v_bfe_u32 v1, v2, 1, 1")
            a(f"v_lshlrev_b32 v1, 2, v1")
            a(f"v_xor_b32 v3, v3, v1")
            a(f"v_mul_lo_u32 v2, v2, s{s_stride}")
            a(f"v_lshl_add_u32 v2, v3, 4, v2")
            a(f"v_add_u32 v{v_wd+m}, s{s_t0}, v2")
        stride = 3456 if role == "h" else 1280
        for m in range(NW // 2, NW):
            a(f"v_add_u32 v{v_wd+m}, {8*stride - (m%4)*1024}, v{v_wd+m-NW//2}")
        for m in range(1, NW // 2): a(f"v_subrev_u32 v{v_wd+m}, {m*1024}, v{v_wd+m}")
    a("s_waitcnt lgkmcnt(0)")
    srd(a, SX, 20, 2048 * 1280)
    wsrd()
    dma_x(); dma_w()
    srd(a, SO, 30, WS_SIZE)
    for c in range(1, LA):
        a(f"s_mov_b32 s{s_dslot}, {c*SLOT}")
        dma_x(); dma_w()
    stamp(a, 2)
    a(f"s_mov_b32 s{s_it}, 0")
    a(f"s_mov_b32 s{s_dslot}, {LA*SLOT}")
    a.label(f"AL_loop_{role}")
    a(f"s_waitcnt vmcnt({(LA-1)*ND})")
    a("s_barrier")
    if "nodma" not in AX: dma_x(); dma_w()
    a(f"s_add_u32 s{s_dslot}, s{s_dslot}, s{s_cslot}")
    a(f"s_cmp_eq_u32 s{s_dslot}, {(LA+1)*SLOT}")
    a(f"s_cselect_b32 s{s_dslot}, 0, s{s_dslot}")
    a(f"s_add_u32 s{s_it}, s{s_it}, 1")
    a(f"s_cmp_lt_u32 s{s_it}, {10-LA}")
    a(f"s_cbranch_scc1 AL_loop_{role}")
    for k in range(LA):
        if k == LA - 1 and pre_ba: pre_ba(a)
        a(f"s_waitcnt vmcnt({(LA-1-k)*ND})")
        a("s_barrier")
    stamp(a, 3)
    done(a)

SDBG = 16
def dbg_check(a, name, between=None):
    srd(a, SDBG, 62, 256)
    a("v_lshlrev_b32 v1, 2, v0")
    a("s_mov_b32 exec_lo, 0xffff")
    a("s_mov_b32 exec_hi, 0")
    poll(a, name, f"buffer_load_dword v2, v1, s[{SDBG}:{SDBG+3}], 0 offen sc1", "v_cmp_ne_u32 vcc, 1, v2", 8, between=between)
    a("s_mov_b64 exec, -1")

def idle(a, done, last):
    nb0 = 0
    if QS:
        nb0 = QMK
        for it in range(QMK):
            a("s_barrier")
            if it == 0: stamp(a, 4)
        a(f"s_sub_u32 s{s_t0}, s{s_g}, 9")
        a(f"s_cmp_ge_u32 s{s_t0}, 5")
        a("s_cbranch_scc1 AI_nomark")
        a(f"s_lshl_b32 s{s_t1}, s{s_rb}, 2")
        a(f"s_add_u32 s{s_t1}, s{s_t1}, s{s_w}")
        a(f"s_sub_u32 s{s_t1}, s{s_t1}, 4")
        a(f"s_mul_i32 s{s_t1}, s{s_t1}, {QH_TT}")
        a(f"s_lshl_b32 s{s_t0}, s{s_t0}, 13")
        a(f"s_add_u32 s{s_t0}, s{s_t0}, s{s_t1}")
        a(f"s_add_u32 s{s_t1}, s{s_t0}, 4096")
        for r in range(12, 16): a(f"v_mov_b32 v{r}, -1")
        a(f"v_lshlrev_b32 v1, 4, v0")
        for k in range(8): a(f"buffer_store_dwordx4 v[12:15], v1, s[{SO}:{SO+3}], s{s_t0 if k < 4 else s_t1} offen offset:{(k%4)*1024} sc1")
        a.label("AI_nomark")
    a(f"s_cmp_eq_u32 s{s_w}, 4")
    a("s_cbranch_scc1 AI_w4")
    for it in range(nb0, 9):
        if it == 8: a("s_waitcnt vmcnt(0)")
        a("s_barrier")
        if it in (0, 4): stamp(a, {0: 4, 4: 6}[it])
    last(a)
    a.label("AI_w4")
    a("s_setprio 3")
    bar = lambda: a("s_barrier")
    for it in range(nb0, GD): bar()
    dbg_check(a, "AI_dbg", bar)
    for it in range(GD + 1, GATH): bar()
    a(f"s_lshl_b32 s{s_t0}, s{s_rb}, 10")
    a(f"s_add_u32 s{s_t0}, s{s_t0}, {WS_STAT}")
    a(f"v_lshlrev_b32 v1, 3, v0")
    O = f"s[{SO}:{SO+3}]"
    poll(a, "AI_stat", f"buffer_load_dwordx2 v[4:5], v1, {O}, s{s_t0} offen sc1\nbuffer_load_dwordx2 v[6:7], v1, {O}, s{s_t0} offen offset:512 sc1",
         "v_min_u32 v2, v5, v7\nv_cmp_eq_u32 vcc, 0, v2", 2, between=bar)
    a(f"v_lshlrev_b32 v1, 2, v0")
    a(f"v_add_u32 v1, {SC_NM}, v1")
    a(f"v_mul_f32 v5, s{s_scale}, v5")
    a(f"v_mul_f32 v7, s{s_scale}, v7")
    a(f"ds_write_b32 v1, v4")
    a(f"ds_write_b32 v1, v6 offset:256")
    a(f"ds_write_b32 v1, v5 offset:512")
    a(f"ds_write_b32 v1, v7 offset:768")
    a("s_waitcnt lgkmcnt(0)")
    stamp(a, 3); stamp(a, 4); stamp(a, 6)
    for it in range(GATH + 1, 10): bar()
    a("s_setprio 0")
    done(a)

def clear_words(a):
    O = f"s[{SO}:{SO+3}]"
    for r in range(4, 8): a(f"v_mov_b32 v{r}, 0")
    a(f"v_lshlrev_b32 v1, 4, v0")
    a(f"s_lshl_b32 s{s_t0}, s{s_rb}, 10")
    a(f"s_add_u32 s{s_t0}, s{s_t0}, {WS_STAT}")
    a(f"buffer_store_dwordx4 v[4:7], v1, {O}, s{s_t0} offen sc1")
    a(f"v_lshlrev_b32 v1, 7, v0")
    a(f"s_lshl_b32 s{s_t0}, s{s_rb}, 12")
    a(f"s_add_u32 s{s_t0}, s{s_t0}, {WS_FL}")
    a("s_mov_b32 exec_hi, 0")
    a(f"buffer_store_dwordx4 v[4:7], v1, {O}, s{s_t0} offen sc1")
    srd(a, SDBG, 62, 256)
    a(f"v_mov_b32 v3, 1")
    a(f"s_lshl_b32 s{s_t0}, s{s_rb}, 2")
    stamp(a, 5)
    a("s_waitcnt vmcnt(0)")
    stamp(a, 6)
    a("s_mov_b64 exec, 1")
    a(f"buffer_store_dword v3, v4, s[{SDBG}:{SDBG+3}], s{s_t0} offen sc1")
    a("s_mov_b64 exec, -1")
    if STAMP: a("s_waitcnt vmcnt(0)")
    stamp(a, 3)

def produce_stats(a):
    O = f"s[{SO}:{SO+3}]"
    a(f"s_cmp_ge_u32 s{s_w}, 8")
    a("s_cbranch_scc1 AP_clear")
    a(f"v_lshrrev_b32 v1, 3, v0")
    a(f"s_lshl_b32 s{s_t0}, s{s_w}, 4")
    a(f"v_add_u32 v1, s{s_t0}, v1")
    a(f"v_mul_u32_u24 v1, 1280, v1")
    a(f"v_and_b32 v2, 7, v0")
    a(f"v_lshl_add_u32 v1, v2, 4, v1")
    a(f"s_add_u32 s{s_t0}, s{s_xbase}, 10240")
    XR, AS = 16, 8
    def ld(c):
        a(f"s_and_b32 s{s_ch}, s{s_tab}, 15")
        a(f"s_lshr_b64 s[{s_tab}:{s_tab+1}], s[{s_tab}:{s_tab+1}], 4")
        a(f"s_lshl_b32 s{s_ch}, s{s_ch}, 7")
        a(f"s_add_u32 s{s_xoff}, s{s_ch}, s{s_xbase}")
        a(f"s_add_u32 s{s_woff}, s{s_ch}, s{s_t0}")
        for e in range(2):
            a(f"buffer_load_dwordx4 {vr(XR+8*c+4*e,4)}, v1, s[{SX}:{SX+3}], s{s_woff if e else s_xoff} offen")
    for c in range(PD): ld(c)
    a(f"s_mov_b32 s{s_relu}, 0x3f803f80")
    for r in range(AS, AS + 8): a(f"v_mov_b32 v{r}, 0")
    for c in range(10):
        a(f"s_waitcnt vmcnt({2*(min(c+PD, 10)-c-1)})")
        if c + PD < 10: ld(c + PD)
        for e in range(2):
            for i in range(4):
                x = XR + 8 * c + 4 * e + i
                a(f"v_dot2c_f32_bf16 v{AS+2*e+(i&1)}, s{s_relu}, v{x}")
                a(f"v_dot2c_f32_bf16 v{AS+4+2*e+(i&1)}, v{x}, v{x}")
    vals = [AS, AS + 2, AS + 4, AS + 6]
    for r in vals: a(f"v_add_f32 v{r}, v{r}, v{r+1}")
    for ctl in ("quad_perm:[1,0,3,2]", "quad_perm:[2,3,0,1]", "row_half_mirror"):
        for r in vals: a(f"v_add_f32_dpp v{r}, v{r}, v{r} {ctl} row_mask:0xf bank_mask:0xf")
    a(f"v_and_b32 v2, 1, v0")
    a(f"v_cmp_eq_u32 vcc, 1, v2")
    a(f"v_cndmask_b32 v4, v{AS}, v{AS+2}, vcc")
    a(f"v_cndmask_b32 v5, v{AS+4}, v{AS+6}, vcc")
    inv = f32bits(1.0 / 640.0)
    a(f"v_mul_f32 v4, {hex(inv)}, v4")
    a(f"v_mul_f32 v5, {hex(inv)}, v5")
    a(f"v_fma_f32 v5, -v4, v4, v5")
    a(f"v_max_f32 v5, 0, v5")
    a(f"v_cvt_pk_bf16_f32 v5, v5, v5")
    a(f"v_lshlrev_b32 v5, 16, v5")
    a(f"v_add_f32 v5, {hex(f32bits(1e-5))}, v5")
    a(f"v_cvt_pk_bf16_f32 v5, v5, v5")
    a(f"v_lshlrev_b32 v5, 16, v5")
    a(f"v_sqrt_f32 v5, v5")
    a(f"v_cvt_pk_bf16_f32 v5, v5, v5")
    a(f"v_lshlrev_b32 v5, 16, v5")
    a(f"v_rcp_f32 v5, v5")
    a(f"v_cvt_pk_bf16_f32 v4, -v4, -v4")
    a(f"v_lshrrev_b32 v1, 3, v0")
    a(f"v_lshl_add_u32 v1, v2, 3, v1")
    a(f"v_lshlrev_b32 v1, 3, v1")
    a(f"v_or_b32 v5, 1, v5")
    a(f"s_lshl_b32 s{s_t0}, s{s_rb}, 10")
    a(f"s_lshl_b32 s{s_t1}, s{s_w}, 7")
    a(f"s_add_u32 s{s_t0}, s{s_t0}, s{s_t1}")
    a(f"s_add_u32 s{s_t0}, s{s_t0}, {WS_STAT}")
    a("s_barrier")
    a("s_mov_b32 exec_lo, 0x03030303")
    a("s_mov_b32 exec_hi, 0x03030303")
    a(f"buffer_store_dwordx2 v[4:5], v1, {O}, s{s_t0} offen sc1")
    a("s_mov_b64 exec, -1")
    stamp(a, 3)
    a("s_branch AP_done")
    a.label("AP_clear")
    a.label("AP_bar")
    a("s_barrier")
    a.label("AP_done")

def prefetch(a, role):
    NTW, RB, _ = ROLES[role]
    c = s_t1
    a(f"s_sub_u32 s{c}, s{s_w}, 8")
    a(f"s_lshr_b32 s{s_t0}, s2, 6")
    a(f"s_lshl_b32 s{s_t0}, s{s_t0}, 2")
    a(f"s_add_u32 s{s_t0}, s{s_t0}, s{c}")
    a(f"s_mul_i32 s{s_t0}, s{s_t0}, {8*1280}")
    a(f"s_add_u32 s{s_t0}, s{s_t0}, s{s_xbase}")
    a(f"v_and_b32 v1, 7, v0")
    a(f"v_mul_u32_u24 v1, 1280, v1")
    a(f"v_lshrrev_b32 v2, 3, v0")
    a(f"v_lshl_add_u32 v3, v2, 7, v1")
    a(f"buffer_load_dword v5, v3, s[{SX}:{SX+3}], s{s_t0} offen offset:128")
    if role != "kv":
        NL = RB // 128
        a(f"v_mul_u32_u24 v2, {65536 // (2*NL) + 1}, v0")
        a(f"v_lshrrev_b32 v2, 16, v2")
        a(f"v_mul_u32_u24 v3, {2*NL}, v2")
        a(f"v_sub_u32 v3, v0, v3")
        a(f"v_and_b32 v4, 1, v3")
        a(f"v_lshrrev_b32 v3, 1, v3")
        a(f"v_lshl_add_u32 v2, v2, 6, v4")
        a(f"v_mul_lo_u32 v2, v2, s{s_stride}")
        a(f"v_lshl_add_u32 v2, v3, 7, v2")
        a(f"s_bfe_u32 s{s_t0}, s2, 0x30003")
        a(f"s_lshl_b32 s{s_t0}, s{s_t0}, 2")
        a(f"s_add_u32 s{s_t0}, s{s_t0}, s{c}")
        a(f"s_lshl_b32 s{s_t0}, s{s_t0}, 1")
        a(f"s_mul_i32 s{s_t0}, s{s_t0}, s{s_stride}")
        a(f"s_add_u32 s{s_delta}, s{s_t0}, s{s_col}")
        a(f"buffer_load_dword v7, v2, s[{SW}:{SW+3}], s{s_delta} offen")
    a(f"s_lshr_b32 s{s_t0}, s2, 6")
    a(f"s_lshl_b32 s{s_t0}, s{s_t0}, 2")
    a(f"s_add_u32 s{s_t0}, s{s_t0}, s{c}")
    a(f"s_mul_i32 s{s_t0}, s{s_t0}, {8*1280}")
    a(f"s_add_u32 s{s_t0}, s{s_t0}, s{s_xbase}")
    a(f"buffer_load_dword v15, v1, s[{SX}:{SX+3}], s{s_t0} offen offset:1152")

def compute(a, role, done, vmode=False):
    NTW, RB, _ = ROLES[role]
    tag = role + ("v" if vmode else "")
    v_xa, v_wa = 8, 12
    XF = [16, 36]; WF = [24, 44]
    SEL, CSA, ACC = 56, 60, 72
    lg = Cnt(a, "lgkmcnt", 15)
    s_rp, s_half = s_m0x, s_m0w
    if NSB: a("s_barrier")
    if PF: prefetch(a, role)
    for _ in range(NSB - 1): a("s_barrier")
    a(f"v_and_b32 v1, 31, v0")
    a(f"v_lshrrev_b32 v2, 5, v0")
    a(f"v_bfe_u32 v3, v0, 1, 3")
    a(f"v_xor_b32 v3, v3, v2")
    a(f"v_lshlrev_b32 v3, 4, v3")
    a(f"v_lshlrev_b32 v1, 7, v1")
    a(f"s_lshl_b32 s{s_t0}, s{s_rp}, 13")
    a(f"s_add_u32 s{s_t0}, s{s_t0}, {LA*SLOT}")
    a(f"v_add_u32 v1, s{s_t0}, v1")
    for j in range(4):
        a(f"v_xor_b32 v4, {j<<5}, v3")
        a(f"v_add_u32 v{v_xa+j}, v1, v4")
    w_read_addr(a, role, v_wa, s_half)
    a(f"v_lshrrev_b32 v1, 2, v0")
    a(f"v_lshrrev_b32 v2, 4, v0")
    a(f"v_xor_b32 v1, v1, v2")
    a(f"v_and_b32 v1, 1, v1")
    a(f"v_subrev_u32 v1, 1, v1")
    for i in range(4): a(f"v_and_b32 v{SEL+i}, 0x3f803f80, v1")
    for r in range(XF[1], WF[1] + 4 * NTW): a(f"v_mov_b32 v{r}, 0")
    z = vr(XF[1], 4)
    for t in range(2 * NTW): a(f"v_mfma_f32_32x32x16_bf16 {vr(ACC+16*t,16)}, {z}, {z}, 0")
    for T in range(NTW): a(f"v_mfma_f32_16x16x32_bf16 {vr(CSA+4*T,4)}, {z}, {z}, 0")
    a(f"s_mov_b32 s{s_it}, 0")
    a(f"s_mov_b32 s{s_slot}, {LA*SLOT}")
    def mfma(R, T, u):
        acc = vr(ACC + 16 * (R * NTW + T), 16); x = vr(XF[u] + 4 * R, 4); w = vr(WF[u] + 4 * T, 4)
        if vmode: a(f"v_mfma_f32_32x32x16_bf16 {acc}, {x}, {w}, {acc}")
        else: a(f"v_mfma_f32_32x32x16_bf16 {acc}, {w}, {x}, {acc}")
    def step(jn, u, cs, post=None, lo=0, hi=99):
        n = u ^ 1
        reads = []
        if jn is not None and "nord" not in AX:
            def rw(T):
                for p in range(2):
                    reads.append((f"ds_read_b64_tr_b16 {vr(WF[n]+4*T+2*p,2)}, v{v_wa+T} offset:{jn*16*RB+p*4*RB}", ("W", n, T)))
            reads.append((f"ds_read_b128 {vr(XF[n],4)}, v{v_xa+jn}", ("X", n, 0)))
            rw(0)
            reads.append((f"ds_read_b128 {vr(XF[n]+4,4)}, v{v_xa+jn} offset:4096", ("X", n, 1)))
            for T in range(1, NTW): rw(T)
        post = list(post or [])
        order = [(R, T) for T in range(NTW) for R in range(2)][lo:hi]
        per = 3 if post else 2
        for k, (R, T) in enumerate(order):
            last = k == len(order) - 1
            lg.wait(("X", u, R), ("W", u, T))
            mfma(R, T, u)
            room = 5
            for _ in range(99 if last else per):
                if reads:
                    t, g = reads.pop(0); a(t); lg.issue(g); room -= 1
            if not reads:
                while post and (room > 0 or last):
                    a(post.pop(0)); room -= 1
            if cs and R == 1 and 'nocs' not in AX:
                a(f"v_mfma_f32_16x16x32_bf16 {vr(CSA+4*T,4)}, {vr(SEL,4)}, {vr(WF[u]+4*T,4)}, {vr(CSA+4*T,4)}")
    stamp(a, 2)
    if STAMP: a("s_waitcnt lgkmcnt(0)")
    NM = 2 * NTW
    adv = slot_advance([v_xa, v_wa] + [v_wa + T for T in range(1, NTW)] + [v_xa + j for j in range(1, 4)])
    for t in adv: a(t)
    full = role != "h" and not (role == "q" and os.environ.get("QSPLIT"))
    if not full:
        a(f"s_cmp_eq_u32 s{s_rp}, 1")
        a(f"s_cbranch_scc1 AC_ent_{tag}1")
    for rp in range(1 if full else 2):
        e0 = full or rp == 0; e1 = full or rp == 1
        if rp == 0: a(f"s_branch AC_ent_{tag}0")
        a.raw(".p2align 6")
        a.label(f"AC_loop_{tag}{rp}")
        st = a.mark()
        a("s_waitcnt lgkmcnt(0)")
        if e0 and 'nocs' not in AX:
            a(f"v_mfma_f32_16x16x32_bf16 {vr(CSA+4*(NTW-1),4)}, {vr(SEL,4)}, {vr(WF[0]+4*(NTW-1),4)}, {vr(CSA+4*(NTW-1),4)}")
        step(None, 0, False, None, NM - 1, NM)
        a.label(f"AC_ent_{tag}{rp}")
        a("s_barrier")
        step(0, 1, e1)
        step(1, 0, e0); step(2, 1, e1)
        tail = adv + [f"s_add_u32 s{s_it}, s{s_it}, 1", f"s_cmp_lt_u32 s{s_it}, 10"]
        step(3, 0, e0, tail, 0, NM - 1)
        lg.q = []
        a(f"s_cbranch_scc1 AC_loop_{tag}{rp}")
        a.check_backedge(st)
        a("s_waitcnt lgkmcnt(0)")
        if e0 and 'nocs' not in AX:
            a(f"v_mfma_f32_16x16x32_bf16 {vr(CSA+4*(NTW-1),4)}, {vr(SEL,4)}, {vr(WF[0]+4*(NTW-1),4)}, {vr(CSA+4*(NTW-1),4)}")
        step(None, 0, False, None, NM - 1, NM)
        if e1:
            for T in range(NTW):
                a(f"v_mfma_f32_16x16x32_bf16 {vr(CSA+4*T,4)}, {vr(SEL,4)}, {vr(WF[1]+4*T,4)}, {vr(CSA+4*T,4)}")
        if rp == 0 and not full: a(f"s_branch AC_fin_{tag}")
    a.label(f"AC_fin_{tag}")
    a(f"v_and_b32 v1, 31, v0")
    a(f"s_lshl_b32 s{s_t0}, s{s_rp}, 8")
    a(f"s_add_u32 s{s_t0}, s{s_t0}, {SC_NM}")
    a(f"v_lshl_add_u32 v2, v1, 2, s{s_t0}")
    pre = [f"v_mov_b32 v{r}, 0" for r in range(XF[0], WF[0] + 4 * NTW)]
    pre += ["s_mov_b32 exec_hi, 0", f"ds_read_b32 v{XF[0]}, v2", f"ds_read_b32 v{XF[0]+4}, v2 offset:128", "s_mov_b32 exec_hi, -1",
            "ds_read_b32 v4, v2 offset:512", "ds_read_b32 v6, v2 offset:640"]
    step(None, 1, False, pre)
    stamp(a, 5)
    CS = CSA
    if not full:
        a(f"s_mul_i32 s{s_t1}, s{s_half}, {NTW*256}")
        a(f"s_add_u32 s{s_t1}, s{s_t1}, {SC_CS}")
        a(f"v_lshl_add_u32 v3, v1, 3, s{s_t1}")
        a(f"s_lshl_b32 s{s_t1}, s{s_rp}, 2")
        a(f"v_add_u32 v7, s{s_t1}, v3")
        for T in range(NTW): a(f"ds_write_b32 v7, v{CSA+4*T} offset:{T*256}")
        lds_arrive(a, SC_CNT + 12, 8)
        lds_wait(a, f"AC_sync_{tag}", SC_CNT + 12, 4, 8, s_it, s_slot, 1)
        for T in range(NTW): a(f"ds_read_b64 {vr(CS+4*T,2)}, v3 offset:{T*256}")
        a(f"s_waitcnt lgkmcnt(0)")
        for T in range(NTW): a(f"v_add_f32 v{CS+4*T}, v{CS+4*T}, v{CS+4*T+1}")
    for T in range(NTW): a(f"v_cvt_pk_bf16_f32 v{CS+4*T+1}, v{CS+4*T}, v{CS+4*T}")
    for T in range(NTW): a(f"v_lshlrev_b32 v{CS+4*T+1}, 16, v{CS+4*T+1}")
    for T in range(NTW): a(f"v_sub_f32 v{CS+4*T+1}, v{CS+4*T}, v{CS+4*T+1}")
    for T in range(NTW): a(f"v_cvt_pk_bf16_f32 v{WF[0]+4*T}, v{CS+4*T}, v{CS+4*T+1}")
    a("s_waitcnt lgkmcnt(0)")
    for R in range(2):
        for T in range(NTW): mfma(R, T, 0)
    stamp(a, 6)
    O = f"s[{SO}:{SO+3}]"
    a(f"v_lshlrev_b32 v1, 4, v0")
    def early_flag():
        a(f"s_lshl_b32 s{s_t0}, s3, 7")
        a(f"s_add_u32 s{s_t0}, s{s_t0}, {WS_FL}")
        a("v_mov_b32 v2, 1")
        a("s_mov_b64 exec, 1")
        a(f"buffer_store_dword v2, off, {O}, s{s_t0} sc1")
        a("s_mov_b64 exec, -1")
    if role == "q" and QS == 1: early_flag()
    if role != "kv":
        for R in range(2):
            for T in range(NTW):
                b = ACC + 16 * (R * NTW + T)
                if R == 0 and T < 2:
                    for i in range(16): a(f"v_mul_f32 v{b+i}, v{4+2*R}, v{b+i}")
                else:
                    for i in range(8): a(f"v_pk_mul_f32 {vr(b+2*i,2)}, {vr(b+2*i,2)}, {vr(4+2*R,2)} op_sel_hi:[1,0]")
                if role == "h":
                    d = ACC + 8 * (R * NTW + T)
                    for i in range(8): a(f"v_cvt_pk_bf16_f32 v{d+i}, v{b+2*i}, v{b+2*i+1}")
                    for i in range(8): a(f"v_pk_max_i16 v{d+i}, v{d+i}, 0")
                    continue
                for i in range(8): a(f"v_cvt_pk_bf16_f32 v{b+i}, v{b+2*i}, v{b+2*i+1}")
                o = 2 * T * 1024
                a(f"buffer_store_dwordx4 {vr(b,4)}, v1, {O}, s{s_out} offen offset:{o}{ST}")
                a(f"buffer_store_dwordx4 {vr(b+4,4)}, v1, {O}, s{s_out} offen offset:{o+1024}{ST}")
            if R == 0 and role != "h": a(f"s_add_u32 s{s_out}, s{s_out}, {QH_TT}")
            if role == "q" and QS == 2 + R: early_flag()
        if role == "h":
            a(f"s_mov_b32 s53, s{s_out}")
            a("s_branch F_gemm")
            return
    elif not vmode:
        for R in range(2):
            b = ACC + 16 * R
            for i in range(12): a(f"v_mul_f32 v{b+i}, v{4+2*R}, v{b+i}")
            for i in range(4): a(f"v_cvt_pk_bf16_f32 v{b+i}, v{b+2*i}, v{b+2*i+1}")
            for i in range(2): a(f"v_cvt_pk_bf16_f32 v{16+2*R+i}, v{b+8+2*i}, v{b+9+2*i}")
            a(f"buffer_store_dwordx4 {vr(b,4)}, v1, {O}, s{s_out} offen offset:{1024*R}{ST}")
        a("s_mov_b32 exec_lo, 0")
        for i in range(4): a(f"v_mov_b32 v{16+i}, {'0x3f80' if i % 2 == 0 else 0}")
        a("s_mov_b32 exec_lo, -1")
        a(f"buffer_store_dwordx4 v[16:19], v1, {O}, s{s_out} offen offset:2048{ST}")
    else:
        a(f"v_lshrrev_b32 v6, 5, v0")
        a(f"v_lshl_add_u32 v3, v6, 4, s{s_t0}")
        for R in range(2):
            for q in range(4): a(f"ds_read_b128 {vr(16+16*R+4*q,4)}, v3 offset:{512+128*R+32*q}")
        a(f"v_and_b32 v2, 31, v0")
        a(f"v_mul_u32_u24 v6, 384, v6")
        a(f"v_lshl_add_u32 v6, v2, 4, v6")
        a(f"s_add_u32 s{s_out}, s{s_out}, 3072")
        a("s_waitcnt lgkmcnt(0)")
        for R in range(2):
            b = ACC + 16 * R
            for i in range(16): a(f"v_mul_f32 v{b+i}, v{16+16*R+i}, v{b+i}")
            for i in range(8): a(f"v_cvt_pk_bf16_f32 v{b+i}, v{b+2*i}, v{b+2*i+1}")
            a("s_mov_b32 exec_lo, 0x00100000")
            a("s_mov_b32 exec_hi, 0x00100000")
            for i in range(8): a(f"v_mov_b32 v{b+i}, 0x3f803f80")
            a("s_mov_b32 exec_lo, 0x00e00000")
            a("s_mov_b32 exec_hi, 0x00e00000")
            for i in range(8): a(f"v_mov_b32 v{b+i}, 0")
            a("s_mov_b32 exec_lo, 0x00ffffff")
            a("s_mov_b32 exec_hi, 0x00ffffff")
            a(f"buffer_store_dwordx4 {vr(b,4)}, v6, {O}, s{s_out} offen offset:{1536*R}{ST}")
            a(f"buffer_store_dwordx4 {vr(b+4,4)}, v6, {O}, s{s_out} offen offset:{1536*R+768}{ST}")
            a("s_mov_b64 exec, -1")
    done(a)

def phase_a(a, done_help, done_stats, done_comp, spare, start_hook, pre_ba, last):
    a("s_load_dwordx8 s[20:27], s[0:1], 0")
    a("s_load_dwordx2 s[28:29], s[0:1], 48")
    a("s_load_dwordx2 s[30:31], s[0:1], 80")
    a("s_load_dwordx2 s[56:57], s[0:1], 56")
    a("s_load_dwordx2 s[58:59], s[0:1], 32")
    a("s_load_dwordx4 s[60:63], s[0:1], 64")
    a("v_lshrrev_b32 v1, 6, v0")
    a("v_and_b32 v0, 63, v0")
    a(f"v_readfirstlane_b32 s{s_w}, v1")
    ORD = os.environ.get("ORD", "0123456789,5678901234").split(",")
    a(f"s_and_b32 s{s_t0}, s2, 1")
    a(f"s_lshl_b32 s{s_t0}, s{s_t0}, 3")
    a(f"s_bfe_u32 s{s_rb}, s2, 0x30003")
    a(f"s_lshr_b32 s{s_g}, s2, 6")
    a(f"s_add_u32 s{s_t1}, s{s_g}, s{s_rb}")
    a(f"s_and_b32 s{s_t1}, s{s_t1}, {len(ORD)-1}")
    a(f"s_add_u32 s{s_rb}, s{s_rb}, s{s_t0}")
    gv = sum(g << (4 * i) for i, g in enumerate(GMAP))
    a(f"s_bfe_u32 s{s_t0}, s2, 0x20001")
    a(f"s_lshl_b32 s{s_t0}, s{s_t0}, 2")
    a(f"s_add_u32 s{s_g}, s{s_g}, s{s_t0}")
    a(f"s_lshl_b32 s{s_g}, s{s_g}, 2")
    a(f"s_mov_b32 s{s_tab}, {hex(gv & 0xffffffff)}")
    a(f"s_mov_b32 s{s_tab+1}, {hex(gv >> 32)}")
    a(f"s_lshr_b64 s[{s_tab}:{s_tab+1}], s[{s_tab}:{s_tab+1}], s{s_g}")
    a(f"s_and_b32 s{s_g}, s{s_tab}, 15")
    if TEAM:
        a(f"s_and_b32 s{s_rb}, s2, 7")
        a(f"s_lshl_b32 s{s_rb}, s{s_rb}, 1")
        a(f"s_lshr_b32 s{s_t0}, s2, 7")
        a(f"s_add_u32 s{s_rb}, s{s_rb}, s{s_t0}")
        a(f"s_bfe_u32 s{s_g}, s2, 0x40003")
        a(f"s_{'add' if TEAM == 1 else 'xor'}_{'u' if TEAM == 1 else 'b'}32 s{s_t1}, s{s_t0}, {'s%d' % s_g if TEAM == 1 else '0'}")
        if TEAM == 3:
            a(f"s_lshl_b32 s{s_t1}, s2, 1")
            a(f"s_add_u32 s{s_t1}, s{s_t1}, s{s_t0}")
        a(f"s_and_b32 s{s_t1}, s{s_t1}, {len(ORD)-1}")
    a(f"s_lshl_b32 s3, s{s_rb}, 4")
    a(f"s_add_u32 s3, s3, s{s_g}")
    for k, o in enumerate(ORD):
        assert sorted(o) == list("0123456789")
        v = sum(int(d) << (4 * i) for i, d in enumerate(o))
        if k == 0:
            a(f"s_mov_b32 s{s_tab}, {hex(v & 0xffffffff)}")
            a(f"s_movk_i32 s{s_tab+1}, {hex(v >> 32)}")
        else:
            a(f"s_cmp_eq_u32 s{s_t1}, {k}")
            a(f"s_cselect_b32 s{s_tab}, {hex(v & 0xffffffff)}, s{s_tab}")
            a(f"s_cselect_b32 s{s_tab+1}, {hex(v >> 32)}, s{s_tab+1}")
    a(f"s_mov_b32 s{s_cslot}, {SLOT}")
    a(f"s_mul_i32 s{s_xbase}, s{s_rb}, {128*1280}")
    a(f"s_cmp_ge_u32 s{s_w}, 4")
    a("s_cbranch_scc1 A_other")
    a(f"s_cmp_lt_u32 s{s_g}, 9")
    a("s_cbranch_scc1 A_lh")
    a(f"s_cmp_ge_u32 s{s_g}, 14")
    a("s_cbranch_scc1 A_lk")
    for role in ("q", "h"):
        NTW = ROLES[role][0]
        stride = 3456 if role == "h" else 1280
        if role == "h": a.label("A_lh")
        else: a(f"s_sub_u32 s{s_g}, s{s_g}, 9")
        a(f"s_movk_i32 s{s_stride}, {stride}")
        a(f"s_mov_b32 s{s_wstep}, {64*stride}")
        a(f"s_mul_i32 s{s_col}, s{s_g}, {NTW*128}")
        loader(a, role, done_help, pre_ba, lambda: srd(a, SW, 28 if role == "h" else 22, 640 * stride))
    a.label("A_lk")
    a(f"s_cmp_eq_u32 s{s_g}, 15")
    a("s_cbranch_scc1 A_spare")
    a(f"s_movk_i32 s{s_wstep}, 2560")
    loader(a, "kv", done_help, pre_ba, lambda: (srd(a, SW, 24, 640 * 40), srd(a, SW2, 26, 640 * 40)))
    a.label("A_other")
    a(f"s_cmp_eq_u32 s{s_g}, 15")
    a("s_cbranch_scc1 A_spare")
    ready(a)
    a(f"s_cmp_lt_u32 s{s_w}, 8")
    a("s_cbranch_scc1 A_stats")
    a("s_setprio 2")
    a(f"s_and_b32 s{s_m0x}, s{s_w}, 1")
    a(f"s_bfe_u32 s{s_m0w}, s{s_w}, 0x10001")
    a(f"s_lshl_b32 s{s_out}, s{s_rb}, 1")
    a(f"s_add_u32 s{s_out}, s{s_out}, s{s_m0x}")
    a(f"s_lshl_b32 s{s_out}, s{s_out}, 1")
    a(f"s_cmp_eq_u32 s{s_g}, 14")
    a("s_cbranch_scc1 A_ckv")
    a(f"s_cmp_lt_u32 s{s_g}, 9")
    a("s_cbranch_scc1 A_ch")
    for role in ("q", "h"):
        NTW = ROLES[role][0]
        if role == "h": a.label("A_ch")
        else: a(f"s_sub_u32 s{s_g}, s{s_g}, 9")
        a(f"s_mul_i32 s{s_out}, s{s_out}, {QH_TT}")
        a(f"s_lshl_b32 s{s_t0}, s{s_g}, 1")
        a(f"s_add_u32 s{s_t0}, s{s_t0}, s{s_m0w}")
        a(f"s_mul_i32 s{s_t0}, s{s_t0}, {NTW*2048}")
        a(f"s_add_u32 s{s_out}, s{s_out}, s{s_t0}")
        if role == "h": a(f"s_add_u32 s{s_out}, s{s_out}, {40*1024}")
        compute(a, role, done_comp)
    a.label("A_ckv")
    a(f"s_mul_i32 s{s_out}, s{s_out}, {KV_TILE}")
    a(f"s_add_u32 s{s_out}, s{s_out}, {WS_KV}")
    a(f"s_cmp_eq_u32 s{s_m0w}, 1")
    a(f"s_cbranch_scc1 A_cv")
    compute(a, "kv", done_comp, False)
    a.label("A_cv")
    compute(a, "kv", done_comp, True)
    a.label("A_stats")
    a(f"s_sub_u32 s{s_t0}, s{s_g}, 9")
    a(f"s_cmp_lt_u32 s{s_t0}, 5")
    a(f"s_cselect_b32 s{s_scale}, {hex(f32bits(QSCALE))}, 1.0")
    start_hook(a)
    idle(a, done_stats, last)
    a.label("A_spare")
    ready(a)
    a(f"s_cmp_lg_u32 s{s_w}, 8")
    a("s_cbranch_scc1 A_noclear")
    clear_words(a)
    a.label("A_noclear")
    spare(a)
```

```python
from common import *
from gw import *
import ka2
from ka2 import phase_a, SC_CNT, LDS_A
def two_ways(a, name, body): body(' sc1')

GPRIO = int(os.environ.get("GPRIO", "0"))
HOLD = 1
GROT = int(os.environ.get("GROT", "9"))
GX = os.environ.get("GX", "")
UARR = int(os.environ.get("UARR", "0"))
SC_L = None
DRY = int(os.environ.get("DRY", "0"))
PACE = [float(x) for x in os.environ.get("PACE", "1.7,7.0").split(",")]
PEND = int(os.environ.get("PEND", "99"))
ABAT = int(os.environ.get("ABAT", "0"))
PIPE = int(os.environ.get("PIPE", "1"))
KV4 = int(os.environ.get("KV4", "0"))
TRIG = [int(x) for x in os.environ.get("TRIG", "4,8").split(",")]
TAILST = os.environ.get("TAILST")
OSL = [int(x) for x in os.environ.get("OSL", "1,1").split(",")]
WOPF = int(os.environ.get("WOPF", "10"))
ALT1 = int(os.environ.get("ALT1", "0"))
MARK = int(os.environ.get("MARK", "1"))
NS0 = int(os.environ.get("NS0", "2"))
WEARLY = int(os.environ.get("WEARLY", "2"))
W2PF = int(os.environ.get("W2PF", "3"))
HP = int(os.environ.get("HP", "1"))
FASTO = int(os.environ.get("FASTO", "1"))
TRIGST = int(os.environ.get("TRIGST", "1"))
PMASK = int(os.environ.get("PMASK", "0"))
PSTEP = [int(x) for x in os.environ.get("PSTEP", "").split(",") if x]
PBASE = int(os.environ.get("PBASE", "0"))
ALIGN = int(os.environ.get("ALIGN", "0"))
HNEAR = int(os.environ.get("HNEAR", "0"))
JIT = int(os.environ.get("JIT", "0"))
LAY = int(os.environ.get("LAY", "0"))
TLBW = int(os.environ.get("TLBW", "0"))
TLBS = int(os.environ.get("TLBS", "21"))
HORD = int(os.environ.get("HORD", "0"))
GW_N = int(os.environ.get("GW_N", "8"))
OPF = int(os.environ.get("OPF", "9"))
SPEC = int(os.environ.get("SPEC", "1"))
HPI = int(os.environ.get("HPI", "32"))
NEARP = int(os.environ.get("NEARP", "0"))
AD = int(os.environ.get("AD", "8"))
LJ = int(os.environ.get("LJ", "1"))
MD = int(os.environ.get("MD", "2"))
WPF = int(os.environ.get("WPF", "2"))
XST = int(os.environ.get("XST", "4"))
BSL = int(os.environ.get("BSL", "1"))
NF = int(os.environ.get("NF", "3"))
WFL = int(os.environ.get("WFL", "0"))
NH = int(os.environ.get("NH", "27")); NL = 54 - NH
KVH = [int(x) for x in os.environ.get("KVH", "0,2,4,6").split(",")]
KVL = [int(x) for x in os.environ.get("KVL", "0,2,4,6").split(",")]
PMH = int(os.environ.get("PMH", "0")); PML = int(os.environ.get("PML", "0"))
PSEL = os.environ.get("PSEL", "l")
ALH = [int(x) for x in os.environ.get("ALH", "1,-1").split(",")]
ALL = [int(x) for x in os.environ.get("ALL", "1,-1").split(",")]
EV = int(os.environ.get("EV", "1"))
RB = int(os.environ.get("RB", "2"))
DEFW = int(os.environ.get("DEFW", "4"))
DEFER = int(os.environ.get("DEFER", "0"))
PAIR = 2 * KV_TILE
CH = 8 * KV_TILE
STG = 0
KVB = 4 * PART
assert KVB + 4 * CH <= ka2.SCR and KVB >= ka2.SLOT and KVB + 3 * CH >= 3 * ka2.SLOT
RESET_WG = (3 << 6) | (3 << 1)

SX, SW2, SWS, SWO, SOUT, SDBG = 4, 8, 12, 16, 20, 16
s_w, s_tt, s_hg, s_t0, s_t1, s_c, s_slot, s_delta, s_cch, s_base, s_spin, s_kvl, s_kvg, s_woff2 = range(32, 46)
s_gw = 46
s_lid = 97 if STAMP else 64
WS = f"s[{SWS}:{SWS+3}]"
Q1, Q2, P0, P1, O, S0, S1 = 4, 8, 12, 16, 20, 36, 52
KS = [68, 96]
v_ka, v_va, v_g0, VT = 124, 125, 126, 130
v_l16, v_cnt, v_one, v_chk = 136, 137, 138, 139
SC_K = SC_CNT + 256
SC_L = SC_K + 256
COMB = int(os.environ.get('COMB', '0'))
SCW, NW_ = (SC_L, 12) if COMB else (SC_K, 8)
s_tgt = 45

def mf(a, d, x, y, c): a(f"v_mfma_f32_32x32x16_bf16 {vr(d,16)}, {vr(x,4)}, {vr(y,4)}, {c if isinstance(c,str) else vr(c,16)}")
def mf8(a, d, x, y): a(f"v_mfma_f32_32x32x8_bf16 {vr(d,16)}, {vr(x,2)}, {vr(y,2)}, {vr(d,16)}")

def flag_off(a, vd, vrb, vg, t):
    a(f"v_lshl_add_u32 v{vd}, v{vrb}, 4, v{vg}")
    a(f"v_lshlrev_b32 v{vd}, 7, v{vd}")
    a(f"v_add_u32 v{vd}, {WS_FL}, v{vd}")

def publish(a, name, cnt_off, nwaves, sid, base, t, value=1, vm=0, word=None, near=False):
    a(f"s_waitcnt vmcnt({vm})")
    a("s_mov_b64 exec, 1")
    a(f"v_mov_b32 v{t}, {SC_CNT + cnt_off}")
    a(f"v_mov_b32 v{t+1}, 1")
    a(f"ds_add_rtn_u32 v{t+1}, v{t}, v{t+1}")
    a(f"s_lshl_b32 s{s_t0}, s{sid}, 7")
    a(f"s_add_u32 s{s_t0}, s{s_t0}, {base}")
    a(f"v_mov_b32 v{t}, {0 if word is None else 's%d' % word}")
    a(f"v_mov_b32 v{t+2}, {value}")
    a("s_waitcnt lgkmcnt(0)")
    a(f"v_readfirstlane_b32 s{s_t1}, v{t+1}")
    a(f"s_cmp_lg_u32 s{s_t1}, {nwaves-1}")
    a(f"s_cbranch_scc1 {name}")
    if near: two_ways(a, name + "w", lambda sc: a(f"buffer_store_dword v{t+2}, v{t}, {WS}, s{s_t0} offen{sc}"))
    else: a(f"buffer_store_dword v{t+2}, v{t}, {WS}, s{s_t0} offen sc1")
    a.label(name)
    a("s_mov_b64 exec, -1")

def lid(a):
    BMAP = int(os.environ.get("BMAP", "5"))
    if BMAP == 0: a(f"s_mov_b32 s{s_lid}, s2")
    elif BMAP == 1:
        a(f"s_bfe_u32 s{s_lid}, s2, 0x20001")
        a(f"s_lshl_b32 s{s_lid}, s{s_lid}, 4")
        a(f"s_lshr_b32 s35, s2, 4")
        a(f"s_add_u32 s{s_lid}, s{s_lid}, s35")
        a(f"s_lshl_b32 s{s_lid}, s{s_lid}, 1")
        a(f"s_and_b32 s35, s2, 1")
        a(f"s_add_u32 s{s_lid}, s{s_lid}, s35")
        a(f"s_lshl_b32 s{s_lid}, s{s_lid}, 1")
        a(f"s_bfe_u32 s35, s2, 0x10003")
        a(f"s_add_u32 s{s_lid}, s{s_lid}, s35")
    elif BMAP == 3:
        a(f"s_lshr_b32 s{s_lid}, s2, 4")
        a(f"s_lshl_b32 s{s_lid}, s{s_lid}, 3")
        a(f"s_and_b32 s35, s2, 7")
        a(f"s_add_u32 s{s_lid}, s{s_lid}, s35")
        a(f"s_lshl_b32 s{s_lid}, s{s_lid}, 1")
        a(f"s_bfe_u32 s35, s2, 0x10003")
        a(f"s_add_u32 s{s_lid}, s{s_lid}, s35")
    elif BMAP == 4:
        a(f"s_and_b32 s{s_lid}, s2, 1")
        a(f"s_lshl_b32 s{s_lid}, s{s_lid}, 3")
        a(f"s_lshr_b32 s35, s2, 5")
        a(f"s_add_u32 s{s_lid}, s{s_lid}, s35")
        a(f"s_lshl_b32 s{s_lid}, s{s_lid}, 2")
        a(f"s_bfe_u32 s35, s2, 0x20001")
        a(f"s_add_u32 s{s_lid}, s{s_lid}, s35")
        a(f"s_lshl_b32 s{s_lid}, s{s_lid}, 2")
        a(f"s_bfe_u32 s35, s2, 0x20003")
        a(f"s_add_u32 s{s_lid}, s{s_lid}, s35")
    elif BMAP == 5:
        a(f"s_bfe_u32 s{s_lid}, s2, 0x10002")
        a(f"s_lshl_b32 s{s_lid}, s{s_lid}, 3")
        a(f"s_lshr_b32 s35, s2, 5")
        a(f"s_add_u32 s{s_lid}, s{s_lid}, s35")
        a(f"s_lshl_b32 s{s_lid}, s{s_lid}, 1")
        a(f"s_and_b32 s35, s2, 1")
        a(f"s_add_u32 s{s_lid}, s{s_lid}, s35")
        a(f"s_lshl_b32 s{s_lid}, s{s_lid}, 1")
        a(f"s_bfe_u32 s35, s2, 0x10001")
        a(f"s_add_u32 s{s_lid}, s{s_lid}, s35")
        a(f"s_lshl_b32 s{s_lid}, s{s_lid}, 2")
        a(f"s_bfe_u32 s35, s2, 0x20003")
        a(f"s_add_u32 s{s_lid}, s{s_lid}, s35")
    else:
        a(f"s_and_b32 s{s_lid}, s2, 7")
        a(f"s_lshl_b32 s{s_lid}, s{s_lid}, 5")
        a(f"s_lshr_b32 s35, s2, 3")
        a(f"s_add_u32 s{s_lid}, s{s_lid}, s35")
    if STAMP == 3: a("s_mov_b32 s72, 0")

def decode_b(a):
    a(f"s_lshr_b32 s{s_tt}, s{s_lid}, 2")
    a(f"s_and_b32 s{s_hg}, s{s_lid}, 3")

def attn_addr(a):
    lid(a)
    a(f"s_and_b32 s{s_t0}, s{s_lid}, 3")
    a(f"s_lshl_b32 s{s_t0}, s{s_t0}, 3")
    a(f"s_add_u32 s{s_t0}, s{s_t0}, s{s_w}")
    a(f"s_mul_i32 s{s_t0}, s{s_t0}, 5")
    a(f"v_lshrrev_b32 v2, 5, v0")
    a(f"v_and_b32 v3, 31, v0")
    a(f"v_lshlrev_b32 v3, 4, v3")
    for i in range(3):
        if i < 2: a(f"v_add_u32 v1, s{s_t0}, v2")
        else: a(f"v_mov_b32 v1, s{s_t0}")
        if i: a(f"v_add_u32 v1, {2*i}, v1")
        a(f"v_lshrrev_b32 v{VT}, 2, v1")
        a(f"v_lshl_add_u32 v{v_g0+i}, v{VT}, 10, v3")
        a(f"v_and_b32 v{VT}, 1, v1")
        a(f"v_lshl_add_u32 v{v_g0+i}, v{VT}, 9, v{v_g0+i}")
        a(f"v_bfe_u32 v{VT}, v1, 1, 1")
        a(f"v_lshl_add_u32 v{v_g0+i}, v{VT}, 3, v{v_g0+i}")
    a(f"v_lshlrev_b32 v{v_l16}, 4, v0")
    a(f"v_add_u32 v{v_ka}, {KVB + 3*CH}, v{v_l16}")
    a(f"v_lshlrev_b32 v{v_cnt}, 2, v0")
    a(f"v_add_u32 v{v_cnt}, {SC_K}, v{v_cnt}")
    a(f"v_cmp_eq_u32 vcc, 0, v0")
    a(f"v_cndmask_b32 v{v_one}, 0, 1, vcc")
    a(f"v_and_b32 v1, 31, v0")
    a(f"v_min_u32 v1, 23, v1")
    a(f"v_mul_u32_u24 v{v_va}, 384, v2")
    a(f"v_lshl_add_u32 v{v_va}, v1, 4, v{v_va}")
    a(f"v_add_u32 v{v_va}, {KVB + 3*CH + 3072}, v{v_va}")

def fetch(a):
    decode_b(a)
    a(f"s_cmp_lg_u32 s{s_w}, 0")
    a("s_cbranch_scc1 F_attn")
    a(f"s_lshr_b32 s{s_t0}, s{s_tt}, 2")
    a(f"v_mov_b32 v1, s{s_t0}")
    if WFL:
        a(f"s_mul_i32 s{s_t1}, s{s_hg}, 5")
        a(f"s_lshr_b32 s{s_t1}, s{s_t1}, 1")
        a(f"v_add_u32 v5, s{s_t1}, v0")
        a(f"v_lshrrev_b32 v2, 1, v5")
        a(f"v_add_u32 v2, 9, v2")
        flag_off(a, 4, 1, 2, 3)
        a(f"v_and_b32 v5, 1, v5")
        a(f"v_lshl_add_u32 v4, v5, 3, v4")
        a(f"s_and_b32 s{s_t1}, s{s_tt}, 2")
        a(f"s_lshl_b32 s{s_t1}, s{s_t1}, 1")
        a(f"v_add_u32 v4, s{s_t1}, v4")
        a("s_mov_b64 exec, 7")
    else:
        a(f"s_add_u32 s{s_t1}, s{s_hg}, 9")
        a(f"v_add_u32 v2, s{s_t1}, v0")
        flag_off(a, 4, 1, 2, 3)
        a("s_mov_b64 exec, 3")
    poll(a, "B_pollq", f"buffer_load_dword v2, v4, {WS}, 0 offen sc1", "v_cmp_gt_u32 vcc, 1, v2", int(os.environ.get("QSL", "2")))
    lds_arrive(a, SC_CNT + 16, 2)

def fetch_kv(a, tag, bar):
    decode_b(a)
    a(f"s_lshr_b32 s{s_t0}, s{s_tt}, 3")
    a(f"s_lshl_b32 s{s_t1}, s{s_t0}, 1")
    a(f"v_add_u32 v1, s{s_t1}, v0")
    a(f"v_and_b32 v1, 15, v1")
    a(f"v_mov_b32 v2, 14")
    flag_off(a, 4, 1, 2, 3)
    a(f"s_mul_i32 s{s_t0}, s{s_t0}, {CH}")
    a(f"s_sub_u32 s{s_kvl}, s{s_w}, 5")
    a(f"s_lshl_b32 s{s_kvl}, s{s_kvl}, 13")
    a(f"s_add_u32 s{s_kvg}, s{s_kvl}, s{s_t0}")
    LD = f"buffer_load_dword v2, v4, {WS}, 0 offen sc1"
    def dma(c=0):
        a("s_mov_b64 exec, -1")
        if c:
            a(f"s_lshr_b32 s{s_t0}, s{s_tt}, 3")
            a(f"s_add_u32 s{s_t0}, s{s_t0}, {c}")
            a(f"s_and_b32 s{s_t0}, s{s_t0}, 7")
            a(f"s_mul_i32 s{s_t0}, s{s_t0}, {CH}")
            a(f"s_add_u32 s{s_kvg}, s{s_kvl}, s{s_t0}")
        for hf in range(2):
            a(f"s_add_u32 m0, s{s_kvl}, {KVB + (3-c)*CH + hf*4096}")
            a(f"s_add_u32 s{s_t1}, s{s_kvg}, {WS_KV + hf*4096}")
            for m in range(4): a(f"buffer_load_dwordx4 v{v_l16}, {WS}, s{s_t1} offen offset:{m*1024} sc1 lds")
    a("s_mov_b64 exec, 3")
    if bar:
        a(LD)
        a("s_waitcnt vmcnt(0)")
        a("v_cmp_gt_u32 vcc, 1, v2")
        a("s_cmp_eq_u64 vcc, 0")
        a(f"s_cbranch_scc0 K_late{tag}")
        dma()
        a("s_barrier")
        a(f"s_branch K_done{tag}")
        a.label(f"K_late{tag}")
        a("s_barrier")
    poll(a, f"K_poll{tag}", LD, "v_cmp_gt_u32 vcc, 1, v2", 3)
    dma()
    a.label(f"K_done{tag}")
    a("s_waitcnt vmcnt(0)")
    stamp(a, 2)
    lds_arrive(a, SC_CNT + 16, 2)
    if NF > 1:
        a(f"s_mov_b32 exec_lo, {(1 << (2 * NF)) - 1}")
        a("s_mov_b32 exec_hi, 0")
        poll(a, f"K_more{tag}", LD, "v_cmp_gt_u32 vcc, 1, v2", 3)
        for c in range(1, NF): dma(c)
    a("s_branch F_attn")

def attention(a):
    decode_b(a)
    stamp(a, 8)
    a(f"s_mul_i32 s{s_base}, s{s_tt}, {QH_TT}")
    for r in list(range(KS[0] + 20, KS[0] + (28 if LAY else 24))) + list(range(P0 if LAY else P1, P1 + 4)) + list(range(O, O + 16)):
        a(f"v_mov_b32 v{r}, 0")
    a(f"s_mov_b32 s{s_c}, 0")
    a(f"s_mov_b32 s{s_slot}, {3*CH}")
    a(f"s_mov_b32 s{s_cch}, {(-CH) & 0xffffffff}")
    if PSTEP:
        a(f"s_mov_b32 s{s_tgt}, 0")
        if PSEL == "l":
            a(f"s_bitcmp0_b32 s{s_tt}, 1")
            a("s_cbranch_scc1 B_nops")
        a(f"s_mov_b32 s{s_tgt}, {sum(1 << c for c in PSTEP)}")
        a(f"s_setprio {len(PSTEP) + PBASE}")
        a.label("B_nops")
    a(f"v_mov_b32 v{Q2}, 0")
    a(f"v_mov_b32 v{Q2+1}, 0")
    lds_wait(a, "B_wait", SC_CNT + 16, 4, 2, s_spin, s_t0, BSL)
    stamp(a, 9)
    QLD = "\n".join([f"buffer_load_dwordx2 {vr(Q1,2)}, v{v_g0}, {WS}, s{s_base} offen sc1",
                      f"buffer_load_dwordx2 {vr(Q1+2,2)}, v{v_g0+1}, {WS}, s{s_base} offen sc1",
                      "s_mov_b32 exec_hi, 0",
                      f"buffer_load_dwordx2 {vr(Q2,2)}, v{v_g0+2}, {WS}, s{s_base} offen sc1",
                      "s_mov_b32 exec_hi, -1"])
    def kv_off(kind, t):
        p = (t % 8) // 2 * PAIR; b = t % 2
        return {"K1": p + 1024 * b, "K2": p + 2048, "V0": p + 1536 * b, "V1": p + 1536 * b + 768}[kind]
    def rd(dst, kind, t):
        a(f"ds_read_b128 {vr(dst,4)}, v{v_ka if kind[0] == 'K' else v_va} offset:{kv_off(kind, t)}")
    def group_reads(o):
        n = KS[((o + 1) // 2 + 1) % 2]
        if LAY:
            return [(n + 12, "V0", o + 1), (n + 16, "V1", o + 1), (n, "K1", o + 3), (n + 8, "K2", o + 3),
                    (n + 4, "K1", o + 4), (n + 20, "V0", o + 2), (n + 24, "V1", o + 2)]
        return [(n + 12, "V1", o + 1), (n, "K1", o + 3), (n + 8, "K2", o + 3), (n + 16, "V0", o + 2),
                (n + 20, "V1", o + 2), (n + 4, "K1", o + 4), (n + 24, "V0", o + 3)]
    k0 = KS[0]
    def first_reads():
        rd(k0, "K1", 0); rd(k0 + 8, "K2", 0); rd(k0 + 4, "K1", 1)
        if not LAY: rd(k0 + 24, "V0", 0)
        for r in group_reads(-1)[:4]: rd(*r)
        a(f"v_mov_b32 v2, {SC_CNT + 8}")
    if ka2.QS:
        poll(a, "B_pollqd", QLD, f"v_max3_u32 v3, v{Q1}, v{Q1+1}, v{Q1+2}\nv_max3_u32 v1, v{Q1+3}, v{Q2}, v{Q2+1}\nv_max_u32 v3, v3, v1\nv_cmp_eq_u32 vcc, -1, v3",
             1, between=first_reads)
        a("s_waitcnt lgkmcnt(0)")
    else:
        a(QLD)
        first_reads()
        a("s_waitcnt vmcnt(0) lgkmcnt(0)")
    stamp(a, 10)
    mf(a, S1, k0, Q1, "0"); mf8(a, S1, k0 + 8, Q2)
    mf(a, S0, k0, Q1, "0")
    a("s_mov_b64 exec, 1")
    a(f"ds_add_u32 v2, v{v_one}")
    a("s_mov_b64 exec, -1")
    a(f"v_max3_f32 v{VT}, v{S1}, v{S1+1}, v{S1+2}")
    a(f"v_max3_f32 v{VT+1}, v{S1+3}, v{S1+4}, v{S1+5}")
    a(f"v_max3_f32 v{VT+2}, v{S1+6}, v{S1+7}, v{S1+8}")
    a(f"v_max3_f32 v{VT+3}, v{S1+9}, v{S1+10}, v{S1+11}")
    a(f"v_max3_f32 v{VT}, v{VT}, v{S1+12}, v{S1+13}")
    a(f"v_max3_f32 v{VT+1}, v{VT+1}, v{S1+14}, v{S1+15}")
    a(f"v_max3_f32 v{VT}, v{VT}, v{VT+2}, v{VT+3}")
    a(f"v_max_f32 v{VT}, v{VT}, v{VT+1}")
    a(f"v_mov_b32 v{VT+1}, v{VT}")
    a(f"v_permlane32_swap_b32 v{VT}, v{VT+1}")
    a(f"v_max_f32 v{VT}, v{VT}, v{VT+1}")
    a("s_mov_b32 exec_lo, 0")
    a(f"v_cvt_pk_bf16_f32 v{Q2}, -v{VT}, 0")
    a("s_mov_b32 exec_lo, -1")
    mf8(a, S0, k0 + 8, Q2)
    stamp(a, 11); stamp(a, 12, 'cyc')
    a("s_waitcnt lgkmcnt(0)")
    a("s_nop 10")
    a.raw(".p2align 6")
    a.label("B_loop")
    start = a.mark()
    for u in range(8):
        Sc, Sn = (S0, S1) if u % 2 == 0 else (S1, S0)
        odd = u % 2
        o = u if odd else u - 1
        ks = KS[((o + 1) // 2) % 2]
        reads = group_reads(o)
        slots = [[reads[0]], [reads[1]], [reads[2]], [reads[3]]] if odd else [[reads[4], reads[5]], [reads[6]], [], []]
        e = lambda i: a(f"v_exp_f32 v{Sc+i}, v{Sc+i}")
        c = lambda i: a(f"v_cvt_pk_bf16_f32 v{P0+i}, v{Sc+2*i}, v{Sc+2*i+1}")
        cp = lambda i: a(f"v_cvt_pk_bf16_f32 v{P0+i}, v{Sn+2*i}, v{Sn+2*i+1}")
        if LAY:
            rs = list(reads[:4] if odd else reads[4:])
            def misc():
                if u == 0:
                    a(f"ds_add_u32 v{v_cnt}, v{v_one} offset:{256 if COMB else 0}")
                    if PSTEP:
                        a(f"s_bitcmp1_b32 s{s_tgt}, s{s_c}")
                        a("s_cbranch_scc1 B_prio")
                        a.label("B_prioret")
                if u == 4: a(f"ds_read_b32 v{v_chk}, v{v_cnt} offset:256")
                if u == 2:
                    a(f"s_cmp_eq_u32 s{s_slot}, 0")
                    a(f"s_cselect_b32 s{s_delta}, {3*CH}, s{s_cch}")
                if u == 6:
                    a(f"s_add_u32 s{s_c}, s{s_c}, 1")
                    a(f"s_cmp_lt_u32 s{s_c}, 8")
            if odd: a("s_waitcnt lgkmcnt(0)")
            mf(a, Sn, ks + (0 if odd else 4), Q1, "0")
            if u == 5:
                a(f"v_readlane_b32 s{s_t0}, v{v_chk}, s{s_c}")
                a(f"s_add_u32 s{s_slot}, s{s_slot}, s{s_delta}")
                a(f"s_cmp_lt_u32 s{s_t0}, {12 if COMB else 4}")
                if "nospin" not in GX: a("s_cbranch_scc1 B_spin")
                a.label("B_synced")
                a(f"v_add_u32 v{v_ka}, s{s_delta}, v{v_ka}")
            if u == 7: a(f"v_add_u32 v{v_va}, s{s_delta}, v{v_va}")
            if u == 2: a(f"v_mov_b32_dpp v{v_one}, v{v_one} row_shr:1 row_mask:0xf bank_mask:0xf bound_ctrl:0")
            e(0); e(1); e(2)
            mf8(a, Sn, ks + 8 + (0 if odd else 2), Q2)
            rd(*rs.pop(0))
            e(3); e(4); e(5)
            mf(a, O, ks + (12 if odd else 20), P0, O)
            if LAY == 2: rd(*rs.pop(0))
            e(6); e(7); e(8)
            mf(a, O, ks + (16 if odd else 24), P1, O)
            if LAY == 1:
                e(9); e(10); c(0); c(1)
                for r in rs: rd(*r)
                misc()
                c(2); e(11); e(12); c(3); c(4); e(13); e(14); e(15); c(5); c(6); c(7)
            else:
                rd(*rs.pop(0))
                e(9); e(10); c(0)
                for r in rs: rd(*r)
                misc()
                c(1); c(2); e(11); e(12); c(3); c(4); e(13); e(14); e(15); c(5); c(6); c(7)
            continue
        if os.environ.get("CHST") and u == 0: a("s_memtime s[98:99]" if os.environ.get("CHST") == "2" else "s_memrealtime s[98:99]")
        cp(6); e(0); e(1); cp(7); e(2); e(3)
        if odd: a("s_waitcnt lgkmcnt(0)")
        if os.environ.get("CHST") and u == 1:
            sl = [2, 3, 4, 5, 6, 8, 9, 10]
            for k in range(7): a(f"s_mov_b32 s{64+2*sl[k]}, s{64+2*sl[k+1]}")
            a(f"s_mov_b32 s{64+2*sl[7]}, s98")
        mf(a, Sn, ks + (0 if odd else 4), Q1, "0")
        for r in slots[0]: rd(*r)
        if u == 5:
            a(f"v_readlane_b32 s{s_t0}, v{v_chk}, s{s_c}")
            a(f"s_add_u32 s{s_slot}, s{s_slot}, s{s_delta}")
            a(f"s_cmp_lt_u32 s{s_t0}, {12 if COMB else 4}")
            if "nospin" not in GX: a("s_cbranch_scc1 B_spin")
            a.label("B_synced")
        if u == 2:
            a(f"s_cmp_eq_u32 s{s_slot}, 0")
            a(f"s_cselect_b32 s{s_delta}, {3*CH}, s{s_cch}")
        e(4); e(5)
        if u == 5: a(f"v_add_u32 v{v_ka}, s{s_delta}, v{v_ka}")
        if u == 2: a(f"v_mov_b32_dpp v{v_one}, v{v_one} row_shr:1 row_mask:0xf bank_mask:0xf bound_ctrl:0")
        if u == 6: a(f"v_add_u32 v{v_va}, s{s_delta}, v{v_va}")
        c(0); c(1); e(6); e(7)
        mf8(a, Sn, ks + 8 + (0 if odd else 2), Q2)
        for r in slots[1]: rd(*r)
        e(8); e(9); c(2); c(3); e(10); e(11)
        mf(a, O, ks + (12 if odd else 20), P1, O)
        for r in slots[2]: rd(*r)
        if u == 0 and PSTEP:
            a(f"s_bitcmp1_b32 s{s_tgt}, s{s_c}")
            a("s_cbranch_scc1 B_prio")
            a.label("B_prioret")
        if u == 0:
            a(f"ds_add_u32 v{v_cnt}, v{v_one} offset:{256 if COMB else 0}")
        if u == 4: a(f"ds_read_b32 v{v_chk}, v{v_cnt} offset:256")
        e(12); e(13); c(4); c(5); e(14); e(15)
        mf(a, O, ks + (16 if odd else 24), P0, O)
        for r in slots[3]: rd(*r)
        if u == 6:
            a(f"s_add_u32 s{s_c}, s{s_c}, 1")
            a(f"s_cmp_lt_u32 s{s_c}, 8")
    a("s_cbranch_scc1 B_loop")
    if ALIGN: print("loop bytes/fixed", a.align8(start))
    a.check_backedge(start)
    stamp(a, 13); stamp(a, 14, 'cyc')
    if LAY:
        mf(a, O, KS[0] + 20, P0, O); mf(a, O, KS[0] + 24, P1, O)
    else:
        for i in (6, 7): a(f"v_cvt_pk_bf16_f32 v{P0+i}, v{S1+2*i}, v{S1+2*i+1}")
        mf(a, O, KS[0] + 20, P1, O)
    if not TRIGST: a(f"ds_add_u32 v{v_cnt}, v{v_one}")
    a(f"ds_read_b32 v{v_chk}, v{v_cnt}")
    a("s_waitcnt lgkmcnt(0)")
    a(f"v_mov_b32 v{VT+2}, {hex(f32bits(2.0**60))}")
    a(f"s_lshl_b32 s{s_base}, s{s_lid}, 3")
    a(f"s_add_u32 s{s_base}, s{s_base}, s{s_w}")
    a(f"s_mul_i32 s{s_base}, s{s_base}, 1280")
    a(f"s_add_u32 s{s_base}, s{s_base}, {WS_O}")
    a(f"v_lshlrev_b32 v{v_g0}, 4, v0")
    a(f"v_lshlrev_b32 v{v_g0+1}, 3, v0")
    a(f"v_mov_b32 v{VT}, v{O+8}")
    a(f"v_mov_b32 v{VT+1}, v{O+8}")
    a(f"v_permlane32_swap_b32 v{VT}, v{VT+1}")
    a(f"v_cmp_nle_f32 vcc, {hex(f32bits(2.0**-60))}, v{VT+1}")
    a(f"v_cmp_nle_f32 s[52:53], v{VT+1}, v{VT+2}")
    a(f"s_or_b64 s[52:53], s[52:53], vcc")
    a("s_cbranch_scc1 B_fallback")
    a.label("B_norm")
    a(f"v_rcp_f32 v{VT}, v{VT+1}")
    for i in range(12): a(f"v_mul_f32 v{O+i}, v{VT}, v{O+i}")
    for i in range(6): a(f"v_cvt_pk_bf16_f32 v{O+i}, v{O+2*i}, v{O+2*i+1}")
    if DRY: a("s_cbranch_execz F_dryret")
    a(f"v_readlane_b32 s{s_t0}, v{v_chk}, 9")
    a(f"s_cmp_eq_u32 s{s_t0}, 4")
    a("s_cbranch_scc1 B_near")
    a(f"buffer_store_dwordx4 {vr(O,4)}, v{v_g0}, {WS}, s{s_base} offen sc1")
    a("s_mov_b32 exec_hi, 0")
    a(f"buffer_store_dwordx2 {vr(O+4,2)}, v{v_g0+1}, {WS}, s{s_base} offen offset:1024 sc1")
    a("s_branch B_done")
    a.label("B_near")
    a(f"buffer_store_dwordx4 {vr(O,4)}, v{v_g0}, {WS}, s{s_base} offen")
    a("s_mov_b32 exec_hi, 0")
    a(f"buffer_store_dwordx2 {vr(O+4,2)}, v{v_g0+1}, {WS}, s{s_base} offen offset:1024")
    a.label("B_done")
    if TRIGST == 2: a("s_waitcnt vmcnt(0)")
    if TRIGST: a(f"ds_add_u32 v{v_cnt}, v{v_one}")
    if STAMP: a("s_waitcnt vmcnt(0)")
    if STAMP:
        stamp(a, 7); stamp(a, 15, True)
        stamp_flush(a, 1, SWS, s_w, 12, 16)
    a("s_endpgm")
    if PSTEP:
        a.label("B_prio")
        for k, c in enumerate(PSTEP):
            a(f"s_setprio {len(PSTEP) - 1 - k + PBASE}")
            a(f"s_cmp_eq_u32 s{s_c}, {c}")
            a("s_cbranch_scc1 B_prioret")
        a("s_branch B_prioret")
    a.label("B_spin")
    a(f"s_mov_b32 s{s_spin}, {SPIN * 40}")
    a.label("B_spin1")
    a(f"s_sleep {os.environ.get('SSL', '4')}")
    a(f"ds_read_b32 v{v_chk}, v{v_cnt} offset:256")
    a("s_waitcnt lgkmcnt(0)")
    a(f"v_readlane_b32 s{s_t0}, v{v_chk}, s{s_c}")
    a(f"s_cmp_ge_u32 s{s_t0}, {12 if COMB else 4}")
    a("s_cbranch_scc1 B_synced")
    a(f"s_sub_u32 s{s_spin}, s{s_spin}, 1")
    a(f"s_cmp_lg_u32 s{s_spin}, 0")
    a("s_cbranch_scc1 B_spin1")
    a("s_branch B_synced")
    a.label("B_fallback")
    a("s_mov_b32 exec_lo, 0")
    a(f"v_mov_b32 v{Q2}, 0")
    a("s_mov_b32 exec_lo, -1")
    a(f"s_add_u32 s{s_slot}, s{s_slot}, {KVB}")
    a(f"v_subrev_u32 v{v_ka}, s{s_slot}, v{v_ka}")
    a(f"v_subrev_u32 v{v_va}, s{s_slot}, v{v_va}")
    a(f"v_mov_b32 v{VT}, 0xff800000")
    for r in range(O, O + 16): a(f"v_mov_b32 v{r}, 0")
    a(f"s_mov_b32 s{s_kvg}, {WS_KV}")
    def ldk():
        for i in range(3): a(f"buffer_load_dwordx4 {vr(k0+4*i,4)}, v{v_ka}, {WS}, s{s_kvg} offen offset:{1024*i} sc1")
    def qk(b):
        S = (S0, S1)[b]
        mf(a, S, k0 + 4 * b, Q1, "0"); mf8(a, S, k0 + 8 + 2 * b, Q2)
    def nxt(lbl):
        a(f"s_add_u32 s{s_kvg}, s{s_kvg}, {PAIR}")
        a(f"s_cmp_lt_u32 s{s_kvg}, {WS_KV + 32*PAIR}")
        a(f"s_cbranch_scc1 {lbl}")
    a.label("B_fb1")
    st = a.mark()
    ldk()
    a("s_waitcnt vmcnt(0)")
    qk(0); qk(1)
    for i in range(0, 32, 2): a(f"v_max3_f32 v{VT}, v{VT}, v{S0+i}, v{S0+i+1}")
    nxt("B_fb1")
    a.check_backedge(st)
    a(f"v_mov_b32 v{VT+1}, v{VT}")
    a(f"v_permlane32_swap_b32 v{VT}, v{VT+1}")
    a(f"v_max_f32 v{VT}, v{VT}, v{VT+1}")
    a(f"s_mov_b32 s{s_kvg}, {WS_KV}")
    a.label("B_fb2")
    st = a.mark()
    ldk()
    for i in range(4): a(f"buffer_load_dwordx4 {vr(k0+12+4*i,4)}, v{v_va}, {WS}, s{s_kvg} offen offset:{768*i} sc1")
    a("s_waitcnt vmcnt(0)")
    qk(0); qk(1)
    for b in range(2):
        S = (S0, S1)[b]
        for i in range(16): a(f"v_sub_f32 v{S+i}, v{S+i}, v{VT}")
        for i in range(16): a(f"v_exp_f32 v{S+i}, v{S+i}")
        for i in range(8): a(f"v_cvt_pk_bf16_f32 v{P0+i}, v{S+2*i}, v{S+2*i+1}")
        mf(a, O, k0 + 12 + 8 * b, P0, O); mf(a, O, k0 + 16 + 8 * b, P1, O)
    nxt("B_fb2")
    a.check_backedge(st)
    a(f"v_mov_b32 v{VT}, v{O+8}")
    a(f"v_mov_b32 v{VT+1}, v{O+8}")
    a(f"v_permlane32_swap_b32 v{VT}, v{VT+1}")
    a("s_nop 1")
    a("s_branch B_norm")

def gemm(a):
    global stamp
    def h_store(sc, vl):
        for k in range(12):
            if k in (4, 10): a("s_add_u32 s53, s53, 4096")
            if k == 6: a(f"s_add_u32 s53, s53, {QH_TT - 4096}")
            a(f"buffer_store_dwordx4 {vr(72+4*k,4)}, v{vl}, {WS}, s53 offen offset:{(k % 6 % 4)*1024}{sc}")
        stamp(a, 3)
    a("s_setprio 3")
    lid(a)
    decode_b(a)
    a(f"s_sub_u32 s{s_w}, s{s_w}, 8")
    srd(a, SW2, 56, 1728 * 1280)
    srd(a, SWO, 58, 640 * 1280)
    srd(a, SOUT, 60, 2048 * 1280)
    g = GW(a, 27, 4, 10, STG, PART, SW2, SWS, s_gw)
    v_wd2 = g.v_end
    v_wa2, vfl = 11, v_wd2 + 5
    vx = v_wd2 + 6
    v_wa3 = 0
    s_kw, s_ka, s_w0, s_a0 = 50, 51, 54, 55
    a(f"s_mul_i32 s{s_kvl}, s{s_w}, 6144")
    def kv(c, tag=""):
        if c >= 4: lds_wait(a, f"G_free{c}{tag}", SCW + 4 * (c - 3), NW_, 2, s_spin, s_t0, 4)
        a(f"s_lshr_b32 s{s_kvg}, s{s_tt}, 3")
        a(f"s_add_u32 s{s_kvg}, s{s_kvg}, {c}")
        a(f"s_and_b32 s{s_kvg}, s{s_kvg}, 7")
        a(f"s_mul_i32 s{s_kvg}, s{s_kvg}, {CH}")
        a(f"s_add_u32 s{s_kvg}, s{s_kvg}, s{s_kvl}")
        a(f"s_add_u32 s{s_kvg}, s{s_kvg}, {WS_KV}")
        a(f"s_add_u32 m0, s{s_kvl}, {KVB + (3 - c % 4)*CH}")
        for m in range(4):
            a(f"buffer_load_dwordx4 v{g.v_l16}, {WS}, s{s_kvg} offen offset:{m*1024} sc1 lds"); g.vm.issue(("KV", c))
        a(f"s_add_u32 m0, m0, 4096")
        a(f"s_add_u32 s{s_kvg}, s{s_kvg}, 4096")
        for m in range(2):
            a(f"buffer_load_dwordx4 v{g.v_l16}, {WS}, s{s_kvg} offen offset:{m*1024} sc1 lds"); g.vm.issue(("KV", c))
    def landed(c):
        g.vm.wait(("KV", c))
        a("s_mov_b64 exec, 1")
        a(f"v_mov_b32 v2, {SC_L + 4 * (c - 1)}")
        a(f"v_mov_b32 v3, 1")
        a(f"ds_add_u32 v2, v3"); g.lg.issue("arr")
        a("s_mov_b64 exec, -1")
    s_i4 = s_c
    a(f"s_getreg_b32 s{s_delta}, hwreg(HW_REG_XCC_ID, 0, 4)")
    a(f"s_add_u32 s{s_delta}, s{s_delta}, 16")
    a(f"s_mov_b32 s{s_base}, 0")
    g.setup(s_w, s_hg, s_base)
    a(f"s_and_b32 s{s_t1}, s{s_tt}, 3")
    a(f"s_lshl_b32 s{s_i4}, s{s_t1}, 2")
    s_n = 52
    a(f"s_min_u32 s{s_t0}, s{s_t1}, 2")
    a(f"s_mul_i32 s{s_kw}, s{s_t0}, {NH}")
    a(f"s_cmp_eq_u32 s{s_t1}, 3")
    a(f"s_cselect_b32 s{s_t0}, {NL}, 0")
    a(f"s_add_u32 s{s_kw}, s{s_kw}, s{s_t0}")
    a(f"s_cmp_lt_u32 s{s_t1}, 2")
    a(f"s_cselect_b32 s{s_n}, {NH}, {NL}")
    a(f"s_mul_i32 s{s_w0}, s{s_kw}, {16*1280}")
    a(f"s_mul_i32 s{s_t0}, s{s_hg}, 320")
    a(f"s_add_u32 s{s_w0}, s{s_w0}, s{s_t0}")
    a(f"s_mul_i32 s{s_woff2}, s{s_w}, {160*1280}")
    a(f"s_add_u32 s{s_woff2}, s{s_woff2}, s{s_t0}")
    a(f"s_and_b32 s{s_slot}, s{s_tt}, 0xfc")
    a(f"s_add_u32 s{s_slot}, s{s_slot}, s{s_w}")
    a(f"s_mul_i32 s{s_a0}, s{s_slot}, {QH_TT}")
    a(f"s_lshl_b32 s{s_t0}, s{s_kw}, 10")
    a(f"s_add_u32 s{s_a0}, s{s_a0}, s{s_t0}")
    a(f"s_add_u32 s{s_a0}, s{s_a0}, {WS_QH + 40*1024}")
    a(f"v_mul_u32_u24 v2, 12, v0")
    a(f"s_sub_u32 s{s_t0}, s{s_n}, 1")
    a(f"v_min_u32 v2, s{s_t0}, v2")
    a(f"v_add_u32 v2, s{s_kw}, v2")
    a(f"v_mul_u32_u24 v2, 0x5556, v2")
    a(f"v_lshrrev_b32 v2, 18, v2")
    a(f"s_lshr_b32 s{s_t0}, s{s_tt}, 2")
    a(f"v_mov_b32 v1, s{s_t0}")
    flag_off(a, vfl, 1, 2, 3)
    a(f"s_bfe_u32 s{s_ka}, s{s_tt}, {0x10002 if RB == 1 else 0x20002}")
    a(f"s_lshr_b32 s{s_t0}, s{s_n}, {RB}")
    a(f"s_mul_i32 s{s_ka}, s{s_ka}, s{s_t0}")
    a(f"s_add_u32 s{s_kw}, s{s_ka}, s{s_w}")
    ALT = {31: 2 * CH, 32: CH, 33: 0}
    cur = {"ns": None}
    def dma5(vd, S, tag):
        for m in range(4):
            a(f"buffer_load_dwordx4 v{vd+m}, {S}, s{g.s_woff} offen offset:{m*1024} lds"); g.vm.issue(tag)
        a(f"s_add_u32 m0, m0, 4096")
        a(f"buffer_load_dwordx4 v{vd+4}, {S}, s{g.s_woff} offen lds"); g.vm.issue(tag)
    def load_stage(st):
        a(f"s_cmp_ge_u32 s{s_kw}, s{s_n}")
        a(f"s_cselect_b32 s{s_t0}, s{s_n}, 0")
        a(f"s_sub_u32 s{s_kw}, s{s_kw}, s{s_t0}")
        a(f"s_mul_i32 s{g.s_woff}, s{s_kw}, {16*1280}")
        a(f"s_add_u32 s{g.s_woff}, s{g.s_woff}, s{s_w0}")
        a(f"s_add_u32 s{s_kw}, s{s_kw}, 4")
        if cur["ns"] is None:
            oh, ol = [((st - (n + 3) // 4 + 1) % 3) * 5120 for n in (NH, NL)]
            a(f"s_movk_i32 s{s_t0}, {oh}")
            a(f"s_cmp_ge_u32 s{s_i4}, 8")
            a(f"s_cselect_b32 s{s_t0}, {ol}, s{s_t0}")
            a(f"s_add_u32 m0, s{g.s_lds}, s{s_t0}")
        else: a(f"s_add_u32 m0, s{g.s_lds}, {((st - cur['ns'] + 1) % 3)*5120}")
        dma5(g.v_wd, f"s[{SW2}:{SW2+3}]", ("S", st))
    def load_w(i):
        j = i - 27
        row = 80 * (j // 5) + (20 * (j % 5) if j % 5 < 4 else 16)
        a(f"s_add_u32 s{g.s_woff}, s{s_woff2}, {row*1280}")
        if i in ALT:
            a(f"s_mul_i32 s{s_t0}, s{s_w}, 5120")
            a(f"s_add_u32 m0, s{s_t0}, {KVB + CH + ALT[i]}")
        else: a(f"s_add_u32 m0, s{g.s_lds}, {(i % 3)*5120}")
        dma5(v_wd2 if j % 5 == 4 else g.v_wd, f"s[{SWO}:{SWO+3}]", ("W", i))
    def areg(i): return g.v_act + 4 * ((i - 100) % 8 if i >= 100 else i - 27)
    def load_a(i):
        a(f"s_lshl_b32 s{g.s_aoff}, s{s_ka}, 10")
        a(f"s_add_u32 s{g.s_aoff}, s{g.s_aoff}, s{s_a0}")
        a(f"s_add_u32 s{s_ka}, s{s_ka}, 1")
        a(f"s_cmp_eq_u32 s{s_ka}, s{s_n}")
        a(f"s_cselect_b32 s{s_ka}, 0, s{s_ka}")
        a(f"buffer_load_dwordx4 {vr(areg(i),4)}, v{g.v_l16}, {WS}, s{g.s_aoff} offen sc1"); g.vm.issue(("A", i))
    def rd_t(i, T):
        if i >= 100: base, off = g.v_wa, (i % 4) * PART + (((i - 100) // 4 - cur['ns'] + 1) % 3) * 5120
        else: base, off = (v_wa3, ALT[i]) if i in ALT else (g.v_wa, (i % 3) * 5120)
        for p in range(2):
            a(f"ds_read_b64_tr_b16 {vr(g.v_wf+4*T+2*p,2)}, v{base} offset:{off + T*64 + p*2560}"); g.lg.issue((i, T))
    def rd_w(i):
        g.vm.wait(("W", i))
        for T in range(5): rd_t(i, T)
    def mm(i, nxt=None, pm=0):
        g.vm.wait(("A", i), ("W", nxt))
        low = not 32 <= i < 100
        for T in range(5):
            if low and (pm >> T & 1) != ((pm >> (T - 1) & 1) if T else 1): a(f"s_setprio {3 * (pm >> T & 1)}")
            g.lg.wait((i, T))
            acc = vr(g.v_acc + 16 * T, 16)
            a(f"v_mfma_f32_32x32x16_bf16 {acc}, {vr(g.v_wf+4*T,4)}, {vr(areg(i),4)}, {acc if i != 100 else 0}")
            if nxt is not None: rd_t(nxt, T)
        if low and not pm >> 4 & 1: a("s_setprio 3")
    def sync(st, tag=""):
        g.vm.wait(("S", st))
        lds_arrive(a, SC_CNT + 32 + 4 * st, 2)
        lds_wait(a, f"G_sync{st}{tag}", SC_CNT + 32 + 4 * st, 4, 2, s_spin, s_t0, 1)
        g.lg.q = []
    g.setup2()
    a(f"v_subrev_u32 v{g.v_wa}, s{g.s_lds}, v{g.v_wa}")
    for m in range(5):
        a(f"v_add_u32 v1, {64*m}, v0")
        a(f"v_mul_u32_u24 v2, 0xcccd, v1")
        a(f"v_lshrrev_b32 v2, 22, v2")
        a(f"v_mul_u32_u24 v2, {16*1280}, v2")
        a(f"v_add_u32 v{v_wd2+m}, v2, v{g.v_wd+m}")
    a(f"v_mov_b32 v2, 14")
    flag_off(a, 1, 0, 2, 3)
    a("s_mov_b32 exec_lo, 0xffff")
    a("s_mov_b32 exec_hi, 0")
    poll(a, "G_pollkv", f"buffer_load_dword v2, v1, {WS}, 0 offen sc1", "v_cmp_gt_u32 vcc, 1, v2", 6)
    a("s_mov_b64 exec, -1")
    lds_wait(a, "G_wait", SC_CNT + 8, GW_N, 2, s_spin, s_t0, 1)
    for c in range(1, NF): landed(c)
    first = list(range(NF, NF + HORD)); later = list(range(NF + HORD, 4))
    for c in first: kv(c)
    a("s_cmp_eq_u32 s53, -1")
    a("s_cbranch_scc1 G_noh")
    h_store(" sc1", g.v_l16)
    q0 = list(g.vm.q)
    g.vm.q += ["H"] * 12
    for c in first: landed(c)
    for c in later: kv(c)
    publish(a, "G_pub", 0, 4, 3, WS_FL, 1, vm=6 * len(later))
    stamp(a, 4)
    a("s_branch G_noh2")
    a.label("G_noh")
    g.vm.q = q0
    for c in later: kv(c)
    for c in first: landed(c)
    a.label("G_noh2")
    g.vm.q = [("KV", c) for c in later for _ in range(6)]
    for c in later: landed(c)
    for st in range(NS0): load_stage(st)
    stamp(a, 8)
    a("s_mov_b64 exec, 15")
    poll(a, "G_pollh", f"buffer_load_dword v2, v{vfl}, {WS}, 0 offen sc1", "v_cmp_gt_u32 vcc, 1, v2", 4)
    a("s_mov_b64 exec, -1")
    g.vm.q = []
    stamp(a, 9)
    if STAMP: a("s_waitcnt lgkmcnt(0)")
    for i in range(100, 104): load_a(i)
    for st in range(NS0, 3): load_stage(st)
    for i in range(104, 108): load_a(i)
    vo = vfl
    a(f"s_mul_i32 s{s_base}, s{s_tt}, {32*1280}")
    a(f"s_mul_i32 s{s_t0}, s{s_hg}, 320")
    a(f"s_add_u32 s{s_base}, s{s_base}, s{s_t0}")
    a(f"s_lshl_b32 s{s_t0}, s{s_w}, 4")
    a(f"s_add_u32 s{s_base}, s{s_base}, s{s_t0}")
    a(f"v_and_b32 v1, 31, v0")
    a(f"v_mul_u32_u24 v{vo}, 1280, v1")
    a(f"v_lshrrev_b32 v2, 5, v0")
    a(f"v_lshl_add_u32 v{vo}, v2, 3, v{vo}")
    a(f"v_mul_u32_u24 v{v_wa2}, 1280, v2")
    a(f"v_lshl_add_u32 v{v_wa2}, v1, 3, v{v_wa2}")
    a(f"v_mul_u32_u24 v1, 0xcccd, v0")
    a(f"v_lshrrev_b32 v1, 18, v1")
    a(f"v_mul_u32_u24 v2, 5, v1")
    a(f"v_sub_u32 v2, v0, v2")
    a(f"v_mul_u32_u24 v1, 1280, v1")
    a(f"v_lshl_add_u32 v{vx}, v2, 6, v1")
    a(f"s_mul_i32 s{s_t0}, s{s_w}, 5120")
    a(f"s_add_u32 s{s_t0}, s{s_t0}, {KVB + CH}")
    a(f"v_add_u32 v{v_wa3}, s{s_t0}, v{g.v_wa}")
    for r in range(4): a(f"v_mov_b32 v{vx+4+r}, -1")
    sync(0)
    def ffn(N, tag, kvat, pm, alt):
        ns = (N + 3) // 4
        cur["ns"] = ns
        for T in range(5): rd_t(100, T)
        assert EV + 3 <= kvat[-1] < ns and ns >= EV + 5
        for st in range(ns):
            if st in kvat: kv(4 + kvat.index(st), tag)
            n = min(4, N - 4 * st)
            for j in range(n):
                i = 100 + 4 * st + j
                if j == 3 and st + 1 < ns:
                    sync(st + 1, tag)
                    if st + 3 < ns: load_stage(st + 3)
                    else: load_w(28 + st + 3 - ns)
                mm(i, i + 1 if i + 1 < 100 + N else None, pm)
                if j == min(1, n - 1) and st in kvat: landed(4 + kvat.index(st))
            for i in range(4 * st + 8, min(4 * st + 12, N)): load_a(100 + i)
            if st == EV:
                a(f"s_lshl_b32 s{s_t0}, s{s_lid}, 2")
                a(f"s_add_u32 s{s_t0}, s{s_t0}, s{s_w}")
                a(f"s_mul_i32 s{s_t0}, s{s_t0}, 2560")
                a(f"s_add_u32 s{s_t0}, s{s_t0}, {WS_O}")
                for o in (0, 1024, 1536):
                    a(f"buffer_store_dwordx4 {vr(vx+4,4)}, v{g.v_l16}, {WS}, s{s_t0} offen offset:{o} sc1"); g.vm.issue("R")
            if st == EV + 1:
                a(f"s_bfe_u32 s{s_t0}, s{s_tt}, 0x30002")
                a(f"s_mul_i32 s{s_t0}, s{s_t0}, {20*1280}")
                a(f"s_add_u32 s{s_t0}, s{s_t0}, s{s_woff2}")
                a(f"s_add_u32 s{s_t1}, s{s_t0}, {10*1280}")
                a(f"buffer_load_dword v{vx+2}, v{vx}, s[{SWO}:{SWO+3}], s{s_t0} offen"); g.vm.issue("P")
                a(f"buffer_load_dword v{vx+3}, v{vx}, s[{SWO}:{SWO+3}], s{s_t1} offen"); g.vm.issue("P")
            if st == EV + 2:
                g.vm.wait("R")
                publish(a, f"G_pubr{tag}", 4, 4, s_lid, WS_FL + 32768, 1, value=f"s{s_delta}", vm=63, word=s_i4)
                g.lg.q = []
            if st == EV + 3:
                g.vm.wait("P", "R")
                for T in range(5):
                    a(f"buffer_load_dwordx2 {vr(vx+2*T,2)}, v{vo}, s[{SX}:{SX+3}], s{s_base} offen offset:{64*T}"); g.vm.issue("X")
            if st == ns - 2:
                a(f"s_lshl_b32 s{s_t0}, s{s_tt}, 2")
                a(f"s_add_u32 s{s_t0}, s{s_t0}, s{s_w}")
                a(f"s_lshl_b32 s{s_t0}, s{s_t0}, 7")
                a(f"s_add_u32 s{s_t0}, s{s_t0}, s{s_i4}")
                a(f"s_add_u32 s{s_cch}, s{s_t0}, {WS_FL + 32768}")
                a(f"buffer_load_dword v1, off, {WS}, s{s_cch} sc1"); g.vm.issue("M")
            for k in range(2):
                if st == ns - 1 - alt[k]:
                    lds_wait(a, f"G_alt{k}{tag}", SCW + 20 + 4 * k, NW_, 2, s_spin, s_t0, 2)
                    g.lg.q = []
                    load_w(31 + k)
            if st in (0, 3):
                stamp(a, {0: 10, 3: 11}[st])
                if STAMP: a("s_waitcnt lgkmcnt(0)")
        g.vm.wait("M")
    if NH != NL or KVH != KVL or PMH != PML or ALH != ALL:
        a(f"s_cmp_ge_u32 s{s_i4}, 8")
        a("s_cbranch_scc1 G_light")
        vq, lq = list(g.vm.q), list(g.lg.q)
        ffn(NH, "h", KVH, PMH, ALH)
        a("s_branch G_ffnend")
        a.label("G_light")
        g.vm.q, g.lg.q = vq, lq
        ffn(NL, "l", KVL, PML, ALL)
        a.label("G_ffnend")
    else:
        ffn(NH, "h", KVH, PMH, ALH)
    g.vm.q = []; g.lg.q = []
    stamp(a, 12)
    a("v_cmp_gt_u32 vcc, 1, v1")
    a("s_cmp_eq_u64 vcc, 0")
    a("s_cbranch_scc1 G_pollm_ok")
    poll(a, "G_pollm", f"buffer_load_dword v1, off, {WS}, s{s_cch} sc1", "v_cmp_gt_u32 vcc, 1, v1", 8)
    a(f"v_readfirstlane_b32 s{s_t0}, v1")
    a(f"s_cmp_lg_u32 s{s_t0}, s{s_delta}")
    a("s_cbranch_scc1 G_novote")
    if FASTO: lds_arrive(a, SC_K + 36, 2)
    a.label("G_novote")
    pk = g.v_act
    lds_arrive(a, SC_CNT + 96, 2)
    a(f"s_lshl_b32 s{s_t0}, s{s_w}, 2")
    a(f"s_cmp_eq_u32 s{s_t0}, s{s_i4}")
    a("s_cbranch_scc1 G_keep")
    a(f"s_lshl_b32 s{s_t0}, s{s_lid}, 2")
    a(f"s_add_u32 s{s_t0}, s{s_t0}, s{s_w}")
    a(f"s_mul_i32 s{s_t0}, s{s_t0}, 10240")
    a(f"s_add_u32 s{s_t0}, s{s_t0}, {WS_P}")
    def pick(name, body):
        if not NEARP: body(" sc1"); return
        a(f"s_cmp_eq_u32 s52, s{s_delta}")
        a(f"s_cbranch_scc1 {name}_n")
        body(" sc1")
        a(f"s_branch {name}_e")
        a.label(f"{name}_n")
        body(os.environ.get("NPOL", "") if name == "G_snd" else "")
        a.label(f"{name}_e")
    def snd(sc):
        a("s_nop 7")
        for k in range(10):
            for r in range(4): a(f"v_cvt_pk_bf16_f32 v{pk+4*k+r}, v{g.v_acc+8*k+2*r}, v{g.v_acc+8*k+2*r+1}")
            if k in (4, 8): a(f"s_add_u32 s{s_t0}, s{s_t0}, 4096")
            a(f"buffer_store_dwordx4 {vr(pk+4*k,4)}, v{g.v_l16}, {WS}, s{s_t0} offen offset:{(k%4)*1024}{sc}")
    pick("G_snd", snd)
    a.label("G_keep")
    def not_owner(lbl):
        a(f"s_lshl_b32 s{s_t1}, s{s_w}, 2")
        a(f"s_cmp_eq_u32 s{s_t1}, s{s_i4}")
        a(f"s_cbranch_scc1 {lbl}")
    lds_wait(a, "G_sync7", SC_CNT + 96, 4, 2, s_spin, s_t0, 1)
    g.lg.q = []
    a(f"v_add_u32 v{g.v_wa}, s{g.s_lds}, v{g.v_wa}")
    load_w(27)
    a(f"s_lshl_b32 s{s_t0}, s{s_tt}, 2")
    a(f"s_add_u32 s{s_t0}, s{s_t0}, s{s_w}")
    a(f"s_mul_i32 s{g.s_aoff}, s{s_t0}, 10240")
    a(f"s_add_u32 s{g.s_aoff}, s{g.s_aoff}, {WS_O}")
    a(f"s_add_u32 s{s_a0}, s{g.s_aoff}, 5120")
    a(f"s_lshl_b32 s{s_slot}, s{s_slot}, 2")
    a(f"s_add_u32 s{s_slot}, s{s_slot}, s{s_hg}")
    a(f"s_lshl_b32 s{s_t1}, s{s_slot}, 7")
    a(f"s_add_u32 s{s_t1}, s{s_t1}, s{s_i4}")
    a(f"s_add_u32 s{s_kvg}, s{s_t1}, {WS_FL + 32768}")
    not_owner("G_keep2")
    a(f"s_lshl_b32 s{s_t0}, s{s_lid}, 7")
    a(f"s_add_u32 s{s_t0}, s{s_t0}, s{s_t1}")
    a(f"s_add_u32 s{s_t0}, s{s_t0}, {WS_FL + 32768}")
    a("v_mov_b32 v1, 1")
    a("s_waitcnt vmcnt(5)")
    a("s_mov_b64 exec, 1")
    pick("G_sfl", lambda sc: a(f"buffer_store_dword v1, off, {WS}, s{s_t0}{sc}"))
    a("s_mov_b64 exec, -1")
    a.label("G_keep2")
    if TAILST: stamp(a, 8)
    assert (ALH[1] < 0) == (ALL[1] < 0) and ALH[0] >= 0 and ALL[0] >= 0
    rd_w(27); g.lg.drain(); load_w(30)
    if ALH[1] < 0:
        lds_wait(a, "G_alt1x", SCW + 24, NW_, 2, s_spin, s_t0, 2)
        load_w(32)
    def unpack(k0_, k1_):
        for k in range(k0_, k1_):
            for r in range(4):
                a(f"v_lshlrev_b32 v{g.v_acc+8*k+2*r}, 16, v{pk+4*k+r}")
                a(f"v_and_b32 v{g.v_acc+8*k+2*r+1}, s{s_cch}, v{pk+4*k+r}")
    a(f"s_mov_b32 s{s_cch}, 0xffff0000")
    not_owner("G_keep3")
    poll(a, "G_pollr", f"buffer_load_dword v1, off, {WS}, s{s_kvg} sc1", "v_cmp_gt_u32 vcc, 1, v1", 2)
    a(f"s_mul_i32 s{s_t0}, s{s_slot}, 40960")
    a(f"s_mul_i32 s{s_t1}, s{s_i4}, 2560")
    a(f"s_add_u32 s{s_t0}, s{s_t0}, s{s_t1}")
    a(f"s_add_u32 s{s_t0}, s{s_t0}, {WS_P}")
    for k in range(10):
        if k in (4, 8): a(f"s_add_u32 s{s_t0}, s{s_t0}, 4096")
        a(f"buffer_load_dwordx4 {vr(pk+4*k,4)}, v{g.v_l16}, {WS}, s{s_t0} offen offset:{(k%4)*1024} sc1")
    a("s_waitcnt vmcnt(5)")
    unpack(0, 5)
    a.label("G_keep3")
    stamp(a, 5)
    lds_wait(a, "G_trig0", SC_K + 32, TRIG[0], 2, s_spin, s_t0, 1)
    def o_poll(half):
        b = areg(27 + 5 * half)
        so = g.s_aoff if half == 0 else s_a0
        ld = [f"buffer_load_dwordx4 {vr(b+4*j,4)}, v{g.v_l16}, {WS}, s{so} offen offset:{j*1280} sc1" for j in range(4)]
        ld += [f"buffer_load_dwordx2 {vr(b+16+2*j,2)}, v{v_wa2}, {WS}, s{so} offen offset:{1024+2560*j} sc1" for j in range(2)]
        ck = [f"v_max3_u32 v{1+k}, v{b+3*k}, v{b+3*k+1}, v{b+3*k+2}" for k in range(3)]
        ck += [f"v_max3_u32 v{1+k}, v{1+k}, v{b+9+2*k}, v{b+10+2*k}" for k in range(3)]
        ck += [f"v_max3_u32 v1, v1, v{b+15}, v{b+16}", f"v_max3_u32 v2, v2, v{b+17}, v{b+18}", f"v_max_u32 v3, v3, v{b+19}",
               "v_max3_u32 v1, v1, v2, v3", "v_cmp_eq_u32 vcc, -1, v1"]
        return "\n".join(ld), "\n".join(ck)
    def rest():
        not_owner("G_keep4")
        a("s_waitcnt vmcnt(6)")
        unpack(5, 10)
        a.label("G_keep4")
    poll(a, "G_pollo0", *o_poll(0), OSL[0], between=rest)
    g.vm.q = []
    if TAILST: stamp(a, 6); a("s_waitcnt lgkmcnt(0)")
    lds_wait(a, "G_alt1", SCW + 28, NW_, 2, s_spin, s_t0, 1)
    load_w(33)
    for i in range(27, 31):
        mm(i, i + 1)
        if 28 <= i <= 30: load_w(i + 6)
    def last_first():
        for _ in range(6): g.vm.issue("O")
        mm(31, 32)
        stamp(a, 2)
    if SPEC:
        poll(a, "G_pollo1", *o_poll(1), OSL[1], between=last_first)
    else:
        mm(31, 32)
        stamp(a, 2)
        lds_wait(a, "G_trig1", SC_K + 32, TRIG[1], 2, s_spin, s_t0, 1)
        g.lg.q = []
        poll(a, "G_pollo1", *o_poll(1), OSL[1])
    g.vm.q = []
    a("s_setprio 3")
    stamp(a, 13)
    if STAMP: a("s_waitcnt lgkmcnt(0)")
    for i in range(32, 37): mm(i, i + 1 if i < 36 else None)
    stamp(a, 14)
    xf = g.v_act
    for T in range(5):
        a(f"v_lshlrev_b32 v{xf+4*T}, 16, v{vx+2*T}")
        a(f"v_and_b32 v{xf+4*T+1}, 0xffff0000, v{vx+2*T}")
        a(f"v_lshlrev_b32 v{xf+4*T+2}, 16, v{vx+2*T+1}")
        a(f"v_and_b32 v{xf+4*T+3}, 0xffff0000, v{vx+2*T+1}")
    for q in range(4):
        a(f"s_sub_u32 s{s_t0}, {q + 3}, s{s_w}")
        a(f"s_and_b32 s{s_t0}, s{s_t0}, 3")
        a(f"s_cmp_eq_u32 s{s_t0}, 3")
        a(f"s_cbranch_scc1 G_own{q}")
        a(f"s_mul_i32 s{s_t0}, s{s_t0}, 5120")
        a(f"s_add_u32 s{s_t0}, s{s_t0}, s{g.s_lds}")
        a(f"v_add_u32 v1, s{s_t0}, v{g.v_l16}")
        for T in range(5): a(f"ds_write_b128 v1, {vr(g.v_acc+16*T+4*q,4)} offset:{T*1024}")
        a(f"s_branch G_nxt{q}")
        a.label(f"G_own{q}")
        for T in range(5):
            for h in range(2): a(f"v_pk_add_f32 {vr(xf+4*T+2*h,2)}, {vr(xf+4*T+2*h,2)}, {vr(g.v_acc+16*T+4*q+2*h,2)}")
        a.label(f"G_nxt{q}")
    for k in range(3):
        a(f"s_add_u32 s{s_t0}, s{s_w}, {3 - k}")
        a(f"s_and_b32 s{s_t0}, s{s_t0}, 3")
        a(f"s_mul_i32 s{s_t0}, s{s_t0}, {PART}")
        a(f"s_add_u32 s{s_t0}, s{s_t0}, {STG + k*5120}")
        a(f"v_add_u32 v{4+k}, s{s_t0}, v{g.v_l16}")
    a("s_waitcnt lgkmcnt(0)")
    if TAILST: stamp(a, 10)
    a("s_barrier")
    if TAILST: stamp(a, 11); a("s_waitcnt lgkmcnt(0)")
    for T in range(5):
        for k in range(3):
            a(f"ds_read_b128 {vr(g.v_acc+16*T+4*k,4)}, v{4+k} offset:{T*1024}"); g.lg.issue(T)
    for T in range(5): fin_tile(a, g, T, xf, vo)
    if STAMP:
        if TAILST: stamp(a, 9)
        a("s_waitcnt vmcnt(0)"); stamp(a, 7); stamp(a, 15, True)
        a(f"s_add_u32 s{s_w}, s{s_w}, 8")
        stamp_flush(a, 1, SWS, s_w, 12, 16, gsel=[(9, False), (10, False), (12, False), (13, False), (14, False), (15, False)], goff=8)
    if os.environ.get("PADT"):
        a.label("G_pad")
        a("s_memrealtime s[68:69]")
        a("s_waitcnt lgkmcnt(0)")
        a("s_sub_u32 s68, s68, s66")
        a(f"s_cmp_lt_u32 s68, {os.environ['PADT']}")
        a("s_cbranch_scc1 G_pad")
    a("s_endpgm")
    return vx + 10

def fin_tile(a, g, T, xf, vo):
    b = g.v_acc + 16 * T
    g.lg.wait(T)
    for h in range(2):
        a(f"v_pk_add_f32 {vr(b+2*h,2)}, {vr(b+2*h,2)}, {vr(b+4+2*h,2)}")
        a(f"v_pk_add_f32 {vr(b+8+2*h,2)}, {vr(b+8+2*h,2)}, {vr(xf+4*T+2*h,2)}")
    for h in range(2):
        a(f"v_pk_add_f32 {vr(b+2*h,2)}, {vr(b+2*h,2)}, {vr(b+8+2*h,2)}")
    a(f"v_cvt_pk_bf16_f32 v{b}, v{b}, v{b+1}")
    a(f"v_cvt_pk_bf16_f32 v{b+1}, v{b+2}, v{b+3}")
    a(f"buffer_store_dwordx2 {vr(b,2)}, v{vo}, s[{SOUT}:{SOUT+3}], s{s_base} offen offset:{64*T}{os.environ.get('OUTP', '')}")

def gen_f(a, name="parallel_sum__grouped_kv_mqa__dense_activation_relu__prompt_kernel"):
    kernel_header(a, name)
    a("s_cmp_ge_u32 s2, 256")
    a("s_cbranch_scc1 F_end")
    stamp(a, 0, True); stamp(a, 1)
    if os.environ.get("PADT"): a("s_memrealtime s[66:67]")
    def clear_cnt(a):
        a("v_lshlrev_b32 v1, 2, v0")
        a(f"v_add_u32 v1, {SC_CNT}, v1")
        a("v_mov_b32 v2, 0")
        a("ds_write_b32 v1, v2")
        a("ds_write_b32 v1, v2 offset:256")
        a("v_cmp_lt_u32 vcc, 6, v0")
        a("v_cndmask_b32 v2, 0, 4, vcc")
        a("ds_write_b32 v1, v2 offset:512")
        a("s_waitcnt lgkmcnt(0)")
    def start_hook(a):
        clear_cnt(a)
        attn_addr(a)
        if TLBW:
            a(f"s_cmp_lg_u32 s{s_w}, 5")
            a("s_cbranch_scc1 F_notlb")
            for _ in range(TLBW - 1): a("s_barrier")
            a(f"v_lshlrev_b32 v1, {TLBS}, v0")
            a(f"v_add_u32 v1, 0x100, v1")
            for ptr, n in ((56, 1728 * 1280), (58, 640 * 1280), (60, 2048 * 1280)):
                srd(a, 16, ptr, n)
                a(f"buffer_load_dword v2, v1, s[16:19], 0 offen")
            for k in range((WS_SIZE >> TLBS) // 64 + 1):
                a(f"s_mov_b32 s35, {k * 64 << TLBS}")
                a(f"buffer_load_dword v2, v1, {WS}, s35 offen sc1")
            for _ in range(10 - (TLBW - 1)): a("s_barrier")
            a("s_waitcnt vmcnt(0)")
            a("s_branch F_attn")
            a.label("F_notlb")
    def pre_ba(a): attn_addr(a)
    def done_help(a): a("s_branch F_fetch")
    def done_stats(a): a("s_branch F_dry" if DRY else "s_branch F_attn")
    def done_comp(a): a("s_branch F_pub")
    def spare(a):
        ka2.produce_stats(a)
        clear_cnt(a)
        attn_addr(a)
        a(f"s_cmp_lg_u32 s{s_w}, 0")
        a("s_cbranch_scc1 F_sp1")
        ka2.dbg_check(a, "F_dbg")
        a.label("F_sp1")
        a("s_barrier")
        a(f"s_cmp_ge_u32 s{s_w}, 8")
        a("s_cbranch_scc1 F_gemm0")
        a(f"s_cmp_lt_u32 s{s_w}, 5")
        a("s_cbranch_scc1 F_fetch")
        fetch_kv(a, "s", False)
    phase_a(a, done_help, done_stats, done_comp, spare, start_hook, pre_ba, lambda a: fetch_kv(a, 'i', True))
    a.label("F_fetch")
    fetch(a)
    a.label("F_attn")
    attention(a)
    if DRY:
        a.label("F_dry")
        a(f"s_cmp_eq_u32 s{s_w}, 4")
        a("s_cbranch_scc1 F_attn")
        a("s_mov_b64 exec, 0")
        a(f"s_mov_b32 s{s_c}, 7")
        a(f"s_cmp_eq_u32 s{s_w}, 5")
        a("s_cbranch_scc1 B_loop")
        a(f"s_cmp_eq_u32 s{s_w}, 6")
        a("s_cbranch_scc1 B_u3")
        a("s_branch B_synced")
        a.label("F_dryret")
        a("s_mov_b64 exec, -1")
        a("s_nop 7")
        a("s_nop 7")
        a("s_branch F_attn")
    a.label("F_pub")
    stamp(a, 3)
    if WFL:
        a(f"s_and_b32 s{s_t0}, s3, 15")
        a(f"s_cmp_eq_u32 s{s_t0}, 14")
        a("s_cbranch_scc1 F_pubkv")
        a(f"s_lshl_b32 s{s_t0}, s3, 5")
        a(f"s_add_u32 s{s_t0}, s{s_t0}, s{s_w}")
        a(f"s_lshl_b32 s{s_t0}, s{s_t0}, 2")
        a(f"s_add_u32 s{s_t0}, s{s_t0}, {WS_FL - 32}")
        a("v_mov_b32 v1, 1")
        a("s_mov_b64 exec, 1")
        a("s_waitcnt vmcnt(0)")
        a(f"buffer_store_dword v1, off, {WS}, s{s_t0} sc1")
        lds_arrive(a, SC_CNT, 2)
        a("s_branch F_pub2")
        a.label("F_pubkv")
    publish(a, "F_pub2", 0, 4, 3, WS_FL, 1)
    stamp(a, 4)
    lds_wait(a, "F_all", SC_CNT, 4, 2, s_spin, s_t0)
    a.label("F_gemm0")
    a("s_mov_b32 s53, -1")
    a.label("F_gemm")
    nv = gemm(a)
    a.label("F_end")
    a("s_endpgm")
    assert nv <= 168, nv
    return dict(name=name, grid=256, block=768, lds=LDS_A, vgpr=168, sgpr=102 if STAMP else 72, single=True)
```

```python
from common import *

SLOT = 40960
LA = int(os.environ.get('LA', '2'))
SCR = 159744
SC_NM, SC_RS, SC_CS = SCR, SCR + 512, SCR + 1024
LDS_A = SCR + 4096
SC_CNT = SCR + 3072
ST = ' sc1'
ROT = int(os.environ.get('ROT', '0'))
NSB = 0
GATH = int(os.environ.get('GATH', '8'))
PD = int(os.environ.get('PD', '3'))
GMAP = [int(c, 16) for c in os.environ.get('GMAP', '9abf0123cde45678')]
TEAM = int(os.environ.get('TEAM', '0'))
QS = int(os.environ.get('QS', '0'))
QMK = int(os.environ.get('QMK', '1'))
AMAP = int(os.environ.get('AMAP', '2'))
GD = int(os.environ.get('GD', '5'))
SDOT = int(os.environ.get('SDOT', '3'))
HOLDH = int(os.environ.get('HOLDH', '1'))
LATEBIT = os.environ.get('LATEBIT', '1')
AX = os.environ.get('AX', '')
PF = int(os.environ.get('PF', '0'))

SX, SW, SO, SW2 = 4, 8, 12, 16
s_w, s_rb, s_g = 32, 33, 34
s_it, s_slot, s_xoff, s_woff, s_wstep = 35, 36, 37, 38, 39
s_m0x, s_m0w, s_delta, s_relu, s_scale, s_t0, s_t1, s_out, s_dslot, s_cslot, s_ch, s_xbase, s_stride, s_col = range(40, 54)
s_tab = 54

ROLES = {
    "h": (3, 384, 3), "q": (2, 256, 2), "kv": (1, 64, 1)}

def w_read_addr(a, role, dst, s_half, tmp=1):
    NTW, RB, _ = ROLES[role]
    t = tmp
    a(f"v_lshrrev_b32 v{t}, 5, v0")
    a(f"v_bfe_u32 v{t+1}, v0, 2, 2")
    a(f"v_lshl_add_u32 v{t}, v{t}, 3, v{t+1}")
    a(f"v_mul_u32_u24 v{t}, {RB}, v{t}")
    a(f"v_bfe_u32 v{t+2}, v0, 4, 1")
    a(f"v_lshl_add_u32 v{t}, v{t+2}, 5, v{t}")
    a(f"v_and_b32 v{t+2}, 3, v0")
    a(f"v_lshl_add_u32 v{t}, v{t+2}, 3, v{t}")
    a(f"v_add_u32 v{t}, {16384 + LA*SLOT}, v{t}")
    if role == "kv":
        a(f"s_lshl_b32 s{s_t0}, s{s_half}, 12")
        a(f"v_add_u32 v{dst}, s{s_t0}, v{t}")
        return
    if role == "h": a(f"v_lshrrev_b32 v{t+1}, 1, v{t+1}")
    a(f"s_mul_i32 s{s_t0}, s{s_half}, {NTW}")
    for T in range(NTW):
        a(f"s_add_u32 s{s_t1}, s{s_t0}, {T}")
        a(f"v_xor_b32 v{t+2}, s{s_t1}, v{t+1}")
        a(f"v_lshl_add_u32 v{dst+T}, v{t+2}, 6, v{t}")

def slot_advance(regs):
    L = [f"s_cmp_eq_u32 s{s_slot}, {LA*SLOT}",
         f"s_cselect_b32 s{s_delta}, {(-LA*SLOT) & 0xffffffff}, s{s_cslot}",
         f"s_add_u32 s{s_slot}, s{s_slot}, s{s_delta}"]
    return L + [f"v_add_u32 v{r}, s{s_delta}, v{r}" for r in regs]

def ready(a):
    a("s_waitcnt lgkmcnt(0)")
    srd(a, SX, 20, 2048 * 1280)
    srd(a, SO, 30, WS_SIZE)

def loader(a, role, done, pre_ba, wsrd):
    NTW, RB, NW = ROLES[role]
    NW *= 2
    ND = 4 + NW
    v_xd, v_wd = 4, 8
    a(f"v_lshrrev_b32 v1, 3, v0")
    a(f"s_lshl_b32 s{s_t0}, s{s_w}, 5")
    a(f"v_add_u32 v1, s{s_t0}, v1")
    a(f"v_mul_u32_u24 v1, 1280, v1")
    a(f"v_and_b32 v2, 7, v0")
    a(f"v_lshrrev_b32 v3, 4, v0")
    a(f"v_xor_b32 v2, v2, v3")
    a(f"v_lshl_add_u32 v{v_xd}, v2, 4, v1")
    a(f"v_xor_b32 v2, 4, v2")
    a(f"v_lshl_add_u32 v{v_xd+1}, v2, 4, v1")
    a(f"v_add_u32 v{v_xd+1}, {10240-1024}, v{v_xd+1}")
    a(f"v_add_u32 v{v_xd+2}, {2*(10240-1024)}, v{v_xd}")
    a(f"v_add_u32 v{v_xd+3}, {2*(10240-1024)}, v{v_xd+1}")
    a(f"s_lshl_b32 s{s_m0x}, s{s_w}, 12")
    def dma_x():
        a(f"s_and_b32 s{s_ch}, s{s_tab}, 15")
        a(f"s_lshr_b64 s[{s_tab}:{s_tab+1}], s[{s_tab}:{s_tab+1}], 4")
        a(f"s_lshl_b32 s{s_xoff}, s{s_ch}, 7")
        a(f"s_add_u32 s{s_xoff}, s{s_xoff}, s{s_xbase}")
        a(f"s_add_u32 m0, s{s_dslot}, s{s_m0x}")
        a(f"s_mul_i32 s{s_woff}, s{s_ch}, s{s_wstep}")
        for e in range(4):
            a(f"buffer_load_dwordx4 v{v_xd+e}, s[{SX}:{SX+3}], s{s_xoff} offen offset:{e*1024} lds")
    def dma_w():
        a(f"s_add_u32 m0, s{s_dslot}, s{s_m0w}")
        if role == "kv":
            a(f"buffer_load_dwordx4 v{v_wd}, s[{SW}:{SW+3}], s{s_woff} offen lds")
            a(f"s_add_u32 m0, m0, 4096")
            a(f"buffer_load_dwordx4 v{v_wd}, s[{SW2}:{SW2+3}], s{s_woff} offen lds")
        else:
            for m in range(NW):
                if m == 4: a(f"s_add_u32 m0, m0, 4096")
                a(f"buffer_load_dwordx4 v{v_wd+m}, s[{SW}:{SW+3}], s{s_woff} offen offset:{(m%4)*1024} lds")
    a(f"s_mov_b32 s{s_dslot}, 0")
    if role == "kv":
        a(f"s_lshl_b32 s{s_m0w}, s{s_w}, 10")
        a(f"s_add_u32 s{s_m0w}, s{s_m0w}, 16384")
        a(f"v_lshrrev_b32 v1, 2, v0")
        a(f"s_lshl_b32 s{s_t0}, s{s_w}, 4")
        a(f"v_add_u32 v1, s{s_t0}, v1")
        a(f"v_mul_u32_u24 v1, 40, v1")
        a(f"v_and_b32 v2, 3, v0")
        a(f"v_lshl_add_u32 v{v_wd}, v2, 4, v1")
    else:
        PR = RB // 16
        a(f"s_mul_i32 s{s_m0w}, s{s_w}, {NW*1024}")
        a(f"s_add_u32 s{s_m0w}, s{s_m0w}, 16384")
        a(f"s_lshl_b32 s{s_t0}, s{s_w}, 4")
        a(f"s_mul_i32 s{s_t0}, s{s_t0}, s{s_stride}")
        a(f"s_add_u32 s{s_t0}, s{s_t0}, s{s_col}")
        for m in range(NW // 2):
            a(f"v_add_u32 v1, {64*m}, v0")
            if PR == 16:
                a(f"v_lshrrev_b32 v2, 4, v1")
                a(f"v_and_b32 v3, 15, v1")
                a(f"v_and_b32 v1, 3, v2")
            else:
                a(f"v_mul_u32_u24 v2, 0xaaab, v1")
                a(f"v_lshrrev_b32 v2, 20, v2")
                a(f"v_mul_u32_u24 v3, 24, v2")
                a(f"v_sub_u32 v3, v1, v3")
                a(f"v_bfe_u32 v1, v2, 1, 1")
            a(f"v_lshlrev_b32 v1, 2, v1")
            a(f"v_xor_b32 v3, v3, v1")
            a(f"v_mul_lo_u32 v2, v2, s{s_stride}")
            a(f"v_lshl_add_u32 v2, v3, 4, v2")
            a(f"v_add_u32 v{v_wd+m}, s{s_t0}, v2")
        stride = 3456 if role == "h" else 1280
        for m in range(NW // 2, NW):
            a(f"v_add_u32 v{v_wd+m}, {8*stride - (m%4)*1024}, v{v_wd+m-NW//2}")
        for m in range(1, NW // 2): a(f"v_subrev_u32 v{v_wd+m}, {m*1024}, v{v_wd+m}")
    a("s_waitcnt lgkmcnt(0)")
    srd(a, SX, 20, 2048 * 1280)
    wsrd()
    dma_x(); dma_w()
    srd(a, SO, 30, WS_SIZE)
    for c in range(1, LA):
        a(f"s_mov_b32 s{s_dslot}, {c*SLOT}")
        dma_x(); dma_w()
    stamp(a, 2)
    a(f"s_mov_b32 s{s_it}, 0")
    a(f"s_mov_b32 s{s_dslot}, {LA*SLOT}")
    a.label(f"AL_loop_{role}")
    a(f"s_waitcnt vmcnt({(LA-1)*ND})")
    a("s_barrier")
    if "nodma" not in AX: dma_x(); dma_w()
    a(f"s_add_u32 s{s_dslot}, s{s_dslot}, s{s_cslot}")
    a(f"s_cmp_eq_u32 s{s_dslot}, {(LA+1)*SLOT}")
    a(f"s_cselect_b32 s{s_dslot}, 0, s{s_dslot}")
    a(f"s_add_u32 s{s_it}, s{s_it}, 1")
    a(f"s_cmp_lt_u32 s{s_it}, {10-LA}")
    a(f"s_cbranch_scc1 AL_loop_{role}")
    for k in range(LA):
        if k == LA - 1 and pre_ba: pre_ba(a)
        a(f"s_waitcnt vmcnt({(LA-1-k)*ND})")
        a("s_barrier")
    stamp(a, 3)
    done(a)

SDBG = 16
def dbg_check(a, name, between=None):
    srd(a, SDBG, 62, 256)
    a("v_lshlrev_b32 v1, 2, v0")
    a("s_mov_b32 exec_lo, 0xffff")
    a("s_mov_b32 exec_hi, 0")
    poll(a, name, f"buffer_load_dword v2, v1, s[{SDBG}:{SDBG+3}], 0 offen sc1", "v_cmp_ne_u32 vcc, 1, v2", 8, between=between)
    a("s_mov_b64 exec, -1")

def idle(a, done, last):
    nb0 = 0
    if QS:
        nb0 = QMK
        for it in range(QMK):
            a("s_barrier")
            if it == 0: stamp(a, 4)
        a(f"s_sub_u32 s{s_t0}, s{s_g}, 9")
        a(f"s_cmp_ge_u32 s{s_t0}, 5")
        a("s_cbranch_scc1 AI_nomark")
        a(f"s_lshl_b32 s{s_t1}, s{s_rb}, 2")
        a(f"s_add_u32 s{s_t1}, s{s_t1}, s{s_w}")
        a(f"s_sub_u32 s{s_t1}, s{s_t1}, 4")
        a(f"s_mul_i32 s{s_t1}, s{s_t1}, {QH_TT}")
        a(f"s_lshl_b32 s{s_t0}, s{s_t0}, 13")
        a(f"s_add_u32 s{s_t0}, s{s_t0}, s{s_t1}")
        a(f"s_add_u32 s{s_t1}, s{s_t0}, 4096")
        for r in range(12, 16): a(f"v_mov_b32 v{r}, -1")
        a(f"v_lshlrev_b32 v1, 4, v0")
        for k in range(8): a(f"buffer_store_dwordx4 v[12:15], v1, s[{SO}:{SO+3}], s{s_t0 if k < 4 else s_t1} offen offset:{(k%4)*1024} sc1")
        a.label("AI_nomark")
    a(f"s_cmp_eq_u32 s{s_w}, 4")
    a("s_cbranch_scc1 AI_w4")
    for it in range(nb0, 9):
        if it == 8: a("s_waitcnt vmcnt(0)")
        a("s_barrier")
        if it in (0, 4): stamp(a, {0: 4, 4: 6}[it])
    last(a)
    a.label("AI_w4")
    a("s_setprio 3")
    bar = lambda: a("s_barrier")
    for it in range(nb0, GD): bar()
    dbg_check(a, "AI_dbg", bar)
    for it in range(GD + 1, GATH): bar()
    a(f"s_lshl_b32 s{s_t0}, s{s_rb}, 10")
    a(f"s_add_u32 s{s_t0}, s{s_t0}, {WS_STAT}")
    a(f"v_lshlrev_b32 v1, 3, v0")
    O = f"s[{SO}:{SO+3}]"
    poll(a, "AI_stat", f"buffer_load_dwordx2 v[4:5], v1, {O}, s{s_t0} offen sc1\nbuffer_load_dwordx2 v[6:7], v1, {O}, s{s_t0} offen offset:512 sc1",
         "v_min_u32 v2, v5, v7\nv_cmp_eq_u32 vcc, 0, v2", 2, between=bar)
    a(f"v_lshlrev_b32 v1, 2, v0")
    a(f"v_add_u32 v1, {SC_NM}, v1")
    a(f"v_mul_f32 v5, s{s_scale}, v5")
    a(f"v_mul_f32 v7, s{s_scale}, v7")
    a(f"ds_write_b32 v1, v4")
    a(f"ds_write_b32 v1, v6 offset:256")
    a(f"ds_write_b32 v1, v5 offset:512")
    a(f"ds_write_b32 v1, v7 offset:768")
    a("s_waitcnt lgkmcnt(0)")
    stamp(a, 3); stamp(a, 4); stamp(a, 6)
    for it in range(GATH + 1, 10): bar()
    a("s_setprio 0")
    done(a)

def clear_words(a):
    O = f"s[{SO}:{SO+3}]"
    for r in range(4, 8): a(f"v_mov_b32 v{r}, 0")
    a(f"v_lshlrev_b32 v1, 4, v0")
    a(f"s_lshl_b32 s{s_t0}, s{s_rb}, 10")
    a(f"s_add_u32 s{s_t0}, s{s_t0}, {WS_STAT}")
    a(f"buffer_store_dwordx4 v[4:7], v1, {O}, s{s_t0} offen sc1")
    a(f"v_lshlrev_b32 v1, 7, v0")
    a(f"s_lshl_b32 s{s_t0}, s{s_rb}, 12")
    a(f"s_add_u32 s{s_t0}, s{s_t0}, {WS_FL}")
    a("s_mov_b32 exec_hi, 0")
    a(f"buffer_store_dwordx4 v[4:7], v1, {O}, s{s_t0} offen sc1")
    a("s_barrier")
    srd(a, SDBG, 62, 256)
    a(f"v_mov_b32 v3, 1")
    a(f"s_lshl_b32 s{s_t0}, s{s_rb}, 2")
    stamp(a, 5)
    a("s_waitcnt vmcnt(0)")
    stamp(a, 6)
    a("s_mov_b64 exec, 1")
    a(f"buffer_store_dword v3, v4, s[{SDBG}:{SDBG+3}], s{s_t0} offen sc1")
    a("s_mov_b64 exec, -1")
    if STAMP: a("s_waitcnt vmcnt(0)")
    stamp(a, 3)

def produce_stats(a):
    O = f"s[{SO}:{SO+3}]"
    a(f"s_cmp_ge_u32 s{s_w}, 8")
    a("s_cbranch_scc1 AP_clear")
    a(f"v_lshrrev_b32 v1, 3, v0")
    a(f"s_lshl_b32 s{s_t0}, s{s_w}, 4")
    a(f"v_add_u32 v1, s{s_t0}, v1")
    a(f"v_mul_u32_u24 v1, 1280, v1")
    a(f"v_and_b32 v2, 7, v0")
    a(f"v_lshl_add_u32 v1, v2, 4, v1")
    a(f"s_add_u32 s{s_t0}, s{s_xbase}, 10240")
    XR, AS = 16, 8
    def ld(c):
        a(f"s_and_b32 s{s_ch}, s{s_tab}, 15")
        a(f"s_lshr_b64 s[{s_tab}:{s_tab+1}], s[{s_tab}:{s_tab+1}], 4")
        a(f"s_lshl_b32 s{s_ch}, s{s_ch}, 7")
        a(f"s_add_u32 s{s_xoff}, s{s_ch}, s{s_xbase}")
        a(f"s_add_u32 s{s_woff}, s{s_ch}, s{s_t0}")
        for e in range(2):
            a(f"buffer_load_dwordx4 {vr(XR+8*c+4*e,4)}, v1, s[{SX}:{SX+3}], s{s_woff if e else s_xoff} offen")
    for c in range(PD): ld(c)
    a(f"s_mov_b32 s{s_relu}, 0x3f803f80")
    for r in range(AS, AS + 8): a(f"v_mov_b32 v{r}, 0")
    for c in range(10):
        a(f"s_waitcnt vmcnt({2*(min(c+PD, 10)-c-1)})")
        if c + PD < 10: ld(c + PD)
        for e in range(2):
            for i in range(4):
                x = XR + 8 * c + 4 * e + i
                a(f"v_dot2c_f32_bf16 v{AS+2*e+(i&1)}, s{s_relu}, v{x}")
                a(f"v_dot2c_f32_bf16 v{AS+4+2*e+(i&1)}, v{x}, v{x}")
    vals = [AS, AS + 2, AS + 4, AS + 6]
    for r in vals: a(f"v_add_f32 v{r}, v{r}, v{r+1}")
    for ctl in ("quad_perm:[1,0,3,2]", "quad_perm:[2,3,0,1]", "row_half_mirror"):
        for r in vals: a(f"v_add_f32_dpp v{r}, v{r}, v{r} {ctl} row_mask:0xf bank_mask:0xf")
    a(f"v_and_b32 v2, 1, v0")
    a(f"v_cmp_eq_u32 vcc, 1, v2")
    a(f"v_cndmask_b32 v4, v{AS}, v{AS+2}, vcc")
    a(f"v_cndmask_b32 v5, v{AS+4}, v{AS+6}, vcc")
    inv = f32bits(1.0 / 640.0)
    a(f"v_mul_f32 v4, {hex(inv)}, v4")
    a(f"v_mul_f32 v5, {hex(inv)}, v5")
    a(f"v_fma_f32 v5, -v4, v4, v5")
    a(f"v_max_f32 v5, 0, v5")
    a(f"v_cvt_pk_bf16_f32 v5, v5, v5")
    a(f"v_lshlrev_b32 v5, 16, v5")
    a(f"v_add_f32 v5, {hex(f32bits(1e-5))}, v5")
    a(f"v_cvt_pk_bf16_f32 v5, v5, v5")
    a(f"v_lshlrev_b32 v5, 16, v5")
    a(f"v_sqrt_f32 v5, v5")
    a(f"v_cvt_pk_bf16_f32 v5, v5, v5")
    a(f"v_lshlrev_b32 v5, 16, v5")
    a(f"v_rcp_f32 v5, v5")
    a(f"v_cvt_pk_bf16_f32 v4, -v4, -v4")
    a(f"v_lshrrev_b32 v1, 3, v0")
    a(f"v_lshl_add_u32 v1, v2, 3, v1")
    a(f"v_lshlrev_b32 v1, 3, v1")
    a(f"v_or_b32 v5, 1, v5")
    a(f"s_lshl_b32 s{s_t0}, s{s_rb}, 10")
    a(f"s_lshl_b32 s{s_t1}, s{s_w}, 7")
    a(f"s_add_u32 s{s_t0}, s{s_t0}, s{s_t1}")
    a(f"s_add_u32 s{s_t0}, s{s_t0}, {WS_STAT}")
    a("s_barrier")
    a("s_mov_b32 exec_lo, 0x03030303")
    a("s_mov_b32 exec_hi, 0x03030303")
    a(f"buffer_store_dwordx2 v[4:5], v1, {O}, s{s_t0} offen sc1")
    a("s_mov_b64 exec, -1")
    stamp(a, 3)
    a("s_branch AP_done")
    a.label("AP_clear")
    a.label("AP_bar")
    a("s_barrier")
    a.label("AP_done")

def prefetch(a, role):
    NTW, RB, _ = ROLES[role]
    c = s_t1
    a(f"s_sub_u32 s{c}, s{s_w}, 8")
    a(f"s_lshr_b32 s{s_t0}, s2, 6")
    a(f"s_lshl_b32 s{s_t0}, s{s_t0}, 2")
    a(f"s_add_u32 s{s_t0}, s{s_t0}, s{c}")
    a(f"s_mul_i32 s{s_t0}, s{s_t0}, {8*1280}")
    a(f"s_add_u32 s{s_t0}, s{s_t0}, s{s_xbase}")
    a(f"v_and_b32 v1, 7, v0")
    a(f"v_mul_u32_u24 v1, 1280, v1")
    a(f"v_lshrrev_b32 v2, 3, v0")
    a(f"v_lshl_add_u32 v3, v2, 7, v1")
    a(f"buffer_load_dword v5, v3, s[{SX}:{SX+3}], s{s_t0} offen offset:128")
    if role != "kv":
        NL = RB // 128
        a(f"v_mul_u32_u24 v2, {65536 // (2*NL) + 1}, v0")
        a(f"v_lshrrev_b32 v2, 16, v2")
        a(f"v_mul_u32_u24 v3, {2*NL}, v2")
        a(f"v_sub_u32 v3, v0, v3")
        a(f"v_and_b32 v4, 1, v3")
        a(f"v_lshrrev_b32 v3, 1, v3")
        a(f"v_lshl_add_u32 v2, v2, 6, v4")
        a(f"v_mul_lo_u32 v2, v2, s{s_stride}")
        a(f"v_lshl_add_u32 v2, v3, 7, v2")
        a(f"s_bfe_u32 s{s_t0}, s2, 0x30003")
        a(f"s_lshl_b32 s{s_t0}, s{s_t0}, 2")
        a(f"s_add_u32 s{s_t0}, s{s_t0}, s{c}")
        a(f"s_lshl_b32 s{s_t0}, s{s_t0}, 1")
        a(f"s_mul_i32 s{s_t0}, s{s_t0}, s{s_stride}")
        a(f"s_add_u32 s{s_delta}, s{s_t0}, s{s_col}")
        a(f"buffer_load_dword v7, v2, s[{SW}:{SW+3}], s{s_delta} offen")
    a(f"s_lshr_b32 s{s_t0}, s2, 6")
    a(f"s_lshl_b32 s{s_t0}, s{s_t0}, 2")
    a(f"s_add_u32 s{s_t0}, s{s_t0}, s{c}")
    a(f"s_mul_i32 s{s_t0}, s{s_t0}, {8*1280}")
    a(f"s_add_u32 s{s_t0}, s{s_t0}, s{s_xbase}")
    a(f"buffer_load_dword v15, v1, s[{SX}:{SX+3}], s{s_t0} offen offset:1152")

def compute(a, role, done, vmode=False):
    NTW, RB, _ = ROLES[role]
    tag = role + ("v" if vmode else "")
    v_xa, v_wa = 8, 12
    XF = [16, 36]; WF = [24, 44]
    SEL, CSA, ACC = 56, 60, 72
    lg = Cnt(a, "lgkmcnt", 15)
    s_rp, s_half = s_m0x, s_m0w
    if NSB: a("s_barrier")
    if PF: prefetch(a, role)
    for _ in range(NSB - 1): a("s_barrier")
    a(f"v_and_b32 v1, 31, v0")
    a(f"v_lshrrev_b32 v2, 5, v0")
    a(f"v_bfe_u32 v3, v0, 1, 3")
    a(f"v_xor_b32 v3, v3, v2")
    a(f"v_lshlrev_b32 v3, 4, v3")
    a(f"v_lshlrev_b32 v1, 7, v1")
    a(f"s_lshl_b32 s{s_t0}, s{s_rp}, 13")
    a(f"s_add_u32 s{s_t0}, s{s_t0}, {LA*SLOT}")
    a(f"v_add_u32 v1, s{s_t0}, v1")
    for j in range(4):
        a(f"v_xor_b32 v4, {j<<5}, v3")
        a(f"v_add_u32 v{v_xa+j}, v1, v4")
    w_read_addr(a, role, v_wa, s_half)
    a(f"v_lshrrev_b32 v1, 2, v0")
    a(f"v_lshrrev_b32 v2, 4, v0")
    a(f"v_xor_b32 v1, v1, v2")
    a(f"v_and_b32 v1, 1, v1")
    a(f"v_subrev_u32 v1, 1, v1")
    for i in range(4): a(f"v_and_b32 v{SEL+i}, 0x3f803f80, v1")
    for r in range(XF[1], WF[1] + 4 * NTW): a(f"v_mov_b32 v{r}, 0")
    z = vr(XF[1], 4)
    for t in range(2 * NTW): a(f"v_mfma_f32_32x32x16_bf16 {vr(ACC+16*t,16)}, {z}, {z}, 0")
    for T in range(NTW): a(f"v_mfma_f32_16x16x32_bf16 {vr(CSA+4*T,4)}, {z}, {z}, 0")
    a(f"s_mov_b32 s{s_it}, 0")
    a(f"s_mov_b32 s{s_slot}, {LA*SLOT}")
    def mfma(R, T, u):
        acc = vr(ACC + 16 * (R * NTW + T), 16); x = vr(XF[u] + 4 * R, 4); w = vr(WF[u] + 4 * T, 4)
        if vmode: a(f"v_mfma_f32_32x32x16_bf16 {acc}, {x}, {w}, {acc}")
        else: a(f"v_mfma_f32_32x32x16_bf16 {acc}, {w}, {x}, {acc}")
    def step(jn, u, cs, post=None, lo=0, hi=99):
        n = u ^ 1
        reads = []
        if jn is not None and "nord" not in AX:
            def rw(T):
                for p in range(2):
                    reads.append((f"ds_read_b64_tr_b16 {vr(WF[n]+4*T+2*p,2)}, v{v_wa+T} offset:{jn*16*RB+p*4*RB}", ("W", n, T)))
            reads.append((f"ds_read_b128 {vr(XF[n],4)}, v{v_xa+jn}", ("X", n, 0)))
            rw(0)
            reads.append((f"ds_read_b128 {vr(XF[n]+4,4)}, v{v_xa+jn} offset:4096", ("X", n, 1)))
            for T in range(1, NTW): rw(T)
        post = list(post or [])
        order = [(R, T) for T in range(NTW) for R in range(2)][lo:hi]
        per = 3 if post else 2
        for k, (R, T) in enumerate(order):
            last = k == len(order) - 1
            lg.wait(("X", u, R), ("W", u, T))
            mfma(R, T, u)
            room = 5
            for _ in range(99 if last else per):
                if reads:
                    t, g = reads.pop(0); a(t); lg.issue(g); room -= 1
            if not reads:
                while post and (room > 0 or last):
                    a(post.pop(0)); room -= 1
            if cs and R == 1 and 'nocs' not in AX:
                a(f"v_mfma_f32_16x16x32_bf16 {vr(CSA+4*T,4)}, {vr(SEL,4)}, {vr(WF[u]+4*T,4)}, {vr(CSA+4*T,4)}")
    stamp(a, 2)
    if STAMP: a("s_waitcnt lgkmcnt(0)")
    NM = 2 * NTW
    adv = slot_advance([v_xa, v_wa] + [v_wa + T for T in range(1, NTW)] + [v_xa + j for j in range(1, 4)])
    for t in adv: a(t)
    full = role != "h" and not (role == "q" and os.environ.get("QSPLIT"))
    if not full:
        a(f"s_cmp_eq_u32 s{s_rp}, 1")
        a(f"s_cbranch_scc1 AC_ent_{tag}1")
    for rp in range(1 if full else 2):
        e0 = full or rp == 0; e1 = full or rp == 1
        if rp == 0: a(f"s_branch AC_ent_{tag}0")
        a.raw(".p2align 6")
        a.label(f"AC_loop_{tag}{rp}")
        st = a.mark()
        a("s_waitcnt lgkmcnt(0)")
        if e0 and 'nocs' not in AX:
            a(f"v_mfma_f32_16x16x32_bf16 {vr(CSA+4*(NTW-1),4)}, {vr(SEL,4)}, {vr(WF[0]+4*(NTW-1),4)}, {vr(CSA+4*(NTW-1),4)}")
        step(None, 0, False, None, NM - 1, NM)
        a.label(f"AC_ent_{tag}{rp}")
        a("s_barrier")
        step(0, 1, e1)
        step(1, 0, e0); step(2, 1, e1)
        tail = adv + [f"s_add_u32 s{s_it}, s{s_it}, 1", f"s_cmp_lt_u32 s{s_it}, 10"]
        step(3, 0, e0, tail, 0, NM - 1)
        lg.q = []
        a(f"s_cbranch_scc1 AC_loop_{tag}{rp}")
        a.check_backedge(st)
        a("s_waitcnt lgkmcnt(0)")
        if e0 and 'nocs' not in AX:
            a(f"v_mfma_f32_16x16x32_bf16 {vr(CSA+4*(NTW-1),4)}, {vr(SEL,4)}, {vr(WF[0]+4*(NTW-1),4)}, {vr(CSA+4*(NTW-1),4)}")
        step(None, 0, False, None, NM - 1, NM)
        if e1:
            for T in range(NTW):
                a(f"v_mfma_f32_16x16x32_bf16 {vr(CSA+4*T,4)}, {vr(SEL,4)}, {vr(WF[1]+4*T,4)}, {vr(CSA+4*T,4)}")
        if rp == 0 and not full: a(f"s_branch AC_fin_{tag}")
    a.label(f"AC_fin_{tag}")
    a(f"v_and_b32 v1, 31, v0")
    a(f"s_lshl_b32 s{s_t0}, s{s_rp}, 8")
    a(f"s_add_u32 s{s_t0}, s{s_t0}, {SC_NM}")
    a(f"v_lshl_add_u32 v2, v1, 2, s{s_t0}")
    pre = [f"v_mov_b32 v{r}, 0" for r in range(XF[0], WF[0] + 4 * NTW)]
    pre += ["s_mov_b32 exec_hi, 0", f"ds_read_b32 v{XF[0]}, v2", f"ds_read_b32 v{XF[0]+4}, v2 offset:128", "s_mov_b32 exec_hi, -1",
            "ds_read_b32 v4, v2 offset:512", "ds_read_b32 v6, v2 offset:640"]
    step(None, 1, False, pre)
    stamp(a, 5)
    CS = CSA
    if not full:
        a(f"s_mul_i32 s{s_t1}, s{s_half}, {NTW*256}")
        a(f"s_add_u32 s{s_t1}, s{s_t1}, {SC_CS}")
        a(f"v_lshl_add_u32 v3, v1, 3, s{s_t1}")
        a(f"s_lshl_b32 s{s_t1}, s{s_rp}, 2")
        a(f"v_add_u32 v7, s{s_t1}, v3")
        for T in range(NTW): a(f"ds_write_b32 v7, v{CSA+4*T} offset:{T*256}")
        lds_arrive(a, SC_CNT + 12, 8)
        lds_wait(a, f"AC_sync_{tag}", SC_CNT + 12, 4, 8, s_it, s_slot, 1)
        for T in range(NTW): a(f"ds_read_b64 {vr(CS+4*T,2)}, v3 offset:{T*256}")
        a(f"s_waitcnt lgkmcnt(0)")
        for T in range(NTW): a(f"v_add_f32 v{CS+4*T}, v{CS+4*T}, v{CS+4*T+1}")
    for T in range(NTW): a(f"v_cvt_pk_bf16_f32 v{CS+4*T+1}, v{CS+4*T}, v{CS+4*T}")
    for T in range(NTW): a(f"v_lshlrev_b32 v{CS+4*T+1}, 16, v{CS+4*T+1}")
    for T in range(NTW): a(f"v_sub_f32 v{CS+4*T+1}, v{CS+4*T}, v{CS+4*T+1}")
    for T in range(NTW): a(f"v_cvt_pk_bf16_f32 v{WF[0]+4*T}, v{CS+4*T}, v{CS+4*T+1}")
    a("s_waitcnt lgkmcnt(0)")
    for R in range(2):
        for T in range(NTW): mfma(R, T, 0)
    stamp(a, 6)
    O = f"s[{SO}:{SO+3}]"
    a(f"v_lshlrev_b32 v1, 4, v0")
    def early_flag():
        a(f"s_lshl_b32 s{s_t0}, s3, 7")
        a(f"s_add_u32 s{s_t0}, s{s_t0}, {WS_FL}")
        a("v_mov_b32 v2, 1")
        a("s_mov_b64 exec, 1")
        a(f"buffer_store_dword v2, off, {O}, s{s_t0} sc1")
        a("s_mov_b64 exec, -1")
    if role == "q" and QS == 1: early_flag()
    if role != "kv":
        for R in range(2):
            for T in range(NTW):
                b = ACC + 16 * (R * NTW + T)
                if R == 0 and T < 2:
                    for i in range(16): a(f"v_mul_f32 v{b+i}, v{4+2*R}, v{b+i}")
                else:
                    for i in range(8): a(f"v_pk_mul_f32 {vr(b+2*i,2)}, {vr(b+2*i,2)}, {vr(4+2*R,2)} op_sel_hi:[1,0]")
                if role == "h":
                    d = ACC + 8 * (R * NTW + T)
                    for i in range(8): a(f"v_cvt_pk_bf16_f32 v{d+i}, v{b+2*i}, v{b+2*i+1}")
                    for i in range(8): a(f"v_pk_max_i16 v{d+i}, v{d+i}, 0")
                    continue
                for i in range(8): a(f"v_cvt_pk_bf16_f32 v{b+i}, v{b+2*i}, v{b+2*i+1}")
                o = 2 * T * 1024
                a(f"buffer_store_dwordx4 {vr(b,4)}, v1, {O}, s{s_out} offen offset:{o}{ST}")
                a(f"buffer_store_dwordx4 {vr(b+4,4)}, v1, {O}, s{s_out} offen offset:{o+1024}{ST}")
            if R == 0 and role != "h": a(f"s_add_u32 s{s_out}, s{s_out}, {QH_TT}")
            if role == "q" and QS == 2 + R: early_flag()
        if role == "h":
            a(f"s_mov_b32 s53, s{s_out}")
            a("s_branch F_gemm")
            return
    elif not vmode:
        for R in range(2):
            b = ACC + 16 * R
            for i in range(12): a(f"v_mul_f32 v{b+i}, v{4+2*R}, v{b+i}")
            for i in range(4): a(f"v_cvt_pk_bf16_f32 v{b+i}, v{b+2*i}, v{b+2*i+1}")
            for i in range(2): a(f"v_cvt_pk_bf16_f32 v{16+2*R+i}, v{b+8+2*i}, v{b+9+2*i}")
            a(f"buffer_store_dwordx4 {vr(b,4)}, v1, {O}, s{s_out} offen offset:{1024*R}{ST}")
        a("s_mov_b32 exec_lo, 0")
        for i in range(4): a(f"v_mov_b32 v{16+i}, {'0x3f80' if i % 2 == 0 else 0}")
        a("s_mov_b32 exec_lo, -1")
        a(f"buffer_store_dwordx4 v[16:19], v1, {O}, s{s_out} offen offset:2048{ST}")
    else:
        a(f"v_lshrrev_b32 v6, 5, v0")
        a(f"v_lshl_add_u32 v3, v6, 4, s{s_t0}")
        for R in range(2):
            for q in range(4): a(f"ds_read_b128 {vr(16+16*R+4*q,4)}, v3 offset:{512+128*R+32*q}")
        a(f"v_and_b32 v2, 31, v0")
        a(f"v_mul_u32_u24 v6, 384, v6")
        a(f"v_lshl_add_u32 v6, v2, 4, v6")
        a(f"s_add_u32 s{s_out}, s{s_out}, 3072")
        a("s_waitcnt lgkmcnt(0)")
        for R in range(2):
            b = ACC + 16 * R
            for i in range(16): a(f"v_mul_f32 v{b+i}, v{16+16*R+i}, v{b+i}")
            for i in range(8): a(f"v_cvt_pk_bf16_f32 v{b+i}, v{b+2*i}, v{b+2*i+1}")
            a("s_mov_b32 exec_lo, 0x00100000")
            a("s_mov_b32 exec_hi, 0x00100000")
            for i in range(8): a(f"v_mov_b32 v{b+i}, 0x3f803f80")
            a("s_mov_b32 exec_lo, 0x00e00000")
            a("s_mov_b32 exec_hi, 0x00e00000")
            for i in range(8): a(f"v_mov_b32 v{b+i}, 0")
            a("s_mov_b32 exec_lo, 0x00ffffff")
            a("s_mov_b32 exec_hi, 0x00ffffff")
            a(f"buffer_store_dwordx4 {vr(b,4)}, v6, {O}, s{s_out} offen offset:{1536*R}{ST}")
            a(f"buffer_store_dwordx4 {vr(b+4,4)}, v6, {O}, s{s_out} offen offset:{1536*R+768}{ST}")
            a("s_mov_b64 exec, -1")
    done(a)

def phase_a(a, done_help, done_stats, done_comp, spare, start_hook, pre_ba, last):
    a("s_load_dwordx8 s[20:27], s[0:1], 0")
    a("s_load_dwordx2 s[28:29], s[0:1], 48")
    a("s_load_dwordx2 s[30:31], s[0:1], 80")
    a("s_load_dwordx2 s[56:57], s[0:1], 56")
    a("s_load_dwordx2 s[58:59], s[0:1], 32")
    a("s_load_dwordx4 s[60:63], s[0:1], 64")
    a("v_lshrrev_b32 v1, 6, v0")
    a("v_and_b32 v0, 63, v0")
    a(f"v_readfirstlane_b32 s{s_w}, v1")
    ORD = os.environ.get("ORD", "0123456789,5678901234").split(",")
    gv = sum(g << (4 * i) for i, g in enumerate(GMAP))
    if AMAP == 0:
        a(f"s_and_b32 s{s_t0}, s2, 1")
        a(f"s_lshl_b32 s{s_t0}, s{s_t0}, 3")
        a(f"s_bfe_u32 s{s_rb}, s2, 0x30003")
        a(f"s_lshr_b32 s{s_g}, s2, 6")
        a(f"s_add_u32 s{s_t1}, s{s_g}, s{s_rb}")
        a(f"s_and_b32 s{s_t1}, s{s_t1}, {len(ORD)-1}")
        a(f"s_add_u32 s{s_rb}, s{s_rb}, s{s_t0}")
        a(f"s_bfe_u32 s{s_t0}, s2, 0x20001")
        a(f"s_lshl_b32 s{s_t0}, s{s_t0}, 2")
        a(f"s_add_u32 s{s_g}, s{s_g}, s{s_t0}")
        a(f"s_lshl_b32 s{s_g}, s{s_g}, 2")
        a(f"s_mov_b32 s{s_tab}, {hex(gv & 0xffffffff)}")
        a(f"s_mov_b32 s{s_tab+1}, {hex(gv >> 32)}")
        a(f"s_lshr_b64 s[{s_tab}:{s_tab+1}], s[{s_tab}:{s_tab+1}], s{s_g}")
        a(f"s_and_b32 s{s_g}, s{s_tab}, 15")
    if AMAP == 2:
        a(f"s_and_b32 s{s_rb}, s2, 3")
        a(f"s_lshl_b32 s{s_rb}, s{s_rb}, 2")
        a(f"s_bfe_u32 s{s_t0}, s2, 0x20003")
        a(f"s_add_u32 s{s_rb}, s{s_rb}, s{s_t0}")
        a(f"s_lshr_b32 s{s_g}, s2, 5")
        a(f"s_add_u32 s{s_t1}, s{s_g}, s{s_t0}")
        a(f"s_and_b32 s{s_t1}, s{s_t1}, {len(ORD)-1}")
        a(f"s_bfe_u32 s{s_t0}, s2, 0x10002")
        a(f"s_lshl_b32 s{s_t0}, s{s_t0}, 3")
        a(f"s_add_u32 s{s_g}, s{s_g}, s{s_t0}")
        a(f"s_lshl_b32 s{s_g}, s{s_g}, 2")
        a(f"s_mov_b32 s{s_tab}, {hex(gv & 0xffffffff)}")
        a(f"s_mov_b32 s{s_tab+1}, {hex(gv >> 32)}")
        a(f"s_lshr_b64 s[{s_tab}:{s_tab+1}], s[{s_tab}:{s_tab+1}], s{s_g}")
        a(f"s_and_b32 s{s_g}, s{s_tab}, 15")
    if TEAM:
        a(f"s_and_b32 s{s_rb}, s2, 7")
        a(f"s_lshl_b32 s{s_rb}, s{s_rb}, 1")
        a(f"s_lshr_b32 s{s_t0}, s2, 7")
        a(f"s_add_u32 s{s_rb}, s{s_rb}, s{s_t0}")
        a(f"s_bfe_u32 s{s_g}, s2, 0x40003")
        a(f"s_{'add' if TEAM == 1 else 'xor'}_{'u' if TEAM == 1 else 'b'}32 s{s_t1}, s{s_t0}, {'s%d' % s_g if TEAM == 1 else '0'}")
        if TEAM == 3:
            a(f"s_lshl_b32 s{s_t1}, s2, 1")
            a(f"s_add_u32 s{s_t1}, s{s_t1}, s{s_t0}")
        a(f"s_and_b32 s{s_t1}, s{s_t1}, {len(ORD)-1}")
    a(f"s_lshl_b32 s3, s{s_rb}, 4")
    a(f"s_add_u32 s3, s3, s{s_g}")
    ORDQ = os.environ.get("ORDQ", "0516273849,5061728394")
    if ORDQ:
        lo_, hi_ = [int(x) for x in os.environ.get("QRNG", "9,14").split(",")]
        a(f"s_sub_u32 s{s_t0}, s{s_g}, {lo_}")
        a(f"s_cmp_le_u32 s{s_t0}, {hi_ - lo_}")
        a(f"s_cselect_b32 s{s_t0}, {len(ORD)}, 0")
        a(f"s_add_u32 s{s_t1}, s{s_t1}, s{s_t0}")
        ORD = ORD + ORDQ.split(",")
    for k, o in enumerate(ORD):
        assert sorted(o) == list("0123456789")
        v = sum(int(d) << (4 * i) for i, d in enumerate(o))
        if k == 0:
            a(f"s_mov_b32 s{s_tab}, {hex(v & 0xffffffff)}")
            a(f"s_movk_i32 s{s_tab+1}, {hex(v >> 32)}")
        else:
            a(f"s_cmp_eq_u32 s{s_t1}, {k}")
            a(f"s_cselect_b32 s{s_tab}, {hex(v & 0xffffffff)}, s{s_tab}")
            a(f"s_cselect_b32 s{s_tab+1}, {hex(v >> 32)}, s{s_tab+1}")
    a(f"s_mov_b32 s{s_cslot}, {SLOT}")
    a(f"s_mul_i32 s{s_xbase}, s{s_rb}, {128*1280}")
    a(f"s_cmp_ge_u32 s{s_w}, 4")
    a("s_cbranch_scc1 A_other")
    a(f"s_cmp_lt_u32 s{s_g}, 9")
    a("s_cbranch_scc1 A_lh")
    a(f"s_cmp_ge_u32 s{s_g}, 14")
    a("s_cbranch_scc1 A_lk")
    for role in ("q", "h"):
        NTW = ROLES[role][0]
        stride = 3456 if role == "h" else 1280
        if role == "h": a.label("A_lh")
        else: a(f"s_sub_u32 s{s_g}, s{s_g}, 9")
        a(f"s_movk_i32 s{s_stride}, {stride}")
        a(f"s_mov_b32 s{s_wstep}, {64*stride}")
        a(f"s_mul_i32 s{s_col}, s{s_g}, {NTW*128}")
        loader(a, role, done_help, pre_ba, lambda: srd(a, SW, 28 if role == "h" else 22, 640 * stride))
    a.label("A_lk")
    a(f"s_cmp_eq_u32 s{s_g}, 15")
    a("s_cbranch_scc1 A_spare")
    a(f"s_movk_i32 s{s_wstep}, 2560")
    loader(a, "kv", done_help, pre_ba, lambda: (srd(a, SW, 24, 640 * 40), srd(a, SW2, 26, 640 * 40)))
    a.label("A_other")
    a(f"s_cmp_eq_u32 s{s_g}, 15")
    a("s_cbranch_scc1 A_spare")
    ready(a)
    a(f"s_cmp_lt_u32 s{s_w}, 8")
    a("s_cbranch_scc1 A_stats")
    a("s_setprio 2")
    a(f"s_and_b32 s{s_m0x}, s{s_w}, 1")
    a(f"s_bfe_u32 s{s_m0w}, s{s_w}, 0x10001")
    a(f"s_lshl_b32 s{s_out}, s{s_rb}, 1")
    a(f"s_add_u32 s{s_out}, s{s_out}, s{s_m0x}")
    a(f"s_lshl_b32 s{s_out}, s{s_out}, 1")
    a(f"s_cmp_eq_u32 s{s_g}, 14")
    a("s_cbranch_scc1 A_ckv")
    a(f"s_cmp_lt_u32 s{s_g}, 9")
    a("s_cbranch_scc1 A_ch")
    for role in ("q", "h"):
        NTW = ROLES[role][0]
        if role == "h": a.label("A_ch")
        else: a(f"s_sub_u32 s{s_g}, s{s_g}, 9")
        a(f"s_mul_i32 s{s_out}, s{s_out}, {QH_TT}")
        a(f"s_lshl_b32 s{s_t0}, s{s_g}, 1")
        a(f"s_add_u32 s{s_t0}, s{s_t0}, s{s_m0w}")
        a(f"s_mul_i32 s{s_t0}, s{s_t0}, {NTW*2048}")
        a(f"s_add_u32 s{s_out}, s{s_out}, s{s_t0}")
        if role == "h": a(f"s_add_u32 s{s_out}, s{s_out}, {40*1024}")
        compute(a, role, done_comp)
    a.label("A_ckv")
    a(f"s_mul_i32 s{s_out}, s{s_out}, {KV_TILE}")
    a(f"s_add_u32 s{s_out}, s{s_out}, {WS_KV}")
    a(f"s_cmp_eq_u32 s{s_m0w}, 1")
    a(f"s_cbranch_scc1 A_cv")
    compute(a, "kv", done_comp, False)
    a.label("A_cv")
    compute(a, "kv", done_comp, True)
    a.label("A_stats")
    a(f"s_sub_u32 s{s_t0}, s{s_g}, 9")
    a(f"s_cmp_lt_u32 s{s_t0}, 5")
    a(f"s_cselect_b32 s{s_scale}, {hex(f32bits(QSCALE))}, 1.0")
    start_hook(a)
    idle(a, done_stats, last)
    a.label("A_spare")
    ready(a)
    a(f"s_cmp_lg_u32 s{s_w}, 8")
    a("s_cbranch_scc1 A_noclear")
    clear_words(a)
    a("s_branch A_cleared")
    a.label("A_noclear")
    ORDS = os.environ.get("ORDS", "4938051627")
    if ORDS:
        v = sum(int(d) << (4 * i) for i, d in enumerate(ORDS))
        a(f"s_mov_b32 s{s_tab}, {hex(v & 0xffffffff)}")
        a(f"s_movk_i32 s{s_tab+1}, {hex(v >> 32)}")
    a("s_barrier")
    a.label("A_cleared")
    spare(a)
```

```python
from common import *
from gw import *
import ka2
from ka2 import phase_a, SC_CNT, LDS_A
def two_ways(a, name, body): body(' sc1')

GPRIO = int(os.environ.get("GPRIO", "0"))
HOLD = 1
GROT = int(os.environ.get("GROT", "9"))
GX = os.environ.get("GX", "")
UARR = int(os.environ.get("UARR", "0"))
SC_L = None
DRY = int(os.environ.get("DRY", "0"))
PACE = [float(x) for x in os.environ.get("PACE", "1.7,7.0").split(",")]
PEND = int(os.environ.get("PEND", "99"))
ABAT = int(os.environ.get("ABAT", "0"))
PIPE = int(os.environ.get("PIPE", "1"))
KV4 = int(os.environ.get("KV4", "0"))
TRIG = [int(x) for x in os.environ.get("TRIG", "4,8").split(",")]
TAILST = os.environ.get("TAILST")
OSL = [int(x) for x in os.environ.get("OSL", "1,1").split(",")]
WOPF = int(os.environ.get("WOPF", "10"))
ALT1 = int(os.environ.get("ALT1", "0"))
MARK = int(os.environ.get("MARK", "1"))
NS0 = int(os.environ.get("NS0", "2"))
WEARLY = int(os.environ.get("WEARLY", "2"))
W2PF = int(os.environ.get("W2PF", "3"))
HP = int(os.environ.get("HP", "1"))
FASTO = int(os.environ.get("FASTO", "1"))
TRIGST = int(os.environ.get("TRIGST", "1"))
PMASK = int(os.environ.get("PMASK", "0"))
PSTEP = [int(x) for x in os.environ.get("PSTEP", "").split(",") if x]
PBASE = int(os.environ.get("PBASE", "0"))
ALIGN = int(os.environ.get("ALIGN", "0"))
HNEAR = int(os.environ.get("HNEAR", "0"))
JIT = int(os.environ.get("JIT", "0"))
LAY = int(os.environ.get("LAY", "0"))
TLBW = int(os.environ.get("TLBW", "0"))
TLBS = int(os.environ.get("TLBS", "21"))
HORD = int(os.environ.get("HORD", "0"))
GW_N = int(os.environ.get("GW_N", "8"))
OPF = int(os.environ.get("OPF", "9"))
SPEC = int(os.environ.get("SPEC", "1"))
HPI = int(os.environ.get("HPI", "32"))
NEARP = int(os.environ.get("NEARP", "0"))
AD = int(os.environ.get("AD", "8"))
LJ = int(os.environ.get("LJ", "1"))
MD = int(os.environ.get("MD", "2"))
WPF = int(os.environ.get("WPF", "2"))
XST = int(os.environ.get("XST", "4"))
BSL = int(os.environ.get("BSL", "1"))
NF = int(os.environ.get("NF", "3"))
WFL = int(os.environ.get("WFL", "0"))
NH = int(os.environ.get("NH", "27")); NL = 54 - NH
KVH = [int(x) for x in os.environ.get("KVH", "1,2,4,6").split(",")]
KVL = [int(x) for x in os.environ.get("KVL", "1,2,4,6").split(",")]
PMH = int(os.environ.get("PMH", "0")); PML = int(os.environ.get("PML", "0"))
PSEL = os.environ.get("PSEL", "l")
ALH = [int(x) for x in os.environ.get("ALH", "0,-1").split(",")]
ALL = [int(x) for x in os.environ.get("ALL", "0,-1").split(",")]
EV = int(os.environ.get("EV", "1"))
RB = int(os.environ.get("RB", "1"))
DEFW = int(os.environ.get("DEFW", "4"))
DEFER = int(os.environ.get("DEFER", "0"))
PAIR = 2 * KV_TILE
CH = 8 * KV_TILE
STG = 0
KVB = 4 * PART
assert KVB + 4 * CH <= ka2.SCR and KVB >= ka2.SLOT and KVB + 3 * CH >= 3 * ka2.SLOT
RESET_WG = (3 << 6) | (3 << 1)

SX, SW2, SWS, SWO, SOUT, SDBG = 4, 8, 12, 16, 20, 16
s_w, s_tt, s_hg, s_t0, s_t1, s_c, s_slot, s_delta, s_cch, s_base, s_spin, s_kvl, s_kvg, s_woff2 = range(32, 46)
s_gw = 46
s_lid = 97 if STAMP else 64
WS = f"s[{SWS}:{SWS+3}]"
Q1, Q2, P0, P1, O, S0, S1 = 4, 8, 12, 16, 20, 36, 52
KS = [68, 96]
v_ka, v_va, v_g0, VT = 124, 125, 126, 130
v_l16, v_cnt, v_one, v_chk = 136, 137, 138, 139
SC_K = SC_CNT + 256
SC_L = SC_K + 256
COMB = int(os.environ.get('COMB', '0'))
SCW, NW_ = (SC_L, 12) if COMB else (SC_K, 8)
s_tgt = 45

def mf(a, d, x, y, c): a(f"v_mfma_f32_32x32x16_bf16 {vr(d,16)}, {vr(x,4)}, {vr(y,4)}, {c if isinstance(c,str) else vr(c,16)}")
def mf8(a, d, x, y): a(f"v_mfma_f32_32x32x8_bf16 {vr(d,16)}, {vr(x,2)}, {vr(y,2)}, {vr(d,16)}")

def flag_off(a, vd, vrb, vg, t):
    a(f"v_lshl_add_u32 v{vd}, v{vrb}, 4, v{vg}")
    a(f"v_lshlrev_b32 v{vd}, 7, v{vd}")
    a(f"v_add_u32 v{vd}, {WS_FL}, v{vd}")

def publish(a, name, cnt_off, nwaves, sid, base, t, value=1, vm=0, word=None, near=False):
    a(f"s_waitcnt vmcnt({vm})")
    a("s_mov_b64 exec, 1")
    a(f"v_mov_b32 v{t}, {SC_CNT + cnt_off}")
    a(f"v_mov_b32 v{t+1}, 1")
    a(f"ds_add_rtn_u32 v{t+1}, v{t}, v{t+1}")
    a(f"s_lshl_b32 s{s_t0}, s{sid}, 7")
    a(f"s_add_u32 s{s_t0}, s{s_t0}, {base}")
    a(f"v_mov_b32 v{t}, {0 if word is None else 's%d' % word}")
    a(f"v_mov_b32 v{t+2}, {value}")
    a("s_waitcnt lgkmcnt(0)")
    a(f"v_readfirstlane_b32 s{s_t1}, v{t+1}")
    a(f"s_cmp_lg_u32 s{s_t1}, {nwaves-1}")
    a(f"s_cbranch_scc1 {name}")
    if near: two_ways(a, name + "w", lambda sc: a(f"buffer_store_dword v{t+2}, v{t}, {WS}, s{s_t0} offen{sc}"))
    else: a(f"buffer_store_dword v{t+2}, v{t}, {WS}, s{s_t0} offen sc1")
    a.label(name)
    a("s_mov_b64 exec, -1")

def lid(a):
    BMAP = int(os.environ.get("BMAP", "5"))
    if BMAP == 0: a(f"s_mov_b32 s{s_lid}, s2")
    elif BMAP == 1:
        a(f"s_bfe_u32 s{s_lid}, s2, 0x20001")
        a(f"s_lshl_b32 s{s_lid}, s{s_lid}, 4")
        a(f"s_lshr_b32 s35, s2, 4")
        a(f"s_add_u32 s{s_lid}, s{s_lid}, s35")
        a(f"s_lshl_b32 s{s_lid}, s{s_lid}, 1")
        a(f"s_and_b32 s35, s2, 1")
        a(f"s_add_u32 s{s_lid}, s{s_lid}, s35")
        a(f"s_lshl_b32 s{s_lid}, s{s_lid}, 1")
        a(f"s_bfe_u32 s35, s2, 0x10003")
        a(f"s_add_u32 s{s_lid}, s{s_lid}, s35")
    elif BMAP == 3:
        a(f"s_lshr_b32 s{s_lid}, s2, 4")
        a(f"s_lshl_b32 s{s_lid}, s{s_lid}, 3")
        a(f"s_and_b32 s35, s2, 7")
        a(f"s_add_u32 s{s_lid}, s{s_lid}, s35")
        a(f"s_lshl_b32 s{s_lid}, s{s_lid}, 1")
        a(f"s_bfe_u32 s35, s2, 0x10003")
        a(f"s_add_u32 s{s_lid}, s{s_lid}, s35")
    elif BMAP == 4:
        a(f"s_and_b32 s{s_lid}, s2, 1")
        a(f"s_lshl_b32 s{s_lid}, s{s_lid}, 3")
        a(f"s_lshr_b32 s35, s2, 5")
        a(f"s_add_u32 s{s_lid}, s{s_lid}, s35")
        a(f"s_lshl_b32 s{s_lid}, s{s_lid}, 2")
        a(f"s_bfe_u32 s35, s2, 0x20001")
        a(f"s_add_u32 s{s_lid}, s{s_lid}, s35")
        a(f"s_lshl_b32 s{s_lid}, s{s_lid}, 2")
        a(f"s_bfe_u32 s35, s2, 0x20003")
        a(f"s_add_u32 s{s_lid}, s{s_lid}, s35")
    elif BMAP == 5:
        a(f"s_bfe_u32 s{s_lid}, s2, 0x10002")
        a(f"s_lshl_b32 s{s_lid}, s{s_lid}, 3")
        a(f"s_lshr_b32 s35, s2, 5")
        a(f"s_add_u32 s{s_lid}, s{s_lid}, s35")
        a(f"s_lshl_b32 s{s_lid}, s{s_lid}, 1")
        a(f"s_and_b32 s35, s2, 1")
        a(f"s_add_u32 s{s_lid}, s{s_lid}, s35")
        a(f"s_lshl_b32 s{s_lid}, s{s_lid}, 1")
        a(f"s_bfe_u32 s35, s2, 0x10001")
        a(f"s_add_u32 s{s_lid}, s{s_lid}, s35")
        a(f"s_lshl_b32 s{s_lid}, s{s_lid}, 2")
        a(f"s_bfe_u32 s35, s2, 0x20003")
        a(f"s_add_u32 s{s_lid}, s{s_lid}, s35")
    else:
        a(f"s_and_b32 s{s_lid}, s2, 7")
        a(f"s_lshl_b32 s{s_lid}, s{s_lid}, 5")
        a(f"s_lshr_b32 s35, s2, 3")
        a(f"s_add_u32 s{s_lid}, s{s_lid}, s35")
    if STAMP == 3: a("s_mov_b32 s72, 0")

def decode_b(a):
    a(f"s_lshr_b32 s{s_tt}, s{s_lid}, 2")
    a(f"s_and_b32 s{s_hg}, s{s_lid}, 3")

def attn_addr(a):
    lid(a)
    a(f"s_and_b32 s{s_t0}, s{s_lid}, 3")
    a(f"s_lshl_b32 s{s_t0}, s{s_t0}, 3")
    a(f"s_add_u32 s{s_t0}, s{s_t0}, s{s_w}")
    a(f"s_mul_i32 s{s_t0}, s{s_t0}, 5")
    a(f"v_lshrrev_b32 v2, 5, v0")
    a(f"v_and_b32 v3, 31, v0")
    a(f"v_lshlrev_b32 v3, 4, v3")
    for i in range(3):
        if i < 2: a(f"v_add_u32 v1, s{s_t0}, v2")
        else: a(f"v_mov_b32 v1, s{s_t0}")
        if i: a(f"v_add_u32 v1, {2*i}, v1")
        a(f"v_lshrrev_b32 v{VT}, 2, v1")
        a(f"v_lshl_add_u32 v{v_g0+i}, v{VT}, 10, v3")
        a(f"v_and_b32 v{VT}, 1, v1")
        a(f"v_lshl_add_u32 v{v_g0+i}, v{VT}, 9, v{v_g0+i}")
        a(f"v_bfe_u32 v{VT}, v1, 1, 1")
        a(f"v_lshl_add_u32 v{v_g0+i}, v{VT}, 3, v{v_g0+i}")
    a(f"v_lshlrev_b32 v{v_l16}, 4, v0")
    a(f"v_add_u32 v{v_ka}, {KVB + 3*CH}, v{v_l16}")
    a(f"v_lshlrev_b32 v{v_cnt}, 2, v0")
    a(f"v_add_u32 v{v_cnt}, {SC_K}, v{v_cnt}")
    a(f"v_cmp_eq_u32 vcc, 0, v0")
    a(f"v_cndmask_b32 v{v_one}, 0, 1, vcc")
    a(f"v_and_b32 v1, 31, v0")
    a(f"v_min_u32 v1, 23, v1")
    a(f"v_mul_u32_u24 v{v_va}, 384, v2")
    a(f"v_lshl_add_u32 v{v_va}, v1, 4, v{v_va}")
    a(f"v_add_u32 v{v_va}, {KVB + 3*CH + 3072}, v{v_va}")

def fetch(a):
    decode_b(a)
    a(f"s_cmp_lg_u32 s{s_w}, 0")
    a("s_cbranch_scc1 F_attn")
    a(f"s_lshr_b32 s{s_t0}, s{s_tt}, 2")
    a(f"v_mov_b32 v1, s{s_t0}")
    if WFL:
        a(f"s_mul_i32 s{s_t1}, s{s_hg}, 5")
        a(f"s_lshr_b32 s{s_t1}, s{s_t1}, 1")
        a(f"v_add_u32 v5, s{s_t1}, v0")
        a(f"v_lshrrev_b32 v2, 1, v5")
        a(f"v_add_u32 v2, 9, v2")
        flag_off(a, 4, 1, 2, 3)
        a(f"v_and_b32 v5, 1, v5")
        a(f"v_lshl_add_u32 v4, v5, 3, v4")
        a(f"s_and_b32 s{s_t1}, s{s_tt}, 2")
        a(f"s_lshl_b32 s{s_t1}, s{s_t1}, 1")
        a(f"v_add_u32 v4, s{s_t1}, v4")
        a("s_mov_b64 exec, 7")
    else:
        a(f"s_add_u32 s{s_t1}, s{s_hg}, 9")
        a(f"v_add_u32 v2, s{s_t1}, v0")
        flag_off(a, 4, 1, 2, 3)
        a("s_mov_b64 exec, 3")
    poll(a, "B_pollq", f"buffer_load_dword v2, v4, {WS}, 0 offen sc1", "v_cmp_gt_u32 vcc, 1, v2", int(os.environ.get("QSL", "2")))
    lds_arrive(a, SC_CNT + 16, 2)

def fetch_kv(a, tag, bar):
    decode_b(a)
    a(f"s_lshr_b32 s{s_t0}, s{s_tt}, 3")
    a(f"s_lshl_b32 s{s_t1}, s{s_t0}, 1")
    a(f"v_add_u32 v1, s{s_t1}, v0")
    a(f"v_and_b32 v1, 15, v1")
    a(f"v_mov_b32 v2, 14")
    flag_off(a, 4, 1, 2, 3)
    a(f"s_mul_i32 s{s_t0}, s{s_t0}, {CH}")
    a(f"s_sub_u32 s{s_kvl}, s{s_w}, 5")
    a(f"s_lshl_b32 s{s_kvl}, s{s_kvl}, 13")
    a(f"s_add_u32 s{s_kvg}, s{s_kvl}, s{s_t0}")
    LD = f"buffer_load_dword v2, v4, {WS}, 0 offen sc1"
    def dma(c=0):
        a("s_mov_b64 exec, -1")
        if c:
            a(f"s_lshr_b32 s{s_t0}, s{s_tt}, 3")
            a(f"s_add_u32 s{s_t0}, s{s_t0}, {c}")
            a(f"s_and_b32 s{s_t0}, s{s_t0}, 7")
            a(f"s_mul_i32 s{s_t0}, s{s_t0}, {CH}")
            a(f"s_add_u32 s{s_kvg}, s{s_kvl}, s{s_t0}")
        for hf in range(2):
            a(f"s_add_u32 m0, s{s_kvl}, {KVB + (3-c)*CH + hf*4096}")
            a(f"s_add_u32 s{s_t1}, s{s_kvg}, {WS_KV + hf*4096}")
            for m in range(4): a(f"buffer_load_dwordx4 v{v_l16}, {WS}, s{s_t1} offen offset:{m*1024} sc1 lds")
    a("s_mov_b64 exec, 3")
    if bar:
        a(LD)
        a("s_waitcnt vmcnt(0)")
        a("v_cmp_gt_u32 vcc, 1, v2")
        a("s_cmp_eq_u64 vcc, 0")
        a(f"s_cbranch_scc0 K_late{tag}")
        dma()
        a("s_barrier")
        a(f"s_branch K_done{tag}")
        a.label(f"K_late{tag}")
        a("s_barrier")
    poll(a, f"K_poll{tag}", LD, "v_cmp_gt_u32 vcc, 1, v2", 3)
    dma()
    a.label(f"K_done{tag}")
    a("s_waitcnt vmcnt(0)")
    stamp(a, 2)
    lds_arrive(a, SC_CNT + 16, 2)
    if NF > 1:
        a(f"s_mov_b32 exec_lo, {(1 << (2 * NF)) - 1}")
        a("s_mov_b32 exec_hi, 0")
        poll(a, f"K_more{tag}", LD, "v_cmp_gt_u32 vcc, 1, v2", 3)
        for c in range(1, NF): dma(c)
    a("s_branch F_attn")

def attention(a):
    decode_b(a)
    stamp(a, 8)
    a(f"s_mul_i32 s{s_base}, s{s_tt}, {QH_TT}")
    for r in list(range(KS[0] + 20, KS[0] + (28 if LAY else 24))) + list(range(P0 if LAY else P1, P1 + 4)) + list(range(O, O + 16)):
        a(f"v_mov_b32 v{r}, 0")
    a(f"s_mov_b32 s{s_c}, 0")
    a(f"s_mov_b32 s{s_slot}, {3*CH}")
    a(f"s_mov_b32 s{s_cch}, {(-CH) & 0xffffffff}")
    if PSTEP:
        a(f"s_mov_b32 s{s_tgt}, 0")
        if PSEL == "l":
            a(f"s_bitcmp0_b32 s{s_tt}, 1")
            a("s_cbranch_scc1 B_nops")
        a(f"s_mov_b32 s{s_tgt}, {sum(1 << c for c in PSTEP)}")
        a(f"s_setprio {len(PSTEP) + PBASE}")
        a.label("B_nops")
    a(f"v_mov_b32 v{Q2}, 0")
    a(f"v_mov_b32 v{Q2+1}, 0")
    lds_wait(a, "B_wait", SC_CNT + 16, 4, 2, s_spin, s_t0, BSL)
    stamp(a, 9)
    QLD = "\n".join([f"buffer_load_dwordx2 {vr(Q1,2)}, v{v_g0}, {WS}, s{s_base} offen sc1",
                      f"buffer_load_dwordx2 {vr(Q1+2,2)}, v{v_g0+1}, {WS}, s{s_base} offen sc1",
                      "s_mov_b32 exec_hi, 0",
                      f"buffer_load_dwordx2 {vr(Q2,2)}, v{v_g0+2}, {WS}, s{s_base} offen sc1",
                      "s_mov_b32 exec_hi, -1"])
    def kv_off(kind, t):
        p = (t % 8) // 2 * PAIR; b = t % 2
        return {"K1": p + 1024 * b, "K2": p + 2048, "V0": p + 1536 * b, "V1": p + 1536 * b + 768}[kind]
    def rd(dst, kind, t):
        a(f"ds_read_b128 {vr(dst,4)}, v{v_ka if kind[0] == 'K' else v_va} offset:{kv_off(kind, t)}")
    def group_reads(o):
        n = KS[((o + 1) // 2 + 1) % 2]
        if LAY:
            return [(n + 12, "V0", o + 1), (n + 16, "V1", o + 1), (n, "K1", o + 3), (n + 8, "K2", o + 3),
                    (n + 4, "K1", o + 4), (n + 20, "V0", o + 2), (n + 24, "V1", o + 2)]
        return [(n + 12, "V1", o + 1), (n, "K1", o + 3), (n + 8, "K2", o + 3), (n + 16, "V0", o + 2),
                (n + 20, "V1", o + 2), (n + 4, "K1", o + 4), (n + 24, "V0", o + 3)]
    k0 = KS[0]
    def first_reads():
        rd(k0, "K1", 0); rd(k0 + 8, "K2", 0); rd(k0 + 4, "K1", 1)
        if not LAY: rd(k0 + 24, "V0", 0)
        for r in group_reads(-1)[:4]: rd(*r)
        a(f"v_mov_b32 v2, {SC_CNT + 8}")
    if ka2.QS:
        poll(a, "B_pollqd", QLD, f"v_max3_u32 v3, v{Q1}, v{Q1+1}, v{Q1+2}\nv_max3_u32 v1, v{Q1+3}, v{Q2}, v{Q2+1}\nv_max_u32 v3, v3, v1\nv_cmp_eq_u32 vcc, -1, v3",
             1, between=first_reads)
        a("s_waitcnt lgkmcnt(0)")
    else:
        a(QLD)
        first_reads()
        a("s_waitcnt vmcnt(0) lgkmcnt(0)")
    stamp(a, 10)
    mf(a, S1, k0, Q1, "0"); mf8(a, S1, k0 + 8, Q2)
    mf(a, S0, k0, Q1, "0")
    a("s_mov_b64 exec, 1")
    a(f"ds_add_u32 v2, v{v_one}")
    a("s_mov_b64 exec, -1")
    a(f"v_max3_f32 v{VT}, v{S1}, v{S1+1}, v{S1+2}")
    a(f"v_max3_f32 v{VT+1}, v{S1+3}, v{S1+4}, v{S1+5}")
    a(f"v_max3_f32 v{VT+2}, v{S1+6}, v{S1+7}, v{S1+8}")
    a(f"v_max3_f32 v{VT+3}, v{S1+9}, v{S1+10}, v{S1+11}")
    a(f"v_max3_f32 v{VT}, v{VT}, v{S1+12}, v{S1+13}")
    a(f"v_max3_f32 v{VT+1}, v{VT+1}, v{S1+14}, v{S1+15}")
    a(f"v_max3_f32 v{VT}, v{VT}, v{VT+2}, v{VT+3}")
    a(f"v_max_f32 v{VT}, v{VT}, v{VT+1}")
    a(f"v_mov_b32 v{VT+1}, v{VT}")
    a(f"v_permlane32_swap_b32 v{VT}, v{VT+1}")
    a(f"v_max_f32 v{VT}, v{VT}, v{VT+1}")
    a("s_mov_b32 exec_lo, 0")
    a(f"v_cvt_pk_bf16_f32 v{Q2}, -v{VT}, 0")
    a("s_mov_b32 exec_lo, -1")
    mf8(a, S0, k0 + 8, Q2)
    stamp(a, 11); stamp(a, 12, 'cyc')
    a("s_waitcnt lgkmcnt(0)")
    a("s_nop 10")
    a.raw(".p2align 6")
    a.label("B_loop")
    start = a.mark()
    for u in range(8):
        Sc, Sn = (S0, S1) if u % 2 == 0 else (S1, S0)
        odd = u % 2
        o = u if odd else u - 1
        ks = KS[((o + 1) // 2) % 2]
        reads = group_reads(o)
        slots = [[reads[0]], [reads[1]], [reads[2]], [reads[3]]] if odd else [[reads[4], reads[5]], [reads[6]], [], []]
        e = lambda i: a(f"v_exp_f32 v{Sc+i}, v{Sc+i}")
        c = lambda i: a(f"v_cvt_pk_bf16_f32 v{P0+i}, v{Sc+2*i}, v{Sc+2*i+1}")
        cp = lambda i: a(f"v_cvt_pk_bf16_f32 v{P0+i}, v{Sn+2*i}, v{Sn+2*i+1}")
        if LAY:
            rs = list(reads[:4] if odd else reads[4:])
            def misc():
                if u == 0:
                    a(f"ds_add_u32 v{v_cnt}, v{v_one} offset:{256 if COMB else 0}")
                    if PSTEP:
                        a(f"s_bitcmp1_b32 s{s_tgt}, s{s_c}")
                        a("s_cbranch_scc1 B_prio")
                        a.label("B_prioret")
                if u == 4: a(f"ds_read_b32 v{v_chk}, v{v_cnt} offset:256")
                if u == 2:
                    a(f"s_cmp_eq_u32 s{s_slot}, 0")
                    a(f"s_cselect_b32 s{s_delta}, {3*CH}, s{s_cch}")
                if u == 6:
                    a(f"s_add_u32 s{s_c}, s{s_c}, 1")
                    a(f"s_cmp_lt_u32 s{s_c}, 8")
            if odd: a("s_waitcnt lgkmcnt(0)")
            mf(a, Sn, ks + (0 if odd else 4), Q1, "0")
            if u == 5:
                a(f"v_readlane_b32 s{s_t0}, v{v_chk}, s{s_c}")
                a(f"s_add_u32 s{s_slot}, s{s_slot}, s{s_delta}")
                a(f"s_cmp_lt_u32 s{s_t0}, {12 if COMB else 4}")
                if "nospin" not in GX: a("s_cbranch_scc1 B_spin")
                a.label("B_synced")
                a(f"v_add_u32 v{v_ka}, s{s_delta}, v{v_ka}")
            if u == 7: a(f"v_add_u32 v{v_va}, s{s_delta}, v{v_va}")
            if u == 2: a(f"v_mov_b32_dpp v{v_one}, v{v_one} row_shr:1 row_mask:0xf bank_mask:0xf bound_ctrl:0")
            e(0); e(1); e(2)
            mf8(a, Sn, ks + 8 + (0 if odd else 2), Q2)
            rd(*rs.pop(0))
            e(3); e(4); e(5)
            mf(a, O, ks + (12 if odd else 20), P0, O)
            if LAY == 2: rd(*rs.pop(0))
            e(6); e(7); e(8)
            mf(a, O, ks + (16 if odd else 24), P1, O)
            if LAY == 1:
                e(9); e(10); c(0); c(1)
                for r in rs: rd(*r)
                misc()
                c(2); e(11); e(12); c(3); c(4); e(13); e(14); e(15); c(5); c(6); c(7)
            else:
                rd(*rs.pop(0))
                e(9); e(10); c(0)
                for r in rs: rd(*r)
                misc()
                c(1); c(2); e(11); e(12); c(3); c(4); e(13); e(14); e(15); c(5); c(6); c(7)
            continue
        if os.environ.get("CHST") and u == 0: a("s_memtime s[98:99]" if os.environ.get("CHST") == "2" else "s_memrealtime s[98:99]")
        cp(6); e(0); e(1); cp(7); e(2); e(3)
        if odd: a("s_waitcnt lgkmcnt(0)")
        if os.environ.get("CHST") and u == 1:
            sl = [2, 3, 4, 5, 6, 8, 9, 10]
            for k in range(7): a(f"s_mov_b32 s{64+2*sl[k]}, s{64+2*sl[k+1]}")
            a(f"s_mov_b32 s{64+2*sl[7]}, s98")
        mf(a, Sn, ks + (0 if odd else 4), Q1, "0")
        for r in slots[0]: rd(*r)
        if u == 5:
            a(f"v_readlane_b32 s{s_t0}, v{v_chk}, s{s_c}")
            a(f"s_add_u32 s{s_slot}, s{s_slot}, s{s_delta}")
            a(f"s_cmp_lt_u32 s{s_t0}, {12 if COMB else 4}")
            if "nospin" not in GX: a("s_cbranch_scc1 B_spin")
            a.label("B_synced")
        if u == 2:
            a(f"s_cmp_eq_u32 s{s_slot}, 0")
            a(f"s_cselect_b32 s{s_delta}, {3*CH}, s{s_cch}")
        e(4); e(5)
        if u == 5: a(f"v_add_u32 v{v_ka}, s{s_delta}, v{v_ka}")
        if u == 2: a(f"v_mov_b32_dpp v{v_one}, v{v_one} row_shr:1 row_mask:0xf bank_mask:0xf bound_ctrl:0")
        if u == 6: a(f"v_add_u32 v{v_va}, s{s_delta}, v{v_va}")
        c(0); c(1); e(6); e(7)
        mf8(a, Sn, ks + 8 + (0 if odd else 2), Q2)
        for r in slots[1]: rd(*r)
        e(8); e(9); c(2); c(3); e(10); e(11)
        mf(a, O, ks + (12 if odd else 20), P1, O)
        for r in slots[2]: rd(*r)
        if u == 0 and PSTEP:
            a(f"s_bitcmp1_b32 s{s_tgt}, s{s_c}")
            a("s_cbranch_scc1 B_prio")
            a.label("B_prioret")
        if u == 0:
            a(f"ds_add_u32 v{v_cnt}, v{v_one} offset:{256 if COMB else 0}")
        if u == 4: a(f"ds_read_b32 v{v_chk}, v{v_cnt} offset:256")
        e(12); e(13); c(4); c(5); e(14); e(15)
        mf(a, O, ks + (16 if odd else 24), P0, O)
        for r in slots[3]: rd(*r)
        if u == 6:
            a(f"s_add_u32 s{s_c}, s{s_c}, 1")
            a(f"s_cmp_lt_u32 s{s_c}, 8")
    a("s_cbranch_scc1 B_loop")
    if ALIGN: print("loop bytes/fixed", a.align8(start))
    a.check_backedge(start)
    stamp(a, 13); stamp(a, 14, 'cyc')
    if LAY:
        mf(a, O, KS[0] + 20, P0, O); mf(a, O, KS[0] + 24, P1, O)
    else:
        for i in (6, 7): a(f"v_cvt_pk_bf16_f32 v{P0+i}, v{S1+2*i}, v{S1+2*i+1}")
        mf(a, O, KS[0] + 20, P1, O)
    if not TRIGST: a(f"ds_add_u32 v{v_cnt}, v{v_one}")
    a(f"ds_read_b32 v{v_chk}, v{v_cnt}")
    a("s_waitcnt lgkmcnt(0)")
    a(f"v_mov_b32 v{VT+2}, {hex(f32bits(2.0**60))}")
    a(f"s_lshl_b32 s{s_base}, s{s_lid}, 3")
    a(f"s_add_u32 s{s_base}, s{s_base}, s{s_w}")
    a(f"s_mul_i32 s{s_base}, s{s_base}, 1280")
    a(f"s_add_u32 s{s_base}, s{s_base}, {WS_O}")
    a(f"v_lshlrev_b32 v{v_g0}, 4, v0")
    a(f"v_lshlrev_b32 v{v_g0+1}, 3, v0")
    a(f"v_mov_b32 v{VT}, v{O+8}")
    a(f"v_mov_b32 v{VT+1}, v{O+8}")
    a(f"v_permlane32_swap_b32 v{VT}, v{VT+1}")
    a(f"v_cmp_nle_f32 vcc, {hex(f32bits(2.0**-60))}, v{VT+1}")
    a(f"v_cmp_nle_f32 s[52:53], v{VT+1}, v{VT+2}")
    a(f"s_or_b64 s[52:53], s[52:53], vcc")
    a("s_cbranch_scc1 B_fallback")
    a.label("B_norm")
    a(f"v_rcp_f32 v{VT}, v{VT+1}")
    for i in range(12): a(f"v_mul_f32 v{O+i}, v{VT}, v{O+i}")
    for i in range(6): a(f"v_cvt_pk_bf16_f32 v{O+i}, v{O+2*i}, v{O+2*i+1}")
    if DRY: a("s_cbranch_execz F_dryret")
    a(f"v_readlane_b32 s{s_t0}, v{v_chk}, 9")
    a(f"s_cmp_eq_u32 s{s_t0}, 4")
    a("s_cbranch_scc1 B_near")
    a(f"buffer_store_dwordx4 {vr(O,4)}, v{v_g0}, {WS}, s{s_base} offen sc1")
    a("s_mov_b32 exec_hi, 0")
    a(f"buffer_store_dwordx2 {vr(O+4,2)}, v{v_g0+1}, {WS}, s{s_base} offen offset:1024 sc1")
    a("s_branch B_done")
    a.label("B_near")
    a(f"buffer_store_dwordx4 {vr(O,4)}, v{v_g0}, {WS}, s{s_base} offen")
    a("s_mov_b32 exec_hi, 0")
    a(f"buffer_store_dwordx2 {vr(O+4,2)}, v{v_g0+1}, {WS}, s{s_base} offen offset:1024")
    a.label("B_done")
    if TRIGST == 2: a("s_waitcnt vmcnt(0)")
    if TRIGST: a(f"ds_add_u32 v{v_cnt}, v{v_one}")
    if STAMP: a("s_waitcnt vmcnt(0)")
    if STAMP:
        stamp(a, 7); stamp(a, 15, True)
        stamp_flush(a, 1, SWS, s_w, 12, 16)
    a("s_endpgm")
    if PSTEP:
        a.label("B_prio")
        for k, c in enumerate(PSTEP):
            a(f"s_setprio {len(PSTEP) - 1 - k + PBASE}")
            a(f"s_cmp_eq_u32 s{s_c}, {c}")
            a("s_cbranch_scc1 B_prioret")
        a("s_branch B_prioret")
    a.label("B_spin")
    a(f"s_mov_b32 s{s_spin}, {SPIN * 40}")
    a.label("B_spin1")
    a(f"s_sleep {os.environ.get('SSL', '4')}")
    a(f"ds_read_b32 v{v_chk}, v{v_cnt} offset:256")
    a("s_waitcnt lgkmcnt(0)")
    a(f"v_readlane_b32 s{s_t0}, v{v_chk}, s{s_c}")
    a(f"s_cmp_ge_u32 s{s_t0}, {12 if COMB else 4}")
    a("s_cbranch_scc1 B_synced")
    a(f"s_sub_u32 s{s_spin}, s{s_spin}, 1")
    a(f"s_cmp_lg_u32 s{s_spin}, 0")
    a("s_cbranch_scc1 B_spin1")
    a("s_branch B_synced")
    a.label("B_fallback")
    a("s_mov_b32 exec_lo, 0")
    a(f"v_mov_b32 v{Q2}, 0")
    a("s_mov_b32 exec_lo, -1")
    a(f"s_add_u32 s{s_slot}, s{s_slot}, {KVB}")
    a(f"v_subrev_u32 v{v_ka}, s{s_slot}, v{v_ka}")
    a(f"v_subrev_u32 v{v_va}, s{s_slot}, v{v_va}")
    a(f"v_mov_b32 v{VT}, 0xff800000")
    for r in range(O, O + 16): a(f"v_mov_b32 v{r}, 0")
    a(f"s_mov_b32 s{s_kvg}, {WS_KV}")
    def ldk():
        for i in range(3): a(f"buffer_load_dwordx4 {vr(k0+4*i,4)}, v{v_ka}, {WS}, s{s_kvg} offen offset:{1024*i} sc1")
    def qk(b):
        S = (S0, S1)[b]
        mf(a, S, k0 + 4 * b, Q1, "0"); mf8(a, S, k0 + 8 + 2 * b, Q2)
    def nxt(lbl):
        a(f"s_add_u32 s{s_kvg}, s{s_kvg}, {PAIR}")
        a(f"s_cmp_lt_u32 s{s_kvg}, {WS_KV + 32*PAIR}")
        a(f"s_cbranch_scc1 {lbl}")
    a.label("B_fb1")
    st = a.mark()
    ldk()
    a("s_waitcnt vmcnt(0)")
    qk(0); qk(1)
    for i in range(0, 32, 2): a(f"v_max3_f32 v{VT}, v{VT}, v{S0+i}, v{S0+i+1}")
    nxt("B_fb1")
    a.check_backedge(st)
    a(f"v_mov_b32 v{VT+1}, v{VT}")
    a(f"v_permlane32_swap_b32 v{VT}, v{VT+1}")
    a(f"v_max_f32 v{VT}, v{VT}, v{VT+1}")
    a(f"s_mov_b32 s{s_kvg}, {WS_KV}")
    a.label("B_fb2")
    st = a.mark()
    ldk()
    for i in range(4): a(f"buffer_load_dwordx4 {vr(k0+12+4*i,4)}, v{v_va}, {WS}, s{s_kvg} offen offset:{768*i} sc1")
    a("s_waitcnt vmcnt(0)")
    qk(0); qk(1)
    for b in range(2):
        S = (S0, S1)[b]
        for i in range(16): a(f"v_sub_f32 v{S+i}, v{S+i}, v{VT}")
        for i in range(16): a(f"v_exp_f32 v{S+i}, v{S+i}")
        for i in range(8): a(f"v_cvt_pk_bf16_f32 v{P0+i}, v{S+2*i}, v{S+2*i+1}")
        mf(a, O, k0 + 12 + 8 * b, P0, O); mf(a, O, k0 + 16 + 8 * b, P1, O)
    nxt("B_fb2")
    a.check_backedge(st)
    a(f"v_mov_b32 v{VT}, v{O+8}")
    a(f"v_mov_b32 v{VT+1}, v{O+8}")
    a(f"v_permlane32_swap_b32 v{VT}, v{VT+1}")
    a("s_nop 1")
    a("s_branch B_norm")

def gemm(a):
    global stamp
    def h_store(sc, vl):
        for k in range(12):
            if k in (4, 10): a("s_add_u32 s53, s53, 4096")
            if k == 6: a(f"s_add_u32 s53, s53, {QH_TT - 4096}")
            a(f"buffer_store_dwordx4 {vr(72+4*k,4)}, v{vl}, {WS}, s53 offen offset:{(k % 6 % 4)*1024}{sc}")
        stamp(a, 3)
    a("s_setprio 3")
    lid(a)
    decode_b(a)
    a(f"s_sub_u32 s{s_w}, s{s_w}, 8")
    srd(a, SW2, 56, 1728 * 1280)
    srd(a, SWO, 58, 640 * 1280)
    srd(a, SOUT, 60, 2048 * 1280)
    g = GW(a, 27, 4, 10, STG, PART, SW2, SWS, s_gw)
    v_wd2 = g.v_end
    v_wa2, vfl = 11, v_wd2 + 5
    vx = v_wd2 + 6
    v_wa3 = 0
    s_kw, s_ka, s_w0, s_a0 = 50, 51, 54, 55
    a(f"s_mul_i32 s{s_kvl}, s{s_w}, 6144")
    def kv(c, tag=""):
        if c >= 4: lds_wait(a, f"G_free{c}{tag}", SCW + 4 * (c - 3), NW_, 2, s_spin, s_t0, 4)
        a(f"s_lshr_b32 s{s_kvg}, s{s_tt}, 3")
        a(f"s_add_u32 s{s_kvg}, s{s_kvg}, {c}")
        a(f"s_and_b32 s{s_kvg}, s{s_kvg}, 7")
        a(f"s_mul_i32 s{s_kvg}, s{s_kvg}, {CH}")
        a(f"s_add_u32 s{s_kvg}, s{s_kvg}, s{s_kvl}")
        a(f"s_add_u32 s{s_kvg}, s{s_kvg}, {WS_KV}")
        a(f"s_add_u32 m0, s{s_kvl}, {KVB + (3 - c % 4)*CH}")
        for m in range(4):
            a(f"buffer_load_dwordx4 v{g.v_l16}, {WS}, s{s_kvg} offen offset:{m*1024} sc1 lds"); g.vm.issue(("KV", c))
        a(f"s_add_u32 m0, m0, 4096")
        a(f"s_add_u32 s{s_kvg}, s{s_kvg}, 4096")
        for m in range(2):
            a(f"buffer_load_dwordx4 v{g.v_l16}, {WS}, s{s_kvg} offen offset:{m*1024} sc1 lds"); g.vm.issue(("KV", c))
    def landed(c):
        g.vm.wait(("KV", c))
        a("s_mov_b64 exec, 1")
        a(f"v_mov_b32 v2, {SC_L + 4 * (c - 1)}")
        a(f"v_mov_b32 v3, 1")
        a(f"ds_add_u32 v2, v3"); g.lg.issue("arr")
        a("s_mov_b64 exec, -1")
    s_i4 = s_c
    a(f"s_getreg_b32 s{s_delta}, hwreg(HW_REG_XCC_ID, 0, 4)")
    a(f"s_add_u32 s{s_delta}, s{s_delta}, 16")
    a(f"s_mov_b32 s{s_base}, 0")
    g.setup(s_w, s_hg, s_base)
    a(f"s_and_b32 s{s_t1}, s{s_tt}, 3")
    a(f"s_lshl_b32 s{s_i4}, s{s_t1}, 2")
    s_n = 52
    a(f"s_min_u32 s{s_t0}, s{s_t1}, 2")
    a(f"s_mul_i32 s{s_kw}, s{s_t0}, {NH}")
    a(f"s_cmp_eq_u32 s{s_t1}, 3")
    a(f"s_cselect_b32 s{s_t0}, {NL}, 0")
    a(f"s_add_u32 s{s_kw}, s{s_kw}, s{s_t0}")
    a(f"s_cmp_lt_u32 s{s_t1}, 2")
    a(f"s_cselect_b32 s{s_n}, {NH}, {NL}")
    a(f"s_mul_i32 s{s_w0}, s{s_kw}, {16*1280}")
    a(f"s_mul_i32 s{s_t0}, s{s_hg}, 320")
    a(f"s_add_u32 s{s_w0}, s{s_w0}, s{s_t0}")
    a(f"s_mul_i32 s{s_woff2}, s{s_w}, {160*1280}")
    a(f"s_add_u32 s{s_woff2}, s{s_woff2}, s{s_t0}")
    a(f"s_and_b32 s{s_slot}, s{s_tt}, 0xfc")
    a(f"s_add_u32 s{s_slot}, s{s_slot}, s{s_w}")
    a(f"s_mul_i32 s{s_a0}, s{s_slot}, {QH_TT}")
    a(f"s_lshl_b32 s{s_t0}, s{s_kw}, 10")
    a(f"s_add_u32 s{s_a0}, s{s_a0}, s{s_t0}")
    a(f"s_add_u32 s{s_a0}, s{s_a0}, {WS_QH + 40*1024}")
    a(f"v_mul_u32_u24 v2, 12, v0")
    a(f"s_sub_u32 s{s_t0}, s{s_n}, 1")
    a(f"v_min_u32 v2, s{s_t0}, v2")
    a(f"v_add_u32 v2, s{s_kw}, v2")
    a(f"v_mul_u32_u24 v2, 0x5556, v2")
    a(f"v_lshrrev_b32 v2, 18, v2")
    a(f"s_lshr_b32 s{s_t0}, s{s_tt}, 2")
    a(f"v_mov_b32 v1, s{s_t0}")
    flag_off(a, vfl, 1, 2, 3)
    a(f"s_bfe_u32 s{s_ka}, s{s_tt}, {0x10002 if RB == 1 else 0x20002}")
    a(f"s_lshr_b32 s{s_t0}, s{s_n}, {RB}")
    a(f"s_mul_i32 s{s_ka}, s{s_ka}, s{s_t0}")
    a(f"s_add_u32 s{s_kw}, s{s_ka}, s{s_w}")
    ALT = {31: 2 * CH, 32: CH, 33: 0}
    cur = {"ns": None}
    def dma5(vd, S, tag):
        for m in range(4):
            a(f"buffer_load_dwordx4 v{vd+m}, {S}, s{g.s_woff} offen offset:{m*1024} lds"); g.vm.issue(tag)
        a(f"s_add_u32 m0, m0, 4096")
        a(f"buffer_load_dwordx4 v{vd+4}, {S}, s{g.s_woff} offen lds"); g.vm.issue(tag)
    def load_stage(st):
        a(f"s_cmp_ge_u32 s{s_kw}, s{s_n}")
        a(f"s_cselect_b32 s{s_t0}, s{s_n}, 0")
        a(f"s_sub_u32 s{s_kw}, s{s_kw}, s{s_t0}")
        a(f"s_mul_i32 s{g.s_woff}, s{s_kw}, {16*1280}")
        a(f"s_add_u32 s{g.s_woff}, s{g.s_woff}, s{s_w0}")
        a(f"s_add_u32 s{s_kw}, s{s_kw}, 4")
        if cur["ns"] is None:
            oh, ol = [((st - (n + 3) // 4 + 1) % 3) * 5120 for n in (NH, NL)]
            a(f"s_movk_i32 s{s_t0}, {oh}")
            a(f"s_cmp_ge_u32 s{s_i4}, 8")
            a(f"s_cselect_b32 s{s_t0}, {ol}, s{s_t0}")
            a(f"s_add_u32 m0, s{g.s_lds}, s{s_t0}")
        else: a(f"s_add_u32 m0, s{g.s_lds}, {((st - cur['ns'] + 1) % 3)*5120}")
        dma5(g.v_wd, f"s[{SW2}:{SW2+3}]", ("S", st))
    def load_w(i):
        j = i - 27
        row = 80 * (j // 5) + (20 * (j % 5) if j % 5 < 4 else 16)
        a(f"s_add_u32 s{g.s_woff}, s{s_woff2}, {row*1280}")
        if i in ALT:
            a(f"s_mul_i32 s{s_t0}, s{s_w}, 5120")
            a(f"s_add_u32 m0, s{s_t0}, {KVB + CH + ALT[i]}")
        else: a(f"s_add_u32 m0, s{g.s_lds}, {(i % 3)*5120}")
        dma5(v_wd2 if j % 5 == 4 else g.v_wd, f"s[{SWO}:{SWO+3}]", ("W", i))
    def areg(i): return g.v_act + 4 * ((i - 100) % 8 if i >= 100 else i - 27)
    def load_a(i):
        a(f"s_lshl_b32 s{g.s_aoff}, s{s_ka}, 10")
        a(f"s_add_u32 s{g.s_aoff}, s{g.s_aoff}, s{s_a0}")
        a(f"s_add_u32 s{s_ka}, s{s_ka}, 1")
        a(f"s_cmp_eq_u32 s{s_ka}, s{s_n}")
        a(f"s_cselect_b32 s{s_ka}, 0, s{s_ka}")
        a(f"buffer_load_dwordx4 {vr(areg(i),4)}, v{g.v_l16}, {WS}, s{g.s_aoff} offen sc1"); g.vm.issue(("A", i))
    def rd_t(i, T):
        if i >= 100: base, off = g.v_wa, (i % 4) * PART + (((i - 100) // 4 - cur['ns'] + 1) % 3) * 5120
        else: base, off = (v_wa3, ALT[i]) if i in ALT else (g.v_wa, (i % 3) * 5120)
        for p in range(2):
            a(f"ds_read_b64_tr_b16 {vr(g.v_wf+4*T+2*p,2)}, v{base} offset:{off + T*64 + p*2560}"); g.lg.issue((i, T))
    def rd_w(i):
        g.vm.wait(("W", i))
        for T in range(5): rd_t(i, T)
    def mm(i, nxt=None, pm=0):
        g.vm.wait(("A", i), ("W", nxt))
        low = not 32 <= i < 100
        for T in range(5):
            if low and (pm >> T & 1) != ((pm >> (T - 1) & 1) if T else 1): a(f"s_setprio {3 * (pm >> T & 1)}")
            g.lg.wait((i, T))
            acc = vr(g.v_acc + 16 * T, 16)
            a(f"v_mfma_f32_32x32x16_bf16 {acc}, {vr(g.v_wf+4*T,4)}, {vr(areg(i),4)}, {acc if i != 100 else 0}")
            if nxt is not None: rd_t(nxt, T)
        if low and not pm >> 4 & 1: a("s_setprio 3")
    def sync(st, tag=""):
        g.vm.wait(("S", st))
        lds_arrive(a, SC_CNT + 32 + 4 * st, 2)
        lds_wait(a, f"G_sync{st}{tag}", SC_CNT + 32 + 4 * st, 4, 2, s_spin, s_t0, 1)
        g.lg.q = []
    g.setup2()
    a(f"v_subrev_u32 v{g.v_wa}, s{g.s_lds}, v{g.v_wa}")
    for m in range(5):
        a(f"v_add_u32 v1, {64*m}, v0")
        a(f"v_mul_u32_u24 v2, 0xcccd, v1")
        a(f"v_lshrrev_b32 v2, 22, v2")
        a(f"v_mul_u32_u24 v2, {16*1280}, v2")
        a(f"v_add_u32 v{v_wd2+m}, v2, v{g.v_wd+m}")
    a(f"v_mov_b32 v2, 14")
    flag_off(a, 1, 0, 2, 3)
    a("s_mov_b32 exec_lo, 0xffff")
    a("s_mov_b32 exec_hi, 0")
    poll(a, "G_pollkv", f"buffer_load_dword v2, v1, {WS}, 0 offen sc1", "v_cmp_gt_u32 vcc, 1, v2", 6)
    a("s_mov_b64 exec, -1")
    lds_wait(a, "G_wait", SC_CNT + 8, GW_N, 2, s_spin, s_t0, 1)
    for c in range(1, NF): landed(c)
    first = list(range(NF, NF + HORD)); later = list(range(NF + HORD, 4))
    for c in first: kv(c)
    a("s_cmp_eq_u32 s53, -1")
    a("s_cbranch_scc1 G_noh")
    h_store(" sc1", g.v_l16)
    q0 = list(g.vm.q)
    g.vm.q += ["H"] * 12
    for c in first: landed(c)
    for c in later: kv(c)
    publish(a, "G_pub", 0, 4, 3, WS_FL, 1, vm=6 * len(later))
    stamp(a, 4)
    a("s_branch G_noh2")
    a.label("G_noh")
    g.vm.q = q0
    for c in later: kv(c)
    for c in first: landed(c)
    a.label("G_noh2")
    g.vm.q = [("KV", c) for c in later for _ in range(6)]
    for c in later: landed(c)
    for st in range(NS0): load_stage(st)
    stamp(a, 8)
    a("s_mov_b64 exec, 15")
    poll(a, "G_pollh", f"buffer_load_dword v2, v{vfl}, {WS}, 0 offen sc1", "v_cmp_gt_u32 vcc, 1, v2", 4)
    a("s_mov_b64 exec, -1")
    g.vm.q = []
    stamp(a, 9)
    if STAMP: a("s_waitcnt lgkmcnt(0)")
    for i in range(100, 104): load_a(i)
    for st in range(NS0, 3): load_stage(st)
    for i in range(104, 108): load_a(i)
    vo = vfl
    a(f"s_mul_i32 s{s_base}, s{s_tt}, {32*1280}")
    a(f"s_mul_i32 s{s_t0}, s{s_hg}, 320")
    a(f"s_add_u32 s{s_base}, s{s_base}, s{s_t0}")
    a(f"s_lshl_b32 s{s_t0}, s{s_w}, 4")
    a(f"s_add_u32 s{s_base}, s{s_base}, s{s_t0}")
    a(f"v_and_b32 v1, 31, v0")
    a(f"v_mul_u32_u24 v{vo}, 1280, v1")
    a(f"v_lshrrev_b32 v2, 5, v0")
    a(f"v_lshl_add_u32 v{vo}, v2, 3, v{vo}")
    a(f"v_mul_u32_u24 v{v_wa2}, 1280, v2")
    a(f"v_lshl_add_u32 v{v_wa2}, v1, 3, v{v_wa2}")
    a(f"v_mul_u32_u24 v1, 0xcccd, v0")
    a(f"v_lshrrev_b32 v1, 18, v1")
    a(f"v_mul_u32_u24 v2, 5, v1")
    a(f"v_sub_u32 v2, v0, v2")
    a(f"v_mul_u32_u24 v1, 1280, v1")
    a(f"v_lshl_add_u32 v{vx}, v2, 6, v1")
    a(f"s_mul_i32 s{s_t0}, s{s_w}, 5120")
    a(f"s_add_u32 s{s_t0}, s{s_t0}, {KVB + CH}")
    a(f"v_add_u32 v{v_wa3}, s{s_t0}, v{g.v_wa}")
    for r in range(4): a(f"v_mov_b32 v{vx+4+r}, -1")
    sync(0)
    def ffn(N, tag, kvat, pm, alt):
        ns = (N + 3) // 4
        cur["ns"] = ns
        for T in range(5): rd_t(100, T)
        assert EV + 3 <= kvat[-1] < ns and ns >= EV + 5
        for st in range(ns):
            if st in kvat: kv(4 + kvat.index(st), tag)
            n = min(4, N - 4 * st)
            for j in range(n):
                i = 100 + 4 * st + j
                if j == 3 and st + 1 < ns:
                    sync(st + 1, tag)
                    if st + 3 < ns: load_stage(st + 3)
                    else: load_w(28 + st + 3 - ns)
                mm(i, i + 1 if i + 1 < 100 + N else None, pm)
                if j == min(1, n - 1) and st in kvat: landed(4 + kvat.index(st))
            for i in range(4 * st + 8, min(4 * st + 12, N)): load_a(100 + i)
            if st == EV:
                a(f"s_lshl_b32 s{s_t0}, s{s_lid}, 2")
                a(f"s_add_u32 s{s_t0}, s{s_t0}, s{s_w}")
                a(f"s_mul_i32 s{s_t0}, s{s_t0}, 2560")
                a(f"s_add_u32 s{s_t0}, s{s_t0}, {WS_O}")
                for o in (0, 1024, 1536):
                    a(f"buffer_store_dwordx4 {vr(vx+4,4)}, v{g.v_l16}, {WS}, s{s_t0} offen offset:{o} sc1"); g.vm.issue("R")
            if st == EV + 1:
                a(f"s_bfe_u32 s{s_t0}, s{s_tt}, 0x30002")
                a(f"s_mul_i32 s{s_t0}, s{s_t0}, {20*1280}")
                a(f"s_add_u32 s{s_t0}, s{s_t0}, s{s_woff2}")
                a(f"s_add_u32 s{s_t1}, s{s_t0}, {10*1280}")
                a(f"buffer_load_dword v{vx+2}, v{vx}, s[{SWO}:{SWO+3}], s{s_t0} offen"); g.vm.issue("P")
                a(f"buffer_load_dword v{vx+3}, v{vx}, s[{SWO}:{SWO+3}], s{s_t1} offen"); g.vm.issue("P")
            if st == EV + 2:
                g.vm.wait("R")
                publish(a, f"G_pubr{tag}", 4, 4, s_lid, WS_FL + 32768, 1, value=f"s{s_delta}", vm=63, word=s_i4)
                g.lg.q = []
            if st == EV + 3:
                g.vm.wait("P", "R")
                for T in range(5):
                    a(f"buffer_load_dwordx2 {vr(vx+2*T,2)}, v{vo}, s[{SX}:{SX+3}], s{s_base} offen offset:{64*T}"); g.vm.issue("X")
            if st == ns - 2:
                a(f"s_lshl_b32 s{s_t0}, s{s_tt}, 2")
                a(f"s_add_u32 s{s_t0}, s{s_t0}, s{s_w}")
                a(f"s_lshl_b32 s{s_t0}, s{s_t0}, 7")
                a(f"s_add_u32 s{s_t0}, s{s_t0}, s{s_i4}")
                a(f"s_add_u32 s{s_cch}, s{s_t0}, {WS_FL + 32768}")
                a(f"buffer_load_dword v1, off, {WS}, s{s_cch} sc1"); g.vm.issue("M")
            for k in range(2):
                if st == ns - 1 - alt[k]:
                    lds_wait(a, f"G_alt{k}{tag}", SCW + 20 + 4 * k, NW_, 2, s_spin, s_t0, 2)
                    g.lg.q = []
                    load_w(31 + k)
            if st in (0, 3):
                stamp(a, {0: 10, 3: 11}[st])
                if STAMP: a("s_waitcnt lgkmcnt(0)")
        g.vm.wait("M")
    if NH != NL or KVH != KVL or PMH != PML or ALH != ALL:
        a(f"s_cmp_ge_u32 s{s_i4}, 8")
        a("s_cbranch_scc1 G_light")
        vq, lq = list(g.vm.q), list(g.lg.q)
        ffn(NH, "h", KVH, PMH, ALH)
        a("s_branch G_ffnend")
        a.label("G_light")
        g.vm.q, g.lg.q = vq, lq
        ffn(NL, "l", KVL, PML, ALL)
        a.label("G_ffnend")
    else:
        ffn(NH, "h", KVH, PMH, ALH)
    g.vm.q = []; g.lg.q = []
    stamp(a, 12)
    a("v_cmp_gt_u32 vcc, 1, v1")
    a("s_cmp_eq_u64 vcc, 0")
    a("s_cbranch_scc1 G_pollm_ok")
    poll(a, "G_pollm", f"buffer_load_dword v1, off, {WS}, s{s_cch} sc1", "v_cmp_gt_u32 vcc, 1, v1", 8)
    a(f"v_readfirstlane_b32 s{s_t0}, v1")
    a(f"s_cmp_lg_u32 s{s_t0}, s{s_delta}")
    a("s_cbranch_scc1 G_novote")
    if FASTO: lds_arrive(a, SC_K + 36, 2)
    a.label("G_novote")
    pk = g.v_act
    lds_arrive(a, SC_CNT + 96, 2)
    a(f"s_lshl_b32 s{s_t0}, s{s_w}, 2")
    a(f"s_cmp_eq_u32 s{s_t0}, s{s_i4}")
    a("s_cbranch_scc1 G_keep")
    a(f"s_lshl_b32 s{s_t0}, s{s_lid}, 2")
    a(f"s_add_u32 s{s_t0}, s{s_t0}, s{s_w}")
    a(f"s_mul_i32 s{s_t0}, s{s_t0}, 10240")
    a(f"s_add_u32 s{s_t0}, s{s_t0}, {WS_P}")
    def pick(name, body):
        if not NEARP: body(" sc1"); return
        a(f"s_cmp_eq_u32 s52, s{s_delta}")
        a(f"s_cbranch_scc1 {name}_n")
        body(" sc1")
        a(f"s_branch {name}_e")
        a.label(f"{name}_n")
        body(os.environ.get("NPOL", "") if name == "G_snd" else "")
        a.label(f"{name}_e")
    def snd(sc):
        a("s_nop 7")
        for k in range(10):
            for r in range(4): a(f"v_cvt_pk_bf16_f32 v{pk+4*k+r}, v{g.v_acc+8*k+2*r}, v{g.v_acc+8*k+2*r+1}")
            if k in (4, 8): a(f"s_add_u32 s{s_t0}, s{s_t0}, 4096")
            a(f"buffer_store_dwordx4 {vr(pk+4*k,4)}, v{g.v_l16}, {WS}, s{s_t0} offen offset:{(k%4)*1024}{sc}")
    pick("G_snd", snd)
    a.label("G_keep")
    def not_owner(lbl):
        a(f"s_lshl_b32 s{s_t1}, s{s_w}, 2")
        a(f"s_cmp_eq_u32 s{s_t1}, s{s_i4}")
        a(f"s_cbranch_scc1 {lbl}")
    lds_wait(a, "G_sync7", SC_CNT + 96, 4, 2, s_spin, s_t0, 1)
    g.lg.q = []
    a(f"v_add_u32 v{g.v_wa}, s{g.s_lds}, v{g.v_wa}")
    load_w(27)
    a(f"s_lshl_b32 s{s_t0}, s{s_tt}, 2")
    a(f"s_add_u32 s{s_t0}, s{s_t0}, s{s_w}")
    a(f"s_mul_i32 s{g.s_aoff}, s{s_t0}, 10240")
    a(f"s_add_u32 s{g.s_aoff}, s{g.s_aoff}, {WS_O}")
    a(f"s_add_u32 s{s_a0}, s{g.s_aoff}, 5120")
    a(f"s_lshl_b32 s{s_slot}, s{s_slot}, 2")
    a(f"s_add_u32 s{s_slot}, s{s_slot}, s{s_hg}")
    a(f"s_lshl_b32 s{s_t1}, s{s_slot}, 7")
    a(f"s_add_u32 s{s_t1}, s{s_t1}, s{s_i4}")
    a(f"s_add_u32 s{s_kvg}, s{s_t1}, {WS_FL + 32768}")
    not_owner("G_keep2")
    a(f"s_lshl_b32 s{s_t0}, s{s_lid}, 7")
    a(f"s_add_u32 s{s_t0}, s{s_t0}, s{s_t1}")
    a(f"s_add_u32 s{s_t0}, s{s_t0}, {WS_FL + 32768}")
    a("v_mov_b32 v1, 1")
    a("s_waitcnt vmcnt(5)")
    a("s_mov_b64 exec, 1")
    pick("G_sfl", lambda sc: a(f"buffer_store_dword v1, off, {WS}, s{s_t0}{sc}"))
    a("s_mov_b64 exec, -1")
    a.label("G_keep2")
    if TAILST: stamp(a, 8)
    assert (ALH[1] < 0) == (ALL[1] < 0) and ALH[0] >= 0 and ALL[0] >= 0
    rd_w(27); g.lg.drain(); load_w(30)
    if ALH[1] < 0:
        lds_wait(a, "G_alt1x", SCW + 24, NW_, 2, s_spin, s_t0, 2)
        load_w(32)
    def unpack(k0_, k1_):
        for k in range(k0_, k1_):
            for r in range(4):
                a(f"v_lshlrev_b32 v{g.v_acc+8*k+2*r}, 16, v{pk+4*k+r}")
                a(f"v_and_b32 v{g.v_acc+8*k+2*r+1}, s{s_cch}, v{pk+4*k+r}")
    a(f"s_mov_b32 s{s_cch}, 0xffff0000")
    not_owner("G_keep3")
    poll(a, "G_pollr", f"buffer_load_dword v1, off, {WS}, s{s_kvg} sc1", "v_cmp_gt_u32 vcc, 1, v1", 2)
    a(f"s_mul_i32 s{s_t0}, s{s_slot}, 40960")
    a(f"s_mul_i32 s{s_t1}, s{s_i4}, 2560")
    a(f"s_add_u32 s{s_t0}, s{s_t0}, s{s_t1}")
    a(f"s_add_u32 s{s_t0}, s{s_t0}, {WS_P}")
    for k in range(10):
        if k in (4, 8): a(f"s_add_u32 s{s_t0}, s{s_t0}, 4096")
        a(f"buffer_load_dwordx4 {vr(pk+4*k,4)}, v{g.v_l16}, {WS}, s{s_t0} offen offset:{(k%4)*1024} sc1")
    a("s_waitcnt vmcnt(5)")
    unpack(0, 5)
    a.label("G_keep3")
    stamp(a, 5)
    lds_wait(a, "G_trig0", SC_K + 32, TRIG[0], 2, s_spin, s_t0, 1)
    def o_poll(half):
        b = areg(27 + 5 * half)
        so = g.s_aoff if half == 0 else s_a0
        ld = [f"buffer_load_dwordx4 {vr(b+4*j,4)}, v{g.v_l16}, {WS}, s{so} offen offset:{j*1280} sc1" for j in range(4)]
        ld += [f"buffer_load_dwordx2 {vr(b+16+2*j,2)}, v{v_wa2}, {WS}, s{so} offen offset:{1024+2560*j} sc1" for j in range(2)]
        ck = [f"v_max3_u32 v{1+k}, v{b+3*k}, v{b+3*k+1}, v{b+3*k+2}" for k in range(3)]
        ck += [f"v_max3_u32 v{1+k}, v{1+k}, v{b+9+2*k}, v{b+10+2*k}" for k in range(3)]
        ck += [f"v_max3_u32 v1, v1, v{b+15}, v{b+16}", f"v_max3_u32 v2, v2, v{b+17}, v{b+18}", f"v_max_u32 v3, v3, v{b+19}",
               "v_max3_u32 v1, v1, v2, v3", "v_cmp_eq_u32 vcc, -1, v1"]
        return "\n".join(ld), "\n".join(ck)
    def rest():
        not_owner("G_keep4")
        a("s_waitcnt vmcnt(6)")
        unpack(5, 10)
        a.label("G_keep4")
    poll(a, "G_pollo0", *o_poll(0), OSL[0], between=rest)
    g.vm.q = []
    if TAILST: stamp(a, 6); a("s_waitcnt lgkmcnt(0)")
    lds_wait(a, "G_alt1", SCW + 28, NW_, 2, s_spin, s_t0, 1)
    load_w(33)
    for i in range(27, 31):
        mm(i, i + 1)
        if 28 <= i <= 30: load_w(i + 6)
    def last_first():
        for _ in range(6): g.vm.issue("O")
        mm(31, 32)
        stamp(a, 2)
    if SPEC:
        poll(a, "G_pollo1", *o_poll(1), OSL[1], between=last_first)
    else:
        mm(31, 32)
        stamp(a, 2)
        lds_wait(a, "G_trig1", SC_K + 32, TRIG[1], 2, s_spin, s_t0, 1)
        g.lg.q = []
        poll(a, "G_pollo1", *o_poll(1), OSL[1])
    g.vm.q = []
    a("s_setprio 3")
    stamp(a, 13)
    if STAMP: a("s_waitcnt lgkmcnt(0)")
    for i in range(32, 37): mm(i, i + 1 if i < 36 else None)
    stamp(a, 14)
    xf = g.v_act
    for T in range(5):
        a(f"v_lshlrev_b32 v{xf+4*T}, 16, v{vx+2*T}")
        a(f"v_and_b32 v{xf+4*T+1}, 0xffff0000, v{vx+2*T}")
        a(f"v_lshlrev_b32 v{xf+4*T+2}, 16, v{vx+2*T+1}")
        a(f"v_and_b32 v{xf+4*T+3}, 0xffff0000, v{vx+2*T+1}")
    for q in range(4):
        a(f"s_sub_u32 s{s_t0}, {q + 3}, s{s_w}")
        a(f"s_and_b32 s{s_t0}, s{s_t0}, 3")
        a(f"s_cmp_eq_u32 s{s_t0}, 3")
        a(f"s_cbranch_scc1 G_own{q}")
        a(f"s_mul_i32 s{s_t0}, s{s_t0}, 5120")
        a(f"s_add_u32 s{s_t0}, s{s_t0}, s{g.s_lds}")
        a(f"v_add_u32 v1, s{s_t0}, v{g.v_l16}")
        for T in range(5): a(f"ds_write_b128 v1, {vr(g.v_acc+16*T+4*q,4)} offset:{T*1024}")
        a(f"s_branch G_nxt{q}")
        a.label(f"G_own{q}")
        for T in range(5):
            for h in range(2): a(f"v_pk_add_f32 {vr(xf+4*T+2*h,2)}, {vr(xf+4*T+2*h,2)}, {vr(g.v_acc+16*T+4*q+2*h,2)}")
        a.label(f"G_nxt{q}")
    for k in range(3):
        a(f"s_add_u32 s{s_t0}, s{s_w}, {3 - k}")
        a(f"s_and_b32 s{s_t0}, s{s_t0}, 3")
        a(f"s_mul_i32 s{s_t0}, s{s_t0}, {PART}")
        a(f"s_add_u32 s{s_t0}, s{s_t0}, {STG + k*5120}")
        a(f"v_add_u32 v{4+k}, s{s_t0}, v{g.v_l16}")
    a("s_waitcnt lgkmcnt(0)")
    if TAILST: stamp(a, 10)
    a("s_barrier")
    if TAILST: stamp(a, 11); a("s_waitcnt lgkmcnt(0)")
    for T in range(5):
        for k in range(3):
            a(f"ds_read_b128 {vr(g.v_acc+16*T+4*k,4)}, v{4+k} offset:{T*1024}"); g.lg.issue(T)
    for T in range(5): fin_tile(a, g, T, xf, vo)
    if STAMP:
        if TAILST: stamp(a, 9)
        a("s_waitcnt vmcnt(0)"); stamp(a, 7); stamp(a, 15, True)
        a(f"s_add_u32 s{s_w}, s{s_w}, 8")
        stamp_flush(a, 1, SWS, s_w, 12, 16, gsel=[(9, False), (10, False), (12, False), (13, False), (14, False), (15, False)], goff=8)
    if os.environ.get("PADT"):
        a.label("G_pad")
        a("s_memrealtime s[68:69]")
        a("s_waitcnt lgkmcnt(0)")
        a("s_sub_u32 s68, s68, s66")
        a(f"s_cmp_lt_u32 s68, {os.environ['PADT']}")
        a("s_cbranch_scc1 G_pad")
    a("s_endpgm")
    return vx + 10

def fin_tile(a, g, T, xf, vo):
    b = g.v_acc + 16 * T
    g.lg.wait(T)
    for h in range(2):
        a(f"v_pk_add_f32 {vr(b+2*h,2)}, {vr(b+2*h,2)}, {vr(b+4+2*h,2)}")
        a(f"v_pk_add_f32 {vr(b+8+2*h,2)}, {vr(b+8+2*h,2)}, {vr(xf+4*T+2*h,2)}")
    for h in range(2):
        a(f"v_pk_add_f32 {vr(b+2*h,2)}, {vr(b+2*h,2)}, {vr(b+8+2*h,2)}")
    a(f"v_cvt_pk_bf16_f32 v{b}, v{b}, v{b+1}")
    a(f"v_cvt_pk_bf16_f32 v{b+1}, v{b+2}, v{b+3}")
    a(f"buffer_store_dwordx2 {vr(b,2)}, v{vo}, s[{SOUT}:{SOUT+3}], s{s_base} offen offset:{64*T}{os.environ.get('OUTP', '')}")

def gen_f(a, name="parallel_sum__grouped_kv_mqa__dense_activation_relu__prompt_kernel"):
    kernel_header(a, name)
    a("s_cmp_ge_u32 s2, 256")
    a("s_cbranch_scc1 F_end")
    stamp(a, 0, True); stamp(a, 1)
    if os.environ.get("PADT"): a("s_memrealtime s[66:67]")
    def clear_cnt(a):
        a("v_lshlrev_b32 v1, 2, v0")
        a(f"v_add_u32 v1, {SC_CNT}, v1")
        a("v_mov_b32 v2, 0")
        a("ds_write_b32 v1, v2")
        a("ds_write_b32 v1, v2 offset:256")
        a("v_cmp_lt_u32 vcc, 6, v0")
        a("v_cndmask_b32 v2, 0, 4, vcc")
        a("ds_write_b32 v1, v2 offset:512")
        a("s_waitcnt lgkmcnt(0)")
    def start_hook(a):
        clear_cnt(a)
        attn_addr(a)
        if TLBW:
            a(f"s_cmp_lg_u32 s{s_w}, 5")
            a("s_cbranch_scc1 F_notlb")
            for _ in range(TLBW - 1): a("s_barrier")
            a(f"v_lshlrev_b32 v1, {TLBS}, v0")
            a(f"v_add_u32 v1, 0x100, v1")
            for ptr, n in ((56, 1728 * 1280), (58, 640 * 1280), (60, 2048 * 1280)):
                srd(a, 16, ptr, n)
                a(f"buffer_load_dword v2, v1, s[16:19], 0 offen")
            for k in range((WS_SIZE >> TLBS) // 64 + 1):
                a(f"s_mov_b32 s35, {k * 64 << TLBS}")
                a(f"buffer_load_dword v2, v1, {WS}, s35 offen sc1")
            for _ in range(10 - (TLBW - 1)): a("s_barrier")
            a("s_waitcnt vmcnt(0)")
            a("s_branch F_attn")
            a.label("F_notlb")
    def pre_ba(a): attn_addr(a)
    def done_help(a): a("s_branch F_fetch")
    def done_stats(a): a("s_branch F_dry" if DRY else "s_branch F_attn")
    def done_comp(a): a("s_branch F_pub")
    def spare(a):
        ka2.produce_stats(a)
        clear_cnt(a)
        attn_addr(a)
        a(f"s_cmp_lg_u32 s{s_w}, 0")
        a("s_cbranch_scc1 F_sp1")
        ka2.dbg_check(a, "F_dbg")
        a.label("F_sp1")
        a("s_barrier")
        a(f"s_cmp_ge_u32 s{s_w}, 8")
        a("s_cbranch_scc1 F_gemm0")
        a(f"s_cmp_lt_u32 s{s_w}, 5")
        a("s_cbranch_scc1 F_fetch")
        fetch_kv(a, "s", False)
    phase_a(a, done_help, done_stats, done_comp, spare, start_hook, pre_ba, lambda a: fetch_kv(a, 'i', True))
    a.label("F_fetch")
    fetch(a)
    a.label("F_attn")
    attention(a)
    if DRY:
        a.label("F_dry")
        a(f"s_cmp_eq_u32 s{s_w}, 4")
        a("s_cbranch_scc1 F_attn")
        a("s_mov_b64 exec, 0")
        a(f"s_mov_b32 s{s_c}, 7")
        a(f"s_cmp_eq_u32 s{s_w}, 5")
        a("s_cbranch_scc1 B_loop")
        a(f"s_cmp_eq_u32 s{s_w}, 6")
        a("s_cbranch_scc1 B_u3")
        a("s_branch B_synced")
        a.label("F_dryret")
        a("s_mov_b64 exec, -1")
        a("s_nop 7")
        a("s_nop 7")
        a("s_branch F_attn")
    a.label("F_pub")
    stamp(a, 3)
    if WFL:
        a(f"s_and_b32 s{s_t0}, s3, 15")
        a(f"s_cmp_eq_u32 s{s_t0}, 14")
        a("s_cbranch_scc1 F_pubkv")
        a(f"s_lshl_b32 s{s_t0}, s3, 5")
        a(f"s_add_u32 s{s_t0}, s{s_t0}, s{s_w}")
        a(f"s_lshl_b32 s{s_t0}, s{s_t0}, 2")
        a(f"s_add_u32 s{s_t0}, s{s_t0}, {WS_FL - 32}")
        a("v_mov_b32 v1, 1")
        a("s_mov_b64 exec, 1")
        a("s_waitcnt vmcnt(0)")
        a(f"buffer_store_dword v1, off, {WS}, s{s_t0} sc1")
        lds_arrive(a, SC_CNT, 2)
        a("s_branch F_pub2")
        a.label("F_pubkv")
    publish(a, "F_pub2", 0, 4, 3, WS_FL, 1)
    stamp(a, 4)
    lds_wait(a, "F_all", SC_CNT, 4, 2, s_spin, s_t0)
    a.label("F_gemm0")
    a("s_mov_b32 s53, -1")
    a.label("F_gemm")
    nv = gemm(a)
    a.label("F_end")
    a("s_endpgm")
    assert nv <= 168, nv
    return dict(name=name, grid=256, block=768, lds=LDS_A, vgpr=168, sgpr=102 if STAMP else 72, single=True)
```

```python
import math, struct
from asmlib import *

WS_QH = 0
QH_TT = 148 * 1024
WS_KV = 0xA00000
KV_TILE = 3072
WS_O = 0xB00000
O_TT = 40 * 1024
WS_P = 0x1400000
WS_F = 0xE00000
WS_END = WS_F + 2048 * 640 * 4
WS_STAT = 0x1320000
WS_TEAM = 0x1330000
WS_FL = 0x1300000
import os
STAMP = int(os.environ.get("STAMP", "0"))
WS_SIZE = 0x3000000 if STAMP else 0x1E00000
WS_ST = 0x2800000


def f32bits(x): return struct.unpack("<I", struct.pack("<f", x))[0]
QSCALE = math.log2(math.e) / math.sqrt(20.0)

class Cnt:
    def __init__(self, a, name, maxv):
        self.a = a; self.name = name; self.q = []; self.maxv = maxv
    def issue(self, tag): self.q.append(tag)
    def wait(self, *tags):
        last = -1
        for i, t in enumerate(self.q):
            if t in tags: last = i
        if last < 0: return
        n = len(self.q) - 1 - last
        n = min(n, self.maxv)
        self.a(f"s_waitcnt {self.name}({n})")
        self.q = self.q[len(self.q) - n:] if n else []
    def drain(self):
        self.a(f"s_waitcnt {self.name}(0)"); self.q = []

def srd(a, d, base, nbytes):
    a(f"s_mov_b32 s{d}, s{base}")
    a(f"s_and_b32 s{d+1}, s{base+1}, 0xffff")
    a(f"s_mov_b32 s{d+2}, {nbytes}")
    a(f"s_mov_b32 s{d+3}, 0x20000")

def stamp(a, k, real=False):
    if not STAMP: return
    if STAMP >= 2: real = real != 'cyc'
    a(f"s_mem{'real' if real else ''}time s[{64+2*k}:{65+2*k}]")
def stamp_flush(a, kern, SWS, s_wave, nw, n=16, vt=1, gsel=None, goff=1):
    if not STAMP: return
    if os.environ.get("PADK"):
        who, k = os.environ["PADK"][0], int(os.environ["PADK"][1:])
        if (who == "g") != (gsel is not None): return
        lbl = f"PAD_{len(a.ins)}"
        a("s_waitcnt lgkmcnt(0)")
        px = os.environ.get("PADX")
        if px:
            a("s_and_b32 s100, s2, 7")
            a(f"s_cmp_lg_u32 s100, {px}")
            a(f"s_cbranch_scc1 {lbl}e")
        a.label(lbl)
        a("s_memrealtime s[100:101]")
        a("s_waitcnt lgkmcnt(0)")
        a(f"s_sub_u32 s100, s100, s{64+2*k}")
        a("s_cmp_lt_u32 s100, 6000")
        a(f"s_cbranch_scc1 {lbl}")
        a.label(lbl + "e")
        return
    if STAMP == 3:
        lbl = f"ST3_{len(a.ins)}"
        a("s_waitcnt lgkmcnt(0)")
        a(f"s_and_b32 s100, s{s_wave}, 3")
        a(f"s_cmp_lg_u32 s100, 0")
        a(f"s_cbranch_scc1 {lbl}")
        a(f"s_cmp_eq_u32 s{s_wave}, 0")
        a(f"s_cbranch_scc1 {lbl}")
        srd(a, 24, 62, 256)
        a("s_mov_b64 exec, 1")
        a(f"v_mov_b32 v{vt}, 0")
        sel = [(0, True), (0, False), (4, False), (8, False), (9, False), (11, False), (13, False)] if gsel is None else gsel
        for j, (k, neg) in enumerate(sel):
            a(f"v_mov_b32 v{vt+1}, s{64+2*k}")
            if neg: a(f"v_not_b32 v{vt+1}, v{vt+1}")
            a(f"buffer_atomic_umax v{vt+1}, v{vt}, s[24:27], 0 offen offset:{4*(goff+j)}")
        a.label(lbl)
        return
    a("s_mov_b64 exec, -1")
    a("s_waitcnt lgkmcnt(0)")
    a(f"s_mul_i32 s100, s2, {nw}")
    a(f"s_add_u32 s100, s100, s{s_wave}")
    a(f"s_lshl_b32 s100, s100, 6")
    a(f"s_add_u32 s100, s100, {WS_ST + kern*0x40000}")
    a(f"v_mov_b32 v{vt}, 0")
    for k in range(n):
        a(f"v_mov_b32 v{vt+1}, s{64+2*k}")
        a(f"buffer_store_dword v{vt+1}, v{vt}, s[{SWS}:{SWS+3}], s100 offen offset:{4*k}")

SPIN = 20000
def lds_arrive(a, addr, t):
    a("s_mov_b64 exec, 1")
    a(f"v_mov_b32 v{t}, {addr}")
    a(f"v_mov_b32 v{t+1}, 1")
    a(f"ds_add_u32 v{t}, v{t+1}")
    a("s_mov_b64 exec, -1")
def lds_wait(a, name, addr, target, t, s_spin, s_tmp, sleep=1):
    a(f"v_mov_b32 v{t}, {addr}")
    a(f"s_mov_b32 s{s_spin}, {SPIN * 40}")
    a.label(name)
    a(f"ds_read_b32 v{t+1}, v{t}")
    a("s_waitcnt lgkmcnt(0)")
    a(f"v_readfirstlane_b32 s{s_tmp}, v{t+1}")
    a(f"s_cmp_ge_u32 s{s_tmp}, {target}")
    a(f"s_cbranch_scc1 {name}_ok")
    if sleep: a(f"s_sleep {sleep}")
    a(f"s_sub_u32 s{s_spin}, s{s_spin}, 1")
    a(f"s_cmp_lg_u32 s{s_spin}, 0")
    a(f"s_cbranch_scc1 {name}")
    a.label(name + "_ok")

def poll(a, name, load, cmp, sleep=2, s_spin=42, between=None):
    a(f"s_mov_b32 s{s_spin}, {SPIN}")
    if between:
        a(load)
        between()
        a(f"s_branch {name}_chk")
    a.label(name)
    a(load)
    if between: a.label(name + "_chk")
    a("s_waitcnt vmcnt(0)")
    a(cmp)
    a("s_cmp_eq_u64 vcc, 0")
    a(f"s_cbranch_scc1 {name}_ok")
    if sleep: a(f"s_sleep {sleep}")
    a(f"s_sub_u32 s{s_spin}, s{s_spin}, 1")
    a(f"s_cmp_lg_u32 s{s_spin}, 0")
    a(f"s_cbranch_scc1 {name}")
    a.label(name + "_ok")
```

```python
from common import *

SLOT = 40960
LA = int(os.environ.get('LA', '2'))
SCR = 159744
SC_NM, SC_RS, SC_CS = SCR, SCR + 512, SCR + 1024
LDS_A = SCR + 4096
SC_CNT = SCR + 3072
ST = ' sc1'
ROT = int(os.environ.get('ROT', '0'))
NSB = 0
GATH = int(os.environ.get('GATH', '8'))
PD = int(os.environ.get('PD', '3'))
GMAP = [int(c, 16) for c in os.environ.get('GMAP', '9abf0123cde45678')]
TEAM = int(os.environ.get('TEAM', '0'))
QS = int(os.environ.get('QS', '0'))
QMK = int(os.environ.get('QMK', '1'))
AMAP = int(os.environ.get('AMAP', '2'))
GD = int(os.environ.get('GD', '5'))
SDOT = int(os.environ.get('SDOT', '3'))
HOLDH = int(os.environ.get('HOLDH', '1'))
LATEBIT = os.environ.get('LATEBIT', '1')
AX = os.environ.get('AX', '')
PF = int(os.environ.get('PF', '0'))

SX, SW, SO, SW2 = 4, 8, 12, 16
s_w, s_rb, s_g = 32, 33, 34
s_it, s_slot, s_xoff, s_woff, s_wstep = 35, 36, 37, 38, 39
s_m0x, s_m0w, s_delta, s_relu, s_scale, s_t0, s_t1, s_out, s_dslot, s_cslot, s_ch, s_xbase, s_stride, s_col = range(40, 54)
s_tab = 54

ROLES = {
    "h": (3, 384, 3), "q": (2, 256, 2), "kv": (1, 64, 1)}

def w_read_addr(a, role, dst, s_half, tmp=1):
    NTW, RB, _ = ROLES[role]
    t = tmp
    a(f"v_lshrrev_b32 v{t}, 5, v0")
    a(f"v_bfe_u32 v{t+1}, v0, 2, 2")
    a(f"v_lshl_add_u32 v{t}, v{t}, 3, v{t+1}")
    a(f"v_mul_u32_u24 v{t}, {RB}, v{t}")
    a(f"v_bfe_u32 v{t+2}, v0, 4, 1")
    a(f"v_lshl_add_u32 v{t}, v{t+2}, 5, v{t}")
    a(f"v_and_b32 v{t+2}, 3, v0")
    a(f"v_lshl_add_u32 v{t}, v{t+2}, 3, v{t}")
    a(f"v_add_u32 v{t}, {16384 + LA*SLOT}, v{t}")
    if role == "kv":
        a(f"s_lshl_b32 s{s_t0}, s{s_half}, 12")
        a(f"v_add_u32 v{dst}, s{s_t0}, v{t}")
        return
    if role == "h": a(f"v_lshrrev_b32 v{t+1}, 1, v{t+1}")
    a(f"s_mul_i32 s{s_t0}, s{s_half}, {NTW}")
    for T in range(NTW):
        a(f"s_add_u32 s{s_t1}, s{s_t0}, {T}")
        a(f"v_xor_b32 v{t+2}, s{s_t1}, v{t+1}")
        a(f"v_lshl_add_u32 v{dst+T}, v{t+2}, 6, v{t}")

def slot_advance(regs):
    L = [f"s_cmp_eq_u32 s{s_slot}, {LA*SLOT}",
         f"s_cselect_b32 s{s_delta}, {(-LA*SLOT) & 0xffffffff}, s{s_cslot}",
         f"s_add_u32 s{s_slot}, s{s_slot}, s{s_delta}"]
    return L + [f"v_add_u32 v{r}, s{s_delta}, v{r}" for r in regs]

def ready(a):
    a("s_waitcnt lgkmcnt(0)")
    srd(a, SX, 20, 2048 * 1280)
    srd(a, SO, 30, WS_SIZE)

def loader(a, role, done, pre_ba, wsrd):
    NTW, RB, NW = ROLES[role]
    NW *= 2
    ND = 4 + NW
    v_xd, v_wd = 4, 8
    a(f"v_lshrrev_b32 v1, 3, v0")
    a(f"s_lshl_b32 s{s_t0}, s{s_w}, 5")
    a(f"v_add_u32 v1, s{s_t0}, v1")
    a(f"v_mul_u32_u24 v1, 1280, v1")
    a(f"v_and_b32 v2, 7, v0")
    a(f"v_lshrrev_b32 v3, 4, v0")
    a(f"v_xor_b32 v2, v2, v3")
    a(f"v_lshl_add_u32 v{v_xd}, v2, 4, v1")
    a(f"v_xor_b32 v2, 4, v2")
    a(f"v_lshl_add_u32 v{v_xd+1}, v2, 4, v1")
    a(f"v_add_u32 v{v_xd+1}, {10240-1024}, v{v_xd+1}")
    a(f"v_add_u32 v{v_xd+2}, {2*(10240-1024)}, v{v_xd}")
    a(f"v_add_u32 v{v_xd+3}, {2*(10240-1024)}, v{v_xd+1}")
    a(f"s_lshl_b32 s{s_m0x}, s{s_w}, 12")
    def dma_x():
        a(f"s_and_b32 s{s_ch}, s{s_tab}, 15")
        a(f"s_lshr_b64 s[{s_tab}:{s_tab+1}], s[{s_tab}:{s_tab+1}], 4")
        a(f"s_lshl_b32 s{s_xoff}, s{s_ch}, 7")
        a(f"s_add_u32 s{s_xoff}, s{s_xoff}, s{s_xbase}")
        a(f"s_add_u32 m0, s{s_dslot}, s{s_m0x}")
        a(f"s_mul_i32 s{s_woff}, s{s_ch}, s{s_wstep}")
        for e in range(4):
            a(f"buffer_load_dwordx4 v{v_xd+e}, s[{SX}:{SX+3}], s{s_xoff} offen offset:{e*1024} lds")
    def dma_w():
        a(f"s_add_u32 m0, s{s_dslot}, s{s_m0w}")
        if role == "kv":
            a(f"buffer_load_dwordx4 v{v_wd}, s[{SW}:{SW+3}], s{s_woff} offen lds")
            a(f"s_add_u32 m0, m0, 4096")
            a(f"buffer_load_dwordx4 v{v_wd}, s[{SW2}:{SW2+3}], s{s_woff} offen lds")
        else:
            for m in range(NW):
                if m == 4: a(f"s_add_u32 m0, m0, 4096")
                a(f"buffer_load_dwordx4 v{v_wd+m}, s[{SW}:{SW+3}], s{s_woff} offen offset:{(m%4)*1024} lds")
    a(f"s_mov_b32 s{s_dslot}, 0")
    if role == "kv":
        a(f"s_lshl_b32 s{s_m0w}, s{s_w}, 10")
        a(f"s_add_u32 s{s_m0w}, s{s_m0w}, 16384")
        a(f"v_lshrrev_b32 v1, 2, v0")
        a(f"s_lshl_b32 s{s_t0}, s{s_w}, 4")
        a(f"v_add_u32 v1, s{s_t0}, v1")
        a(f"v_mul_u32_u24 v1, 40, v1")
        a(f"v_and_b32 v2, 3, v0")
        a(f"v_lshl_add_u32 v{v_wd}, v2, 4, v1")
    else:
        PR = RB // 16
        a(f"s_mul_i32 s{s_m0w}, s{s_w}, {NW*1024}")
        a(f"s_add_u32 s{s_m0w}, s{s_m0w}, 16384")
        a(f"s_lshl_b32 s{s_t0}, s{s_w}, 4")
        a(f"s_mul_i32 s{s_t0}, s{s_t0}, s{s_stride}")
        a(f"s_add_u32 s{s_t0}, s{s_t0}, s{s_col}")
        for m in range(NW // 2):
            a(f"v_add_u32 v1, {64*m}, v0")
            if PR == 16:
                a(f"v_lshrrev_b32 v2, 4, v1")
                a(f"v_and_b32 v3, 15, v1")
                a(f"v_and_b32 v1, 3, v2")
            else:
                a(f"v_mul_u32_u24 v2, 0xaaab, v1")
                a(f"v_lshrrev_b32 v2, 20, v2")
                a(f"v_mul_u32_u24 v3, 24, v2")
                a(f"v_sub_u32 v3, v1, v3")
                a(f"v_bfe_u32 v1, v2, 1, 1")
            a(f"v_lshlrev_b32 v1, 2, v1")
            a(f"v_xor_b32 v3, v3, v1")
            a(f"v_mul_lo_u32 v2, v2, s{s_stride}")
            a(f"v_lshl_add_u32 v2, v3, 4, v2")
            a(f"v_add_u32 v{v_wd+m}, s{s_t0}, v2")
        stride = 3456 if role == "h" else 1280
        for m in range(NW // 2, NW):
            a(f"v_add_u32 v{v_wd+m}, {8*stride - (m%4)*1024}, v{v_wd+m-NW//2}")
        for m in range(1, NW // 2): a(f"v_subrev_u32 v{v_wd+m}, {m*1024}, v{v_wd+m}")
    a("s_waitcnt lgkmcnt(0)")
    srd(a, SX, 20, 2048 * 1280)
    wsrd()
    dma_x(); dma_w()
    srd(a, SO, 30, WS_SIZE)
    for c in range(1, LA):
        a(f"s_mov_b32 s{s_dslot}, {c*SLOT}")
        dma_x(); dma_w()
    stamp(a, 2)
    a(f"s_mov_b32 s{s_it}, 0")
    a(f"s_mov_b32 s{s_dslot}, {LA*SLOT}")
    a.label(f"AL_loop_{role}")
    a(f"s_waitcnt vmcnt({(LA-1)*ND})")
    a("s_barrier")
    if "nodma" not in AX: dma_x(); dma_w()
    a(f"s_add_u32 s{s_dslot}, s{s_dslot}, s{s_cslot}")
    a(f"s_cmp_eq_u32 s{s_dslot}, {(LA+1)*SLOT}")
    a(f"s_cselect_b32 s{s_dslot}, 0, s{s_dslot}")
    a(f"s_add_u32 s{s_it}, s{s_it}, 1")
    a(f"s_cmp_lt_u32 s{s_it}, {10-LA}")
    a(f"s_cbranch_scc1 AL_loop_{role}")
    for k in range(LA):
        if k == LA - 1:
            a("s_waitcnt vmcnt(0)")
            pre_ba(a)
        else: a(f"s_waitcnt vmcnt({(LA-1-k)*ND})")
        a("s_barrier")
    stamp(a, 3)
    done(a)

SDBG = 16
def dbg_check(a, name, between=None):
    srd(a, SDBG, 62, 256)
    a("v_lshlrev_b32 v1, 2, v0")
    a("s_mov_b32 exec_lo, 0xffff")
    a("s_mov_b32 exec_hi, 0")
    poll(a, name, f"buffer_load_dword v2, v1, s[{SDBG}:{SDBG+3}], 0 offen sc1", "v_cmp_ne_u32 vcc, 1, v2", 8, between=between)
    a("s_mov_b64 exec, -1")

def idle(a, done, last):
    nb0 = 0
    if QS:
        nb0 = QMK
        for it in range(QMK):
            a("s_barrier")
            if it == 0: stamp(a, 4)
        a(f"s_sub_u32 s{s_t0}, s{s_g}, 9")
        a(f"s_cmp_ge_u32 s{s_t0}, 5")
        a("s_cbranch_scc1 AI_nomark")
        a(f"s_lshl_b32 s{s_t1}, s{s_rb}, 2")
        a(f"s_add_u32 s{s_t1}, s{s_t1}, s{s_w}")
        a(f"s_sub_u32 s{s_t1}, s{s_t1}, 4")
        a(f"s_mul_i32 s{s_t1}, s{s_t1}, {QH_TT}")
        a(f"s_lshl_b32 s{s_t0}, s{s_t0}, 13")
        a(f"s_add_u32 s{s_t0}, s{s_t0}, s{s_t1}")
        a(f"s_add_u32 s{s_t1}, s{s_t0}, 4096")
        for r in range(12, 16): a(f"v_mov_b32 v{r}, -1")
        a(f"v_lshlrev_b32 v1, 4, v0")
        for k in range(8): a(f"buffer_store_dwordx4 v[12:15], v1, s[{SO}:{SO+3}], s{s_t0 if k < 4 else s_t1} offen offset:{(k%4)*1024} sc1")
        a.label("AI_nomark")
    a(f"s_cmp_eq_u32 s{s_w}, 4")
    a("s_cbranch_scc1 AI_w4")
    for it in range(nb0, 9):
        if it == 8: a("s_waitcnt vmcnt(0)")
        a("s_barrier")
        if it in (0, 4): stamp(a, {0: 4, 4: 6}[it])
    last(a)
    a.label("AI_w4")
    a("s_setprio 3")
    bar = lambda: a("s_barrier")
    for it in range(nb0, GD): bar()
    dbg_check(a, "AI_dbg", bar)
    for it in range(GD + 1, GATH): bar()
    a(f"s_lshl_b32 s{s_t0}, s{s_rb}, 10")
    a(f"s_add_u32 s{s_t0}, s{s_t0}, {WS_STAT}")
    a(f"v_lshlrev_b32 v1, 3, v0")
    O = f"s[{SO}:{SO+3}]"
    poll(a, "AI_stat", f"buffer_load_dwordx2 v[4:5], v1, {O}, s{s_t0} offen sc1\nbuffer_load_dwordx2 v[6:7], v1, {O}, s{s_t0} offen offset:512 sc1",
         "v_min_u32 v2, v5, v7\nv_cmp_eq_u32 vcc, 0, v2", 2, between=bar)
    a(f"v_lshlrev_b32 v1, 2, v0")
    a(f"v_add_u32 v1, {SC_NM}, v1")
    a(f"v_mul_f32 v5, s{s_scale}, v5")
    a(f"v_mul_f32 v7, s{s_scale}, v7")
    a(f"ds_write_b32 v1, v4")
    a(f"ds_write_b32 v1, v6 offset:256")
    a(f"ds_write_b32 v1, v5 offset:512")
    a(f"ds_write_b32 v1, v7 offset:768")
    a("s_waitcnt lgkmcnt(0)")
    stamp(a, 3); stamp(a, 4); stamp(a, 6)
    for it in range(GATH + 1, 10): bar()
    a("s_setprio 0")
    done(a)

def clear_words(a):
    O = f"s[{SO}:{SO+3}]"
    for r in range(4, 8): a(f"v_mov_b32 v{r}, 0")
    a(f"v_lshlrev_b32 v1, 4, v0")
    a(f"s_lshl_b32 s{s_t0}, s{s_rb}, 10")
    a(f"s_add_u32 s{s_t0}, s{s_t0}, {WS_STAT}")
    a(f"buffer_store_dwordx4 v[4:7], v1, {O}, s{s_t0} offen sc1")
    a(f"v_lshlrev_b32 v1, 7, v0")
    a(f"s_lshl_b32 s{s_t0}, s{s_rb}, 12")
    a(f"s_add_u32 s{s_t0}, s{s_t0}, {WS_FL}")
    a("s_mov_b32 exec_hi, 0")
    a(f"buffer_store_dwordx4 v[4:7], v1, {O}, s{s_t0} offen sc1")
    a("s_barrier")
    srd(a, SDBG, 62, 256)
    a(f"v_mov_b32 v3, 1")
    a(f"s_lshl_b32 s{s_t0}, s{s_rb}, 2")
    stamp(a, 5)
    a("s_waitcnt vmcnt(0)")
    stamp(a, 6)
    a("s_mov_b64 exec, 1")
    a(f"buffer_store_dword v3, v4, s[{SDBG}:{SDBG+3}], s{s_t0} offen sc1")
    a("s_mov_b64 exec, -1")
    if STAMP: a("s_waitcnt vmcnt(0)")
    stamp(a, 3)

def produce_stats(a):
    O = f"s[{SO}:{SO+3}]"
    a(f"s_cmp_ge_u32 s{s_w}, 8")
    a("s_cbranch_scc1 AP_clear")
    a(f"v_lshrrev_b32 v1, 3, v0")
    a(f"s_lshl_b32 s{s_t0}, s{s_w}, 4")
    a(f"v_add_u32 v1, s{s_t0}, v1")
    a(f"v_mul_u32_u24 v1, 1280, v1")
    a(f"v_and_b32 v2, 7, v0")
    a(f"v_lshl_add_u32 v1, v2, 4, v1")
    a(f"s_add_u32 s{s_t0}, s{s_xbase}, 10240")
    XR, AS = 16, 8
    def ld(c):
        a(f"s_and_b32 s{s_ch}, s{s_tab}, 15")
        a(f"s_lshr_b64 s[{s_tab}:{s_tab+1}], s[{s_tab}:{s_tab+1}], 4")
        a(f"s_lshl_b32 s{s_ch}, s{s_ch}, 7")
        a(f"s_add_u32 s{s_xoff}, s{s_ch}, s{s_xbase}")
        a(f"s_add_u32 s{s_woff}, s{s_ch}, s{s_t0}")
        for e in range(2):
            a(f"buffer_load_dwordx4 {vr(XR+8*c+4*e,4)}, v1, s[{SX}:{SX+3}], s{s_woff if e else s_xoff} offen")
    for c in range(PD): ld(c)
    a(f"s_mov_b32 s{s_relu}, 0x3f803f80")
    for r in range(AS, AS + 8): a(f"v_mov_b32 v{r}, 0")
    for c in range(10):
        a(f"s_waitcnt vmcnt({2*(min(c+PD, 10)-c-1)})")
        if c + PD < 10: ld(c + PD)
        for e in range(2):
            for i in range(4):
                x = XR + 8 * c + 4 * e + i
                a(f"v_dot2c_f32_bf16 v{AS+2*e+(i&1)}, s{s_relu}, v{x}")
                a(f"v_dot2c_f32_bf16 v{AS+4+2*e+(i&1)}, v{x}, v{x}")
    vals = [AS, AS + 2, AS + 4, AS + 6]
    for r in vals: a(f"v_add_f32 v{r}, v{r}, v{r+1}")
    for ctl in ("quad_perm:[1,0,3,2]", "quad_perm:[2,3,0,1]", "row_half_mirror"):
        for r in vals: a(f"v_add_f32_dpp v{r}, v{r}, v{r} {ctl} row_mask:0xf bank_mask:0xf")
    a(f"v_and_b32 v2, 1, v0")
    a(f"v_cmp_eq_u32 vcc, 1, v2")
    a(f"v_cndmask_b32 v4, v{AS}, v{AS+2}, vcc")
    a(f"v_cndmask_b32 v5, v{AS+4}, v{AS+6}, vcc")
    inv = f32bits(1.0 / 640.0)
    a(f"v_mul_f32 v4, {hex(inv)}, v4")
    a(f"v_mul_f32 v5, {hex(inv)}, v5")
    a(f"v_fma_f32 v5, -v4, v4, v5")
    a(f"v_max_f32 v5, 0, v5")
    a(f"v_cvt_pk_bf16_f32 v5, v5, v5")
    a(f"v_lshlrev_b32 v5, 16, v5")
    a(f"v_add_f32 v5, {hex(f32bits(1e-5))}, v5")
    a(f"v_cvt_pk_bf16_f32 v5, v5, v5")
    a(f"v_lshlrev_b32 v5, 16, v5")
    a(f"v_sqrt_f32 v5, v5")
    a(f"v_cvt_pk_bf16_f32 v5, v5, v5")
    a(f"v_lshlrev_b32 v5, 16, v5")
    a(f"v_rcp_f32 v5, v5")
    a(f"v_cvt_pk_bf16_f32 v4, -v4, -v4")
    a(f"v_lshrrev_b32 v1, 3, v0")
    a(f"v_lshl_add_u32 v1, v2, 3, v1")
    a(f"v_lshlrev_b32 v1, 3, v1")
    a(f"v_or_b32 v5, 1, v5")
    a(f"s_lshl_b32 s{s_t0}, s{s_rb}, 10")
    a(f"s_lshl_b32 s{s_t1}, s{s_w}, 7")
    a(f"s_add_u32 s{s_t0}, s{s_t0}, s{s_t1}")
    a(f"s_add_u32 s{s_t0}, s{s_t0}, {WS_STAT}")
    a("s_barrier")
    a("s_mov_b32 exec_lo, 0x03030303")
    a("s_mov_b32 exec_hi, 0x03030303")
    a(f"buffer_store_dwordx2 v[4:5], v1, {O}, s{s_t0} offen sc1")
    a("s_mov_b64 exec, -1")
    stamp(a, 3)
    a("s_branch AP_done")
    a.label("AP_clear")
    a.label("AP_bar")
    a("s_barrier")
    a.label("AP_done")

def prefetch(a, role):
    NTW, RB, _ = ROLES[role]
    c = s_t1
    a(f"s_sub_u32 s{c}, s{s_w}, 8")
    a(f"s_lshr_b32 s{s_t0}, s2, 6")
    a(f"s_lshl_b32 s{s_t0}, s{s_t0}, 2")
    a(f"s_add_u32 s{s_t0}, s{s_t0}, s{c}")
    a(f"s_mul_i32 s{s_t0}, s{s_t0}, {8*1280}")
    a(f"s_add_u32 s{s_t0}, s{s_t0}, s{s_xbase}")
    a(f"v_and_b32 v1, 7, v0")
    a(f"v_mul_u32_u24 v1, 1280, v1")
    a(f"v_lshrrev_b32 v2, 3, v0")
    a(f"v_lshl_add_u32 v3, v2, 7, v1")
    a(f"buffer_load_dword v5, v3, s[{SX}:{SX+3}], s{s_t0} offen offset:128")
    if role != "kv":
        NL = RB // 128
        a(f"v_mul_u32_u24 v2, {65536 // (2*NL) + 1}, v0")
        a(f"v_lshrrev_b32 v2, 16, v2")
        a(f"v_mul_u32_u24 v3, {2*NL}, v2")
        a(f"v_sub_u32 v3, v0, v3")
        a(f"v_and_b32 v4, 1, v3")
        a(f"v_lshrrev_b32 v3, 1, v3")
        a(f"v_lshl_add_u32 v2, v2, 6, v4")
        a(f"v_mul_lo_u32 v2, v2, s{s_stride}")
        a(f"v_lshl_add_u32 v2, v3, 7, v2")
        a(f"s_bfe_u32 s{s_t0}, s2, 0x30003")
        a(f"s_lshl_b32 s{s_t0}, s{s_t0}, 2")
        a(f"s_add_u32 s{s_t0}, s{s_t0}, s{c}")
        a(f"s_lshl_b32 s{s_t0}, s{s_t0}, 1")
        a(f"s_mul_i32 s{s_t0}, s{s_t0}, s{s_stride}")
        a(f"s_add_u32 s{s_delta}, s{s_t0}, s{s_col}")
        a(f"buffer_load_dword v7, v2, s[{SW}:{SW+3}], s{s_delta} offen")
    a(f"s_lshr_b32 s{s_t0}, s2, 6")
    a(f"s_lshl_b32 s{s_t0}, s{s_t0}, 2")
    a(f"s_add_u32 s{s_t0}, s{s_t0}, s{c}")
    a(f"s_mul_i32 s{s_t0}, s{s_t0}, {8*1280}")
    a(f"s_add_u32 s{s_t0}, s{s_t0}, s{s_xbase}")
    a(f"buffer_load_dword v15, v1, s[{SX}:{SX+3}], s{s_t0} offen offset:1152")

def compute(a, role, done, vmode=False):
    NTW, RB, _ = ROLES[role]
    tag = role + ("v" if vmode else "")
    v_xa, v_wa = 8, 12
    XF = [16, 36]; WF = [24, 44]
    SEL, CSA, ACC = 56, 60, 72
    lg = Cnt(a, "lgkmcnt", 15)
    s_rp, s_half = s_m0x, s_m0w
    if NSB: a("s_barrier")
    if PF: prefetch(a, role)
    for _ in range(NSB - 1): a("s_barrier")
    a(f"v_and_b32 v1, 31, v0")
    a(f"v_lshrrev_b32 v2, 5, v0")
    a(f"v_bfe_u32 v3, v0, 1, 3")
    a(f"v_xor_b32 v3, v3, v2")
    a(f"v_lshlrev_b32 v3, 4, v3")
    a(f"v_lshlrev_b32 v1, 7, v1")
    a(f"s_lshl_b32 s{s_t0}, s{s_rp}, 13")
    a(f"s_add_u32 s{s_t0}, s{s_t0}, {LA*SLOT}")
    a(f"v_add_u32 v1, s{s_t0}, v1")
    for j in range(4):
        a(f"v_xor_b32 v4, {j<<5}, v3")
        a(f"v_add_u32 v{v_xa+j}, v1, v4")
    w_read_addr(a, role, v_wa, s_half)
    a(f"v_lshrrev_b32 v1, 2, v0")
    a(f"v_lshrrev_b32 v2, 4, v0")
    a(f"v_xor_b32 v1, v1, v2")
    a(f"v_and_b32 v1, 1, v1")
    a(f"v_subrev_u32 v1, 1, v1")
    for i in range(4): a(f"v_and_b32 v{SEL+i}, 0x3f803f80, v1")
    for r in range(XF[1], WF[1] + 4 * NTW): a(f"v_mov_b32 v{r}, 0")
    z = vr(XF[1], 4)
    for t in range(2 * NTW): a(f"v_mfma_f32_32x32x16_bf16 {vr(ACC+16*t,16)}, {z}, {z}, 0")
    for T in range(NTW): a(f"v_mfma_f32_16x16x32_bf16 {vr(CSA+4*T,4)}, {z}, {z}, 0")
    a(f"s_mov_b32 s{s_it}, 0")
    a(f"s_mov_b32 s{s_slot}, {LA*SLOT}")
    def mfma(R, T, u):
        acc = vr(ACC + 16 * (R * NTW + T), 16); x = vr(XF[u] + 4 * R, 4); w = vr(WF[u] + 4 * T, 4)
        if vmode: a(f"v_mfma_f32_32x32x16_bf16 {acc}, {x}, {w}, {acc}")
        else: a(f"v_mfma_f32_32x32x16_bf16 {acc}, {w}, {x}, {acc}")
    def step(jn, u, cs, post=None, lo=0, hi=99):
        n = u ^ 1
        reads = []
        if jn is not None and "nord" not in AX:
            def rw(T):
                for p in range(2):
                    reads.append((f"ds_read_b64_tr_b16 {vr(WF[n]+4*T+2*p,2)}, v{v_wa+T} offset:{jn*16*RB+p*4*RB}", ("W", n, T)))
            reads.append((f"ds_read_b128 {vr(XF[n],4)}, v{v_xa+jn}", ("X", n, 0)))
            rw(0)
            reads.append((f"ds_read_b128 {vr(XF[n]+4,4)}, v{v_xa+jn} offset:4096", ("X", n, 1)))
            for T in range(1, NTW): rw(T)
        post = list(post or [])
        order = [(R, T) for T in range(NTW) for R in range(2)][lo:hi]
        per = 3 if post else 2
        for k, (R, T) in enumerate(order):
            last = k == len(order) - 1
            lg.wait(("X", u, R), ("W", u, T))
            mfma(R, T, u)
            room = 5
            for _ in range(99 if last else per):
                if reads:
                    t, g = reads.pop(0); a(t); lg.issue(g); room -= 1
            if not reads:
                while post and (room > 0 or last):
                    a(post.pop(0)); room -= 1
            if cs and R == 1 and 'nocs' not in AX:
                a(f"v_mfma_f32_16x16x32_bf16 {vr(CSA+4*T,4)}, {vr(SEL,4)}, {vr(WF[u]+4*T,4)}, {vr(CSA+4*T,4)}")
    stamp(a, 2)
    if STAMP: a("s_waitcnt lgkmcnt(0)")
    NM = 2 * NTW
    adv = slot_advance([v_xa, v_wa] + [v_wa + T for T in range(1, NTW)] + [v_xa + j for j in range(1, 4)])
    for t in adv: a(t)
    full = role != "h" and not (role == "q" and os.environ.get("QSPLIT"))
    if not full:
        a(f"s_cmp_eq_u32 s{s_rp}, 1")
        a(f"s_cbranch_scc1 AC_ent_{tag}1")
    for rp in range(1 if full else 2):
        e0 = full or rp == 0; e1 = full or rp == 1
        if rp == 0: a(f"s_branch AC_ent_{tag}0")
        a.raw(".p2align 6")
        a.label(f"AC_loop_{tag}{rp}")
        st = a.mark()
        a("s_waitcnt lgkmcnt(0)")
        if e0 and 'nocs' not in AX:
            a(f"v_mfma_f32_16x16x32_bf16 {vr(CSA+4*(NTW-1),4)}, {vr(SEL,4)}, {vr(WF[0]+4*(NTW-1),4)}, {vr(CSA+4*(NTW-1),4)}")
        step(None, 0, False, None, NM - 1, NM)
        a.label(f"AC_ent_{tag}{rp}")
        a("s_barrier")
        step(0, 1, e1)
        step(1, 0, e0); step(2, 1, e1)
        tail = adv + [f"s_add_u32 s{s_it}, s{s_it}, 1", f"s_cmp_lt_u32 s{s_it}, 10"]
        step(3, 0, e0, tail, 0, NM - 1)
        lg.q = []
        a(f"s_cbranch_scc1 AC_loop_{tag}{rp}")
        a.check_backedge(st)
        a("s_waitcnt lgkmcnt(0)")
        if e0 and 'nocs' not in AX:
            a(f"v_mfma_f32_16x16x32_bf16 {vr(CSA+4*(NTW-1),4)}, {vr(SEL,4)}, {vr(WF[0]+4*(NTW-1),4)}, {vr(CSA+4*(NTW-1),4)}")
        step(None, 0, False, None, NM - 1, NM)
        if e1:
            for T in range(NTW):
                a(f"v_mfma_f32_16x16x32_bf16 {vr(CSA+4*T,4)}, {vr(SEL,4)}, {vr(WF[1]+4*T,4)}, {vr(CSA+4*T,4)}")
        if rp == 0 and not full: a(f"s_branch AC_fin_{tag}")
    a.label(f"AC_fin_{tag}")
    a(f"v_and_b32 v1, 31, v0")
    a(f"s_lshl_b32 s{s_t0}, s{s_rp}, 8")
    a(f"s_add_u32 s{s_t0}, s{s_t0}, {SC_NM}")
    a(f"v_lshl_add_u32 v2, v1, 2, s{s_t0}")
    pre = [f"v_mov_b32 v{r}, 0" for r in range(XF[0], WF[0] + 4 * NTW)]
    pre += ["s_mov_b32 exec_hi, 0", f"ds_read_b32 v{XF[0]}, v2", f"ds_read_b32 v{XF[0]+4}, v2 offset:128", "s_mov_b32 exec_hi, -1",
            "ds_read_b32 v4, v2 offset:512", "ds_read_b32 v6, v2 offset:640"]
    step(None, 1, False, pre)
    stamp(a, 5)
    CS = CSA
    if not full:
        a(f"s_mul_i32 s{s_t1}, s{s_half}, {NTW*256}")
        a(f"s_add_u32 s{s_t1}, s{s_t1}, {SC_CS}")
        a(f"v_lshl_add_u32 v3, v1, 3, s{s_t1}")
        a(f"s_lshl_b32 s{s_t1}, s{s_rp}, 2")
        a(f"v_add_u32 v7, s{s_t1}, v3")
        for T in range(NTW): a(f"ds_write_b32 v7, v{CSA+4*T} offset:{T*256}")
        lds_arrive(a, SC_CNT + 12, 8)
        lds_wait(a, f"AC_sync_{tag}", SC_CNT + 12, 4, 8, s_it, s_slot, 1)
        for T in range(NTW): a(f"ds_read_b64 {vr(CS+4*T,2)}, v3 offset:{T*256}")
        a(f"s_waitcnt lgkmcnt(0)")
        for T in range(NTW): a(f"v_add_f32 v{CS+4*T}, v{CS+4*T}, v{CS+4*T+1}")
    for T in range(NTW): a(f"v_cvt_pk_bf16_f32 v{CS+4*T+1}, v{CS+4*T}, v{CS+4*T}")
    for T in range(NTW): a(f"v_lshlrev_b32 v{CS+4*T+1}, 16, v{CS+4*T+1}")
    for T in range(NTW): a(f"v_sub_f32 v{CS+4*T+1}, v{CS+4*T}, v{CS+4*T+1}")
    for T in range(NTW): a(f"v_cvt_pk_bf16_f32 v{WF[0]+4*T}, v{CS+4*T}, v{CS+4*T+1}")
    a("s_waitcnt lgkmcnt(0)")
    for R in range(2):
        for T in range(NTW): mfma(R, T, 0)
    stamp(a, 6)
    O = f"s[{SO}:{SO+3}]"
    a(f"v_lshlrev_b32 v1, 4, v0")
    def early_flag():
        a(f"s_lshl_b32 s{s_t0}, s3, 7")
        a(f"s_add_u32 s{s_t0}, s{s_t0}, {WS_FL}")
        a("v_mov_b32 v2, 1")
        a("s_mov_b64 exec, 1")
        a(f"buffer_store_dword v2, off, {O}, s{s_t0} sc1")
        a("s_mov_b64 exec, -1")
    if role == "q" and QS == 1: early_flag()
    if role != "kv":
        for R in range(2):
            for T in range(NTW):
                b = ACC + 16 * (R * NTW + T)
                if R == 0 and T < 2:
                    for i in range(16): a(f"v_mul_f32 v{b+i}, v{4+2*R}, v{b+i}")
                else:
                    for i in range(8): a(f"v_pk_mul_f32 {vr(b+2*i,2)}, {vr(b+2*i,2)}, {vr(4+2*R,2)} op_sel_hi:[1,0]")
                if role == "h":
                    d = ACC + 8 * (R * NTW + T)
                    for i in range(8): a(f"v_cvt_pk_bf16_f32 v{d+i}, v{b+2*i}, v{b+2*i+1}")
                    for i in range(8): a(f"v_pk_max_i16 v{d+i}, v{d+i}, 0")
                    continue
                for i in range(8): a(f"v_cvt_pk_bf16_f32 v{b+i}, v{b+2*i}, v{b+2*i+1}")
                o = 2 * T * 1024
                a(f"buffer_store_dwordx4 {vr(b,4)}, v1, {O}, s{s_out} offen offset:{o}{ST}")
                a(f"buffer_store_dwordx4 {vr(b+4,4)}, v1, {O}, s{s_out} offen offset:{o+1024}{ST}")
            if R == 0 and role != "h": a(f"s_add_u32 s{s_out}, s{s_out}, {QH_TT}")
            if role == "q" and QS == 2 + R: early_flag()
        if role == "h":
            a(f"s_mov_b32 s53, s{s_out}")
            a("s_branch F_gemm")
            return
    elif not vmode:
        for R in range(2):
            b = ACC + 16 * R
            for i in range(12): a(f"v_mul_f32 v{b+i}, v{4+2*R}, v{b+i}")
            for i in range(4): a(f"v_cvt_pk_bf16_f32 v{b+i}, v{b+2*i}, v{b+2*i+1}")
            for i in range(2): a(f"v_cvt_pk_bf16_f32 v{16+2*R+i}, v{b+8+2*i}, v{b+9+2*i}")
            a(f"buffer_store_dwordx4 {vr(b,4)}, v1, {O}, s{s_out} offen offset:{1024*R}{ST}")
        a("s_mov_b32 exec_lo, 0")
        for i in range(4): a(f"v_mov_b32 v{16+i}, {'0x3f80' if i % 2 == 0 else 0}")
        a("s_mov_b32 exec_lo, -1")
        a(f"buffer_store_dwordx4 v[16:19], v1, {O}, s{s_out} offen offset:2048{ST}")
    else:
        a(f"v_lshrrev_b32 v6, 5, v0")
        a(f"v_lshl_add_u32 v3, v6, 4, s{s_t0}")
        for R in range(2):
            for q in range(4): a(f"ds_read_b128 {vr(16+16*R+4*q,4)}, v3 offset:{512+128*R+32*q}")
        a(f"v_and_b32 v2, 31, v0")
        a(f"v_mul_u32_u24 v6, 384, v6")
        a(f"v_lshl_add_u32 v6, v2, 4, v6")
        a(f"s_add_u32 s{s_out}, s{s_out}, 3072")
        a("s_waitcnt lgkmcnt(0)")
        for R in range(2):
            b = ACC + 16 * R
            for i in range(16): a(f"v_mul_f32 v{b+i}, v{16+16*R+i}, v{b+i}")
            for i in range(8): a(f"v_cvt_pk_bf16_f32 v{b+i}, v{b+2*i}, v{b+2*i+1}")
            a("s_mov_b32 exec_lo, 0x00100000")
            a("s_mov_b32 exec_hi, 0x00100000")
            for i in range(8): a(f"v_mov_b32 v{b+i}, 0x3f803f80")
            a("s_mov_b32 exec_lo, 0x00e00000")
            a("s_mov_b32 exec_hi, 0x00e00000")
            for i in range(8): a(f"v_mov_b32 v{b+i}, 0")
            a("s_mov_b32 exec_lo, 0x00ffffff")
            a("s_mov_b32 exec_hi, 0x00ffffff")
            a(f"buffer_store_dwordx4 {vr(b,4)}, v6, {O}, s{s_out} offen offset:{1536*R}{ST}")
            a(f"buffer_store_dwordx4 {vr(b+4,4)}, v6, {O}, s{s_out} offen offset:{1536*R+768}{ST}")
            a("s_mov_b64 exec, -1")
    done(a)

def phase_a(a, done_help, done_stats, done_comp, spare, start_hook, pre_ba, last):
    a("s_load_dwordx8 s[20:27], s[0:1], 0")
    a("s_load_dwordx2 s[28:29], s[0:1], 48")
    a("s_load_dwordx2 s[30:31], s[0:1], 80")
    a("s_load_dwordx2 s[56:57], s[0:1], 56")
    a("s_load_dwordx2 s[58:59], s[0:1], 32")
    a("s_load_dwordx4 s[60:63], s[0:1], 64")
    a("v_lshrrev_b32 v1, 6, v0")
    a("v_and_b32 v0, 63, v0")
    a(f"v_readfirstlane_b32 s{s_w}, v1")
    ORD = os.environ.get("ORD", "0123456789,5678901234").split(",")
    gv = sum(g << (4 * i) for i, g in enumerate(GMAP))
    if AMAP == 0:
        a(f"s_and_b32 s{s_t0}, s2, 1")
        a(f"s_lshl_b32 s{s_t0}, s{s_t0}, 3")
        a(f"s_bfe_u32 s{s_rb}, s2, 0x30003")
        a(f"s_lshr_b32 s{s_g}, s2, 6")
        a(f"s_add_u32 s{s_t1}, s{s_g}, s{s_rb}")
        a(f"s_and_b32 s{s_t1}, s{s_t1}, {len(ORD)-1}")
        a(f"s_add_u32 s{s_rb}, s{s_rb}, s{s_t0}")
        a(f"s_bfe_u32 s{s_t0}, s2, 0x20001")
        a(f"s_lshl_b32 s{s_t0}, s{s_t0}, 2")
        a(f"s_add_u32 s{s_g}, s{s_g}, s{s_t0}")
        a(f"s_lshl_b32 s{s_g}, s{s_g}, 2")
        a(f"s_mov_b32 s{s_tab}, {hex(gv & 0xffffffff)}")
        a(f"s_mov_b32 s{s_tab+1}, {hex(gv >> 32)}")
        a(f"s_lshr_b64 s[{s_tab}:{s_tab+1}], s[{s_tab}:{s_tab+1}], s{s_g}")
        a(f"s_and_b32 s{s_g}, s{s_tab}, 15")
    if AMAP == 2:
        a(f"s_and_b32 s{s_rb}, s2, 3")
        a(f"s_lshl_b32 s{s_rb}, s{s_rb}, 2")
        a(f"s_bfe_u32 s{s_t0}, s2, 0x20003")
        a(f"s_add_u32 s{s_rb}, s{s_rb}, s{s_t0}")
        a(f"s_lshr_b32 s{s_g}, s2, 5")
        a(f"s_add_u32 s{s_t1}, s{s_g}, s{s_t0}")
        a(f"s_and_b32 s{s_t1}, s{s_t1}, {len(ORD)-1}")
        a(f"s_bfe_u32 s{s_t0}, s2, 0x10002")
        a(f"s_lshl_b32 s{s_t0}, s{s_t0}, 3")
        a(f"s_add_u32 s{s_g}, s{s_g}, s{s_t0}")
        a(f"s_lshl_b32 s{s_g}, s{s_g}, 2")
        a(f"s_mov_b32 s{s_tab}, {hex(gv & 0xffffffff)}")
        a(f"s_mov_b32 s{s_tab+1}, {hex(gv >> 32)}")
        a(f"s_lshr_b64 s[{s_tab}:{s_tab+1}], s[{s_tab}:{s_tab+1}], s{s_g}")
        a(f"s_and_b32 s{s_g}, s{s_tab}, 15")
    if TEAM:
        a(f"s_and_b32 s{s_rb}, s2, 7")
        a(f"s_lshl_b32 s{s_rb}, s{s_rb}, 1")
        a(f"s_lshr_b32 s{s_t0}, s2, 7")
        a(f"s_add_u32 s{s_rb}, s{s_rb}, s{s_t0}")
        a(f"s_bfe_u32 s{s_g}, s2, 0x40003")
        a(f"s_{'add' if TEAM == 1 else 'xor'}_{'u' if TEAM == 1 else 'b'}32 s{s_t1}, s{s_t0}, {'s%d' % s_g if TEAM == 1 else '0'}")
        if TEAM == 3:
            a(f"s_lshl_b32 s{s_t1}, s2, 1")
            a(f"s_add_u32 s{s_t1}, s{s_t1}, s{s_t0}")
        a(f"s_and_b32 s{s_t1}, s{s_t1}, {len(ORD)-1}")
    a(f"s_lshl_b32 s3, s{s_rb}, 4")
    a(f"s_add_u32 s3, s3, s{s_g}")
    ORDQ = os.environ.get("ORDQ", "0516273849,5061728394")
    if ORDQ:
        lo_, hi_ = [int(x) for x in os.environ.get("QRNG", "9,14").split(",")]
        a(f"s_sub_u32 s{s_t0}, s{s_g}, {lo_}")
        a(f"s_cmp_le_u32 s{s_t0}, {hi_ - lo_}")
        a(f"s_cselect_b32 s{s_t0}, {len(ORD)}, 0")
        a(f"s_add_u32 s{s_t1}, s{s_t1}, s{s_t0}")
        ORD = ORD + ORDQ.split(",")
    for k, o in enumerate(ORD):
        assert sorted(o) == list("0123456789")
        v = sum(int(d) << (4 * i) for i, d in enumerate(o))
        if k == 0:
            a(f"s_mov_b32 s{s_tab}, {hex(v & 0xffffffff)}")
            a(f"s_movk_i32 s{s_tab+1}, {hex(v >> 32)}")
        else:
            a(f"s_cmp_eq_u32 s{s_t1}, {k}")
            a(f"s_cselect_b32 s{s_tab}, {hex(v & 0xffffffff)}, s{s_tab}")
            a(f"s_cselect_b32 s{s_tab+1}, {hex(v >> 32)}, s{s_tab+1}")
    a(f"s_mov_b32 s{s_cslot}, {SLOT}")
    a(f"s_mul_i32 s{s_xbase}, s{s_rb}, {128*1280}")
    a(f"s_cmp_ge_u32 s{s_w}, 4")
    a("s_cbranch_scc1 A_other")
    a(f"s_cmp_lt_u32 s{s_g}, 9")
    a("s_cbranch_scc1 A_lh")
    a(f"s_cmp_ge_u32 s{s_g}, 14")
    a("s_cbranch_scc1 A_lk")
    for role in ("q", "h"):
        NTW = ROLES[role][0]
        stride = 3456 if role == "h" else 1280
        if role == "h": a.label("A_lh")
        else: a(f"s_sub_u32 s{s_g}, s{s_g}, 9")
        a(f"s_movk_i32 s{s_stride}, {stride}")
        a(f"s_mov_b32 s{s_wstep}, {64*stride}")
        a(f"s_mul_i32 s{s_col}, s{s_g}, {NTW*128}")
        loader(a, role, done_help, pre_ba, lambda: srd(a, SW, 28 if role == "h" else 22, 640 * stride))
    a.label("A_lk")
    a(f"s_cmp_eq_u32 s{s_g}, 15")
    a("s_cbranch_scc1 A_spare")
    a(f"s_movk_i32 s{s_wstep}, 2560")
    loader(a, "kv", done_help, pre_ba, lambda: (srd(a, SW, 24, 640 * 40), srd(a, SW2, 26, 640 * 40)))
    a.label("A_other")
    a(f"s_cmp_eq_u32 s{s_g}, 15")
    a("s_cbranch_scc1 A_spare")
    ready(a)
    a(f"s_cmp_lt_u32 s{s_w}, 8")
    a("s_cbranch_scc1 A_stats")
    a("s_setprio 3")
    a(f"s_and_b32 s{s_m0x}, s{s_w}, 1")
    a(f"s_bfe_u32 s{s_m0w}, s{s_w}, 0x10001")
    a(f"s_lshl_b32 s{s_out}, s{s_rb}, 1")
    a(f"s_add_u32 s{s_out}, s{s_out}, s{s_m0x}")
    a(f"s_lshl_b32 s{s_out}, s{s_out}, 1")
    a(f"s_cmp_eq_u32 s{s_g}, 14")
    a("s_cbranch_scc1 A_ckv")
    a(f"s_cmp_lt_u32 s{s_g}, 9")
    a("s_cbranch_scc1 A_ch")
    for role in ("q", "h"):
        NTW = ROLES[role][0]
        if role == "h": a.label("A_ch")
        else: a(f"s_sub_u32 s{s_g}, s{s_g}, 9")
        a(f"s_mul_i32 s{s_out}, s{s_out}, {QH_TT}")
        a(f"s_lshl_b32 s{s_t0}, s{s_g}, 1")
        a(f"s_add_u32 s{s_t0}, s{s_t0}, s{s_m0w}")
        a(f"s_mul_i32 s{s_t0}, s{s_t0}, {NTW*2048}")
        a(f"s_add_u32 s{s_out}, s{s_out}, s{s_t0}")
        if role == "h": a(f"s_add_u32 s{s_out}, s{s_out}, {40*1024}")
        compute(a, role, done_comp)
    a.label("A_ckv")
    a(f"s_mul_i32 s{s_out}, s{s_out}, {KV_TILE}")
    a(f"s_add_u32 s{s_out}, s{s_out}, {WS_KV}")
    a(f"s_cmp_eq_u32 s{s_m0w}, 1")
    a(f"s_cbranch_scc1 A_cv")
    compute(a, "kv", done_comp, False)
    a.label("A_cv")
    compute(a, "kv", done_comp, True)
    a.label("A_stats")
    a(f"s_sub_u32 s{s_t0}, s{s_g}, 9")
    a(f"s_cmp_lt_u32 s{s_t0}, 5")
    a(f"s_cselect_b32 s{s_scale}, {hex(f32bits(QSCALE))}, 1.0")
    start_hook(a)
    idle(a, done_stats, last)
    a.label("A_spare")
    ready(a)
    a(f"s_cmp_lg_u32 s{s_w}, 8")
    a("s_cbranch_scc1 A_noclear")
    clear_words(a)
    a("s_branch A_cleared")
    a.label("A_noclear")
    ORDS = os.environ.get("ORDS", "4938051627")
    if ORDS:
        v = sum(int(d) << (4 * i) for i, d in enumerate(ORDS))
        a(f"s_mov_b32 s{s_tab}, {hex(v & 0xffffffff)}")
        a(f"s_movk_i32 s{s_tab+1}, {hex(v >> 32)}")
    a("s_barrier")
    a.label("A_cleared")
    spare(a)
```

```python
from common import *
from gw import *
import ka2
from ka2 import phase_a, SC_CNT, LDS_A
def two_ways(a, name, body): body(' sc1')

GPRIO = int(os.environ.get("GPRIO", "0"))
HOLD = 1
GROT = int(os.environ.get("GROT", "9"))
GX = os.environ.get("GX", "")
UARR = int(os.environ.get("UARR", "0"))
SC_L = None
DRY = int(os.environ.get("DRY", "0"))
PACE = [float(x) for x in os.environ.get("PACE", "1.7,7.0").split(",")]
PEND = int(os.environ.get("PEND", "99"))
ABAT = int(os.environ.get("ABAT", "0"))
PIPE = int(os.environ.get("PIPE", "1"))
KV4 = int(os.environ.get("KV4", "0"))
TRIG = [int(x) for x in os.environ.get("TRIG", "4,8").split(",")]
TAILST = os.environ.get("TAILST")
OSL = [int(x) for x in os.environ.get("OSL", "1,1").split(",")]
WOPF = int(os.environ.get("WOPF", "10"))
ALT1 = int(os.environ.get("ALT1", "0"))
MARK = int(os.environ.get("MARK", "1"))
NS0 = int(os.environ.get("NS0", "2"))
WEARLY = int(os.environ.get("WEARLY", "2"))
W2PF = int(os.environ.get("W2PF", "3"))
HP = int(os.environ.get("HP", "1"))
FASTO = int(os.environ.get("FASTO", "1"))
TRIGST = int(os.environ.get("TRIGST", "1"))
PMASK = int(os.environ.get("PMASK", "0"))
PSTEP = [int(x) for x in os.environ.get("PSTEP", "2,5").split(",") if x]
PBASE = int(os.environ.get("PBASE", "0"))
ALIGN = int(os.environ.get("ALIGN", "0"))
HNEAR = int(os.environ.get("HNEAR", "0"))
JIT = int(os.environ.get("JIT", "0"))
LAY = int(os.environ.get("LAY", "0"))
TLBW = int(os.environ.get("TLBW", "0"))
TLBS = int(os.environ.get("TLBS", "21"))
HORD = int(os.environ.get("HORD", "0"))
GW_N = int(os.environ.get("GW_N", "8"))
OPF = int(os.environ.get("OPF", "9"))
SPEC = int(os.environ.get("SPEC", "1"))
HPI = int(os.environ.get("HPI", "32"))
NEARP = int(os.environ.get("NEARP", "0"))
AD = int(os.environ.get("AD", "8"))
LJ = int(os.environ.get("LJ", "1"))
MD = int(os.environ.get("MD", "2"))
WPF = int(os.environ.get("WPF", "2"))
XST = int(os.environ.get("XST", "4"))
BSL = int(os.environ.get("BSL", "1"))
NF = int(os.environ.get("NF", "3"))
WFL = int(os.environ.get("WFL", "0"))
NH = int(os.environ.get("NH", "27")); NL = 54 - NH
KVH = [int(x) for x in os.environ.get("KVH", "1,2,4,5").split(",")]
KVL = [int(x) for x in os.environ.get("KVL", os.environ.get("KVH", "1,2,4,5")).split(",")]
PMH = int(os.environ.get("PMH", "9")); PML = int(os.environ.get("PML", str(PMH)))
PSEL = os.environ.get("PSEL", "a")
ALH = [int(x) for x in os.environ.get("ALH", "0,-1").split(",")]
ALL = [int(x) for x in os.environ.get("ALL", "0,-1").split(",")]
EV = int(os.environ.get("EV", "1"))
RB = int(os.environ.get("RB", "1"))
RSL = int(os.environ.get("RSL", "1"))
SPLIT = int(os.environ.get("SPLIT", "0"))
EARR = int(os.environ.get("EARR", "1"))
QPRE = int(os.environ.get("QPRE", "0"))
HEARLY = int(os.environ.get("HEARLY", "6"))
DEFW = int(os.environ.get("DEFW", "4"))
DEFER = int(os.environ.get("DEFER", "0"))
PAIR = 2 * KV_TILE
CH = 8 * KV_TILE
STG = 0
KVB = 4 * PART
assert KVB + 4 * CH <= ka2.SCR and KVB >= ka2.SLOT and KVB + 3 * CH >= 3 * ka2.SLOT
RESET_WG = (3 << 6) | (3 << 1)

SX, SW2, SWS, SWO, SOUT, SDBG = 4, 8, 12, 16, 20, 16
s_w, s_tt, s_hg, s_t0, s_t1, s_c, s_slot, s_delta, s_cch, s_base, s_spin, s_kvl, s_kvg, s_woff2 = range(32, 46)
s_gw = 46
s_lid = 97 if STAMP else 64
WS = f"s[{SWS}:{SWS+3}]"
Q1, Q2, P0, P1, O, S0, S1 = 4, 8, 12, 16, 20, 36, 52
KS = [68, 96]
v_ka, v_va, v_g0, VT = 124, 125, 126, 130
v_l16, v_cnt, v_one, v_chk = 136, 137, 138, 139
SC_K = SC_CNT + 256
SC_L = SC_K + 256
COMB = int(os.environ.get('COMB', '0'))
SCW, NW_ = (SC_L, 12) if COMB else (SC_K, 8)
s_tgt = 45

def mf(a, d, x, y, c): a(f"v_mfma_f32_32x32x16_bf16 {vr(d,16)}, {vr(x,4)}, {vr(y,4)}, {c if isinstance(c,str) else vr(c,16)}")
def mf8(a, d, x, y): a(f"v_mfma_f32_32x32x8_bf16 {vr(d,16)}, {vr(x,2)}, {vr(y,2)}, {vr(d,16)}")

def flag_off(a, vd, vrb, vg, t):
    a(f"v_lshl_add_u32 v{vd}, v{vrb}, 4, v{vg}")
    a(f"v_lshlrev_b32 v{vd}, 7, v{vd}")
    a(f"v_add_u32 v{vd}, {WS_FL}, v{vd}")

def publish(a, name, cnt_off, nwaves, sid, base, t, value=1, vm=0, word=None, near=False):
    a(f"s_waitcnt vmcnt({vm})")
    a("s_mov_b64 exec, 1")
    a(f"v_mov_b32 v{t}, {SC_CNT + cnt_off}")
    a(f"v_mov_b32 v{t+1}, 1")
    a(f"ds_add_rtn_u32 v{t+1}, v{t}, v{t+1}")
    a(f"s_lshl_b32 s{s_t0}, s{sid}, 7")
    a(f"s_add_u32 s{s_t0}, s{s_t0}, {base}")
    a(f"v_mov_b32 v{t}, {0 if word is None else 's%d' % word}")
    a(f"v_mov_b32 v{t+2}, {value}")
    a("s_waitcnt lgkmcnt(0)")
    a(f"v_readfirstlane_b32 s{s_t1}, v{t+1}")
    a(f"s_cmp_lg_u32 s{s_t1}, {nwaves-1}")
    a(f"s_cbranch_scc1 {name}")
    if near: two_ways(a, name + "w", lambda sc: a(f"buffer_store_dword v{t+2}, v{t}, {WS}, s{s_t0} offen{sc}"))
    else: a(f"buffer_store_dword v{t+2}, v{t}, {WS}, s{s_t0} offen sc1")
    a.label(name)
    a("s_mov_b64 exec, -1")

def lid(a):
    BMAP = int(os.environ.get("BMAP", "4"))
    if BMAP == 0: a(f"s_mov_b32 s{s_lid}, s2")
    elif BMAP == 1:
        a(f"s_bfe_u32 s{s_lid}, s2, 0x20001")
        a(f"s_lshl_b32 s{s_lid}, s{s_lid}, 4")
        a(f"s_lshr_b32 s35, s2, 4")
        a(f"s_add_u32 s{s_lid}, s{s_lid}, s35")
        a(f"s_lshl_b32 s{s_lid}, s{s_lid}, 1")
        a(f"s_and_b32 s35, s2, 1")
        a(f"s_add_u32 s{s_lid}, s{s_lid}, s35")
        a(f"s_lshl_b32 s{s_lid}, s{s_lid}, 1")
        a(f"s_bfe_u32 s35, s2, 0x10003")
        a(f"s_add_u32 s{s_lid}, s{s_lid}, s35")
    elif BMAP == 3:
        a(f"s_lshr_b32 s{s_lid}, s2, 4")
        a(f"s_lshl_b32 s{s_lid}, s{s_lid}, 3")
        a(f"s_and_b32 s35, s2, 7")
        a(f"s_add_u32 s{s_lid}, s{s_lid}, s35")
        a(f"s_lshl_b32 s{s_lid}, s{s_lid}, 1")
        a(f"s_bfe_u32 s35, s2, 0x10003")
        a(f"s_add_u32 s{s_lid}, s{s_lid}, s35")
    elif BMAP == 4:
        a(f"s_and_b32 s{s_lid}, s2, 1")
        a(f"s_lshl_b32 s{s_lid}, s{s_lid}, 3")
        a(f"s_lshr_b32 s35, s2, 5")
        a(f"s_add_u32 s{s_lid}, s{s_lid}, s35")
        a(f"s_lshl_b32 s{s_lid}, s{s_lid}, 2")
        a(f"s_bfe_u32 s35, s2, 0x20001")
        a(f"s_add_u32 s{s_lid}, s{s_lid}, s35")
        a(f"s_lshl_b32 s{s_lid}, s{s_lid}, 2")
        a(f"s_bfe_u32 s35, s2, 0x20003")
        a(f"s_add_u32 s{s_lid}, s{s_lid}, s35")
    elif BMAP == 5:
        a(f"s_bfe_u32 s{s_lid}, s2, 0x10002")
        a(f"s_lshl_b32 s{s_lid}, s{s_lid}, 3")
        a(f"s_lshr_b32 s35, s2, 5")
        a(f"s_add_u32 s{s_lid}, s{s_lid}, s35")
        a(f"s_lshl_b32 s{s_lid}, s{s_lid}, 1")
        a(f"s_and_b32 s35, s2, 1")
        a(f"s_add_u32 s{s_lid}, s{s_lid}, s35")
        a(f"s_lshl_b32 s{s_lid}, s{s_lid}, 1")
        a(f"s_bfe_u32 s35, s2, 0x10001")
        a(f"s_add_u32 s{s_lid}, s{s_lid}, s35")
        a(f"s_lshl_b32 s{s_lid}, s{s_lid}, 2")
        a(f"s_bfe_u32 s35, s2, 0x20003")
        a(f"s_add_u32 s{s_lid}, s{s_lid}, s35")
    else:
        a(f"s_and_b32 s{s_lid}, s2, 7")
        a(f"s_lshl_b32 s{s_lid}, s{s_lid}, 5")
        a(f"s_lshr_b32 s35, s2, 3")
        a(f"s_add_u32 s{s_lid}, s{s_lid}, s35")
    if STAMP == 3: a("s_mov_b32 s72, 0")

def decode_b(a):
    a(f"s_lshr_b32 s{s_tt}, s{s_lid}, 2")
    a(f"s_and_b32 s{s_hg}, s{s_lid}, 3")

def attn_addr(a):
    lid(a)
    a(f"s_and_b32 s{s_t0}, s{s_lid}, 3")
    a(f"s_lshl_b32 s{s_t0}, s{s_t0}, 3")
    a(f"s_add_u32 s{s_t0}, s{s_t0}, s{s_w}")
    a(f"s_mul_i32 s{s_t0}, s{s_t0}, 5")
    a(f"v_lshrrev_b32 v2, 5, v0")
    a(f"v_and_b32 v3, 31, v0")
    a(f"v_lshlrev_b32 v3, 4, v3")
    for i in range(3):
        if i < 2: a(f"v_add_u32 v1, s{s_t0}, v2")
        else: a(f"v_mov_b32 v1, s{s_t0}")
        if i: a(f"v_add_u32 v1, {2*i}, v1")
        a(f"v_lshrrev_b32 v{VT}, 2, v1")
        a(f"v_lshl_add_u32 v{v_g0+i}, v{VT}, 10, v3")
        a(f"v_and_b32 v{VT}, 1, v1")
        a(f"v_lshl_add_u32 v{v_g0+i}, v{VT}, 9, v{v_g0+i}")
        a(f"v_bfe_u32 v{VT}, v1, 1, 1")
        a(f"v_lshl_add_u32 v{v_g0+i}, v{VT}, 3, v{v_g0+i}")
    a(f"v_lshlrev_b32 v{v_l16}, 4, v0")
    a(f"v_add_u32 v{v_ka}, {KVB + 3*CH}, v{v_l16}")
    a(f"v_lshlrev_b32 v{v_cnt}, 2, v0")
    a(f"v_add_u32 v{v_cnt}, {SC_K}, v{v_cnt}")
    a(f"v_cmp_eq_u32 vcc, 0, v0")
    a(f"v_cndmask_b32 v{v_one}, 0, 1, vcc")
    a(f"v_and_b32 v1, 31, v0")
    a(f"v_min_u32 v1, 23, v1")
    a(f"v_mul_u32_u24 v{v_va}, 384, v2")
    a(f"v_lshl_add_u32 v{v_va}, v1, 4, v{v_va}")
    a(f"v_add_u32 v{v_va}, {KVB + 3*CH + 3072}, v{v_va}")

QFL = lambda: f"buffer_load_dword v6, v4, {WS}, 0 offen sc1"
def q_probe(a):
    decode_b(a)
    a(f"s_lshr_b32 s{s_t0}, s{s_tt}, 2")
    a(f"v_mov_b32 v1, s{s_t0}")
    a(f"s_add_u32 s{s_t1}, s{s_hg}, 9")
    a(f"v_add_u32 v2, s{s_t1}, v0")
    flag_off(a, 4, 1, 2, 3)
    a("s_mov_b64 exec, 3")
    if QPRE: a(QFL())
    else: a("v_mov_b32 v6, 0")
    a("s_mov_b64 exec, -1")

def fetch(a):
    a(f"s_cmp_lg_u32 s{s_w}, 0")
    a("s_cbranch_scc1 F_attn")
    a("s_mov_b64 exec, 3")
    a("s_waitcnt vmcnt(0)")
    a("v_cmp_gt_u32 vcc, 1, v6")
    a("s_cmp_eq_u64 vcc, 0")
    a("s_cbranch_scc1 B_pollq_ok")
    poll(a, "B_pollq", QFL(), "v_cmp_gt_u32 vcc, 1, v6", 2)
    lds_arrive(a, SC_CNT + 16, 2)

def fetch_kv(a, tag, bar):
    decode_b(a)
    a(f"s_lshr_b32 s{s_t0}, s{s_tt}, 3")
    a(f"s_lshl_b32 s{s_t1}, s{s_t0}, 1")
    a(f"v_add_u32 v1, s{s_t1}, v0")
    a(f"v_and_b32 v1, 15, v1")
    a(f"v_mov_b32 v2, 14")
    flag_off(a, 4, 1, 2, 3)
    a(f"s_mul_i32 s{s_t0}, s{s_t0}, {CH}")
    a(f"s_sub_u32 s{s_kvl}, s{s_w}, 5")
    a(f"s_lshl_b32 s{s_kvl}, s{s_kvl}, 13")
    a(f"s_add_u32 s{s_kvg}, s{s_kvl}, s{s_t0}")
    LD = f"buffer_load_dword v2, v4, {WS}, 0 offen sc1"
    def dma(c=0):
        a("s_mov_b64 exec, -1")
        if c:
            a(f"s_lshr_b32 s{s_t0}, s{s_tt}, 3")
            a(f"s_add_u32 s{s_t0}, s{s_t0}, {c}")
            a(f"s_and_b32 s{s_t0}, s{s_t0}, 7")
            a(f"s_mul_i32 s{s_t0}, s{s_t0}, {CH}")
            a(f"s_add_u32 s{s_kvg}, s{s_kvl}, s{s_t0}")
        for hf in range(2):
            a(f"s_add_u32 m0, s{s_kvl}, {KVB + (3-c)*CH + hf*4096}")
            a(f"s_add_u32 s{s_t1}, s{s_kvg}, {WS_KV + hf*4096}")
            for m in range(4): a(f"buffer_load_dwordx4 v{v_l16}, {WS}, s{s_t1} offen offset:{m*1024} sc1 lds")
    a("s_mov_b64 exec, 3")
    if bar:
        a(LD)
        a("s_waitcnt vmcnt(0)")
        a("v_cmp_gt_u32 vcc, 1, v2")
        a("s_cmp_eq_u64 vcc, 0")
        a(f"s_cbranch_scc0 K_late{tag}")
        dma()
        a("s_barrier")
        a(f"s_branch K_done{tag}")
        a.label(f"K_late{tag}")
        a("s_barrier")
    poll(a, f"K_poll{tag}", LD, "v_cmp_gt_u32 vcc, 1, v2", 3)
    dma()
    a.label(f"K_done{tag}")
    a("s_waitcnt vmcnt(0)")
    stamp(a, 2)
    lds_arrive(a, SC_CNT + 16, 2)
    if NF > 1:
        a(f"s_mov_b32 exec_lo, {(1 << (2 * NF)) - 1}")
        a("s_mov_b32 exec_hi, 0")
        poll(a, f"K_more{tag}", LD, "v_cmp_gt_u32 vcc, 1, v2", 3)
        for c in range(1, NF): dma(c)
    a("s_branch F_attn")

def attention(a):
    decode_b(a)
    stamp(a, 8)
    a(f"s_mul_i32 s{s_base}, s{s_tt}, {QH_TT}")
    for r in list(range(KS[0] + 20, KS[0] + (28 if LAY else 24))) + list(range(P0 if LAY else P1, P1 + 4)) + list(range(O, O + 16)):
        a(f"v_mov_b32 v{r}, 0")
    a(f"s_mov_b32 s{s_c}, 0")
    a(f"s_mov_b32 s{s_slot}, {3*CH}")
    a(f"s_mov_b32 s{s_cch}, {(-CH) & 0xffffffff}")
    if PSTEP:
        a(f"s_mov_b32 s{s_tgt}, 0")
        if PSEL == "l":
            a(f"s_bitcmp0_b32 s{s_tt}, 1")
            a("s_cbranch_scc1 B_nops")
        a(f"s_mov_b32 s{s_tgt}, {sum(1 << c for c in PSTEP)}")
        a(f"s_setprio {len(PSTEP) + PBASE}")
        a.label("B_nops")
    a(f"v_mov_b32 v{Q2}, 0")
    a(f"v_mov_b32 v{Q2+1}, 0")
    lds_wait(a, "B_wait", SC_CNT + 16, 4, 2, s_spin, s_t0, BSL)
    stamp(a, 9)
    QLD = "\n".join([f"buffer_load_dwordx2 {vr(Q1,2)}, v{v_g0}, {WS}, s{s_base} offen sc1",
                      f"buffer_load_dwordx2 {vr(Q1+2,2)}, v{v_g0+1}, {WS}, s{s_base} offen sc1",
                      "s_mov_b32 exec_hi, 0",
                      f"buffer_load_dwordx2 {vr(Q2,2)}, v{v_g0+2}, {WS}, s{s_base} offen sc1",
                      "s_mov_b32 exec_hi, -1"])
    def kv_off(kind, t):
        p = (t % 8) // 2 * PAIR; b = t % 2
        return {"K1": p + 1024 * b, "K2": p + 2048, "V0": p + 1536 * b, "V1": p + 1536 * b + 768}[kind]
    def rd(dst, kind, t):
        a(f"ds_read_b128 {vr(dst,4)}, v{v_ka if kind[0] == 'K' else v_va} offset:{kv_off(kind, t)}")
    def group_reads(o):
        n = KS[((o + 1) // 2 + 1) % 2]
        if LAY:
            return [(n + 12, "V0", o + 1), (n + 16, "V1", o + 1), (n, "K1", o + 3), (n + 8, "K2", o + 3),
                    (n + 4, "K1", o + 4), (n + 20, "V0", o + 2), (n + 24, "V1", o + 2)]
        return [(n + 12, "V1", o + 1), (n, "K1", o + 3), (n + 8, "K2", o + 3), (n + 16, "V0", o + 2),
                (n + 20, "V1", o + 2), (n + 4, "K1", o + 4), (n + 24, "V0", o + 3)]
    k0 = KS[0]
    def first_reads():
        rd(k0, "K1", 0); rd(k0 + 8, "K2", 0); rd(k0 + 4, "K1", 1)
        if not LAY: rd(k0 + 24, "V0", 0)
        for r in group_reads(-1)[:4]: rd(*r)
        a(f"v_mov_b32 v2, {SC_CNT + 8}")
    if ka2.QS:
        poll(a, "B_pollqd", QLD, f"v_max3_u32 v3, v{Q1}, v{Q1+1}, v{Q1+2}\nv_max3_u32 v1, v{Q1+3}, v{Q2}, v{Q2+1}\nv_max_u32 v3, v3, v1\nv_cmp_eq_u32 vcc, -1, v3",
             1, between=first_reads)
        a("s_waitcnt lgkmcnt(0)")
    else:
        a(QLD)
        first_reads()
        a("s_waitcnt vmcnt(0) lgkmcnt(0)")
    stamp(a, 10)
    if EARR:
        a("s_mov_b64 exec, 1")
        a(f"ds_add_u32 v2, v{v_one}")
        a("s_mov_b64 exec, -1")
    if EARR == 2: a("s_setprio 1")
    mf(a, S1, k0, Q1, "0"); mf8(a, S1, k0 + 8, Q2)
    mf(a, S0, k0, Q1, "0")
    if not EARR:
        a("s_mov_b64 exec, 1")
        a(f"ds_add_u32 v2, v{v_one}")
        a("s_mov_b64 exec, -1")
    a(f"v_max3_f32 v{VT}, v{S1}, v{S1+1}, v{S1+2}")
    a(f"v_max3_f32 v{VT+1}, v{S1+3}, v{S1+4}, v{S1+5}")
    a(f"v_max3_f32 v{VT+2}, v{S1+6}, v{S1+7}, v{S1+8}")
    a(f"v_max3_f32 v{VT+3}, v{S1+9}, v{S1+10}, v{S1+11}")
    a(f"v_max3_f32 v{VT}, v{VT}, v{S1+12}, v{S1+13}")
    a(f"v_max3_f32 v{VT+1}, v{VT+1}, v{S1+14}, v{S1+15}")
    a(f"v_max3_f32 v{VT}, v{VT}, v{VT+2}, v{VT+3}")
    a(f"v_max_f32 v{VT}, v{VT}, v{VT+1}")
    a(f"v_mov_b32 v{VT+1}, v{VT}")
    a(f"v_permlane32_swap_b32 v{VT}, v{VT+1}")
    a(f"v_max_f32 v{VT}, v{VT}, v{VT+1}")
    a("s_mov_b32 exec_lo, 0")
    a(f"v_cvt_pk_bf16_f32 v{Q2}, -v{VT}, 0")
    a("s_mov_b32 exec_lo, -1")
    mf8(a, S0, k0 + 8, Q2)
    stamp(a, 11); stamp(a, 12, 'cyc')
    a("s_waitcnt lgkmcnt(0)")
    if EARR == 2: a("s_setprio 0")
    a("s_nop 10")
    a.raw(".p2align 6")
    a.label("B_loop")
    start = a.mark()
    for u in range(8):
        Sc, Sn = (S0, S1) if u % 2 == 0 else (S1, S0)
        odd = u % 2
        o = u if odd else u - 1
        ks = KS[((o + 1) // 2) % 2]
        reads = group_reads(o)
        slots = [[reads[0]], [reads[1]], [reads[2]], [reads[3]]] if odd else [[reads[4], reads[5]], [reads[6]], [], []]
        if RSL == 1: slots = [[reads[0], reads[3]], [], [reads[1]], [reads[2]]] if odd else [[reads[4], reads[5]], [], [reads[6]], []]
        if RSL == 2: slots = [[reads[0]], [], [reads[1], reads[3]], [reads[2]]] if odd else [[reads[4]], [], [reads[5], reads[6]], []]
        e = lambda i: a(f"v_exp_f32 v{Sc+i}, v{Sc+i}")
        c = lambda i: a(f"v_cvt_pk_bf16_f32 v{P0+i}, v{Sc+2*i}, v{Sc+2*i+1}")
        cp = lambda i: a(f"v_cvt_pk_bf16_f32 v{P0+i}, v{Sn+2*i}, v{Sn+2*i+1}")
        if LAY:
            rs = list(reads[:4] if odd else reads[4:])
            def misc():
                if u == 0:
                    a(f"ds_add_u32 v{v_cnt}, v{v_one} offset:{256 if COMB else 0}")
                    if PSTEP:
                        a(f"s_bitcmp1_b32 s{s_tgt}, s{s_c}")
                        a("s_cbranch_scc1 B_prio")
                        a.label("B_prioret")
                if u == 4: a(f"ds_read_b32 v{v_chk}, v{v_cnt} offset:256")
                if u == 2:
                    a(f"s_cmp_eq_u32 s{s_slot}, 0")
                    a(f"s_cselect_b32 s{s_delta}, {3*CH}, s{s_cch}")
                if u == 6:
                    a(f"s_add_u32 s{s_c}, s{s_c}, 1")
                    a(f"s_cmp_lt_u32 s{s_c}, 8")
            if odd: a("s_waitcnt lgkmcnt(0)")
            mf(a, Sn, ks + (0 if odd else 4), Q1, "0")
            if u == 5:
                a(f"v_readlane_b32 s{s_t0}, v{v_chk}, s{s_c}")
                a(f"s_add_u32 s{s_slot}, s{s_slot}, s{s_delta}")
                a(f"s_cmp_lt_u32 s{s_t0}, {12 if COMB else 4}")
                if "nospin" not in GX: a("s_cbranch_scc1 B_spin")
                a.label("B_synced")
                a(f"v_add_u32 v{v_ka}, s{s_delta}, v{v_ka}")
            if u == 7: a(f"v_add_u32 v{v_va}, s{s_delta}, v{v_va}")
            if u == 2: a(f"v_mov_b32_dpp v{v_one}, v{v_one} row_shr:1 row_mask:0xf bank_mask:0xf bound_ctrl:0")
            e(0); e(1); e(2)
            mf8(a, Sn, ks + 8 + (0 if odd else 2), Q2)
            rd(*rs.pop(0))
            e(3); e(4); e(5)
            mf(a, O, ks + (12 if odd else 20), P0, O)
            if LAY == 2: rd(*rs.pop(0))
            e(6); e(7); e(8)
            mf(a, O, ks + (16 if odd else 24), P1, O)
            if LAY == 1:
                e(9); e(10); c(0); c(1)
                for r in rs: rd(*r)
                misc()
                c(2); e(11); e(12); c(3); c(4); e(13); e(14); e(15); c(5); c(6); c(7)
            else:
                rd(*rs.pop(0))
                e(9); e(10); c(0)
                for r in rs: rd(*r)
                misc()
                c(1); c(2); e(11); e(12); c(3); c(4); e(13); e(14); e(15); c(5); c(6); c(7)
            continue
        if os.environ.get("CHST") and u == 0: a("s_memtime s[98:99]" if os.environ.get("CHST") == "2" else "s_memrealtime s[98:99]")
        cp(6); e(0); e(1); cp(7); e(2); e(3)
        if odd: a("s_waitcnt lgkmcnt(0)")
        if os.environ.get("CHST") and u == 1:
            sl = [2, 3, 4, 5, 6, 8, 9, 10]
            for k in range(7): a(f"s_mov_b32 s{64+2*sl[k]}, s{64+2*sl[k+1]}")
            a(f"s_mov_b32 s{64+2*sl[7]}, s98")
        mf(a, Sn, ks + (0 if odd else 4), Q1, "0")
        for r in slots[0]: rd(*r)
        if u == 5:
            a(f"v_readlane_b32 s{s_t0}, v{v_chk}, s{s_c}")
            a(f"s_add_u32 s{s_slot}, s{s_slot}, s{s_delta}")
            a(f"s_cmp_lt_u32 s{s_t0}, {12 if COMB else 4}")
            if "nospin" not in GX: a("s_cbranch_scc1 B_spin")
            a.label("B_synced")
        if u == 2:
            a(f"s_cmp_eq_u32 s{s_slot}, 0")
            a(f"s_cselect_b32 s{s_delta}, {3*CH}, s{s_cch}")
        e(4); e(5)
        if u == 5: a(f"v_add_u32 v{v_ka}, s{s_delta}, v{v_ka}")
        if u == 2: a(f"v_mov_b32_dpp v{v_one}, v{v_one} row_shr:1 row_mask:0xf bank_mask:0xf bound_ctrl:0")
        if u == 6: a(f"v_add_u32 v{v_va}, s{s_delta}, v{v_va}")
        c(0); c(1); e(6); e(7)
        mf8(a, Sn, ks + 8 + (0 if odd else 2), Q2)
        for r in slots[1]: rd(*r)
        e(8); e(9); c(2); c(3); e(10); e(11)
        mf(a, O, ks + (12 if odd else 20), P1, O)
        for r in slots[2]: rd(*r)
        if u == 0 and PSTEP:
            a(f"s_bitcmp1_b32 s{s_tgt}, s{s_c}")
            a("s_cbranch_scc1 B_prio")
            a.label("B_prioret")
        if u == 0:
            a(f"ds_add_u32 v{v_cnt}, v{v_one} offset:{256 if COMB else 0}")
        if u == 4: a(f"ds_read_b32 v{v_chk}, v{v_cnt} offset:256")
        e(12); e(13); c(4); c(5); e(14); e(15)
        mf(a, O, ks + (16 if odd else 24), P0, O)
        for r in slots[3]: rd(*r)
        if u == 6:
            a(f"s_add_u32 s{s_c}, s{s_c}, 1")
            a(f"s_cmp_lt_u32 s{s_c}, 8")
    a("s_cbranch_scc1 B_loop")
    if ALIGN: print("loop bytes/fixed", a.align8(start))
    a.check_backedge(start)
    stamp(a, 13); stamp(a, 14, 'cyc')
    if LAY:
        mf(a, O, KS[0] + 20, P0, O); mf(a, O, KS[0] + 24, P1, O)
    else:
        for i in (6, 7): a(f"v_cvt_pk_bf16_f32 v{P0+i}, v{S1+2*i}, v{S1+2*i+1}")
        mf(a, O, KS[0] + 20, P1, O)
    if not TRIGST: a(f"ds_add_u32 v{v_cnt}, v{v_one}")
    a(f"ds_read_b32 v{v_chk}, v{v_cnt}")
    a("s_waitcnt lgkmcnt(0)")
    a(f"v_mov_b32 v{VT+2}, {hex(f32bits(2.0**60))}")
    a(f"s_lshl_b32 s{s_base}, s{s_lid}, 3")
    a(f"s_add_u32 s{s_base}, s{s_base}, s{s_w}")
    a(f"s_mul_i32 s{s_base}, s{s_base}, 1280")
    a(f"s_add_u32 s{s_base}, s{s_base}, {WS_O}")
    a(f"v_lshlrev_b32 v{v_g0}, 4, v0")
    a(f"v_lshlrev_b32 v{v_g0+1}, 3, v0")
    a(f"v_mov_b32 v{VT}, v{O+8}")
    a(f"v_mov_b32 v{VT+1}, v{O+8}")
    a(f"v_permlane32_swap_b32 v{VT}, v{VT+1}")
    a(f"v_cmp_nle_f32 vcc, {hex(f32bits(2.0**-60))}, v{VT+1}")
    a(f"v_cmp_nle_f32 s[52:53], v{VT+1}, v{VT+2}")
    a(f"s_or_b64 s[52:53], s[52:53], vcc")
    a("s_cbranch_scc1 B_fallback")
    a.label("B_norm")
    a(f"v_rcp_f32 v{VT}, v{VT+1}")
    for i in range(12): a(f"v_mul_f32 v{O+i}, v{VT}, v{O+i}")
    for i in range(6): a(f"v_cvt_pk_bf16_f32 v{O+i}, v{O+2*i}, v{O+2*i+1}")
    if DRY: a("s_cbranch_execz F_dryret")
    a(f"v_readlane_b32 s{s_t0}, v{v_chk}, 9")
    a(f"s_cmp_eq_u32 s{s_t0}, 4")
    a("s_cbranch_scc1 B_near")
    a(f"buffer_store_dwordx4 {vr(O,4)}, v{v_g0}, {WS}, s{s_base} offen sc1")
    a("s_mov_b32 exec_hi, 0")
    a(f"buffer_store_dwordx2 {vr(O+4,2)}, v{v_g0+1}, {WS}, s{s_base} offen offset:1024 sc1")
    a("s_branch B_done")
    a.label("B_near")
    a(f"buffer_store_dwordx4 {vr(O,4)}, v{v_g0}, {WS}, s{s_base} offen")
    a("s_mov_b32 exec_hi, 0")
    a(f"buffer_store_dwordx2 {vr(O+4,2)}, v{v_g0+1}, {WS}, s{s_base} offen offset:1024")
    a.label("B_done")
    if TRIGST == 2: a("s_waitcnt vmcnt(0)")
    if TRIGST: a(f"ds_add_u32 v{v_cnt}, v{v_one}")
    if STAMP: a("s_waitcnt vmcnt(0)")
    if STAMP:
        stamp(a, 7); stamp(a, 15, True)
        stamp_flush(a, 1, SWS, s_w, 12, 16)
    a("s_endpgm")
    if PSTEP:
        a.label("B_prio")
        for k, c in enumerate(PSTEP):
            a(f"s_setprio {len(PSTEP) - 1 - k + PBASE}")
            a(f"s_cmp_eq_u32 s{s_c}, {c}")
            a("s_cbranch_scc1 B_prioret")
        a("s_branch B_prioret")
    a.label("B_spin")
    a(f"s_mov_b32 s{s_spin}, {SPIN * 40}")
    a.label("B_spin1")
    a(f"s_sleep {os.environ.get('SSL', '4')}")
    a(f"ds_read_b32 v{v_chk}, v{v_cnt} offset:256")
    a("s_waitcnt lgkmcnt(0)")
    a(f"v_readlane_b32 s{s_t0}, v{v_chk}, s{s_c}")
    a(f"s_cmp_ge_u32 s{s_t0}, {12 if COMB else 4}")
    a("s_cbranch_scc1 B_synced")
    a(f"s_sub_u32 s{s_spin}, s{s_spin}, 1")
    a(f"s_cmp_lg_u32 s{s_spin}, 0")
    a("s_cbranch_scc1 B_spin1")
    a("s_branch B_synced")
    a.label("B_fallback")
    a("s_mov_b32 exec_lo, 0")
    a(f"v_mov_b32 v{Q2}, 0")
    a("s_mov_b32 exec_lo, -1")
    a(f"s_add_u32 s{s_slot}, s{s_slot}, {KVB}")
    a(f"v_subrev_u32 v{v_ka}, s{s_slot}, v{v_ka}")
    a(f"v_subrev_u32 v{v_va}, s{s_slot}, v{v_va}")
    a(f"v_mov_b32 v{VT}, 0xff800000")
    for r in range(O, O + 16): a(f"v_mov_b32 v{r}, 0")
    a(f"s_mov_b32 s{s_kvg}, {WS_KV}")
    def ldk():
        for i in range(3): a(f"buffer_load_dwordx4 {vr(k0+4*i,4)}, v{v_ka}, {WS}, s{s_kvg} offen offset:{1024*i} sc1")
    def qk(b):
        S = (S0, S1)[b]
        mf(a, S, k0 + 4 * b, Q1, "0"); mf8(a, S, k0 + 8 + 2 * b, Q2)
    def nxt(lbl):
        a(f"s_add_u32 s{s_kvg}, s{s_kvg}, {PAIR}")
        a(f"s_cmp_lt_u32 s{s_kvg}, {WS_KV + 32*PAIR}")
        a(f"s_cbranch_scc1 {lbl}")
    a.label("B_fb1")
    st = a.mark()
    ldk()
    a("s_waitcnt vmcnt(0)")
    qk(0); qk(1)
    for i in range(0, 32, 2): a(f"v_max3_f32 v{VT}, v{VT}, v{S0+i}, v{S0+i+1}")
    nxt("B_fb1")
    a.check_backedge(st)
    a(f"v_mov_b32 v{VT+1}, v{VT}")
    a(f"v_permlane32_swap_b32 v{VT}, v{VT+1}")
    a(f"v_max_f32 v{VT}, v{VT}, v{VT+1}")
    a(f"s_mov_b32 s{s_kvg}, {WS_KV}")
    a.label("B_fb2")
    st = a.mark()
    ldk()
    for i in range(4): a(f"buffer_load_dwordx4 {vr(k0+12+4*i,4)}, v{v_va}, {WS}, s{s_kvg} offen offset:{768*i} sc1")
    a("s_waitcnt vmcnt(0)")
    qk(0); qk(1)
    for b in range(2):
        S = (S0, S1)[b]
        for i in range(16): a(f"v_sub_f32 v{S+i}, v{S+i}, v{VT}")
        for i in range(16): a(f"v_exp_f32 v{S+i}, v{S+i}")
        for i in range(8): a(f"v_cvt_pk_bf16_f32 v{P0+i}, v{S+2*i}, v{S+2*i+1}")
        mf(a, O, k0 + 12 + 8 * b, P0, O); mf(a, O, k0 + 16 + 8 * b, P1, O)
    nxt("B_fb2")
    a.check_backedge(st)
    a(f"v_mov_b32 v{VT}, v{O+8}")
    a(f"v_mov_b32 v{VT+1}, v{O+8}")
    a(f"v_permlane32_swap_b32 v{VT}, v{VT+1}")
    a("s_nop 1")
    a("s_branch B_norm")

def gemm(a):
    global stamp
    def h_store(sc, vl):
        for k in range(12):
            if k in (4, 10): a("s_add_u32 s53, s53, 4096")
            if k == 6: a(f"s_add_u32 s53, s53, {QH_TT - 4096}")
            a(f"buffer_store_dwordx4 {vr(72+4*k,4)}, v{vl}, {WS}, s53 offen offset:{(k % 6 % 4)*1024}{sc}")
        stamp(a, 3)
    a("s_setprio 3")
    if HEARLY:
        a("s_cmp_eq_u32 s53, -1")
        a("s_cbranch_scc1 G_start")
        if HEARLY > 1: lds_wait(a, "G_wait0", SC_CNT + (16 if HEARLY == 2 else 8), 4 if HEARLY == 2 else HEARLY - 2, 2, s_spin, s_t0, 1)
        h_store(" sc1", 1)
        a.label("G_start")
    lid(a)
    decode_b(a)
    a(f"s_sub_u32 s{s_w}, s{s_w}, 8")
    srd(a, SW2, 56, 1728 * 1280)
    srd(a, SWO, 58, 640 * 1280)
    srd(a, SOUT, 60, 2048 * 1280)
    g = GW(a, 27, 4, 10, STG, PART, SW2, SWS, s_gw)
    v_wd2 = g.v_end
    v_wa2, vfl = 11, v_wd2 + 5
    vx = v_wd2 + 6
    v_wa3 = 0
    s_kw, s_ka, s_w0, s_a0 = 50, 51, 54, 55
    a(f"s_mul_i32 s{s_kvl}, s{s_w}, 6144")
    def kv(c, tag=""):
        if c >= 4: lds_wait(a, f"G_free{c}{tag}", SCW + 4 * (c - 3), NW_, 2, s_spin, s_t0, 4)
        a(f"s_lshr_b32 s{s_kvg}, s{s_tt}, 3")
        a(f"s_add_u32 s{s_kvg}, s{s_kvg}, {c}")
        a(f"s_and_b32 s{s_kvg}, s{s_kvg}, 7")
        a(f"s_mul_i32 s{s_kvg}, s{s_kvg}, {CH}")
        a(f"s_add_u32 s{s_kvg}, s{s_kvg}, s{s_kvl}")
        a(f"s_add_u32 s{s_kvg}, s{s_kvg}, {WS_KV}")
        a(f"s_add_u32 m0, s{s_kvl}, {KVB + (3 - c % 4)*CH}")
        for m in range(4):
            a(f"buffer_load_dwordx4 v{g.v_l16}, {WS}, s{s_kvg} offen offset:{m*1024} sc1 lds"); g.vm.issue(("KV", c))
        a(f"s_add_u32 m0, m0, 4096")
        a(f"s_add_u32 s{s_kvg}, s{s_kvg}, 4096")
        for m in range(2):
            a(f"buffer_load_dwordx4 v{g.v_l16}, {WS}, s{s_kvg} offen offset:{m*1024} sc1 lds"); g.vm.issue(("KV", c))
    def landed(c):
        g.vm.wait(("KV", c))
        a("s_mov_b64 exec, 1")
        a(f"v_mov_b32 v2, {SC_L + 4 * (c - 1)}")
        a(f"v_mov_b32 v3, 1")
        a(f"ds_add_u32 v2, v3"); g.lg.issue("arr")
        a("s_mov_b64 exec, -1")
    s_i4 = s_c
    a(f"s_getreg_b32 s{s_delta}, hwreg(HW_REG_XCC_ID, 0, 4)")
    a(f"s_add_u32 s{s_delta}, s{s_delta}, 16")
    a(f"s_mov_b32 s{s_base}, 0")
    g.setup(s_w, s_hg, s_base)
    a(f"s_and_b32 s{s_t1}, s{s_tt}, 3")
    a(f"s_lshl_b32 s{s_i4}, s{s_t1}, 2")
    s_n = 52
    a(f"s_min_u32 s{s_t0}, s{s_t1}, 2")
    a(f"s_mul_i32 s{s_kw}, s{s_t0}, {NH}")
    a(f"s_cmp_eq_u32 s{s_t1}, 3")
    a(f"s_cselect_b32 s{s_t0}, {NL}, 0")
    a(f"s_add_u32 s{s_kw}, s{s_kw}, s{s_t0}")
    a(f"s_cmp_lt_u32 s{s_t1}, 2")
    a(f"s_cselect_b32 s{s_n}, {NH}, {NL}")
    a(f"s_mul_i32 s{s_w0}, s{s_kw}, {16*1280}")
    a(f"s_mul_i32 s{s_t0}, s{s_hg}, 320")
    a(f"s_add_u32 s{s_w0}, s{s_w0}, s{s_t0}")
    a(f"s_mul_i32 s{s_woff2}, s{s_w}, {160*1280}")
    a(f"s_add_u32 s{s_woff2}, s{s_woff2}, s{s_t0}")
    a(f"s_and_b32 s{s_slot}, s{s_tt}, 0xfc")
    a(f"s_add_u32 s{s_slot}, s{s_slot}, s{s_w}")
    a(f"s_mul_i32 s{s_a0}, s{s_slot}, {QH_TT}")
    a(f"s_lshl_b32 s{s_t0}, s{s_kw}, 10")
    a(f"s_add_u32 s{s_a0}, s{s_a0}, s{s_t0}")
    a(f"s_add_u32 s{s_a0}, s{s_a0}, {WS_QH + 40*1024}")
    a(f"v_mul_u32_u24 v2, 12, v0")
    a(f"s_sub_u32 s{s_t0}, s{s_n}, 1")
    a(f"v_min_u32 v2, s{s_t0}, v2")
    a(f"v_add_u32 v2, s{s_kw}, v2")
    a(f"v_mul_u32_u24 v2, 0x5556, v2")
    a(f"v_lshrrev_b32 v2, 18, v2")
    a(f"s_lshr_b32 s{s_t0}, s{s_tt}, 2")
    a(f"v_mov_b32 v1, s{s_t0}")
    flag_off(a, vfl, 1, 2, 3)
    a(f"s_bfe_u32 s{s_ka}, s{s_tt}, {0x10002 if RB == 1 else 0x20002}")
    a(f"s_lshr_b32 s{s_t0}, s{s_n}, {RB}")
    a(f"s_mul_i32 s{s_ka}, s{s_ka}, s{s_t0}")
    a(f"s_add_u32 s{s_kw}, s{s_ka}, s{s_w}")
    ALT = {31: 2 * CH, 32: CH, 33: 0}
    cur = {"ns": None}
    def dma5(vd, S, tag):
        for m in range(4):
            a(f"buffer_load_dwordx4 v{vd+m}, {S}, s{g.s_woff} offen offset:{m*1024} lds"); g.vm.issue(tag)
        a(f"s_add_u32 m0, m0, 4096")
        a(f"buffer_load_dwordx4 v{vd+4}, {S}, s{g.s_woff} offen lds"); g.vm.issue(tag)
    def load_stage(st):
        a(f"s_cmp_ge_u32 s{s_kw}, s{s_n}")
        a(f"s_cselect_b32 s{s_t0}, s{s_n}, 0")
        a(f"s_sub_u32 s{s_kw}, s{s_kw}, s{s_t0}")
        a(f"s_mul_i32 s{g.s_woff}, s{s_kw}, {16*1280}")
        a(f"s_add_u32 s{g.s_woff}, s{g.s_woff}, s{s_w0}")
        a(f"s_add_u32 s{s_kw}, s{s_kw}, 4")
        if cur["ns"] is None:
            oh, ol = [((st - (n + 3) // 4 + 1) % 3) * 5120 for n in (NH, NL)]
            a(f"s_movk_i32 s{s_t0}, {oh}")
            a(f"s_cmp_ge_u32 s{s_i4}, 8")
            a(f"s_cselect_b32 s{s_t0}, {ol}, s{s_t0}")
            a(f"s_add_u32 m0, s{g.s_lds}, s{s_t0}")
        else: a(f"s_add_u32 m0, s{g.s_lds}, {((st - cur['ns'] + 1) % 3)*5120}")
        dma5(g.v_wd, f"s[{SW2}:{SW2+3}]", ("S", st))
    def load_w(i):
        j = i - 27
        row = 80 * (j // 5) + (20 * (j % 5) if j % 5 < 4 else 16)
        a(f"s_add_u32 s{g.s_woff}, s{s_woff2}, {row*1280}")
        if i in ALT:
            a(f"s_mul_i32 s{s_t0}, s{s_w}, 5120")
            a(f"s_add_u32 m0, s{s_t0}, {KVB + CH + ALT[i]}")
        else: a(f"s_add_u32 m0, s{g.s_lds}, {(i % 3)*5120}")
        dma5(v_wd2 if j % 5 == 4 else g.v_wd, f"s[{SWO}:{SWO+3}]", ("W", i))
    def areg(i): return g.v_act + 4 * ((i - 100) % 8 if i >= 100 else i - 27)
    def load_a(i):
        a(f"s_lshl_b32 s{g.s_aoff}, s{s_ka}, 10")
        a(f"s_add_u32 s{g.s_aoff}, s{g.s_aoff}, s{s_a0}")
        a(f"s_add_u32 s{s_ka}, s{s_ka}, 1")
        a(f"s_cmp_eq_u32 s{s_ka}, s{s_n}")
        a(f"s_cselect_b32 s{s_ka}, 0, s{s_ka}")
        a(f"buffer_load_dwordx4 {vr(areg(i),4)}, v{g.v_l16}, {WS}, s{g.s_aoff} offen sc1"); g.vm.issue(("A", i))
    def rd_t(i, T):
        if i >= 100: base, off = g.v_wa, (i % 4) * PART + (((i - 100) // 4 - cur['ns'] + 1) % 3) * 5120
        else: base, off = (v_wa3, ALT[i]) if i in ALT else (g.v_wa, (i % 3) * 5120)
        for p in range(2):
            a(f"ds_read_b64_tr_b16 {vr(g.v_wf+4*T+2*p,2)}, v{base} offset:{off + T*64 + p*2560}"); g.lg.issue((i, T))
    def rd_w(i):
        g.vm.wait(("W", i))
        for T in range(5): rd_t(i, T)
    def mm(i, nxt=None, pm=0):
        g.vm.wait(("A", i), ("W", nxt))
        low = not 32 <= i < 100
        for T in range(5):
            if low and (pm >> T & 1) != ((pm >> (T - 1) & 1) if T else 1): a(f"s_setprio {3 * (pm >> T & 1)}")
            g.lg.wait((i, T))
            acc = vr(g.v_acc + 16 * T, 16)
            a(f"v_mfma_f32_32x32x16_bf16 {acc}, {vr(g.v_wf+4*T,4)}, {vr(areg(i),4)}, {acc if i != 100 else 0}")
            if nxt is not None: rd_t(nxt, T)
        if low and not pm >> 4 & 1: a("s_setprio 3")
    def sync(st, tag=""):
        g.vm.wait(("S", st))
        lds_arrive(a, SC_CNT + 32 + 4 * st, 2)
        lds_wait(a, f"G_sync{st}{tag}", SC_CNT + 32 + 4 * st, 4, 2, s_spin, s_t0, 1)
        g.lg.q = []
    g.setup2()
    a(f"v_subrev_u32 v{g.v_wa}, s{g.s_lds}, v{g.v_wa}")
    for m in range(5):
        a(f"v_add_u32 v1, {64*m}, v0")
        a(f"v_mul_u32_u24 v2, 0xcccd, v1")
        a(f"v_lshrrev_b32 v2, 22, v2")
        a(f"v_mul_u32_u24 v2, {16*1280}, v2")
        a(f"v_add_u32 v{v_wd2+m}, v2, v{g.v_wd+m}")
    if HEARLY:
        lds_wait(a, "G_wait", SC_CNT + 8, 8, 2, s_spin, s_t0, 1)
        for c in range(1, NF): landed(c)
        a(f"v_mov_b32 v2, 14")
        flag_off(a, g.v_wf, 0, 2, 3)
        def pubh():
            a("s_cmp_eq_u32 s53, -1")
            a("s_cbranch_scc1 G_noh")
            publish(a, "G_pub", 0, 4, 3, WS_FL, 1, vm=1)
            stamp(a, 4)
            a.label("G_noh")
            a("s_mov_b32 exec_lo, 0xffff")
            a("s_mov_b32 exec_hi, 0")
        a("s_mov_b32 exec_lo, 0xffff")
        a("s_mov_b32 exec_hi, 0")
        poll(a, "G_pollkv", f"buffer_load_dword v{g.v_wf+1}, v{g.v_wf}, {WS}, 0 offen sc1", f"v_cmp_gt_u32 vcc, 1, v{g.v_wf+1}", 6, between=pubh)
        a("s_mov_b64 exec, -1")
        g.vm.q = []
        for c in range(NF, 4): kv(c)
    else:
        a(f"v_mov_b32 v2, 14")
        flag_off(a, 1, 0, 2, 3)
        a("s_mov_b32 exec_lo, 0xffff")
        a("s_mov_b32 exec_hi, 0")
        poll(a, "G_pollkv", f"buffer_load_dword v2, v1, {WS}, 0 offen sc1", "v_cmp_gt_u32 vcc, 1, v2", 6)
        a("s_mov_b64 exec, -1")
        lds_wait(a, "G_wait", SC_CNT + 8, GW_N, 2, s_spin, s_t0, 1)
        for c in range(1, NF): landed(c)
        first = list(range(NF, NF + HORD)); later = list(range(NF + HORD, 4))
        for c in first: kv(c)
        a("s_cmp_eq_u32 s53, -1")
        a("s_cbranch_scc1 G_noh")
        if not HEARLY: h_store(" sc1", g.v_l16)
        q0 = list(g.vm.q)
        g.vm.q += ["H"] * 12
        for c in first: landed(c)
        for c in later: kv(c)
        publish(a, "G_pub", 0, 4, 3, WS_FL, 1, vm=6 * len(later))
        stamp(a, 4)
        a("s_branch G_noh2")
        a.label("G_noh")
        g.vm.q = q0
        for c in later: kv(c)
        for c in first: landed(c)
        a.label("G_noh2")
        g.vm.q = [("KV", c) for c in later for _ in range(6)]
        for c in later: landed(c)
    for st in range(NS0): load_stage(st)
    if HEARLY:
        for c in range(NF, 4): landed(c)
    stamp(a, 8)
    a("s_mov_b64 exec, 15")
    poll(a, "G_pollh", f"buffer_load_dword v2, v{vfl}, {WS}, 0 offen sc1", "v_cmp_gt_u32 vcc, 1, v2", 4)
    a("s_mov_b64 exec, -1")
    g.vm.q = []
    stamp(a, 9)
    if STAMP: a("s_waitcnt lgkmcnt(0)")
    for i in range(100, 104): load_a(i)
    for st in range(NS0, 3): load_stage(st)
    for i in range(104, 108): load_a(i)
    vo = vfl
    a(f"s_mul_i32 s{s_base}, s{s_tt}, {32*1280}")
    a(f"s_mul_i32 s{s_t0}, s{s_hg}, 320")
    a(f"s_add_u32 s{s_base}, s{s_base}, s{s_t0}")
    a(f"s_lshl_b32 s{s_t0}, s{s_w}, 4")
    a(f"s_add_u32 s{s_base}, s{s_base}, s{s_t0}")
    a(f"v_and_b32 v1, 31, v0")
    a(f"v_mul_u32_u24 v{vo}, 1280, v1")
    a(f"v_lshrrev_b32 v2, 5, v0")
    a(f"v_lshl_add_u32 v{vo}, v2, 3, v{vo}")
    a(f"v_mul_u32_u24 v{v_wa2}, 1280, v2")
    a(f"v_lshl_add_u32 v{v_wa2}, v1, 3, v{v_wa2}")
    a(f"v_mul_u32_u24 v1, 0xcccd, v0")
    a(f"v_lshrrev_b32 v1, 18, v1")
    a(f"v_mul_u32_u24 v2, 5, v1")
    a(f"v_sub_u32 v2, v0, v2")
    a(f"v_mul_u32_u24 v1, 1280, v1")
    a(f"v_lshl_add_u32 v{vx}, v2, 6, v1")
    a(f"s_mul_i32 s{s_t0}, s{s_w}, 5120")
    a(f"s_add_u32 s{s_t0}, s{s_t0}, {KVB + CH}")
    a(f"v_add_u32 v{v_wa3}, s{s_t0}, v{g.v_wa}")
    for r in range(4): a(f"v_mov_b32 v{vx+4+r}, -1")
    sync(0)
    def ffn(N, tag, kvat, pm, alt):
        ns = (N + 3) // 4
        cur["ns"] = ns
        for T in range(5): rd_t(100, T)
        assert EV + 3 <= kvat[-1] < ns and ns >= EV + 5
        for st in range(ns):
            if st in kvat: kv(4 + kvat.index(st), tag)
            n = min(4, N - 4 * st)
            for j in range(n):
                i = 100 + 4 * st + j
                if j == 3 and st + 1 < ns and SPLIT:
                    g.vm.wait(("S", st + 1))
                    lds_arrive(a, SC_CNT + 32 + 4 * (st + 1), 2); g.lg.issue("arr")
                    mm(i, None, pm)
                    lds_wait(a, f"G_sync{st+1}{tag}", SC_CNT + 32 + 4 * (st + 1), 4, 2, s_spin, s_t0, 1)
                    g.lg.q = []
                    for T in range(5): rd_t(i + 1, T)
                    if st + 3 < ns: load_stage(st + 3)
                    else: load_w(28 + st + 3 - ns)
                    continue
                if j == 3 and st + 1 < ns:
                    sync(st + 1, tag)
                    if st + 3 < ns: load_stage(st + 3)
                    else: load_w(28 + st + 3 - ns)
                mm(i, i + 1 if i + 1 < 100 + N else None, pm)
                if j == min(LJ, n - 1) and st in kvat: landed(4 + kvat.index(st))
            for i in range(4 * st + 8, min(4 * st + 12, N)): load_a(100 + i)
            if st == EV:
                a(f"s_lshl_b32 s{s_t0}, s{s_lid}, 2")
                a(f"s_add_u32 s{s_t0}, s{s_t0}, s{s_w}")
                a(f"s_mul_i32 s{s_t0}, s{s_t0}, 2560")
                a(f"s_add_u32 s{s_t0}, s{s_t0}, {WS_O}")
                for o in (0, 1024, 1536):
                    a(f"buffer_store_dwordx4 {vr(vx+4,4)}, v{g.v_l16}, {WS}, s{s_t0} offen offset:{o} sc1"); g.vm.issue("R")
            if st == EV + 1:
                a(f"s_bfe_u32 s{s_t0}, s{s_tt}, 0x30002")
                a(f"s_mul_i32 s{s_t0}, s{s_t0}, {20*1280}")
                a(f"s_add_u32 s{s_t0}, s{s_t0}, s{s_woff2}")
                a(f"s_add_u32 s{s_t1}, s{s_t0}, {10*1280}")
                a(f"buffer_load_dword v{vx+2}, v{vx}, s[{SWO}:{SWO+3}], s{s_t0} offen"); g.vm.issue("P")
                a(f"buffer_load_dword v{vx+3}, v{vx}, s[{SWO}:{SWO+3}], s{s_t1} offen"); g.vm.issue("P")
            if st == EV + 2:
                g.vm.wait("R")
                publish(a, f"G_pubr{tag}", 4, 4, s_lid, WS_FL + 32768, 1, value=f"s{s_delta}", vm=63, word=s_i4)
                g.lg.q = []
            if st == EV + 3:
                g.vm.wait("P", "R")
                for T in range(5):
                    a(f"buffer_load_dwordx2 {vr(vx+2*T,2)}, v{vo}, s[{SX}:{SX+3}], s{s_base} offen offset:{64*T}"); g.vm.issue("X")
            if st == ns - 2:
                a(f"s_lshl_b32 s{s_t0}, s{s_tt}, 2")
                a(f"s_add_u32 s{s_t0}, s{s_t0}, s{s_w}")
                a(f"s_lshl_b32 s{s_t0}, s{s_t0}, 7")
                a(f"s_add_u32 s{s_t0}, s{s_t0}, s{s_i4}")
                a(f"s_add_u32 s{s_cch}, s{s_t0}, {WS_FL + 32768}")
                a(f"buffer_load_dword v1, off, {WS}, s{s_cch} sc1"); g.vm.issue("M")
            for k in range(2):
                if st == ns - 1 - alt[k]:
                    lds_wait(a, f"G_alt{k}{tag}", SCW + 20 + 4 * k, NW_, 2, s_spin, s_t0, 2)
                    g.lg.q = []
                    load_w(31 + k)
            if st in (0, 3):
                stamp(a, {0: 10, 3: 11}[st])
                if STAMP: a("s_waitcnt lgkmcnt(0)")
        g.vm.wait("M")
    if NH != NL or KVH != KVL or PMH != PML or ALH != ALL:
        a(f"s_cmp_ge_u32 s{s_i4}, 8")
        a("s_cbranch_scc1 G_light")
        vq, lq = list(g.vm.q), list(g.lg.q)
        ffn(NH, "h", KVH, PMH, ALH)
        a("s_branch G_ffnend")
        a.label("G_light")
        g.vm.q, g.lg.q = vq, lq
        ffn(NL, "l", KVL, PML, ALL)
        a.label("G_ffnend")
    else:
        ffn(NH, "h", KVH, PMH, ALH)
    g.vm.q = []; g.lg.q = []
    stamp(a, 12)
    a("v_cmp_gt_u32 vcc, 1, v1")
    a("s_cmp_eq_u64 vcc, 0")
    a("s_cbranch_scc1 G_pollm_ok")
    poll(a, "G_pollm", f"buffer_load_dword v1, off, {WS}, s{s_cch} sc1", "v_cmp_gt_u32 vcc, 1, v1", 8)
    a(f"v_readfirstlane_b32 s{s_t0}, v1")
    a(f"s_cmp_lg_u32 s{s_t0}, s{s_delta}")
    a("s_cbranch_scc1 G_novote")
    if FASTO: lds_arrive(a, SC_K + 36, 2)
    a.label("G_novote")
    pk = g.v_act
    lds_arrive(a, SC_CNT + 96, 2)
    a(f"s_lshl_b32 s{s_t0}, s{s_w}, 2")
    a(f"s_cmp_eq_u32 s{s_t0}, s{s_i4}")
    a("s_cbranch_scc1 G_keep")
    a(f"s_lshl_b32 s{s_t0}, s{s_lid}, 2")
    a(f"s_add_u32 s{s_t0}, s{s_t0}, s{s_w}")
    a(f"s_mul_i32 s{s_t0}, s{s_t0}, 10240")
    a(f"s_add_u32 s{s_t0}, s{s_t0}, {WS_P}")
    def pick(name, body):
        if not NEARP: body(" sc1"); return
        a(f"s_cmp_eq_u32 s52, s{s_delta}")
        a(f"s_cbranch_scc1 {name}_n")
        body(" sc1")
        a(f"s_branch {name}_e")
        a.label(f"{name}_n")
        body(os.environ.get("NPOL", "") if name == "G_snd" else "")
        a.label(f"{name}_e")
    def snd(sc):
        a("s_nop 7")
        for k in range(10):
            for r in range(4): a(f"v_cvt_pk_bf16_f32 v{pk+4*k+r}, v{g.v_acc+8*k+2*r}, v{g.v_acc+8*k+2*r+1}")
            if k in (4, 8): a(f"s_add_u32 s{s_t0}, s{s_t0}, 4096")
            a(f"buffer_store_dwordx4 {vr(pk+4*k,4)}, v{g.v_l16}, {WS}, s{s_t0} offen offset:{(k%4)*1024}{sc}")
    pick("G_snd", snd)
    a.label("G_keep")
    def not_owner(lbl):
        a(f"s_lshl_b32 s{s_t1}, s{s_w}, 2")
        a(f"s_cmp_eq_u32 s{s_t1}, s{s_i4}")
        a(f"s_cbranch_scc1 {lbl}")
    lds_wait(a, "G_sync7", SC_CNT + 96, 4, 2, s_spin, s_t0, 1)
    g.lg.q = []
    a(f"v_add_u32 v{g.v_wa}, s{g.s_lds}, v{g.v_wa}")
    load_w(27)
    a(f"s_lshl_b32 s{s_t0}, s{s_tt}, 2")
    a(f"s_add_u32 s{s_t0}, s{s_t0}, s{s_w}")
    a(f"s_mul_i32 s{g.s_aoff}, s{s_t0}, 10240")
    a(f"s_add_u32 s{g.s_aoff}, s{g.s_aoff}, {WS_O}")
    a(f"s_add_u32 s{s_a0}, s{g.s_aoff}, 5120")
    a(f"s_lshl_b32 s{s_slot}, s{s_slot}, 2")
    a(f"s_add_u32 s{s_slot}, s{s_slot}, s{s_hg}")
    a(f"s_lshl_b32 s{s_t1}, s{s_slot}, 7")
    a(f"s_add_u32 s{s_t1}, s{s_t1}, s{s_i4}")
    a(f"s_add_u32 s{s_kvg}, s{s_t1}, {WS_FL + 32768}")
    not_owner("G_keep2")
    a(f"s_lshl_b32 s{s_t0}, s{s_lid}, 7")
    a(f"s_add_u32 s{s_t0}, s{s_t0}, s{s_t1}")
    a(f"s_add_u32 s{s_t0}, s{s_t0}, {WS_FL + 32768}")
    a("v_mov_b32 v1, 1")
    a("s_waitcnt vmcnt(5)")
    a("s_mov_b64 exec, 1")
    pick("G_sfl", lambda sc: a(f"buffer_store_dword v1, off, {WS}, s{s_t0}{sc}"))
    a("s_mov_b64 exec, -1")
    a.label("G_keep2")
    if TAILST: stamp(a, 8)
    assert (ALH[1] < 0) == (ALL[1] < 0) and ALH[0] >= 0 and ALL[0] >= 0
    rd_w(27); g.lg.drain(); load_w(30)
    if ALH[1] < 0:
        lds_wait(a, "G_alt1x", SCW + 24, NW_, 2, s_spin, s_t0, 2)
        load_w(32)
    def unpack(k0_, k1_):
        for k in range(k0_, k1_):
            for r in range(4):
                a(f"v_lshlrev_b32 v{g.v_acc+8*k+2*r}, 16, v{pk+4*k+r}")
                a(f"v_and_b32 v{g.v_acc+8*k+2*r+1}, s{s_cch}, v{pk+4*k+r}")
    a(f"s_mov_b32 s{s_cch}, 0xffff0000")
    not_owner("G_keep3")
    poll(a, "G_pollr", f"buffer_load_dword v1, off, {WS}, s{s_kvg} sc1", "v_cmp_gt_u32 vcc, 1, v1", 2)
    a(f"s_mul_i32 s{s_t0}, s{s_slot}, 40960")
    a(f"s_mul_i32 s{s_t1}, s{s_i4}, 2560")
    a(f"s_add_u32 s{s_t0}, s{s_t0}, s{s_t1}")
    a(f"s_add_u32 s{s_t0}, s{s_t0}, {WS_P}")
    for k in range(10):
        if k in (4, 8): a(f"s_add_u32 s{s_t0}, s{s_t0}, 4096")
        a(f"buffer_load_dwordx4 {vr(pk+4*k,4)}, v{g.v_l16}, {WS}, s{s_t0} offen offset:{(k%4)*1024} sc1")
    a("s_waitcnt vmcnt(5)")
    unpack(0, 5)
    a.label("G_keep3")
    stamp(a, 5)
    lds_wait(a, "G_trig0", SC_K + 32, TRIG[0], 2, s_spin, s_t0, 1)
    def o_poll(half):
        b = areg(27 + 5 * half)
        so = g.s_aoff if half == 0 else s_a0
        ld = [f"buffer_load_dwordx4 {vr(b+4*j,4)}, v{g.v_l16}, {WS}, s{so} offen offset:{j*1280} sc1" for j in range(4)]
        ld += [f"buffer_load_dwordx2 {vr(b+16+2*j,2)}, v{v_wa2}, {WS}, s{so} offen offset:{1024+2560*j} sc1" for j in range(2)]
        ck = [f"v_max3_u32 v{1+k}, v{b+3*k}, v{b+3*k+1}, v{b+3*k+2}" for k in range(3)]
        ck += [f"v_max3_u32 v{1+k}, v{1+k}, v{b+9+2*k}, v{b+10+2*k}" for k in range(3)]
        ck += [f"v_max3_u32 v1, v1, v{b+15}, v{b+16}", f"v_max3_u32 v2, v2, v{b+17}, v{b+18}", f"v_max_u32 v3, v3, v{b+19}",
               "v_max3_u32 v1, v1, v2, v3", "v_cmp_eq_u32 vcc, -1, v1"]
        return "\n".join(ld), "\n".join(ck)
    def rest():
        not_owner("G_keep4")
        a("s_waitcnt vmcnt(6)")
        unpack(5, 10)
        a.label("G_keep4")
    poll(a, "G_pollo0", *o_poll(0), OSL[0], between=rest)
    g.vm.q = []
    if TAILST: stamp(a, 6); a("s_waitcnt lgkmcnt(0)")
    lds_wait(a, "G_alt1", SCW + 28, NW_, 2, s_spin, s_t0, 1)
    load_w(33)
    for i in range(27, 31):
        mm(i, i + 1)
        if 28 <= i <= 30: load_w(i + 6)
    def last_first():
        for _ in range(6): g.vm.issue("O")
        mm(31, 32)
        stamp(a, 2)
    if SPEC:
        poll(a, "G_pollo1", *o_poll(1), OSL[1], between=last_first)
    else:
        mm(31, 32)
        stamp(a, 2)
        lds_wait(a, "G_trig1", SC_K + 32, TRIG[1], 2, s_spin, s_t0, 1)
        g.lg.q = []
        poll(a, "G_pollo1", *o_poll(1), OSL[1])
    g.vm.q = []
    a("s_setprio 3")
    stamp(a, 13)
    if STAMP: a("s_waitcnt lgkmcnt(0)")
    for i in range(32, 37): mm(i, i + 1 if i < 36 else None)
    stamp(a, 14)
    xf = g.v_act
    for T in range(5):
        a(f"v_lshlrev_b32 v{xf+4*T}, 16, v{vx+2*T}")
        a(f"v_and_b32 v{xf+4*T+1}, 0xffff0000, v{vx+2*T}")
        a(f"v_lshlrev_b32 v{xf+4*T+2}, 16, v{vx+2*T+1}")
        a(f"v_and_b32 v{xf+4*T+3}, 0xffff0000, v{vx+2*T+1}")
    for q in range(4):
        a(f"s_sub_u32 s{s_t0}, {q + 3}, s{s_w}")
        a(f"s_and_b32 s{s_t0}, s{s_t0}, 3")
        a(f"s_cmp_eq_u32 s{s_t0}, 3")
        a(f"s_cbranch_scc1 G_own{q}")
        a(f"s_mul_i32 s{s_t0}, s{s_t0}, 5120")
        a(f"s_add_u32 s{s_t0}, s{s_t0}, s{g.s_lds}")
        a(f"v_add_u32 v1, s{s_t0}, v{g.v_l16}")
        for T in range(5): a(f"ds_write_b128 v1, {vr(g.v_acc+16*T+4*q,4)} offset:{T*1024}")
        a(f"s_branch G_nxt{q}")
        a.label(f"G_own{q}")
        for T in range(5):
            for h in range(2): a(f"v_pk_add_f32 {vr(xf+4*T+2*h,2)}, {vr(xf+4*T+2*h,2)}, {vr(g.v_acc+16*T+4*q+2*h,2)}")
        a.label(f"G_nxt{q}")
    for k in range(3):
        a(f"s_add_u32 s{s_t0}, s{s_w}, {3 - k}")
        a(f"s_and_b32 s{s_t0}, s{s_t0}, 3")
        a(f"s_mul_i32 s{s_t0}, s{s_t0}, {PART}")
        a(f"s_add_u32 s{s_t0}, s{s_t0}, {STG + k*5120}")
        a(f"v_add_u32 v{4+k}, s{s_t0}, v{g.v_l16}")
    a("s_waitcnt lgkmcnt(0)")
    if TAILST: stamp(a, 10)
    a("s_barrier")
    if TAILST: stamp(a, 11); a("s_waitcnt lgkmcnt(0)")
    for T in range(5):
        for k in range(3):
            a(f"ds_read_b128 {vr(g.v_acc+16*T+4*k,4)}, v{4+k} offset:{T*1024}"); g.lg.issue(T)
    for T in range(5): fin_tile(a, g, T, xf, vo)
    if STAMP:
        if TAILST: stamp(a, 9)
        a("s_waitcnt vmcnt(0)"); stamp(a, 7); stamp(a, 15, True)
        a(f"s_add_u32 s{s_w}, s{s_w}, 8")
        stamp_flush(a, 1, SWS, s_w, 12, 16, gsel=[(9, False), (10, False), (12, False), (13, False), (14, False), (15, False)], goff=8)
    if os.environ.get("PADT"):
        a.label("G_pad")
        a("s_memrealtime s[68:69]")
        a("s_waitcnt lgkmcnt(0)")
        a("s_sub_u32 s68, s68, s66")
        a(f"s_cmp_lt_u32 s68, {os.environ['PADT']}")
        a("s_cbranch_scc1 G_pad")
    a("s_endpgm")
    return vx + 10

def fin_tile(a, g, T, xf, vo):
    b = g.v_acc + 16 * T
    g.lg.wait(T)
    for h in range(2):
        a(f"v_pk_add_f32 {vr(b+2*h,2)}, {vr(b+2*h,2)}, {vr(b+4+2*h,2)}")
        a(f"v_pk_add_f32 {vr(b+8+2*h,2)}, {vr(b+8+2*h,2)}, {vr(xf+4*T+2*h,2)}")
    for h in range(2):
        a(f"v_pk_add_f32 {vr(b+2*h,2)}, {vr(b+2*h,2)}, {vr(b+8+2*h,2)}")
    a(f"v_cvt_pk_bf16_f32 v{b}, v{b}, v{b+1}")
    a(f"v_cvt_pk_bf16_f32 v{b+1}, v{b+2}, v{b+3}")
    a(f"buffer_store_dwordx2 {vr(b,2)}, v{vo}, s[{SOUT}:{SOUT+3}], s{s_base} offen offset:{64*T}{os.environ.get('OUTP', '')}")

def gen_f(a, name="parallel_sum__grouped_kv_mqa__dense_activation_relu__prompt_kernel"):
    kernel_header(a, name)
    a("s_cmp_ge_u32 s2, 256")
    a("s_cbranch_scc1 F_end")
    stamp(a, 0, True); stamp(a, 1)
    if os.environ.get("PADT"): a("s_memrealtime s[66:67]")
    def clear_cnt(a):
        a("v_lshlrev_b32 v1, 2, v0")
        a(f"v_add_u32 v1, {SC_CNT}, v1")
        a("v_mov_b32 v2, 0")
        a("ds_write_b32 v1, v2")
        a("ds_write_b32 v1, v2 offset:256")
        a("v_cmp_lt_u32 vcc, 6, v0")
        a("v_cndmask_b32 v2, 0, 4, vcc")
        a("ds_write_b32 v1, v2 offset:512")
        a("s_waitcnt lgkmcnt(0)")
    def start_hook(a):
        clear_cnt(a)
        attn_addr(a)
        if TLBW:
            a(f"s_cmp_lg_u32 s{s_w}, 5")
            a("s_cbranch_scc1 F_notlb")
            for _ in range(TLBW - 1): a("s_barrier")
            a(f"v_lshlrev_b32 v1, {TLBS}, v0")
            a(f"v_add_u32 v1, 0x100, v1")
            for ptr, n in ((56, 1728 * 1280), (58, 640 * 1280), (60, 2048 * 1280)):
                srd(a, 16, ptr, n)
                a(f"buffer_load_dword v2, v1, s[16:19], 0 offen")
            for k in range((WS_SIZE >> TLBS) // 64 + 1):
                a(f"s_mov_b32 s35, {k * 64 << TLBS}")
                a(f"buffer_load_dword v2, v1, {WS}, s35 offen sc1")
            for _ in range(10 - (TLBW - 1)): a("s_barrier")
            a("s_waitcnt vmcnt(0)")
            a("s_branch F_attn")
            a.label("F_notlb")
    def pre_ba(a):
        attn_addr(a)
        q_probe(a)
    def done_help(a): a("s_branch F_fetch")
    def done_stats(a): a("s_branch F_dry" if DRY else "s_branch F_attn")
    def done_comp(a): a("s_branch F_pub")
    def spare(a):
        ka2.produce_stats(a)
        clear_cnt(a)
        attn_addr(a)
        a(f"s_cmp_lg_u32 s{s_w}, 0")
        a("s_cbranch_scc1 F_sp1")
        ka2.dbg_check(a, "F_dbg")
        a.label("F_sp1")
        a("s_barrier")
        a(f"s_cmp_ge_u32 s{s_w}, 8")
        a("s_cbranch_scc1 F_gemm0")
        q_probe(a)
        a(f"s_cmp_lt_u32 s{s_w}, 5")
        a("s_cbranch_scc1 F_fetch")
        fetch_kv(a, "s", False)
    phase_a(a, done_help, done_stats, done_comp, spare, start_hook, pre_ba, lambda a: fetch_kv(a, 'i', True))
    a.label("F_fetch")
    fetch(a)
    a.label("F_attn")
    attention(a)
    if DRY:
        a.label("F_dry")
        a(f"s_cmp_eq_u32 s{s_w}, 4")
        a("s_cbranch_scc1 F_attn")
        a("s_mov_b64 exec, 0")
        a(f"s_mov_b32 s{s_c}, 7")
        a(f"s_cmp_eq_u32 s{s_w}, 5")
        a("s_cbranch_scc1 B_loop")
        a(f"s_cmp_eq_u32 s{s_w}, 6")
        a("s_cbranch_scc1 B_u3")
        a("s_branch B_synced")
        a.label("F_dryret")
        a("s_mov_b64 exec, -1")
        a("s_nop 7")
        a("s_nop 7")
        a("s_branch F_attn")
    a.label("F_pub")
    stamp(a, 3)
    if WFL:
        a(f"s_and_b32 s{s_t0}, s3, 15")
        a(f"s_cmp_eq_u32 s{s_t0}, 14")
        a("s_cbranch_scc1 F_pubkv")
        a(f"s_lshl_b32 s{s_t0}, s3, 5")
        a(f"s_add_u32 s{s_t0}, s{s_t0}, s{s_w}")
        a(f"s_lshl_b32 s{s_t0}, s{s_t0}, 2")
        a(f"s_add_u32 s{s_t0}, s{s_t0}, {WS_FL - 32}")
        a("v_mov_b32 v1, 1")
        a("s_mov_b64 exec, 1")
        a("s_waitcnt vmcnt(0)")
        a(f"buffer_store_dword v1, off, {WS}, s{s_t0} sc1")
        lds_arrive(a, SC_CNT, 2)
        a("s_branch F_pub2")
        a.label("F_pubkv")
    publish(a, "F_pub2", 0, 4, 3, WS_FL, 1)
    stamp(a, 4)
    lds_wait(a, "F_all", SC_CNT, 4, 2, s_spin, s_t0)
    a.label("F_gemm0")
    a("s_mov_b32 s53, -1")
    a.label("F_gemm")
    nv = gemm(a)
    a.label("F_end")
    a("s_endpgm")
    assert nv <= 168, nv
    return dict(name=name, grid=256, block=768, lds=LDS_A, vgpr=168, sgpr=102 if STAMP else 72, single=True)
```

```python
from common import *
from gw import *
import ka2
from ka2 import phase_a, SC_CNT, LDS_A
def two_ways(a, name, body): body(' sc1')

GPRIO = int(os.environ.get("GPRIO", "0"))
HOLD = 1
GROT = int(os.environ.get("GROT", "9"))
GX = os.environ.get("GX", "")
UARR = int(os.environ.get("UARR", "0"))
SC_L = None
DRY = int(os.environ.get("DRY", "0"))
PACE = [float(x) for x in os.environ.get("PACE", "1.7,7.0").split(",")]
PEND = int(os.environ.get("PEND", "99"))
ABAT = int(os.environ.get("ABAT", "0"))
PIPE = int(os.environ.get("PIPE", "1"))
KV4 = int(os.environ.get("KV4", "0"))
TRIG = [int(x) for x in os.environ.get("TRIG", "4,8").split(",")]
TAILST = os.environ.get("TAILST")
OSL = [int(x) for x in os.environ.get("OSL", "1,1").split(",")]
WOPF = int(os.environ.get("WOPF", "10"))
ALT1 = int(os.environ.get("ALT1", "0"))
MARK = int(os.environ.get("MARK", "1"))
NS0 = int(os.environ.get("NS0", "2"))
WEARLY = int(os.environ.get("WEARLY", "2"))
W2PF = int(os.environ.get("W2PF", "3"))
HP = int(os.environ.get("HP", "1"))
FASTO = int(os.environ.get("FASTO", "1"))
TRIGST = int(os.environ.get("TRIGST", "1"))
PMASK = int(os.environ.get("PMASK", "0"))
PSTEP = [int(x) for x in os.environ.get("PSTEP", "2,4").split(",") if x]
PBASE = int(os.environ.get("PBASE", "0"))
ALIGN = int(os.environ.get("ALIGN", "0"))
HNEAR = int(os.environ.get("HNEAR", "0"))
JIT = int(os.environ.get("JIT", "0"))
LAY = int(os.environ.get("LAY", "0"))
TLBW = int(os.environ.get("TLBW", "0"))
TLBS = int(os.environ.get("TLBS", "21"))
HORD = int(os.environ.get("HORD", "0"))
GW_N = int(os.environ.get("GW_N", "8"))
OPF = int(os.environ.get("OPF", "9"))
SPEC = int(os.environ.get("SPEC", "1"))
HPI = int(os.environ.get("HPI", "32"))
NEARP = int(os.environ.get("NEARP", "0"))
AD = int(os.environ.get("AD", "8"))
LJ = int(os.environ.get("LJ", "1"))
MD = int(os.environ.get("MD", "2"))
WPF = int(os.environ.get("WPF", "2"))
XST = int(os.environ.get("XST", "4"))
BSL = int(os.environ.get("BSL", "1"))
NF = int(os.environ.get("NF", "3"))
WFL = int(os.environ.get("WFL", "0"))
NH = int(os.environ.get("NH", "27")); NL = 54 - NH
KVH = [int(x) for x in os.environ.get("KVH", "1,2,4,6").split(",")]
KVL = [int(x) for x in os.environ.get("KVL", os.environ.get("KVH", "1,2,4,6")).split(",")]
PMH = int(os.environ.get("PMH", "0")); PML = int(os.environ.get("PML", str(PMH)))
PSEL = os.environ.get("PSEL", "a")
ALH = [int(x) for x in os.environ.get("ALH", "0,-1").split(",")]
ALL = [int(x) for x in os.environ.get("ALL", "0,-1").split(",")]
EV = int(os.environ.get("EV", "1"))
RB = int(os.environ.get("RB", "1"))
RSL = int(os.environ.get("RSL", "1"))
SPLIT = int(os.environ.get("SPLIT", "0"))
EARR = int(os.environ.get("EARR", "1"))
QPRE = int(os.environ.get("QPRE", "0"))
HEARLY = int(os.environ.get("HEARLY", "6"))
DEFW = int(os.environ.get("DEFW", "4"))
DEFER = int(os.environ.get("DEFER", "0"))
PAIR = 2 * KV_TILE
CH = 8 * KV_TILE
STG = 0
KVB = 4 * PART
assert KVB + 4 * CH <= ka2.SCR and KVB >= ka2.SLOT and KVB + 3 * CH >= 3 * ka2.SLOT
RESET_WG = (3 << 6) | (3 << 1)

SX, SW2, SWS, SWO, SOUT, SDBG = 4, 8, 12, 16, 20, 16
s_w, s_tt, s_hg, s_t0, s_t1, s_c, s_slot, s_delta, s_cch, s_base, s_spin, s_kvl, s_kvg, s_woff2 = range(32, 46)
s_gw = 46
s_lid = 97 if STAMP else 64
WS = f"s[{SWS}:{SWS+3}]"
Q1, Q2, P0, P1, O, S0, S1 = 4, 8, 12, 16, 20, 36, 52
KS = [68, 96]
v_ka, v_va, v_g0, VT = 124, 125, 126, 130
v_l16, v_cnt, v_one, v_chk = 136, 137, 138, 139
SC_K = SC_CNT + 256
SC_L = SC_K + 256
COMB = int(os.environ.get('COMB', '0'))
SCW, NW_ = (SC_L, 12) if COMB else (SC_K, 8)
s_tgt = 45

def mf(a, d, x, y, c): a(f"v_mfma_f32_32x32x16_bf16 {vr(d,16)}, {vr(x,4)}, {vr(y,4)}, {c if isinstance(c,str) else vr(c,16)}")
def mf8(a, d, x, y): a(f"v_mfma_f32_32x32x8_bf16 {vr(d,16)}, {vr(x,2)}, {vr(y,2)}, {vr(d,16)}")

def flag_off(a, vd, vrb, vg, t):
    a(f"v_lshl_add_u32 v{vd}, v{vrb}, 4, v{vg}")
    a(f"v_lshlrev_b32 v{vd}, 7, v{vd}")
    a(f"v_add_u32 v{vd}, {WS_FL}, v{vd}")

def publish(a, name, cnt_off, nwaves, sid, base, t, value=1, vm=0, word=None, near=False):
    a(f"s_waitcnt vmcnt({vm})")
    a("s_mov_b64 exec, 1")
    a(f"v_mov_b32 v{t}, {SC_CNT + cnt_off}")
    a(f"v_mov_b32 v{t+1}, 1")
    a(f"ds_add_rtn_u32 v{t+1}, v{t}, v{t+1}")
    a(f"s_lshl_b32 s{s_t0}, s{sid}, 7")
    a(f"s_add_u32 s{s_t0}, s{s_t0}, {base}")
    a(f"v_mov_b32 v{t}, {0 if word is None else 's%d' % word}")
    a(f"v_mov_b32 v{t+2}, {value}")
    a("s_waitcnt lgkmcnt(0)")
    a(f"v_readfirstlane_b32 s{s_t1}, v{t+1}")
    a(f"s_cmp_lg_u32 s{s_t1}, {nwaves-1}")
    a(f"s_cbranch_scc1 {name}")
    if near: two_ways(a, name + "w", lambda sc: a(f"buffer_store_dword v{t+2}, v{t}, {WS}, s{s_t0} offen{sc}"))
    else: a(f"buffer_store_dword v{t+2}, v{t}, {WS}, s{s_t0} offen sc1")
    a.label(name)
    a("s_mov_b64 exec, -1")

def lid(a):
    BMAP = int(os.environ.get("BMAP", "4"))
    if BMAP == 0: a(f"s_mov_b32 s{s_lid}, s2")
    elif BMAP == 1:
        a(f"s_bfe_u32 s{s_lid}, s2, 0x20001")
        a(f"s_lshl_b32 s{s_lid}, s{s_lid}, 4")
        a(f"s_lshr_b32 s35, s2, 4")
        a(f"s_add_u32 s{s_lid}, s{s_lid}, s35")
        a(f"s_lshl_b32 s{s_lid}, s{s_lid}, 1")
        a(f"s_and_b32 s35, s2, 1")
        a(f"s_add_u32 s{s_lid}, s{s_lid}, s35")
        a(f"s_lshl_b32 s{s_lid}, s{s_lid}, 1")
        a(f"s_bfe_u32 s35, s2, 0x10003")
        a(f"s_add_u32 s{s_lid}, s{s_lid}, s35")
    elif BMAP == 3:
        a(f"s_lshr_b32 s{s_lid}, s2, 4")
        a(f"s_lshl_b32 s{s_lid}, s{s_lid}, 3")
        a(f"s_and_b32 s35, s2, 7")
        a(f"s_add_u32 s{s_lid}, s{s_lid}, s35")
        a(f"s_lshl_b32 s{s_lid}, s{s_lid}, 1")
        a(f"s_bfe_u32 s35, s2, 0x10003")
        a(f"s_add_u32 s{s_lid}, s{s_lid}, s35")
    elif BMAP == 4:
        a(f"s_and_b32 s{s_lid}, s2, 1")
        a(f"s_lshl_b32 s{s_lid}, s{s_lid}, 3")
        a(f"s_lshr_b32 s35, s2, 5")
        a(f"s_add_u32 s{s_lid}, s{s_lid}, s35")
        a(f"s_lshl_b32 s{s_lid}, s{s_lid}, 2")
        a(f"s_bfe_u32 s35, s2, 0x20001")
        a(f"s_add_u32 s{s_lid}, s{s_lid}, s35")
        a(f"s_lshl_b32 s{s_lid}, s{s_lid}, 2")
        a(f"s_bfe_u32 s35, s2, 0x20003")
        a(f"s_add_u32 s{s_lid}, s{s_lid}, s35")
    elif BMAP == 5:
        a(f"s_bfe_u32 s{s_lid}, s2, 0x10002")
        a(f"s_lshl_b32 s{s_lid}, s{s_lid}, 3")
        a(f"s_lshr_b32 s35, s2, 5")
        a(f"s_add_u32 s{s_lid}, s{s_lid}, s35")
        a(f"s_lshl_b32 s{s_lid}, s{s_lid}, 1")
        a(f"s_and_b32 s35, s2, 1")
        a(f"s_add_u32 s{s_lid}, s{s_lid}, s35")
        a(f"s_lshl_b32 s{s_lid}, s{s_lid}, 1")
        a(f"s_bfe_u32 s35, s2, 0x10001")
        a(f"s_add_u32 s{s_lid}, s{s_lid}, s35")
        a(f"s_lshl_b32 s{s_lid}, s{s_lid}, 2")
        a(f"s_bfe_u32 s35, s2, 0x20003")
        a(f"s_add_u32 s{s_lid}, s{s_lid}, s35")
    else:
        a(f"s_and_b32 s{s_lid}, s2, 7")
        a(f"s_lshl_b32 s{s_lid}, s{s_lid}, 5")
        a(f"s_lshr_b32 s35, s2, 3")
        a(f"s_add_u32 s{s_lid}, s{s_lid}, s35")
    if STAMP == 3: a("s_mov_b32 s72, 0")

def decode_b(a):
    a(f"s_lshr_b32 s{s_tt}, s{s_lid}, 2")
    a(f"s_and_b32 s{s_hg}, s{s_lid}, 3")

def attn_addr(a):
    lid(a)
    a(f"s_and_b32 s{s_t0}, s{s_lid}, 3")
    a(f"s_lshl_b32 s{s_t0}, s{s_t0}, 3")
    a(f"s_add_u32 s{s_t0}, s{s_t0}, s{s_w}")
    a(f"s_mul_i32 s{s_t0}, s{s_t0}, 5")
    a(f"v_lshrrev_b32 v2, 5, v0")
    a(f"v_and_b32 v3, 31, v0")
    a(f"v_lshlrev_b32 v3, 4, v3")
    for i in range(3):
        if i < 2: a(f"v_add_u32 v1, s{s_t0}, v2")
        else: a(f"v_mov_b32 v1, s{s_t0}")
        if i: a(f"v_add_u32 v1, {2*i}, v1")
        a(f"v_lshrrev_b32 v{VT}, 2, v1")
        a(f"v_lshl_add_u32 v{v_g0+i}, v{VT}, 10, v3")
        a(f"v_and_b32 v{VT}, 1, v1")
        a(f"v_lshl_add_u32 v{v_g0+i}, v{VT}, 9, v{v_g0+i}")
        a(f"v_bfe_u32 v{VT}, v1, 1, 1")
        a(f"v_lshl_add_u32 v{v_g0+i}, v{VT}, 3, v{v_g0+i}")
    a(f"v_lshlrev_b32 v{v_l16}, 4, v0")
    a(f"v_add_u32 v{v_ka}, {KVB + 3*CH}, v{v_l16}")
    a(f"v_lshlrev_b32 v{v_cnt}, 2, v0")
    a(f"v_add_u32 v{v_cnt}, {SC_K}, v{v_cnt}")
    a(f"v_cmp_eq_u32 vcc, 0, v0")
    a(f"v_cndmask_b32 v{v_one}, 0, 1, vcc")
    a(f"v_and_b32 v1, 31, v0")
    a(f"v_min_u32 v1, 23, v1")
    a(f"v_mul_u32_u24 v{v_va}, 384, v2")
    a(f"v_lshl_add_u32 v{v_va}, v1, 4, v{v_va}")
    a(f"v_add_u32 v{v_va}, {KVB + 3*CH + 3072}, v{v_va}")

QFL = lambda: f"buffer_load_dword v6, v4, {WS}, 0 offen sc1"
def q_probe(a):
    decode_b(a)
    a(f"s_lshr_b32 s{s_t0}, s{s_tt}, 2")
    a(f"v_mov_b32 v1, s{s_t0}")
    a(f"s_add_u32 s{s_t1}, s{s_hg}, 9")
    a(f"v_add_u32 v2, s{s_t1}, v0")
    flag_off(a, 4, 1, 2, 3)
    a("s_mov_b64 exec, 3")
    if QPRE: a(QFL())
    else: a("v_mov_b32 v6, 0")
    a("s_mov_b64 exec, -1")

def fetch(a):
    a(f"s_cmp_lg_u32 s{s_w}, 0")
    a("s_cbranch_scc1 F_attn")
    a("s_mov_b64 exec, 3")
    a("s_waitcnt vmcnt(0)")
    a("v_cmp_gt_u32 vcc, 1, v6")
    a("s_cmp_eq_u64 vcc, 0")
    a("s_cbranch_scc1 B_pollq_ok")
    poll(a, "B_pollq", QFL(), "v_cmp_gt_u32 vcc, 1, v6", 2)
    lds_arrive(a, SC_CNT + 16, 2)

def fetch_kv(a, tag, bar):
    decode_b(a)
    a(f"s_lshr_b32 s{s_t0}, s{s_tt}, 3")
    a(f"s_lshl_b32 s{s_t1}, s{s_t0}, 1")
    a(f"v_add_u32 v1, s{s_t1}, v0")
    a(f"v_and_b32 v1, 15, v1")
    a(f"v_mov_b32 v2, 14")
    flag_off(a, 4, 1, 2, 3)
    a(f"s_mul_i32 s{s_t0}, s{s_t0}, {CH}")
    a(f"s_sub_u32 s{s_kvl}, s{s_w}, 5")
    a(f"s_lshl_b32 s{s_kvl}, s{s_kvl}, 13")
    a(f"s_add_u32 s{s_kvg}, s{s_kvl}, s{s_t0}")
    LD = f"buffer_load_dword v2, v4, {WS}, 0 offen sc1"
    def dma(c=0):
        a("s_mov_b64 exec, -1")
        if c:
            a(f"s_lshr_b32 s{s_t0}, s{s_tt}, 3")
            a(f"s_add_u32 s{s_t0}, s{s_t0}, {c}")
            a(f"s_and_b32 s{s_t0}, s{s_t0}, 7")
            a(f"s_mul_i32 s{s_t0}, s{s_t0}, {CH}")
            a(f"s_add_u32 s{s_kvg}, s{s_kvl}, s{s_t0}")
        for hf in range(2):
            a(f"s_add_u32 m0, s{s_kvl}, {KVB + (3-c)*CH + hf*4096}")
            a(f"s_add_u32 s{s_t1}, s{s_kvg}, {WS_KV + hf*4096}")
            for m in range(4): a(f"buffer_load_dwordx4 v{v_l16}, {WS}, s{s_t1} offen offset:{m*1024} sc1 lds")
    a("s_mov_b64 exec, 3")
    if bar:
        a(LD)
        a("s_waitcnt vmcnt(0)")
        a("v_cmp_gt_u32 vcc, 1, v2")
        a("s_cmp_eq_u64 vcc, 0")
        a(f"s_cbranch_scc0 K_late{tag}")
        dma()
        a("s_barrier")
        a(f"s_branch K_done{tag}")
        a.label(f"K_late{tag}")
        a("s_barrier")
    poll(a, f"K_poll{tag}", LD, "v_cmp_gt_u32 vcc, 1, v2", 3)
    dma()
    a.label(f"K_done{tag}")
    a("s_waitcnt vmcnt(0)")
    stamp(a, 2)
    lds_arrive(a, SC_CNT + 16, 2)
    if NF > 1:
        a(f"s_mov_b32 exec_lo, {(1 << (2 * NF)) - 1}")
        a("s_mov_b32 exec_hi, 0")
        poll(a, f"K_more{tag}", LD, "v_cmp_gt_u32 vcc, 1, v2", 3)
        for c in range(1, NF): dma(c)
    a("s_branch F_attn")

def attention(a):
    decode_b(a)
    stamp(a, 8)
    a(f"s_mul_i32 s{s_base}, s{s_tt}, {QH_TT}")
    for r in list(range(KS[0] + 20, KS[0] + (28 if LAY else 24))) + list(range(P0 if LAY else P1, P1 + 4)) + list(range(O, O + 16)):
        a(f"v_mov_b32 v{r}, 0")
    a(f"s_mov_b32 s{s_c}, 0")
    a(f"s_mov_b32 s{s_slot}, {3*CH}")
    a(f"s_mov_b32 s{s_cch}, {(-CH) & 0xffffffff}")
    if PSTEP:
        a(f"s_mov_b32 s{s_tgt}, 0")
        if PSEL == "l":
            a(f"s_bitcmp0_b32 s{s_tt}, 1")
            a("s_cbranch_scc1 B_nops")
        a(f"s_mov_b32 s{s_tgt}, {sum(1 << c for c in PSTEP)}")
        a(f"s_setprio {len(PSTEP) + PBASE}")
        a.label("B_nops")
    a(f"v_mov_b32 v{Q2}, 0")
    a(f"v_mov_b32 v{Q2+1}, 0")
    lds_wait(a, "B_wait", SC_CNT + 16, 4, 2, s_spin, s_t0, BSL)
    stamp(a, 9)
    QLD = "\n".join([f"buffer_load_dwordx2 {vr(Q1,2)}, v{v_g0}, {WS}, s{s_base} offen sc1",
                      f"buffer_load_dwordx2 {vr(Q1+2,2)}, v{v_g0+1}, {WS}, s{s_base} offen sc1",
                      "s_mov_b32 exec_hi, 0",
                      f"buffer_load_dwordx2 {vr(Q2,2)}, v{v_g0+2}, {WS}, s{s_base} offen sc1",
                      "s_mov_b32 exec_hi, -1"])
    def kv_off(kind, t):
        p = (t % 8) // 2 * PAIR; b = t % 2
        return {"K1": p + 1024 * b, "K2": p + 2048, "V0": p + 1536 * b, "V1": p + 1536 * b + 768}[kind]
    def rd(dst, kind, t):
        a(f"ds_read_b128 {vr(dst,4)}, v{v_ka if kind[0] == 'K' else v_va} offset:{kv_off(kind, t)}")
    def group_reads(o):
        n = KS[((o + 1) // 2 + 1) % 2]
        if LAY:
            return [(n + 12, "V0", o + 1), (n + 16, "V1", o + 1), (n, "K1", o + 3), (n + 8, "K2", o + 3),
                    (n + 4, "K1", o + 4), (n + 20, "V0", o + 2), (n + 24, "V1", o + 2)]
        return [(n + 12, "V1", o + 1), (n, "K1", o + 3), (n + 8, "K2", o + 3), (n + 16, "V0", o + 2),
                (n + 20, "V1", o + 2), (n + 4, "K1", o + 4), (n + 24, "V0", o + 3)]
    k0 = KS[0]
    def first_reads():
        rd(k0, "K1", 0); rd(k0 + 8, "K2", 0); rd(k0 + 4, "K1", 1)
        if not LAY: rd(k0 + 24, "V0", 0)
        for r in group_reads(-1)[:4]: rd(*r)
        a(f"v_mov_b32 v2, {SC_CNT + 8}")
    if ka2.QS:
        poll(a, "B_pollqd", QLD, f"v_max3_u32 v3, v{Q1}, v{Q1+1}, v{Q1+2}\nv_max3_u32 v1, v{Q1+3}, v{Q2}, v{Q2+1}\nv_max_u32 v3, v3, v1\nv_cmp_eq_u32 vcc, -1, v3",
             1, between=first_reads)
        a("s_waitcnt lgkmcnt(0)")
    else:
        a(QLD)
        first_reads()
        a("s_waitcnt vmcnt(0) lgkmcnt(0)")
    stamp(a, 10)
    if EARR:
        a("s_mov_b64 exec, 1")
        a(f"ds_add_u32 v2, v{v_one}")
        a("s_mov_b64 exec, -1")
    if EARR == 2: a("s_setprio 1")
    mf(a, S1, k0, Q1, "0"); mf8(a, S1, k0 + 8, Q2)
    mf(a, S0, k0, Q1, "0")
    if not EARR:
        a("s_mov_b64 exec, 1")
        a(f"ds_add_u32 v2, v{v_one}")
        a("s_mov_b64 exec, -1")
    a(f"v_max3_f32 v{VT}, v{S1}, v{S1+1}, v{S1+2}")
    a(f"v_max3_f32 v{VT+1}, v{S1+3}, v{S1+4}, v{S1+5}")
    a(f"v_max3_f32 v{VT+2}, v{S1+6}, v{S1+7}, v{S1+8}")
    a(f"v_max3_f32 v{VT+3}, v{S1+9}, v{S1+10}, v{S1+11}")
    a(f"v_max3_f32 v{VT}, v{VT}, v{S1+12}, v{S1+13}")
    a(f"v_max3_f32 v{VT+1}, v{VT+1}, v{S1+14}, v{S1+15}")
    a(f"v_max3_f32 v{VT}, v{VT}, v{VT+2}, v{VT+3}")
    a(f"v_max_f32 v{VT}, v{VT}, v{VT+1}")
    a(f"v_mov_b32 v{VT+1}, v{VT}")
    a(f"v_permlane32_swap_b32 v{VT}, v{VT+1}")
    a(f"v_max_f32 v{VT}, v{VT}, v{VT+1}")
    a("s_mov_b32 exec_lo, 0")
    a(f"v_cvt_pk_bf16_f32 v{Q2}, -v{VT}, 0")
    a("s_mov_b32 exec_lo, -1")
    mf8(a, S0, k0 + 8, Q2)
    stamp(a, 11); stamp(a, 12, 'cyc')
    a("s_waitcnt lgkmcnt(0)")
    if EARR == 2: a("s_setprio 0")
    a("s_nop 10")
    a.raw(".p2align 6")
    a.label("B_loop")
    start = a.mark()
    for u in range(8):
        Sc, Sn = (S0, S1) if u % 2 == 0 else (S1, S0)
        odd = u % 2
        o = u if odd else u - 1
        ks = KS[((o + 1) // 2) % 2]
        reads = group_reads(o)
        slots = [[reads[0]], [reads[1]], [reads[2]], [reads[3]]] if odd else [[reads[4], reads[5]], [reads[6]], [], []]
        if RSL == 1: slots = [[reads[0], reads[3]], [], [reads[1]], [reads[2]]] if odd else [[reads[4], reads[5]], [], [reads[6]], []]
        if RSL == 2: slots = [[reads[0]], [], [reads[1], reads[3]], [reads[2]]] if odd else [[reads[4]], [], [reads[5], reads[6]], []]
        e = lambda i: a(f"v_exp_f32 v{Sc+i}, v{Sc+i}")
        c = lambda i: a(f"v_cvt_pk_bf16_f32 v{P0+i}, v{Sc+2*i}, v{Sc+2*i+1}")
        cp = lambda i: a(f"v_cvt_pk_bf16_f32 v{P0+i}, v{Sn+2*i}, v{Sn+2*i+1}")
        if LAY:
            rs = list(reads[:4] if odd else reads[4:])
            def misc():
                if u == 0:
                    a(f"ds_add_u32 v{v_cnt}, v{v_one} offset:{256 if COMB else 0}")
                    if PSTEP:
                        a(f"s_bitcmp1_b32 s{s_tgt}, s{s_c}")
                        a("s_cbranch_scc1 B_prio")
                        a.label("B_prioret")
                if u == 4: a(f"ds_read_b32 v{v_chk}, v{v_cnt} offset:256")
                if u == 2:
                    a(f"s_cmp_eq_u32 s{s_slot}, 0")
                    a(f"s_cselect_b32 s{s_delta}, {3*CH}, s{s_cch}")
                if u == 6:
                    a(f"s_add_u32 s{s_c}, s{s_c}, 1")
                    a(f"s_cmp_lt_u32 s{s_c}, 8")
            if odd: a("s_waitcnt lgkmcnt(0)")
            mf(a, Sn, ks + (0 if odd else 4), Q1, "0")
            if u == 5:
                a(f"v_readlane_b32 s{s_t0}, v{v_chk}, s{s_c}")
                a(f"s_add_u32 s{s_slot}, s{s_slot}, s{s_delta}")
                a(f"s_cmp_lt_u32 s{s_t0}, {12 if COMB else 4}")
                if "nospin" not in GX: a("s_cbranch_scc1 B_spin")
                a.label("B_synced")
                a(f"v_add_u32 v{v_ka}, s{s_delta}, v{v_ka}")
            if u == 7: a(f"v_add_u32 v{v_va}, s{s_delta}, v{v_va}")
            if u == 2: a(f"v_mov_b32_dpp v{v_one}, v{v_one} row_shr:1 row_mask:0xf bank_mask:0xf bound_ctrl:0")
            e(0); e(1); e(2)
            mf8(a, Sn, ks + 8 + (0 if odd else 2), Q2)
            rd(*rs.pop(0))
            e(3); e(4); e(5)
            mf(a, O, ks + (12 if odd else 20), P0, O)
            if LAY == 2: rd(*rs.pop(0))
            e(6); e(7); e(8)
            mf(a, O, ks + (16 if odd else 24), P1, O)
            if LAY == 1:
                e(9); e(10); c(0); c(1)
                for r in rs: rd(*r)
                misc()
                c(2); e(11); e(12); c(3); c(4); e(13); e(14); e(15); c(5); c(6); c(7)
            else:
                rd(*rs.pop(0))
                e(9); e(10); c(0)
                for r in rs: rd(*r)
                misc()
                c(1); c(2); e(11); e(12); c(3); c(4); e(13); e(14); e(15); c(5); c(6); c(7)
            continue
        if os.environ.get("CHST") and u == 0: a("s_memtime s[98:99]" if os.environ.get("CHST") == "2" else "s_memrealtime s[98:99]")
        cp(6); e(0); e(1); cp(7); e(2); e(3)
        if odd: a("s_waitcnt lgkmcnt(0)")
        if os.environ.get("CHST") and u == 1:
            sl = [2, 3, 4, 5, 6, 8, 9, 10]
            for k in range(7): a(f"s_mov_b32 s{64+2*sl[k]}, s{64+2*sl[k+1]}")
            a(f"s_mov_b32 s{64+2*sl[7]}, s98")
        mf(a, Sn, ks + (0 if odd else 4), Q1, "0")
        for r in slots[0]: rd(*r)
        if u == 5:
            a(f"v_readlane_b32 s{s_t0}, v{v_chk}, s{s_c}")
            a(f"s_add_u32 s{s_slot}, s{s_slot}, s{s_delta}")
            a(f"s_cmp_lt_u32 s{s_t0}, {12 if COMB else 4}")
            if "nospin" not in GX: a("s_cbranch_scc1 B_spin")
            a.label("B_synced")
        if u == 2:
            a(f"s_cmp_eq_u32 s{s_slot}, 0")
            a(f"s_cselect_b32 s{s_delta}, {3*CH}, s{s_cch}")
        e(4); e(5)
        if u == 5: a(f"v_add_u32 v{v_ka}, s{s_delta}, v{v_ka}")
        if u == 2: a(f"v_mov_b32_dpp v{v_one}, v{v_one} row_shr:1 row_mask:0xf bank_mask:0xf bound_ctrl:0")
        if u == 6: a(f"v_add_u32 v{v_va}, s{s_delta}, v{v_va}")
        c(0); c(1); e(6); e(7)
        mf8(a, Sn, ks + 8 + (0 if odd else 2), Q2)
        for r in slots[1]: rd(*r)
        e(8); e(9); c(2); c(3); e(10); e(11)
        mf(a, O, ks + (12 if odd else 20), P1, O)
        for r in slots[2]: rd(*r)
        if u == 0 and PSTEP:
            a(f"s_bitcmp1_b32 s{s_tgt}, s{s_c}")
            a("s_cbranch_scc1 B_prio")
            a.label("B_prioret")
        if u == 0:
            a(f"ds_add_u32 v{v_cnt}, v{v_one} offset:{256 if COMB else 0}")
        if u == 4: a(f"ds_read_b32 v{v_chk}, v{v_cnt} offset:256")
        e(12); e(13); c(4); c(5); e(14); e(15)
        mf(a, O, ks + (16 if odd else 24), P0, O)
        for r in slots[3]: rd(*r)
        if u == 6:
            a(f"s_add_u32 s{s_c}, s{s_c}, 1")
            a(f"s_cmp_lt_u32 s{s_c}, 8")
    a("s_cbranch_scc1 B_loop")
    if ALIGN: print("loop bytes/fixed", a.align8(start))
    a.check_backedge(start)
    stamp(a, 13); stamp(a, 14, 'cyc')
    if LAY:
        mf(a, O, KS[0] + 20, P0, O); mf(a, O, KS[0] + 24, P1, O)
    else:
        for i in (6, 7): a(f"v_cvt_pk_bf16_f32 v{P0+i}, v{S1+2*i}, v{S1+2*i+1}")
        mf(a, O, KS[0] + 20, P1, O)
    if not TRIGST: a(f"ds_add_u32 v{v_cnt}, v{v_one}")
    a(f"ds_read_b32 v{v_chk}, v{v_cnt}")
    a("s_waitcnt lgkmcnt(0)")
    a(f"v_mov_b32 v{VT+2}, {hex(f32bits(2.0**60))}")
    a(f"s_lshl_b32 s{s_base}, s{s_lid}, 3")
    a(f"s_add_u32 s{s_base}, s{s_base}, s{s_w}")
    a(f"s_mul_i32 s{s_base}, s{s_base}, 1280")
    a(f"s_add_u32 s{s_base}, s{s_base}, {WS_O}")
    a(f"v_lshlrev_b32 v{v_g0}, 4, v0")
    a(f"v_lshlrev_b32 v{v_g0+1}, 3, v0")
    a(f"v_mov_b32 v{VT}, v{O+8}")
    a(f"v_mov_b32 v{VT+1}, v{O+8}")
    a(f"v_permlane32_swap_b32 v{VT}, v{VT+1}")
    a(f"v_cmp_nle_f32 vcc, {hex(f32bits(2.0**-60))}, v{VT+1}")
    a(f"v_cmp_nle_f32 s[52:53], v{VT+1}, v{VT+2}")
    a(f"s_or_b64 s[52:53], s[52:53], vcc")
    a("s_cbranch_scc1 B_fallback")
    a.label("B_norm")
    a(f"v_rcp_f32 v{VT}, v{VT+1}")
    for i in range(12): a(f"v_mul_f32 v{O+i}, v{VT}, v{O+i}")
    for i in range(6): a(f"v_cvt_pk_bf16_f32 v{O+i}, v{O+2*i}, v{O+2*i+1}")
    if DRY: a("s_cbranch_execz F_dryret")
    a(f"v_readlane_b32 s{s_t0}, v{v_chk}, 9")
    a(f"s_cmp_eq_u32 s{s_t0}, 4")
    a("s_cbranch_scc1 B_near")
    a(f"buffer_store_dwordx4 {vr(O,4)}, v{v_g0}, {WS}, s{s_base} offen sc1")
    a("s_mov_b32 exec_hi, 0")
    a(f"buffer_store_dwordx2 {vr(O+4,2)}, v{v_g0+1}, {WS}, s{s_base} offen offset:1024 sc1")
    a("s_branch B_done")
    a.label("B_near")
    a(f"buffer_store_dwordx4 {vr(O,4)}, v{v_g0}, {WS}, s{s_base} offen")
    a("s_mov_b32 exec_hi, 0")
    a(f"buffer_store_dwordx2 {vr(O+4,2)}, v{v_g0+1}, {WS}, s{s_base} offen offset:1024")
    a.label("B_done")
    if TRIGST == 2: a("s_waitcnt vmcnt(0)")
    if TRIGST: a(f"ds_add_u32 v{v_cnt}, v{v_one}")
    if STAMP: a("s_waitcnt vmcnt(0)")
    if STAMP:
        stamp(a, 7); stamp(a, 15, True)
        stamp_flush(a, 1, SWS, s_w, 12, 16)
    a("s_endpgm")
    if PSTEP:
        a.label("B_prio")
        for k, c in enumerate(PSTEP):
            a(f"s_setprio {len(PSTEP) - 1 - k + PBASE}")
            a(f"s_cmp_eq_u32 s{s_c}, {c}")
            a("s_cbranch_scc1 B_prioret")
        a("s_branch B_prioret")
    a.label("B_spin")
    a(f"s_mov_b32 s{s_spin}, {SPIN * 40}")
    a.label("B_spin1")
    a(f"s_sleep {os.environ.get('SSL', '4')}")
    a(f"ds_read_b32 v{v_chk}, v{v_cnt} offset:256")
    a("s_waitcnt lgkmcnt(0)")
    a(f"v_readlane_b32 s{s_t0}, v{v_chk}, s{s_c}")
    a(f"s_cmp_ge_u32 s{s_t0}, {12 if COMB else 4}")
    a("s_cbranch_scc1 B_synced")
    a(f"s_sub_u32 s{s_spin}, s{s_spin}, 1")
    a(f"s_cmp_lg_u32 s{s_spin}, 0")
    a("s_cbranch_scc1 B_spin1")
    a("s_branch B_synced")
    a.label("B_fallback")
    a("s_mov_b32 exec_lo, 0")
    a(f"v_mov_b32 v{Q2}, 0")
    a("s_mov_b32 exec_lo, -1")
    a(f"s_add_u32 s{s_slot}, s{s_slot}, {KVB}")
    a(f"v_subrev_u32 v{v_ka}, s{s_slot}, v{v_ka}")
    a(f"v_subrev_u32 v{v_va}, s{s_slot}, v{v_va}")
    a(f"v_mov_b32 v{VT}, 0xff800000")
    for r in range(O, O + 16): a(f"v_mov_b32 v{r}, 0")
    a(f"s_mov_b32 s{s_kvg}, {WS_KV}")
    def ldk():
        for i in range(3): a(f"buffer_load_dwordx4 {vr(k0+4*i,4)}, v{v_ka}, {WS}, s{s_kvg} offen offset:{1024*i} sc1")
    def qk(b):
        S = (S0, S1)[b]
        mf(a, S, k0 + 4 * b, Q1, "0"); mf8(a, S, k0 + 8 + 2 * b, Q2)
    def nxt(lbl):
        a(f"s_add_u32 s{s_kvg}, s{s_kvg}, {PAIR}")
        a(f"s_cmp_lt_u32 s{s_kvg}, {WS_KV + 32*PAIR}")
        a(f"s_cbranch_scc1 {lbl}")
    a.label("B_fb1")
    st = a.mark()
    ldk()
    a("s_waitcnt vmcnt(0)")
    qk(0); qk(1)
    for i in range(0, 32, 2): a(f"v_max3_f32 v{VT}, v{VT}, v{S0+i}, v{S0+i+1}")
    nxt("B_fb1")
    a.check_backedge(st)
    a(f"v_mov_b32 v{VT+1}, v{VT}")
    a(f"v_permlane32_swap_b32 v{VT}, v{VT+1}")
    a(f"v_max_f32 v{VT}, v{VT}, v{VT+1}")
    a(f"s_mov_b32 s{s_kvg}, {WS_KV}")
    a.label("B_fb2")
    st = a.mark()
    ldk()
    for i in range(4): a(f"buffer_load_dwordx4 {vr(k0+12+4*i,4)}, v{v_va}, {WS}, s{s_kvg} offen offset:{768*i} sc1")
    a("s_waitcnt vmcnt(0)")
    qk(0); qk(1)
    for b in range(2):
        S = (S0, S1)[b]
        for i in range(16): a(f"v_sub_f32 v{S+i}, v{S+i}, v{VT}")
        for i in range(16): a(f"v_exp_f32 v{S+i}, v{S+i}")
        for i in range(8): a(f"v_cvt_pk_bf16_f32 v{P0+i}, v{S+2*i}, v{S+2*i+1}")
        mf(a, O, k0 + 12 + 8 * b, P0, O); mf(a, O, k0 + 16 + 8 * b, P1, O)
    nxt("B_fb2")
    a.check_backedge(st)
    a(f"v_mov_b32 v{VT}, v{O+8}")
    a(f"v_mov_b32 v{VT+1}, v{O+8}")
    a(f"v_permlane32_swap_b32 v{VT}, v{VT+1}")
    a("s_nop 1")
    a("s_branch B_norm")

def gemm(a):
    global stamp
    def h_store(sc, vl):
        for k in range(12):
            if k in (4, 10): a("s_add_u32 s53, s53, 4096")
            if k == 6: a(f"s_add_u32 s53, s53, {QH_TT - 4096}")
            a(f"buffer_store_dwordx4 {vr(72+4*k,4)}, v{vl}, {WS}, s53 offen offset:{(k % 6 % 4)*1024}{sc}")
        stamp(a, 3)
    a("s_setprio 3")
    if HEARLY:
        a("s_cmp_eq_u32 s53, -1")
        a("s_cbranch_scc1 G_start")
        if HEARLY > 1: lds_wait(a, "G_wait0", SC_CNT + (16 if HEARLY == 2 else 8), 4 if HEARLY == 2 else HEARLY - 2, 2, s_spin, s_t0, 1)
        h_store(" sc1", 1)
        a.label("G_start")
    lid(a)
    decode_b(a)
    a(f"s_sub_u32 s{s_w}, s{s_w}, 8")
    srd(a, SW2, 56, 1728 * 1280)
    srd(a, SWO, 58, 640 * 1280)
    srd(a, SOUT, 60, 2048 * 1280)
    g = GW(a, 27, 4, 10, STG, PART, SW2, SWS, s_gw)
    v_wd2 = g.v_end
    v_wa2, vfl = 11, v_wd2 + 5
    vx = v_wd2 + 6
    v_wa3 = 0
    s_kw, s_ka, s_w0, s_a0 = 50, 51, 54, 55
    a(f"s_mul_i32 s{s_kvl}, s{s_w}, 6144")
    def kv(c, tag=""):
        if c >= 4: lds_wait(a, f"G_free{c}{tag}", SCW + 4 * (c - 3), NW_, 2, s_spin, s_t0, 4)
        a(f"s_lshr_b32 s{s_kvg}, s{s_tt}, 3")
        a(f"s_add_u32 s{s_kvg}, s{s_kvg}, {c}")
        a(f"s_and_b32 s{s_kvg}, s{s_kvg}, 7")
        a(f"s_mul_i32 s{s_kvg}, s{s_kvg}, {CH}")
        a(f"s_add_u32 s{s_kvg}, s{s_kvg}, s{s_kvl}")
        a(f"s_add_u32 s{s_kvg}, s{s_kvg}, {WS_KV}")
        a(f"s_add_u32 m0, s{s_kvl}, {KVB + (3 - c % 4)*CH}")
        for m in range(4):
            a(f"buffer_load_dwordx4 v{g.v_l16}, {WS}, s{s_kvg} offen offset:{m*1024} sc1 lds"); g.vm.issue(("KV", c))
        a(f"s_add_u32 m0, m0, 4096")
        a(f"s_add_u32 s{s_kvg}, s{s_kvg}, 4096")
        for m in range(2):
            a(f"buffer_load_dwordx4 v{g.v_l16}, {WS}, s{s_kvg} offen offset:{m*1024} sc1 lds"); g.vm.issue(("KV", c))
    def landed(c):
        g.vm.wait(("KV", c))
        a("s_mov_b64 exec, 1")
        a(f"v_mov_b32 v2, {SC_L + 4 * (c - 1)}")
        a(f"v_mov_b32 v3, 1")
        a(f"ds_add_u32 v2, v3"); g.lg.issue("arr")
        a("s_mov_b64 exec, -1")
    s_i4 = s_c
    a(f"s_getreg_b32 s{s_delta}, hwreg(HW_REG_XCC_ID, 0, 4)")
    a(f"s_add_u32 s{s_delta}, s{s_delta}, 16")
    a(f"s_mov_b32 s{s_base}, 0")
    g.setup(s_w, s_hg, s_base)
    a(f"s_and_b32 s{s_t1}, s{s_tt}, 3")
    a(f"s_lshl_b32 s{s_i4}, s{s_t1}, 2")
    s_n = 52
    a(f"s_min_u32 s{s_t0}, s{s_t1}, 2")
    a(f"s_mul_i32 s{s_kw}, s{s_t0}, {NH}")
    a(f"s_cmp_eq_u32 s{s_t1}, 3")
    a(f"s_cselect_b32 s{s_t0}, {NL}, 0")
    a(f"s_add_u32 s{s_kw}, s{s_kw}, s{s_t0}")
    a(f"s_cmp_lt_u32 s{s_t1}, 2")
    a(f"s_cselect_b32 s{s_n}, {NH}, {NL}")
    a(f"s_mul_i32 s{s_w0}, s{s_kw}, {16*1280}")
    a(f"s_mul_i32 s{s_t0}, s{s_hg}, 320")
    a(f"s_add_u32 s{s_w0}, s{s_w0}, s{s_t0}")
    a(f"s_mul_i32 s{s_woff2}, s{s_w}, {160*1280}")
    a(f"s_add_u32 s{s_woff2}, s{s_woff2}, s{s_t0}")
    a(f"s_and_b32 s{s_slot}, s{s_tt}, 0xfc")
    a(f"s_add_u32 s{s_slot}, s{s_slot}, s{s_w}")
    a(f"s_mul_i32 s{s_a0}, s{s_slot}, {QH_TT}")
    a(f"s_lshl_b32 s{s_t0}, s{s_kw}, 10")
    a(f"s_add_u32 s{s_a0}, s{s_a0}, s{s_t0}")
    a(f"s_add_u32 s{s_a0}, s{s_a0}, {WS_QH + 40*1024}")
    a(f"v_mul_u32_u24 v2, 12, v0")
    a(f"s_sub_u32 s{s_t0}, s{s_n}, 1")
    a(f"v_min_u32 v2, s{s_t0}, v2")
    a(f"v_add_u32 v2, s{s_kw}, v2")
    a(f"v_mul_u32_u24 v2, 0x5556, v2")
    a(f"v_lshrrev_b32 v2, 18, v2")
    a(f"s_lshr_b32 s{s_t0}, s{s_tt}, 2")
    a(f"v_mov_b32 v1, s{s_t0}")
    flag_off(a, vfl, 1, 2, 3)
    a(f"s_bfe_u32 s{s_ka}, s{s_tt}, {0x10002 if RB == 1 else 0x20002}")
    a(f"s_lshr_b32 s{s_t0}, s{s_n}, {RB}")
    a(f"s_mul_i32 s{s_ka}, s{s_ka}, s{s_t0}")
    a(f"s_add_u32 s{s_kw}, s{s_ka}, s{s_w}")
    ALT = {31: 2 * CH, 32: CH, 33: 0}
    cur = {"ns": None}
    def dma5(vd, S, tag):
        for m in range(4):
            a(f"buffer_load_dwordx4 v{vd+m}, {S}, s{g.s_woff} offen offset:{m*1024} lds"); g.vm.issue(tag)
        a(f"s_add_u32 m0, m0, 4096")
        a(f"buffer_load_dwordx4 v{vd+4}, {S}, s{g.s_woff} offen lds"); g.vm.issue(tag)
    def load_stage(st):
        a(f"s_cmp_ge_u32 s{s_kw}, s{s_n}")
        a(f"s_cselect_b32 s{s_t0}, s{s_n}, 0")
        a(f"s_sub_u32 s{s_kw}, s{s_kw}, s{s_t0}")
        a(f"s_mul_i32 s{g.s_woff}, s{s_kw}, {16*1280}")
        a(f"s_add_u32 s{g.s_woff}, s{g.s_woff}, s{s_w0}")
        a(f"s_add_u32 s{s_kw}, s{s_kw}, 4")
        if cur["ns"] is None:
            oh, ol = [((st - (n + 3) // 4 + 1) % 3) * 5120 for n in (NH, NL)]
            a(f"s_movk_i32 s{s_t0}, {oh}")
            a(f"s_cmp_ge_u32 s{s_i4}, 8")
            a(f"s_cselect_b32 s{s_t0}, {ol}, s{s_t0}")
            a(f"s_add_u32 m0, s{g.s_lds}, s{s_t0}")
        else: a(f"s_add_u32 m0, s{g.s_lds}, {((st - cur['ns'] + 1) % 3)*5120}")
        dma5(g.v_wd, f"s[{SW2}:{SW2+3}]", ("S", st))
    def load_w(i):
        j = i - 27
        row = 80 * (j // 5) + (20 * (j % 5) if j % 5 < 4 else 16)
        a(f"s_add_u32 s{g.s_woff}, s{s_woff2}, {row*1280}")
        if i in ALT:
            a(f"s_mul_i32 s{s_t0}, s{s_w}, 5120")
            a(f"s_add_u32 m0, s{s_t0}, {KVB + CH + ALT[i]}")
        else: a(f"s_add_u32 m0, s{g.s_lds}, {(i % 3)*5120}")
        dma5(v_wd2 if j % 5 == 4 else g.v_wd, f"s[{SWO}:{SWO+3}]", ("W", i))
    def areg(i): return g.v_act + 4 * ((i - 100) % 8 if i >= 100 else i - 27)
    def load_a(i):
        a(f"s_lshl_b32 s{g.s_aoff}, s{s_ka}, 10")
        a(f"s_add_u32 s{g.s_aoff}, s{g.s_aoff}, s{s_a0}")
        a(f"s_add_u32 s{s_ka}, s{s_ka}, 1")
        a(f"s_cmp_eq_u32 s{s_ka}, s{s_n}")
        a(f"s_cselect_b32 s{s_ka}, 0, s{s_ka}")
        a(f"buffer_load_dwordx4 {vr(areg(i),4)}, v{g.v_l16}, {WS}, s{g.s_aoff} offen sc1"); g.vm.issue(("A", i))
    def rd_t(i, T):
        if i >= 100: base, off = g.v_wa, (i % 4) * PART + (((i - 100) // 4 - cur['ns'] + 1) % 3) * 5120
        else: base, off = (v_wa3, ALT[i]) if i in ALT else (g.v_wa, (i % 3) * 5120)
        for p in range(2):
            a(f"ds_read_b64_tr_b16 {vr(g.v_wf+4*T+2*p,2)}, v{base} offset:{off + T*64 + p*2560}"); g.lg.issue((i, T))
    def rd_w(i):
        g.vm.wait(("W", i))
        for T in range(5): rd_t(i, T)
    def mm(i, nxt=None, pm=0):
        g.vm.wait(("A", i), ("W", nxt))
        low = not 32 <= i < 100
        for T in range(5):
            if low and (pm >> T & 1) != ((pm >> (T - 1) & 1) if T else 1): a(f"s_setprio {3 * (pm >> T & 1)}")
            g.lg.wait((i, T))
            acc = vr(g.v_acc + 16 * T, 16)
            a(f"v_mfma_f32_32x32x16_bf16 {acc}, {vr(g.v_wf+4*T,4)}, {vr(areg(i),4)}, {acc if i != 100 else 0}")
            if nxt is not None: rd_t(nxt, T)
        if low and not pm >> 4 & 1: a("s_setprio 3")
    def sync(st, tag=""):
        g.vm.wait(("S", st))
        lds_arrive(a, SC_CNT + 32 + 4 * st, 2)
        lds_wait(a, f"G_sync{st}{tag}", SC_CNT + 32 + 4 * st, 4, 2, s_spin, s_t0, 1)
        g.lg.q = []
    g.setup2()
    a(f"v_subrev_u32 v{g.v_wa}, s{g.s_lds}, v{g.v_wa}")
    for m in range(5):
        a(f"v_add_u32 v1, {64*m}, v0")
        a(f"v_mul_u32_u24 v2, 0xcccd, v1")
        a(f"v_lshrrev_b32 v2, 22, v2")
        a(f"v_mul_u32_u24 v2, {16*1280}, v2")
        a(f"v_add_u32 v{v_wd2+m}, v2, v{g.v_wd+m}")
    if HEARLY:
        lds_wait(a, "G_wait", SC_CNT + 8, 8, 2, s_spin, s_t0, 1)
        for c in range(1, NF): landed(c)
        a(f"v_mov_b32 v2, 14")
        flag_off(a, g.v_wf, 0, 2, 3)
        def pubh():
            a("s_cmp_eq_u32 s53, -1")
            a("s_cbranch_scc1 G_noh")
            publish(a, "G_pub", 0, 4, 3, WS_FL, 1, vm=1)
            stamp(a, 4)
            a.label("G_noh")
            a("s_mov_b32 exec_lo, 0xffff")
            a("s_mov_b32 exec_hi, 0")
        a("s_mov_b32 exec_lo, 0xffff")
        a("s_mov_b32 exec_hi, 0")
        poll(a, "G_pollkv", f"buffer_load_dword v{g.v_wf+1}, v{g.v_wf}, {WS}, 0 offen sc1", f"v_cmp_gt_u32 vcc, 1, v{g.v_wf+1}", 6, between=pubh)
        a("s_mov_b64 exec, -1")
        g.vm.q = []
        for c in range(NF, 4): kv(c)
    else:
        a(f"v_mov_b32 v2, 14")
        flag_off(a, 1, 0, 2, 3)
        a("s_mov_b32 exec_lo, 0xffff")
        a("s_mov_b32 exec_hi, 0")
        poll(a, "G_pollkv", f"buffer_load_dword v2, v1, {WS}, 0 offen sc1", "v_cmp_gt_u32 vcc, 1, v2", 6)
        a("s_mov_b64 exec, -1")
        lds_wait(a, "G_wait", SC_CNT + 8, GW_N, 2, s_spin, s_t0, 1)
        for c in range(1, NF): landed(c)
        first = list(range(NF, NF + HORD)); later = list(range(NF + HORD, 4))
        for c in first: kv(c)
        a("s_cmp_eq_u32 s53, -1")
        a("s_cbranch_scc1 G_noh")
        if not HEARLY: h_store(" sc1", g.v_l16)
        q0 = list(g.vm.q)
        g.vm.q += ["H"] * 12
        for c in first: landed(c)
        for c in later: kv(c)
        publish(a, "G_pub", 0, 4, 3, WS_FL, 1, vm=6 * len(later))
        stamp(a, 4)
        a("s_branch G_noh2")
        a.label("G_noh")
        g.vm.q = q0
        for c in later: kv(c)
        for c in first: landed(c)
        a.label("G_noh2")
        g.vm.q = [("KV", c) for c in later for _ in range(6)]
        for c in later: landed(c)
    for st in range(NS0): load_stage(st)
    if HEARLY:
        for c in range(NF, 4): landed(c)
    stamp(a, 8)
    a("s_mov_b64 exec, 15")
    poll(a, "G_pollh", f"buffer_load_dword v2, v{vfl}, {WS}, 0 offen sc1", "v_cmp_gt_u32 vcc, 1, v2", 4)
    a("s_mov_b64 exec, -1")
    g.vm.q = []
    stamp(a, 9)
    if STAMP: a("s_waitcnt lgkmcnt(0)")
    for i in range(100, 104): load_a(i)
    for st in range(NS0, 3): load_stage(st)
    for i in range(104, 108): load_a(i)
    vo = vfl
    a(f"s_mul_i32 s{s_base}, s{s_tt}, {32*1280}")
    a(f"s_mul_i32 s{s_t0}, s{s_hg}, 320")
    a(f"s_add_u32 s{s_base}, s{s_base}, s{s_t0}")
    a(f"s_lshl_b32 s{s_t0}, s{s_w}, 4")
    a(f"s_add_u32 s{s_base}, s{s_base}, s{s_t0}")
    a(f"v_and_b32 v1, 31, v0")
    a(f"v_mul_u32_u24 v{vo}, 1280, v1")
    a(f"v_lshrrev_b32 v2, 5, v0")
    a(f"v_lshl_add_u32 v{vo}, v2, 3, v{vo}")
    a(f"v_mul_u32_u24 v{v_wa2}, 1280, v2")
    a(f"v_lshl_add_u32 v{v_wa2}, v1, 3, v{v_wa2}")
    a(f"v_mul_u32_u24 v1, 0xcccd, v0")
    a(f"v_lshrrev_b32 v1, 18, v1")
    a(f"v_mul_u32_u24 v2, 5, v1")
    a(f"v_sub_u32 v2, v0, v2")
    a(f"v_mul_u32_u24 v1, 1280, v1")
    a(f"v_lshl_add_u32 v{vx}, v2, 6, v1")
    a(f"s_mul_i32 s{s_t0}, s{s_w}, 5120")
    a(f"s_add_u32 s{s_t0}, s{s_t0}, {KVB + CH}")
    a(f"v_add_u32 v{v_wa3}, s{s_t0}, v{g.v_wa}")
    for r in range(4): a(f"v_mov_b32 v{vx+4+r}, -1")
    sync(0)
    def ffn(N, tag, kvat, pm, alt):
        ns = (N + 3) // 4
        cur["ns"] = ns
        for T in range(5): rd_t(100, T)
        assert EV + 3 <= kvat[-1] < ns and ns >= EV + 5
        for st in range(ns):
            if st in kvat: kv(4 + kvat.index(st), tag)
            n = min(4, N - 4 * st)
            for j in range(n):
                i = 100 + 4 * st + j
                if j == 3 and st + 1 < ns and SPLIT:
                    g.vm.wait(("S", st + 1))
                    lds_arrive(a, SC_CNT + 32 + 4 * (st + 1), 2); g.lg.issue("arr")
                    mm(i, None, pm)
                    lds_wait(a, f"G_sync{st+1}{tag}", SC_CNT + 32 + 4 * (st + 1), 4, 2, s_spin, s_t0, 1)
                    g.lg.q = []
                    for T in range(5): rd_t(i + 1, T)
                    if st + 3 < ns: load_stage(st + 3)
                    else: load_w(28 + st + 3 - ns)
                    continue
                if j == 3 and st + 1 < ns:
                    sync(st + 1, tag)
                    if st + 3 < ns: load_stage(st + 3)
                    else: load_w(28 + st + 3 - ns)
                mm(i, i + 1 if i + 1 < 100 + N else None, pm)
                if j == min(LJ, n - 1) and st in kvat: landed(4 + kvat.index(st))
            for i in range(4 * st + 8, min(4 * st + 12, N)): load_a(100 + i)
            if st == EV:
                a(f"s_lshl_b32 s{s_t0}, s{s_lid}, 2")
                a(f"s_add_u32 s{s_t0}, s{s_t0}, s{s_w}")
                a(f"s_mul_i32 s{s_t0}, s{s_t0}, 2560")
                a(f"s_add_u32 s{s_t0}, s{s_t0}, {WS_O}")
                for o in (0, 1024, 1536):
                    a(f"buffer_store_dwordx4 {vr(vx+4,4)}, v{g.v_l16}, {WS}, s{s_t0} offen offset:{o} sc1"); g.vm.issue("R")
            if st == EV + 1:
                a(f"s_bfe_u32 s{s_t0}, s{s_tt}, 0x30002")
                a(f"s_mul_i32 s{s_t0}, s{s_t0}, {20*1280}")
                a(f"s_add_u32 s{s_t0}, s{s_t0}, s{s_woff2}")
                a(f"s_add_u32 s{s_t1}, s{s_t0}, {10*1280}")
                a(f"buffer_load_dword v{vx+2}, v{vx}, s[{SWO}:{SWO+3}], s{s_t0} offen"); g.vm.issue("P")
                a(f"buffer_load_dword v{vx+3}, v{vx}, s[{SWO}:{SWO+3}], s{s_t1} offen"); g.vm.issue("P")
            if st == EV + 2:
                g.vm.wait("R")
                publish(a, f"G_pubr{tag}", 4, 4, s_lid, WS_FL + 32768, 1, value=f"s{s_delta}", vm=63, word=s_i4)
                g.lg.q = []
            if st == EV + 3:
                g.vm.wait("P", "R")
                for T in range(5):
                    a(f"buffer_load_dwordx2 {vr(vx+2*T,2)}, v{vo}, s[{SX}:{SX+3}], s{s_base} offen offset:{64*T}"); g.vm.issue("X")
            if st == ns - 2:
                a(f"s_lshl_b32 s{s_t0}, s{s_tt}, 2")
                a(f"s_add_u32 s{s_t0}, s{s_t0}, s{s_w}")
                a(f"s_lshl_b32 s{s_t0}, s{s_t0}, 7")
                a(f"s_add_u32 s{s_t0}, s{s_t0}, s{s_i4}")
                a(f"s_add_u32 s{s_cch}, s{s_t0}, {WS_FL + 32768}")
                a(f"buffer_load_dword v1, off, {WS}, s{s_cch} sc1"); g.vm.issue("M")
            for k in range(2):
                if st == ns - 1 - alt[k]:
                    lds_wait(a, f"G_alt{k}{tag}", SCW + 20 + 4 * k, NW_, 2, s_spin, s_t0, 2)
                    g.lg.q = []
                    load_w(31 + k)
            if st in (0, 3):
                stamp(a, {0: 10, 3: 11}[st])
                if STAMP: a("s_waitcnt lgkmcnt(0)")
        g.vm.wait("M")
    if NH != NL or KVH != KVL or PMH != PML or ALH != ALL:
        a(f"s_cmp_ge_u32 s{s_i4}, 8")
        a("s_cbranch_scc1 G_light")
        vq, lq = list(g.vm.q), list(g.lg.q)
        ffn(NH, "h", KVH, PMH, ALH)
        a("s_branch G_ffnend")
        a.label("G_light")
        g.vm.q, g.lg.q = vq, lq
        ffn(NL, "l", KVL, PML, ALL)
        a.label("G_ffnend")
    else:
        ffn(NH, "h", KVH, PMH, ALH)
    g.vm.q = []; g.lg.q = []
    stamp(a, 12)
    a("v_cmp_gt_u32 vcc, 1, v1")
    a("s_cmp_eq_u64 vcc, 0")
    a("s_cbranch_scc1 G_pollm_ok")
    poll(a, "G_pollm", f"buffer_load_dword v1, off, {WS}, s{s_cch} sc1", "v_cmp_gt_u32 vcc, 1, v1", 8)
    a(f"v_readfirstlane_b32 s{s_t0}, v1")
    a(f"s_cmp_lg_u32 s{s_t0}, s{s_delta}")
    a("s_cbranch_scc1 G_novote")
    if FASTO: lds_arrive(a, SC_K + 36, 2)
    a.label("G_novote")
    pk = g.v_act
    lds_arrive(a, SC_CNT + 96, 2)
    a(f"s_lshl_b32 s{s_t0}, s{s_w}, 2")
    a(f"s_cmp_eq_u32 s{s_t0}, s{s_i4}")
    a("s_cbranch_scc1 G_keep")
    a(f"s_lshl_b32 s{s_t0}, s{s_lid}, 2")
    a(f"s_add_u32 s{s_t0}, s{s_t0}, s{s_w}")
    a(f"s_mul_i32 s{s_t0}, s{s_t0}, 10240")
    a(f"s_add_u32 s{s_t0}, s{s_t0}, {WS_P}")
    def pick(name, body):
        if not NEARP: body(" sc1"); return
        a(f"s_cmp_eq_u32 s52, s{s_delta}")
        a(f"s_cbranch_scc1 {name}_n")
        body(" sc1")
        a(f"s_branch {name}_e")
        a.label(f"{name}_n")
        body(os.environ.get("NPOL", "") if name == "G_snd" else "")
        a.label(f"{name}_e")
    def snd(sc):
        a("s_nop 7")
        for k in range(10):
            for r in range(4): a(f"v_cvt_pk_bf16_f32 v{pk+4*k+r}, v{g.v_acc+8*k+2*r}, v{g.v_acc+8*k+2*r+1}")
            if k in (4, 8): a(f"s_add_u32 s{s_t0}, s{s_t0}, 4096")
            a(f"buffer_store_dwordx4 {vr(pk+4*k,4)}, v{g.v_l16}, {WS}, s{s_t0} offen offset:{(k%4)*1024}{sc}")
    pick("G_snd", snd)
    a.label("G_keep")
    def not_owner(lbl):
        a(f"s_lshl_b32 s{s_t1}, s{s_w}, 2")
        a(f"s_cmp_eq_u32 s{s_t1}, s{s_i4}")
        a(f"s_cbranch_scc1 {lbl}")
    lds_wait(a, "G_sync7", SC_CNT + 96, 4, 2, s_spin, s_t0, 1)
    g.lg.q = []
    a(f"v_add_u32 v{g.v_wa}, s{g.s_lds}, v{g.v_wa}")
    load_w(27)
    a(f"s_lshl_b32 s{s_t0}, s{s_tt}, 2")
    a(f"s_add_u32 s{s_t0}, s{s_t0}, s{s_w}")
    a(f"s_mul_i32 s{g.s_aoff}, s{s_t0}, 10240")
    a(f"s_add_u32 s{g.s_aoff}, s{g.s_aoff}, {WS_O}")
    a(f"s_add_u32 s{s_a0}, s{g.s_aoff}, 5120")
    a(f"s_lshl_b32 s{s_slot}, s{s_slot}, 2")
    a(f"s_add_u32 s{s_slot}, s{s_slot}, s{s_hg}")
    a(f"s_lshl_b32 s{s_t1}, s{s_slot}, 7")
    a(f"s_add_u32 s{s_t1}, s{s_t1}, s{s_i4}")
    a(f"s_add_u32 s{s_kvg}, s{s_t1}, {WS_FL + 32768}")
    not_owner("G_keep2")
    a(f"s_lshl_b32 s{s_t0}, s{s_lid}, 7")
    a(f"s_add_u32 s{s_t0}, s{s_t0}, s{s_t1}")
    a(f"s_add_u32 s{s_t0}, s{s_t0}, {WS_FL + 32768}")
    a("v_mov_b32 v1, 1")
    a("s_waitcnt vmcnt(5)")
    a("s_mov_b64 exec, 1")
    pick("G_sfl", lambda sc: a(f"buffer_store_dword v1, off, {WS}, s{s_t0}{sc}"))
    a("s_mov_b64 exec, -1")
    a.label("G_keep2")
    if TAILST: stamp(a, 8)
    assert (ALH[1] < 0) == (ALL[1] < 0) and ALH[0] >= 0 and ALL[0] >= 0
    rd_w(27); g.lg.drain(); load_w(30)
    if ALH[1] < 0:
        lds_wait(a, "G_alt1x", SCW + 24, NW_, 2, s_spin, s_t0, 2)
        load_w(32)
    def unpack(k0_, k1_):
        for k in range(k0_, k1_):
            for r in range(4):
                a(f"v_lshlrev_b32 v{g.v_acc+8*k+2*r}, 16, v{pk+4*k+r}")
                a(f"v_and_b32 v{g.v_acc+8*k+2*r+1}, s{s_cch}, v{pk+4*k+r}")
    a(f"s_mov_b32 s{s_cch}, 0xffff0000")
    not_owner("G_keep3")
    poll(a, "G_pollr", f"buffer_load_dword v1, off, {WS}, s{s_kvg} sc1", "v_cmp_gt_u32 vcc, 1, v1", 2)
    a(f"s_mul_i32 s{s_t0}, s{s_slot}, 40960")
    a(f"s_mul_i32 s{s_t1}, s{s_i4}, 2560")
    a(f"s_add_u32 s{s_t0}, s{s_t0}, s{s_t1}")
    a(f"s_add_u32 s{s_t0}, s{s_t0}, {WS_P}")
    for k in range(10):
        if k in (4, 8): a(f"s_add_u32 s{s_t0}, s{s_t0}, 4096")
        a(f"buffer_load_dwordx4 {vr(pk+4*k,4)}, v{g.v_l16}, {WS}, s{s_t0} offen offset:{(k%4)*1024} sc1")
    a("s_waitcnt vmcnt(5)")
    unpack(0, 5)
    a.label("G_keep3")
    stamp(a, 5)
    lds_wait(a, "G_trig0", SC_K + 32, TRIG[0], 2, s_spin, s_t0, 1)
    def o_poll(half):
        b = areg(27 + 5 * half)
        so = g.s_aoff if half == 0 else s_a0
        ld = [f"buffer_load_dwordx4 {vr(b+4*j,4)}, v{g.v_l16}, {WS}, s{so} offen offset:{j*1280} sc1" for j in range(4)]
        ld += [f"buffer_load_dwordx2 {vr(b+16+2*j,2)}, v{v_wa2}, {WS}, s{so} offen offset:{1024+2560*j} sc1" for j in range(2)]
        ck = [f"v_max3_u32 v{1+k}, v{b+3*k}, v{b+3*k+1}, v{b+3*k+2}" for k in range(3)]
        ck += [f"v_max3_u32 v{1+k}, v{1+k}, v{b+9+2*k}, v{b+10+2*k}" for k in range(3)]
        ck += [f"v_max3_u32 v1, v1, v{b+15}, v{b+16}", f"v_max3_u32 v2, v2, v{b+17}, v{b+18}", f"v_max_u32 v3, v3, v{b+19}",
               "v_max3_u32 v1, v1, v2, v3", "v_cmp_eq_u32 vcc, -1, v1"]
        return "\n".join(ld), "\n".join(ck)
    def rest():
        not_owner("G_keep4")
        a("s_waitcnt vmcnt(6)")
        unpack(5, 10)
        a.label("G_keep4")
    poll(a, "G_pollo0", *o_poll(0), OSL[0], between=rest)
    g.vm.q = []
    if TAILST: stamp(a, 6); a("s_waitcnt lgkmcnt(0)")
    lds_wait(a, "G_alt1", SCW + 28, NW_, 2, s_spin, s_t0, 1)
    load_w(33)
    for i in range(27, 31):
        mm(i, i + 1)
        if 28 <= i <= 30: load_w(i + 6)
    def last_first():
        for _ in range(6): g.vm.issue("O")
        mm(31, 32)
        stamp(a, 2)
    if SPEC:
        poll(a, "G_pollo1", *o_poll(1), OSL[1], between=last_first)
    else:
        mm(31, 32)
        stamp(a, 2)
        lds_wait(a, "G_trig1", SC_K + 32, TRIG[1], 2, s_spin, s_t0, 1)
        g.lg.q = []
        poll(a, "G_pollo1", *o_poll(1), OSL[1])
    g.vm.q = []
    a("s_setprio 3")
    stamp(a, 13)
    if STAMP: a("s_waitcnt lgkmcnt(0)")
    for i in range(32, 37): mm(i, i + 1 if i < 36 else None)
    stamp(a, 14)
    xf = g.v_act
    for T in range(5):
        a(f"v_lshlrev_b32 v{xf+4*T}, 16, v{vx+2*T}")
        a(f"v_and_b32 v{xf+4*T+1}, 0xffff0000, v{vx+2*T}")
        a(f"v_lshlrev_b32 v{xf+4*T+2}, 16, v{vx+2*T+1}")
        a(f"v_and_b32 v{xf+4*T+3}, 0xffff0000, v{vx+2*T+1}")
    for q in range(4):
        a(f"s_sub_u32 s{s_t0}, {q + 3}, s{s_w}")
        a(f"s_and_b32 s{s_t0}, s{s_t0}, 3")
        a(f"s_cmp_eq_u32 s{s_t0}, 3")
        a(f"s_cbranch_scc1 G_own{q}")
        a(f"s_mul_i32 s{s_t0}, s{s_t0}, 5120")
        a(f"s_add_u32 s{s_t0}, s{s_t0}, s{g.s_lds}")
        a(f"v_add_u32 v1, s{s_t0}, v{g.v_l16}")
        for T in range(5): a(f"ds_write_b128 v1, {vr(g.v_acc+16*T+4*q,4)} offset:{T*1024}")
        a(f"s_branch G_nxt{q}")
        a.label(f"G_own{q}")
        for T in range(5):
            for h in range(2): a(f"v_pk_add_f32 {vr(xf+4*T+2*h,2)}, {vr(xf+4*T+2*h,2)}, {vr(g.v_acc+16*T+4*q+2*h,2)}")
        a.label(f"G_nxt{q}")
    for k in range(3):
        a(f"s_add_u32 s{s_t0}, s{s_w}, {3 - k}")
        a(f"s_and_b32 s{s_t0}, s{s_t0}, 3")
        a(f"s_mul_i32 s{s_t0}, s{s_t0}, {PART}")
        a(f"s_add_u32 s{s_t0}, s{s_t0}, {STG + k*5120}")
        a(f"v_add_u32 v{4+k}, s{s_t0}, v{g.v_l16}")
    a("s_waitcnt lgkmcnt(0)")
    if TAILST: stamp(a, 10)
    a("s_barrier")
    if TAILST: stamp(a, 11); a("s_waitcnt lgkmcnt(0)")
    for T in range(5):
        for k in range(3):
            a(f"ds_read_b128 {vr(g.v_acc+16*T+4*k,4)}, v{4+k} offset:{T*1024}"); g.lg.issue(T)
    for T in range(5): fin_tile(a, g, T, xf, vo)
    if STAMP:
        if TAILST: stamp(a, 9)
        a("s_waitcnt vmcnt(0)"); stamp(a, 7); stamp(a, 15, True)
        a(f"s_add_u32 s{s_w}, s{s_w}, 8")
        stamp_flush(a, 1, SWS, s_w, 12, 16, gsel=[(9, False), (10, False), (12, False), (13, False), (14, False), (15, False)], goff=8)
    if os.environ.get("PADT"):
        a.label("G_pad")
        a("s_memrealtime s[68:69]")
        a("s_waitcnt lgkmcnt(0)")
        a("s_sub_u32 s68, s68, s66")
        a(f"s_cmp_lt_u32 s68, {os.environ['PADT']}")
        a("s_cbranch_scc1 G_pad")
    a("s_endpgm")
    return vx + 10

def fin_tile(a, g, T, xf, vo):
    b = g.v_acc + 16 * T
    g.lg.wait(T)
    for h in range(2):
        a(f"v_pk_add_f32 {vr(b+2*h,2)}, {vr(b+2*h,2)}, {vr(b+4+2*h,2)}")
        a(f"v_pk_add_f32 {vr(b+8+2*h,2)}, {vr(b+8+2*h,2)}, {vr(xf+4*T+2*h,2)}")
    for h in range(2):
        a(f"v_pk_add_f32 {vr(b+2*h,2)}, {vr(b+2*h,2)}, {vr(b+8+2*h,2)}")
    a(f"v_cvt_pk_bf16_f32 v{b}, v{b}, v{b+1}")
    a(f"v_cvt_pk_bf16_f32 v{b+1}, v{b+2}, v{b+3}")
    a(f"buffer_store_dwordx2 {vr(b,2)}, v{vo}, s[{SOUT}:{SOUT+3}], s{s_base} offen offset:{64*T}{os.environ.get('OUTP', '')}")

def gen_f(a, name="parallel_sum__grouped_kv_mqa__dense_activation_relu__prompt_kernel"):
    kernel_header(a, name)
    a("s_cmp_ge_u32 s2, 256")
    a("s_cbranch_scc1 F_end")
    stamp(a, 0, True); stamp(a, 1)
    if os.environ.get("PADT"): a("s_memrealtime s[66:67]")
    def clear_cnt(a):
        a("v_lshlrev_b32 v1, 2, v0")
        a(f"v_add_u32 v1, {SC_CNT}, v1")
        a("v_mov_b32 v2, 0")
        a("ds_write_b32 v1, v2")
        a("ds_write_b32 v1, v2 offset:256")
        a("v_cmp_lt_u32 vcc, 6, v0")
        a("v_cndmask_b32 v2, 0, 4, vcc")
        a("ds_write_b32 v1, v2 offset:512")
        a("s_waitcnt lgkmcnt(0)")
    def start_hook(a):
        clear_cnt(a)
        attn_addr(a)
        if TLBW:
            a(f"s_cmp_lg_u32 s{s_w}, 5")
            a("s_cbranch_scc1 F_notlb")
            for _ in range(TLBW - 1): a("s_barrier")
            a(f"v_lshlrev_b32 v1, {TLBS}, v0")
            a(f"v_add_u32 v1, 0x100, v1")
            for ptr, n in ((56, 1728 * 1280), (58, 640 * 1280), (60, 2048 * 1280)):
                srd(a, 16, ptr, n)
                a(f"buffer_load_dword v2, v1, s[16:19], 0 offen")
            for k in range((WS_SIZE >> TLBS) // 64 + 1):
                a(f"s_mov_b32 s35, {k * 64 << TLBS}")
                a(f"buffer_load_dword v2, v1, {WS}, s35 offen sc1")
            for _ in range(10 - (TLBW - 1)): a("s_barrier")
            a("s_waitcnt vmcnt(0)")
            a("s_branch F_attn")
            a.label("F_notlb")
    def pre_ba(a):
        attn_addr(a)
        q_probe(a)
    def done_help(a): a("s_branch F_fetch")
    def done_stats(a): a("s_branch F_dry" if DRY else "s_branch F_attn")
    def done_comp(a): a("s_branch F_pub")
    def spare(a):
        ka2.produce_stats(a)
        clear_cnt(a)
        attn_addr(a)
        a(f"s_cmp_lg_u32 s{s_w}, 0")
        a("s_cbranch_scc1 F_sp1")
        ka2.dbg_check(a, "F_dbg")
        a.label("F_sp1")
        a("s_barrier")
        a(f"s_cmp_ge_u32 s{s_w}, 8")
        a("s_cbranch_scc1 F_gemm0")
        q_probe(a)
        a(f"s_cmp_lt_u32 s{s_w}, 5")
        a("s_cbranch_scc1 F_fetch")
        fetch_kv(a, "s", False)
    phase_a(a, done_help, done_stats, done_comp, spare, start_hook, pre_ba, lambda a: fetch_kv(a, 'i', True))
    a.label("F_fetch")
    fetch(a)
    a.label("F_attn")
    attention(a)
    if DRY:
        a.label("F_dry")
        a(f"s_cmp_eq_u32 s{s_w}, 4")
        a("s_cbranch_scc1 F_attn")
        a("s_mov_b64 exec, 0")
        a(f"s_mov_b32 s{s_c}, 7")
        a(f"s_cmp_eq_u32 s{s_w}, 5")
        a("s_cbranch_scc1 B_loop")
        a(f"s_cmp_eq_u32 s{s_w}, 6")
        a("s_cbranch_scc1 B_u3")
        a("s_branch B_synced")
        a.label("F_dryret")
        a("s_mov_b64 exec, -1")
        a("s_nop 7")
        a("s_nop 7")
        a("s_branch F_attn")
    a.label("F_pub")
    stamp(a, 3)
    if WFL:
        a(f"s_and_b32 s{s_t0}, s3, 15")
        a(f"s_cmp_eq_u32 s{s_t0}, 14")
        a("s_cbranch_scc1 F_pubkv")
        a(f"s_lshl_b32 s{s_t0}, s3, 5")
        a(f"s_add_u32 s{s_t0}, s{s_t0}, s{s_w}")
        a(f"s_lshl_b32 s{s_t0}, s{s_t0}, 2")
        a(f"s_add_u32 s{s_t0}, s{s_t0}, {WS_FL - 32}")
        a("v_mov_b32 v1, 1")
        a("s_mov_b64 exec, 1")
        a("s_waitcnt vmcnt(0)")
        a(f"buffer_store_dword v1, off, {WS}, s{s_t0} sc1")
        lds_arrive(a, SC_CNT, 2)
        a("s_branch F_pub2")
        a.label("F_pubkv")
    publish(a, "F_pub2", 0, 4, 3, WS_FL, 1)
    stamp(a, 4)
    lds_wait(a, "F_all", SC_CNT, 4, 2, s_spin, s_t0)
    a.label("F_gemm0")
    a("s_mov_b32 s53, -1")
    a.label("F_gemm")
    nv = gemm(a)
    a.label("F_end")
    a("s_endpgm")
    assert nv <= 168, nv
    return dict(name=name, grid=256, block=768, lds=LDS_A, vgpr=168, sgpr=102 if STAMP else 72, single=True)
```

```python
from common import *

SLOT = 40960
LA = int(os.environ.get('LA', '2'))
SCR = 159744
SC_NM, SC_RS, SC_CS = SCR, SCR + 512, SCR + 1024
LDS_A = SCR + 4096
SC_CNT = SCR + 3072
ST = ' sc1'
ROT = int(os.environ.get('ROT', '0'))
NSB = 0
GATH = int(os.environ.get('GATH', '8'))
PD = int(os.environ.get('PD', '3'))
GMAP = [int(c, 16) for c in os.environ.get('GMAP', '9abf0123cde45678')]
TEAM = int(os.environ.get('TEAM', '0'))
QS = int(os.environ.get('QS', '0'))
QMK = int(os.environ.get('QMK', '1'))
AMAP = int(os.environ.get('AMAP', '2'))
OLDG = int(os.environ.get('OLDG', '0'))
GD = int(os.environ.get('GD', '5'))
SDOT = int(os.environ.get('SDOT', '3'))
HOLDH = int(os.environ.get('HOLDH', '1'))
LATEBIT = os.environ.get('LATEBIT', '1')
AX = os.environ.get('AX', '')
PF = int(os.environ.get('PF', '0'))

SX, SW, SO, SW2 = 4, 8, 12, 16
s_w, s_rb, s_g = 32, 33, 34
s_it, s_slot, s_xoff, s_woff, s_wstep = 35, 36, 37, 38, 39
s_m0x, s_m0w, s_delta, s_relu, s_scale, s_t0, s_t1, s_out, s_dslot, s_cslot, s_ch, s_xbase, s_stride, s_col = range(40, 54)
s_tab = 54

ROLES = {
    "h": (3, 384, 3), "q": (2, 256, 2), "kv": (1, 64, 1)}

def w_read_addr(a, role, dst, s_half, tmp=1):
    NTW, RB, _ = ROLES[role]
    t = tmp
    a(f"v_lshrrev_b32 v{t}, 5, v0")
    a(f"v_bfe_u32 v{t+1}, v0, 2, 2")
    a(f"v_lshl_add_u32 v{t}, v{t}, 3, v{t+1}")
    a(f"v_mul_u32_u24 v{t}, {RB}, v{t}")
    a(f"v_bfe_u32 v{t+2}, v0, 4, 1")
    a(f"v_lshl_add_u32 v{t}, v{t+2}, 5, v{t}")
    a(f"v_and_b32 v{t+2}, 3, v0")
    a(f"v_lshl_add_u32 v{t}, v{t+2}, 3, v{t}")
    a(f"v_add_u32 v{t}, {16384 + LA*SLOT}, v{t}")
    if role == "kv":
        a(f"s_lshl_b32 s{s_t0}, s{s_half}, 12")
        a(f"v_add_u32 v{dst}, s{s_t0}, v{t}")
        return
    if role == "h": a(f"v_lshrrev_b32 v{t+1}, 1, v{t+1}")
    a(f"s_mul_i32 s{s_t0}, s{s_half}, {NTW}")
    for T in range(NTW):
        a(f"s_add_u32 s{s_t1}, s{s_t0}, {T}")
        a(f"v_xor_b32 v{t+2}, s{s_t1}, v{t+1}")
        a(f"v_lshl_add_u32 v{dst+T}, v{t+2}, 6, v{t}")

def slot_advance(regs):
    L = [f"s_cmp_eq_u32 s{s_slot}, {LA*SLOT}",
         f"s_cselect_b32 s{s_delta}, {(-LA*SLOT) & 0xffffffff}, s{s_cslot}",
         f"s_add_u32 s{s_slot}, s{s_slot}, s{s_delta}"]
    return L + [f"v_add_u32 v{r}, s{s_delta}, v{r}" for r in regs]

def ready(a):
    a("s_waitcnt lgkmcnt(0)")
    srd(a, SX, 20, 2048 * 1280)
    srd(a, SO, 30, WS_SIZE)

def loader(a, role, done, pre_ba, wsrd):
    NTW, RB, NW = ROLES[role]
    NW *= 2
    ND = 4 + NW
    v_xd, v_wd = 4, 8
    a(f"v_lshrrev_b32 v1, 3, v0")
    a(f"s_lshl_b32 s{s_t0}, s{s_w}, 5")
    a(f"v_add_u32 v1, s{s_t0}, v1")
    a(f"v_mul_u32_u24 v1, 1280, v1")
    a(f"v_and_b32 v2, 7, v0")
    a(f"v_lshrrev_b32 v3, 4, v0")
    a(f"v_xor_b32 v2, v2, v3")
    a(f"v_lshl_add_u32 v{v_xd}, v2, 4, v1")
    a(f"v_xor_b32 v2, 4, v2")
    a(f"v_lshl_add_u32 v{v_xd+1}, v2, 4, v1")
    a(f"v_add_u32 v{v_xd+1}, {10240-1024}, v{v_xd+1}")
    a(f"v_add_u32 v{v_xd+2}, {2*(10240-1024)}, v{v_xd}")
    a(f"v_add_u32 v{v_xd+3}, {2*(10240-1024)}, v{v_xd+1}")
    a(f"s_lshl_b32 s{s_m0x}, s{s_w}, 12")
    def dma_x():
        a(f"s_and_b32 s{s_ch}, s{s_tab}, 15")
        a(f"s_lshr_b64 s[{s_tab}:{s_tab+1}], s[{s_tab}:{s_tab+1}], 4")
        a(f"s_lshl_b32 s{s_xoff}, s{s_ch}, 7")
        a(f"s_add_u32 s{s_xoff}, s{s_xoff}, s{s_xbase}")
        a(f"s_add_u32 m0, s{s_dslot}, s{s_m0x}")
        a(f"s_mul_i32 s{s_woff}, s{s_ch}, s{s_wstep}")
        for e in range(4):
            a(f"buffer_load_dwordx4 v{v_xd+e}, s[{SX}:{SX+3}], s{s_xoff} offen offset:{e*1024} lds")
    def dma_w():
        a(f"s_add_u32 m0, s{s_dslot}, s{s_m0w}")
        if role == "kv":
            a(f"buffer_load_dwordx4 v{v_wd}, s[{SW}:{SW+3}], s{s_woff} offen lds")
            a(f"s_add_u32 m0, m0, 4096")
            a(f"buffer_load_dwordx4 v{v_wd}, s[{SW2}:{SW2+3}], s{s_woff} offen lds")
        else:
            for m in range(NW):
                if m == 4: a(f"s_add_u32 m0, m0, 4096")
                a(f"buffer_load_dwordx4 v{v_wd+m}, s[{SW}:{SW+3}], s{s_woff} offen offset:{(m%4)*1024} lds")
    a(f"s_mov_b32 s{s_dslot}, 0")
    if role == "kv":
        a(f"s_lshl_b32 s{s_m0w}, s{s_w}, 10")
        a(f"s_add_u32 s{s_m0w}, s{s_m0w}, 16384")
        a(f"v_lshrrev_b32 v1, 2, v0")
        a(f"s_lshl_b32 s{s_t0}, s{s_w}, 4")
        a(f"v_add_u32 v1, s{s_t0}, v1")
        a(f"v_mul_u32_u24 v1, 40, v1")
        a(f"v_and_b32 v2, 3, v0")
        a(f"v_lshl_add_u32 v{v_wd}, v2, 4, v1")
    else:
        PR = RB // 16
        a(f"s_mul_i32 s{s_m0w}, s{s_w}, {NW*1024}")
        a(f"s_add_u32 s{s_m0w}, s{s_m0w}, 16384")
        a(f"s_lshl_b32 s{s_t0}, s{s_w}, 4")
        a(f"s_mul_i32 s{s_t0}, s{s_t0}, s{s_stride}")
        a(f"s_add_u32 s{s_t0}, s{s_t0}, s{s_col}")
        for m in range(NW // 2):
            a(f"v_add_u32 v1, {64*m}, v0")
            if PR == 16:
                a(f"v_lshrrev_b32 v2, 4, v1")
                a(f"v_and_b32 v3, 15, v1")
                a(f"v_and_b32 v1, 3, v2")
            else:
                a(f"v_mul_u32_u24 v2, 0xaaab, v1")
                a(f"v_lshrrev_b32 v2, 20, v2")
                a(f"v_mul_u32_u24 v3, 24, v2")
                a(f"v_sub_u32 v3, v1, v3")
                a(f"v_bfe_u32 v1, v2, 1, 1")
            a(f"v_lshlrev_b32 v1, 2, v1")
            a(f"v_xor_b32 v3, v3, v1")
            a(f"v_mul_lo_u32 v2, v2, s{s_stride}")
            a(f"v_lshl_add_u32 v2, v3, 4, v2")
            a(f"v_add_u32 v{v_wd+m}, s{s_t0}, v2")
        stride = 3456 if role == "h" else 1280
        for m in range(NW // 2, NW):
            a(f"v_add_u32 v{v_wd+m}, {8*stride - (m%4)*1024}, v{v_wd+m-NW//2}")
        for m in range(1, NW // 2): a(f"v_subrev_u32 v{v_wd+m}, {m*1024}, v{v_wd+m}")
    a("s_waitcnt lgkmcnt(0)")
    srd(a, SX, 20, 2048 * 1280)
    wsrd()
    dma_x(); dma_w()
    srd(a, SO, 30, WS_SIZE)
    for c in range(1, LA):
        a(f"s_mov_b32 s{s_dslot}, {c*SLOT}")
        dma_x(); dma_w()
    stamp(a, 2)
    a(f"s_mov_b32 s{s_it}, 0")
    a(f"s_mov_b32 s{s_dslot}, {LA*SLOT}")
    a.label(f"AL_loop_{role}")
    a(f"s_waitcnt vmcnt({(LA-1)*ND})")
    a("s_barrier")
    if "nodma" not in AX: dma_x(); dma_w()
    a(f"s_add_u32 s{s_dslot}, s{s_dslot}, s{s_cslot}")
    a(f"s_cmp_eq_u32 s{s_dslot}, {(LA+1)*SLOT}")
    a(f"s_cselect_b32 s{s_dslot}, 0, s{s_dslot}")
    a(f"s_add_u32 s{s_it}, s{s_it}, 1")
    a(f"s_cmp_lt_u32 s{s_it}, {10-LA}")
    a(f"s_cbranch_scc1 AL_loop_{role}")
    for k in range(LA):
        if k == LA - 1:
            a("s_waitcnt vmcnt(0)")
            pre_ba(a)
        else: a(f"s_waitcnt vmcnt({(LA-1-k)*ND})")
        a("s_barrier")
    stamp(a, 3)
    done(a)

SDBG = 16
def dbg_check(a, name, between=None):
    srd(a, SDBG, 62, 256)
    a("v_lshlrev_b32 v1, 2, v0")
    a("s_mov_b32 exec_lo, 0xffff")
    a("s_mov_b32 exec_hi, 0")
    poll(a, name, f"buffer_load_dword v2, v1, s[{SDBG}:{SDBG+3}], 0 offen sc1", "v_cmp_ne_u32 vcc, 1, v2", 8, between=between)
    a("s_mov_b64 exec, -1")

def idle(a, done, last):
    nb0 = 0
    if QS:
        nb0 = QMK
        for it in range(QMK):
            a("s_barrier")
            if it == 0: stamp(a, 4)
        a(f"s_sub_u32 s{s_t0}, s{s_g}, 9")
        a(f"s_cmp_ge_u32 s{s_t0}, 5")
        a("s_cbranch_scc1 AI_nomark")
        a(f"s_lshl_b32 s{s_t1}, s{s_rb}, 2")
        a(f"s_add_u32 s{s_t1}, s{s_t1}, s{s_w}")
        a(f"s_sub_u32 s{s_t1}, s{s_t1}, 4")
        a(f"s_mul_i32 s{s_t1}, s{s_t1}, {QH_TT}")
        a(f"s_lshl_b32 s{s_t0}, s{s_t0}, 13")
        a(f"s_add_u32 s{s_t0}, s{s_t0}, s{s_t1}")
        a(f"s_add_u32 s{s_t1}, s{s_t0}, 4096")
        for r in range(12, 16): a(f"v_mov_b32 v{r}, -1")
        a(f"v_lshlrev_b32 v1, 4, v0")
        for k in range(8): a(f"buffer_store_dwordx4 v[12:15], v1, s[{SO}:{SO+3}], s{s_t0 if k < 4 else s_t1} offen offset:{(k%4)*1024} sc1")
        a.label("AI_nomark")
    a(f"s_cmp_eq_u32 s{s_w}, 4")
    a("s_cbranch_scc1 AI_w4")
    for it in range(nb0, 9):
        if it == 8: a("s_waitcnt vmcnt(0)")
        a("s_barrier")
        if it in (0, 4): stamp(a, {0: 4, 4: 6}[it])
    last(a)
    a.label("AI_w4")
    a("s_setprio 3")
    bar = lambda: a("s_barrier")
    for it in range(nb0, GD): bar()
    dbg_check(a, "AI_dbg", bar)
    for it in range(GD + 1, GATH): bar()
    a(f"s_lshl_b32 s{s_t0}, s{s_rb}, 10")
    a(f"s_add_u32 s{s_t0}, s{s_t0}, {WS_STAT}")
    a(f"v_lshlrev_b32 v1, 3, v0")
    O = f"s[{SO}:{SO+3}]"
    poll(a, "AI_stat", f"buffer_load_dwordx2 v[4:5], v1, {O}, s{s_t0} offen sc1\nbuffer_load_dwordx2 v[6:7], v1, {O}, s{s_t0} offen offset:512 sc1",
         "v_min_u32 v2, v5, v7\nv_cmp_eq_u32 vcc, 0, v2", 2, between=bar)
    a(f"v_lshlrev_b32 v1, 2, v0")
    a(f"v_add_u32 v1, {SC_NM}, v1")
    a(f"v_mul_f32 v5, s{s_scale}, v5")
    a(f"v_mul_f32 v7, s{s_scale}, v7")
    a(f"ds_write_b32 v1, v4")
    a(f"ds_write_b32 v1, v6 offset:256")
    a(f"ds_write_b32 v1, v5 offset:512")
    a(f"ds_write_b32 v1, v7 offset:768")
    a("s_waitcnt lgkmcnt(0)")
    stamp(a, 3); stamp(a, 4); stamp(a, 6)
    for it in range(GATH + 1, 10): bar()
    a("s_setprio 0")
    done(a)

def clear_words(a):
    O = f"s[{SO}:{SO+3}]"
    for r in range(4, 8): a(f"v_mov_b32 v{r}, 0")
    a(f"v_lshlrev_b32 v1, 4, v0")
    a(f"s_lshl_b32 s{s_t0}, s{s_rb}, 10")
    a(f"s_add_u32 s{s_t0}, s{s_t0}, {WS_STAT}")
    a(f"buffer_store_dwordx4 v[4:7], v1, {O}, s{s_t0} offen sc1")
    a(f"v_lshlrev_b32 v1, 7, v0")
    a(f"s_lshl_b32 s{s_t0}, s{s_rb}, 12")
    a(f"s_add_u32 s{s_t0}, s{s_t0}, {WS_FL}")
    a("s_mov_b32 exec_hi, 0")
    a(f"buffer_store_dwordx4 v[4:7], v1, {O}, s{s_t0} offen sc1")
    a("s_barrier")
    srd(a, SDBG, 62, 256)
    a(f"v_mov_b32 v3, 1")
    a(f"s_lshl_b32 s{s_t0}, s{s_rb}, 2")
    stamp(a, 5)
    a("s_waitcnt vmcnt(0)")
    stamp(a, 6)
    a("s_mov_b64 exec, 1")
    a(f"buffer_store_dword v3, v4, s[{SDBG}:{SDBG+3}], s{s_t0} offen sc1")
    a("s_mov_b64 exec, -1")
    if STAMP: a("s_waitcnt vmcnt(0)")
    stamp(a, 3)

def produce_stats(a):
    O = f"s[{SO}:{SO+3}]"
    a(f"s_cmp_ge_u32 s{s_w}, 8")
    a("s_cbranch_scc1 AP_clear")
    a(f"v_lshrrev_b32 v1, 3, v0")
    a(f"s_lshl_b32 s{s_t0}, s{s_w}, 4")
    a(f"v_add_u32 v1, s{s_t0}, v1")
    a(f"v_mul_u32_u24 v1, 1280, v1")
    a(f"v_and_b32 v2, 7, v0")
    a(f"v_lshl_add_u32 v1, v2, 4, v1")
    a(f"s_add_u32 s{s_t0}, s{s_xbase}, 10240")
    XR, AS = 16, 8
    def ld(c):
        a(f"s_and_b32 s{s_ch}, s{s_tab}, 15")
        a(f"s_lshr_b64 s[{s_tab}:{s_tab+1}], s[{s_tab}:{s_tab+1}], 4")
        a(f"s_lshl_b32 s{s_ch}, s{s_ch}, 7")
        a(f"s_add_u32 s{s_xoff}, s{s_ch}, s{s_xbase}")
        a(f"s_add_u32 s{s_woff}, s{s_ch}, s{s_t0}")
        for e in range(2):
            a(f"buffer_load_dwordx4 {vr(XR+8*c+4*e,4)}, v1, s[{SX}:{SX+3}], s{s_woff if e else s_xoff} offen")
    for c in range(PD): ld(c)
    a(f"s_mov_b32 s{s_relu}, 0x3f803f80")
    for r in range(AS, AS + 8): a(f"v_mov_b32 v{r}, 0")
    for c in range(10):
        a(f"s_waitcnt vmcnt({2*(min(c+PD, 10)-c-1)})")
        if c + PD < 10: ld(c + PD)
        for e in range(2):
            for i in range(4):
                x = XR + 8 * c + 4 * e + i
                a(f"v_dot2c_f32_bf16 v{AS+2*e+(i&1)}, s{s_relu}, v{x}")
                a(f"v_dot2c_f32_bf16 v{AS+4+2*e+(i&1)}, v{x}, v{x}")
    vals = [AS, AS + 2, AS + 4, AS + 6]
    for r in vals: a(f"v_add_f32 v{r}, v{r}, v{r+1}")
    for ctl in ("quad_perm:[1,0,3,2]", "quad_perm:[2,3,0,1]", "row_half_mirror"):
        for r in vals: a(f"v_add_f32_dpp v{r}, v{r}, v{r} {ctl} row_mask:0xf bank_mask:0xf")
    a(f"v_and_b32 v2, 1, v0")
    a(f"v_cmp_eq_u32 vcc, 1, v2")
    a(f"v_cndmask_b32 v4, v{AS}, v{AS+2}, vcc")
    a(f"v_cndmask_b32 v5, v{AS+4}, v{AS+6}, vcc")
    inv = f32bits(1.0 / 640.0)
    a(f"v_mul_f32 v4, {hex(inv)}, v4")
    a(f"v_mul_f32 v5, {hex(inv)}, v5")
    a(f"v_fma_f32 v5, -v4, v4, v5")
    a(f"v_max_f32 v5, 0, v5")
    a(f"v_cvt_pk_bf16_f32 v5, v5, v5")
    a(f"v_lshlrev_b32 v5, 16, v5")
    a(f"v_add_f32 v5, {hex(f32bits(1e-5))}, v5")
    a(f"v_cvt_pk_bf16_f32 v5, v5, v5")
    a(f"v_lshlrev_b32 v5, 16, v5")
    a(f"v_sqrt_f32 v5, v5")
    a(f"v_cvt_pk_bf16_f32 v5, v5, v5")
    a(f"v_lshlrev_b32 v5, 16, v5")
    a(f"v_rcp_f32 v5, v5")
    a(f"v_cvt_pk_bf16_f32 v4, -v4, -v4")
    a(f"v_lshrrev_b32 v1, 3, v0")
    a(f"v_lshl_add_u32 v1, v2, 3, v1")
    a(f"v_lshlrev_b32 v1, 3, v1")
    a(f"v_or_b32 v5, 1, v5")
    a(f"s_lshl_b32 s{s_t0}, s{s_rb}, 10")
    a(f"s_lshl_b32 s{s_t1}, s{s_w}, 7")
    a(f"s_add_u32 s{s_t0}, s{s_t0}, s{s_t1}")
    a(f"s_add_u32 s{s_t0}, s{s_t0}, {WS_STAT}")
    a("s_barrier")
    a("s_mov_b32 exec_lo, 0x03030303")
    a("s_mov_b32 exec_hi, 0x03030303")
    a(f"buffer_store_dwordx2 v[4:5], v1, {O}, s{s_t0} offen sc1")
    a("s_mov_b64 exec, -1")
    stamp(a, 3)
    a("s_branch AP_done")
    a.label("AP_clear")
    a.label("AP_bar")
    a("s_barrier")
    a.label("AP_done")

def prefetch(a, role):
    NTW, RB, _ = ROLES[role]
    c = s_t1
    a(f"s_sub_u32 s{c}, s{s_w}, 8")
    a(f"s_lshr_b32 s{s_t0}, s2, 6")
    a(f"s_lshl_b32 s{s_t0}, s{s_t0}, 2")
    a(f"s_add_u32 s{s_t0}, s{s_t0}, s{c}")
    a(f"s_mul_i32 s{s_t0}, s{s_t0}, {8*1280}")
    a(f"s_add_u32 s{s_t0}, s{s_t0}, s{s_xbase}")
    a(f"v_and_b32 v1, 7, v0")
    a(f"v_mul_u32_u24 v1, 1280, v1")
    a(f"v_lshrrev_b32 v2, 3, v0")
    a(f"v_lshl_add_u32 v3, v2, 7, v1")
    a(f"buffer_load_dword v5, v3, s[{SX}:{SX+3}], s{s_t0} offen offset:128")
    if role != "kv":
        NL = RB // 128
        a(f"v_mul_u32_u24 v2, {65536 // (2*NL) + 1}, v0")
        a(f"v_lshrrev_b32 v2, 16, v2")
        a(f"v_mul_u32_u24 v3, {2*NL}, v2")
        a(f"v_sub_u32 v3, v0, v3")
        a(f"v_and_b32 v4, 1, v3")
        a(f"v_lshrrev_b32 v3, 1, v3")
        a(f"v_lshl_add_u32 v2, v2, 6, v4")
        a(f"v_mul_lo_u32 v2, v2, s{s_stride}")
        a(f"v_lshl_add_u32 v2, v3, 7, v2")
        a(f"s_bfe_u32 s{s_t0}, s2, 0x30003")
        a(f"s_lshl_b32 s{s_t0}, s{s_t0}, 2")
        a(f"s_add_u32 s{s_t0}, s{s_t0}, s{c}")
        a(f"s_lshl_b32 s{s_t0}, s{s_t0}, 1")
        a(f"s_mul_i32 s{s_t0}, s{s_t0}, s{s_stride}")
        a(f"s_add_u32 s{s_delta}, s{s_t0}, s{s_col}")
        a(f"buffer_load_dword v7, v2, s[{SW}:{SW+3}], s{s_delta} offen")
    a(f"s_lshr_b32 s{s_t0}, s2, 6")
    a(f"s_lshl_b32 s{s_t0}, s{s_t0}, 2")
    a(f"s_add_u32 s{s_t0}, s{s_t0}, s{c}")
    a(f"s_mul_i32 s{s_t0}, s{s_t0}, {8*1280}")
    a(f"s_add_u32 s{s_t0}, s{s_t0}, s{s_xbase}")
    a(f"buffer_load_dword v15, v1, s[{SX}:{SX+3}], s{s_t0} offen offset:1152")

def compute(a, role, done, vmode=False):
    NTW, RB, _ = ROLES[role]
    tag = role + ("v" if vmode else "")
    v_xa, v_wa = 8, 12
    XF = [16, 36]; WF = [24, 44]
    SEL, CSA, ACC = 56, 60, 72
    lg = Cnt(a, "lgkmcnt", 15)
    s_rp, s_half = s_m0x, s_m0w
    if NSB: a("s_barrier")
    if PF: prefetch(a, role)
    for _ in range(NSB - 1): a("s_barrier")
    a(f"v_and_b32 v1, 31, v0")
    a(f"v_lshrrev_b32 v2, 5, v0")
    a(f"v_bfe_u32 v3, v0, 1, 3")
    a(f"v_xor_b32 v3, v3, v2")
    a(f"v_lshlrev_b32 v3, 4, v3")
    a(f"v_lshlrev_b32 v1, 7, v1")
    a(f"s_lshl_b32 s{s_t0}, s{s_rp}, 13")
    a(f"s_add_u32 s{s_t0}, s{s_t0}, {LA*SLOT}")
    a(f"v_add_u32 v1, s{s_t0}, v1")
    for j in range(4):
        a(f"v_xor_b32 v4, {j<<5}, v3")
        a(f"v_add_u32 v{v_xa+j}, v1, v4")
    w_read_addr(a, role, v_wa, s_half)
    a(f"v_lshrrev_b32 v1, 2, v0")
    a(f"v_lshrrev_b32 v2, 4, v0")
    a(f"v_xor_b32 v1, v1, v2")
    a(f"v_and_b32 v1, 1, v1")
    a(f"v_subrev_u32 v1, 1, v1")
    for i in range(4): a(f"v_and_b32 v{SEL+i}, 0x3f803f80, v1")
    for r in range(XF[1], WF[1] + 4 * NTW): a(f"v_mov_b32 v{r}, 0")
    z = vr(XF[1], 4)
    for t in range(2 * NTW): a(f"v_mfma_f32_32x32x16_bf16 {vr(ACC+16*t,16)}, {z}, {z}, 0")
    for T in range(NTW): a(f"v_mfma_f32_16x16x32_bf16 {vr(CSA+4*T,4)}, {z}, {z}, 0")
    a(f"s_mov_b32 s{s_it}, 0")
    a(f"s_mov_b32 s{s_slot}, {LA*SLOT}")
    def mfma(R, T, u):
        acc = vr(ACC + 16 * (R * NTW + T), 16); x = vr(XF[u] + 4 * R, 4); w = vr(WF[u] + 4 * T, 4)
        if vmode: a(f"v_mfma_f32_32x32x16_bf16 {acc}, {x}, {w}, {acc}")
        else: a(f"v_mfma_f32_32x32x16_bf16 {acc}, {w}, {x}, {acc}")
    def step(jn, u, cs, post=None, lo=0, hi=99):
        n = u ^ 1
        reads = []
        if jn is not None and "nord" not in AX:
            def rw(T):
                for p in range(2):
                    reads.append((f"ds_read_b64_tr_b16 {vr(WF[n]+4*T+2*p,2)}, v{v_wa+T} offset:{jn*16*RB+p*4*RB}", ("W", n, T)))
            reads.append((f"ds_read_b128 {vr(XF[n],4)}, v{v_xa+jn}", ("X", n, 0)))
            rw(0)
            reads.append((f"ds_read_b128 {vr(XF[n]+4,4)}, v{v_xa+jn} offset:4096", ("X", n, 1)))
            for T in range(1, NTW): rw(T)
        post = list(post or [])
        order = [(R, T) for T in range(NTW) for R in range(2)][lo:hi]
        per = 3 if post else 2
        for k, (R, T) in enumerate(order):
            last = k == len(order) - 1
            lg.wait(("X", u, R), ("W", u, T))
            mfma(R, T, u)
            room = 5
            for _ in range(99 if last else per):
                if reads:
                    t, g = reads.pop(0); a(t); lg.issue(g); room -= 1
            if not reads:
                while post and (room > 0 or last):
                    a(post.pop(0)); room -= 1
            if cs and R == 1 and 'nocs' not in AX:
                a(f"v_mfma_f32_16x16x32_bf16 {vr(CSA+4*T,4)}, {vr(SEL,4)}, {vr(WF[u]+4*T,4)}, {vr(CSA+4*T,4)}")
    stamp(a, 2)
    if STAMP: a("s_waitcnt lgkmcnt(0)")
    NM = 2 * NTW
    adv = slot_advance([v_xa, v_wa] + [v_wa + T for T in range(1, NTW)] + [v_xa + j for j in range(1, 4)])
    for t in adv: a(t)
    full = role != "h" and not (role == "q" and os.environ.get("QSPLIT"))
    if not full:
        a(f"s_cmp_eq_u32 s{s_rp}, 1")
        a(f"s_cbranch_scc1 AC_ent_{tag}1")
    for rp in range(1 if full else 2):
        e0 = full or rp == 0; e1 = full or rp == 1
        if rp == 0: a(f"s_branch AC_ent_{tag}0")
        a.raw(".p2align 6")
        a.label(f"AC_loop_{tag}{rp}")
        st = a.mark()
        a("s_waitcnt lgkmcnt(0)")
        if e0 and 'nocs' not in AX:
            a(f"v_mfma_f32_16x16x32_bf16 {vr(CSA+4*(NTW-1),4)}, {vr(SEL,4)}, {vr(WF[0]+4*(NTW-1),4)}, {vr(CSA+4*(NTW-1),4)}")
        step(None, 0, False, None, NM - 1, NM)
        a.label(f"AC_ent_{tag}{rp}")
        a("s_barrier")
        step(0, 1, e1)
        step(1, 0, e0); step(2, 1, e1)
        tail = adv + [f"s_add_u32 s{s_it}, s{s_it}, 1", f"s_cmp_lt_u32 s{s_it}, 10"]
        step(3, 0, e0, tail, 0, NM - 1)
        lg.q = []
        a(f"s_cbranch_scc1 AC_loop_{tag}{rp}")
        a.check_backedge(st)
        a("s_waitcnt lgkmcnt(0)")
        if e0 and 'nocs' not in AX:
            a(f"v_mfma_f32_16x16x32_bf16 {vr(CSA+4*(NTW-1),4)}, {vr(SEL,4)}, {vr(WF[0]+4*(NTW-1),4)}, {vr(CSA+4*(NTW-1),4)}")
        step(None, 0, False, None, NM - 1, NM)
        if e1:
            for T in range(NTW):
                a(f"v_mfma_f32_16x16x32_bf16 {vr(CSA+4*T,4)}, {vr(SEL,4)}, {vr(WF[1]+4*T,4)}, {vr(CSA+4*T,4)}")
        if rp == 0 and not full: a(f"s_branch AC_fin_{tag}")
    a.label(f"AC_fin_{tag}")
    a(f"v_and_b32 v1, 31, v0")
    a(f"s_lshl_b32 s{s_t0}, s{s_rp}, 8")
    a(f"s_add_u32 s{s_t0}, s{s_t0}, {SC_NM}")
    a(f"v_lshl_add_u32 v2, v1, 2, s{s_t0}")
    pre = [f"v_mov_b32 v{r}, 0" for r in range(XF[0], WF[0] + 4 * NTW)]
    pre += ["s_mov_b32 exec_hi, 0", f"ds_read_b32 v{XF[0]}, v2", f"ds_read_b32 v{XF[0]+4}, v2 offset:128", "s_mov_b32 exec_hi, -1",
            "ds_read_b32 v4, v2 offset:512", "ds_read_b32 v6, v2 offset:640"]
    step(None, 1, False, pre)
    stamp(a, 5)
    CS = CSA
    if not full:
        a(f"s_mul_i32 s{s_t1}, s{s_half}, {NTW*256}")
        a(f"s_add_u32 s{s_t1}, s{s_t1}, {SC_CS}")
        a(f"v_lshl_add_u32 v3, v1, 3, s{s_t1}")
        a(f"s_lshl_b32 s{s_t1}, s{s_rp}, 2")
        a(f"v_add_u32 v7, s{s_t1}, v3")
        for T in range(NTW): a(f"ds_write_b32 v7, v{CSA+4*T} offset:{T*256}")
        lds_arrive(a, SC_CNT + 12, 8)
        lds_wait(a, f"AC_sync_{tag}", SC_CNT + 12, 4, 8, s_it, s_slot, 1)
        for T in range(NTW): a(f"ds_read_b64 {vr(CS+4*T,2)}, v3 offset:{T*256}")
        a(f"s_waitcnt lgkmcnt(0)")
        for T in range(NTW): a(f"v_add_f32 v{CS+4*T}, v{CS+4*T}, v{CS+4*T+1}")
    for T in range(NTW): a(f"v_cvt_pk_bf16_f32 v{CS+4*T+1}, v{CS+4*T}, v{CS+4*T}")
    for T in range(NTW): a(f"v_lshlrev_b32 v{CS+4*T+1}, 16, v{CS+4*T+1}")
    for T in range(NTW): a(f"v_sub_f32 v{CS+4*T+1}, v{CS+4*T}, v{CS+4*T+1}")
    for T in range(NTW): a(f"v_cvt_pk_bf16_f32 v{WF[0]+4*T}, v{CS+4*T}, v{CS+4*T+1}")
    a("s_waitcnt lgkmcnt(0)")
    for R in range(2):
        for T in range(NTW): mfma(R, T, 0)
    stamp(a, 6)
    O = f"s[{SO}:{SO+3}]"
    a(f"v_lshlrev_b32 v1, 4, v0")
    def early_flag():
        a(f"s_lshl_b32 s{s_t0}, s3, 7")
        a(f"s_add_u32 s{s_t0}, s{s_t0}, {WS_FL}")
        a("v_mov_b32 v2, 1")
        a("s_mov_b64 exec, 1")
        a(f"buffer_store_dword v2, off, {O}, s{s_t0} sc1")
        a("s_mov_b64 exec, -1")
    if role == "q" and QS == 1: early_flag()
    if role != "kv":
        for R in range(2):
            for T in range(NTW):
                b = ACC + 16 * (R * NTW + T)
                if R == 0 and T < 2:
                    for i in range(16): a(f"v_mul_f32 v{b+i}, v{4+2*R}, v{b+i}")
                else:
                    for i in range(8): a(f"v_pk_mul_f32 {vr(b+2*i,2)}, {vr(b+2*i,2)}, {vr(4+2*R,2)} op_sel_hi:[1,0]")
                if role == "h":
                    d = ACC + 8 * (R * NTW + T)
                    for i in range(8): a(f"v_cvt_pk_bf16_f32 v{d+i}, v{b+2*i}, v{b+2*i+1}")
                    for i in range(8): a(f"v_pk_max_i16 v{d+i}, v{d+i}, 0")
                    continue
                for i in range(8): a(f"v_cvt_pk_bf16_f32 v{b+i}, v{b+2*i}, v{b+2*i+1}")
                o = 2 * T * 1024
                a(f"buffer_store_dwordx4 {vr(b,4)}, v1, {O}, s{s_out} offen offset:{o}{ST}")
                a(f"buffer_store_dwordx4 {vr(b+4,4)}, v1, {O}, s{s_out} offen offset:{o+1024}{ST}")
            if R == 0 and role != "h": a(f"s_add_u32 s{s_out}, s{s_out}, {QH_TT}")
            if role == "q" and QS == 2 + R: early_flag()
        if role == "h":
            a(f"s_mov_b32 s53, s{s_out}")
            a("s_branch F_gemm")
            return
    elif not vmode:
        for R in range(2):
            b = ACC + 16 * R
            for i in range(12): a(f"v_mul_f32 v{b+i}, v{4+2*R}, v{b+i}")
            for i in range(4): a(f"v_cvt_pk_bf16_f32 v{b+i}, v{b+2*i}, v{b+2*i+1}")
            for i in range(2): a(f"v_cvt_pk_bf16_f32 v{16+2*R+i}, v{b+8+2*i}, v{b+9+2*i}")
            a(f"buffer_store_dwordx4 {vr(b,4)}, v1, {O}, s{s_out} offen offset:{1024*R}{ST}")
        a("s_mov_b32 exec_lo, 0")
        for i in range(4): a(f"v_mov_b32 v{16+i}, {'0x3f80' if i % 2 == 0 else 0}")
        a("s_mov_b32 exec_lo, -1")
        a(f"buffer_store_dwordx4 v[16:19], v1, {O}, s{s_out} offen offset:2048{ST}")
    else:
        a(f"v_lshrrev_b32 v6, 5, v0")
        a(f"v_lshl_add_u32 v3, v6, 4, s{s_t0}")
        for R in range(2):
            for q in range(4): a(f"ds_read_b128 {vr(16+16*R+4*q,4)}, v3 offset:{512+128*R+32*q}")
        a(f"v_and_b32 v2, 31, v0")
        a(f"v_mul_u32_u24 v6, 384, v6")
        a(f"v_lshl_add_u32 v6, v2, 4, v6")
        a(f"s_add_u32 s{s_out}, s{s_out}, 3072")
        a("s_waitcnt lgkmcnt(0)")
        for R in range(2):
            b = ACC + 16 * R
            for i in range(16): a(f"v_mul_f32 v{b+i}, v{16+16*R+i}, v{b+i}")
            for i in range(8): a(f"v_cvt_pk_bf16_f32 v{b+i}, v{b+2*i}, v{b+2*i+1}")
            a("s_mov_b32 exec_lo, 0x00100000")
            a("s_mov_b32 exec_hi, 0x00100000")
            for i in range(8): a(f"v_mov_b32 v{b+i}, 0x3f803f80")
            a("s_mov_b32 exec_lo, 0x00e00000")
            a("s_mov_b32 exec_hi, 0x00e00000")
            for i in range(8): a(f"v_mov_b32 v{b+i}, 0")
            a("s_mov_b32 exec_lo, 0x00ffffff")
            a("s_mov_b32 exec_hi, 0x00ffffff")
            a(f"buffer_store_dwordx4 {vr(b,4)}, v6, {O}, s{s_out} offen offset:{1536*R}{ST}")
            a(f"buffer_store_dwordx4 {vr(b+4,4)}, v6, {O}, s{s_out} offen offset:{1536*R+768}{ST}")
            a("s_mov_b64 exec, -1")
    done(a)

def phase_a(a, done_help, done_stats, done_comp, spare, start_hook, pre_ba, last):
    a("s_load_dwordx8 s[20:27], s[0:1], 0")
    a("s_load_dwordx2 s[28:29], s[0:1], 48")
    a("s_load_dwordx2 s[30:31], s[0:1], 80")
    a("s_load_dwordx2 s[56:57], s[0:1], 56")
    a("s_load_dwordx2 s[58:59], s[0:1], 32")
    a("s_load_dwordx4 s[60:63], s[0:1], 64")
    a("v_lshrrev_b32 v1, 6, v0")
    a("v_and_b32 v0, 63, v0")
    a(f"v_readfirstlane_b32 s{s_w}, v1")
    if OLDG:
        a(f"s_add_u32 s{s_w}, s{s_w}, 8")
        a(f"s_cmp_ge_u32 s{s_w}, 12")
        a(f"s_cselect_b32 s{s_t0}, 12, 0")
        a(f"s_sub_u32 s{s_w}, s{s_w}, s{s_t0}")
    ORD = os.environ.get("ORD", "0123456789,5678901234").split(",")
    gv = sum(g << (4 * i) for i, g in enumerate(GMAP))
    if AMAP == 0:
        a(f"s_and_b32 s{s_t0}, s2, 1")
        a(f"s_lshl_b32 s{s_t0}, s{s_t0}, 3")
        a(f"s_bfe_u32 s{s_rb}, s2, 0x30003")
        a(f"s_lshr_b32 s{s_g}, s2, 6")
        a(f"s_add_u32 s{s_t1}, s{s_g}, s{s_rb}")
        a(f"s_and_b32 s{s_t1}, s{s_t1}, {len(ORD)-1}")
        a(f"s_add_u32 s{s_rb}, s{s_rb}, s{s_t0}")
        a(f"s_bfe_u32 s{s_t0}, s2, 0x20001")
        a(f"s_lshl_b32 s{s_t0}, s{s_t0}, 2")
        a(f"s_add_u32 s{s_g}, s{s_g}, s{s_t0}")
        a(f"s_lshl_b32 s{s_g}, s{s_g}, 2")
        a(f"s_mov_b32 s{s_tab}, {hex(gv & 0xffffffff)}")
        a(f"s_mov_b32 s{s_tab+1}, {hex(gv >> 32)}")
        a(f"s_lshr_b64 s[{s_tab}:{s_tab+1}], s[{s_tab}:{s_tab+1}], s{s_g}")
        a(f"s_and_b32 s{s_g}, s{s_tab}, 15")
    if AMAP == 2:
        a(f"s_and_b32 s{s_rb}, s2, 3")
        a(f"s_lshl_b32 s{s_rb}, s{s_rb}, 2")
        a(f"s_bfe_u32 s{s_t0}, s2, 0x20003")
        a(f"s_add_u32 s{s_rb}, s{s_rb}, s{s_t0}")
        a(f"s_lshr_b32 s{s_g}, s2, 5")
        a(f"s_add_u32 s{s_t1}, s{s_g}, s{s_t0}")
        a(f"s_and_b32 s{s_t1}, s{s_t1}, {len(ORD)-1}")
        a(f"s_bfe_u32 s{s_t0}, s2, 0x10002")
        a(f"s_lshl_b32 s{s_t0}, s{s_t0}, 3")
        a(f"s_add_u32 s{s_g}, s{s_g}, s{s_t0}")
        a(f"s_lshl_b32 s{s_g}, s{s_g}, 2")
        a(f"s_mov_b32 s{s_tab}, {hex(gv & 0xffffffff)}")
        a(f"s_mov_b32 s{s_tab+1}, {hex(gv >> 32)}")
        a(f"s_lshr_b64 s[{s_tab}:{s_tab+1}], s[{s_tab}:{s_tab+1}], s{s_g}")
        a(f"s_and_b32 s{s_g}, s{s_tab}, 15")
    if TEAM:
        a(f"s_and_b32 s{s_rb}, s2, 7")
        a(f"s_lshl_b32 s{s_rb}, s{s_rb}, 1")
        a(f"s_lshr_b32 s{s_t0}, s2, 7")
        a(f"s_add_u32 s{s_rb}, s{s_rb}, s{s_t0}")
        a(f"s_bfe_u32 s{s_g}, s2, 0x40003")
        a(f"s_{'add' if TEAM == 1 else 'xor'}_{'u' if TEAM == 1 else 'b'}32 s{s_t1}, s{s_t0}, {'s%d' % s_g if TEAM == 1 else '0'}")
        if TEAM == 3:
            a(f"s_lshl_b32 s{s_t1}, s2, 1")
            a(f"s_add_u32 s{s_t1}, s{s_t1}, s{s_t0}")
        a(f"s_and_b32 s{s_t1}, s{s_t1}, {len(ORD)-1}")
    a(f"s_lshl_b32 s3, s{s_rb}, 4")
    a(f"s_add_u32 s3, s3, s{s_g}")
    ORDQ = os.environ.get("ORDQ", "0516273849,5061728394")
    if ORDQ:
        lo_, hi_ = [int(x) for x in os.environ.get("QRNG", "9,14").split(",")]
        a(f"s_sub_u32 s{s_t0}, s{s_g}, {lo_}")
        a(f"s_cmp_le_u32 s{s_t0}, {hi_ - lo_}")
        a(f"s_cselect_b32 s{s_t0}, {len(ORD)}, 0")
        a(f"s_add_u32 s{s_t1}, s{s_t1}, s{s_t0}")
        ORD = ORD + ORDQ.split(",")
    for k, o in enumerate(ORD):
        assert sorted(o) == list("0123456789")
        v = sum(int(d) << (4 * i) for i, d in enumerate(o))
        if k == 0:
            a(f"s_mov_b32 s{s_tab}, {hex(v & 0xffffffff)}")
            a(f"s_movk_i32 s{s_tab+1}, {hex(v >> 32)}")
        else:
            a(f"s_cmp_eq_u32 s{s_t1}, {k}")
            a(f"s_cselect_b32 s{s_tab}, {hex(v & 0xffffffff)}, s{s_tab}")
            a(f"s_cselect_b32 s{s_tab+1}, {hex(v >> 32)}, s{s_tab+1}")
    a(f"s_mov_b32 s{s_cslot}, {SLOT}")
    a(f"s_mul_i32 s{s_xbase}, s{s_rb}, {128*1280}")
    a(f"s_cmp_ge_u32 s{s_w}, 4")
    a("s_cbranch_scc1 A_other")
    a(f"s_cmp_lt_u32 s{s_g}, 9")
    a("s_cbranch_scc1 A_lh")
    a(f"s_cmp_ge_u32 s{s_g}, 14")
    a("s_cbranch_scc1 A_lk")
    for role in ("q", "h"):
        NTW = ROLES[role][0]
        stride = 3456 if role == "h" else 1280
        if role == "h": a.label("A_lh")
        else: a(f"s_sub_u32 s{s_g}, s{s_g}, 9")
        a(f"s_movk_i32 s{s_stride}, {stride}")
        a(f"s_mov_b32 s{s_wstep}, {64*stride}")
        a(f"s_mul_i32 s{s_col}, s{s_g}, {NTW*128}")
        loader(a, role, done_help, pre_ba, lambda: srd(a, SW, 28 if role == "h" else 22, 640 * stride))
    a.label("A_lk")
    a(f"s_cmp_eq_u32 s{s_g}, 15")
    a("s_cbranch_scc1 A_spare")
    a(f"s_movk_i32 s{s_wstep}, 2560")
    loader(a, "kv", done_help, pre_ba, lambda: (srd(a, SW, 24, 640 * 40), srd(a, SW2, 26, 640 * 40)))
    a.label("A_other")
    a(f"s_cmp_eq_u32 s{s_g}, 15")
    a("s_cbranch_scc1 A_spare")
    ready(a)
    a(f"s_cmp_lt_u32 s{s_w}, 8")
    a("s_cbranch_scc1 A_stats")
    a("s_setprio 3")
    a(f"s_and_b32 s{s_m0x}, s{s_w}, 1")
    a(f"s_bfe_u32 s{s_m0w}, s{s_w}, 0x10001")
    a(f"s_lshl_b32 s{s_out}, s{s_rb}, 1")
    a(f"s_add_u32 s{s_out}, s{s_out}, s{s_m0x}")
    a(f"s_lshl_b32 s{s_out}, s{s_out}, 1")
    a(f"s_cmp_eq_u32 s{s_g}, 14")
    a("s_cbranch_scc1 A_ckv")
    a(f"s_cmp_lt_u32 s{s_g}, 9")
    a("s_cbranch_scc1 A_ch")
    for role in ("q", "h"):
        NTW = ROLES[role][0]
        if role == "h": a.label("A_ch")
        else: a(f"s_sub_u32 s{s_g}, s{s_g}, 9")
        a(f"s_mul_i32 s{s_out}, s{s_out}, {QH_TT}")
        a(f"s_lshl_b32 s{s_t0}, s{s_g}, 1")
        a(f"s_add_u32 s{s_t0}, s{s_t0}, s{s_m0w}")
        a(f"s_mul_i32 s{s_t0}, s{s_t0}, {NTW*2048}")
        a(f"s_add_u32 s{s_out}, s{s_out}, s{s_t0}")
        if role == "h": a(f"s_add_u32 s{s_out}, s{s_out}, {40*1024}")
        compute(a, role, done_comp)
    a.label("A_ckv")
    a(f"s_mul_i32 s{s_out}, s{s_out}, {KV_TILE}")
    a(f"s_add_u32 s{s_out}, s{s_out}, {WS_KV}")
    a(f"s_cmp_eq_u32 s{s_m0w}, 1")
    a(f"s_cbranch_scc1 A_cv")
    compute(a, "kv", done_comp, False)
    a.label("A_cv")
    compute(a, "kv", done_comp, True)
    a.label("A_stats")
    a(f"s_sub_u32 s{s_t0}, s{s_g}, 9")
    a(f"s_cmp_lt_u32 s{s_t0}, 5")
    a(f"s_cselect_b32 s{s_scale}, {hex(f32bits(QSCALE))}, 1.0")
    start_hook(a)
    idle(a, done_stats, last)
    a.label("A_spare")
    ready(a)
    a(f"s_cmp_lg_u32 s{s_w}, 8")
    a("s_cbranch_scc1 A_noclear")
    clear_words(a)
    a("s_branch A_cleared")
    a.label("A_noclear")
    ORDS = os.environ.get("ORDS", "4938051627")
    if ORDS:
        v = sum(int(d) << (4 * i) for i, d in enumerate(ORDS))
        a(f"s_mov_b32 s{s_tab}, {hex(v & 0xffffffff)}")
        a(f"s_movk_i32 s{s_tab+1}, {hex(v >> 32)}")
    a("s_barrier")
    a.label("A_cleared")
    spare(a)
```

```python
from common import *
from gw import *
import ka2
from ka2 import phase_a, SC_CNT, LDS_A
def two_ways(a, name, body): body(' sc1')

GPRIO = int(os.environ.get("GPRIO", "0"))
HOLD = 1
GROT = int(os.environ.get("GROT", "9"))
GX = os.environ.get("GX", "")
UARR = int(os.environ.get("UARR", "0"))
SC_L = None
DRY = int(os.environ.get("DRY", "0"))
PACE = [float(x) for x in os.environ.get("PACE", "1.7,7.0").split(",")]
PEND = int(os.environ.get("PEND", "99"))
ABAT = int(os.environ.get("ABAT", "0"))
PIPE = int(os.environ.get("PIPE", "1"))
KV4 = int(os.environ.get("KV4", "0"))
TRIG = [int(x) for x in os.environ.get("TRIG", "4,8").split(",")]
TAILST = os.environ.get("TAILST")
OSL = [int(x) for x in os.environ.get("OSL", "1,1").split(",")]
WOPF = int(os.environ.get("WOPF", "10"))
ALT1 = int(os.environ.get("ALT1", "0"))
MARK = int(os.environ.get("MARK", "1"))
NS0 = int(os.environ.get("NS0", "2"))
WEARLY = int(os.environ.get("WEARLY", "2"))
W2PF = int(os.environ.get("W2PF", "3"))
HP = int(os.environ.get("HP", "1"))
FASTO = int(os.environ.get("FASTO", "1"))
TRIGST = int(os.environ.get("TRIGST", "1"))
PMASK = int(os.environ.get("PMASK", "0"))
PSTEP = [int(x) for x in os.environ.get("PSTEP", "2,6").split(",") if x]
PBASE = int(os.environ.get("PBASE", "0"))
ALIGN = int(os.environ.get("ALIGN", "0"))
HNEAR = int(os.environ.get("HNEAR", "0"))
JIT = int(os.environ.get("JIT", "0"))
LAY = int(os.environ.get("LAY", "0"))
TLBW = int(os.environ.get("TLBW", "0"))
TLBS = int(os.environ.get("TLBS", "21"))
HORD = int(os.environ.get("HORD", "0"))
GW_N = int(os.environ.get("GW_N", "8"))
OPF = int(os.environ.get("OPF", "9"))
SPEC = int(os.environ.get("SPEC", "1"))
HPI = int(os.environ.get("HPI", "32"))
NEARP = int(os.environ.get("NEARP", "0"))
AD = int(os.environ.get("AD", "8"))
LJ = int(os.environ.get("LJ", "1"))
MD = int(os.environ.get("MD", "2"))
WPF = int(os.environ.get("WPF", "2"))
XST = int(os.environ.get("XST", "4"))
BSL = int(os.environ.get("BSL", "1"))
NF = int(os.environ.get("NF", "3"))
WFL = int(os.environ.get("WFL", "0"))
NH = int(os.environ.get("NH", "27")); NL = 54 - NH
KVH = [int(x) for x in os.environ.get("KVH", "1,2,4,6").split(",")]
KVL = [int(x) for x in os.environ.get("KVL", os.environ.get("KVH", "1,2,4,6")).split(",")]
PMH = int(os.environ.get("PMH", "4")); PML = int(os.environ.get("PML", str(PMH)))
PSEL = os.environ.get("PSEL", "a")
ALH = [int(x) for x in os.environ.get("ALH", "0,-1").split(",")]
ALL = [int(x) for x in os.environ.get("ALL", "0,-1").split(",")]
EV = int(os.environ.get("EV", "1"))
RB = int(os.environ.get("RB", "1"))
RSL = int(os.environ.get("RSL", "1"))
SPLIT = int(os.environ.get("SPLIT", "0"))
EARR = int(os.environ.get("EARR", "1"))
QPRE = int(os.environ.get("QPRE", "0"))
HEARLY = int(os.environ.get("HEARLY", "6"))
DEFW = int(os.environ.get("DEFW", "4"))
DEFER = int(os.environ.get("DEFER", "0"))
PAIR = 2 * KV_TILE
CH = 8 * KV_TILE
STG = 0
KVB = 4 * PART
assert KVB + 4 * CH <= ka2.SCR and KVB >= ka2.SLOT and KVB + 3 * CH >= 3 * ka2.SLOT
RESET_WG = (3 << 6) | (3 << 1)

SX, SW2, SWS, SWO, SOUT, SDBG = 4, 8, 12, 16, 20, 16
s_w, s_tt, s_hg, s_t0, s_t1, s_c, s_slot, s_delta, s_cch, s_base, s_spin, s_kvl, s_kvg, s_woff2 = range(32, 46)
s_gw = 46
s_lid = 97 if STAMP else 64
WS = f"s[{SWS}:{SWS+3}]"
Q1, Q2, P0, P1, O, S0, S1 = 4, 8, 12, 16, 20, 36, 52
KS = [68, 96]
v_ka, v_va, v_g0, VT = 124, 125, 126, 130
v_l16, v_cnt, v_one, v_chk = 136, 137, 138, 139
SC_K = SC_CNT + 256
SC_L = SC_K + 256
COMB = int(os.environ.get('COMB', '0'))
SCW, NW_ = (SC_L, 12) if COMB else (SC_K, 8)
s_tgt = 45

def mf(a, d, x, y, c): a(f"v_mfma_f32_32x32x16_bf16 {vr(d,16)}, {vr(x,4)}, {vr(y,4)}, {c if isinstance(c,str) else vr(c,16)}")
def mf8(a, d, x, y): a(f"v_mfma_f32_32x32x8_bf16 {vr(d,16)}, {vr(x,2)}, {vr(y,2)}, {vr(d,16)}")

def flag_off(a, vd, vrb, vg, t):
    a(f"v_lshl_add_u32 v{vd}, v{vrb}, 4, v{vg}")
    a(f"v_lshlrev_b32 v{vd}, 7, v{vd}")
    a(f"v_add_u32 v{vd}, {WS_FL}, v{vd}")

def publish(a, name, cnt_off, nwaves, sid, base, t, value=1, vm=0, word=None, near=False):
    a(f"s_waitcnt vmcnt({vm})")
    a("s_mov_b64 exec, 1")
    a(f"v_mov_b32 v{t}, {SC_CNT + cnt_off}")
    a(f"v_mov_b32 v{t+1}, 1")
    a(f"ds_add_rtn_u32 v{t+1}, v{t}, v{t+1}")
    a(f"s_lshl_b32 s{s_t0}, s{sid}, 7")
    a(f"s_add_u32 s{s_t0}, s{s_t0}, {base}")
    a(f"v_mov_b32 v{t}, {0 if word is None else 's%d' % word}")
    a(f"v_mov_b32 v{t+2}, {value}")
    a("s_waitcnt lgkmcnt(0)")
    a(f"v_readfirstlane_b32 s{s_t1}, v{t+1}")
    a(f"s_cmp_lg_u32 s{s_t1}, {nwaves-1}")
    a(f"s_cbranch_scc1 {name}")
    if near: two_ways(a, name + "w", lambda sc: a(f"buffer_store_dword v{t+2}, v{t}, {WS}, s{s_t0} offen{sc}"))
    else: a(f"buffer_store_dword v{t+2}, v{t}, {WS}, s{s_t0} offen sc1")
    a.label(name)
    a("s_mov_b64 exec, -1")

def lid(a):
    BMAP = int(os.environ.get("BMAP", "4"))
    if BMAP == 0: a(f"s_mov_b32 s{s_lid}, s2")
    elif BMAP == 1:
        a(f"s_bfe_u32 s{s_lid}, s2, 0x20001")
        a(f"s_lshl_b32 s{s_lid}, s{s_lid}, 4")
        a(f"s_lshr_b32 s35, s2, 4")
        a(f"s_add_u32 s{s_lid}, s{s_lid}, s35")
        a(f"s_lshl_b32 s{s_lid}, s{s_lid}, 1")
        a(f"s_and_b32 s35, s2, 1")
        a(f"s_add_u32 s{s_lid}, s{s_lid}, s35")
        a(f"s_lshl_b32 s{s_lid}, s{s_lid}, 1")
        a(f"s_bfe_u32 s35, s2, 0x10003")
        a(f"s_add_u32 s{s_lid}, s{s_lid}, s35")
    elif BMAP == 3:
        a(f"s_lshr_b32 s{s_lid}, s2, 4")
        a(f"s_lshl_b32 s{s_lid}, s{s_lid}, 3")
        a(f"s_and_b32 s35, s2, 7")
        a(f"s_add_u32 s{s_lid}, s{s_lid}, s35")
        a(f"s_lshl_b32 s{s_lid}, s{s_lid}, 1")
        a(f"s_bfe_u32 s35, s2, 0x10003")
        a(f"s_add_u32 s{s_lid}, s{s_lid}, s35")
    elif BMAP == 4:
        a(f"s_and_b32 s{s_lid}, s2, 1")
        a(f"s_lshl_b32 s{s_lid}, s{s_lid}, 3")
        a(f"s_lshr_b32 s35, s2, 5")
        a(f"s_add_u32 s{s_lid}, s{s_lid}, s35")
        a(f"s_lshl_b32 s{s_lid}, s{s_lid}, 2")
        a(f"s_bfe_u32 s35, s2, 0x20001")
        a(f"s_add_u32 s{s_lid}, s{s_lid}, s35")
        a(f"s_lshl_b32 s{s_lid}, s{s_lid}, 2")
        a(f"s_bfe_u32 s35, s2, 0x20003")
        a(f"s_add_u32 s{s_lid}, s{s_lid}, s35")
    elif BMAP == 5:
        a(f"s_bfe_u32 s{s_lid}, s2, 0x10002")
        a(f"s_lshl_b32 s{s_lid}, s{s_lid}, 3")
        a(f"s_lshr_b32 s35, s2, 5")
        a(f"s_add_u32 s{s_lid}, s{s_lid}, s35")
        a(f"s_lshl_b32 s{s_lid}, s{s_lid}, 1")
        a(f"s_and_b32 s35, s2, 1")
        a(f"s_add_u32 s{s_lid}, s{s_lid}, s35")
        a(f"s_lshl_b32 s{s_lid}, s{s_lid}, 1")
        a(f"s_bfe_u32 s35, s2, 0x10001")
        a(f"s_add_u32 s{s_lid}, s{s_lid}, s35")
        a(f"s_lshl_b32 s{s_lid}, s{s_lid}, 2")
        a(f"s_bfe_u32 s35, s2, 0x20003")
        a(f"s_add_u32 s{s_lid}, s{s_lid}, s35")
    else:
        a(f"s_and_b32 s{s_lid}, s2, 7")
        a(f"s_lshl_b32 s{s_lid}, s{s_lid}, 5")
        a(f"s_lshr_b32 s35, s2, 3")
        a(f"s_add_u32 s{s_lid}, s{s_lid}, s35")
    if STAMP == 3: a("s_mov_b32 s72, 0")

def decode_b(a):
    a(f"s_lshr_b32 s{s_tt}, s{s_lid}, 2")
    a(f"s_and_b32 s{s_hg}, s{s_lid}, 3")

def attn_addr(a):
    lid(a)
    a(f"s_and_b32 s{s_t0}, s{s_lid}, 3")
    a(f"s_lshl_b32 s{s_t0}, s{s_t0}, 3")
    a(f"s_add_u32 s{s_t0}, s{s_t0}, s{s_w}")
    a(f"s_mul_i32 s{s_t0}, s{s_t0}, 5")
    a(f"v_lshrrev_b32 v2, 5, v0")
    a(f"v_and_b32 v3, 31, v0")
    a(f"v_lshlrev_b32 v3, 4, v3")
    for i in range(3):
        if i < 2: a(f"v_add_u32 v1, s{s_t0}, v2")
        else: a(f"v_mov_b32 v1, s{s_t0}")
        if i: a(f"v_add_u32 v1, {2*i}, v1")
        a(f"v_lshrrev_b32 v{VT}, 2, v1")
        a(f"v_lshl_add_u32 v{v_g0+i}, v{VT}, 10, v3")
        a(f"v_and_b32 v{VT}, 1, v1")
        a(f"v_lshl_add_u32 v{v_g0+i}, v{VT}, 9, v{v_g0+i}")
        a(f"v_bfe_u32 v{VT}, v1, 1, 1")
        a(f"v_lshl_add_u32 v{v_g0+i}, v{VT}, 3, v{v_g0+i}")
    a(f"v_lshlrev_b32 v{v_l16}, 4, v0")
    a(f"v_add_u32 v{v_ka}, {KVB + 3*CH}, v{v_l16}")
    a(f"v_lshlrev_b32 v{v_cnt}, 2, v0")
    a(f"v_add_u32 v{v_cnt}, {SC_K}, v{v_cnt}")
    a(f"v_cmp_eq_u32 vcc, 0, v0")
    a(f"v_cndmask_b32 v{v_one}, 0, 1, vcc")
    a(f"v_and_b32 v1, 31, v0")
    a(f"v_min_u32 v1, 23, v1")
    a(f"v_mul_u32_u24 v{v_va}, 384, v2")
    a(f"v_lshl_add_u32 v{v_va}, v1, 4, v{v_va}")
    a(f"v_add_u32 v{v_va}, {KVB + 3*CH + 3072}, v{v_va}")

QFL = lambda: f"buffer_load_dword v6, v4, {WS}, 0 offen sc1"
def q_probe(a):
    decode_b(a)
    a(f"s_lshr_b32 s{s_t0}, s{s_tt}, 2")
    a(f"v_mov_b32 v1, s{s_t0}")
    a(f"s_add_u32 s{s_t1}, s{s_hg}, 9")
    a(f"v_add_u32 v2, s{s_t1}, v0")
    flag_off(a, 4, 1, 2, 3)
    a("s_mov_b64 exec, 3")
    if QPRE: a(QFL())
    else: a("v_mov_b32 v6, 0")
    a("s_mov_b64 exec, -1")

def fetch(a):
    a(f"s_cmp_lg_u32 s{s_w}, 0")
    a("s_cbranch_scc1 F_attn")
    a("s_mov_b64 exec, 3")
    a("s_waitcnt vmcnt(0)")
    a("v_cmp_gt_u32 vcc, 1, v6")
    a("s_cmp_eq_u64 vcc, 0")
    a("s_cbranch_scc1 B_pollq_ok")
    poll(a, "B_pollq", QFL(), "v_cmp_gt_u32 vcc, 1, v6", 2)
    lds_arrive(a, SC_CNT + 16, 2)

def fetch_kv(a, tag, bar):
    decode_b(a)
    a(f"s_lshr_b32 s{s_t0}, s{s_tt}, 3")
    a(f"s_lshl_b32 s{s_t1}, s{s_t0}, 1")
    a(f"v_add_u32 v1, s{s_t1}, v0")
    a(f"v_and_b32 v1, 15, v1")
    a(f"v_mov_b32 v2, 14")
    flag_off(a, 4, 1, 2, 3)
    a(f"s_mul_i32 s{s_t0}, s{s_t0}, {CH}")
    a(f"s_sub_u32 s{s_kvl}, s{s_w}, 5")
    a(f"s_lshl_b32 s{s_kvl}, s{s_kvl}, 13")
    a(f"s_add_u32 s{s_kvg}, s{s_kvl}, s{s_t0}")
    LD = f"buffer_load_dword v2, v4, {WS}, 0 offen sc1"
    def dma(c=0):
        a("s_mov_b64 exec, -1")
        if c:
            a(f"s_lshr_b32 s{s_t0}, s{s_tt}, 3")
            a(f"s_add_u32 s{s_t0}, s{s_t0}, {c}")
            a(f"s_and_b32 s{s_t0}, s{s_t0}, 7")
            a(f"s_mul_i32 s{s_t0}, s{s_t0}, {CH}")
            a(f"s_add_u32 s{s_kvg}, s{s_kvl}, s{s_t0}")
        for hf in range(2):
            a(f"s_add_u32 m0, s{s_kvl}, {KVB + (3-c)*CH + hf*4096}")
            a(f"s_add_u32 s{s_t1}, s{s_kvg}, {WS_KV + hf*4096}")
            for m in range(4): a(f"buffer_load_dwordx4 v{v_l16}, {WS}, s{s_t1} offen offset:{m*1024} sc1 lds")
    a("s_mov_b64 exec, 3")
    if bar:
        a(LD)
        a("s_waitcnt vmcnt(0)")
        a("v_cmp_gt_u32 vcc, 1, v2")
        a("s_cmp_eq_u64 vcc, 0")
        a(f"s_cbranch_scc0 K_late{tag}")
        dma()
        a("s_barrier")
        a(f"s_branch K_done{tag}")
        a.label(f"K_late{tag}")
        a("s_barrier")
    poll(a, f"K_poll{tag}", LD, "v_cmp_gt_u32 vcc, 1, v2", 3)
    dma()
    a.label(f"K_done{tag}")
    a("s_waitcnt vmcnt(0)")
    stamp(a, 2)
    lds_arrive(a, SC_CNT + 16, 2)
    if NF > 1:
        a(f"s_mov_b32 exec_lo, {(1 << (2 * NF)) - 1}")
        a("s_mov_b32 exec_hi, 0")
        poll(a, f"K_more{tag}", LD, "v_cmp_gt_u32 vcc, 1, v2", 3)
        for c in range(1, NF): dma(c)
    a("s_branch F_attn")

def attention(a):
    decode_b(a)
    stamp(a, 8)
    a(f"s_mul_i32 s{s_base}, s{s_tt}, {QH_TT}")
    for r in list(range(KS[0] + 20, KS[0] + (28 if LAY else 24))) + list(range(P0 if LAY else P1, P1 + 4)) + list(range(O, O + 16)):
        a(f"v_mov_b32 v{r}, 0")
    a(f"s_mov_b32 s{s_c}, 0")
    a(f"s_mov_b32 s{s_slot}, {3*CH}")
    a(f"s_mov_b32 s{s_cch}, {(-CH) & 0xffffffff}")
    if PSTEP:
        a(f"s_mov_b32 s{s_tgt}, 0")
        if PSEL == "l":
            a(f"s_bitcmp0_b32 s{s_tt}, 1")
            a("s_cbranch_scc1 B_nops")
        a(f"s_mov_b32 s{s_tgt}, {sum(1 << c for c in PSTEP)}")
        a(f"s_setprio {len(PSTEP) + PBASE}")
        a.label("B_nops")
    a(f"v_mov_b32 v{Q2}, 0")
    a(f"v_mov_b32 v{Q2+1}, 0")
    lds_wait(a, "B_wait", SC_CNT + 16, 4, 2, s_spin, s_t0, BSL)
    stamp(a, 9)
    QLD = "\n".join([f"buffer_load_dwordx2 {vr(Q1,2)}, v{v_g0}, {WS}, s{s_base} offen sc1",
                      f"buffer_load_dwordx2 {vr(Q1+2,2)}, v{v_g0+1}, {WS}, s{s_base} offen sc1",
                      "s_mov_b32 exec_hi, 0",
                      f"buffer_load_dwordx2 {vr(Q2,2)}, v{v_g0+2}, {WS}, s{s_base} offen sc1",
                      "s_mov_b32 exec_hi, -1"])
    def kv_off(kind, t):
        p = (t % 8) // 2 * PAIR; b = t % 2
        return {"K1": p + 1024 * b, "K2": p + 2048, "V0": p + 1536 * b, "V1": p + 1536 * b + 768}[kind]
    def rd(dst, kind, t):
        a(f"ds_read_b128 {vr(dst,4)}, v{v_ka if kind[0] == 'K' else v_va} offset:{kv_off(kind, t)}")
    def group_reads(o):
        n = KS[((o + 1) // 2 + 1) % 2]
        if LAY:
            return [(n + 12, "V0", o + 1), (n + 16, "V1", o + 1), (n, "K1", o + 3), (n + 8, "K2", o + 3),
                    (n + 4, "K1", o + 4), (n + 20, "V0", o + 2), (n + 24, "V1", o + 2)]
        return [(n + 12, "V1", o + 1), (n, "K1", o + 3), (n + 8, "K2", o + 3), (n + 16, "V0", o + 2),
                (n + 20, "V1", o + 2), (n + 4, "K1", o + 4), (n + 24, "V0", o + 3)]
    k0 = KS[0]
    def first_reads():
        rd(k0, "K1", 0); rd(k0 + 8, "K2", 0); rd(k0 + 4, "K1", 1)
        if not LAY: rd(k0 + 24, "V0", 0)
        for r in group_reads(-1)[:4]: rd(*r)
        a(f"v_mov_b32 v2, {SC_CNT + 8}")
    if ka2.QS:
        poll(a, "B_pollqd", QLD, f"v_max3_u32 v3, v{Q1}, v{Q1+1}, v{Q1+2}\nv_max3_u32 v1, v{Q1+3}, v{Q2}, v{Q2+1}\nv_max_u32 v3, v3, v1\nv_cmp_eq_u32 vcc, -1, v3",
             1, between=first_reads)
        a("s_waitcnt lgkmcnt(0)")
    else:
        a(QLD)
        first_reads()
        a("s_waitcnt vmcnt(0) lgkmcnt(0)")
    stamp(a, 10)
    if EARR:
        a("s_mov_b64 exec, 1")
        a(f"ds_add_u32 v2, v{v_one}")
        a("s_mov_b64 exec, -1")
    if EARR == 2: a("s_setprio 1")
    mf(a, S1, k0, Q1, "0"); mf8(a, S1, k0 + 8, Q2)
    mf(a, S0, k0, Q1, "0")
    if not EARR:
        a("s_mov_b64 exec, 1")
        a(f"ds_add_u32 v2, v{v_one}")
        a("s_mov_b64 exec, -1")
    a(f"v_max3_f32 v{VT}, v{S1}, v{S1+1}, v{S1+2}")
    a(f"v_max3_f32 v{VT+1}, v{S1+3}, v{S1+4}, v{S1+5}")
    a(f"v_max3_f32 v{VT+2}, v{S1+6}, v{S1+7}, v{S1+8}")
    a(f"v_max3_f32 v{VT+3}, v{S1+9}, v{S1+10}, v{S1+11}")
    a(f"v_max3_f32 v{VT}, v{VT}, v{S1+12}, v{S1+13}")
    a(f"v_max3_f32 v{VT+1}, v{VT+1}, v{S1+14}, v{S1+15}")
    a(f"v_max3_f32 v{VT}, v{VT}, v{VT+2}, v{VT+3}")
    a(f"v_max_f32 v{VT}, v{VT}, v{VT+1}")
    a(f"v_mov_b32 v{VT+1}, v{VT}")
    a(f"v_permlane32_swap_b32 v{VT}, v{VT+1}")
    a(f"v_max_f32 v{VT}, v{VT}, v{VT+1}")
    a("s_mov_b32 exec_lo, 0")
    a(f"v_cvt_pk_bf16_f32 v{Q2}, -v{VT}, 0")
    a("s_mov_b32 exec_lo, -1")
    mf8(a, S0, k0 + 8, Q2)
    stamp(a, 11); stamp(a, 12, 'cyc')
    a("s_waitcnt lgkmcnt(0)")
    if EARR == 2: a("s_setprio 0")
    a("s_nop 10")
    a.raw(".p2align 6")
    a.label("B_loop")
    start = a.mark()
    for u in range(8):
        Sc, Sn = (S0, S1) if u % 2 == 0 else (S1, S0)
        odd = u % 2
        o = u if odd else u - 1
        ks = KS[((o + 1) // 2) % 2]
        reads = group_reads(o)
        slots = [[reads[0]], [reads[1]], [reads[2]], [reads[3]]] if odd else [[reads[4], reads[5]], [reads[6]], [], []]
        if RSL == 1: slots = [[reads[0], reads[3]], [], [reads[1]], [reads[2]]] if odd else [[reads[4], reads[5]], [], [reads[6]], []]
        if RSL == 2: slots = [[reads[0]], [], [reads[1], reads[3]], [reads[2]]] if odd else [[reads[4]], [], [reads[5], reads[6]], []]
        e = lambda i: a(f"v_exp_f32 v{Sc+i}, v{Sc+i}")
        c = lambda i: a(f"v_cvt_pk_bf16_f32 v{P0+i}, v{Sc+2*i}, v{Sc+2*i+1}")
        cp = lambda i: a(f"v_cvt_pk_bf16_f32 v{P0+i}, v{Sn+2*i}, v{Sn+2*i+1}")
        if LAY:
            rs = list(reads[:4] if odd else reads[4:])
            def misc():
                if u == 0:
                    a(f"ds_add_u32 v{v_cnt}, v{v_one} offset:{256 if COMB else 0}")
                    if PSTEP:
                        a(f"s_bitcmp1_b32 s{s_tgt}, s{s_c}")
                        a("s_cbranch_scc1 B_prio")
                        a.label("B_prioret")
                if u == 4: a(f"ds_read_b32 v{v_chk}, v{v_cnt} offset:256")
                if u == 2:
                    a(f"s_cmp_eq_u32 s{s_slot}, 0")
                    a(f"s_cselect_b32 s{s_delta}, {3*CH}, s{s_cch}")
                if u == 6:
                    a(f"s_add_u32 s{s_c}, s{s_c}, 1")
                    a(f"s_cmp_lt_u32 s{s_c}, 8")
            if odd: a("s_waitcnt lgkmcnt(0)")
            mf(a, Sn, ks + (0 if odd else 4), Q1, "0")
            if u == 5:
                a(f"v_readlane_b32 s{s_t0}, v{v_chk}, s{s_c}")
                a(f"s_add_u32 s{s_slot}, s{s_slot}, s{s_delta}")
                a(f"s_cmp_lt_u32 s{s_t0}, {12 if COMB else 4}")
                if "nospin" not in GX: a("s_cbranch_scc1 B_spin")
                a.label("B_synced")
                a(f"v_add_u32 v{v_ka}, s{s_delta}, v{v_ka}")
            if u == 7: a(f"v_add_u32 v{v_va}, s{s_delta}, v{v_va}")
            if u == 2: a(f"v_mov_b32_dpp v{v_one}, v{v_one} row_shr:1 row_mask:0xf bank_mask:0xf bound_ctrl:0")
            e(0); e(1); e(2)
            mf8(a, Sn, ks + 8 + (0 if odd else 2), Q2)
            rd(*rs.pop(0))
            e(3); e(4); e(5)
            mf(a, O, ks + (12 if odd else 20), P0, O)
            if LAY == 2: rd(*rs.pop(0))
            e(6); e(7); e(8)
            mf(a, O, ks + (16 if odd else 24), P1, O)
            if LAY == 1:
                e(9); e(10); c(0); c(1)
                for r in rs: rd(*r)
                misc()
                c(2); e(11); e(12); c(3); c(4); e(13); e(14); e(15); c(5); c(6); c(7)
            else:
                rd(*rs.pop(0))
                e(9); e(10); c(0)
                for r in rs: rd(*r)
                misc()
                c(1); c(2); e(11); e(12); c(3); c(4); e(13); e(14); e(15); c(5); c(6); c(7)
            continue
        if os.environ.get("CHST") and u == 0: a("s_memtime s[98:99]" if os.environ.get("CHST") == "2" else "s_memrealtime s[98:99]")
        cp(6); e(0); e(1); cp(7); e(2); e(3)
        if odd: a("s_waitcnt lgkmcnt(0)")
        if os.environ.get("CHST") and u == 1:
            sl = [2, 3, 4, 5, 6, 8, 9, 10]
            for k in range(7): a(f"s_mov_b32 s{64+2*sl[k]}, s{64+2*sl[k+1]}")
            a(f"s_mov_b32 s{64+2*sl[7]}, s98")
        mf(a, Sn, ks + (0 if odd else 4), Q1, "0")
        for r in slots[0]: rd(*r)
        if u == 5:
            a(f"v_readlane_b32 s{s_t0}, v{v_chk}, s{s_c}")
            a(f"s_add_u32 s{s_slot}, s{s_slot}, s{s_delta}")
            a(f"s_cmp_lt_u32 s{s_t0}, {12 if COMB else 4}")
            if "nospin" not in GX: a("s_cbranch_scc1 B_spin")
            a.label("B_synced")
        if u == 2:
            a(f"s_cmp_eq_u32 s{s_slot}, 0")
            a(f"s_cselect_b32 s{s_delta}, {3*CH}, s{s_cch}")
        e(4); e(5)
        if u == 5: a(f"v_add_u32 v{v_ka}, s{s_delta}, v{v_ka}")
        if u == 2: a(f"v_mov_b32_dpp v{v_one}, v{v_one} row_shr:1 row_mask:0xf bank_mask:0xf bound_ctrl:0")
        if u == 6: a(f"v_add_u32 v{v_va}, s{s_delta}, v{v_va}")
        c(0); c(1); e(6); e(7)
        mf8(a, Sn, ks + 8 + (0 if odd else 2), Q2)
        for r in slots[1]: rd(*r)
        e(8); e(9); c(2); c(3); e(10); e(11)
        mf(a, O, ks + (12 if odd else 20), P1, O)
        for r in slots[2]: rd(*r)
        if u == 0 and PSTEP:
            a(f"s_bitcmp1_b32 s{s_tgt}, s{s_c}")
            a("s_cbranch_scc1 B_prio")
            a.label("B_prioret")
        if u == 0:
            a(f"ds_add_u32 v{v_cnt}, v{v_one} offset:{256 if COMB else 0}")
        if u == 4: a(f"ds_read_b32 v{v_chk}, v{v_cnt} offset:256")
        e(12); e(13); c(4); c(5); e(14); e(15)
        mf(a, O, ks + (16 if odd else 24), P0, O)
        for r in slots[3]: rd(*r)
        if u == 6:
            a(f"s_add_u32 s{s_c}, s{s_c}, 1")
            a(f"s_cmp_lt_u32 s{s_c}, 8")
    a("s_cbranch_scc1 B_loop")
    if ALIGN: print("loop bytes/fixed", a.align8(start))
    a.check_backedge(start)
    stamp(a, 13); stamp(a, 14, 'cyc')
    if LAY:
        mf(a, O, KS[0] + 20, P0, O); mf(a, O, KS[0] + 24, P1, O)
    else:
        for i in (6, 7): a(f"v_cvt_pk_bf16_f32 v{P0+i}, v{S1+2*i}, v{S1+2*i+1}")
        mf(a, O, KS[0] + 20, P1, O)
    if not TRIGST: a(f"ds_add_u32 v{v_cnt}, v{v_one}")
    a(f"ds_read_b32 v{v_chk}, v{v_cnt}")
    a("s_waitcnt lgkmcnt(0)")
    a(f"v_mov_b32 v{VT+2}, {hex(f32bits(2.0**60))}")
    a(f"s_lshl_b32 s{s_base}, s{s_lid}, 3")
    a(f"s_add_u32 s{s_base}, s{s_base}, s{s_w}")
    a(f"s_mul_i32 s{s_base}, s{s_base}, 1280")
    a(f"s_add_u32 s{s_base}, s{s_base}, {WS_O}")
    a(f"v_lshlrev_b32 v{v_g0}, 4, v0")
    a(f"v_lshlrev_b32 v{v_g0+1}, 3, v0")
    a(f"v_mov_b32 v{VT}, v{O+8}")
    a(f"v_mov_b32 v{VT+1}, v{O+8}")
    a(f"v_permlane32_swap_b32 v{VT}, v{VT+1}")
    a(f"v_cmp_nle_f32 vcc, {hex(f32bits(2.0**-60))}, v{VT+1}")
    a(f"v_cmp_nle_f32 s[52:53], v{VT+1}, v{VT+2}")
    a(f"s_or_b64 s[52:53], s[52:53], vcc")
    a("s_cbranch_scc1 B_fallback")
    a.label("B_norm")
    a(f"v_rcp_f32 v{VT}, v{VT+1}")
    for i in range(12): a(f"v_mul_f32 v{O+i}, v{VT}, v{O+i}")
    for i in range(6): a(f"v_cvt_pk_bf16_f32 v{O+i}, v{O+2*i}, v{O+2*i+1}")
    if DRY: a("s_cbranch_execz F_dryret")
    a(f"v_readlane_b32 s{s_t0}, v{v_chk}, 9")
    a(f"s_cmp_eq_u32 s{s_t0}, 4")
    a("s_cbranch_scc1 B_near")
    a(f"buffer_store_dwordx4 {vr(O,4)}, v{v_g0}, {WS}, s{s_base} offen sc1")
    a("s_mov_b32 exec_hi, 0")
    a(f"buffer_store_dwordx2 {vr(O+4,2)}, v{v_g0+1}, {WS}, s{s_base} offen offset:1024 sc1")
    a("s_branch B_done")
    a.label("B_near")
    a(f"buffer_store_dwordx4 {vr(O,4)}, v{v_g0}, {WS}, s{s_base} offen{os.environ.get('ONP', '')}")
    a("s_mov_b32 exec_hi, 0")
    a(f"buffer_store_dwordx2 {vr(O+4,2)}, v{v_g0+1}, {WS}, s{s_base} offen offset:1024{os.environ.get('ONP', '')}")
    a.label("B_done")
    if TRIGST == 2: a("s_waitcnt vmcnt(0)")
    if TRIGST: a(f"ds_add_u32 v{v_cnt}, v{v_one}")
    if STAMP: a("s_waitcnt vmcnt(0)")
    if STAMP:
        stamp(a, 7); stamp(a, 15, True)
        stamp_flush(a, 1, SWS, s_w, 12, 16)
    a("s_endpgm")
    if PSTEP:
        a.label("B_prio")
        for k, c in enumerate(PSTEP):
            a(f"s_setprio {len(PSTEP) - 1 - k + PBASE}")
            a(f"s_cmp_eq_u32 s{s_c}, {c}")
            a("s_cbranch_scc1 B_prioret")
        a("s_branch B_prioret")
    a.label("B_spin")
    a(f"s_mov_b32 s{s_spin}, {SPIN * 40}")
    a.label("B_spin1")
    a(f"s_sleep {os.environ.get('SSL', '4')}")
    a(f"ds_read_b32 v{v_chk}, v{v_cnt} offset:256")
    a("s_waitcnt lgkmcnt(0)")
    a(f"v_readlane_b32 s{s_t0}, v{v_chk}, s{s_c}")
    a(f"s_cmp_ge_u32 s{s_t0}, {12 if COMB else 4}")
    a("s_cbranch_scc1 B_synced")
    a(f"s_sub_u32 s{s_spin}, s{s_spin}, 1")
    a(f"s_cmp_lg_u32 s{s_spin}, 0")
    a("s_cbranch_scc1 B_spin1")
    a("s_branch B_synced")
    a.label("B_fallback")
    a("s_mov_b32 exec_lo, 0")
    a(f"v_mov_b32 v{Q2}, 0")
    a("s_mov_b32 exec_lo, -1")
    a(f"s_add_u32 s{s_slot}, s{s_slot}, {KVB}")
    a(f"v_subrev_u32 v{v_ka}, s{s_slot}, v{v_ka}")
    a(f"v_subrev_u32 v{v_va}, s{s_slot}, v{v_va}")
    a(f"v_mov_b32 v{VT}, 0xff800000")
    for r in range(O, O + 16): a(f"v_mov_b32 v{r}, 0")
    a(f"s_mov_b32 s{s_kvg}, {WS_KV}")
    def ldk():
        for i in range(3): a(f"buffer_load_dwordx4 {vr(k0+4*i,4)}, v{v_ka}, {WS}, s{s_kvg} offen offset:{1024*i} sc1")
    def qk(b):
        S = (S0, S1)[b]
        mf(a, S, k0 + 4 * b, Q1, "0"); mf8(a, S, k0 + 8 + 2 * b, Q2)
    def nxt(lbl):
        a(f"s_add_u32 s{s_kvg}, s{s_kvg}, {PAIR}")
        a(f"s_cmp_lt_u32 s{s_kvg}, {WS_KV + 32*PAIR}")
        a(f"s_cbranch_scc1 {lbl}")
    a.label("B_fb1")
    st = a.mark()
    ldk()
    a("s_waitcnt vmcnt(0)")
    qk(0); qk(1)
    for i in range(0, 32, 2): a(f"v_max3_f32 v{VT}, v{VT}, v{S0+i}, v{S0+i+1}")
    nxt("B_fb1")
    a.check_backedge(st)
    a(f"v_mov_b32 v{VT+1}, v{VT}")
    a(f"v_permlane32_swap_b32 v{VT}, v{VT+1}")
    a(f"v_max_f32 v{VT}, v{VT}, v{VT+1}")
    a(f"s_mov_b32 s{s_kvg}, {WS_KV}")
    a.label("B_fb2")
    st = a.mark()
    ldk()
    for i in range(4): a(f"buffer_load_dwordx4 {vr(k0+12+4*i,4)}, v{v_va}, {WS}, s{s_kvg} offen offset:{768*i} sc1")
    a("s_waitcnt vmcnt(0)")
    qk(0); qk(1)
    for b in range(2):
        S = (S0, S1)[b]
        for i in range(16): a(f"v_sub_f32 v{S+i}, v{S+i}, v{VT}")
        for i in range(16): a(f"v_exp_f32 v{S+i}, v{S+i}")
        for i in range(8): a(f"v_cvt_pk_bf16_f32 v{P0+i}, v{S+2*i}, v{S+2*i+1}")
        mf(a, O, k0 + 12 + 8 * b, P0, O); mf(a, O, k0 + 16 + 8 * b, P1, O)
    nxt("B_fb2")
    a.check_backedge(st)
    a(f"v_mov_b32 v{VT}, v{O+8}")
    a(f"v_mov_b32 v{VT+1}, v{O+8}")
    a(f"v_permlane32_swap_b32 v{VT}, v{VT+1}")
    a("s_nop 1")
    a("s_branch B_norm")

def gemm(a):
    global stamp
    def h_store(sc, vl):
        for k in range(12):
            if k in (4, 10): a("s_add_u32 s53, s53, 4096")
            if k == 6: a(f"s_add_u32 s53, s53, {QH_TT - 4096}")
            a(f"buffer_store_dwordx4 {vr(72+4*k,4)}, v{vl}, {WS}, s53 offen offset:{(k % 6 % 4)*1024}{sc}")
        stamp(a, 3)
    a("s_setprio 3")
    if HEARLY:
        a("s_cmp_eq_u32 s53, -1")
        a("s_cbranch_scc1 G_start")
        if HEARLY > 1: lds_wait(a, "G_wait0", SC_CNT + (16 if HEARLY == 2 else 8), 4 if HEARLY == 2 else HEARLY - 2, 2, s_spin, s_t0, 1)
        h_store(" sc1", 1)
        a.label("G_start")
    lid(a)
    decode_b(a)
    a(f"s_sub_u32 s{s_w}, s{s_w}, 8")
    srd(a, SW2, 56, 1728 * 1280)
    srd(a, SWO, 58, 640 * 1280)
    srd(a, SOUT, 60, 2048 * 1280)
    g = GW(a, 27, 4, 10, STG, PART, SW2, SWS, s_gw)
    v_wd2 = g.v_end
    v_wa2, vfl = 11, v_wd2 + 5
    vx = v_wd2 + 6
    v_wa3 = 0
    s_kw, s_ka, s_w0, s_a0 = 50, 51, 54, 55
    a(f"s_mul_i32 s{s_kvl}, s{s_w}, 6144")
    def kv(c, tag=""):
        if c >= 4: lds_wait(a, f"G_free{c}{tag}", SCW + 4 * (c - 3), NW_, 2, s_spin, s_t0, 4)
        a(f"s_lshr_b32 s{s_kvg}, s{s_tt}, 3")
        a(f"s_add_u32 s{s_kvg}, s{s_kvg}, {c}")
        a(f"s_and_b32 s{s_kvg}, s{s_kvg}, 7")
        a(f"s_mul_i32 s{s_kvg}, s{s_kvg}, {CH}")
        a(f"s_add_u32 s{s_kvg}, s{s_kvg}, s{s_kvl}")
        a(f"s_add_u32 s{s_kvg}, s{s_kvg}, {WS_KV}")
        a(f"s_add_u32 m0, s{s_kvl}, {KVB + (3 - c % 4)*CH}")
        for m in range(4):
            a(f"buffer_load_dwordx4 v{g.v_l16}, {WS}, s{s_kvg} offen offset:{m*1024} sc1 lds"); g.vm.issue(("KV", c))
        a(f"s_add_u32 m0, m0, 4096")
        a(f"s_add_u32 s{s_kvg}, s{s_kvg}, 4096")
        for m in range(2):
            a(f"buffer_load_dwordx4 v{g.v_l16}, {WS}, s{s_kvg} offen offset:{m*1024} sc1 lds"); g.vm.issue(("KV", c))
    def landed(c):
        g.vm.wait(("KV", c))
        a("s_mov_b64 exec, 1")
        a(f"v_mov_b32 v2, {SC_L + 4 * (c - 1)}")
        a(f"v_mov_b32 v3, 1")
        a(f"ds_add_u32 v2, v3"); g.lg.issue("arr")
        a("s_mov_b64 exec, -1")
    s_i4 = s_c
    a(f"s_getreg_b32 s{s_delta}, hwreg(HW_REG_XCC_ID, 0, 4)")
    a(f"s_add_u32 s{s_delta}, s{s_delta}, 16")
    a(f"s_mov_b32 s{s_base}, 0")
    g.setup(s_w, s_hg, s_base)
    a(f"s_and_b32 s{s_t1}, s{s_tt}, 3")
    a(f"s_lshl_b32 s{s_i4}, s{s_t1}, 2")
    s_n = 52
    a(f"s_min_u32 s{s_t0}, s{s_t1}, 2")
    a(f"s_mul_i32 s{s_kw}, s{s_t0}, {NH}")
    a(f"s_cmp_eq_u32 s{s_t1}, 3")
    a(f"s_cselect_b32 s{s_t0}, {NL}, 0")
    a(f"s_add_u32 s{s_kw}, s{s_kw}, s{s_t0}")
    a(f"s_cmp_lt_u32 s{s_t1}, 2")
    a(f"s_cselect_b32 s{s_n}, {NH}, {NL}")
    a(f"s_mul_i32 s{s_w0}, s{s_kw}, {16*1280}")
    a(f"s_mul_i32 s{s_t0}, s{s_hg}, 320")
    a(f"s_add_u32 s{s_w0}, s{s_w0}, s{s_t0}")
    a(f"s_mul_i32 s{s_woff2}, s{s_w}, {160*1280}")
    a(f"s_add_u32 s{s_woff2}, s{s_woff2}, s{s_t0}")
    a(f"s_and_b32 s{s_slot}, s{s_tt}, 0xfc")
    a(f"s_add_u32 s{s_slot}, s{s_slot}, s{s_w}")
    a(f"s_mul_i32 s{s_a0}, s{s_slot}, {QH_TT}")
    a(f"s_lshl_b32 s{s_t0}, s{s_kw}, 10")
    a(f"s_add_u32 s{s_a0}, s{s_a0}, s{s_t0}")
    a(f"s_add_u32 s{s_a0}, s{s_a0}, {WS_QH + 40*1024}")
    a(f"v_mul_u32_u24 v2, 12, v0")
    a(f"s_sub_u32 s{s_t0}, s{s_n}, 1")
    a(f"v_min_u32 v2, s{s_t0}, v2")
    a(f"v_add_u32 v2, s{s_kw}, v2")
    a(f"v_mul_u32_u24 v2, 0x5556, v2")
    a(f"v_lshrrev_b32 v2, 18, v2")
    a(f"s_lshr_b32 s{s_t0}, s{s_tt}, 2")
    a(f"v_mov_b32 v1, s{s_t0}")
    flag_off(a, vfl, 1, 2, 3)
    a(f"s_bfe_u32 s{s_ka}, s{s_tt}, {0x10002 if RB == 1 else 0x20002}")
    a(f"s_lshr_b32 s{s_t0}, s{s_n}, {RB}")
    a(f"s_mul_i32 s{s_ka}, s{s_ka}, s{s_t0}")
    a(f"s_add_u32 s{s_kw}, s{s_ka}, s{s_w}")
    ALT = {31: 2 * CH, 32: CH, 33: 0}
    cur = {"ns": None}
    def dma5(vd, S, tag):
        for m in range(4):
            a(f"buffer_load_dwordx4 v{vd+m}, {S}, s{g.s_woff} offen offset:{m*1024} lds"); g.vm.issue(tag)
        a(f"s_add_u32 m0, m0, 4096")
        a(f"buffer_load_dwordx4 v{vd+4}, {S}, s{g.s_woff} offen lds"); g.vm.issue(tag)
    def load_stage(st):
        a(f"s_cmp_ge_u32 s{s_kw}, s{s_n}")
        a(f"s_cselect_b32 s{s_t0}, s{s_n}, 0")
        a(f"s_sub_u32 s{s_kw}, s{s_kw}, s{s_t0}")
        a(f"s_mul_i32 s{g.s_woff}, s{s_kw}, {16*1280}")
        a(f"s_add_u32 s{g.s_woff}, s{g.s_woff}, s{s_w0}")
        a(f"s_add_u32 s{s_kw}, s{s_kw}, 4")
        if cur["ns"] is None:
            oh, ol = [((st - (n + 3) // 4 + 1) % 3) * 5120 for n in (NH, NL)]
            a(f"s_movk_i32 s{s_t0}, {oh}")
            a(f"s_cmp_ge_u32 s{s_i4}, 8")
            a(f"s_cselect_b32 s{s_t0}, {ol}, s{s_t0}")
            a(f"s_add_u32 m0, s{g.s_lds}, s{s_t0}")
        else: a(f"s_add_u32 m0, s{g.s_lds}, {((st - cur['ns'] + 1) % 3)*5120}")
        dma5(g.v_wd, f"s[{SW2}:{SW2+3}]", ("S", st))
    def load_w(i):
        j = i - 27
        row = 80 * (j // 5) + (20 * (j % 5) if j % 5 < 4 else 16)
        a(f"s_add_u32 s{g.s_woff}, s{s_woff2}, {row*1280}")
        if i in ALT:
            a(f"s_mul_i32 s{s_t0}, s{s_w}, 5120")
            a(f"s_add_u32 m0, s{s_t0}, {KVB + CH + ALT[i]}")
        else: a(f"s_add_u32 m0, s{g.s_lds}, {(i % 3)*5120}")
        dma5(v_wd2 if j % 5 == 4 else g.v_wd, f"s[{SWO}:{SWO+3}]", ("W", i))
    def areg(i): return g.v_act + 4 * ((i - 100) % 8 if i >= 100 else i - 27)
    def load_a(i):
        a(f"s_lshl_b32 s{g.s_aoff}, s{s_ka}, 10")
        a(f"s_add_u32 s{g.s_aoff}, s{g.s_aoff}, s{s_a0}")
        a(f"s_add_u32 s{s_ka}, s{s_ka}, 1")
        a(f"s_cmp_eq_u32 s{s_ka}, s{s_n}")
        a(f"s_cselect_b32 s{s_ka}, 0, s{s_ka}")
        a(f"buffer_load_dwordx4 {vr(areg(i),4)}, v{g.v_l16}, {WS}, s{g.s_aoff} offen sc1"); g.vm.issue(("A", i))
    def rd_t(i, T):
        if i >= 100: base, off = g.v_wa, (i % 4) * PART + (((i - 100) // 4 - cur['ns'] + 1) % 3) * 5120
        else: base, off = (v_wa3, ALT[i]) if i in ALT else (g.v_wa, (i % 3) * 5120)
        for p in range(2):
            a(f"ds_read_b64_tr_b16 {vr(g.v_wf+4*T+2*p,2)}, v{base} offset:{off + T*64 + p*2560}"); g.lg.issue((i, T))
    def rd_w(i):
        g.vm.wait(("W", i))
        for T in range(5): rd_t(i, T)
    def mm(i, nxt=None, pm=0):
        g.vm.wait(("A", i), ("W", nxt))
        low = not 32 <= i < 100
        for T in range(5):
            if low and (pm >> T & 1) != ((pm >> (T - 1) & 1) if T else 1): a(f"s_setprio {3 * (pm >> T & 1)}")
            g.lg.wait((i, T))
            acc = vr(g.v_acc + 16 * T, 16)
            a(f"v_mfma_f32_32x32x16_bf16 {acc}, {vr(g.v_wf+4*T,4)}, {vr(areg(i),4)}, {acc if i != 100 else 0}")
            if nxt is not None: rd_t(nxt, T)
        if low and not pm >> 4 & 1: a("s_setprio 3")
    def sync(st, tag=""):
        g.vm.wait(("S", st))
        lds_arrive(a, SC_CNT + 32 + 4 * st, 2)
        lds_wait(a, f"G_sync{st}{tag}", SC_CNT + 32 + 4 * st, 4, 2, s_spin, s_t0, 1)
        g.lg.q = []
    g.setup2()
    a(f"v_subrev_u32 v{g.v_wa}, s{g.s_lds}, v{g.v_wa}")
    for m in range(5):
        a(f"v_add_u32 v1, {64*m}, v0")
        a(f"v_mul_u32_u24 v2, 0xcccd, v1")
        a(f"v_lshrrev_b32 v2, 22, v2")
        a(f"v_mul_u32_u24 v2, {16*1280}, v2")
        a(f"v_add_u32 v{v_wd2+m}, v2, v{g.v_wd+m}")
    if HEARLY:
        lds_wait(a, "G_wait", SC_CNT + 8, 8, 2, s_spin, s_t0, 1)
        for c in range(1, NF): landed(c)
        a(f"v_mov_b32 v2, 14")
        flag_off(a, g.v_wf, 0, 2, 3)
        def pubh():
            a("s_cmp_eq_u32 s53, -1")
            a("s_cbranch_scc1 G_noh")
            publish(a, "G_pub", 0, 4, 3, WS_FL, 1, vm=1)
            stamp(a, 4)
            a.label("G_noh")
            a("s_mov_b32 exec_lo, 0xffff")
            a("s_mov_b32 exec_hi, 0")
        a("s_mov_b32 exec_lo, 0xffff")
        a("s_mov_b32 exec_hi, 0")
        poll(a, "G_pollkv", f"buffer_load_dword v{g.v_wf+1}, v{g.v_wf}, {WS}, 0 offen sc1", f"v_cmp_gt_u32 vcc, 1, v{g.v_wf+1}", 6, between=pubh)
        a("s_mov_b64 exec, -1")
        g.vm.q = []
        for c in range(NF, 4): kv(c)
    else:
        a(f"v_mov_b32 v2, 14")
        flag_off(a, 1, 0, 2, 3)
        a("s_mov_b32 exec_lo, 0xffff")
        a("s_mov_b32 exec_hi, 0")
        poll(a, "G_pollkv", f"buffer_load_dword v2, v1, {WS}, 0 offen sc1", "v_cmp_gt_u32 vcc, 1, v2", 6)
        a("s_mov_b64 exec, -1")
        lds_wait(a, "G_wait", SC_CNT + 8, GW_N, 2, s_spin, s_t0, 1)
        for c in range(1, NF): landed(c)
        first = list(range(NF, NF + HORD)); later = list(range(NF + HORD, 4))
        for c in first: kv(c)
        a("s_cmp_eq_u32 s53, -1")
        a("s_cbranch_scc1 G_noh")
        if not HEARLY: h_store(" sc1", g.v_l16)
        q0 = list(g.vm.q)
        g.vm.q += ["H"] * 12
        for c in first: landed(c)
        for c in later: kv(c)
        publish(a, "G_pub", 0, 4, 3, WS_FL, 1, vm=6 * len(later))
        stamp(a, 4)
        a("s_branch G_noh2")
        a.label("G_noh")
        g.vm.q = q0
        for c in later: kv(c)
        for c in first: landed(c)
        a.label("G_noh2")
        g.vm.q = [("KV", c) for c in later for _ in range(6)]
        for c in later: landed(c)
    for st in range(NS0): load_stage(st)
    if HEARLY:
        for c in range(NF, 4): landed(c)
    stamp(a, 8)
    a("s_mov_b64 exec, 15")
    poll(a, "G_pollh", f"buffer_load_dword v2, v{vfl}, {WS}, 0 offen sc1", "v_cmp_gt_u32 vcc, 1, v2", 4)
    a("s_mov_b64 exec, -1")
    g.vm.q = []
    stamp(a, 9)
    if STAMP: a("s_waitcnt lgkmcnt(0)")
    for i in range(100, 104): load_a(i)
    for st in range(NS0, 3): load_stage(st)
    for i in range(104, 108): load_a(i)
    vl = vfl
    a(f"v_mov_b32 v{vl}, v0")
    a(f"s_mul_i32 s{s_base}, s{s_tt}, {32*1280}")
    a(f"s_mul_i32 s{s_t0}, s{s_hg}, 320")
    a(f"s_add_u32 s{s_base}, s{s_base}, s{s_t0}")
    a(f"s_mul_i32 s{s_t0}, s{s_w}, {8*1280}")
    a(f"s_add_u32 s{s_base}, s{s_base}, s{s_t0}")
    a(f"v_and_b32 v1, 31, v0")
    a(f"v_lshrrev_b32 v2, 5, v0")
    def item(e, vg_, vr_=None):
        a(f"v_add_u32 v2, {64*e}, v{vl}")
        a(f"v_mul_u32_u24 v3, 0xcccd, v2")
        a(f"v_lshrrev_b32 v3, 21, v3")
        if vr_ is not None:
            a(f"v_xor_b32 v{vr_}, v2, v3")
            a(f"v_lshlrev_b32 v{vr_}, 4, v{vr_}")
        a(f"v_mul_u32_u24 v3, 960, v3")
        a(f"v_lshl_add_u32 v{vg_}, v2, 3, v3")
    a(f"v_mul_u32_u24 v{v_wa2}, 1280, v2")
    a(f"v_lshl_add_u32 v{v_wa2}, v1, 3, v{v_wa2}")
    a(f"v_mul_u32_u24 v1, 0xcccd, v0")
    a(f"v_lshrrev_b32 v1, 18, v1")
    a(f"v_mul_u32_u24 v2, 5, v1")
    a(f"v_sub_u32 v2, v0, v2")
    a(f"v_mul_u32_u24 v1, 1280, v1")
    a(f"v_lshl_add_u32 v{vx}, v2, 6, v1")
    a(f"s_mul_i32 s{s_t0}, s{s_w}, 5120")
    a(f"s_add_u32 s{s_t0}, s{s_t0}, {KVB + CH}")
    a(f"v_add_u32 v{v_wa3}, s{s_t0}, v{g.v_wa}")
    for r in range(4): a(f"v_mov_b32 v{vx+4+r}, -1")
    sync(0)
    def ffn(N, tag, kvat, pm, alt):
        ns = (N + 3) // 4
        cur["ns"] = ns
        for T in range(5): rd_t(100, T)
        assert EV + 3 <= kvat[-1] < ns and ns >= EV + 5
        for st in range(ns):
            if st in kvat: kv(4 + kvat.index(st), tag)
            n = min(4, N - 4 * st)
            for j in range(n):
                i = 100 + 4 * st + j
                if j == 3 and st + 1 < ns and SPLIT:
                    g.vm.wait(("S", st + 1))
                    lds_arrive(a, SC_CNT + 32 + 4 * (st + 1), 2); g.lg.issue("arr")
                    mm(i, None, pm)
                    lds_wait(a, f"G_sync{st+1}{tag}", SC_CNT + 32 + 4 * (st + 1), 4, 2, s_spin, s_t0, 1)
                    g.lg.q = []
                    for T in range(5): rd_t(i + 1, T)
                    if st + 3 < ns: load_stage(st + 3)
                    else: load_w(28 + st + 3 - ns)
                    continue
                if j == 3 and st + 1 < ns:
                    sync(st + 1, tag)
                    if st + 3 < ns: load_stage(st + 3)
                    else: load_w(28 + st + 3 - ns)
                mm(i, i + 1 if i + 1 < 100 + N else None, pm)
                if j == min(LJ, n - 1) and st in kvat: landed(4 + kvat.index(st))
            for i in range(4 * st + 8, min(4 * st + 12, N)): load_a(100 + i)
            if st == EV:
                a(f"s_lshl_b32 s{s_t0}, s{s_lid}, 2")
                a(f"s_add_u32 s{s_t0}, s{s_t0}, s{s_w}")
                a(f"s_mul_i32 s{s_t0}, s{s_t0}, 2560")
                a(f"s_add_u32 s{s_t0}, s{s_t0}, {WS_O}")
                for o in (0, 1024, 1536):
                    a(f"buffer_store_dwordx4 {vr(vx+4,4)}, v{g.v_l16}, {WS}, s{s_t0} offen offset:{o} sc1"); g.vm.issue("R")
            if st == EV + 1:
                a(f"s_bfe_u32 s{s_t0}, s{s_tt}, 0x30002")
                a(f"s_mul_i32 s{s_t0}, s{s_t0}, {20*1280}")
                a(f"s_add_u32 s{s_t0}, s{s_t0}, s{s_woff2}")
                a(f"s_add_u32 s{s_t1}, s{s_t0}, {10*1280}")
                a(f"buffer_load_dword v{vx+2}, v{vx}, s[{SWO}:{SWO+3}], s{s_t0} offen"); g.vm.issue("P")
                a(f"buffer_load_dword v{vx+3}, v{vx}, s[{SWO}:{SWO+3}], s{s_t1} offen"); g.vm.issue("P")
            if st == EV + 2:
                g.vm.wait("R")
                publish(a, f"G_pubr{tag}", 4, 4, s_lid, WS_FL + 32768, 1, value=f"s{s_delta}", vm=63, word=s_i4)
                g.lg.q = []
            if st == EV + 3:
                g.vm.wait("P", "R")
                for e in range(5):
                    item(e, 1)
                    a(f"buffer_load_dwordx2 {vr(vx+2*e,2)}, v1, s[{SX}:{SX+3}], s{s_base} offen"); g.vm.issue("X")
            if st == ns - 2:
                a(f"s_lshl_b32 s{s_t0}, s{s_tt}, 2")
                a(f"s_add_u32 s{s_t0}, s{s_t0}, s{s_w}")
                a(f"s_lshl_b32 s{s_t0}, s{s_t0}, 7")
                a(f"s_add_u32 s{s_t0}, s{s_t0}, s{s_i4}")
                a(f"s_add_u32 s{s_cch}, s{s_t0}, {WS_FL + 32768}")
                a(f"buffer_load_dword v1, off, {WS}, s{s_cch} sc1"); g.vm.issue("M")
            for k in range(2):
                if st == ns - 1 - alt[k]:
                    lds_wait(a, f"G_alt{k}{tag}", SCW + 20 + 4 * k, NW_, 2, s_spin, s_t0, 2)
                    g.lg.q = []
                    load_w(31 + k)
            if st in (0, 3):
                stamp(a, {0: 10, 3: 11}[st])
                if STAMP: a("s_waitcnt lgkmcnt(0)")
        g.vm.wait("M")
    if NH != NL or KVH != KVL or PMH != PML or ALH != ALL:
        a(f"s_cmp_ge_u32 s{s_i4}, 8")
        a("s_cbranch_scc1 G_light")
        vq, lq = list(g.vm.q), list(g.lg.q)
        ffn(NH, "h", KVH, PMH, ALH)
        a("s_branch G_ffnend")
        a.label("G_light")
        g.vm.q, g.lg.q = vq, lq
        ffn(NL, "l", KVL, PML, ALL)
        a.label("G_ffnend")
    else:
        ffn(NH, "h", KVH, PMH, ALH)
    g.vm.q = []; g.lg.q = []
    stamp(a, 12)
    a("v_cmp_gt_u32 vcc, 1, v1")
    a("s_cmp_eq_u64 vcc, 0")
    a("s_cbranch_scc1 G_pollm_ok")
    poll(a, "G_pollm", f"buffer_load_dword v1, off, {WS}, s{s_cch} sc1", "v_cmp_gt_u32 vcc, 1, v1", 8)
    a(f"v_readfirstlane_b32 s{s_t0}, v1")
    a(f"s_cmp_lg_u32 s{s_t0}, s{s_delta}")
    a("s_cbranch_scc1 G_novote")
    if FASTO: lds_arrive(a, SC_K + 36, 2)
    a.label("G_novote")
    pk = g.v_act
    lds_arrive(a, SC_CNT + 96, 2)
    a(f"s_lshl_b32 s{s_t0}, s{s_w}, 2")
    a(f"s_cmp_eq_u32 s{s_t0}, s{s_i4}")
    a("s_cbranch_scc1 G_keep")
    a(f"s_lshl_b32 s{s_t0}, s{s_lid}, 2")
    a(f"s_add_u32 s{s_t0}, s{s_t0}, s{s_w}")
    a(f"s_mul_i32 s{s_t0}, s{s_t0}, 10240")
    a(f"s_add_u32 s{s_t0}, s{s_t0}, {WS_P}")
    def pick(name, body):
        if not NEARP: body(" sc1"); return
        a(f"s_cmp_eq_u32 s52, s{s_delta}")
        a(f"s_cbranch_scc1 {name}_n")
        body(" sc1")
        a(f"s_branch {name}_e")
        a.label(f"{name}_n")
        body(os.environ.get("NPOL", "") if name == "G_snd" else "")
        a.label(f"{name}_e")
    def snd(sc):
        a("s_nop 7")
        for k in range(10):
            for r in range(4): a(f"v_cvt_pk_bf16_f32 v{pk+4*k+r}, v{g.v_acc+8*k+2*r}, v{g.v_acc+8*k+2*r+1}")
            if k in (4, 8): a(f"s_add_u32 s{s_t0}, s{s_t0}, 4096")
            a(f"buffer_store_dwordx4 {vr(pk+4*k,4)}, v{g.v_l16}, {WS}, s{s_t0} offen offset:{(k%4)*1024}{sc}")
    pick("G_snd", snd)
    a.label("G_keep")
    def not_owner(lbl):
        a(f"s_lshl_b32 s{s_t1}, s{s_w}, 2")
        a(f"s_cmp_eq_u32 s{s_t1}, s{s_i4}")
        a(f"s_cbranch_scc1 {lbl}")
    lds_wait(a, "G_sync7", SC_CNT + 96, 4, 2, s_spin, s_t0, 1)
    g.lg.q = []
    a(f"v_add_u32 v{g.v_wa}, s{g.s_lds}, v{g.v_wa}")
    load_w(27)
    a(f"s_lshl_b32 s{s_t0}, s{s_tt}, 2")
    a(f"s_add_u32 s{s_t0}, s{s_t0}, s{s_w}")
    a(f"s_mul_i32 s{g.s_aoff}, s{s_t0}, 10240")
    a(f"s_add_u32 s{g.s_aoff}, s{g.s_aoff}, {WS_O}")
    a(f"s_add_u32 s{s_a0}, s{g.s_aoff}, 5120")
    a(f"s_lshl_b32 s{s_slot}, s{s_slot}, 2")
    a(f"s_add_u32 s{s_slot}, s{s_slot}, s{s_hg}")
    a(f"s_lshl_b32 s{s_t1}, s{s_slot}, 7")
    a(f"s_add_u32 s{s_t1}, s{s_t1}, s{s_i4}")
    a(f"s_add_u32 s{s_kvg}, s{s_t1}, {WS_FL + 32768}")
    not_owner("G_keep2")
    a(f"s_lshl_b32 s{s_t0}, s{s_lid}, 7")
    a(f"s_add_u32 s{s_t0}, s{s_t0}, s{s_t1}")
    a(f"s_add_u32 s{s_t0}, s{s_t0}, {WS_FL + 32768}")
    a("v_mov_b32 v1, 1")
    a("s_waitcnt vmcnt(5)")
    a("s_mov_b64 exec, 1")
    pick("G_sfl", lambda sc: a(f"buffer_store_dword v1, off, {WS}, s{s_t0}{sc}"))
    a("s_mov_b64 exec, -1")
    a.label("G_keep2")
    if TAILST: stamp(a, 8)
    assert (ALH[1] < 0) == (ALL[1] < 0) and ALH[0] >= 0 and ALL[0] >= 0
    rd_w(27); g.lg.drain(); load_w(30)
    if ALH[1] < 0:
        lds_wait(a, "G_alt1x", SCW + 24, NW_, 2, s_spin, s_t0, 2)
        load_w(32)
    def unpack(k0_, k1_):
        for k in range(k0_, k1_):
            for r in range(4):
                a(f"v_lshlrev_b32 v{g.v_acc+8*k+2*r}, 16, v{pk+4*k+r}")
                a(f"v_and_b32 v{g.v_acc+8*k+2*r+1}, s{s_cch}, v{pk+4*k+r}")
    a(f"s_mov_b32 s{s_cch}, 0xffff0000")
    not_owner("G_keep3")
    poll(a, "G_pollr", f"buffer_load_dword v1, off, {WS}, s{s_kvg} sc1", "v_cmp_gt_u32 vcc, 1, v1", 2)
    a(f"s_mul_i32 s{s_t0}, s{s_slot}, 40960")
    a(f"s_mul_i32 s{s_t1}, s{s_i4}, 2560")
    a(f"s_add_u32 s{s_t0}, s{s_t0}, s{s_t1}")
    a(f"s_add_u32 s{s_t0}, s{s_t0}, {WS_P}")
    for k in range(10):
        if k in (4, 8): a(f"s_add_u32 s{s_t0}, s{s_t0}, 4096")
        a(f"buffer_load_dwordx4 {vr(pk+4*k,4)}, v{g.v_l16}, {WS}, s{s_t0} offen offset:{(k%4)*1024} sc1")
    a("s_waitcnt vmcnt(5)")
    unpack(0, 5)
    a.label("G_keep3")
    stamp(a, 5)
    lds_wait(a, "G_trig0", SC_K + 32, TRIG[0], 2, s_spin, s_t0, 1)
    def o_poll(half):
        b = areg(27 + 5 * half)
        so = g.s_aoff if half == 0 else s_a0
        ld = [f"buffer_load_dwordx4 {vr(b+4*j,4)}, v{g.v_l16}, {WS}, s{so} offen offset:{j*1280}{os.environ.get('OLP', ' sc1')}" for j in range(4)]
        ld += [f"buffer_load_dwordx2 {vr(b+16+2*j,2)}, v{v_wa2}, {WS}, s{so} offen offset:{1024+2560*j}{os.environ.get('OLP', ' sc1')}" for j in range(2)]
        ck = [f"v_max3_u32 v{1+k}, v{b+3*k}, v{b+3*k+1}, v{b+3*k+2}" for k in range(3)]
        ck += [f"v_max3_u32 v{1+k}, v{1+k}, v{b+9+2*k}, v{b+10+2*k}" for k in range(3)]
        ck += [f"v_max3_u32 v1, v1, v{b+15}, v{b+16}", f"v_max3_u32 v2, v2, v{b+17}, v{b+18}", f"v_max_u32 v3, v3, v{b+19}",
               "v_max3_u32 v1, v1, v2, v3", "v_cmp_eq_u32 vcc, -1, v1"]
        return "\n".join(ld), "\n".join(ck)
    def rest():
        not_owner("G_keep4")
        a("s_waitcnt vmcnt(6)")
        unpack(5, 10)
        a.label("G_keep4")
    poll(a, "G_pollo0", *o_poll(0), OSL[0], between=rest)
    g.vm.q = []
    if TAILST: stamp(a, 6); a("s_waitcnt lgkmcnt(0)")
    lds_wait(a, "G_alt1", SCW + 28, NW_, 2, s_spin, s_t0, 1)
    load_w(33)
    for i in range(27, 31):
        mm(i, i + 1)
        if 28 <= i <= 30: load_w(i + 6)
    xf = g.v_act
    VG, VR, VW = g.v_wd, v_wd2, vx
    def fin_setup():
        for e in range(5):
            a(f"v_lshlrev_b32 v{xf+4*e}, 16, v{vx+2*e}")
            a(f"v_and_b32 v{xf+4*e+1}, s{s_cch}, v{vx+2*e}")
            a(f"v_lshlrev_b32 v{xf+4*e+2}, 16, v{vx+2*e+1}")
            a(f"v_and_b32 v{xf+4*e+3}, s{s_cch}, v{vx+2*e+1}")
        for e in range(5): item(e, VG + e, VR + e)
        X3 = KVB + CH + ALT[31]
        a(f"s_mul_i32 s{s_t0}, s{s_w}, 5120")
        a(f"s_add_u32 s{s_t1}, s{s_t0}, {X3 - 3*5120}")
        a(f"v_and_b32 v2, 31, v{vl}")
        a(f"v_mov_b32 v3, s{g.s_lds}")
        a(f"v_mov_b32 v1, s{s_t1}")
        a(f"v_cmp_lt_u32 vcc, 23, v2")
        a(f"v_cndmask_b32 v3, v3, v1, vcc")
        a(f"v_mul_u32_u24 v2, 640, v2")
        a(f"v_add_u32 v3, v3, v2")
        a(f"v_lshrrev_b32 v2, 5, v{vl}")
        a(f"v_and_b32 v1, 7, v{vl}")
        a(f"v_xor_b32 v2, v2, v1")
        for q in range(4):
            a(f"v_xor_b32 v1, {2*q}, v2")
            a(f"v_lshl_add_u32 v{VW+q}, v1, 4, v3")
        a(f"s_cmp_eq_u32 s{s_w}, 3")
        a(f"s_cselect_b32 s24, {X3}, s{s_t0}")
        a(f"s_movk_i32 s{s_t1}, {PART}")
        a(f"s_cselect_b32 s{s_t1}, 5120, s{s_t1}")
        for k in range(1, 4): a(f"s_add_u32 s{24+k}, s{23+k}, s{s_t1}")
    def last_first():
        for _ in range(6): g.vm.issue("O")
        mm(31, 32)
        stamp(a, 2)
        fin_setup()
    assert SPEC
    if SPEC:
        poll(a, "G_pollo1", *o_poll(1), OSL[1], between=last_first)
    else:
        mm(31, 32)
        stamp(a, 2)
        lds_wait(a, "G_trig1", SC_K + 32, TRIG[1], 2, s_spin, s_t0, 1)
        g.lg.q = []
        poll(a, "G_pollo1", *o_poll(1), OSL[1])
    g.vm.q = []
    a("s_setprio 3")
    stamp(a, 13)
    if STAMP: a("s_waitcnt lgkmcnt(0)")
    for i in range(32, 37): mm(i, i + 1 if i < 36 else None)
    stamp(a, 14)
    for T in range(5):
        for q in range(4): a(f"ds_write_b128 v{VW+q}, {vr(g.v_acc+16*T+4*q,4)} offset:{T*128}")
    a("s_waitcnt lgkmcnt(0)")
    if TAILST: stamp(a, 10)
    a("s_barrier")
    if TAILST: stamp(a, 11); a("s_waitcnt lgkmcnt(0)")
    for e in range(5):
        for k in range(4):
            a(f"v_add_u32 v{VW+4+k}, s{24+k}, v{VR+e}")
        for k in range(4):
            a(f"ds_read_b128 {vr(g.v_acc+16*e+4*k,4)}, v{VW+4+k}"); g.lg.issue(e)
        if e >= 2: fin_tile(a, g, e - 2, xf, VG + e - 2)
    fin_tile(a, g, 3, xf, VG + 3); fin_tile(a, g, 4, xf, VG + 4)
    if STAMP:
        if TAILST: stamp(a, 9)
        a("s_waitcnt vmcnt(0)"); stamp(a, 7); stamp(a, 15, True)
        a(f"s_add_u32 s{s_w}, s{s_w}, 8")
        stamp_flush(a, 1, SWS, s_w, 12, 16, gsel=[(9, False), (10, False), (12, False), (13, False), (14, False), (15, False)], goff=8)
    if os.environ.get("PADT"):
        a.label("G_pad")
        a("s_memrealtime s[68:69]")
        a("s_waitcnt lgkmcnt(0)")
        a("s_sub_u32 s68, s68, s66")
        a(f"s_cmp_lt_u32 s68, {os.environ['PADT']}")
        a("s_cbranch_scc1 G_pad")
    a("s_endpgm")
    return vx + 10

def fin_tile(a, g, T, xf, vo):
    b = g.v_acc + 16 * T
    g.lg.wait(T)
    for h in range(2):
        a(f"v_pk_add_f32 {vr(b+2*h,2)}, {vr(b+2*h,2)}, {vr(b+4+2*h,2)}")
        a(f"v_pk_add_f32 {vr(b+8+2*h,2)}, {vr(b+8+2*h,2)}, {vr(b+12+2*h,2)}")
    for h in range(2):
        a(f"v_pk_add_f32 {vr(b+2*h,2)}, {vr(b+2*h,2)}, {vr(xf+4*T+2*h,2)}")
    for h in range(2):
        a(f"v_pk_add_f32 {vr(b+2*h,2)}, {vr(b+2*h,2)}, {vr(b+8+2*h,2)}")
    a(f"v_cvt_pk_bf16_f32 v{b}, v{b}, v{b+1}")
    a(f"v_cvt_pk_bf16_f32 v{b+1}, v{b+2}, v{b+3}")
    a(f"buffer_store_dwordx2 {vr(b,2)}, v{vo}, s[{SOUT}:{SOUT+3}], s{s_base} offen{os.environ.get('OUTP', ' nt')}")

def gen_f(a, name="parallel_sum__grouped_kv_mqa__dense_activation_relu__prompt_kernel"):
    kernel_header(a, name)
    a("s_cmp_ge_u32 s2, 256")
    a("s_cbranch_scc1 F_end")
    stamp(a, 0, True); stamp(a, 1)
    if os.environ.get("PADT"): a("s_memrealtime s[66:67]")
    def clear_cnt(a):
        a("v_lshlrev_b32 v1, 2, v0")
        a(f"v_add_u32 v1, {SC_CNT}, v1")
        a("v_mov_b32 v2, 0")
        a("ds_write_b32 v1, v2")
        a("ds_write_b32 v1, v2 offset:256")
        a("v_cmp_lt_u32 vcc, 6, v0")
        a("v_cndmask_b32 v2, 0, 4, vcc")
        a("ds_write_b32 v1, v2 offset:512")
        a("s_waitcnt lgkmcnt(0)")
    def start_hook(a):
        clear_cnt(a)
        attn_addr(a)
        if TLBW:
            a(f"s_cmp_lg_u32 s{s_w}, 5")
            a("s_cbranch_scc1 F_notlb")
            for _ in range(TLBW - 1): a("s_barrier")
            a(f"v_lshlrev_b32 v1, {TLBS}, v0")
            a(f"v_add_u32 v1, 0x100, v1")
            for ptr, n in ((56, 1728 * 1280), (58, 640 * 1280), (60, 2048 * 1280)):
                srd(a, 16, ptr, n)
                a(f"buffer_load_dword v2, v1, s[16:19], 0 offen")
            for k in range((WS_SIZE >> TLBS) // 64 + 1):
                a(f"s_mov_b32 s35, {k * 64 << TLBS}")
                a(f"buffer_load_dword v2, v1, {WS}, s35 offen sc1")
            for _ in range(10 - (TLBW - 1)): a("s_barrier")
            a("s_waitcnt vmcnt(0)")
            a("s_branch F_attn")
            a.label("F_notlb")
    def pre_ba(a):
        attn_addr(a)
        q_probe(a)
    def done_help(a): a("s_branch F_fetch")
    def done_stats(a): a("s_branch F_dry" if DRY else "s_branch F_attn")
    def done_comp(a): a("s_branch F_pub")
    def spare(a):
        ka2.produce_stats(a)
        clear_cnt(a)
        attn_addr(a)
        a(f"s_cmp_lg_u32 s{s_w}, 0")
        a("s_cbranch_scc1 F_sp1")
        ka2.dbg_check(a, "F_dbg")
        a.label("F_sp1")
        a("s_barrier")
        a(f"s_cmp_ge_u32 s{s_w}, 8")
        a("s_cbranch_scc1 F_gemm0")
        q_probe(a)
        a(f"s_cmp_lt_u32 s{s_w}, 5")
        a("s_cbranch_scc1 F_fetch")
        fetch_kv(a, "s", False)
    phase_a(a, done_help, done_stats, done_comp, spare, start_hook, pre_ba, lambda a: fetch_kv(a, 'i', True))
    a.label("F_fetch")
    fetch(a)
    a.label("F_attn")
    attention(a)
    if DRY:
        a.label("F_dry")
        a(f"s_cmp_eq_u32 s{s_w}, 4")
        a("s_cbranch_scc1 F_attn")
        a("s_mov_b64 exec, 0")
        a(f"s_mov_b32 s{s_c}, 7")
        a(f"s_cmp_eq_u32 s{s_w}, 5")
        a("s_cbranch_scc1 B_loop")
        a(f"s_cmp_eq_u32 s{s_w}, 6")
        a("s_cbranch_scc1 B_u3")
        a("s_branch B_synced")
        a.label("F_dryret")
        a("s_mov_b64 exec, -1")
        a("s_nop 7")
        a("s_nop 7")
        a("s_branch F_attn")
    a.label("F_pub")
    stamp(a, 3)
    if WFL:
        a(f"s_and_b32 s{s_t0}, s3, 15")
        a(f"s_cmp_eq_u32 s{s_t0}, 14")
        a("s_cbranch_scc1 F_pubkv")
        a(f"s_lshl_b32 s{s_t0}, s3, 5")
        a(f"s_add_u32 s{s_t0}, s{s_t0}, s{s_w}")
        a(f"s_lshl_b32 s{s_t0}, s{s_t0}, 2")
        a(f"s_add_u32 s{s_t0}, s{s_t0}, {WS_FL - 32}")
        a("v_mov_b32 v1, 1")
        a("s_mov_b64 exec, 1")
        a("s_waitcnt vmcnt(0)")
        a(f"buffer_store_dword v1, off, {WS}, s{s_t0} sc1")
        lds_arrive(a, SC_CNT, 2)
        a("s_branch F_pub2")
        a.label("F_pubkv")
    publish(a, "F_pub2", 0, 4, 3, WS_FL, 1)
    stamp(a, 4)
    lds_wait(a, "F_all", SC_CNT, 4, 2, s_spin, s_t0)
    a.label("F_gemm0")
    a("s_mov_b32 s53, -1")
    a.label("F_gemm")
    nv = gemm(a)
    a.label("F_end")
    a("s_endpgm")
    assert nv <= 168, nv
    return dict(name=name, grid=256, block=768, lds=LDS_A, vgpr=168, sgpr=102 if STAMP else 72, single=True)
```

```python
import sys, importlib
from common import *

HEADER = open("parallel_sum__grouped_kv_mqa__dense_activation_relu__prompt.s.ref").read().split("; Override launch")[0]

DOC = """;
"""

def build(parts, path):
    a = Asm()
    infos = [p(a) for p in parts]
    out = HEADER
    for i in infos:
        if i.get("single") and not os.environ.get("LIST"):
            out += f"; @launch grid=({i['grid']},1,1) block=({i['block']},1,1) lds={i['lds']}\n"
            continue
        out += f"; @launch kernel={i['name']} grid=({i['grid']},1,1) block=({i['block']},1,1) lds={i['lds']}\n"
    if STAMP: out += "; GMAP=" + ("team" if int(os.environ.get("TEAM", "0")) else os.environ.get("GMAP", "9abf0123cde45678")) + "\n; AMAP=" + os.environ.get("AMAP", "2") + "\n"
    out += DOC
    out += '.amdgcn_target "amdgcn-amd-amdhsa--gfx950"\n.text\n'
    out += a.text() + "\n"
    out += '.section .rodata,"a"\n'
    for i in infos:
        out += kernel_desc(i["name"], i["vgpr"], i["sgpr"]) + "\n"
    open(path, "w").write(out)
    print("wrote", path, "instrs", len(a.ins), "pads", a.pads)

if __name__ == "__main__":
    from kf import gen_f
    parts = [gen_f]
    if os.environ.get("PRE0"):
        def ge(a):
            kernel_header(a, "e0_kernel"); a("s_endpgm")
            return dict(name="e0_kernel", grid=int(os.environ["PRE0"]), block=64, lds=0, vgpr=8, sgpr=16)
        parts = [ge, gen_f]
    build(parts, sys.argv[1] if len(sys.argv) > 1 else "out.s")
```

```python
from common import *
from gw import *
import ka2
from ka2 import phase_a, SC_CNT, LDS_A
def two_ways(a, name, body): body(' sc1')

GPRIO = int(os.environ.get("GPRIO", "0"))
HOLD = 1
GROT = int(os.environ.get("GROT", "9"))
GX = os.environ.get("GX", "")
UARR = int(os.environ.get("UARR", "0"))
SC_L = None
DRY = int(os.environ.get("DRY", "0"))
PACE = [float(x) for x in os.environ.get("PACE", "1.7,7.0").split(",")]
PEND = int(os.environ.get("PEND", "99"))
ABAT = int(os.environ.get("ABAT", "0"))
PIPE = int(os.environ.get("PIPE", "1"))
KV4 = int(os.environ.get("KV4", "0"))
TRIG = [int(x) for x in os.environ.get("TRIG", "4,8").split(",")]
TAILST = os.environ.get("TAILST")
OSL = [int(x) for x in os.environ.get("OSL", "1,1").split(",")]
WOPF = int(os.environ.get("WOPF", "10"))
ALT1 = int(os.environ.get("ALT1", "0"))
MARK = int(os.environ.get("MARK", "1"))
NS0 = int(os.environ.get("NS0", "2"))
WEARLY = int(os.environ.get("WEARLY", "2"))
W2PF = int(os.environ.get("W2PF", "3"))
HP = int(os.environ.get("HP", "1"))
FASTO = int(os.environ.get("FASTO", "1"))
TRIGST = int(os.environ.get("TRIGST", "1"))
PMASK = int(os.environ.get("PMASK", "0"))
PSTEP = [int(x) for x in os.environ.get("PSTEP", "2,5").split(",") if x]
PBASE = int(os.environ.get("PBASE", "0"))
ALIGN = int(os.environ.get("ALIGN", "0"))
HNEAR = int(os.environ.get("HNEAR", "0"))
JIT = int(os.environ.get("JIT", "0"))
LAY = int(os.environ.get("LAY", "0"))
TLBW = int(os.environ.get("TLBW", "0"))
TLBS = int(os.environ.get("TLBS", "21"))
HORD = int(os.environ.get("HORD", "0"))
GW_N = int(os.environ.get("GW_N", "8"))
OPF = int(os.environ.get("OPF", "9"))
SPEC = int(os.environ.get("SPEC", "1"))
HPI = int(os.environ.get("HPI", "32"))
NEARP = int(os.environ.get("NEARP", "0"))
AD = int(os.environ.get("AD", "8"))
LJ = int(os.environ.get("LJ", "1"))
MD = int(os.environ.get("MD", "2"))
WPF = int(os.environ.get("WPF", "2"))
XST = int(os.environ.get("XST", "4"))
BSL = int(os.environ.get("BSL", "1"))
NF = int(os.environ.get("NF", "3"))
WFL = int(os.environ.get("WFL", "0"))
NH = int(os.environ.get("NH", "27")); NL = 54 - NH
KVH = [int(x) for x in os.environ.get("KVH", "1,2,4,5").split(",")]
KVL = [int(x) for x in os.environ.get("KVL", os.environ.get("KVH", "1,2,4,5")).split(",")]
PMH = int(os.environ.get("PMH", "0")); PML = int(os.environ.get("PML", str(PMH)))
PSEL = os.environ.get("PSEL", "a")
ALH = [int(x) for x in os.environ.get("ALH", "0,-1").split(",")]
ALL = [int(x) for x in os.environ.get("ALL", "0,-1").split(",")]
EV = int(os.environ.get("EV", "1"))
RB = int(os.environ.get("RB", "1"))
RSL = int(os.environ.get("RSL", "1"))
SPLIT = int(os.environ.get("SPLIT", "0"))
EARR = int(os.environ.get("EARR", "1"))
QPRE = int(os.environ.get("QPRE", "0"))
HEARLY = int(os.environ.get("HEARLY", "6"))
WE = int(os.environ.get("WE", "2"))
DEFW = int(os.environ.get("DEFW", "4"))
DEFER = int(os.environ.get("DEFER", "0"))
PAIR = 2 * KV_TILE
CH = 8 * KV_TILE
STG = 0
KVB = 4 * PART
assert KVB + 4 * CH <= ka2.SCR and KVB >= ka2.SLOT and KVB + 3 * CH >= 3 * ka2.SLOT
RESET_WG = (3 << 6) | (3 << 1)

SX, SW2, SWS, SWO, SOUT, SDBG = 4, 8, 12, 16, 20, 16
s_w, s_tt, s_hg, s_t0, s_t1, s_c, s_slot, s_delta, s_cch, s_base, s_spin, s_kvl, s_kvg, s_woff2 = range(32, 46)
s_gw = 46
s_lid = 97 if STAMP else 64
WS = f"s[{SWS}:{SWS+3}]"
Q1, Q2, P0, P1, O, S0, S1 = 4, 8, 12, 16, 20, 36, 52
KS = [68, 96]
v_ka, v_va, v_g0, VT = 124, 125, 126, 130
v_l16, v_cnt, v_one, v_chk = 136, 137, 138, 139
QB1, QB2, OB, v_g1 = 140, 10, 144, 160
SC_K = SC_CNT + 256
SC_L = SC_K + 64
COMB = int(os.environ.get('COMB', '0'))
SCW, NW_ = (SC_L, 12) if COMB else (SC_K, 8)
s_tgt = 45

def mf(a, d, x, y, c): a(f"v_mfma_f32_32x32x16_bf16 {vr(d,16)}, {vr(x,4)}, {vr(y,4)}, {c if isinstance(c,str) else vr(c,16)}")
def mf8(a, d, x, y): a(f"v_mfma_f32_32x32x8_bf16 {vr(d,16)}, {vr(x,2)}, {vr(y,2)}, {vr(d,16)}")

def flag_off(a, vd, vrb, vg, t):
    a(f"v_lshl_add_u32 v{vd}, v{vrb}, 4, v{vg}")
    a(f"v_lshlrev_b32 v{vd}, 7, v{vd}")
    a(f"v_add_u32 v{vd}, {WS_FL}, v{vd}")

def publish(a, name, cnt_off, nwaves, sid, base, t, value=1, vm=0, word=None, near=False):
    a(f"s_waitcnt vmcnt({vm})")
    a("s_mov_b64 exec, 1")
    a(f"v_mov_b32 v{t}, {SC_CNT + cnt_off}")
    a(f"v_mov_b32 v{t+1}, 1")
    a(f"ds_add_rtn_u32 v{t+1}, v{t}, v{t+1}")
    a(f"s_lshl_b32 s{s_t0}, s{sid}, 7")
    a(f"s_add_u32 s{s_t0}, s{s_t0}, {base}")
    a(f"v_mov_b32 v{t}, {0 if word is None else 's%d' % word}")
    a(f"v_mov_b32 v{t+2}, {value}")
    a("s_waitcnt lgkmcnt(0)")
    a(f"v_readfirstlane_b32 s{s_t1}, v{t+1}")
    a(f"s_cmp_lg_u32 s{s_t1}, {nwaves-1}")
    a(f"s_cbranch_scc1 {name}")
    if near: two_ways(a, name + "w", lambda sc: a(f"buffer_store_dword v{t+2}, v{t}, {WS}, s{s_t0} offen{sc}"))
    else: a(f"buffer_store_dword v{t+2}, v{t}, {WS}, s{s_t0} offen sc1")
    a.label(name)
    a("s_mov_b64 exec, -1")

def lid(a):
    BMAP = int(os.environ.get("BMAP", "4"))
    if BMAP == 0: a(f"s_mov_b32 s{s_lid}, s2")
    elif BMAP == 1:
        a(f"s_bfe_u32 s{s_lid}, s2, 0x20001")
        a(f"s_lshl_b32 s{s_lid}, s{s_lid}, 4")
        a(f"s_lshr_b32 s35, s2, 4")
        a(f"s_add_u32 s{s_lid}, s{s_lid}, s35")
        a(f"s_lshl_b32 s{s_lid}, s{s_lid}, 1")
        a(f"s_and_b32 s35, s2, 1")
        a(f"s_add_u32 s{s_lid}, s{s_lid}, s35")
        a(f"s_lshl_b32 s{s_lid}, s{s_lid}, 1")
        a(f"s_bfe_u32 s35, s2, 0x10003")
        a(f"s_add_u32 s{s_lid}, s{s_lid}, s35")
    elif BMAP == 3:
        a(f"s_lshr_b32 s{s_lid}, s2, 4")
        a(f"s_lshl_b32 s{s_lid}, s{s_lid}, 3")
        a(f"s_and_b32 s35, s2, 7")
        a(f"s_add_u32 s{s_lid}, s{s_lid}, s35")
        a(f"s_lshl_b32 s{s_lid}, s{s_lid}, 1")
        a(f"s_bfe_u32 s35, s2, 0x10003")
        a(f"s_add_u32 s{s_lid}, s{s_lid}, s35")
    elif BMAP == 4:
        a(f"s_and_b32 s{s_lid}, s2, 1")
        a(f"s_lshl_b32 s{s_lid}, s{s_lid}, 3")
        a(f"s_lshr_b32 s35, s2, 5")
        a(f"s_add_u32 s{s_lid}, s{s_lid}, s35")
        a(f"s_lshl_b32 s{s_lid}, s{s_lid}, 2")
        a(f"s_bfe_u32 s35, s2, 0x20001")
        a(f"s_add_u32 s{s_lid}, s{s_lid}, s35")
        a(f"s_lshl_b32 s{s_lid}, s{s_lid}, 2")
        a(f"s_bfe_u32 s35, s2, 0x20003")
        a(f"s_add_u32 s{s_lid}, s{s_lid}, s35")
    elif BMAP == 5:
        a(f"s_bfe_u32 s{s_lid}, s2, 0x10002")
        a(f"s_lshl_b32 s{s_lid}, s{s_lid}, 3")
        a(f"s_lshr_b32 s35, s2, 5")
        a(f"s_add_u32 s{s_lid}, s{s_lid}, s35")
        a(f"s_lshl_b32 s{s_lid}, s{s_lid}, 1")
        a(f"s_and_b32 s35, s2, 1")
        a(f"s_add_u32 s{s_lid}, s{s_lid}, s35")
        a(f"s_lshl_b32 s{s_lid}, s{s_lid}, 1")
        a(f"s_bfe_u32 s35, s2, 0x10001")
        a(f"s_add_u32 s{s_lid}, s{s_lid}, s35")
        a(f"s_lshl_b32 s{s_lid}, s{s_lid}, 2")
        a(f"s_bfe_u32 s35, s2, 0x20003")
        a(f"s_add_u32 s{s_lid}, s{s_lid}, s35")
    else:
        a(f"s_and_b32 s{s_lid}, s2, 7")
        a(f"s_lshl_b32 s{s_lid}, s{s_lid}, 5")
        a(f"s_lshr_b32 s35, s2, 3")
        a(f"s_add_u32 s{s_lid}, s{s_lid}, s35")
    if STAMP == 3: a("s_mov_b32 s72, 0")

def decode_b(a):
    a(f"s_lshr_b32 s{s_tt}, s{s_lid}, 2")
    a(f"s_and_b32 s{s_hg}, s{s_lid}, 3")

def attn_addr(a):
    lid(a)
    a(f"s_and_b32 s{s_t0}, s{s_lid}, 3")
    a(f"s_lshl_b32 s{s_t0}, s{s_t0}, 3")
    a(f"s_add_u32 s{s_t0}, s{s_t0}, s{s_w}")
    a(f"s_xor_b32 s{s_t1}, s{s_t0}, 1")
    a(f"s_mul_i32 s{s_t0}, s{s_t0}, 5")
    a(f"s_mul_i32 s{s_t1}, s{s_t1}, 5")
    a(f"v_lshrrev_b32 v2, 5, v0")
    a(f"v_and_b32 v3, 31, v0")
    a(f"v_lshlrev_b32 v3, 4, v3")
    for vg_, st_ in ((v_g0, s_t0), (v_g1, s_t1)):
        for i in range(3):
            if i < 2: a(f"v_add_u32 v1, s{st_}, v2")
            else: a(f"v_mov_b32 v1, s{st_}")
            if i: a(f"v_add_u32 v1, {2*i}, v1")
            a(f"v_lshrrev_b32 v{VT}, 2, v1")
            a(f"v_lshl_add_u32 v{vg_+i}, v{VT}, 10, v3")
            a(f"v_and_b32 v{VT}, 1, v1")
            a(f"v_lshl_add_u32 v{vg_+i}, v{VT}, 9, v{vg_+i}")
            a(f"v_bfe_u32 v{VT}, v1, 1, 1")
            a(f"v_lshl_add_u32 v{vg_+i}, v{VT}, 3, v{vg_+i}")
    a(f"s_and_b32 s{s_t0}, s{s_w}, 1")
    a(f"s_mul_i32 s{s_t0}, s{s_t0}, {2*PAIR}")
    a(f"s_add_u32 s{s_t0}, s{s_t0}, {KVB + 3*CH}")
    a(f"v_lshlrev_b32 v{v_l16}, 4, v0")
    a(f"v_add_u32 v{v_ka}, s{s_t0}, v{v_l16}")
    a(f"v_lshlrev_b32 v{v_cnt}, 2, v0")
    a(f"v_add_u32 v{v_cnt}, {SC_K}, v{v_cnt}")
    a(f"v_cmp_eq_u32 vcc, 0, v0")
    a(f"v_cndmask_b32 v{v_one}, 0, 1, vcc")
    a(f"v_and_b32 v1, 31, v0")
    a(f"v_min_u32 v1, 23, v1")
    a(f"v_mul_u32_u24 v{v_va}, 384, v2")
    a(f"v_lshl_add_u32 v{v_va}, v1, 4, v{v_va}")
    a(f"v_add_u32 v{v_va}, 3072, v{v_va}")
    a(f"v_add_u32 v{v_va}, s{s_t0}, v{v_va}")

QFL = lambda: f"buffer_load_dword v6, v4, {WS}, 0 offen sc1"
def q_probe(a):
    decode_b(a)
    a(f"s_lshr_b32 s{s_t0}, s{s_tt}, 2")
    a(f"v_mov_b32 v1, s{s_t0}")
    a(f"s_add_u32 s{s_t1}, s{s_hg}, 9")
    a(f"v_add_u32 v2, s{s_t1}, v0")
    flag_off(a, 4, 1, 2, 3)
    a("s_mov_b64 exec, 3")
    if QPRE: a(QFL())
    else: a("v_mov_b32 v6, 0")
    a("s_mov_b64 exec, -1")

def fetch(a):
    a(f"s_cmp_lg_u32 s{s_w}, 0")
    a("s_cbranch_scc1 F_attn")
    a("s_mov_b64 exec, 3")
    a("s_waitcnt vmcnt(0)")
    a("v_cmp_gt_u32 vcc, 1, v6")
    a("s_cmp_eq_u64 vcc, 0")
    a("s_cbranch_scc1 B_pollq_ok")
    poll(a, "B_pollq", QFL(), "v_cmp_gt_u32 vcc, 1, v6", 2)
    lds_arrive(a, SC_CNT + 16, 2)

def fetch_kv(a, tag, bar):
    decode_b(a)
    a(f"s_lshr_b32 s{s_t0}, s{s_tt}, 3")
    a(f"s_lshl_b32 s{s_t1}, s{s_t0}, 1")
    a(f"v_add_u32 v1, s{s_t1}, v0")
    a(f"v_and_b32 v1, 15, v1")
    a(f"v_mov_b32 v2, 14")
    flag_off(a, 4, 1, 2, 3)
    a(f"s_mul_i32 s{s_t0}, s{s_t0}, {CH}")
    a(f"s_sub_u32 s{s_kvl}, s{s_w}, 5")
    a(f"s_lshl_b32 s{s_kvl}, s{s_kvl}, 13")
    a(f"s_add_u32 s{s_kvg}, s{s_kvl}, s{s_t0}")
    LD = f"buffer_load_dword v2, v4, {WS}, 0 offen sc1"
    def dma(c=0):
        a("s_mov_b64 exec, -1")
        if c:
            a(f"s_lshr_b32 s{s_t0}, s{s_tt}, 3")
            a(f"s_add_u32 s{s_t0}, s{s_t0}, {c}")
            a(f"s_and_b32 s{s_t0}, s{s_t0}, 7")
            a(f"s_mul_i32 s{s_t0}, s{s_t0}, {CH}")
            a(f"s_add_u32 s{s_kvg}, s{s_kvl}, s{s_t0}")
        for hf in range(2):
            a(f"s_add_u32 m0, s{s_kvl}, {KVB + (3-c)*CH + hf*4096}")
            a(f"s_add_u32 s{s_t1}, s{s_kvg}, {WS_KV + hf*4096}")
            for m in range(4): a(f"buffer_load_dwordx4 v{v_l16}, {WS}, s{s_t1} offen offset:{m*1024} sc1 lds")
    a("s_mov_b64 exec, 3")
    if bar:
        a(LD)
        a("s_waitcnt vmcnt(0)")
        a("v_cmp_gt_u32 vcc, 1, v2")
        a("s_cmp_eq_u64 vcc, 0")
        a(f"s_cbranch_scc0 K_late{tag}")
        dma()
        a("s_barrier")
        a(f"s_branch K_done{tag}")
        a.label(f"K_late{tag}")
        a("s_barrier")
    poll(a, f"K_poll{tag}", LD, "v_cmp_gt_u32 vcc, 1, v2", 3)
    dma()
    a.label(f"K_done{tag}")
    a("s_waitcnt vmcnt(0)")
    stamp(a, 2)
    lds_arrive(a, SC_CNT + 16, 2)
    if NF > 1:
        a(f"s_mov_b32 exec_lo, {(1 << (2 * NF)) - 1}")
        a("s_mov_b32 exec_hi, 0")
        poll(a, f"K_more{tag}", LD, "v_cmp_gt_u32 vcc, 1, v2", 3)
        for c in range(1, NF): dma(c)
    a("s_branch F_attn")

def attention(a):
    decode_b(a)
    stamp(a, 8)
    a(f"s_mul_i32 s{s_base}, s{s_tt}, {QH_TT}")
    k0, k1 = KS
    for r in list(range(k1 + 24, k1 + 28)) + list(range(P1, P1 + 4)) + list(range(O, O + 16)) + list(range(OB, OB + 16)) + [Q2, Q2 + 1, QB2, QB2 + 1]:
        a(f"v_mov_b32 v{r}, 0")
    a(f"s_mov_b32 s{s_c}, 16")
    a(f"s_mov_b32 s{s_cch}, {(-CH) & 0xffffffff}")
    a(f"s_mov_b32 s{s_tgt}, {sum(1 << c for c in PSTEP) << 16}")
    a(f"s_mov_b32 s{s_slot}, 0x880000")
    MRG = KVB + 2 * CH
    VM = 163
    a(f"s_mul_i32 s{s_t1}, s{s_w}, 3072")
    a(f"s_add_u32 s{s_t1}, s{s_t1}, {MRG}")
    a(f"v_add_u32 v{VM}, s{s_t1}, v{v_l16}")
    a(f"s_xor_b32 s{s_t1}, s{s_w}, 1")
    a(f"s_mul_i32 s{s_t1}, s{s_t1}, 3072")
    a(f"s_add_u32 s{s_t1}, s{s_t1}, {MRG}")
    a(f"v_add_u32 v{VM+1}, s{s_t1}, v{v_l16}")
    a(f"s_lshl_b32 s{s_t1}, s{s_w}, 2")
    a(f"s_add_u32 s{s_t1}, s{s_t1}, {SC_CNT + 128}")
    a(f"v_mov_b32 v{VM+2}, s{s_t1}")
    a(f"v_xor_b32 v{VM+3}, 4, v{VM+2}")
    a(f"v_lshlrev_b32 v{VM+4}, 3, v0")
    a(f"s_lshl_b32 s{s_kvl}, s{s_lid}, 3")
    a(f"s_add_u32 s{s_kvl}, s{s_kvl}, s{s_w}")
    a(f"s_mul_i32 s{s_kvl}, s{s_kvl}, 1280")
    a(f"s_add_u32 s{s_kvl}, s{s_kvl}, {WS_O}")
    a(f"s_setprio {len(PSTEP) + PBASE}")
    a(f"v_add_u32 v{VT+4}, {KVB + 3*CH}, v{v_l16}")
    lds_wait(a, "B_wait", SC_CNT + 16, 4, 2, s_spin, s_t0, BSL)
    stamp(a, 9)
    for q1, q2, g_ in ((QB1, QB2, v_g1), (Q1, Q2, v_g0)):
        a(f"buffer_load_dwordx2 {vr(q1,2)}, v{g_}, {WS}, s{s_base} offen sc1")
        a(f"buffer_load_dwordx2 {vr(q1+2,2)}, v{g_+1}, {WS}, s{s_base} offen sc1")
    a("s_mov_b32 exec_hi, 0")
    a(f"buffer_load_dwordx2 {vr(QB2,2)}, v{v_g1+2}, {WS}, s{s_base} offen sc1")
    a(f"buffer_load_dwordx2 {vr(Q2,2)}, v{v_g0+2}, {WS}, s{s_base} offen sc1")
    a("s_mov_b32 exec_hi, -1")
    FR = {"K1a": (0, 0), "K1b": (4, 1024), "K2": (8, 2048), "V0a": (12, 0), "V1a": (16, 768), "V0b": (20, 1536), "V1b": (24, 2304)}
    def rd(kind, p):
        r, off = FR[kind]
        a(f"ds_read_b128 {vr(KS[p] + r, 4)}, v{v_ka if kind[0] == 'K' else v_va} offset:{p*PAIR + off}")
    a(f"ds_read_b128 {vr(k1+12,4)}, v{VT+4}")
    a(f"ds_read_b128 {vr(k1+16,4)}, v{VT+4} offset:2048")
    for f in ("K1a", "K2", "K1b", "V0a", "V1a", "V0b"): rd(f, 0)
    rd("V1b", 0); rd("K1a", 1)
    a(f"v_mov_b32 v2, {SC_CNT + 8}")
    a("s_waitcnt vmcnt(0) lgkmcnt(0)")
    stamp(a, 10)
    a("s_mov_b64 exec, 1")
    a(f"ds_add_u32 v2, v{v_one}")
    a("s_mov_b64 exec, -1")
    mf(a, S0, k1 + 12, QB1, "0"); mf8(a, S0, k1 + 16, QB2)
    mf(a, S1, k1 + 12, Q1, "0"); mf8(a, S1, k1 + 16, Q2)
    def standin(S, q2):
        a(f"v_max3_f32 v{VT}, v{S}, v{S+1}, v{S+2}")
        a(f"v_max3_f32 v{VT+1}, v{S+3}, v{S+4}, v{S+5}")
        a(f"v_max3_f32 v{VT+2}, v{S+6}, v{S+7}, v{S+8}")
        a(f"v_max3_f32 v{VT+3}, v{S+9}, v{S+10}, v{S+11}")
        a(f"v_max3_f32 v{VT}, v{VT}, v{S+12}, v{S+13}")
        a(f"v_max3_f32 v{VT+1}, v{VT+1}, v{S+14}, v{S+15}")
        a(f"v_max3_f32 v{VT}, v{VT}, v{VT+2}, v{VT+3}")
        a(f"v_max_f32 v{VT}, v{VT}, v{VT+1}")
        a(f"v_mov_b32 v{VT+1}, v{VT}")
        a(f"v_permlane32_swap_b32 v{VT}, v{VT+1}")
        a(f"v_max_f32 v{VT}, v{VT}, v{VT+1}")
        a("s_mov_b32 exec_lo, 0")
        a(f"v_cvt_pk_bf16_f32 v{q2}, -v{VT}, 0")
        a("s_mov_b32 exec_lo, -1")
    standin(S0, QB2)
    mf(a, S0, k0, QB1, "0"); mf8(a, S0, k0 + 8, QB2)
    standin(S1, Q2)
    stamp(a, 11); stamp(a, 12, 'cyc')
    if STAMP: a("s_waitcnt lgkmcnt(0)")
    a.raw(".p2align 6")
    a.label("B_loop")
    start = a.mark()
    SL = {7: [[("V1b", 0)], [("K1a", 1)], []], 0: [[("K2", 1)], [], [("V0a", 1)]], 1: [[("K1b", 1)], [("V1a", 1)], []], 2: [[("V0b", 1)], [], []],
          3: [[("V1b", 1)], [], []], 4: [[], [("K1a", 0)], [("K2", 0)]], 5: [[("V0a", 0)], [("K1b", 0)], [("V1a", 0)]], 6: [[("V0b", 0)], [], []]}
    for u in range(8):
        own = u % 2
        Sc, Sn = (S1, S0) if own else (S0, S1)
        Oc, On = (O, OB) if own else (OB, O)
        q1, q2 = (QB1, QB2) if own else (Q1, Q2)
        jn = (u + 1) // 2 % 4; jc = u // 2; jp = (u - 1) // 2 % 4
        kn = KS[jn // 2]
        e = lambda i: a(f"v_exp_f32 v{Sc+i}, v{Sc+i}")
        c = lambda i: a(f"v_cvt_pk_bf16_f32 v{P0+i}, v{Sc+2*i}, v{Sc+2*i+1}")
        cp = lambda i: a(f"v_cvt_pk_bf16_f32 v{P0+i}, v{Sn+2*i}, v{Sn+2*i+1}")
        cp(6); e(0); e(1); cp(7); e(2); e(3)
        if u % 4 == 3: a("s_waitcnt lgkmcnt(0)")
        mf(a, Sn, kn + 4 * (jn % 2), q1, "0")
        for r in SL[u][0]: rd(*r)
        if u == 4:
            a(f"v_readlane_b32 s{s_t0}, v{v_chk}, s{s_c}")
            a(f"s_add_u32 s{s_c}, s{s_c}, 1")
            a(f"s_cmp_lt_u32 s{s_t0}, 4")
            a("s_cbranch_scc1 B_spin")
            a.label("B_synced")
        e(4); e(5)
        if u == 3:
            a(f"v_add_u32 v{v_ka}, s{s_delta}, v{v_ka}")
            a(f"v_add_u32 v{v_va}, s{s_delta}, v{v_va}")
        if u == 2: a(f"v_mov_b32_dpp v{v_one}, v{v_one} row_shr:1 row_mask:0xf bank_mask:0xf bound_ctrl:0")
        c(0); c(1); e(6); e(7)
        mf8(a, Sn, kn + 8 + 2 * (jn % 2), q2)
        e(8); e(9); c(2); c(3); e(10); e(11)
        mf(a, On, KS[jp // 2] + 16 + 8 * (jp % 2), P1, On)
        for r in SL[u][1]: rd(*r)
        if u == 0:
            a(f"ds_add_u32 v{v_cnt}, v{v_one}")
            a(f"s_bitcmp1_b32 s{s_tgt}, s{s_c}")
            a("s_cbranch_scc1 B_prio")
            a.label("B_prioret")
        if u == 2:
            a(f"ds_read_b32 v{v_chk}, v{v_cnt}")
            a(f"s_bitcmp1_b32 s{s_slot}, s{s_c}")
            a(f"s_cselect_b32 s{s_delta}, {3*CH}, s{s_cch}")
        e(12); e(13); c(4); c(5); e(14); e(15)
        mf(a, Oc, KS[jc // 2] + 12 + 8 * (jc % 2), P0, Oc)
        for r in SL[u][2]: rd(*r)
        if u == 6: a(f"s_cmp_lt_u32 s{s_c}, 24")
    a("s_cbranch_scc1 B_loop")
    a.check_backedge(start)
    stamp(a, 13); stamp(a, 14, 'cyc')
    a(f"v_readlane_b32 s{s_t0}, v{v_chk}, 6")
    for i in (6, 7): a(f"v_cvt_pk_bf16_f32 v{P0+i}, v{S1+2*i}, v{S1+2*i+1}")
    a(f"s_cmp_ge_u32 s{s_t0}, 8")
    a("s_cbranch_scc1 B_mfree_ok")
    lds_wait(a, "B_mfree", SC_K + 24, 8, 2, s_spin, s_t0, 2)
    mf(a, O, k1 + 24, P1, O)
    for i in range(3): a(f"ds_write_b128 v{VM}, {vr(OB+4*i,4)} offset:{1024*i}")
    a(f"ds_write_b32 v{VM+2}, v{VM+2}")
    a(f"ds_read_b32 v{v_chk}, v{v_cnt}")
    a(f"s_mov_b32 s{s_spin}, {SPIN * 40}")
    a(f"v_mov_b32 v{VT+2}, {hex(f32bits(2.0**60))}")
    a.label("B_pair")
    a(f"ds_read_b32 v3, v{VM+3}")
    for i in range(3): a(f"ds_read_b128 {vr(k0+4*i,4)}, v{VM+1} offset:{1024*i}")
    a("s_waitcnt lgkmcnt(0)")
    a(f"v_readfirstlane_b32 s{s_t0}, v3")
    a(f"s_cmp_lg_u32 s{s_t0}, 0")
    a("s_cbranch_scc1 B_pair_ok")
    if os.environ.get("PSL", "1") != "0": a("s_sleep 1")
    a(f"s_sub_u32 s{s_spin}, s{s_spin}, 1")
    a(f"s_cmp_lg_u32 s{s_spin}, 0")
    a("s_cbranch_scc1 B_pair")
    a.label("B_pair_ok")
    for i in (8, 0, 1, 2, 3, 4, 5, 6, 7, 9, 10, 11): a(f"v_add_f32 v{O+i}, v{O+i}, v{k0+i}")
    a(f"v_mov_b32 v{VT}, v{O+8}")
    a(f"v_mov_b32 v{VT+1}, v{O+8}")
    a(f"v_permlane32_swap_b32 v{VT}, v{VT+1}")
    a(f"v_cmp_nle_f32 vcc, {hex(f32bits(2.0**-60))}, v{VT+1}")
    a(f"v_cmp_nle_f32 s[52:53], v{VT+1}, v{VT+2}")
    a(f"s_or_b64 s[52:53], s[52:53], vcc")
    a("s_cbranch_scc1 B_fallback")
    a.label("B_norm")
    a(f"v_rcp_f32 v{VT}, v{VT+1}")
    for i in range(12): a(f"v_mul_f32 v{O+i}, v{VT}, v{O+i}")
    for i in range(6): a(f"v_cvt_pk_bf16_f32 v{O+i}, v{O+2*i}, v{O+2*i+1}")
    if DRY: a("s_cbranch_execz F_dryret")
    a(f"v_readlane_b32 s{s_t0}, v{v_chk}, 9")
    a(f"s_cmp_eq_u32 s{s_t0}, 4")
    a("s_cbranch_scc1 B_near")
    a(f"buffer_store_dwordx4 {vr(O,4)}, v{v_l16}, {WS}, s{s_kvl} offen sc1")
    a("s_mov_b32 exec_hi, 0")
    a(f"buffer_store_dwordx2 {vr(O+4,2)}, v{VM+4}, {WS}, s{s_kvl} offen offset:1024 sc1")
    a("s_branch B_done")
    a.label("B_near")
    a(f"buffer_store_dwordx4 {vr(O,4)}, v{v_l16}, {WS}, s{s_kvl} offen{os.environ.get('ONP', '')}")
    a("s_mov_b32 exec_hi, 0")
    a(f"buffer_store_dwordx2 {vr(O+4,2)}, v{VM+4}, {WS}, s{s_kvl} offen offset:1024{os.environ.get('ONP', '')}")
    a.label("B_done")
    if TRIGST == 2: a("s_waitcnt vmcnt(0)")
    if TRIGST: a(f"ds_add_u32 v{v_cnt}, v{v_one}")
    if STAMP: a("s_waitcnt vmcnt(0)")
    if STAMP:
        stamp(a, 7); stamp(a, 15, True)
        stamp_flush(a, 1, SWS, s_w, 12, 16)
    a("s_endpgm")
    if PSTEP:
        a.label("B_prio")
        for k, c in enumerate(PSTEP):
            a(f"s_setprio {len(PSTEP) - 1 - k + PBASE}")
            a(f"s_cmp_eq_u32 s{s_c}, {16 + c}")
            a("s_cbranch_scc1 B_prioret")
        a("s_branch B_prioret")
    a.label("B_spin")
    a(f"s_mov_b32 s{s_spin}, {SPIN * 40}")
    a.label("B_spin1")
    a(f"s_sleep {os.environ.get('SSL', '4')}")
    a(f"ds_read_b32 v{v_chk}, v{v_cnt}")
    a(f"s_sub_u32 s{s_t1}, s{s_c}, 1")
    a("s_waitcnt lgkmcnt(0)")
    a(f"v_readlane_b32 s{s_t0}, v{v_chk}, s{s_t1}")
    a(f"s_cmp_ge_u32 s{s_t0}, {12 if COMB else 4}")
    a("s_cbranch_scc1 B_synced")
    a(f"s_sub_u32 s{s_spin}, s{s_spin}, 1")
    a(f"s_cmp_lg_u32 s{s_spin}, 0")
    a("s_cbranch_scc1 B_spin1")
    a("s_branch B_synced")
    a.label("B_fallback")
    a("s_mov_b32 exec_lo, 0")
    a(f"v_mov_b32 v{Q2}, 0")
    a("s_mov_b32 exec_lo, -1")
    a(f"v_sub_u32 v{v_va}, v{v_va}, v{v_ka}")
    a(f"v_add_u32 v{v_va}, v{v_va}, v{v_l16}")
    a(f"v_mov_b32 v{v_ka}, v{v_l16}")
    a(f"v_mov_b32 v{VT}, 0xff800000")
    for r in range(O, O + 16): a(f"v_mov_b32 v{r}, 0")
    a(f"s_mov_b32 s{s_kvg}, {WS_KV}")
    def ldk():
        for i in range(3): a(f"buffer_load_dwordx4 {vr(k0+4*i,4)}, v{v_ka}, {WS}, s{s_kvg} offen offset:{1024*i} sc1")
    def qk(b):
        S = (S0, S1)[b]
        mf(a, S, k0 + 4 * b, Q1, "0"); mf8(a, S, k0 + 8 + 2 * b, Q2)
    def nxt(lbl):
        a(f"s_add_u32 s{s_kvg}, s{s_kvg}, {PAIR}")
        a(f"s_cmp_lt_u32 s{s_kvg}, {WS_KV + 32*PAIR}")
        a(f"s_cbranch_scc1 {lbl}")
    a.label("B_fb1")
    st = a.mark()
    ldk()
    a("s_waitcnt vmcnt(0)")
    qk(0); qk(1)
    for i in range(0, 32, 2): a(f"v_max3_f32 v{VT}, v{VT}, v{S0+i}, v{S0+i+1}")
    nxt("B_fb1")
    a.check_backedge(st)
    a(f"v_mov_b32 v{VT+1}, v{VT}")
    a(f"v_permlane32_swap_b32 v{VT}, v{VT+1}")
    a(f"v_max_f32 v{VT}, v{VT}, v{VT+1}")
    a(f"s_mov_b32 s{s_kvg}, {WS_KV}")
    a.label("B_fb2")
    st = a.mark()
    ldk()
    for i in range(4): a(f"buffer_load_dwordx4 {vr(k0+12+4*i,4)}, v{v_va}, {WS}, s{s_kvg} offen offset:{768*i} sc1")
    a("s_waitcnt vmcnt(0)")
    qk(0); qk(1)
    for b in range(2):
        S = (S0, S1)[b]
        for i in range(16): a(f"v_sub_f32 v{S+i}, v{S+i}, v{VT}")
        for i in range(16): a(f"v_exp_f32 v{S+i}, v{S+i}")
        for i in range(8): a(f"v_cvt_pk_bf16_f32 v{P0+i}, v{S+2*i}, v{S+2*i+1}")
        mf(a, O, k0 + 12 + 8 * b, P0, O); mf(a, O, k0 + 16 + 8 * b, P1, O)
    nxt("B_fb2")
    a.check_backedge(st)
    a(f"v_mov_b32 v{VT}, v{O+8}")
    a(f"v_mov_b32 v{VT+1}, v{O+8}")
    a(f"v_permlane32_swap_b32 v{VT}, v{VT+1}")
    a("s_nop 1")
    a("s_branch B_norm")

def gemm(a):
    global stamp
    def h_store(sc, vl):
        for k in range(12):
            if k in (4, 10): a("s_add_u32 s53, s53, 4096")
            if k == 6: a(f"s_add_u32 s53, s53, {QH_TT - 4096}")
            a(f"buffer_store_dwordx4 {vr(72+4*k,4)}, v{vl}, {WS}, s53 offen offset:{(k % 6 % 4)*1024}{sc}")
        stamp(a, 3)
    a("s_setprio 3")
    if HEARLY:
        a("s_cmp_eq_u32 s53, -1")
        a("s_cbranch_scc1 G_start")
        if HEARLY > 1: lds_wait(a, "G_wait0", SC_CNT + (16 if HEARLY == 2 else 8), 4 if HEARLY == 2 else HEARLY - 2, 2, s_spin, s_t0, 1)
        h_store(" sc1", 1)
        a.label("G_start")
    lid(a)
    decode_b(a)
    a(f"s_sub_u32 s{s_w}, s{s_w}, 8")
    srd(a, SW2, 56, 1728 * 1280)
    srd(a, SWO, 58, 640 * 1280)
    srd(a, SOUT, 60, 2048 * 1280)
    g = GW(a, 27, 4, 10, STG, PART, SW2, SWS, s_gw)
    v_wd2 = g.v_end
    v_wa2, vfl = 11, v_wd2 + 5
    vx = v_wd2 + 6
    v_wa3 = 0
    s_kw, s_ka, s_w0, s_a0 = 50, 51, 54, 55
    a(f"s_mul_i32 s{s_kvl}, s{s_w}, 6144")
    def kv(c, tag=""):
        if c >= 4: lds_wait(a, f"G_free{c}{tag}", SCW + 4 * (c - 3), NW_, 2, s_spin, s_t0, 4)
        a(f"s_lshr_b32 s{s_kvg}, s{s_tt}, 3")
        a(f"s_add_u32 s{s_kvg}, s{s_kvg}, {c}")
        a(f"s_and_b32 s{s_kvg}, s{s_kvg}, 7")
        a(f"s_mul_i32 s{s_kvg}, s{s_kvg}, {CH}")
        a(f"s_add_u32 s{s_kvg}, s{s_kvg}, s{s_kvl}")
        a(f"s_add_u32 s{s_kvg}, s{s_kvg}, {WS_KV}")
        a(f"s_add_u32 m0, s{s_kvl}, {KVB + (3 - c % 4)*CH}")
        for m in range(4):
            a(f"buffer_load_dwordx4 v{g.v_l16}, {WS}, s{s_kvg} offen offset:{m*1024} sc1 lds"); g.vm.issue(("KV", c))
        a(f"s_add_u32 m0, m0, 4096")
        a(f"s_add_u32 s{s_kvg}, s{s_kvg}, 4096")
        for m in range(2):
            a(f"buffer_load_dwordx4 v{g.v_l16}, {WS}, s{s_kvg} offen offset:{m*1024} sc1 lds"); g.vm.issue(("KV", c))
    def landed(c):
        g.vm.wait(("KV", c))
        a("s_mov_b64 exec, 1")
        a(f"v_mov_b32 v2, {SC_L + 4 * (c - 1)}")
        a(f"v_mov_b32 v3, 1")
        a(f"ds_add_u32 v2, v3"); g.lg.issue("arr")
        a("s_mov_b64 exec, -1")
    s_i4 = s_c
    a(f"s_getreg_b32 s{s_delta}, hwreg(HW_REG_XCC_ID, 0, 4)")
    a(f"s_add_u32 s{s_delta}, s{s_delta}, 16")
    a(f"s_mov_b32 s{s_base}, 0")
    g.setup(s_w, s_hg, s_base)
    a(f"s_and_b32 s{s_t1}, s{s_tt}, 3")
    a(f"s_lshl_b32 s{s_i4}, s{s_t1}, 2")
    s_n = 52
    a(f"s_min_u32 s{s_t0}, s{s_t1}, 2")
    a(f"s_mul_i32 s{s_kw}, s{s_t0}, {NH}")
    a(f"s_cmp_eq_u32 s{s_t1}, 3")
    a(f"s_cselect_b32 s{s_t0}, {NL}, 0")
    a(f"s_add_u32 s{s_kw}, s{s_kw}, s{s_t0}")
    a(f"s_cmp_lt_u32 s{s_t1}, 2")
    a(f"s_cselect_b32 s{s_n}, {NH}, {NL}")
    a(f"s_mul_i32 s{s_w0}, s{s_kw}, {16*1280}")
    a(f"s_mul_i32 s{s_t0}, s{s_hg}, 320")
    a(f"s_add_u32 s{s_w0}, s{s_w0}, s{s_t0}")
    a(f"s_mul_i32 s{s_woff2}, s{s_w}, {160*1280}")
    a(f"s_add_u32 s{s_woff2}, s{s_woff2}, s{s_t0}")
    a(f"s_and_b32 s{s_slot}, s{s_tt}, 0xfc")
    a(f"s_add_u32 s{s_slot}, s{s_slot}, s{s_w}")
    a(f"s_mul_i32 s{s_a0}, s{s_slot}, {QH_TT}")
    a(f"s_lshl_b32 s{s_t0}, s{s_kw}, 10")
    a(f"s_add_u32 s{s_a0}, s{s_a0}, s{s_t0}")
    a(f"s_add_u32 s{s_a0}, s{s_a0}, {WS_QH + 40*1024}")
    a(f"v_mul_u32_u24 v2, 12, v0")
    a(f"s_sub_u32 s{s_t0}, s{s_n}, 1")
    a(f"v_min_u32 v2, s{s_t0}, v2")
    a(f"v_add_u32 v2, s{s_kw}, v2")
    a(f"v_mul_u32_u24 v2, 0x5556, v2")
    a(f"v_lshrrev_b32 v2, 18, v2")
    a(f"s_lshr_b32 s{s_t0}, s{s_tt}, 2")
    a(f"v_mov_b32 v1, s{s_t0}")
    flag_off(a, vfl, 1, 2, 3)
    a(f"s_bfe_u32 s{s_ka}, s{s_tt}, {0x10002 if RB == 1 else 0x20002}")
    a(f"s_lshr_b32 s{s_t0}, s{s_n}, {RB}")
    a(f"s_mul_i32 s{s_ka}, s{s_ka}, s{s_t0}")
    a(f"s_add_u32 s{s_kw}, s{s_ka}, s{s_w}")
    ALT = {31: 2 * CH, 32: 0, 33: 2 * CH}
    cur = {"ns": None}
    def dma5(vd, S, tag):
        for m in range(4):
            a(f"buffer_load_dwordx4 v{vd+m}, {S}, s{g.s_woff} offen offset:{m*1024} lds"); g.vm.issue(tag)
        a(f"s_add_u32 m0, m0, 4096")
        a(f"buffer_load_dwordx4 v{vd+4}, {S}, s{g.s_woff} offen lds"); g.vm.issue(tag)
    def load_stage(st):
        a(f"s_cmp_ge_u32 s{s_kw}, s{s_n}")
        a(f"s_cselect_b32 s{s_t0}, s{s_n}, 0")
        a(f"s_sub_u32 s{s_kw}, s{s_kw}, s{s_t0}")
        a(f"s_mul_i32 s{g.s_woff}, s{s_kw}, {16*1280}")
        a(f"s_add_u32 s{g.s_woff}, s{g.s_woff}, s{s_w0}")
        a(f"s_add_u32 s{s_kw}, s{s_kw}, 4")
        if cur["ns"] is None:
            oh, ol = [((st - (n + 3) // 4 + 1) % 3) * 5120 for n in (NH, NL)]
            a(f"s_movk_i32 s{s_t0}, {oh}")
            a(f"s_cmp_ge_u32 s{s_i4}, 8")
            a(f"s_cselect_b32 s{s_t0}, {ol}, s{s_t0}")
            a(f"s_add_u32 m0, s{g.s_lds}, s{s_t0}")
        else: a(f"s_add_u32 m0, s{g.s_lds}, {((st - cur['ns'] + 1) % 3)*5120}")
        dma5(g.v_wd, f"s[{SW2}:{SW2+3}]", ("S", st))
    def load_w(i):
        j = i - 27
        row = 80 * (j // 5) + (20 * (j % 5) if j % 5 < 4 else 16)
        a(f"s_add_u32 s{g.s_woff}, s{s_woff2}, {row*1280}")
        if i in ALT:
            a(f"s_mul_i32 s{s_t0}, s{s_w}, 5120")
            a(f"s_add_u32 m0, s{s_t0}, {KVB + CH + ALT[i]}")
        else: a(f"s_add_u32 m0, s{g.s_lds}, {(i % 3)*5120}")
        dma5(v_wd2 if j % 5 == 4 else g.v_wd, f"s[{SWO}:{SWO+3}]", ("W", i))
    def areg(i): return g.v_act + 4 * ((i - 100) % 8 if i >= 100 else i - 27)
    def load_a(i):
        a(f"s_lshl_b32 s{g.s_aoff}, s{s_ka}, 10")
        a(f"s_add_u32 s{g.s_aoff}, s{g.s_aoff}, s{s_a0}")
        a(f"s_add_u32 s{s_ka}, s{s_ka}, 1")
        a(f"s_cmp_eq_u32 s{s_ka}, s{s_n}")
        a(f"s_cselect_b32 s{s_ka}, 0, s{s_ka}")
        a(f"buffer_load_dwordx4 {vr(areg(i),4)}, v{g.v_l16}, {WS}, s{g.s_aoff} offen sc1"); g.vm.issue(("A", i))
    def rd_t(i, T):
        if i >= 100: base, off = g.v_wa, (i % 4) * PART + (((i - 100) // 4 - cur['ns'] + 1) % 3) * 5120
        else: base, off = (v_wa3, ALT[i]) if i in ALT else (g.v_wa, (i % 3) * 5120)
        for p in range(2):
            a(f"ds_read_b64_tr_b16 {vr(g.v_wf+4*T+2*p,2)}, v{base} offset:{off + T*64 + p*2560}"); g.lg.issue((i, T))
    def rd_w(i):
        g.vm.wait(("W", i))
        for T in range(5): rd_t(i, T)
    def mm(i, nxt=None, pm=0):
        g.vm.wait(("A", i), ("W", nxt))
        low = not 32 <= i < 100
        for T in range(5):
            if low and (pm >> T & 1) != ((pm >> (T - 1) & 1) if T else 1): a(f"s_setprio {3 * (pm >> T & 1)}")
            g.lg.wait((i, T))
            acc = vr(g.v_acc + 16 * T, 16)
            a(f"v_mfma_f32_32x32x16_bf16 {acc}, {vr(g.v_wf+4*T,4)}, {vr(areg(i),4)}, {acc if i != 100 else 0}")
            if nxt is not None: rd_t(nxt, T)
        if low and not pm >> 4 & 1: a("s_setprio 3")
    def sync(st, tag=""):
        g.vm.wait(("S", st))
        lds_arrive(a, SC_CNT + 32 + 4 * st, 2)
        lds_wait(a, f"G_sync{st}{tag}", SC_CNT + 32 + 4 * st, 4, 2, s_spin, s_t0, 1)
        g.lg.q = []
    g.setup2()
    a(f"v_subrev_u32 v{g.v_wa}, s{g.s_lds}, v{g.v_wa}")
    for m in range(5):
        a(f"v_add_u32 v1, {64*m}, v0")
        a(f"v_mul_u32_u24 v2, 0xcccd, v1")
        a(f"v_lshrrev_b32 v2, 22, v2")
        a(f"v_mul_u32_u24 v2, {16*1280}, v2")
        a(f"v_add_u32 v{v_wd2+m}, v2, v{g.v_wd+m}")
    if HEARLY:
        lds_wait(a, "G_wait", SC_CNT + 8, 8, 2, s_spin, s_t0, 1)
        for c in range(1, NF): landed(c)
        a(f"v_mov_b32 v2, 14")
        flag_off(a, g.v_wf, 0, 2, 3)
        def pubh():
            if WE:
                a("s_mov_b64 exec, -1")
                for st in range(WE): load_stage(st)
            a("s_cmp_eq_u32 s53, -1")
            a("s_cbranch_scc1 G_noh")
            publish(a, "G_pub", 0, 4, 3, WS_FL, 1, vm=1 + 5 * WE)
            stamp(a, 4)
            a.label("G_noh")
            a("s_mov_b32 exec_lo, 0xffff")
            a("s_mov_b32 exec_hi, 0")
        a("s_mov_b32 exec_lo, 0xffff")
        a("s_mov_b32 exec_hi, 0")
        poll(a, "G_pollkv", f"buffer_load_dword v{g.v_wf+1}, v{g.v_wf}, {WS}, 0 offen sc1", f"v_cmp_gt_u32 vcc, 1, v{g.v_wf+1}", 6, between=pubh)
        a("s_mov_b64 exec, -1")
        g.vm.q = []
        for c in range(NF, 4): kv(c)
    else:
        a(f"v_mov_b32 v2, 14")
        flag_off(a, 1, 0, 2, 3)
        a("s_mov_b32 exec_lo, 0xffff")
        a("s_mov_b32 exec_hi, 0")
        poll(a, "G_pollkv", f"buffer_load_dword v2, v1, {WS}, 0 offen sc1", "v_cmp_gt_u32 vcc, 1, v2", 6)
        a("s_mov_b64 exec, -1")
        lds_wait(a, "G_wait", SC_CNT + 8, GW_N, 2, s_spin, s_t0, 1)
        for c in range(1, NF): landed(c)
        first = list(range(NF, NF + HORD)); later = list(range(NF + HORD, 4))
        for c in first: kv(c)
        a("s_cmp_eq_u32 s53, -1")
        a("s_cbranch_scc1 G_noh")
        if not HEARLY: h_store(" sc1", g.v_l16)
        q0 = list(g.vm.q)
        g.vm.q += ["H"] * 12
        for c in first: landed(c)
        for c in later: kv(c)
        publish(a, "G_pub", 0, 4, 3, WS_FL, 1, vm=6 * len(later))
        stamp(a, 4)
        a("s_branch G_noh2")
        a.label("G_noh")
        g.vm.q = q0
        for c in later: kv(c)
        for c in first: landed(c)
        a.label("G_noh2")
        g.vm.q = [("KV", c) for c in later for _ in range(6)]
        for c in later: landed(c)
    for st in range(WE, NS0): load_stage(st)
    if HEARLY:
        for c in range(NF, 4): landed(c)
    stamp(a, 8)
    a("s_mov_b64 exec, 15")
    poll(a, "G_pollh", f"buffer_load_dword v2, v{vfl}, {WS}, 0 offen sc1", "v_cmp_gt_u32 vcc, 1, v2", 4)
    a("s_mov_b64 exec, -1")
    g.vm.q = []
    stamp(a, 9)
    if STAMP: a("s_waitcnt lgkmcnt(0)")
    for i in range(100, 104): load_a(i)
    for st in range(NS0, 3): load_stage(st)
    for i in range(104, 108): load_a(i)
    vl = vfl
    a(f"v_mov_b32 v{vl}, v0")
    a(f"s_mul_i32 s{s_base}, s{s_tt}, {32*1280}")
    a(f"s_mul_i32 s{s_t0}, s{s_hg}, 320")
    a(f"s_add_u32 s{s_base}, s{s_base}, s{s_t0}")
    a(f"s_mul_i32 s{s_t0}, s{s_w}, {8*1280}")
    a(f"s_add_u32 s{s_base}, s{s_base}, s{s_t0}")
    a(f"v_and_b32 v1, 31, v0")
    a(f"v_lshrrev_b32 v2, 5, v0")
    def item(e, vg_, vr_=None):
        a(f"v_add_u32 v2, {64*e}, v{vl}")
        a(f"v_mul_u32_u24 v3, 0xcccd, v2")
        a(f"v_lshrrev_b32 v3, 21, v3")
        if vr_ is not None:
            a(f"v_xor_b32 v{vr_}, v2, v3")
            a(f"v_lshlrev_b32 v{vr_}, 4, v{vr_}")
        a(f"v_mul_u32_u24 v3, 960, v3")
        a(f"v_lshl_add_u32 v{vg_}, v2, 3, v3")
    a(f"v_mul_u32_u24 v{v_wa2}, 1280, v2")
    a(f"v_lshl_add_u32 v{v_wa2}, v1, 3, v{v_wa2}")
    a(f"v_mul_u32_u24 v1, 0xcccd, v0")
    a(f"v_lshrrev_b32 v1, 18, v1")
    a(f"v_mul_u32_u24 v2, 5, v1")
    a(f"v_sub_u32 v2, v0, v2")
    a(f"v_mul_u32_u24 v1, 1280, v1")
    a(f"v_lshl_add_u32 v{vx}, v2, 6, v1")
    a(f"s_mul_i32 s{s_t0}, s{s_w}, 5120")
    a(f"s_add_u32 s{s_t0}, s{s_t0}, {KVB + CH}")
    a(f"v_add_u32 v{v_wa3}, s{s_t0}, v{g.v_wa}")
    for r in range(4): a(f"v_mov_b32 v{vx+4+r}, -1")
    sync(0)
    def ffn(N, tag, kvat, pm, alt):
        ns = (N + 3) // 4
        cur["ns"] = ns
        for T in range(5): rd_t(100, T)
        assert EV + 3 <= kvat[-1] < ns and ns >= EV + 5
        for st in range(ns):
            if st in kvat: kv(4 + kvat.index(st), tag)
            n = min(4, N - 4 * st)
            for j in range(n):
                i = 100 + 4 * st + j
                if j == 3 and st + 1 < ns and SPLIT:
                    g.vm.wait(("S", st + 1))
                    lds_arrive(a, SC_CNT + 32 + 4 * (st + 1), 2); g.lg.issue("arr")
                    mm(i, None, pm)
                    lds_wait(a, f"G_sync{st+1}{tag}", SC_CNT + 32 + 4 * (st + 1), 4, 2, s_spin, s_t0, 1)
                    g.lg.q = []
                    for T in range(5): rd_t(i + 1, T)
                    if st + 3 < ns: load_stage(st + 3)
                    else: load_w(28 + st + 3 - ns)
                    continue
                if j == 3 and st + 1 < ns:
                    sync(st + 1, tag)
                    if st + 3 < ns: load_stage(st + 3)
                    else: load_w(28 + st + 3 - ns)
                mm(i, i + 1 if i + 1 < 100 + N else None, pm)
                if j == min(LJ, n - 1) and st in kvat: landed(4 + kvat.index(st))
            for i in range(4 * st + 8, min(4 * st + 12, N)): load_a(100 + i)
            if st == EV:
                a(f"s_lshl_b32 s{s_t0}, s{s_lid}, 2")
                a(f"s_add_u32 s{s_t0}, s{s_t0}, s{s_w}")
                a(f"s_mul_i32 s{s_t0}, s{s_t0}, 2560")
                a(f"s_add_u32 s{s_t0}, s{s_t0}, {WS_O}")
                for o in (0, 1024, 1536):
                    a(f"buffer_store_dwordx4 {vr(vx+4,4)}, v{g.v_l16}, {WS}, s{s_t0} offen offset:{o} sc1"); g.vm.issue("R")
            if st == EV + 1:
                a(f"s_bfe_u32 s{s_t0}, s{s_tt}, 0x30002")
                a(f"s_mul_i32 s{s_t0}, s{s_t0}, {20*1280}")
                a(f"s_add_u32 s{s_t0}, s{s_t0}, s{s_woff2}")
                a(f"s_add_u32 s{s_t1}, s{s_t0}, {10*1280}")
                a(f"buffer_load_dword v{vx+2}, v{vx}, s[{SWO}:{SWO+3}], s{s_t0} offen"); g.vm.issue("P")
                a(f"buffer_load_dword v{vx+3}, v{vx}, s[{SWO}:{SWO+3}], s{s_t1} offen"); g.vm.issue("P")
            if st == EV + 2:
                g.vm.wait("R")
                publish(a, f"G_pubr{tag}", 4, 4, s_lid, WS_FL + 32768, 1, value=f"s{s_delta}", vm=63, word=s_i4)
                g.lg.q = []
            if st == EV + 3:
                g.vm.wait("P", "R")
                for e in range(5):
                    item(e, 1)
                    a(f"buffer_load_dwordx2 {vr(vx+2*e,2)}, v1, s[{SX}:{SX+3}], s{s_base} offen"); g.vm.issue("X")
            if st == ns - 2:
                a(f"s_lshl_b32 s{s_t0}, s{s_tt}, 2")
                a(f"s_add_u32 s{s_t0}, s{s_t0}, s{s_w}")
                a(f"s_lshl_b32 s{s_t0}, s{s_t0}, 7")
                a(f"s_add_u32 s{s_t0}, s{s_t0}, s{s_i4}")
                a(f"s_add_u32 s{s_cch}, s{s_t0}, {WS_FL + 32768}")
                a(f"buffer_load_dword v1, off, {WS}, s{s_cch} sc1"); g.vm.issue("M")
            for k in range(2):
                if st == ns - 1 - alt[k]:
                    lds_wait(a, f"G_alt{k}{tag}", SCW + 20 + 4 * k, NW_, 2, s_spin, s_t0, 2)
                    g.lg.q = []
                    load_w(31 + k)
            if st in (0, 3):
                stamp(a, {0: 10, 3: 11}[st])
                if STAMP: a("s_waitcnt lgkmcnt(0)")
        g.vm.wait("M")
    if NH != NL or KVH != KVL or PMH != PML or ALH != ALL:
        a(f"s_cmp_ge_u32 s{s_i4}, 8")
        a("s_cbranch_scc1 G_light")
        vq, lq = list(g.vm.q), list(g.lg.q)
        ffn(NH, "h", KVH, PMH, ALH)
        a("s_branch G_ffnend")
        a.label("G_light")
        g.vm.q, g.lg.q = vq, lq
        ffn(NL, "l", KVL, PML, ALL)
        a.label("G_ffnend")
    else:
        ffn(NH, "h", KVH, PMH, ALH)
    g.vm.q = []; g.lg.q = []
    stamp(a, 12)
    a("v_cmp_gt_u32 vcc, 1, v1")
    a("s_cmp_eq_u64 vcc, 0")
    a("s_cbranch_scc1 G_pollm_ok")
    poll(a, "G_pollm", f"buffer_load_dword v1, off, {WS}, s{s_cch} sc1", "v_cmp_gt_u32 vcc, 1, v1", 8)
    a(f"v_readfirstlane_b32 s{s_t0}, v1")
    a(f"s_cmp_lg_u32 s{s_t0}, s{s_delta}")
    a("s_cbranch_scc1 G_novote")
    if FASTO: lds_arrive(a, SC_K + 36, 2)
    a.label("G_novote")
    pk = g.v_act
    lds_arrive(a, SC_CNT + 96, 2)
    a(f"s_lshl_b32 s{s_t0}, s{s_w}, 2")
    a(f"s_cmp_eq_u32 s{s_t0}, s{s_i4}")
    a("s_cbranch_scc1 G_keep")
    a(f"s_lshl_b32 s{s_t0}, s{s_lid}, 2")
    a(f"s_add_u32 s{s_t0}, s{s_t0}, s{s_w}")
    a(f"s_mul_i32 s{s_t0}, s{s_t0}, 10240")
    a(f"s_add_u32 s{s_t0}, s{s_t0}, {WS_P}")
    def pick(name, body):
        if not NEARP: body(" sc1"); return
        a(f"s_cmp_eq_u32 s52, s{s_delta}")
        a(f"s_cbranch_scc1 {name}_n")
        body(" sc1")
        a(f"s_branch {name}_e")
        a.label(f"{name}_n")
        body(os.environ.get("NPOL", "") if name == "G_snd" else "")
        a.label(f"{name}_e")
    def snd(sc):
        a("s_nop 7")
        for k in range(10):
            for r in range(4): a(f"v_cvt_pk_bf16_f32 v{pk+4*k+r}, v{g.v_acc+8*k+2*r}, v{g.v_acc+8*k+2*r+1}")
            if k in (4, 8): a(f"s_add_u32 s{s_t0}, s{s_t0}, 4096")
            a(f"buffer_store_dwordx4 {vr(pk+4*k,4)}, v{g.v_l16}, {WS}, s{s_t0} offen offset:{(k%4)*1024}{sc}")
    pick("G_snd", snd)
    a.label("G_keep")
    def not_owner(lbl):
        a(f"s_lshl_b32 s{s_t1}, s{s_w}, 2")
        a(f"s_cmp_eq_u32 s{s_t1}, s{s_i4}")
        a(f"s_cbranch_scc1 {lbl}")
    lds_wait(a, "G_sync7", SC_CNT + 96, 4, 2, s_spin, s_t0, 1)
    g.lg.q = []
    a(f"v_add_u32 v{g.v_wa}, s{g.s_lds}, v{g.v_wa}")
    load_w(27)
    a(f"s_lshl_b32 s{s_t0}, s{s_tt}, 2")
    a(f"s_add_u32 s{s_t0}, s{s_t0}, s{s_w}")
    a(f"s_mul_i32 s{g.s_aoff}, s{s_t0}, 10240")
    a(f"s_add_u32 s{g.s_aoff}, s{g.s_aoff}, {WS_O}")
    a(f"s_add_u32 s{s_a0}, s{g.s_aoff}, 5120")
    a(f"s_lshl_b32 s{s_slot}, s{s_slot}, 2")
    a(f"s_add_u32 s{s_slot}, s{s_slot}, s{s_hg}")
    a(f"s_lshl_b32 s{s_t1}, s{s_slot}, 7")
    a(f"s_add_u32 s{s_t1}, s{s_t1}, s{s_i4}")
    a(f"s_add_u32 s{s_kvg}, s{s_t1}, {WS_FL + 32768}")
    not_owner("G_keep2")
    a(f"s_lshl_b32 s{s_t0}, s{s_lid}, 7")
    a(f"s_add_u32 s{s_t0}, s{s_t0}, s{s_t1}")
    a(f"s_add_u32 s{s_t0}, s{s_t0}, {WS_FL + 32768}")
    a("v_mov_b32 v1, 1")
    a("s_waitcnt vmcnt(5)")
    a("s_mov_b64 exec, 1")
    pick("G_sfl", lambda sc: a(f"buffer_store_dword v1, off, {WS}, s{s_t0}{sc}"))
    a("s_mov_b64 exec, -1")
    a.label("G_keep2")
    if TAILST: stamp(a, 8)
    assert (ALH[1] < 0) == (ALL[1] < 0) and ALH[0] >= 0 and ALL[0] >= 0
    rd_w(27); g.lg.drain(); load_w(30)
    def unpack(k0_, k1_):
        for k in range(k0_, k1_):
            for r in range(4):
                a(f"v_lshlrev_b32 v{g.v_acc+8*k+2*r}, 16, v{pk+4*k+r}")
                a(f"v_and_b32 v{g.v_acc+8*k+2*r+1}, s{s_cch}, v{pk+4*k+r}")
    a(f"s_mov_b32 s{s_cch}, 0xffff0000")
    not_owner("G_keep3")
    poll(a, "G_pollr", f"buffer_load_dword v1, off, {WS}, s{s_kvg} sc1", "v_cmp_gt_u32 vcc, 1, v1", 2)
    a(f"s_mul_i32 s{s_t0}, s{s_slot}, 40960")
    a(f"s_mul_i32 s{s_t1}, s{s_i4}, 2560")
    a(f"s_add_u32 s{s_t0}, s{s_t0}, s{s_t1}")
    a(f"s_add_u32 s{s_t0}, s{s_t0}, {WS_P}")
    for k in range(10):
        if k in (4, 8): a(f"s_add_u32 s{s_t0}, s{s_t0}, 4096")
        a(f"buffer_load_dwordx4 {vr(pk+4*k,4)}, v{g.v_l16}, {WS}, s{s_t0} offen offset:{(k%4)*1024} sc1")
    a("s_waitcnt vmcnt(5)")
    unpack(0, 5)
    a.label("G_keep3")
    stamp(a, 5)
    lds_wait(a, "G_trig0", SC_K + 32, TRIG[0], 2, s_spin, s_t0, 1)
    def o_poll(half):
        b = areg(27 + 5 * half)
        so = g.s_aoff if half == 0 else s_a0
        ld = [f"buffer_load_dwordx4 {vr(b+4*j,4)}, v{g.v_l16}, {WS}, s{so} offen offset:{j*1280}{os.environ.get('OLP', ' sc1')}" for j in range(4)]
        ld += [f"buffer_load_dwordx2 {vr(b+16+2*j,2)}, v{v_wa2}, {WS}, s{so} offen offset:{1024+2560*j}{os.environ.get('OLP', ' sc1')}" for j in range(2)]
        ck = [f"v_max3_u32 v{1+k}, v{b+3*k}, v{b+3*k+1}, v{b+3*k+2}" for k in range(3)]
        ck += [f"v_max3_u32 v{1+k}, v{1+k}, v{b+9+2*k}, v{b+10+2*k}" for k in range(3)]
        ck += [f"v_max3_u32 v1, v1, v{b+15}, v{b+16}", f"v_max3_u32 v2, v2, v{b+17}, v{b+18}", f"v_max_u32 v3, v3, v{b+19}",
               "v_max3_u32 v1, v1, v2, v3", "v_cmp_eq_u32 vcc, -1, v1"]
        return "\n".join(ld), "\n".join(ck)
    def rest():
        not_owner("G_keep4")
        a("s_waitcnt vmcnt(6)")
        unpack(5, 10)
        a.label("G_keep4")
    poll(a, "G_pollo0", *o_poll(0), OSL[0], between=rest)
    g.vm.q = []
    if TAILST: stamp(a, 6); a("s_waitcnt lgkmcnt(0)")
    lds_wait(a, "G_alt1", SCW + 28, NW_, 2, s_spin, s_t0, 1)
    load_w(32)
    for i in range(27, 31):
        mm(i, i + 1)
        if 28 <= i <= 30: load_w(i + 6)
    xf = g.v_act
    VG, VR, VW = g.v_wd, v_wd2, vx
    def fin_setup():
        for e in range(5):
            a(f"v_lshlrev_b32 v{xf+4*e}, 16, v{vx+2*e}")
            a(f"v_and_b32 v{xf+4*e+1}, s{s_cch}, v{vx+2*e}")
            a(f"v_lshlrev_b32 v{xf+4*e+2}, 16, v{vx+2*e+1}")
            a(f"v_and_b32 v{xf+4*e+3}, s{s_cch}, v{vx+2*e+1}")
        for e in range(5): item(e, VG + e, VR + e)
        X3 = KVB + CH + ALT[31]
        a(f"s_mul_i32 s{s_t0}, s{s_w}, 5120")
        a(f"s_add_u32 s{s_t1}, s{s_t0}, {X3 - 3*5120}")
        a(f"v_and_b32 v2, 31, v{vl}")
        a(f"v_mov_b32 v3, s{g.s_lds}")
        a(f"v_mov_b32 v1, s{s_t1}")
        a(f"v_cmp_lt_u32 vcc, 23, v2")
        a(f"v_cndmask_b32 v3, v3, v1, vcc")
        a(f"v_mul_u32_u24 v2, 640, v2")
        a(f"v_add_u32 v3, v3, v2")
        a(f"v_lshrrev_b32 v2, 5, v{vl}")
        a(f"v_and_b32 v1, 7, v{vl}")
        a(f"v_xor_b32 v2, v2, v1")
        for q in range(4):
            a(f"v_xor_b32 v1, {2*q}, v2")
            a(f"v_lshl_add_u32 v{VW+q}, v1, 4, v3")
        a(f"s_cmp_eq_u32 s{s_w}, 3")
        a(f"s_cselect_b32 s24, {X3}, s{s_t0}")
        a(f"s_movk_i32 s{s_t1}, {PART}")
        a(f"s_cselect_b32 s{s_t1}, 5120, s{s_t1}")
        for k in range(1, 4): a(f"s_add_u32 s{24+k}, s{23+k}, s{s_t1}")
    def last_first():
        for _ in range(6): g.vm.issue("O")
        mm(31, 32)
        load_w(33)
        stamp(a, 2)
        fin_setup()
    assert SPEC
    if SPEC:
        poll(a, "G_pollo1", *o_poll(1), OSL[1], between=last_first)
    else:
        mm(31, 32)
        stamp(a, 2)
        lds_wait(a, "G_trig1", SC_K + 32, TRIG[1], 2, s_spin, s_t0, 1)
        g.lg.q = []
        poll(a, "G_pollo1", *o_poll(1), OSL[1])
    g.vm.q = []
    a("s_setprio 3")
    stamp(a, 13)
    if STAMP: a("s_waitcnt lgkmcnt(0)")
    for i in range(32, 37): mm(i, i + 1 if i < 36 else None)
    stamp(a, 14)
    for T in range(5):
        for q in range(4): a(f"ds_write_b128 v{VW+q}, {vr(g.v_acc+16*T+4*q,4)} offset:{T*128}")
    a("s_waitcnt lgkmcnt(0)")
    if TAILST: stamp(a, 10)
    a("s_barrier")
    if TAILST: stamp(a, 11); a("s_waitcnt lgkmcnt(0)")
    for e in range(5):
        for k in range(4):
            a(f"v_add_u32 v{VW+4+k}, s{24+k}, v{VR+e}")
        for k in range(4):
            a(f"ds_read_b128 {vr(g.v_acc+16*e+4*k,4)}, v{VW+4+k}"); g.lg.issue(e)
        if e >= 2: fin_tile(a, g, e - 2, xf, VG + e - 2)
    fin_tile(a, g, 3, xf, VG + 3); fin_tile(a, g, 4, xf, VG + 4)
    if STAMP:
        if TAILST: stamp(a, 9)
        a("s_waitcnt vmcnt(0)"); stamp(a, 7); stamp(a, 15, True)
        a(f"s_add_u32 s{s_w}, s{s_w}, 8")
        stamp_flush(a, 1, SWS, s_w, 12, 16, gsel=[(9, False), (10, False), (12, False), (13, False), (14, False), (15, False)], goff=8)
    if os.environ.get("PADT"):
        a.label("G_pad")
        a("s_memrealtime s[68:69]")
        a("s_waitcnt lgkmcnt(0)")
        a("s_sub_u32 s68, s68, s66")
        a(f"s_cmp_lt_u32 s68, {os.environ['PADT']}")
        a("s_cbranch_scc1 G_pad")
    a("s_endpgm")
    return vx + 10

def fin_tile(a, g, T, xf, vo):
    b = g.v_acc + 16 * T
    g.lg.wait(T)
    for h in range(2):
        a(f"v_pk_add_f32 {vr(b+2*h,2)}, {vr(b+2*h,2)}, {vr(b+4+2*h,2)}")
        a(f"v_pk_add_f32 {vr(b+8+2*h,2)}, {vr(b+8+2*h,2)}, {vr(b+12+2*h,2)}")
    for h in range(2):
        a(f"v_pk_add_f32 {vr(b+2*h,2)}, {vr(b+2*h,2)}, {vr(xf+4*T+2*h,2)}")
    for h in range(2):
        a(f"v_pk_add_f32 {vr(b+2*h,2)}, {vr(b+2*h,2)}, {vr(b+8+2*h,2)}")
    a(f"v_cvt_pk_bf16_f32 v{b}, v{b}, v{b+1}")
    a(f"v_cvt_pk_bf16_f32 v{b+1}, v{b+2}, v{b+3}")
    a(f"buffer_store_dwordx2 {vr(b,2)}, v{vo}, s[{SOUT}:{SOUT+3}], s{s_base} offen{os.environ.get('OUTP', ' nt')}")

def gen_f(a, name="parallel_sum__grouped_kv_mqa__dense_activation_relu__prompt_kernel"):
    kernel_header(a, name)
    a("s_cmp_ge_u32 s2, 256")
    a("s_cbranch_scc1 F_end")
    stamp(a, 0, True); stamp(a, 1)
    if os.environ.get("PADT"): a("s_memrealtime s[66:67]")
    def clear_cnt(a):
        a("v_lshlrev_b32 v1, 2, v0")
        a(f"v_add_u32 v1, {SC_CNT}, v1")
        a("v_mov_b32 v2, 0")
        a("ds_write_b32 v1, v2")
        a("v_cmp_eq_u32 vcc, 23, v0")
        a("v_cndmask_b32 v2, 0, 4, vcc")
        a("ds_write_b32 v1, v2 offset:256")
        a("s_waitcnt lgkmcnt(0)")
    def start_hook(a):
        clear_cnt(a)
        attn_addr(a)
        if TLBW:
            a(f"s_cmp_lg_u32 s{s_w}, 5")
            a("s_cbranch_scc1 F_notlb")
            for _ in range(TLBW - 1): a("s_barrier")
            a(f"v_lshlrev_b32 v1, {TLBS}, v0")
            a(f"v_add_u32 v1, 0x100, v1")
            for ptr, n in ((56, 1728 * 1280), (58, 640 * 1280), (60, 2048 * 1280)):
                srd(a, 16, ptr, n)
                a(f"buffer_load_dword v2, v1, s[16:19], 0 offen")
            for k in range((WS_SIZE >> TLBS) // 64 + 1):
                a(f"s_mov_b32 s35, {k * 64 << TLBS}")
                a(f"buffer_load_dword v2, v1, {WS}, s35 offen sc1")
            for _ in range(10 - (TLBW - 1)): a("s_barrier")
            a("s_waitcnt vmcnt(0)")
            a("s_branch F_attn")
            a.label("F_notlb")
    def pre_ba(a):
        attn_addr(a)
        q_probe(a)
    def done_help(a): a("s_branch F_fetch")
    def done_stats(a): a("s_branch F_dry" if DRY else "s_branch F_attn")
    def done_comp(a): a("s_branch F_pub")
    def spare(a):
        ka2.produce_stats(a)
        clear_cnt(a)
        attn_addr(a)
        a(f"s_cmp_lg_u32 s{s_w}, 0")
        a("s_cbranch_scc1 F_sp1")
        ka2.dbg_check(a, "F_dbg")
        a.label("F_sp1")
        a("s_barrier")
        a(f"s_cmp_ge_u32 s{s_w}, 8")
        a("s_cbranch_scc1 F_gemm0")
        q_probe(a)
        a(f"s_cmp_lt_u32 s{s_w}, 5")
        a("s_cbranch_scc1 F_fetch")
        fetch_kv(a, "s", False)
    phase_a(a, done_help, done_stats, done_comp, spare, start_hook, pre_ba, lambda a: fetch_kv(a, 'i', True))
    a.label("F_fetch")
    fetch(a)
    a.label("F_attn")
    attention(a)
    if DRY:
        a.label("F_dry")
        a(f"s_cmp_eq_u32 s{s_w}, 4")
        a("s_cbranch_scc1 F_attn")
        a("s_mov_b64 exec, 0")
        a(f"s_mov_b32 s{s_c}, 7")
        a(f"s_cmp_eq_u32 s{s_w}, 5")
        a("s_cbranch_scc1 B_loop")
        a(f"s_cmp_eq_u32 s{s_w}, 6")
        a("s_cbranch_scc1 B_u3")
        a("s_branch B_synced")
        a.label("F_dryret")
        a("s_mov_b64 exec, -1")
        a("s_nop 7")
        a("s_nop 7")
        a("s_branch F_attn")
    a.label("F_pub")
    stamp(a, 3)
    if WFL:
        a(f"s_and_b32 s{s_t0}, s3, 15")
        a(f"s_cmp_eq_u32 s{s_t0}, 14")
        a("s_cbranch_scc1 F_pubkv")
        a(f"s_lshl_b32 s{s_t0}, s3, 5")
        a(f"s_add_u32 s{s_t0}, s{s_t0}, s{s_w}")
        a(f"s_lshl_b32 s{s_t0}, s{s_t0}, 2")
        a(f"s_add_u32 s{s_t0}, s{s_t0}, {WS_FL - 32}")
        a("v_mov_b32 v1, 1")
        a("s_mov_b64 exec, 1")
        a("s_waitcnt vmcnt(0)")
        a(f"buffer_store_dword v1, off, {WS}, s{s_t0} sc1")
        lds_arrive(a, SC_CNT, 2)
        a("s_branch F_pub2")
        a.label("F_pubkv")
    publish(a, "F_pub2", 0, 4, 3, WS_FL, 1)
    stamp(a, 4)
    lds_wait(a, "F_all", SC_CNT, 4, 2, s_spin, s_t0)
    a.label("F_gemm0")
    a("s_mov_b32 s53, -1")
    a.label("F_gemm")
    nv = gemm(a)
    a.label("F_end")
    a("s_endpgm")
    assert nv <= 168, nv
    return dict(name=name, grid=256, block=768, lds=LDS_A, vgpr=168, sgpr=102 if STAMP else 72, single=True)
```

```python
from common import *
from gw import *
import ka2
from ka2 import phase_a, SC_CNT, LDS_A
def two_ways(a, name, body): body(' sc1')

GPRIO = int(os.environ.get("GPRIO", "0"))
HOLD = 1
GROT = int(os.environ.get("GROT", "9"))
GX = os.environ.get("GX", "")
UARR = int(os.environ.get("UARR", "0"))
SC_L = None
DRY = int(os.environ.get("DRY", "0"))
PACE = [float(x) for x in os.environ.get("PACE", "1.7,7.0").split(",")]
PEND = int(os.environ.get("PEND", "99"))
ABAT = int(os.environ.get("ABAT", "0"))
PIPE = int(os.environ.get("PIPE", "1"))
KV4 = int(os.environ.get("KV4", "0"))
TRIG = [int(x) for x in os.environ.get("TRIG", "4,8").split(",")]
TAILST = os.environ.get("TAILST")
OSL = [int(x) for x in os.environ.get("OSL", "1,1").split(",")]
WOPF = int(os.environ.get("WOPF", "10"))
ALT1 = int(os.environ.get("ALT1", "0"))
MARK = int(os.environ.get("MARK", "1"))
NS0 = int(os.environ.get("NS0", "2"))
WEARLY = int(os.environ.get("WEARLY", "2"))
W2PF = int(os.environ.get("W2PF", "3"))
HP = int(os.environ.get("HP", "1"))
FASTO = int(os.environ.get("FASTO", "1"))
TRIGST = int(os.environ.get("TRIGST", "1"))
PMASK = int(os.environ.get("PMASK", "0"))
PSTEP = [int(x) for x in os.environ.get("PSTEP", "2,6").split(",") if x]
PBASE = int(os.environ.get("PBASE", "0"))
ALIGN = int(os.environ.get("ALIGN", "0"))
HNEAR = int(os.environ.get("HNEAR", "0"))
JIT = int(os.environ.get("JIT", "0"))
LAY = int(os.environ.get("LAY", "0"))
TLBW = int(os.environ.get("TLBW", "0"))
TLBS = int(os.environ.get("TLBS", "21"))
HORD = int(os.environ.get("HORD", "0"))
GW_N = int(os.environ.get("GW_N", "8"))
OPF = int(os.environ.get("OPF", "9"))
SPEC = int(os.environ.get("SPEC", "1"))
HPI = int(os.environ.get("HPI", "32"))
NEARP = int(os.environ.get("NEARP", "0"))
AD = int(os.environ.get("AD", "8"))
LJ = int(os.environ.get("LJ", "1"))
MD = int(os.environ.get("MD", "2"))
WPF = int(os.environ.get("WPF", "2"))
XST = int(os.environ.get("XST", "4"))
BSL = int(os.environ.get("BSL", "1"))
NF = int(os.environ.get("NF", "3"))
WFL = int(os.environ.get("WFL", "0"))
NH = int(os.environ.get("NH", "27")); NL = 54 - NH
KVH = [int(x) for x in os.environ.get("KVH", "1,2,4,6").split(",")]
KVL = [int(x) for x in os.environ.get("KVL", os.environ.get("KVH", "1,2,4,6")).split(",")]
PMH = int(os.environ.get("PMH", "4")); PML = int(os.environ.get("PML", str(PMH)))
PSEL = os.environ.get("PSEL", "a")
ALH = [int(x) for x in os.environ.get("ALH", "0,-1").split(",")]
ALL = [int(x) for x in os.environ.get("ALL", "0,-1").split(",")]
EV = int(os.environ.get("EV", "1"))
RB = int(os.environ.get("RB", "1"))
RSL = int(os.environ.get("RSL", "1"))
SPLIT = int(os.environ.get("SPLIT", "0"))
EARR = int(os.environ.get("EARR", "1"))
QPRE = int(os.environ.get("QPRE", "0"))
HEARLY = int(os.environ.get("HEARLY", "6"))
WE = int(os.environ.get("WE", "2"))
LL = int(os.environ.get("LL", "0"))
EP3 = int(os.environ.get("EP3", "0"))
TR1 = int(os.environ.get("TR1", "0"))
DEFW = int(os.environ.get("DEFW", "4"))
DEFER = int(os.environ.get("DEFER", "0"))
PAIR = 2 * KV_TILE
CH = 8 * KV_TILE
STG = 0
KVB = 4 * PART
assert KVB + 4 * CH <= ka2.SCR and KVB >= ka2.SLOT and KVB + 3 * CH >= 3 * ka2.SLOT
RESET_WG = (3 << 6) | (3 << 1)

SX, SW2, SWS, SWO, SOUT, SDBG = 4, 8, 12, 16, 20, 16
s_w, s_tt, s_hg, s_t0, s_t1, s_c, s_slot, s_delta, s_cch, s_base, s_spin, s_kvl, s_kvg, s_woff2 = range(32, 46)
s_gw = 46
s_lid = 97 if STAMP else 64
WS = f"s[{SWS}:{SWS+3}]"
Q1, Q2, P0, P1, O, S0, S1 = 4, 8, 12, 16, 20, 36, 52
KS = [68, 96]
v_ka, v_va, v_g0, VT = 124, 125, 126, 130
v_l16, v_cnt, v_one, v_chk = 136, 137, 138, 139
SC_K = SC_CNT + 256
SC_L = SC_K + 256
COMB = int(os.environ.get('COMB', '0'))
SCW, NW_ = (SC_L, 12) if COMB else (SC_K, 8)
s_tgt = 45

def mf(a, d, x, y, c): a(f"v_mfma_f32_32x32x16_bf16 {vr(d,16)}, {vr(x,4)}, {vr(y,4)}, {c if isinstance(c,str) else vr(c,16)}")
def mf8(a, d, x, y): a(f"v_mfma_f32_32x32x8_bf16 {vr(d,16)}, {vr(x,2)}, {vr(y,2)}, {vr(d,16)}")

def flag_off(a, vd, vrb, vg, t):
    a(f"v_lshl_add_u32 v{vd}, v{vrb}, 4, v{vg}")
    a(f"v_lshlrev_b32 v{vd}, 7, v{vd}")
    a(f"v_add_u32 v{vd}, {WS_FL}, v{vd}")

def publish(a, name, cnt_off, nwaves, sid, base, t, value=1, vm=0, word=None, near=False):
    a(f"s_waitcnt vmcnt({vm})")
    a("s_mov_b64 exec, 1")
    a(f"v_mov_b32 v{t}, {SC_CNT + cnt_off}")
    a(f"v_mov_b32 v{t+1}, 1")
    a(f"ds_add_rtn_u32 v{t+1}, v{t}, v{t+1}")
    a(f"s_lshl_b32 s{s_t0}, s{sid}, 7")
    a(f"s_add_u32 s{s_t0}, s{s_t0}, {base}")
    a(f"v_mov_b32 v{t}, {0 if word is None else 's%d' % word}")
    a(f"v_mov_b32 v{t+2}, {value}")
    a("s_waitcnt lgkmcnt(0)")
    a(f"v_readfirstlane_b32 s{s_t1}, v{t+1}")
    a(f"s_cmp_lg_u32 s{s_t1}, {nwaves-1}")
    a(f"s_cbranch_scc1 {name}")
    if near: two_ways(a, name + "w", lambda sc: a(f"buffer_store_dword v{t+2}, v{t}, {WS}, s{s_t0} offen{sc}"))
    else: a(f"buffer_store_dword v{t+2}, v{t}, {WS}, s{s_t0} offen sc1")
    a.label(name)
    a("s_mov_b64 exec, -1")

def lid(a):
    BMAP = int(os.environ.get("BMAP", "4"))
    if BMAP == 0: a(f"s_mov_b32 s{s_lid}, s2")
    elif BMAP == 1:
        a(f"s_bfe_u32 s{s_lid}, s2, 0x20001")
        a(f"s_lshl_b32 s{s_lid}, s{s_lid}, 4")
        a(f"s_lshr_b32 s35, s2, 4")
        a(f"s_add_u32 s{s_lid}, s{s_lid}, s35")
        a(f"s_lshl_b32 s{s_lid}, s{s_lid}, 1")
        a(f"s_and_b32 s35, s2, 1")
        a(f"s_add_u32 s{s_lid}, s{s_lid}, s35")
        a(f"s_lshl_b32 s{s_lid}, s{s_lid}, 1")
        a(f"s_bfe_u32 s35, s2, 0x10003")
        a(f"s_add_u32 s{s_lid}, s{s_lid}, s35")
    elif BMAP == 3:
        a(f"s_lshr_b32 s{s_lid}, s2, 4")
        a(f"s_lshl_b32 s{s_lid}, s{s_lid}, 3")
        a(f"s_and_b32 s35, s2, 7")
        a(f"s_add_u32 s{s_lid}, s{s_lid}, s35")
        a(f"s_lshl_b32 s{s_lid}, s{s_lid}, 1")
        a(f"s_bfe_u32 s35, s2, 0x10003")
        a(f"s_add_u32 s{s_lid}, s{s_lid}, s35")
    elif BMAP == 4:
        a(f"s_and_b32 s{s_lid}, s2, 1")
        a(f"s_lshl_b32 s{s_lid}, s{s_lid}, 3")
        a(f"s_lshr_b32 s35, s2, 5")
        a(f"s_add_u32 s{s_lid}, s{s_lid}, s35")
        a(f"s_lshl_b32 s{s_lid}, s{s_lid}, 2")
        a(f"s_bfe_u32 s35, s2, 0x20001")
        a(f"s_add_u32 s{s_lid}, s{s_lid}, s35")
        a(f"s_lshl_b32 s{s_lid}, s{s_lid}, 2")
        a(f"s_bfe_u32 s35, s2, 0x20003")
        a(f"s_add_u32 s{s_lid}, s{s_lid}, s35")
    elif BMAP == 5:
        a(f"s_bfe_u32 s{s_lid}, s2, 0x10002")
        a(f"s_lshl_b32 s{s_lid}, s{s_lid}, 3")
        a(f"s_lshr_b32 s35, s2, 5")
        a(f"s_add_u32 s{s_lid}, s{s_lid}, s35")
        a(f"s_lshl_b32 s{s_lid}, s{s_lid}, 1")
        a(f"s_and_b32 s35, s2, 1")
        a(f"s_add_u32 s{s_lid}, s{s_lid}, s35")
        a(f"s_lshl_b32 s{s_lid}, s{s_lid}, 1")
        a(f"s_bfe_u32 s35, s2, 0x10001")
        a(f"s_add_u32 s{s_lid}, s{s_lid}, s35")
        a(f"s_lshl_b32 s{s_lid}, s{s_lid}, 2")
        a(f"s_bfe_u32 s35, s2, 0x20003")
        a(f"s_add_u32 s{s_lid}, s{s_lid}, s35")
    else:
        a(f"s_and_b32 s{s_lid}, s2, 7")
        a(f"s_lshl_b32 s{s_lid}, s{s_lid}, 5")
        a(f"s_lshr_b32 s35, s2, 3")
        a(f"s_add_u32 s{s_lid}, s{s_lid}, s35")
    if STAMP == 3: a("s_mov_b32 s72, 0")

def decode_b(a):
    a(f"s_lshr_b32 s{s_tt}, s{s_lid}, 2")
    a(f"s_and_b32 s{s_hg}, s{s_lid}, 3")

def attn_addr(a):
    lid(a)
    a(f"s_and_b32 s{s_t0}, s{s_lid}, 3")
    a(f"s_lshl_b32 s{s_t0}, s{s_t0}, 3")
    a(f"s_add_u32 s{s_t0}, s{s_t0}, s{s_w}")
    a(f"s_mul_i32 s{s_t0}, s{s_t0}, 5")
    a(f"v_lshrrev_b32 v2, 5, v0")
    a(f"v_and_b32 v3, 31, v0")
    a(f"v_lshlrev_b32 v3, 4, v3")
    for i in range(3):
        if i < 2: a(f"v_add_u32 v1, s{s_t0}, v2")
        else: a(f"v_mov_b32 v1, s{s_t0}")
        if i: a(f"v_add_u32 v1, {2*i}, v1")
        a(f"v_lshrrev_b32 v{VT}, 2, v1")
        a(f"v_lshl_add_u32 v{v_g0+i}, v{VT}, 10, v3")
        a(f"v_and_b32 v{VT}, 1, v1")
        a(f"v_lshl_add_u32 v{v_g0+i}, v{VT}, 9, v{v_g0+i}")
        a(f"v_bfe_u32 v{VT}, v1, 1, 1")
        a(f"v_lshl_add_u32 v{v_g0+i}, v{VT}, 3, v{v_g0+i}")
    a(f"v_lshlrev_b32 v{v_l16}, 4, v0")
    a(f"v_add_u32 v{v_ka}, {KVB + 3*CH}, v{v_l16}")
    a(f"v_lshlrev_b32 v{v_cnt}, 2, v0")
    a(f"v_add_u32 v{v_cnt}, {SC_K}, v{v_cnt}")
    a(f"v_cmp_eq_u32 vcc, 0, v0")
    a(f"v_cndmask_b32 v{v_one}, 0, 1, vcc")
    a(f"v_and_b32 v1, 31, v0")
    a(f"v_min_u32 v1, 23, v1")
    a(f"v_mul_u32_u24 v{v_va}, 384, v2")
    a(f"v_lshl_add_u32 v{v_va}, v1, 4, v{v_va}")
    a(f"v_add_u32 v{v_va}, {KVB + 3*CH + 3072}, v{v_va}")

QFL = lambda: f"buffer_load_dword v6, v4, {WS}, 0 offen sc1"
def q_probe(a):
    decode_b(a)
    a(f"s_lshr_b32 s{s_t0}, s{s_tt}, 2")
    a(f"v_mov_b32 v1, s{s_t0}")
    a(f"s_add_u32 s{s_t1}, s{s_hg}, 9")
    a(f"v_add_u32 v2, s{s_t1}, v0")
    flag_off(a, 4, 1, 2, 3)
    a("s_mov_b64 exec, 3")
    if QPRE: a(QFL())
    else: a("v_mov_b32 v6, 0")
    a("s_mov_b64 exec, -1")

def fetch(a):
    a(f"s_cmp_lg_u32 s{s_w}, 0")
    a("s_cbranch_scc1 F_attn")
    a("s_mov_b64 exec, 3")
    a("s_waitcnt vmcnt(0)")
    a("v_cmp_gt_u32 vcc, 1, v6")
    a("s_cmp_eq_u64 vcc, 0")
    a("s_cbranch_scc1 B_pollq_ok")
    poll(a, "B_pollq", QFL(), "v_cmp_gt_u32 vcc, 1, v6", 2)
    lds_arrive(a, SC_CNT + 16, 2)

def fetch_kv(a, tag, bar):
    decode_b(a)
    a(f"s_lshr_b32 s{s_t0}, s{s_tt}, 3")
    a(f"s_lshl_b32 s{s_t1}, s{s_t0}, 1")
    a(f"v_add_u32 v1, s{s_t1}, v0")
    a(f"v_and_b32 v1, 15, v1")
    a(f"v_mov_b32 v2, 14")
    flag_off(a, 4, 1, 2, 3)
    a(f"s_mul_i32 s{s_t0}, s{s_t0}, {CH}")
    a(f"s_sub_u32 s{s_kvl}, s{s_w}, 5")
    a(f"s_lshl_b32 s{s_kvl}, s{s_kvl}, 13")
    a(f"s_add_u32 s{s_kvg}, s{s_kvl}, s{s_t0}")
    LD = f"buffer_load_dword v2, v4, {WS}, 0 offen sc1"
    def dma(c=0):
        a("s_mov_b64 exec, -1")
        if c:
            a(f"s_lshr_b32 s{s_t0}, s{s_tt}, 3")
            a(f"s_add_u32 s{s_t0}, s{s_t0}, {c}")
            a(f"s_and_b32 s{s_t0}, s{s_t0}, 7")
            a(f"s_mul_i32 s{s_t0}, s{s_t0}, {CH}")
            a(f"s_add_u32 s{s_kvg}, s{s_kvl}, s{s_t0}")
        for hf in range(2):
            a(f"s_add_u32 m0, s{s_kvl}, {KVB + (3-c)*CH + hf*4096}")
            a(f"s_add_u32 s{s_t1}, s{s_kvg}, {WS_KV + hf*4096}")
            for m in range(4): a(f"buffer_load_dwordx4 v{v_l16}, {WS}, s{s_t1} offen offset:{m*1024} sc1 lds")
    a("s_mov_b64 exec, 3")
    if bar:
        a(LD)
        a("s_waitcnt vmcnt(0)")
        a("v_cmp_gt_u32 vcc, 1, v2")
        a("s_cmp_eq_u64 vcc, 0")
        a(f"s_cbranch_scc0 K_late{tag}")
        dma()
        a("s_barrier")
        a(f"s_branch K_done{tag}")
        a.label(f"K_late{tag}")
        a("s_barrier")
    poll(a, f"K_poll{tag}", LD, "v_cmp_gt_u32 vcc, 1, v2", 3)
    dma()
    a.label(f"K_done{tag}")
    a("s_waitcnt vmcnt(0)")
    stamp(a, 2)
    lds_arrive(a, SC_CNT + 16, 2)
    if NF > 1:
        a(f"s_mov_b32 exec_lo, {(1 << (2 * NF)) - 1}")
        a("s_mov_b32 exec_hi, 0")
        poll(a, f"K_more{tag}", LD, "v_cmp_gt_u32 vcc, 1, v2", 3)
        for c in range(1, NF): dma(c)
    a("s_branch F_attn")

def attention(a):
    decode_b(a)
    stamp(a, 8)
    a(f"s_mul_i32 s{s_base}, s{s_tt}, {QH_TT}")
    for r in list(range(KS[0] + 20, KS[0] + (28 if LAY else 24))) + list(range(P0 if LAY else P1, P1 + 4)) + list(range(O, O + 16)):
        a(f"v_mov_b32 v{r}, 0")
    a(f"s_mov_b32 s{s_c}, 0")
    a(f"s_mov_b32 s{s_slot}, {3*CH}")
    a(f"s_mov_b32 s{s_cch}, {(-CH) & 0xffffffff}")
    if PSTEP:
        a(f"s_mov_b32 s{s_tgt}, 0")
        if PSEL == "l":
            a(f"s_bitcmp0_b32 s{s_tt}, 1")
            a("s_cbranch_scc1 B_nops")
        a(f"s_mov_b32 s{s_tgt}, {sum(1 << c for c in PSTEP)}")
        a(f"s_setprio {len(PSTEP) + PBASE}")
        a.label("B_nops")
    a(f"v_mov_b32 v{Q2}, 0")
    a(f"v_mov_b32 v{Q2+1}, 0")
    lds_wait(a, "B_wait", SC_CNT + 16, 4, 2, s_spin, s_t0, BSL)
    stamp(a, 9)
    QLD = "\n".join([f"buffer_load_dwordx2 {vr(Q1,2)}, v{v_g0}, {WS}, s{s_base} offen sc1",
                      f"buffer_load_dwordx2 {vr(Q1+2,2)}, v{v_g0+1}, {WS}, s{s_base} offen sc1",
                      "s_mov_b32 exec_hi, 0",
                      f"buffer_load_dwordx2 {vr(Q2,2)}, v{v_g0+2}, {WS}, s{s_base} offen sc1",
                      "s_mov_b32 exec_hi, -1"])
    def kv_off(kind, t):
        p = (t % 8) // 2 * PAIR; b = t % 2
        return {"K1": p + 1024 * b, "K2": p + 2048, "V0": p + 1536 * b, "V1": p + 1536 * b + 768}[kind]
    def rd(dst, kind, t):
        a(f"ds_read_b128 {vr(dst,4)}, v{v_ka if kind[0] == 'K' else v_va} offset:{kv_off(kind, t)}")
    def group_reads(o):
        n = KS[((o + 1) // 2 + 1) % 2]
        if LAY:
            return [(n + 12, "V0", o + 1), (n + 16, "V1", o + 1), (n, "K1", o + 3), (n + 8, "K2", o + 3),
                    (n + 4, "K1", o + 4), (n + 20, "V0", o + 2), (n + 24, "V1", o + 2)]
        return [(n + 12, "V1", o + 1), (n, "K1", o + 3), (n + 8, "K2", o + 3), (n + 16, "V0", o + 2),
                (n + 20, "V1", o + 2), (n + 4, "K1", o + 4), (n + 24, "V0", o + 3)]
    k0 = KS[0]
    def first_reads():
        rd(k0, "K1", 0); rd(k0 + 8, "K2", 0); rd(k0 + 4, "K1", 1)
        if not LAY: rd(k0 + 24, "V0", 0)
        for r in group_reads(-1)[:4]: rd(*r)
        a(f"v_mov_b32 v2, {SC_CNT + 8}")
    if ka2.QS:
        poll(a, "B_pollqd", QLD, f"v_max3_u32 v3, v{Q1}, v{Q1+1}, v{Q1+2}\nv_max3_u32 v1, v{Q1+3}, v{Q2}, v{Q2+1}\nv_max_u32 v3, v3, v1\nv_cmp_eq_u32 vcc, -1, v3",
             1, between=first_reads)
        a("s_waitcnt lgkmcnt(0)")
    else:
        a(QLD)
        first_reads()
        a("s_waitcnt vmcnt(0) lgkmcnt(0)")
    stamp(a, 10)
    if EARR:
        a("s_mov_b64 exec, 1")
        a(f"ds_add_u32 v2, v{v_one}")
        a("s_mov_b64 exec, -1")
    if EARR == 2: a("s_setprio 1")
    mf(a, S1, k0, Q1, "0"); mf8(a, S1, k0 + 8, Q2)
    mf(a, S0, k0, Q1, "0")
    if not EARR:
        a("s_mov_b64 exec, 1")
        a(f"ds_add_u32 v2, v{v_one}")
        a("s_mov_b64 exec, -1")
    a(f"v_max3_f32 v{VT}, v{S1}, v{S1+1}, v{S1+2}")
    a(f"v_max3_f32 v{VT+1}, v{S1+3}, v{S1+4}, v{S1+5}")
    a(f"v_max3_f32 v{VT+2}, v{S1+6}, v{S1+7}, v{S1+8}")
    a(f"v_max3_f32 v{VT+3}, v{S1+9}, v{S1+10}, v{S1+11}")
    a(f"v_max3_f32 v{VT}, v{VT}, v{S1+12}, v{S1+13}")
    a(f"v_max3_f32 v{VT+1}, v{VT+1}, v{S1+14}, v{S1+15}")
    a(f"v_max3_f32 v{VT}, v{VT}, v{VT+2}, v{VT+3}")
    a(f"v_max_f32 v{VT}, v{VT}, v{VT+1}")
    a(f"v_mov_b32 v{VT+1}, v{VT}")
    a(f"v_permlane32_swap_b32 v{VT}, v{VT+1}")
    a(f"v_max_f32 v{VT}, v{VT}, v{VT+1}")
    a("s_mov_b32 exec_lo, 0")
    a(f"v_cvt_pk_bf16_f32 v{Q2}, -v{VT}, 0")
    a("s_mov_b32 exec_lo, -1")
    mf8(a, S0, k0 + 8, Q2)
    stamp(a, 11); stamp(a, 12, 'cyc')
    a("s_waitcnt lgkmcnt(0)")
    if EARR == 2: a("s_setprio 0")
    a("s_nop 10")
    a.raw(".p2align 6")
    a.label("B_loop")
    start = a.mark()
    for u in range(8):
        Sc, Sn = (S0, S1) if u % 2 == 0 else (S1, S0)
        odd = u % 2
        o = u if odd else u - 1
        ks = KS[((o + 1) // 2) % 2]
        reads = group_reads(o)
        slots = [[reads[0]], [reads[1]], [reads[2]], [reads[3]]] if odd else [[reads[4], reads[5]], [reads[6]], [], []]
        if RSL == 1: slots = [[reads[0], reads[3]], [], [reads[1]], [reads[2]]] if odd else [[reads[4], reads[5]], [], [reads[6]], []]
        if RSL == 2: slots = [[reads[0]], [], [reads[1], reads[3]], [reads[2]]] if odd else [[reads[4]], [], [reads[5], reads[6]], []]
        e = lambda i: a(f"v_exp_f32 v{Sc+i}, v{Sc+i}")
        c = lambda i: a(f"v_cvt_pk_bf16_f32 v{P0+i}, v{Sc+2*i}, v{Sc+2*i+1}")
        cp = lambda i: a(f"v_cvt_pk_bf16_f32 v{P0+i}, v{Sn+2*i}, v{Sn+2*i+1}")
        if LAY:
            rs = list(reads[:4] if odd else reads[4:])
            def misc():
                if u == 0:
                    a(f"ds_add_u32 v{v_cnt}, v{v_one} offset:{256 if COMB else 0}")
                    if PSTEP:
                        a(f"s_bitcmp1_b32 s{s_tgt}, s{s_c}")
                        a("s_cbranch_scc1 B_prio")
                        a.label("B_prioret")
                if u == 4: a(f"ds_read_b32 v{v_chk}, v{v_cnt} offset:256")
                if u == 2:
                    a(f"s_cmp_eq_u32 s{s_slot}, 0")
                    a(f"s_cselect_b32 s{s_delta}, {3*CH}, s{s_cch}")
                if u == 6:
                    a(f"s_add_u32 s{s_c}, s{s_c}, 1")
                    a(f"s_cmp_lt_u32 s{s_c}, 8")
            if odd: a("s_waitcnt lgkmcnt(0)")
            mf(a, Sn, ks + (0 if odd else 4), Q1, "0")
            if u == 5:
                a(f"v_readlane_b32 s{s_t0}, v{v_chk}, s{s_c}")
                a(f"s_add_u32 s{s_slot}, s{s_slot}, s{s_delta}")
                a(f"s_cmp_lt_u32 s{s_t0}, {12 if COMB else 4}")
                if "nospin" not in GX: a("s_cbranch_scc1 B_spin")
                a.label("B_synced")
                a(f"v_add_u32 v{v_ka}, s{s_delta}, v{v_ka}")
            if u == 7: a(f"v_add_u32 v{v_va}, s{s_delta}, v{v_va}")
            if u == 2: a(f"v_mov_b32_dpp v{v_one}, v{v_one} row_shr:1 row_mask:0xf bank_mask:0xf bound_ctrl:0")
            e(0); e(1); e(2)
            mf8(a, Sn, ks + 8 + (0 if odd else 2), Q2)
            rd(*rs.pop(0))
            e(3); e(4); e(5)
            mf(a, O, ks + (12 if odd else 20), P0, O)
            if LAY == 2: rd(*rs.pop(0))
            e(6); e(7); e(8)
            mf(a, O, ks + (16 if odd else 24), P1, O)
            if LAY == 1:
                e(9); e(10); c(0); c(1)
                for r in rs: rd(*r)
                misc()
                c(2); e(11); e(12); c(3); c(4); e(13); e(14); e(15); c(5); c(6); c(7)
            else:
                rd(*rs.pop(0))
                e(9); e(10); c(0)
                for r in rs: rd(*r)
                misc()
                c(1); c(2); e(11); e(12); c(3); c(4); e(13); e(14); e(15); c(5); c(6); c(7)
            continue
        if os.environ.get("CHST") and u == 0: a("s_memtime s[98:99]" if os.environ.get("CHST") == "2" else "s_memrealtime s[98:99]")
        cp(6); e(0); e(1); cp(7); e(2); e(3)
        if odd: a("s_waitcnt lgkmcnt(0)")
        if os.environ.get("CHST") and u == 1:
            sl = [2, 3, 4, 5, 6, 8, 9, 10]
            for k in range(7): a(f"s_mov_b32 s{64+2*sl[k]}, s{64+2*sl[k+1]}")
            a(f"s_mov_b32 s{64+2*sl[7]}, s98")
        mf(a, Sn, ks + (0 if odd else 4), Q1, "0")
        for r in slots[0]: rd(*r)
        if u == 5:
            a(f"v_readlane_b32 s{s_t0}, v{v_chk}, s{s_c}")
            a(f"s_add_u32 s{s_slot}, s{s_slot}, s{s_delta}")
            a(f"s_cmp_lt_u32 s{s_t0}, {12 if COMB else 4}")
            if "nospin" not in GX: a("s_cbranch_scc1 B_spin")
            a.label("B_synced")
        if u == 2:
            a(f"s_cmp_eq_u32 s{s_slot}, 0")
            a(f"s_cselect_b32 s{s_delta}, {3*CH}, s{s_cch}")
        e(4); e(5)
        if u == 5: a(f"v_add_u32 v{v_ka}, s{s_delta}, v{v_ka}")
        if u == 2: a(f"v_mov_b32_dpp v{v_one}, v{v_one} row_shr:1 row_mask:0xf bank_mask:0xf bound_ctrl:0")
        if u == 6: a(f"v_add_u32 v{v_va}, s{s_delta}, v{v_va}")
        c(0); c(1); e(6); e(7)
        mf8(a, Sn, ks + 8 + (0 if odd else 2), Q2)
        for r in slots[1]: rd(*r)
        e(8); e(9); c(2); c(3); e(10); e(11)
        mf(a, O, ks + (12 if odd else 20), P1, O)
        for r in slots[2]: rd(*r)
        if u == 0 and PSTEP:
            a(f"s_bitcmp1_b32 s{s_tgt}, s{s_c}")
            a("s_cbranch_scc1 B_prio")
            a.label("B_prioret")
        if u == 0:
            a(f"ds_add_u32 v{v_cnt}, v{v_one} offset:{256 if COMB else 0}")
        if u == 4: a(f"ds_read_b32 v{v_chk}, v{v_cnt} offset:256")
        e(12); e(13); c(4); c(5); e(14); e(15)
        mf(a, O, ks + (16 if odd else 24), P0, O)
        for r in slots[3]: rd(*r)
        if u == 6:
            a(f"s_add_u32 s{s_c}, s{s_c}, 1")
            a(f"s_cmp_lt_u32 s{s_c}, 8")
    a("s_cbranch_scc1 B_loop")
    if ALIGN: print("loop bytes/fixed", a.align8(start))
    a.check_backedge(start)
    stamp(a, 13); stamp(a, 14, 'cyc')
    if EP3: a("s_setprio 3")
    if LAY:
        mf(a, O, KS[0] + 20, P0, O); mf(a, O, KS[0] + 24, P1, O)
    else:
        for i in (6, 7): a(f"v_cvt_pk_bf16_f32 v{P0+i}, v{S1+2*i}, v{S1+2*i+1}")
        mf(a, O, KS[0] + 20, P1, O)
    if not TRIGST: a(f"ds_add_u32 v{v_cnt}, v{v_one}")
    a(f"ds_read_b32 v{v_chk}, v{v_cnt}")
    a("s_waitcnt lgkmcnt(0)")
    a(f"v_mov_b32 v{VT+2}, {hex(f32bits(2.0**60))}")
    a(f"s_lshl_b32 s{s_base}, s{s_lid}, 3")
    a(f"s_add_u32 s{s_base}, s{s_base}, s{s_w}")
    a(f"s_mul_i32 s{s_base}, s{s_base}, 1280")
    a(f"s_add_u32 s{s_base}, s{s_base}, {WS_O}")
    a(f"v_lshlrev_b32 v{v_g0}, 4, v0")
    a(f"v_lshlrev_b32 v{v_g0+1}, 3, v0")
    a(f"v_mov_b32 v{VT}, v{O+8}")
    a(f"v_mov_b32 v{VT+1}, v{O+8}")
    a(f"v_permlane32_swap_b32 v{VT}, v{VT+1}")
    a(f"v_cmp_nle_f32 vcc, {hex(f32bits(2.0**-60))}, v{VT+1}")
    a(f"v_cmp_nle_f32 s[52:53], v{VT+1}, v{VT+2}")
    a(f"s_or_b64 s[52:53], s[52:53], vcc")
    a("s_cbranch_scc1 B_fallback")
    a.label("B_norm")
    a(f"v_rcp_f32 v{VT}, v{VT+1}")
    for i in range(12): a(f"v_mul_f32 v{O+i}, v{VT}, v{O+i}")
    for i in range(6): a(f"v_cvt_pk_bf16_f32 v{O+i}, v{O+2*i}, v{O+2*i+1}")
    if DRY: a("s_cbranch_execz F_dryret")
    a(f"v_readlane_b32 s{s_t0}, v{v_chk}, 9")
    a(f"s_cmp_eq_u32 s{s_t0}, 4")
    a("s_cbranch_scc1 B_near")
    a(f"buffer_store_dwordx4 {vr(O,4)}, v{v_g0}, {WS}, s{s_base} offen sc1")
    a("s_mov_b32 exec_hi, 0")
    a(f"buffer_store_dwordx2 {vr(O+4,2)}, v{v_g0+1}, {WS}, s{s_base} offen offset:1024 sc1")
    a("s_branch B_done")
    a.label("B_near")
    a(f"buffer_store_dwordx4 {vr(O,4)}, v{v_g0}, {WS}, s{s_base} offen{os.environ.get('ONP', '')}")
    a("s_mov_b32 exec_hi, 0")
    a(f"buffer_store_dwordx2 {vr(O+4,2)}, v{v_g0+1}, {WS}, s{s_base} offen offset:1024{os.environ.get('ONP', '')}")
    a.label("B_done")
    if TRIGST == 2: a("s_waitcnt vmcnt(0)")
    if TRIGST: a(f"ds_add_u32 v{v_cnt}, v{v_one}")
    if STAMP: a("s_waitcnt vmcnt(0)")
    if STAMP:
        stamp(a, 7); stamp(a, 15, True)
        stamp_flush(a, 1, SWS, s_w, 12, 16)
    a("s_endpgm")
    if PSTEP:
        a.label("B_prio")
        for k, c in enumerate(PSTEP):
            a(f"s_setprio {len(PSTEP) - 1 - k + PBASE}")
            a(f"s_cmp_eq_u32 s{s_c}, {c}")
            a("s_cbranch_scc1 B_prioret")
        a("s_branch B_prioret")
    a.label("B_spin")
    a(f"s_mov_b32 s{s_spin}, {SPIN * 40}")
    a.label("B_spin1")
    a(f"s_sleep {os.environ.get('SSL', '4')}")
    a(f"ds_read_b32 v{v_chk}, v{v_cnt} offset:256")
    a("s_waitcnt lgkmcnt(0)")
    a(f"v_readlane_b32 s{s_t0}, v{v_chk}, s{s_c}")
    a(f"s_cmp_ge_u32 s{s_t0}, {12 if COMB else 4}")
    a("s_cbranch_scc1 B_synced")
    a(f"s_sub_u32 s{s_spin}, s{s_spin}, 1")
    a(f"s_cmp_lg_u32 s{s_spin}, 0")
    a("s_cbranch_scc1 B_spin1")
    a("s_branch B_synced")
    a.label("B_fallback")
    a("s_mov_b32 exec_lo, 0")
    a(f"v_mov_b32 v{Q2}, 0")
    a("s_mov_b32 exec_lo, -1")
    a(f"s_add_u32 s{s_slot}, s{s_slot}, {KVB}")
    a(f"v_subrev_u32 v{v_ka}, s{s_slot}, v{v_ka}")
    a(f"v_subrev_u32 v{v_va}, s{s_slot}, v{v_va}")
    a(f"v_mov_b32 v{VT}, 0xff800000")
    for r in range(O, O + 16): a(f"v_mov_b32 v{r}, 0")
    a(f"s_mov_b32 s{s_kvg}, {WS_KV}")
    def ldk():
        for i in range(3): a(f"buffer_load_dwordx4 {vr(k0+4*i,4)}, v{v_ka}, {WS}, s{s_kvg} offen offset:{1024*i} sc1")
    def qk(b):
        S = (S0, S1)[b]
        mf(a, S, k0 + 4 * b, Q1, "0"); mf8(a, S, k0 + 8 + 2 * b, Q2)
    def nxt(lbl):
        a(f"s_add_u32 s{s_kvg}, s{s_kvg}, {PAIR}")
        a(f"s_cmp_lt_u32 s{s_kvg}, {WS_KV + 32*PAIR}")
        a(f"s_cbranch_scc1 {lbl}")
    a.label("B_fb1")
    st = a.mark()
    ldk()
    a("s_waitcnt vmcnt(0)")
    qk(0); qk(1)
    for i in range(0, 32, 2): a(f"v_max3_f32 v{VT}, v{VT}, v{S0+i}, v{S0+i+1}")
    nxt("B_fb1")
    a.check_backedge(st)
    a(f"v_mov_b32 v{VT+1}, v{VT}")
    a(f"v_permlane32_swap_b32 v{VT}, v{VT+1}")
    a(f"v_max_f32 v{VT}, v{VT}, v{VT+1}")
    a(f"s_mov_b32 s{s_kvg}, {WS_KV}")
    a.label("B_fb2")
    st = a.mark()
    ldk()
    for i in range(4): a(f"buffer_load_dwordx4 {vr(k0+12+4*i,4)}, v{v_va}, {WS}, s{s_kvg} offen offset:{768*i} sc1")
    a("s_waitcnt vmcnt(0)")
    qk(0); qk(1)
    for b in range(2):
        S = (S0, S1)[b]
        for i in range(16): a(f"v_sub_f32 v{S+i}, v{S+i}, v{VT}")
        for i in range(16): a(f"v_exp_f32 v{S+i}, v{S+i}")
        for i in range(8): a(f"v_cvt_pk_bf16_f32 v{P0+i}, v{S+2*i}, v{S+2*i+1}")
        mf(a, O, k0 + 12 + 8 * b, P0, O); mf(a, O, k0 + 16 + 8 * b, P1, O)
    nxt("B_fb2")
    a.check_backedge(st)
    a(f"v_mov_b32 v{VT}, v{O+8}")
    a(f"v_mov_b32 v{VT+1}, v{O+8}")
    a(f"v_permlane32_swap_b32 v{VT}, v{VT+1}")
    a("s_nop 1")
    a("s_branch B_norm")

def gemm(a):
    global stamp
    def h_store(sc, vl):
        for k in range(12):
            if k in (4, 10): a("s_add_u32 s53, s53, 4096")
            if k == 6: a(f"s_add_u32 s53, s53, {QH_TT - 4096}")
            a(f"buffer_store_dwordx4 {vr(72+4*k,4)}, v{vl}, {WS}, s53 offen offset:{(k % 6 % 4)*1024}{sc}")
        stamp(a, 3)
    a("s_setprio 3")
    if HEARLY:
        a("s_cmp_eq_u32 s53, -1")
        a("s_cbranch_scc1 G_start")
        if HEARLY > 1: lds_wait(a, "G_wait0", SC_CNT + (16 if HEARLY == 2 else 8), 4 if HEARLY == 2 else HEARLY - 2, 2, s_spin, s_t0, 1)
        h_store(" sc1", 1)
        a.label("G_start")
    lid(a)
    decode_b(a)
    a(f"s_sub_u32 s{s_w}, s{s_w}, 8")
    srd(a, SW2, 56, 1728 * 1280)
    srd(a, SWO, 58, 640 * 1280)
    srd(a, SOUT, 60, 2048 * 1280)
    g = GW(a, 27, 4, 10, STG, PART, SW2, SWS, s_gw)
    v_wd2 = g.v_end
    v_wa2, vfl = 11, v_wd2 + 5
    vx = v_wd2 + 6
    v_wa3 = 0
    s_kw, s_ka, s_w0, s_a0 = 50, 51, 54, 55
    a(f"s_mul_i32 s{s_kvl}, s{s_w}, 6144")
    def kv(c, tag=""):
        if c >= 4: lds_wait(a, f"G_free{c}{tag}", SCW + 4 * (c - 3), NW_, 2, s_spin, s_t0, 4)
        a(f"s_lshr_b32 s{s_kvg}, s{s_tt}, 3")
        a(f"s_add_u32 s{s_kvg}, s{s_kvg}, {c}")
        a(f"s_and_b32 s{s_kvg}, s{s_kvg}, 7")
        a(f"s_mul_i32 s{s_kvg}, s{s_kvg}, {CH}")
        a(f"s_add_u32 s{s_kvg}, s{s_kvg}, s{s_kvl}")
        a(f"s_add_u32 s{s_kvg}, s{s_kvg}, {WS_KV}")
        a(f"s_add_u32 m0, s{s_kvl}, {KVB + (3 - c % 4)*CH}")
        for m in range(4):
            a(f"buffer_load_dwordx4 v{g.v_l16}, {WS}, s{s_kvg} offen offset:{m*1024} sc1 lds"); g.vm.issue(("KV", c))
        a(f"s_add_u32 m0, m0, 4096")
        a(f"s_add_u32 s{s_kvg}, s{s_kvg}, 4096")
        for m in range(2):
            a(f"buffer_load_dwordx4 v{g.v_l16}, {WS}, s{s_kvg} offen offset:{m*1024} sc1 lds"); g.vm.issue(("KV", c))
    def landed(c):
        g.vm.wait(("KV", c))
        a("s_mov_b64 exec, 1")
        a(f"v_mov_b32 v2, {SC_L + 4 * (c - 1)}")
        a(f"v_mov_b32 v3, 1")
        a(f"ds_add_u32 v2, v3"); g.lg.issue("arr")
        a("s_mov_b64 exec, -1")
    s_i4 = s_c
    a(f"s_getreg_b32 s{s_delta}, hwreg(HW_REG_XCC_ID, 0, 4)")
    a(f"s_add_u32 s{s_delta}, s{s_delta}, 16")
    a(f"s_mov_b32 s{s_base}, 0")
    g.setup(s_w, s_hg, s_base)
    a(f"s_and_b32 s{s_t1}, s{s_tt}, 3")
    a(f"s_lshl_b32 s{s_i4}, s{s_t1}, 2")
    s_n = 52
    a(f"s_min_u32 s{s_t0}, s{s_t1}, 2")
    a(f"s_mul_i32 s{s_kw}, s{s_t0}, {NH}")
    a(f"s_cmp_eq_u32 s{s_t1}, 3")
    a(f"s_cselect_b32 s{s_t0}, {NL}, 0")
    a(f"s_add_u32 s{s_kw}, s{s_kw}, s{s_t0}")
    a(f"s_cmp_lt_u32 s{s_t1}, 2")
    a(f"s_cselect_b32 s{s_n}, {NH}, {NL}")
    a(f"s_mul_i32 s{s_w0}, s{s_kw}, {16*1280}")
    a(f"s_mul_i32 s{s_t0}, s{s_hg}, 320")
    a(f"s_add_u32 s{s_w0}, s{s_w0}, s{s_t0}")
    a(f"s_mul_i32 s{s_woff2}, s{s_w}, {160*1280}")
    a(f"s_add_u32 s{s_woff2}, s{s_woff2}, s{s_t0}")
    a(f"s_and_b32 s{s_slot}, s{s_tt}, 0xfc")
    a(f"s_add_u32 s{s_slot}, s{s_slot}, s{s_w}")
    a(f"s_mul_i32 s{s_a0}, s{s_slot}, {QH_TT}")
    a(f"s_lshl_b32 s{s_t0}, s{s_kw}, 10")
    a(f"s_add_u32 s{s_a0}, s{s_a0}, s{s_t0}")
    a(f"s_add_u32 s{s_a0}, s{s_a0}, {WS_QH + 40*1024}")
    a(f"v_mul_u32_u24 v2, 12, v0")
    a(f"s_sub_u32 s{s_t0}, s{s_n}, 1")
    a(f"v_min_u32 v2, s{s_t0}, v2")
    a(f"v_add_u32 v2, s{s_kw}, v2")
    a(f"v_mul_u32_u24 v2, 0x5556, v2")
    a(f"v_lshrrev_b32 v2, 18, v2")
    a(f"s_lshr_b32 s{s_t0}, s{s_tt}, 2")
    a(f"v_mov_b32 v1, s{s_t0}")
    flag_off(a, vfl, 1, 2, 3)
    a(f"s_bfe_u32 s{s_ka}, s{s_tt}, {0x10002 if RB == 1 else 0x20002}")
    a(f"s_lshr_b32 s{s_t0}, s{s_n}, {RB}")
    a(f"s_mul_i32 s{s_ka}, s{s_ka}, s{s_t0}")
    a(f"s_add_u32 s{s_kw}, s{s_ka}, s{s_w}")
    ALT = {31: 2 * CH, 32: CH, 33: 0}
    cur = {"ns": None}
    def dma5(vd, S, tag):
        for m in range(4):
            a(f"buffer_load_dwordx4 v{vd+m}, {S}, s{g.s_woff} offen offset:{m*1024} lds"); g.vm.issue(tag)
        a(f"s_add_u32 m0, m0, 4096")
        a(f"buffer_load_dwordx4 v{vd+4}, {S}, s{g.s_woff} offen lds"); g.vm.issue(tag)
    def load_stage(st):
        a(f"s_cmp_ge_u32 s{s_kw}, s{s_n}")
        a(f"s_cselect_b32 s{s_t0}, s{s_n}, 0")
        a(f"s_sub_u32 s{s_kw}, s{s_kw}, s{s_t0}")
        a(f"s_mul_i32 s{g.s_woff}, s{s_kw}, {16*1280}")
        a(f"s_add_u32 s{g.s_woff}, s{g.s_woff}, s{s_w0}")
        a(f"s_add_u32 s{s_kw}, s{s_kw}, 4")
        if cur["ns"] is None:
            oh, ol = [((st - (n + 3) // 4 + 1) % 3) * 5120 for n in (NH, NL)]
            a(f"s_movk_i32 s{s_t0}, {oh}")
            a(f"s_cmp_ge_u32 s{s_i4}, 8")
            a(f"s_cselect_b32 s{s_t0}, {ol}, s{s_t0}")
            a(f"s_add_u32 m0, s{g.s_lds}, s{s_t0}")
        else: a(f"s_add_u32 m0, s{g.s_lds}, {((st - cur['ns'] + 1) % 3)*5120}")
        dma5(g.v_wd, f"s[{SW2}:{SW2+3}]", ("S", st))
    def load_w(i):
        j = i - 27
        row = 80 * (j // 5) + (20 * (j % 5) if j % 5 < 4 else 16)
        a(f"s_add_u32 s{g.s_woff}, s{s_woff2}, {row*1280}")
        if i in ALT:
            a(f"s_mul_i32 s{s_t0}, s{s_w}, 5120")
            a(f"s_add_u32 m0, s{s_t0}, {KVB + CH + ALT[i]}")
        else: a(f"s_add_u32 m0, s{g.s_lds}, {(i % 3)*5120}")
        dma5(v_wd2 if j % 5 == 4 else g.v_wd, f"s[{SWO}:{SWO+3}]", ("W", i))
    def areg(i): return g.v_act + 4 * ((i - 100) % 8 if i >= 100 else i - 27)
    def load_a(i):
        a(f"s_lshl_b32 s{g.s_aoff}, s{s_ka}, 10")
        a(f"s_add_u32 s{g.s_aoff}, s{g.s_aoff}, s{s_a0}")
        a(f"s_add_u32 s{s_ka}, s{s_ka}, 1")
        a(f"s_cmp_eq_u32 s{s_ka}, s{s_n}")
        a(f"s_cselect_b32 s{s_ka}, 0, s{s_ka}")
        a(f"buffer_load_dwordx4 {vr(areg(i),4)}, v{g.v_l16}, {WS}, s{g.s_aoff} offen sc1"); g.vm.issue(("A", i))
    def rd_t(i, T):
        if i >= 100: base, off = g.v_wa, (i % 4) * PART + (((i - 100) // 4 - cur['ns'] + 1) % 3) * 5120
        else: base, off = (v_wa3, ALT[i]) if i in ALT else (g.v_wa, (i % 3) * 5120)
        for p in range(2):
            a(f"ds_read_b64_tr_b16 {vr(g.v_wf+4*T+2*p,2)}, v{base} offset:{off + T*64 + p*2560}"); g.lg.issue((i, T))
    def rd_w(i):
        g.vm.wait(("W", i))
        for T in range(5): rd_t(i, T)
    def mm(i, nxt=None, pm=0):
        g.vm.wait(("A", i), ("W", nxt))
        low = not 32 <= i < 100
        for T in range(5):
            if low and (pm >> T & 1) != ((pm >> (T - 1) & 1) if T else 1): a(f"s_setprio {3 * (pm >> T & 1)}")
            g.lg.wait((i, T))
            acc = vr(g.v_acc + 16 * T, 16)
            a(f"v_mfma_f32_32x32x16_bf16 {acc}, {vr(g.v_wf+4*T,4)}, {vr(areg(i),4)}, {acc if i != 100 else 0}")
            if nxt is not None: rd_t(nxt, T)
        if low and not pm >> 4 & 1: a("s_setprio 3")
    def sync(st, tag=""):
        g.vm.wait(("S", st))
        lds_arrive(a, SC_CNT + 32 + 4 * st, 2)
        lds_wait(a, f"G_sync{st}{tag}", SC_CNT + 32 + 4 * st, 4, 2, s_spin, s_t0, 1)
        g.lg.q = []
    g.setup2()
    a(f"v_subrev_u32 v{g.v_wa}, s{g.s_lds}, v{g.v_wa}")
    for m in range(5):
        a(f"v_add_u32 v1, {64*m}, v0")
        a(f"v_mul_u32_u24 v2, 0xcccd, v1")
        a(f"v_lshrrev_b32 v2, 22, v2")
        a(f"v_mul_u32_u24 v2, {16*1280}, v2")
        a(f"v_add_u32 v{v_wd2+m}, v2, v{g.v_wd+m}")
    if HEARLY:
        lds_wait(a, "G_wait", SC_CNT + 8, 8, 2, s_spin, s_t0, 1)
        for c in range(1, NF): landed(c)
        a(f"v_mov_b32 v2, 14")
        flag_off(a, g.v_wf, 0, 2, 3)
        def pubh():
            if WE:
                a("s_mov_b64 exec, -1")
                for st in range(WE): load_stage(st)
            a("s_cmp_eq_u32 s53, -1")
            a("s_cbranch_scc1 G_noh")
            publish(a, "G_pub", 0, 4, 3, WS_FL, 1, vm=1 + 5 * WE)
            stamp(a, 4)
            a.label("G_noh")
            a("s_mov_b32 exec_lo, 0xffff")
            a("s_mov_b32 exec_hi, 0")
        a("s_mov_b32 exec_lo, 0xffff")
        a("s_mov_b32 exec_hi, 0")
        poll(a, "G_pollkv", f"buffer_load_dword v{g.v_wf+1}, v{g.v_wf}, {WS}, 0 offen sc1", f"v_cmp_gt_u32 vcc, 1, v{g.v_wf+1}", 6, between=pubh)
        a("s_mov_b64 exec, -1")
        g.vm.q = []
        for c in range(NF, 4): kv(c)
    else:
        a(f"v_mov_b32 v2, 14")
        flag_off(a, 1, 0, 2, 3)
        a("s_mov_b32 exec_lo, 0xffff")
        a("s_mov_b32 exec_hi, 0")
        poll(a, "G_pollkv", f"buffer_load_dword v2, v1, {WS}, 0 offen sc1", "v_cmp_gt_u32 vcc, 1, v2", 6)
        a("s_mov_b64 exec, -1")
        lds_wait(a, "G_wait", SC_CNT + 8, GW_N, 2, s_spin, s_t0, 1)
        for c in range(1, NF): landed(c)
        first = list(range(NF, NF + HORD)); later = list(range(NF + HORD, 4))
        for c in first: kv(c)
        a("s_cmp_eq_u32 s53, -1")
        a("s_cbranch_scc1 G_noh")
        if not HEARLY: h_store(" sc1", g.v_l16)
        q0 = list(g.vm.q)
        g.vm.q += ["H"] * 12
        for c in first: landed(c)
        for c in later: kv(c)
        publish(a, "G_pub", 0, 4, 3, WS_FL, 1, vm=6 * len(later))
        stamp(a, 4)
        a("s_branch G_noh2")
        a.label("G_noh")
        g.vm.q = q0
        for c in later: kv(c)
        for c in first: landed(c)
        a.label("G_noh2")
        g.vm.q = [("KV", c) for c in later for _ in range(6)]
        for c in later: landed(c)
    for st in range(WE, NS0): load_stage(st)
    if HEARLY and not LL:
        for c in range(NF, 4): landed(c)
    stamp(a, 8)
    a("s_mov_b64 exec, 15")
    poll(a, "G_pollh", f"buffer_load_dword v2, v{vfl}, {WS}, 0 offen sc1", "v_cmp_gt_u32 vcc, 1, v2", 4)
    a("s_mov_b64 exec, -1")
    g.vm.q = []
    stamp(a, 9)
    if STAMP: a("s_waitcnt lgkmcnt(0)")
    for i in range(100, 104): load_a(i)
    if LL:
        for c in range(NF, 4): landed(c)
    for st in range(NS0, 3): load_stage(st)
    for i in range(104, 108): load_a(i)
    vl = vfl
    a(f"v_mov_b32 v{vl}, v0")
    a(f"s_mul_i32 s{s_base}, s{s_tt}, {32*1280}")
    a(f"s_mul_i32 s{s_t0}, s{s_hg}, 320")
    a(f"s_add_u32 s{s_base}, s{s_base}, s{s_t0}")
    a(f"s_mul_i32 s{s_t0}, s{s_w}, {8*1280}")
    a(f"s_add_u32 s{s_base}, s{s_base}, s{s_t0}")
    a(f"v_and_b32 v1, 31, v0")
    a(f"v_lshrrev_b32 v2, 5, v0")
    def item(e, vg_, vr_=None):
        a(f"v_add_u32 v2, {64*e}, v{vl}")
        a(f"v_mul_u32_u24 v3, 0xcccd, v2")
        a(f"v_lshrrev_b32 v3, 21, v3")
        if vr_ is not None:
            a(f"v_xor_b32 v{vr_}, v2, v3")
            a(f"v_lshlrev_b32 v{vr_}, 4, v{vr_}")
        a(f"v_mul_u32_u24 v3, 960, v3")
        a(f"v_lshl_add_u32 v{vg_}, v2, 3, v3")
    a(f"v_mul_u32_u24 v{v_wa2}, 1280, v2")
    a(f"v_lshl_add_u32 v{v_wa2}, v1, 3, v{v_wa2}")
    a(f"v_mul_u32_u24 v1, 0xcccd, v0")
    a(f"v_lshrrev_b32 v1, 18, v1")
    a(f"v_mul_u32_u24 v2, 5, v1")
    a(f"v_sub_u32 v2, v0, v2")
    a(f"v_mul_u32_u24 v1, 1280, v1")
    a(f"v_lshl_add_u32 v{vx}, v2, 6, v1")
    a(f"s_mul_i32 s{s_t0}, s{s_w}, 5120")
    a(f"s_add_u32 s{s_t0}, s{s_t0}, {KVB + CH}")
    a(f"v_add_u32 v{v_wa3}, s{s_t0}, v{g.v_wa}")
    for r in range(4): a(f"v_mov_b32 v{vx+4+r}, -1")
    sync(0)
    def ffn(N, tag, kvat, pm, alt):
        ns = (N + 3) // 4
        cur["ns"] = ns
        for T in range(5): rd_t(100, T)
        assert EV + 3 <= kvat[-1] < ns and ns >= EV + 5
        for st in range(ns):
            if st in kvat: kv(4 + kvat.index(st), tag)
            n = min(4, N - 4 * st)
            for j in range(n):
                i = 100 + 4 * st + j
                if j == 3 and st + 1 < ns and SPLIT:
                    g.vm.wait(("S", st + 1))
                    lds_arrive(a, SC_CNT + 32 + 4 * (st + 1), 2); g.lg.issue("arr")
                    mm(i, None, pm)
                    lds_wait(a, f"G_sync{st+1}{tag}", SC_CNT + 32 + 4 * (st + 1), 4, 2, s_spin, s_t0, 1)
                    g.lg.q = []
                    for T in range(5): rd_t(i + 1, T)
                    if st + 3 < ns: load_stage(st + 3)
                    else: load_w(28 + st + 3 - ns)
                    continue
                if j == 3 and st + 1 < ns:
                    sync(st + 1, tag)
                    if st + 3 < ns: load_stage(st + 3)
                    else: load_w(28 + st + 3 - ns)
                mm(i, i + 1 if i + 1 < 100 + N else None, pm)
                if j == min(LJ, n - 1) and st in kvat: landed(4 + kvat.index(st))
            for i in range(4 * st + 8, min(4 * st + 12, N)): load_a(100 + i)
            if st == EV:
                a(f"s_lshl_b32 s{s_t0}, s{s_lid}, 2")
                a(f"s_add_u32 s{s_t0}, s{s_t0}, s{s_w}")
                a(f"s_mul_i32 s{s_t0}, s{s_t0}, 2560")
                a(f"s_add_u32 s{s_t0}, s{s_t0}, {WS_O}")
                for o in (0, 1024, 1536):
                    a(f"buffer_store_dwordx4 {vr(vx+4,4)}, v{g.v_l16}, {WS}, s{s_t0} offen offset:{o} sc1"); g.vm.issue("R")
            if st == EV + 1:
                a(f"s_bfe_u32 s{s_t0}, s{s_tt}, 0x30002")
                a(f"s_mul_i32 s{s_t0}, s{s_t0}, {20*1280}")
                a(f"s_add_u32 s{s_t0}, s{s_t0}, s{s_woff2}")
                a(f"s_add_u32 s{s_t1}, s{s_t0}, {10*1280}")
                a(f"buffer_load_dword v{vx+2}, v{vx}, s[{SWO}:{SWO+3}], s{s_t0} offen"); g.vm.issue("P")
                a(f"buffer_load_dword v{vx+3}, v{vx}, s[{SWO}:{SWO+3}], s{s_t1} offen"); g.vm.issue("P")
            if st == EV + 2:
                g.vm.wait("R")
                publish(a, f"G_pubr{tag}", 4, 4, s_lid, WS_FL + 32768, 1, value=f"s{s_delta}", vm=63, word=s_i4)
                g.lg.q = []
            if st == EV + 3:
                g.vm.wait("P", "R")
                for e in range(5):
                    item(e, 1)
                    a(f"buffer_load_dwordx2 {vr(vx+2*e,2)}, v1, s[{SX}:{SX+3}], s{s_base} offen"); g.vm.issue("X")
            if st == ns - 2:
                a(f"s_lshl_b32 s{s_t0}, s{s_tt}, 2")
                a(f"s_add_u32 s{s_t0}, s{s_t0}, s{s_w}")
                a(f"s_lshl_b32 s{s_t0}, s{s_t0}, 7")
                a(f"s_add_u32 s{s_t0}, s{s_t0}, s{s_i4}")
                a(f"s_add_u32 s{s_cch}, s{s_t0}, {WS_FL + 32768}")
                a(f"buffer_load_dword v1, off, {WS}, s{s_cch} sc1"); g.vm.issue("M")
            for k in range(2):
                if st == ns - 1 - alt[k]:
                    lds_wait(a, f"G_alt{k}{tag}", SCW + 20 + 4 * k, NW_, 2, s_spin, s_t0, 2)
                    g.lg.q = []
                    load_w(31 + k)
            if st in (0, 3):
                stamp(a, {0: 10, 3: 11}[st])
                if STAMP: a("s_waitcnt lgkmcnt(0)")
        g.vm.wait("M")
    if NH != NL or KVH != KVL or PMH != PML or ALH != ALL:
        a(f"s_cmp_ge_u32 s{s_i4}, 8")
        a("s_cbranch_scc1 G_light")
        vq, lq = list(g.vm.q), list(g.lg.q)
        ffn(NH, "h", KVH, PMH, ALH)
        a("s_branch G_ffnend")
        a.label("G_light")
        g.vm.q, g.lg.q = vq, lq
        ffn(NL, "l", KVL, PML, ALL)
        a.label("G_ffnend")
    else:
        ffn(NH, "h", KVH, PMH, ALH)
    g.vm.q = []; g.lg.q = []
    stamp(a, 12)
    a("v_cmp_gt_u32 vcc, 1, v1")
    a("s_cmp_eq_u64 vcc, 0")
    a("s_cbranch_scc1 G_pollm_ok")
    poll(a, "G_pollm", f"buffer_load_dword v1, off, {WS}, s{s_cch} sc1", "v_cmp_gt_u32 vcc, 1, v1", 8)
    a(f"v_readfirstlane_b32 s{s_t0}, v1")
    a(f"s_cmp_lg_u32 s{s_t0}, s{s_delta}")
    a("s_cbranch_scc1 G_novote")
    if FASTO: lds_arrive(a, SC_K + 36, 2)
    a.label("G_novote")
    pk = g.v_act
    lds_arrive(a, SC_CNT + 96, 2)
    a(f"s_lshl_b32 s{s_t0}, s{s_w}, 2")
    a(f"s_cmp_eq_u32 s{s_t0}, s{s_i4}")
    a("s_cbranch_scc1 G_keep")
    a(f"s_lshl_b32 s{s_t0}, s{s_lid}, 2")
    a(f"s_add_u32 s{s_t0}, s{s_t0}, s{s_w}")
    a(f"s_mul_i32 s{s_t0}, s{s_t0}, 10240")
    a(f"s_add_u32 s{s_t0}, s{s_t0}, {WS_P}")
    def pick(name, body):
        if not NEARP: body(" sc1"); return
        a(f"s_cmp_eq_u32 s52, s{s_delta}")
        a(f"s_cbranch_scc1 {name}_n")
        body(" sc1")
        a(f"s_branch {name}_e")
        a.label(f"{name}_n")
        body(os.environ.get("NPOL", "") if name == "G_snd" else "")
        a.label(f"{name}_e")
    def snd(sc):
        a("s_nop 7")
        for k in range(10):
            for r in range(4): a(f"v_cvt_pk_bf16_f32 v{pk+4*k+r}, v{g.v_acc+8*k+2*r}, v{g.v_acc+8*k+2*r+1}")
            if k in (4, 8): a(f"s_add_u32 s{s_t0}, s{s_t0}, 4096")
            a(f"buffer_store_dwordx4 {vr(pk+4*k,4)}, v{g.v_l16}, {WS}, s{s_t0} offen offset:{(k%4)*1024}{sc}")
    pick("G_snd", snd)
    a.label("G_keep")
    def not_owner(lbl):
        a(f"s_lshl_b32 s{s_t1}, s{s_w}, 2")
        a(f"s_cmp_eq_u32 s{s_t1}, s{s_i4}")
        a(f"s_cbranch_scc1 {lbl}")
    lds_wait(a, "G_sync7", SC_CNT + 96, 4, 2, s_spin, s_t0, 1)
    g.lg.q = []
    a(f"v_add_u32 v{g.v_wa}, s{g.s_lds}, v{g.v_wa}")
    load_w(27)
    a(f"s_lshl_b32 s{s_t0}, s{s_tt}, 2")
    a(f"s_add_u32 s{s_t0}, s{s_t0}, s{s_w}")
    a(f"s_mul_i32 s{g.s_aoff}, s{s_t0}, 10240")
    a(f"s_add_u32 s{g.s_aoff}, s{g.s_aoff}, {WS_O}")
    a(f"s_add_u32 s{s_a0}, s{g.s_aoff}, 5120")
    a(f"s_lshl_b32 s{s_slot}, s{s_slot}, 2")
    a(f"s_add_u32 s{s_slot}, s{s_slot}, s{s_hg}")
    a(f"s_lshl_b32 s{s_t1}, s{s_slot}, 7")
    a(f"s_add_u32 s{s_t1}, s{s_t1}, s{s_i4}")
    a(f"s_add_u32 s{s_kvg}, s{s_t1}, {WS_FL + 32768}")
    not_owner("G_keep2")
    a(f"s_lshl_b32 s{s_t0}, s{s_lid}, 7")
    a(f"s_add_u32 s{s_t0}, s{s_t0}, s{s_t1}")
    a(f"s_add_u32 s{s_t0}, s{s_t0}, {WS_FL + 32768}")
    a("v_mov_b32 v1, 1")
    a("s_waitcnt vmcnt(5)")
    a("s_mov_b64 exec, 1")
    pick("G_sfl", lambda sc: a(f"buffer_store_dword v1, off, {WS}, s{s_t0}{sc}"))
    a("s_mov_b64 exec, -1")
    a.label("G_keep2")
    if TAILST: stamp(a, 8)
    assert (ALH[1] < 0) == (ALL[1] < 0) and ALH[0] >= 0 and ALL[0] >= 0
    rd_w(27); g.lg.drain(); load_w(30)
    if ALH[1] < 0:
        lds_wait(a, "G_alt1x", SCW + 24, NW_, 2, s_spin, s_t0, 2)
        load_w(32)
    def unpack(k0_, k1_):
        for k in range(k0_, k1_):
            for r in range(4):
                a(f"v_lshlrev_b32 v{g.v_acc+8*k+2*r}, 16, v{pk+4*k+r}")
                a(f"v_and_b32 v{g.v_acc+8*k+2*r+1}, s{s_cch}, v{pk+4*k+r}")
    a(f"s_mov_b32 s{s_cch}, 0xffff0000")
    not_owner("G_keep3")
    poll(a, "G_pollr", f"buffer_load_dword v1, off, {WS}, s{s_kvg} sc1", "v_cmp_gt_u32 vcc, 1, v1", 2)
    a(f"s_mul_i32 s{s_t0}, s{s_slot}, 40960")
    a(f"s_mul_i32 s{s_t1}, s{s_i4}, 2560")
    a(f"s_add_u32 s{s_t0}, s{s_t0}, s{s_t1}")
    a(f"s_add_u32 s{s_t0}, s{s_t0}, {WS_P}")
    for k in range(10):
        if k in (4, 8): a(f"s_add_u32 s{s_t0}, s{s_t0}, 4096")
        a(f"buffer_load_dwordx4 {vr(pk+4*k,4)}, v{g.v_l16}, {WS}, s{s_t0} offen offset:{(k%4)*1024} sc1")
    a("s_waitcnt vmcnt(5)")
    unpack(0, 5)
    a.label("G_keep3")
    stamp(a, 5)
    lds_wait(a, "G_trig0", SC_K + 32, TRIG[0], 2, s_spin, s_t0, 1)
    def o_poll(half):
        b = areg(27 + 5 * half)
        so = g.s_aoff if half == 0 else s_a0
        ld = [f"buffer_load_dwordx4 {vr(b+4*j,4)}, v{g.v_l16}, {WS}, s{so} offen offset:{j*1280}{os.environ.get('OLP', ' sc1')}" for j in range(4)]
        ld += [f"buffer_load_dwordx2 {vr(b+16+2*j,2)}, v{v_wa2}, {WS}, s{so} offen offset:{1024+2560*j}{os.environ.get('OLP', ' sc1')}" for j in range(2)]
        ck = [f"v_max3_u32 v{1+k}, v{b+3*k}, v{b+3*k+1}, v{b+3*k+2}" for k in range(3)]
        ck += [f"v_max3_u32 v{1+k}, v{1+k}, v{b+9+2*k}, v{b+10+2*k}" for k in range(3)]
        ck += [f"v_max3_u32 v1, v1, v{b+15}, v{b+16}", f"v_max3_u32 v2, v2, v{b+17}, v{b+18}", f"v_max_u32 v3, v3, v{b+19}",
               "v_max3_u32 v1, v1, v2, v3", "v_cmp_eq_u32 vcc, -1, v1"]
        return "\n".join(ld), "\n".join(ck)
    def rest():
        not_owner("G_keep4")
        a("s_waitcnt vmcnt(6)")
        unpack(5, 10)
        a.label("G_keep4")
    poll(a, "G_pollo0", *o_poll(0), OSL[0], between=rest)
    g.vm.q = []
    if TAILST: stamp(a, 6); a("s_waitcnt lgkmcnt(0)")
    lds_wait(a, "G_alt1", SCW + 28, NW_, 2, s_spin, s_t0, 1)
    load_w(33)
    for i in range(27, 31):
        mm(i, i + 1)
        if 28 <= i <= 30: load_w(i + 6)
    xf = g.v_act
    VG, VR, VW = g.v_wd, v_wd2, vx
    def fin_setup():
        for e in range(5):
            a(f"v_lshlrev_b32 v{xf+4*e}, 16, v{vx+2*e}")
            a(f"v_and_b32 v{xf+4*e+1}, s{s_cch}, v{vx+2*e}")
            a(f"v_lshlrev_b32 v{xf+4*e+2}, 16, v{vx+2*e+1}")
            a(f"v_and_b32 v{xf+4*e+3}, s{s_cch}, v{vx+2*e+1}")
        for e in range(5): item(e, VG + e, VR + e)
        X3 = KVB + CH + ALT[31]
        a(f"s_mul_i32 s{s_t0}, s{s_w}, 5120")
        a(f"s_add_u32 s{s_t1}, s{s_t0}, {X3 - 3*5120}")
        a(f"v_and_b32 v2, 31, v{vl}")
        a(f"v_mov_b32 v3, s{g.s_lds}")
        a(f"v_mov_b32 v1, s{s_t1}")
        a(f"v_cmp_lt_u32 vcc, 23, v2")
        a(f"v_cndmask_b32 v3, v3, v1, vcc")
        a(f"v_mul_u32_u24 v2, 640, v2")
        a(f"v_add_u32 v3, v3, v2")
        a(f"v_lshrrev_b32 v2, 5, v{vl}")
        a(f"v_and_b32 v1, 7, v{vl}")
        a(f"v_xor_b32 v2, v2, v1")
        for q in range(4):
            a(f"v_xor_b32 v1, {2*q}, v2")
            a(f"v_lshl_add_u32 v{VW+q}, v1, 4, v3")
        a(f"s_cmp_eq_u32 s{s_w}, 3")
        a(f"s_cselect_b32 s24, {X3}, s{s_t0}")
        a(f"s_movk_i32 s{s_t1}, {PART}")
        a(f"s_cselect_b32 s{s_t1}, 5120, s{s_t1}")
        for k in range(1, 4): a(f"s_add_u32 s{24+k}, s{23+k}, s{s_t1}")
    def last_first():
        for _ in range(6): g.vm.issue("O")
        mm(31, 32)
        stamp(a, 2)
        fin_setup()
    assert SPEC
    if SPEC:
        if TR1:
            ld1, ck1 = o_poll(1)
            a(ld1)
            last_first()
            a("s_waitcnt vmcnt(0)")
            a(ck1)
            a("s_cmp_eq_u64 vcc, 0")
            a("s_cbranch_scc1 G_pollo1_ok")
            lds_wait(a, "G_trig1", SC_K + 32, TR1, 2, s_spin, s_t0, 1)
            poll(a, "G_pollo1", ld1, ck1, 0)
        else:
            poll(a, "G_pollo1", *o_poll(1), OSL[1], between=last_first)
    else:
        mm(31, 32)
        stamp(a, 2)
        lds_wait(a, "G_trig1", SC_K + 32, TRIG[1], 2, s_spin, s_t0, 1)
        g.lg.q = []
        poll(a, "G_pollo1", *o_poll(1), OSL[1])
    g.vm.q = []
    a("s_setprio 3")
    stamp(a, 13)
    if STAMP: a("s_waitcnt lgkmcnt(0)")
    for i in range(32, 37): mm(i, i + 1 if i < 36 else None)
    stamp(a, 14)
    for T in range(5):
        for q in range(4): a(f"ds_write_b128 v{VW+q}, {vr(g.v_acc+16*T+4*q,4)} offset:{T*128}")
    a("s_waitcnt lgkmcnt(0)")
    if TAILST: stamp(a, 10)
    a("s_barrier")
    if TAILST: stamp(a, 11); a("s_waitcnt lgkmcnt(0)")
    for e in range(5):
        for k in range(4):
            a(f"v_add_u32 v{VW+4+k}, s{24+k}, v{VR+e}")
        for k in range(4):
            a(f"ds_read_b128 {vr(g.v_acc+16*e+4*k,4)}, v{VW+4+k}"); g.lg.issue(e)
        if e >= 2: fin_tile(a, g, e - 2, xf, VG + e - 2)
    fin_tile(a, g, 3, xf, VG + 3); fin_tile(a, g, 4, xf, VG + 4)
    if STAMP:
        if TAILST: stamp(a, 9)
        a("s_waitcnt vmcnt(0)"); stamp(a, 7); stamp(a, 15, True)
        a(f"s_add_u32 s{s_w}, s{s_w}, 8")
        stamp_flush(a, 1, SWS, s_w, 12, 16, gsel=[(9, False), (10, False), (12, False), (13, False), (14, False), (15, False)], goff=8)
    if os.environ.get("PADT"):
        a.label("G_pad")
        a("s_memrealtime s[68:69]")
        a("s_waitcnt lgkmcnt(0)")
        a("s_sub_u32 s68, s68, s66")
        a(f"s_cmp_lt_u32 s68, {os.environ['PADT']}")
        a("s_cbranch_scc1 G_pad")
    a("s_endpgm")
    return vx + 10

def fin_tile(a, g, T, xf, vo):
    b = g.v_acc + 16 * T
    g.lg.wait(T)
    for h in range(2):
        a(f"v_pk_add_f32 {vr(b+2*h,2)}, {vr(b+2*h,2)}, {vr(b+4+2*h,2)}")
        a(f"v_pk_add_f32 {vr(b+8+2*h,2)}, {vr(b+8+2*h,2)}, {vr(b+12+2*h,2)}")
    for h in range(2):
        a(f"v_pk_add_f32 {vr(b+2*h,2)}, {vr(b+2*h,2)}, {vr(xf+4*T+2*h,2)}")
    for h in range(2):
        a(f"v_pk_add_f32 {vr(b+2*h,2)}, {vr(b+2*h,2)}, {vr(b+8+2*h,2)}")
    a(f"v_cvt_pk_bf16_f32 v{b}, v{b}, v{b+1}")
    a(f"v_cvt_pk_bf16_f32 v{b+1}, v{b+2}, v{b+3}")
    a(f"buffer_store_dwordx2 {vr(b,2)}, v{vo}, s[{SOUT}:{SOUT+3}], s{s_base} offen{os.environ.get('OUTP', ' nt')}")

def gen_f(a, name="parallel_sum__grouped_kv_mqa__dense_activation_relu__prompt_kernel"):
    kernel_header(a, name)
    a("s_cmp_ge_u32 s2, 256")
    a("s_cbranch_scc1 F_end")
    stamp(a, 0, True); stamp(a, 1)
    if os.environ.get("PADT"): a("s_memrealtime s[66:67]")
    def clear_cnt(a):
        a("v_lshlrev_b32 v1, 2, v0")
        a(f"v_add_u32 v1, {SC_CNT}, v1")
        a("v_mov_b32 v2, 0")
        a("ds_write_b32 v1, v2")
        a("ds_write_b32 v1, v2 offset:256")
        a("v_cmp_lt_u32 vcc, 6, v0")
        a("v_cndmask_b32 v2, 0, 4, vcc")
        a("ds_write_b32 v1, v2 offset:512")
        a("s_waitcnt lgkmcnt(0)")
    def start_hook(a):
        clear_cnt(a)
        attn_addr(a)
        if TLBW:
            a(f"s_cmp_lg_u32 s{s_w}, 5")
            a("s_cbranch_scc1 F_notlb")
            for _ in range(TLBW - 1): a("s_barrier")
            a(f"v_lshlrev_b32 v1, {TLBS}, v0")
            a(f"v_add_u32 v1, 0x100, v1")
            for ptr, n in ((56, 1728 * 1280), (58, 640 * 1280), (60, 2048 * 1280)):
                srd(a, 16, ptr, n)
                a(f"buffer_load_dword v2, v1, s[16:19], 0 offen")
            for k in range((WS_SIZE >> TLBS) // 64 + 1):
                a(f"s_mov_b32 s35, {k * 64 << TLBS}")
                a(f"buffer_load_dword v2, v1, {WS}, s35 offen sc1")
            for _ in range(10 - (TLBW - 1)): a("s_barrier")
            a("s_waitcnt vmcnt(0)")
            a("s_branch F_attn")
            a.label("F_notlb")
    def pre_ba(a):
        attn_addr(a)
        q_probe(a)
    def done_help(a): a("s_branch F_fetch")
    def done_stats(a): a("s_branch F_dry" if DRY else "s_branch F_attn")
    def done_comp(a): a("s_branch F_pub")
    def spare(a):
        ka2.produce_stats(a)
        clear_cnt(a)
        attn_addr(a)
        a(f"s_cmp_lg_u32 s{s_w}, 0")
        a("s_cbranch_scc1 F_sp1")
        ka2.dbg_check(a, "F_dbg")
        a.label("F_sp1")
        a("s_barrier")
        a(f"s_cmp_ge_u32 s{s_w}, 8")
        a("s_cbranch_scc1 F_gemm0")
        q_probe(a)
        a(f"s_cmp_lt_u32 s{s_w}, 5")
        a("s_cbranch_scc1 F_fetch")
        fetch_kv(a, "s", False)
    phase_a(a, done_help, done_stats, done_comp, spare, start_hook, pre_ba, lambda a: fetch_kv(a, 'i', True))
    a.label("F_fetch")
    fetch(a)
    a.label("F_attn")
    attention(a)
    if DRY:
        a.label("F_dry")
        a(f"s_cmp_eq_u32 s{s_w}, 4")
        a("s_cbranch_scc1 F_attn")
        a("s_mov_b64 exec, 0")
        a(f"s_mov_b32 s{s_c}, 7")
        a(f"s_cmp_eq_u32 s{s_w}, 5")
        a("s_cbranch_scc1 B_loop")
        a(f"s_cmp_eq_u32 s{s_w}, 6")
        a("s_cbranch_scc1 B_u3")
        a("s_branch B_synced")
        a.label("F_dryret")
        a("s_mov_b64 exec, -1")
        a("s_nop 7")
        a("s_nop 7")
        a("s_branch F_attn")
    a.label("F_pub")
    stamp(a, 3)
    if WFL:
        a(f"s_and_b32 s{s_t0}, s3, 15")
        a(f"s_cmp_eq_u32 s{s_t0}, 14")
        a("s_cbranch_scc1 F_pubkv")
        a(f"s_lshl_b32 s{s_t0}, s3, 5")
        a(f"s_add_u32 s{s_t0}, s{s_t0}, s{s_w}")
        a(f"s_lshl_b32 s{s_t0}, s{s_t0}, 2")
        a(f"s_add_u32 s{s_t0}, s{s_t0}, {WS_FL - 32}")
        a("v_mov_b32 v1, 1")
        a("s_mov_b64 exec, 1")
        a("s_waitcnt vmcnt(0)")
        a(f"buffer_store_dword v1, off, {WS}, s{s_t0} sc1")
        lds_arrive(a, SC_CNT, 2)
        a("s_branch F_pub2")
        a.label("F_pubkv")
    publish(a, "F_pub2", 0, 4, 3, WS_FL, 1)
    stamp(a, 4)
    lds_wait(a, "F_all", SC_CNT, 4, 2, s_spin, s_t0)
    a.label("F_gemm0")
    a("s_mov_b32 s53, -1")
    a.label("F_gemm")
    nv = gemm(a)
    a.label("F_end")
    a("s_endpgm")
    assert nv <= 168, nv
    return dict(name=name, grid=256, block=768, lds=LDS_A, vgpr=168, sgpr=102 if STAMP else 72, single=True)
```
